```python
import torch

def _softmax(x, axis=-1):
    return torch.softmax(x, dim=axis)
def _gelu(x):
    return torch.nn.functional.gelu(x, approximate="tanh")
def _silu(x):
    return torch.nn.functional.silu(x)
def _sigmoid(x):
    return torch.sigmoid(x)
def _layernorm(x, axis=-1, eps=1e-5):
    m = x.mean(dim=axis, keepdim=True)
    v = x.var(dim=axis, keepdim=True, unbiased=False)
    return (x - m) / torch.sqrt(v + eps)
def _scatter_add(tgt, idx, src, axis=0):
    return tgt.clone().index_add_(axis, idx, src)
def _segment_sum(src, seg, n):
    out = torch.zeros((n,) + src.shape[1:], dtype=src.dtype)
    return out.index_add_(0, seg, src)
def _pad(x, pw):
    flat = tuple(v for pair in reversed(pw) for v in pair)
    return torch.nn.functional.pad(x, flat)

kernel_name = 'standalone__linear_kernel_hedgehog__prompt'

def setup_inputs():

    _w = (lambda a: (lambda t: t.to(torch.bfloat16) if t.is_floating_point() else t)(torch.as_tensor(a)))
    B, S, D, H = 1, 2048, 640, 32
    Dh = D // H
    return {
        "x": _w((lambda *s: torch.randn(*s, dtype=torch.bfloat16) * 0.4)(B, S, D)),
        "wqkv": _w((lambda *s: torch.randn(*s, dtype=torch.bfloat16) * 0.4)(D, 3 * D)),
        "w_phi": _w((lambda *s: torch.randn(*s, dtype=torch.bfloat16) * 0.4)(H, Dh, Dh) * (Dh ** -0.5)),
        "wo": _w((lambda *s: torch.randn(*s, dtype=torch.bfloat16) * 0.05)(D, D)),
    }

def reference(x, wqkv, w_phi, wo):
    B, S, D = x.shape
    H = 32; Dh = D // H
    qkv = (lambda x, *d: x.permute(*d))((x @ wqkv).reshape(B, S, 3, H, Dh), 2, 0, 3, 1, 4)
    q, k, v = qkv[0], qkv[1], qkv[2]
    pq = torch.einsum("bhsd,hdf->bhsf", q, w_phi)
    pk = torch.einsum("bhsd,hdf->bhsf", k, w_phi)
    phi_q = torch.concatenate([_softmax(pq, axis=-1), _softmax(-pq, axis=-1)], axis=-1)
    phi_k = torch.concatenate([_softmax(pk, axis=-1), _softmax(-pk, axis=-1)], axis=-1)
    kv = torch.einsum("bhsf,bhsd->bhfd", phi_k, v)
    z  = torch.einsum("bhsf->bhf", phi_k)
    num = torch.einsum("bhqf,bhfd->bhqd", phi_q, kv)
    den = torch.einsum("bhqf,bhf->bhq", phi_q, z)[..., None] + 1e-6
    o = num / den
    return (lambda x, *d: x.permute(*d))(o, 0, 2, 1, 3).reshape(B, S, D) @ wo
```

```python
class Asm:
    def __init__(self):
        self.lines = []
        self._lab = 0
    def e(self, s):
        for l in s.split("\n"):
            l = l.rstrip()
            if l.strip():
                self.lines.append("    " + l.strip() if not l.strip().endswith(":") else l.strip())
    def c(self, s):
        self.lines.append("    ; " + s)
    def label(self, name):
        self.lines.append(name + ":")
    def newlabel(self, p="L"):
        self._lab += 1
        return f"{p}_{self._lab}"
    def text(self):
        return "\n".join(self.lines) + "\n"

def vr(lo, n=1):
    return f"v{lo}" if n == 1 else f"v[{lo}:{lo+n-1}]"
def ar(lo, n=1):
    return f"a{lo}" if n == 1 else f"a[{lo}:{lo+n-1}]"
def sr(lo, n=1):
    return f"s{lo}" if n == 1 else f"s[{lo}:{lo+n-1}]"

def kernel_desc(name, vgpr, sgpr, accum_offset):
    return f""".p2align 6
.amdhsa_kernel {name}
  .amdhsa_next_free_vgpr {vgpr}
  .amdhsa_next_free_sgpr {sgpr}
  .amdhsa_accum_offset {accum_offset}
  .amdhsa_group_segment_fixed_size 0
  .amdhsa_kernarg_size 56
  .amdhsa_user_sgpr_count 2
  .amdhsa_user_sgpr_kernarg_segment_ptr 1
  .amdhsa_system_sgpr_workgroup_id_x 1
  .amdhsa_float_denorm_mode_32 3
  .amdhsa_float_denorm_mode_16_64 3
.end_amdhsa_kernel
"""

HEADER = """; Kernarg layout for this problem (56 bytes, ptrs only, base s[0:1]):
"""
```

```python
TKV = [
 [(0,0),(0,1),(0,2),(0,3)],
 [(0,4),(1,0),(1,1),(1,2)],
 [(1,3),(1,4),None,None],
]
TQ = [
 [0,1,2,3],
 [4,None,None,None],
]
def split_b(hp):
    u0 = (5*hp) & 7
    return min(4, 8-u0)
def wkv_addr(hp, T, lane, kk=0, rd=0):
    b = split_b(hp)
    G = lane >> 4; i = lane & 15; rp = i >> 2; c = i & 3
    Q = 2*(G & 1) + (c >> 1); hh = c & 1
    q = TKV[T][Q] or TKV[T][0]
    seg, jq = q
    cc = 5*hh + jq
    j = cc >> 1; sub = cc & 1
    pos8 = j if j < b else 4 + j - b
    pos = 8*seg + pos8
    krow = 16*kk + 8*(G >> 1) + 4*rd + rp
    p = (pos + 4*(krow & 3)) & 15
    return krow*256 + p*16 + sub*8
def conflicts(addrs_fn):
    worst = 0
    for half in range(2):
        banks = {}
        for lane in range(32*half, 32*half+32):
            a = addrs_fn(lane)
            for dw in (0,1):
                banks.setdefault((a//4+dw) % 64, set()).add(a+4*dw)
        worst = max(worst, max(len(s) for s in banks.values()))
    return worst
if __name__ == "__main__":
    for hp in range(8):
        print(hp, split_b(hp), [conflicts(lambda l: wkv_addr(hp, T, l)) for T in range(3)])
    def wq_addr(T, lane):
        G = lane >> 4; i = lane & 15; rp = i >> 2; c = i & 3
        Q = 2*(G & 1) + (c >> 1); hh = c & 1
        jq = TQ[T][Q]; jq = TQ[T][0] if jq is None else jq
        return (8*(G >> 1) + rp)*80 + 8*(5*hh + jq)
    print("wq", [conflicts(lambda l: wq_addr(T, l)) for T in range(2)])
    def wo_addr(nt, lane):
        G = lane >> 4; i = lane & 15; rp = i >> 2; c = i & 3
        if nt == 2 and c >= 2: c = c - 2
        return (8*G + rp)*80 + (16*nt + 4*c)*2
    print("wo", [conflicts(lambda l: wo_addr(nt, l)) for nt in range(3)])
```

```python
import sys
from asmlib import *
from lay2 import TKV, TQ

KN = "standalone__linear_kernel_hedgehog__prompt_kernel"
NST = 10
SLOT = 32768
R = 3
L_WQ = 98304
L_PHI = 149504
L_ZERO = 151552
L_CNT = 153600
L_KVF = 154624
L_PK = 32768
L_WO_A = 65536
L_WO_B = 0
LDS_BYTES = 158720
WS_PART = 0x000000
WS_O = 0x100000
WS_F1 = 0x400000
WS_F2 = 0x408000
WS_STAMP = 0x700000
WS_DBG = 0x800000
LOG2E = 0x3fb8aa3b
NLOG2E = 0xbfb8aa3b

class G:
    pass

def gen(stamps=False, dump=None, stop=None):
    a = Asm(); e = a.e
    S_X, S_W, S_WS = 20, 24, 28
    S_A, S_B = 72, 76
    sWAVE, sW4, sRC, sHP, sBB = 32, 33, 34, 35, 36
    sT = 40
    sSOFX, sSOFW, sM0 = 52, 53, 54
    sNONCE = 55
    sL = 56
    sEX = 58
    sST = 80
    NS = 11
    def stamp(i):
        if stamps: e(f"s_memtime s[{sST+2*i}:{sST+2*i+1}]")
    def rstamp(i):
        if stamps: e(f"s_memrealtime s[{sST+2*i}:{sST+2*i+1}]")
    def srd(dst, ptr, nbytes):
        e(f"""
        s_mov_b32 s{dst}, s{ptr}
        s_and_b32 s{dst+1}, s{ptr+1}, 0xffff
        s_mov_b32 s{dst+2}, {nbytes}
        s_mov_b32 s{dst+3}, 0x20000
        """)
    def subbar(idx, target=4, tmp=2):
        lab = a.newlabel("SB")
        e(f"""
        v_mov_b32 v{tmp}, {L_CNT + 4*idx}
        v_mov_b32 v{tmp+1}, 1
        s_mov_b64 exec, 1
        ds_add_u32 v{tmp}, v{tmp+1}
        s_mov_b64 exec, -1
        """)
        subwait(idx, target, tmp, lab)
    def subsignal(idx, tmp=2):
        e(f"""
        v_mov_b32 v{tmp}, {L_CNT + 4*idx}
        v_mov_b32 v{tmp+1}, 1
        s_mov_b64 exec, 1
        ds_add_u32 v{tmp}, v{tmp+1}
        s_mov_b64 exec, -1
        """)
    def subwait(idx, target=4, tmp=2, lab=None):
        lab = lab or a.newlabel("SW")
        e(f"v_mov_b32 v{tmp}, {L_CNT + 4*idx}")
        e(f"s_mov_b32 s60, 0x80000")
        a.label(lab)
        e(f"""
        s_sub_u32 s60, s60, 1
        s_cbranch_scc1 L_end
        ds_read_b32 v{tmp+1}, v{tmp}
        s_waitcnt lgkmcnt(0)
        v_readfirstlane_b32 s{sT}, v{tmp+1}
        s_nop 0
        s_cmp_lt_u32 s{sT}, {target}
        s_cbranch_scc1 {lab}
        """)
    def get_nonce(vtmp):
        lab = a.newlabel("NC")
        e(f"v_mov_b32 v{vtmp}, 0")
        e(f"s_mov_b32 s60, 0x8000")
        a.label(lab)
        e(f"""
        s_sub_u32 s60, s60, 1
        s_cbranch_scc1 L_end
        buffer_load_dword v{vtmp+1}, v{vtmp}, s[{S_A}:{S_A+3}], 0 offen sc1
        s_waitcnt vmcnt(0)
        v_readfirstlane_b32 s{sNONCE}, v{vtmp+1}
        s_nop 0
        s_cmp_eq_u32 s{sNONCE}, 0
        s_cbranch_scc1 {lab}
        """)
    def poll_flags(base_s, vtmp):
        lab = a.newlabel("PF")
        e(f"""
        v_and_b32 v{vtmp}, 15, v0
        v_lshlrev_b32 v{vtmp}, 7, v{vtmp}
        s_mov_b32 s60, 0x8000
        """)
        a.label(lab)
        e(f"""
        s_sub_u32 s60, s60, 1
        s_cbranch_scc1 L_end
        buffer_load_dword v{vtmp+1}, v{vtmp}, s[{S_WS}:{S_WS+3}], s{base_s} offen sc1
        s_waitcnt vmcnt(0)
        v_cmp_ne_u32 vcc, s{sNONCE}, v{vtmp+1}
        s_cbranch_vccnz {lab}
        """)
    def dump_regs(regs, off, tag):
        n = len(regs)
        e(f"""
        s_lshl_b32 s{sT}, s2, 3
        s_add_u32 s{sT}, s{sT}, s{sWAVE}
        s_mul_i32 s{sT}, s{sT}, {n*256}
        s_add_u32 s{sT}, s{sT}, {WS_DBG + off}
        v_lshlrev_b32 v2, 2, v0
        """)
        for i, r in enumerate(regs):
            e(f"buffer_store_dword v{r}, v2, s[{S_WS}:{S_WS+3}], s{sT} offen offset:{(i%16)*256}")
            if i % 16 == 15: e(f"s_add_u32 s{sT}, s{sT}, 4096")
        e("s_waitcnt vmcnt(0)")

    def softmax_pair(P0, P1, EP, EN, PH, tm):
        p = [P0 + i for i in range(16)] + [P1 + i for i in range(4)]
        tM, tN, tA, tB, tS, tR = tm, tm+1, tm+2, tm+4, tm+6, tm+6
        e(f"v_max3_f32 v{tM}, v{p[0]}, v{p[1]}, v{p[2]}")
        e(f"v_min3_f32 v{tN}, v{p[0]}, v{p[1]}, v{p[2]}")
        for i in range(3, 19, 2):
            e(f"v_max3_f32 v{tM}, v{tM}, v{p[i]}, v{p[i+1]}")
            e(f"v_min3_f32 v{tN}, v{tN}, v{p[i]}, v{p[i+1]}")
        e(f"v_max_f32 v{tM}, v{tM}, v{p[19]}")
        e(f"v_min_f32 v{tN}, v{tN}, v{p[19]}")
        e(f"v_mul_f32 v{tA}, {NLOG2E:#x}, v{tM}")
        e(f"v_mul_f32 v{tB}, {LOG2E:#x}, v{tN}")
        for i in range(10):
            e(f"v_pk_fma_f32 v[{EP+2*i}:{EP+2*i+1}], v[{p[2*i]}:{p[2*i]+1}], s[{sL}:{sL+1}], v[{tA}:{tA+1}] op_sel_hi:[1,1,0]")
        for i in range(10):
            e(f"v_pk_fma_f32 v[{EN+2*i}:{EN+2*i+1}], v[{p[2*i]}:{p[2*i]+1}], s[{sL}:{sL+1}], v[{tB}:{tB+1}] op_sel_hi:[1,1,0] neg_lo:[1,0,0] neg_hi:[1,0,0]")
        for i in range(20): e(f"v_exp_f32 v{EP+i}, v{EP+i}")
        for i in range(20): e(f"v_exp_f32 v{EN+i}, v{EN+i}")
        e(f"v_pk_add_f32 v[{tA}:{tA+1}], v[{EP}:{EP+1}], v[{EP+2}:{EP+3}]")
        e(f"v_pk_add_f32 v[{tB}:{tB+1}], v[{EN}:{EN+1}], v[{EN+2}:{EN+3}]")
        for i in range(2, 10):
            e(f"v_pk_add_f32 v[{tA}:{tA+1}], v[{tA}:{tA+1}], v[{EP+2*i}:{EP+2*i+1}]")
            e(f"v_pk_add_f32 v[{tB}:{tB+1}], v[{tB}:{tB+1}], v[{EN+2*i}:{EN+2*i+1}]")
        e(f"v_add_f32 v{tA}, v{tA}, v{tA+1}")
        e(f"v_add_f32 v{tB}, v{tB}, v{tB+1}")
        e(f"v_rcp_f32 v{tA}, v{tA}")
        e(f"v_rcp_f32 v{tB}, v{tB}")
        e("s_nop 0")
        for i in range(10):
            e(f"v_pk_mul_f32 v[{EP+2*i}:{EP+2*i+1}], v[{EP+2*i}:{EP+2*i+1}], v[{tA}:{tA+1}] op_sel_hi:[1,0]")
        for i in range(10):
            e(f"v_pk_mul_f32 v[{EN+2*i}:{EN+2*i+1}], v[{EN+2*i}:{EN+2*i+1}], v[{tB}:{tB+1}] op_sel_hi:[1,0]")
        for i in range(10):
            e(f"v_cvt_pk_bf16_f32 v{PH+i}, v{EP+2*i}, v{EP+2*i+1}")
        for i in range(10):
            e(f"v_cvt_pk_bf16_f32 v{PH+10+i}, v{EN+2*i}, v{EN+2*i+1}")

    def lane_decomp32(vG, vrp, vc, vQ, vhh):
        e(f"""
        v_lshrrev_b32 v{vG}, 4, v0
        v_bfe_u32 v{vrp}, v0, 2, 2
        v_and_b32 v{vc}, 3, v0
        v_and_b32 v{vQ}, 1, v{vG}
        v_lshlrev_b32 v{vQ}, 1, v{vQ}
        v_lshrrev_b32 v{vhh}, 1, v{vc}
        v_add_u32 v{vQ}, v{vQ}, v{vhh}
        v_and_b32 v{vhh}, 1, v{vc}
        """)

    def wphi_frags(WF, va, t):
        vG, vrp, vc, vQ, vhh = t, t+1, t+2, t+3, t+4
        lane_decomp32(vG, vrp, vc, vQ, vhh)
        e(f"""
        v_mul_u32_u24 v{t+5}, 800, v{vhh}
        v_mul_u32_u24 v{t+6}, 40, v{vrp}
        v_add_u32 v{t+5}, v{t+5}, v{t+6}
        v_lshlrev_b32 v{t+6}, 3, v{vQ}
        v_add_u32 v{t+5}, v{t+5}, v{t+6}
        v_add_u32 v{t+5}, {L_PHI}, v{t+5}
        v_lshrrev_b32 v{t+6}, 1, v{vG}
        v_mov_b32 v{va+1}, {L_ZERO}
        v_cmp_eq_u32 vcc, v{t+6}, v{vhh}
        s_nop 1
        v_cndmask_b32 v{va}, v{va+1}, v{t+5}, vcc
        v_cmp_eq_u32 s[{sEX}:{sEX+1}], 0, v{vQ}
        s_nop 1
        s_and_b64 vcc, vcc, s[{sEX}:{sEX+1}]
        v_add_u32 v{t+5}, 32, v{t+5}
        s_nop 0
        v_cndmask_b32 v{va+1}, v{va+1}, v{t+5}, vcc
        """)
        for u in range(2):
            for step in range(3):
                for rd in range(2):
                    d = WF + u*12 + step*4 + 2*rd
                    if step == 2 and rd == 1:
                        e(f"v_mov_b32 v{d}, 0"); e(f"v_mov_b32 v{d+1}, 0")
                    else:
                        e(f"ds_read_b64_tr_b16 v[{d}:{d+1}], v{va+u} offset:{(8*step+4*rd)*40}")

    def feature_map(SRC, WF, P0, P1):
        for step in range(3):
            for u, P in ((0, P0), (1, P1)):
                c = "0" if step == 0 else f"v[{P}:{P+15}]"
                e(f"v_mfma_f32_32x32x16_bf16 v[{P}:{P+15}], v[{WF+u*12+step*4}:{WF+u*12+step*4+3}], v[{SRC+4*step}:{SRC+4*step+3}], {c}")

    e(f"""
    s_load_dwordx8 s[4:11], s[0:1], 0
    s_load_dwordx4 s[12:15], s[0:1], 32
    s_load_dwordx2 s[16:17], s[0:1], 48
    s_cmp_ge_u32 s2, 256
    s_cbranch_scc1 L_end
    """)
    stamp(0); rstamp(9)
    e(f"""
    v_lshrrev_b32 v1, 6, v0
    v_and_b32 v0, 63, v0
    s_and_b32 s{sT}, s2, 7
    s_lshr_b32 s{sT+1}, s2, 3
    v_readfirstlane_b32 s{sWAVE}, v1
    s_lshr_b32 s{sRC}, s{sT}, 1
    s_lshl_b32 s{sRC}, s{sRC}, 2
    s_lshr_b32 s{sT+2}, s{sT+1}, 3
    s_add_u32 s{sRC}, s{sRC}, s{sT+2}
    s_and_b32 s{sHP}, s{sT}, 1
    s_lshl_b32 s{sHP}, s{sHP}, 3
    s_and_b32 s{sT+2}, s{sT+1}, 7
    s_add_u32 s{sHP}, s{sHP}, s{sT+2}
    s_and_b32 s{sW4}, s{sWAVE}, 3
    s_mul_i32 s{sBB}, s{sHP}, 5
    s_and_b32 s{sBB}, s{sBB}, 7
    s_sub_u32 s{sBB}, 8, s{sBB}
    s_min_u32 s{sBB}, s{sBB}, 4
    s_mov_b32 s{sL}, {LOG2E:#x}
    s_mov_b32 s{sL+1}, {LOG2E:#x}
    s_cmp_ge_u32 s{sWAVE}, 4
    s_cbranch_scc1 L_lq
    """)

    def xfrag_addr(vBA, t):
        e(f"""
        v_and_b32 v{t}, 31, v0
        v_lshrrev_b32 v{t+1}, 5, v0
        v_bfe_u32 v{t+2}, v{t}, 1, 3
        v_xor_b32 v{t+2}, v{t+2}, v{t+1}
        v_lshlrev_b32 v{t+2}, 4, v{t+2}
        s_lshl_b32 s{sT}, s{sW4}, 5
        v_add_u32 v{t}, s{sT}, v{t}
        v_lshlrev_b32 v{t}, 7, v{t}
        v_add_u32 v{vBA}, v{t}, v{t+2}
        v_xor_b32 v{vBA+1}, 32, v{vBA}
        v_xor_b32 v{vBA+2}, 64, v{vBA}
        v_xor_b32 v{vBA+3}, 96, v{vBA}
        """)
    class Base:
        def __init__(self, regs): self.regs = regs; self.cur = 0
        def set(self, s):
            so = (s % R) * SLOT
            want = (so // 65536) * 65536
            if want != self.cur:
                d = (want - self.cur) & 0xffffffff
                for r in self.regs: e(f"v_add_u32 v{r}, {d}, v{r}")
                self.cur = want
            return so - self.cur

    ACC = 64; FB = [112, 128]; WF = 144; KB = 168; VB = 180; PK0 = 192; PK1 = 208; EP = 224; EN = 112; PH = 64; TM = 244
    vAA = 10; vBA = 14
    e(f"""
    v_lshlrev_b32 v2, 4, v0
    s_lshl_b32 s{sT}, s{sW4}, 10
    s_add_u32 s{sT}, s{sT}, {L_ZERO}
    v_add_u32 v2, s{sT}, v2
    v_mov_b32 v4, 0
    v_mov_b32 v5, 0
    v_mov_b32 v6, 0
    v_mov_b32 v7, 0
    s_cmp_eq_u32 s{sW4}, 3
    s_cbranch_scc1 L_kv_nz
    ds_write_b128 v2, v[4:7]
L_kv_nz:
    """)
    lane_decomp32(2, 3, 4, 5, 6)
    e(f"""
    v_lshlrev_b32 v5, 3, v5          ; 8Q
    v_mul_u32_u24 v6, 5, v6          ; 5hh
    v_lshrrev_b32 v7, 1, v2          ; G>>1
    v_lshlrev_b32 v7, 3, v7
    v_add_u32 v7, v7, v3             ; krow
    v_lshlrev_b32 v7, 8, v7
    v_add_u32 v7, 16384, v7
    v_lshlrev_b32 v8, 2, v3          ; 4rp
    s_sub_u32 s{sT+1}, 4, s{sBB}     ; 4-b
    """)
    for T in range(3):
        immc = 0; imms = 0
        for Q in range(4):
            q = TKV[T][Q] or TKV[T][0]
            immc |= q[1] << (8*Q); imms |= (8*q[0]) << (8*Q)
        e(f"""
        s_mov_b32 s{sT}, {immc}
        v_bfe_u32 v18, s{sT}, v5, 8
        v_add_u32 v18, v18, v6           ; cc
        v_lshrrev_b32 v19, 1, v18        ; j
        v_mov_b32 v9, s{sT+1}
        v_cmp_le_u32 vcc, s{sBB}, v19    ; j >= b
        v_mov_b32 v20, 0
        s_nop 0
        v_cndmask_b32 v9, v20, v9, vcc   ; (j>=b) ? 4-b : 0
        v_add_u32 v19, v19, v9           ; pos8
        s_mov_b32 s{sT}, {imms}
        v_bfe_u32 v9, s{sT}, v5, 8       ; 8*seg
        v_add3_u32 v19, v19, v9, v8
        v_and_b32 v19, 15, v19
        v_lshlrev_b32 v19, 4, v19
        v_and_b32 v18, 1, v18
        v_lshlrev_b32 v18, 3, v18
        v_add3_u32 v{vAA+T}, v7, v19, v18
        """)
    xfrag_addr(vBA, 2)
    for r in range(48): e(f"v_mov_b32 v{ACC+r}, 0")
    def kv_reads(kk, buf, sb):
        b = FB[buf]
        e(f"ds_read_b128 v[{b+12}:{b+15}], v{vBA+kk} offset:{sb}")
        for T in range(3):
            for rd in range(2):
                e(f"ds_read_b64_tr_b16 v[{b+4*T+2*rd}:{b+4*T+2*rd+1}], v{vAA+T} offset:{sb+(16*kk+4*rd)*256}")
    def kv_mfmas(buf):
        b = FB[buf]
        for T in range(3):
            e(f"v_mfma_f32_32x32x16_bf16 v[{ACC+16*T}:{ACC+16*T+15}], v[{b+4*T}:{b+4*T+3}], v[{b+12}:{b+15}], v[{ACC+16*T}:{ACC+16*T+15}]")
    srd_done = False
    e("s_waitcnt lgkmcnt(0)")
    srd(S_WS, 16, 0x10000000)
    srd(S_A, 14, 256)
    e(f"""
    s_or_b32 s{sT}, s{sRC}, s{sHP}
    s_or_b32 s{sT}, s{sT}, s{sW4}
    s_cmp_lg_u32 s{sT}, 0
    s_cbranch_scc1 L_kv_nn
    s_memrealtime s[{sT+2}:{sT+3}]
    s_waitcnt lgkmcnt(0)
    s_or_b32 s{sT+2}, s{sT+2}, 1
    v_mov_b32 v2, 0
    v_mov_b32 v3, s{sT+2}
    s_mov_b64 exec, 1
    buffer_store_dword v3, v2, s[{S_A}:{S_A+3}], 0 offen sc1
    s_mov_b64 exec, -1
L_kv_nn:
    """)
    stamp(1)
    e("s_barrier")
    stamp(2)
    base = Base([vAA, vAA+1, vAA+2, vBA, vBA+1, vBA+2, vBA+3])
    sb = base.set(0)
    kv_reads(0, 0, sb)
    for s in range(NST):
        for kk in range(3):
            kv_reads(kk+1, (kk+1) & 1, sb)
            e("s_waitcnt lgkmcnt(7)")
            kv_mfmas(kk & 1)
        if s == 4:
            pass
        e("s_waitcnt lgkmcnt(0)")
        e("s_barrier")
        if s + 1 < NST:
            sb = base.set(s+1)
            kv_reads(0, 0, sb)
        else:
            pass
        kv_mfmas(1)
    stamp(3)
    wphi_frags(WF, 18, 22)
    e("s_nop 7")
    loc = {}
    for T, qs in enumerate(TKV):
        for Q, q in enumerate(qs):
            if q is not None: loc[q] = ACC + 16*T + 4*Q
    e("s_nop 7")
    if dump == "kvacc":
        dump_regs([loc[(sg, j)] + x for sg in range(2) for j in range(5) for x in range(4)], 0, "kvacc")
    for j in range(5):
        e(f"v_cvt_pk_bf16_f32 v{KB+2*j}, v{loc[(0,j)]}, v{loc[(0,j)]+1}")
        e(f"v_cvt_pk_bf16_f32 v{KB+2*j+1}, v{loc[(0,j)]+2}, v{loc[(0,j)]+3}")
    e(f"v_mov_b32 v{KB+10}, 0"); e(f"v_mov_b32 v{KB+11}, 0")
    for j in range(5):
        e(f"v_cvt_pk_bf16_f32 v{VB+2*j}, v{loc[(1,j)]}, v{loc[(1,j)]+1}")
        e(f"v_cvt_pk_bf16_f32 v{VB+2*j+1}, v{loc[(1,j)]+2}, v{loc[(1,j)]+3}")
    e(f"v_mov_b32 v{VB+10}, 0x3f80"); e(f"v_mov_b32 v{VB+11}, 0")
    e("s_waitcnt lgkmcnt(0)")
    feature_map(KB, WF, PK0, PK1)
    vRA = 18
    e(f"""
    v_and_b32 v2, 31, v0
    v_lshrrev_b32 v3, 5, v0
    v_lshlrev_b32 v3, 14, v3
    s_lshl_b32 s{sT}, s{sW4}, 5
    v_add_u32 v2, s{sT}, v2
    v_lshlrev_b32 v2, 7, v2
    v_add_u32 v2, v2, v3
    v_add_u32 v2, {L_PK}, v2
    v_and_b32 v3, 7, v0
    v_bfe_u32 v4, v0, 3, 1
    v_lshlrev_b32 v4, 2, v4
    v_xor_b32 v3, v3, v4
    v_lshlrev_b32 v3, 4, v3
    v_add_u32 v{vRA}, v2, v3
    """)
    for u in range(1, 8): e(f"v_xor_b32 v{vRA+u}, {16*u}, v{vRA}")
    for u in range(3):
        e(f"ds_write_b128 v{vRA+5+u}, v[{VB+4*u}:{VB+4*u+3}]")
    e("s_nop 7")
    if dump == "pk":
        e("s_nop 7")
        dump_regs([PK0+i for i in range(16)] + [PK1+i for i in range(4)], 0, "pk")
    softmax_pair(PK0, PK1, EP, EN, PH, TM)
    if dump == "phik":
        dump_regs([PH+i for i in range(20)], 0, "phik")
    for u in range(5):
        e(f"ds_write_b128 v{vRA+u}, v[{PH+4*u}:{PH+4*u+3}]")
    subbar(0)
    stamp(4)
    vKA = 26
    vKB = 28
    e(f"""
    v_lshrrev_b32 v2, 4, v0            ; G
    v_bfe_u32 v3, v0, 2, 2             ; rp
    v_and_b32 v4, 3, v0                ; c
    v_lshlrev_b32 v5, 3, v2
    v_add_u32 v5, v5, v3
    v_lshlrev_b32 v5, 7, v5            ; *128
    s_lshr_b32 s{sT}, s{sW4}, 1
    s_lshl_b32 s{sT}, s{sT}, 14
    s_add_u32 s{sT}, s{sT}, {L_PK}
    v_add_u32 v5, s{sT}, v5
    v_and_b32 v6, 1, v2
    v_lshlrev_b32 v6, 2, v6
    v_xor_b32 v6, v6, v3
    v_lshrrev_b32 v7, 1, v4            ; c>>1
    v_and_b32 v8, 1, v4                ; sub
    v_lshlrev_b32 v8, 3, v8
    v_add_u32 v5, v5, v8               ; + sub*8
    s_and_b32 s{sT+1}, s{sW4}, 1
    v_add_u32 v9, 5, v7
    v_mov_b32 v19, 7
    s_cmp_eq_u32 s{sT+1}, 1
    s_cselect_b64 vcc, -1, 0
    v_cndmask_b32 v9, v9, v19, vcc
    v_xor_b32 v9, v9, v6
    v_lshlrev_b32 v9, 4, v9
    v_add_u32 v{vKA}, v5, v9
    v_xor_b32 v{vKA+1}, 64, v{vKA}
    v_add_u32 v{vKA+1}, 512, v{vKA+1}
    """)
    for ct in range(3):
        if ct < 2:
            e(f"v_add_u32 v9, {2*ct}, v7")
        else:
            e(f"v_mov_b32 v9, 4")
        e(f"""
        v_xor_b32 v9, v9, v6
        v_lshlrev_b32 v9, 4, v9
        v_add_u32 v{vKB+2*ct}, v5, v9
        v_xor_b32 v{vKB+2*ct+1}, 64, v{vKB+2*ct}
        v_add_u32 v{vKB+2*ct+1}, 512, v{vKB+2*ct+1}
        """)
    KD = 192
    KF = 64
    for kap in range(4):
        f = KF + 16*kap
        for rd in range(2):
            e(f"ds_read_b64_tr_b16 v[{f+2*rd}:{f+2*rd+1}], v{vKA+rd} offset:{4096*kap}")
        for ct in range(3):
            for rd in range(2):
                e(f"ds_read_b64_tr_b16 v[{f+4+4*ct+2*rd}:{f+4+4*ct+2*rd+1}], v{vKB+2*ct+rd} offset:{4096*kap}")
    for kap in range(4):
        f = KF + 16*kap
        e(f"s_waitcnt lgkmcnt({min(15, 8*(3-kap))})")
        for ct in range(3):
            c = "0" if kap == 0 else f"v[{KD+4*ct}:{KD+4*ct+3}]"
            e(f"v_mfma_f32_16x16x32_bf16 v[{KD+4*ct}:{KD+4*ct+3}], v[{f}:{f+3}], v[{f+4+4*ct}:{f+4+4*ct+3}], {c}")
    e(f"""
    v_lshrrev_b32 v2, 4, v0            ; g
    v_and_b32 v3, 15, v0
    s_lshr_b32 s{sT}, s{sW4}, 1
    s_mul_i32 s{sT}, s{sT}, 6
    s_and_b32 s{sT+1}, s{sW4}, 1
    s_lshl_b32 s{sT+2}, s{sT+1}, 2
    s_add_u32 s{sT}, s{sT}, s{sT+2}
    v_add_u32 v4, s{sT}, v2            ; hd*6+dq
    v_mul_u32_u24 v4, 40, v4
    v_add_u32 v4, v4, v3
    v_lshlrev_b32 v4, 3, v4
    v_mov_b32 v5, 0x40000000
    s_mul_i32 s{sT+2}, s{sT+1}, 2      ; rt*2
    s_sub_u32 s{sT+2}, 4, s{sT+2}
    v_cmp_gt_u32 vcc, s{sT+2}, v2
    s_nop 1
    v_cndmask_b32 v4, v5, v4, vcc
    v_cmp_gt_u32 vcc, 8, v3
    s_nop 1
    v_cndmask_b32 v5, v5, v4, vcc
    s_lshl_b32 s{sT}, s{sHP}, 4
    s_add_u32 s{sT}, s{sT}, s{sRC}
    s_lshl_b32 s{sT}, s{sT}, 12
    s_add_u32 s{sT}, s{sT}, {WS_PART}
    """)
    e("s_nop 3")
    for ct in range(3):
        e(f"v_cvt_pk_bf16_f32 v{KD+16+2*ct}, v{KD+4*ct}, v{KD+4*ct+1}")
        e(f"v_cvt_pk_bf16_f32 v{KD+16+2*ct+1}, v{KD+4*ct+2}, v{KD+4*ct+3}")
    for ct in range(3):
        va = 4 if ct < 2 else 5
        e(f"buffer_store_dwordx2 v[{KD+16+2*ct}:{KD+16+2*ct+1}], v{va}, s[{S_WS}:{S_WS+3}], s{sT} offen offset:{128*ct} sc1")
    get_nonce(6)
    e("s_waitcnt vmcnt(0)")
    subbar(1)
    e(f"""
    s_lshl_b32 s{sT+1}, s{sHP}, 4
    s_add_u32 s{sT+1}, s{sT+1}, s{sRC}
    s_lshl_b32 s{sT+1}, s{sT+1}, 7
    s_add_u32 s{sT+1}, s{sT+1}, {WS_F1}
    s_cmp_lg_u32 s{sW4}, 0
    s_cbranch_scc1 L_kv_nf
    v_mov_b32 v2, 0
    v_mov_b32 v3, s{sNONCE}
    s_mov_b64 exec, 1
    buffer_store_dword v3, v2, s[{S_WS}:{S_WS+3}], s{sT+1} offen sc1
    s_mov_b64 exec, -1
L_kv_nf:
    """)
    stamp(5)
    srd(S_B, 10, 640*1280)
    e(f"""
    v_mul_u32_u24 v2, 52, v0
    v_lshrrev_b32 v2, 8, v2            ; j = l/5
    v_mul_u32_u24 v3, 5, v2
    v_sub_u32 v3, v0, v3               ; u5
    v_lshlrev_b32 v3, 4, v3
    v_mul_u32_u24 v4, 1280, v2
    v_add_u32 v34, v4, v3              ; V_lin
    v_add_u32 v4, 16, v2
    v_add_u32 v5, 32, v2
    v_cmp_le_u32 vcc, 4, v2
    s_nop 1
    v_cndmask_b32 v4, v4, v5, vcc
    v_mul_u32_u24 v4, 1280, v4
    v_add_u32 v35, v4, v3              ; V_split
    s_mul_i32 s{sT+4}, s{sHP}, 80
    v_cmp_gt_u32 vcc, 40, v0
    s_nop 1
    s_mov_b64 exec, vcc
    """)
    for w in range(4):
        lab = f"L_wo_{w}"
        a.label(lab)
        if w < 3:
            e(f"s_cmp_lg_u32 s{sW4}, {w}")
            e(f"s_cbranch_scc1 L_wo_{w+1}")
        for m in range(20):
            ci = 4*m + w
            hp_, c5 = divmod(ci, 5)
            rowb = 40*hp_ + [0, 8, 20, 28, 0][c5]
            ldsb = (L_WO_A + ci*640) if ci < 48 else (L_WO_B + (ci-48)*640)
            e(f"s_mov_b32 m0, {ldsb}")
            e(f"s_add_u32 s{sT}, s{sT+4}, {rowb*1280}")
            e(f"buffer_load_dwordx4 v{35 if c5 == 4 else 34}, s[{S_B}:{S_B+3}], s{sT} offen lds")
        if w < 3: e("s_branch L_wo_done")
    a.label("L_wo_done")
    e("s_mov_b64 exec, -1")
    e(f"""
    s_lshl_b32 s{sT+1}, s{sHP}, 11
    s_add_u32 s{sT+1}, s{sT+1}, {WS_F1}
    """)
    poll_flags(sT+1, 2)
    stamp(6)
    PL = 64
    e(f"""
    s_lshl_b32 s{sT}, s{sW4}, 6
    v_add_u32 v2, s{sT}, v0            ; tau
    v_lshlrev_b32 v3, 4, v2
    v_mov_b32 v4, 0x40000000
    v_cmp_gt_u32 vcc, 240, v2
    s_nop 1
    v_cndmask_b32 v3, v4, v3, vcc
    s_lshl_b32 s{sT}, s{sHP}, 16
    s_add_u32 s{sT}, s{sT}, {WS_PART}
    """)
    for r in range(16):
        e(f"buffer_load_dwordx4 v[{PL+4*r}:{PL+4*r+3}], v3, s[{S_WS}:{S_WS+3}], s{sT} offen sc1")
        e(f"s_add_u32 s{sT}, s{sT}, 4096")
    SUM = 128
    for r in range(16):
        e(f"s_waitcnt vmcnt({15-r})")
        for i in range(4):
            src = PL + 4*r + i
            if r == 0:
                e(f"v_lshlrev_b32 v{SUM+2*i}, 16, v{src}")
                e(f"v_and_b32 v{SUM+2*i+1}, 0xffff0000, v{src}")
            else:
                e(f"v_lshlrev_b32 v{SUM+8}, 16, v{src}")
                e(f"v_and_b32 v{SUM+9}, 0xffff0000, v{src}")
                e(f"v_pk_add_f32 v[{SUM+2*i}:{SUM+2*i+1}], v[{SUM+2*i}:{SUM+2*i+1}], v[{SUM+8}:{SUM+9}]")
    for i in range(4):
        e(f"v_cvt_pk_bf16_f32 v{SUM+10+i}, v{SUM+2*i}, v{SUM+2*i+1}")
    e(f"""
    v_mul_u32_u24 v4, 205, v2
    v_lshrrev_b32 v4, 12, v4
    v_mul_u32_u24 v5, 20, v4
    v_sub_u32 v5, v2, v5               ; fp
    v_mul_u32_u24 v5, 96, v5
    v_mul_u32_u24 v6, 43, v4
    v_lshrrev_b32 v6, 8, v6
    v_mul_u32_u24 v7, 6, v6
    v_sub_u32 v7, v4, v7               ; dq
    v_mul_u32_u24 v6, 1920, v6
    v_lshlrev_b32 v7, 3, v7
    v_add3_u32 v5, v5, v6, v7
    v_add_u32 v5, {L_KVF}, v5
    v_cmp_gt_u32 vcc, 240, v2
    s_and_saveexec_b64 s[{sEX}:{sEX+1}], vcc
    ds_write_b64 v5, v[{SUM+10}:{SUM+11}]
    ds_write_b64 v5, v[{SUM+12}:{SUM+13}] offset:48
    s_mov_b64 exec, -1
    """)
    e("s_waitcnt vmcnt(0)")
    subsignal(2)
    stamp(7)
    e(f"""
    s_lshl_b32 s{sT+1}, s{sRC}, 11
    s_add_u32 s{sT+1}, s{sT+1}, {WS_F2}
    """)
    vWA = 10
    e(f"""
    v_lshrrev_b32 v2, 4, v0            ; G
    v_bfe_u32 v3, v0, 2, 2             ; rp
    v_and_b32 v4, 3, v0                ; c
    v_lshlrev_b32 v5, 3, v2
    v_add_u32 v5, v5, v3
    v_mul_u32_u24 v5, 80, v5
    v_lshlrev_b32 v6, 3, v4
    v_add_u32 v{vWA}, v5, v6
    v_add_u32 v{vWA+1}, 32, v{vWA}
    v_and_b32 v4, 1, v4
    v_lshlrev_b32 v6, 3, v4
    v_add3_u32 v{vWA+2}, v5, v6, 64
    """)
    subwait(2)
    poll_flags(sT+1, 2)
    stamp(8)
    OF = 96
    e(f"""
    v_lshlrev_b32 v2, 4, v0
    s_lshl_b32 s{sT}, s{sRC}, 3
    s_lshl_b32 s{sT+1}, s{sW4}, 1
    s_add_u32 s{sT}, s{sT}, s{sT+1}
    s_mul_i32 s{sT}, s{sT}, 20480
    s_add_u32 s{sT}, s{sT}, {WS_O}
    s_add_u32 s{sT+1}, s{sT}, 20480
    """)
    for sg in range(20):
        for tt in range(2):
            d = OF + (tt*20+sg)*4
            e(f"buffer_load_dwordx4 v[{d}:{d+3}], v2, s[{S_WS}:{S_WS+3}], s{sT+tt} offen offset:{(sg%4)*1024} sc1")
        if sg % 4 == 3:
            e(f"s_add_u32 s{sT}, s{sT}, 4096"); e(f"s_add_u32 s{sT+1}, s{sT+1}, 4096")
    OD = 40
    AB = [64, 76]
    def wo_reads(sg, buf):
        ofs = (L_WO_A + sg*32*80) if sg < 12 else (L_WO_B + (sg-12)*32*80)
        for nt in range(3):
            for rd in range(2):
                e(f"ds_read_b64_tr_b16 v[{AB[buf]+4*nt+2*rd}:{AB[buf]+4*nt+2*rd+1}], v{vWA+nt} offset:{ofs - wo_base[0] + rd*4*80}")
    wo_base = [L_WO_A]
    for nt in range(3): e(f"v_add_u32 v{vWA+nt}, {L_WO_A}, v{vWA+nt}")
    wo_reads(0, 0)
    for sg in range(20):
        if sg + 1 < 20:
            if sg + 1 == 12:
                for nt in range(3): e(f"v_subrev_u32 v{vWA+nt}, {L_WO_A}, v{vWA+nt}")
                wo_base[0] = 0
            wo_reads(sg+1, (sg+1) & 1)
            e(f"s_waitcnt vmcnt({2*(19-sg)}) lgkmcnt(6)")
        else:
            e("s_waitcnt vmcnt(0) lgkmcnt(0)")
        for tt in range(2):
            for nt in range(3):
                D = OD + (tt*3+nt)*4
                c = "0" if sg == 0 else f"v[{D}:{D+3}]"
                b = AB[sg & 1] + 4*nt
                o = OF + (tt*20+sg)*4
                e(f"v_mfma_f32_16x16x32_bf16 v[{D}:{D+3}], v[{b}:{b+3}], v[{o}:{o+3}], {c}")
    srd(S_B, 12, 2048*1280)
    e(f"""
    v_and_b32 v2, 15, v0               ; t'
    v_lshrrev_b32 v3, 4, v0            ; g
    s_lshl_b32 s{sT}, s{sRC}, 7
    s_lshl_b32 s{sT+1}, s{sW4}, 5
    s_add_u32 s{sT}, s{sT}, s{sT+1}
    v_add_u32 v2, s{sT}, v2
    v_mul_u32_u24 v2, 1280, v2
    v_lshlrev_b32 v4, 3, v3
    v_add_u32 v2, v2, v4
    v_mov_b32 v5, 0x40000000
    v_cmp_gt_u32 vcc, 2, v3
    s_mul_i32 s{sT}, s{sHP}, 80
    s_add_u32 s{sT+1}, s{sT}, {16*1280}
    v_cndmask_b32 v5, v5, v2, vcc
    s_nop 3
    """)
    for tt in range(2):
        for nt in range(3):
            D = OD + (tt*3+nt)*4
            P = 64 + (tt*3+nt)*2
            e(f"v_cvt_pk_bf16_f32 v{P}, v{D}, v{D+1}")
            e(f"v_cvt_pk_bf16_f32 v{P+1}, v{D+2}, v{D+3}")
    for tt in range(2):
        for nt in range(3):
            P = 64 + (tt*3+nt)*2
            e(f"buffer_store_dwordx2 v[{P}:{P+1}], v{2 if nt < 2 else 5}, s[{S_B}:{S_B+3}], s{sT+tt} offen offset:{32*nt}")
    e("s_branch L_fin")

    a.label("L_lq")
    vVX, vVW, vWQ = 10, 11, 12
    vBA = 14
    XF = 64
    e(f"""
    v_lshrrev_b32 v2, 3, v0                 ; l>>3
    s_lshl_b32 s{sT}, s{sW4}, 3
    v_add_u32 v2, s{sT}, v2
    v_mul_u32_u24 v2, 1280, v2
    v_lshrrev_b32 v3, 4, v0                 ; r = l>>4
    s_and_b32 s{sT}, s{sW4}, 1
    s_lshl_b32 s{sT}, s{sT}, 2
    v_add_u32 v4, s{sT}, v3
    v_and_b32 v5, 7, v0
    v_xor_b32 v5, v5, v4
    v_lshlrev_b32 v5, 4, v5
    v_add_u32 v{vVX}, v2, v5
    ; W_kv
    v_and_b32 v4, 15, v0
    v_lshlrev_b32 v5, 2, v3
    v_sub_u32 v4, v4, v5
    v_and_b32 v4, 15, v4                    ; pos
    v_lshrrev_b32 v5, 3, v4                 ; seg
    v_bfe_u32 v6, v4, 2, 1                  ; part
    v_and_b32 v7, 3, v4                     ; i4
    v_mul_lo_u32 v8, v6, s{sBB}
    v_add_u32 v8, v8, v7                    ; j
    v_mov_b32 v9, 5
    v_mov_b32 v13, s{sBB}
    v_cmp_eq_u32 vcc, 0, v6
    s_lshl_b32 s{sT}, s{sW4}, 2
    v_add_u32 v2, s{sT}, v3
    v_cndmask_b32 v9, v9, v13, vcc
    v_cmp_lt_u32 vcc, v8, v9
    v_mul_u32_u24 v2, 3840, v2
    v_add_u32 v5, 1, v5
    v_mul_u32_u24 v5, 1280, v5
    v_lshlrev_b32 v8, 4, v8
    v_add3_u32 v{vVW}, v2, v5, v8
    v_mov_b32 v7, 0x40000000
    v_cndmask_b32 v{vVW}, v7, v{vVW}, vcc
    s_mul_i32 s{sSOFX}, s{sRC}, {128*1280}
    s_mul_i32 s{sSOFW}, s{sHP}, 80
    s_lshl_b32 s{sM0}, s{sW4}, 10
    s_waitcnt lgkmcnt(0)
    """)
    srd(S_X, 4, 2048*1280)
    srd(S_W, 6, 640*3840)
    def issue_stage(s):
        m0b = (s % R) * SLOT
        for m in range(4):
            e(f"s_add_u32 m0, s{sM0}, {m0b + m*4096}")
            e(f"s_add_u32 s{sT}, s{sSOFX}, {m*32*1280 + s*128}")
            e(f"buffer_load_dwordx4 v{vVX}, s[{S_X}:{S_X+3}], s{sT} offen lds")
            e(f"s_add_u32 m0, s{sM0}, {m0b + 16384 + m*4096}")
            e(f"s_add_u32 s{sT}, s{sSOFW}, {m*16*3840 + s*64*3840}")
            e(f"buffer_load_dwordx4 v{vVW}, s[{S_W}:{S_W+3}], s{sT} offen lds")
    issue_stage(0)
    srd(S_A, 8, 32*800)
    e(f"""
    v_lshlrev_b32 v2, 4, v0
    s_and_b32 s{sT}, s{sW4}, 1
    s_lshl_b32 s{sT}, s{sT}, 10
    s_add_u32 m0, s{sT}, {L_PHI}
    s_mul_i32 s{sT+1}, s{sHP}, 1600
    s_add_u32 s{sT}, s{sT}, s{sT+1}
    buffer_load_dwordx4 v2, s[{S_A}:{S_A+3}], s{sT} offen lds
    """)
    issue_stage(1)
    srd(S_WS, 16, 0x10000000)
    xfrag_addr(vBA, 2)
    e(f"""
    v_mul_u32_u24 v2, 52, v0
    v_lshrrev_b32 v2, 8, v2
    v_mul_u32_u24 v3, 5, v2
    v_sub_u32 v3, v0, v3
    v_lshlrev_b32 v3, 4, v3
    v_mul_u32_u24 v2, 3840, v2
    v_add_u32 v{vWQ}, v2, v3
    v_cmp_gt_u32 vcc, 40, v0
    s_mov_b64 s[{sEX}:{sEX+1}], vcc
    """)
    def issue_wq(i0, i1):
        e(f"s_mov_b64 exec, s[{sEX}:{sEX+1}]")
        for m in range(i0, i1):
            e(f"s_mul_i32 s{sT}, s{sW4}, 640")
            e(f"s_add_u32 m0, s{sT}, {L_WQ + m*4*640}")
            e(f"s_mul_i32 s{sT}, s{sW4}, {8*3840}")
            e(f"s_add_u32 s{sT}, s{sT}, s{sSOFW}")
            e(f"s_add_u32 s{sT}, s{sT}, {m*32*3840}")
            e(f"buffer_load_dwordx4 v{vWQ}, s[{S_W}:{S_W+3}], s{sT} offen lds")
        e("s_mov_b64 exec, -1")
    base = Base([vBA, vBA+1, vBA+2, vBA+3])
    stamp(1)
    for s in range(NST):
        if s <= 8: e("s_waitcnt vmcnt(8) lgkmcnt(0)")
        else: e("s_waitcnt vmcnt(10) lgkmcnt(0)")
        e("s_barrier")
        if s == 0: stamp(2)
        sb = base.set(s)
        for kk in range(4):
            d = XF + 16*s + 4*kk
            e(f"ds_read_b128 v[{d}:{d+3}], v{vBA+kk} offset:{sb}")
        if s + 2 < NST: issue_stage(s+2)
        elif s == 8: issue_wq(0, 10)
        else: issue_wq(10, 20)
    e("s_waitcnt lgkmcnt(0)")
    e("s_barrier")
    stamp(3)
    e("s_waitcnt vmcnt(0)")
    subbar(3)
    stamp(4)
    QA = 224; QF = [32, 40]; vQA = 18
    lane_decomp32(2, 3, 4, 5, 6)
    e(f"""
    v_lshrrev_b32 v7, 1, v2
    v_lshlrev_b32 v7, 3, v7
    v_add_u32 v7, v7, v3
    v_mul_u32_u24 v7, 80, v7
    v_mul_u32_u24 v6, 40, v6            ; hh*5*8
    v_add3_u32 v7, v7, v6, {L_WQ - 65536 if False else 0}
    v_add_u32 v7, {L_WQ}, v7
    v_lshlrev_b32 v5, 3, v5             ; 8Q
    v_add_u32 v{vQA}, v7, v5
    v_add_u32 v{vQA+1}, 32, v7
    """)
    def q_reads(k, buf):
        for T in range(2):
            for rd in range(2):
                e(f"ds_read_b64_tr_b16 v[{QF[buf]+4*T+2*rd}:{QF[buf]+4*T+2*rd+1}], v{vQA+T} offset:{(16*k+4*rd)*80}")
    q_reads(0, 0)
    for k in range(40):
        if k + 1 < 40:
            q_reads(k+1, (k+1) & 1)
            e("s_waitcnt lgkmcnt(4)")
        else:
            e("s_waitcnt lgkmcnt(0)")
        for T in range(2):
            c = "0" if k == 0 else f"v[{QA+16*T}:{QA+16*T+15}]"
            e(f"v_mfma_f32_32x32x16_bf16 v[{QA+16*T}:{QA+16*T+15}], v[{QF[k&1]+4*T}:{QF[k&1]+4*T+3}], v[{XF+4*k}:{XF+4*k+3}], {c}")
    stamp(5)
    WF = 64; QB = 88; PQ0 = 100; PQ1 = 116; EP = 132; EN = 152; PH = 172; TM = 192
    srd(S_A, 14, 256)
    wphi_frags(WF, 20, 22)
    e("s_nop 7")
    e("s_nop 7")
    if dump == "qacc":
        dump_regs([QA+i for i in range(20)], 0, "qacc")
    for j in range(5):
        src = QA + 4*j if j < 4 else QA + 16
        e(f"v_cvt_pk_bf16_f32 v{QB+2*j}, v{src}, v{src+1}")
        e(f"v_cvt_pk_bf16_f32 v{QB+2*j+1}, v{src+2}, v{src+3}")
    e(f"v_mov_b32 v{QB+10}, 0"); e(f"v_mov_b32 v{QB+11}, 0")
    e("s_waitcnt lgkmcnt(0)")
    feature_map(QB, WF, PQ0, PQ1)
    get_nonce(2)
    e("s_nop 7")
    softmax_pair(PQ0, PQ1, EP, EN, PH, TM)
    if dump == "phiq":
        dump_regs([PH+i for i in range(20)], 0, "phiq")
    stamp(6)
    vOA = 20
    lane_decomp32(2, 3, 4, 5, 6)
    e(f"""
    v_mul_u32_u24 v7, 1920, v6
    v_mul_u32_u24 v8, 48, v3
    v_lshlrev_b32 v9, 3, v5
    v_add3_u32 v7, v7, v8, v9
    v_add_u32 v7, {L_KVF}, v7           ; U=0
    v_lshrrev_b32 v8, 1, v2
    v_mov_b32 v9, {L_ZERO}
    v_cmp_eq_u32 vcc, v8, v6
    s_nop 1
    v_cndmask_b32 v{vOA}, v9, v7, vcc
    v_cmp_gt_u32 s[{sEX}:{sEX+1}], 2, v5
    s_nop 1
    s_and_b64 vcc, vcc, s[{sEX}:{sEX+1}]
    v_add_u32 v7, 32, v7
    s_nop 0
    v_cndmask_b32 v{vOA+1}, v9, v7, vcc
    """)
    subwait(2)
    stamp(7)
    KA = 64
    N0 = 104; N1 = 120
    for U in range(2):
        for st in range(5):
            for rd in range(2):
                d = KA + (U*5+st)*4 + 2*rd
                e(f"ds_read_b64_tr_b16 v[{d}:{d+1}], v{vOA+U} offset:{(8*st+4*rd)*48}")
    e("s_waitcnt lgkmcnt(10)")
    for U, N in ((0, N0), (1, N1)):
        if U == 1: e("s_waitcnt lgkmcnt(0)")
        for st in range(5):
            c = "0" if st == 0 else f"v[{N}:{N+15}]"
            d = KA + (U*5+st)*4
            e(f"v_mfma_f32_32x32x16_bf16 v[{N}:{N+15}], v[{d}:{d+3}], v[{PH+4*st}:{PH+4*st+3}], {c}")
    e(f"""
    v_and_b32 v2, 15, v0
    v_lshlrev_b32 v2, 4, v2
    v_bfe_u32 v3, v0, 4, 1
    v_mul_u32_u24 v3, 20480, v3
    v_add_u32 v2, v2, v3
    v_lshrrev_b32 v4, 5, v0            ; h
    v_lshlrev_b32 v5, 9, v4            ; 2h*256
    v_add_u32 v5, v5, v2               ; chunk 2h
    v_lshlrev_b32 v6, 3, v4
    v_add_u32 v6, v6, v2
    s_lshl_b32 s{sT}, s{sRC}, 3
    s_lshl_b32 s{sT+1}, s{sW4}, 1
    s_add_u32 s{sT}, s{sT}, s{sT+1}
    s_mul_i32 s{sT}, s{sT}, 20480
    s_mul_i32 s{sT+1}, s{sHP}, 1280
    s_add_u32 s{sT}, s{sT}, s{sT+1}
    s_add_u32 s{sT}, s{sT}, {WS_O}
    s_nop 7
    v_add_f32 v8, 0x358637bd, v{N1+4}
    v_rcp_f32 v8, v8
    s_nop 0
    """)
    OB = 136
    for i in range(8):
        e(f"v_pk_mul_f32 v[{N0+2*i}:{N0+2*i+1}], v[{N0+2*i}:{N0+2*i+1}], v[8:9] op_sel_hi:[1,0]")
    for i in range(2):
        e(f"v_pk_mul_f32 v[{N1+2*i}:{N1+2*i+1}], v[{N1+2*i}:{N1+2*i+1}], v[8:9] op_sel_hi:[1,0]")
    for i in range(8):
        e(f"v_cvt_pk_bf16_f32 v{OB+i}, v{N0+2*i}, v{N0+2*i+1}")
    for i in range(2):
        e(f"v_cvt_pk_bf16_f32 v{OB+8+i}, v{N1+2*i}, v{N1+2*i+1}")
    e(f"""
    buffer_store_dwordx4 v[{OB}:{OB+3}], v5, s[{S_WS}:{S_WS+3}], s{sT} offen sc1
    buffer_store_dwordx4 v[{OB+4}:{OB+7}], v5, s[{S_WS}:{S_WS+3}], s{sT} offen offset:256 sc1
    buffer_store_dwordx2 v[{OB+8}:{OB+9}], v6, s[{S_WS}:{S_WS+3}], s{sT} offen offset:1024 sc1
    s_waitcnt vmcnt(0)
    """)
    subbar(4)
    e(f"""
    s_lshl_b32 s{sT+1}, s{sRC}, 4
    s_add_u32 s{sT+1}, s{sT+1}, s{sHP}
    s_lshl_b32 s{sT+1}, s{sT+1}, 7
    s_add_u32 s{sT+1}, s{sT+1}, {WS_F2}
    s_cmp_lg_u32 s{sW4}, 0
    s_cbranch_scc1 L_fin
    v_mov_b32 v2, 0
    v_mov_b32 v3, s{sNONCE}
    s_mov_b64 exec, 1
    buffer_store_dword v3, v2, s[{S_WS}:{S_WS+3}], s{sT+1} offen sc1
    s_mov_b64 exec, -1
    """)
    a.label("L_fin")
    if stamps:
        e("s_waitcnt vmcnt(0)")
        stamp(8 if False else 10)
        e(f"""
        s_waitcnt lgkmcnt(0)
        s_lshl_b32 s{sT}, s2, 3
        s_add_u32 s{sT}, s{sT}, s{sWAVE}
        s_lshl_b32 s{sT}, s{sT}, 6
        s_add_u32 s{sT}, s{sT}, {WS_STAMP}
        v_mov_b32 v2, 0
        """)
        for i in range(NS): e(f"v_mov_b32 v{20+i}, s{sST+2*i}")
        e(f"""
        s_mov_b64 exec, 1
        buffer_store_dwordx4 v[20:23], v2, s[{S_WS}:{S_WS+3}], s{sT} offen
        buffer_store_dwordx4 v[24:27], v2, s[{S_WS}:{S_WS+3}], s{sT} offen offset:16
        buffer_store_dwordx4 v[28:31], v2, s[{S_WS}:{S_WS+3}], s{sT} offen offset:32
        """)
    a.label("L_end")
    e("s_endpgm")
    hdr = HEADER + f"; @launch grid=(256,1,1) block=(512,1,1) lds={LDS_BYTES}\n"
    return hdr + f""".amdgcn_target "amdgcn-amd-amdhsa--gfx950"
.text
.globl {KN}
.p2align 8
.type {KN},@function
{KN}:
""" + a.text() + """.section .rodata,"a"
""" + kernel_desc(KN, 256, 102, 256)

if __name__ == "__main__":
    import argparse
    ap = argparse.ArgumentParser()
    ap.add_argument("--stamps", action="store_true")
    ap.add_argument("--dump", default=None)
    args = ap.parse_args()
    print(gen(stamps=args.stamps, dump=args.dump))
```

```python
import sys
from asmlib import *
from lay2 import TKV, TQ

KN = "standalone__linear_kernel_hedgehog__prompt_kernel"
NST = 10
SLOT = 32768
R = 3
L_WQ = 98304
L_PHI = 149504
L_ZERO = 151552
L_CNT = 153600
L_KVF = 154624
L_PK = 32768
L_WO_A = 65536
L_WO_B = 0
LDS_BYTES = 158720
WS_PART = 0x000000
WS_O = 0x100000
WS_F1 = 0x400000
WS_F2 = 0x408000
WS_STAMP = 0x700000
WS_DBG = 0x800000
LOG2E = 0x3fb8aa3b
NLOG2E = 0xbfb8aa3b

class G:
    pass

def gen(stamps=False, dump=None, stop=None, dbgspan=False, extra_empty=0):
    a = Asm(); e = a.e
    S_X, S_W, S_WS = 20, 24, 28
    S_A, S_B = 72, 76
    sWAVE, sW4, sRC, sHP, sBB = 32, 33, 34, 35, 36
    sT = 40
    sSOFX, sSOFW, sM0 = 52, 53, 54
    sNONCE = 55
    sL = 56
    sEX = 58
    sST = 80
    NS = 11
    def stamp(i):
        if stamps: e(f"s_memtime s[{sST+2*i}:{sST+2*i+1}]")
    def rstamp(i):
        if stamps: e(f"s_memrealtime s[{sST+2*i}:{sST+2*i+1}]")
    def srd(dst, ptr, nbytes):
        e(f"""
        s_mov_b32 s{dst}, s{ptr}
        s_and_b32 s{dst+1}, s{ptr+1}, 0xffff
        s_mov_b32 s{dst+2}, {nbytes}
        s_mov_b32 s{dst+3}, 0x20000
        """)
    def subbar(idx, target=4, tmp=2):
        lab = a.newlabel("SB")
        e(f"""
        v_mov_b32 v{tmp}, {L_CNT + 4*idx}
        v_mov_b32 v{tmp+1}, 1
        s_mov_b64 exec, 1
        ds_add_u32 v{tmp}, v{tmp+1}
        s_mov_b64 exec, -1
        """)
        subwait(idx, target, tmp, lab)
    def subsignal(idx, tmp=2):
        e(f"""
        v_mov_b32 v{tmp}, {L_CNT + 4*idx}
        v_mov_b32 v{tmp+1}, 1
        s_mov_b64 exec, 1
        ds_add_u32 v{tmp}, v{tmp+1}
        s_mov_b64 exec, -1
        """)
    def subwait(idx, target=4, tmp=2, lab=None):
        lab = lab or a.newlabel("SW")
        e(f"v_mov_b32 v{tmp}, {L_CNT + 4*idx}")
        e(f"s_mov_b32 s60, 0x80000")
        a.label(lab)
        e(f"""
        s_sub_u32 s60, s60, 1
        s_cbranch_scc1 L_end
        ds_read_b32 v{tmp+1}, v{tmp}
        s_waitcnt lgkmcnt(0)
        v_readfirstlane_b32 s{sT}, v{tmp+1}
        s_nop 0
        s_cmp_lt_u32 s{sT}, {target}
        s_cbranch_scc1 {lab}
        """)
    def get_nonce(vtmp):
        lab = a.newlabel("NC")
        e(f"v_mov_b32 v{vtmp}, 0")
        e(f"s_mov_b32 s60, 0x8000")
        a.label(lab)
        e(f"""
        s_sub_u32 s60, s60, 1
        s_cbranch_scc1 L_end
        buffer_load_dword v{vtmp+1}, v{vtmp}, s[{S_A}:{S_A+3}], 0 offen sc1
        s_waitcnt vmcnt(0)
        v_readfirstlane_b32 s{sNONCE}, v{vtmp+1}
        s_nop 0
        s_cmp_eq_u32 s{sNONCE}, 0
        s_cbranch_scc1 {lab}
        """)
    def poll_flags(base_s, vtmp):
        lab = a.newlabel("PF")
        e(f"""
        v_and_b32 v{vtmp}, 15, v0
        v_lshlrev_b32 v{vtmp}, 7, v{vtmp}
        s_mov_b32 s60, 0x8000
        """)
        a.label(lab)
        e(f"""
        s_sub_u32 s60, s60, 1
        s_cbranch_scc1 L_end
        buffer_load_dword v{vtmp+1}, v{vtmp}, s[{S_WS}:{S_WS+3}], s{base_s} offen sc1
        s_waitcnt vmcnt(0)
        v_cmp_ne_u32 vcc, s{sNONCE}, v{vtmp+1}
        s_cbranch_vccnz {lab}
        """)
    def dump_regs(regs, off, tag):
        n = len(regs)
        e(f"""
        s_lshl_b32 s{sT}, s2, 3
        s_add_u32 s{sT}, s{sT}, s{sWAVE}
        s_mul_i32 s{sT}, s{sT}, {n*256}
        s_add_u32 s{sT}, s{sT}, {WS_DBG + off}
        v_lshlrev_b32 v2, 2, v0
        """)
        for i, r in enumerate(regs):
            e(f"buffer_store_dword v{r}, v2, s[{S_WS}:{S_WS+3}], s{sT} offen offset:{(i%16)*256}")
            if i % 16 == 15: e(f"s_add_u32 s{sT}, s{sT}, 4096")
        e("s_waitcnt vmcnt(0)")

    def softmax_pair(P0, P1, EP, EN, PH, tm):
        p = [P0 + i for i in range(16)] + [P1 + i for i in range(4)]
        tM, tN, tA, tB, tS, tR = tm, tm+1, tm+2, tm+4, tm+6, tm+6
        e(f"v_max3_f32 v{tM}, v{p[0]}, v{p[1]}, v{p[2]}")
        e(f"v_min3_f32 v{tN}, v{p[0]}, v{p[1]}, v{p[2]}")
        for i in range(3, 19, 2):
            e(f"v_max3_f32 v{tM}, v{tM}, v{p[i]}, v{p[i+1]}")
            e(f"v_min3_f32 v{tN}, v{tN}, v{p[i]}, v{p[i+1]}")
        e(f"v_max_f32 v{tM}, v{tM}, v{p[19]}")
        e(f"v_min_f32 v{tN}, v{tN}, v{p[19]}")
        e(f"v_mul_f32 v{tA}, {NLOG2E:#x}, v{tM}")
        e(f"v_mul_f32 v{tB}, {LOG2E:#x}, v{tN}")
        for i in range(10):
            e(f"v_pk_fma_f32 v[{EP+2*i}:{EP+2*i+1}], v[{p[2*i]}:{p[2*i]+1}], s[{sL}:{sL+1}], v[{tA}:{tA+1}] op_sel_hi:[1,1,0]")
        for i in range(10):
            e(f"v_pk_fma_f32 v[{EN+2*i}:{EN+2*i+1}], v[{p[2*i]}:{p[2*i]+1}], s[{sL}:{sL+1}], v[{tB}:{tB+1}] op_sel_hi:[1,1,0] neg_lo:[1,0,0] neg_hi:[1,0,0]")
        for i in range(20): e(f"v_exp_f32 v{EP+i}, v{EP+i}")
        for i in range(20): e(f"v_exp_f32 v{EN+i}, v{EN+i}")
        e(f"v_pk_add_f32 v[{tA}:{tA+1}], v[{EP}:{EP+1}], v[{EP+2}:{EP+3}]")
        e(f"v_pk_add_f32 v[{tB}:{tB+1}], v[{EN}:{EN+1}], v[{EN+2}:{EN+3}]")
        for i in range(2, 10):
            e(f"v_pk_add_f32 v[{tA}:{tA+1}], v[{tA}:{tA+1}], v[{EP+2*i}:{EP+2*i+1}]")
            e(f"v_pk_add_f32 v[{tB}:{tB+1}], v[{tB}:{tB+1}], v[{EN+2*i}:{EN+2*i+1}]")
        e(f"v_add_f32 v{tA}, v{tA}, v{tA+1}")
        e(f"v_add_f32 v{tB}, v{tB}, v{tB+1}")
        e(f"v_rcp_f32 v{tA}, v{tA}")
        e(f"v_rcp_f32 v{tB}, v{tB}")
        e("s_nop 0")
        for i in range(10):
            e(f"v_pk_mul_f32 v[{EP+2*i}:{EP+2*i+1}], v[{EP+2*i}:{EP+2*i+1}], v[{tA}:{tA+1}] op_sel_hi:[1,0]")
        for i in range(10):
            e(f"v_pk_mul_f32 v[{EN+2*i}:{EN+2*i+1}], v[{EN+2*i}:{EN+2*i+1}], v[{tB}:{tB+1}] op_sel_hi:[1,0]")
        for i in range(10):
            e(f"v_cvt_pk_bf16_f32 v{PH+i}, v{EP+2*i}, v{EP+2*i+1}")
        for i in range(10):
            e(f"v_cvt_pk_bf16_f32 v{PH+10+i}, v{EN+2*i}, v{EN+2*i+1}")

    def lane_decomp32(vG, vrp, vc, vQ, vhh):
        e(f"""
        v_lshrrev_b32 v{vG}, 4, v0
        v_bfe_u32 v{vrp}, v0, 2, 2
        v_and_b32 v{vc}, 3, v0
        v_and_b32 v{vQ}, 1, v{vG}
        v_lshlrev_b32 v{vQ}, 1, v{vQ}
        v_lshrrev_b32 v{vhh}, 1, v{vc}
        v_add_u32 v{vQ}, v{vQ}, v{vhh}
        v_and_b32 v{vhh}, 1, v{vc}
        """)

    def wphi_frags(WF, va, t):
        vG, vrp, vc, vQ, vhh = t, t+1, t+2, t+3, t+4
        lane_decomp32(vG, vrp, vc, vQ, vhh)
        e(f"""
        v_mul_u32_u24 v{t+5}, 800, v{vhh}
        v_mul_u32_u24 v{t+6}, 40, v{vrp}
        v_add_u32 v{t+5}, v{t+5}, v{t+6}
        v_lshlrev_b32 v{t+6}, 3, v{vQ}
        v_add_u32 v{t+5}, v{t+5}, v{t+6}
        v_add_u32 v{t+5}, {L_PHI}, v{t+5}
        v_lshrrev_b32 v{t+6}, 1, v{vG}
        v_mov_b32 v{va+1}, {L_ZERO}
        v_cmp_eq_u32 vcc, v{t+6}, v{vhh}
        s_nop 1
        v_cndmask_b32 v{va}, v{va+1}, v{t+5}, vcc
        v_cmp_eq_u32 s[{sEX}:{sEX+1}], 0, v{vQ}
        s_nop 1
        s_and_b64 vcc, vcc, s[{sEX}:{sEX+1}]
        v_add_u32 v{t+5}, 32, v{t+5}
        s_nop 0
        v_cndmask_b32 v{va+1}, v{va+1}, v{t+5}, vcc
        """)
        for u in range(2):
            for step in range(3):
                for rd in range(2):
                    d = WF + u*12 + step*4 + 2*rd
                    if step == 2 and rd == 1:
                        e(f"v_mov_b32 v{d}, 0"); e(f"v_mov_b32 v{d+1}, 0")
                    else:
                        e(f"ds_read_b64_tr_b16 v[{d}:{d+1}], v{va+u} offset:{(8*step+4*rd)*40}")

    def feature_map(SRC, WF, P0, P1):
        for step in range(3):
            for u, P in ((0, P0), (1, P1)):
                c = "0" if step == 0 else f"v[{P}:{P+15}]"
                e(f"v_mfma_f32_32x32x16_bf16 v[{P}:{P+15}], v[{WF+u*12+step*4}:{WF+u*12+step*4+3}], v[{SRC+4*step}:{SRC+4*step+3}], {c}")

    e(f"""
    s_load_dwordx8 s[4:11], s[0:1], 0
    s_load_dwordx4 s[12:15], s[0:1], 32
    s_load_dwordx2 s[16:17], s[0:1], 48
    s_cmp_ge_u32 s2, 256
    s_cbranch_scc1 L_end
    """)
    stamp(0); rstamp(9)
    if dbgspan:
        e("s_memrealtime s[96:97]")
        e("s_memtime s[98:99]")
    e(f"""
    v_lshrrev_b32 v1, 6, v0
    v_and_b32 v0, 63, v0
    s_and_b32 s{sT}, s2, 7
    s_lshr_b32 s{sT+1}, s2, 3
    v_readfirstlane_b32 s{sWAVE}, v1
    s_lshr_b32 s{sRC}, s{sT}, 1
    s_lshl_b32 s{sRC}, s{sRC}, 2
    s_lshr_b32 s{sT+2}, s{sT+1}, 3
    s_add_u32 s{sRC}, s{sRC}, s{sT+2}
    s_and_b32 s{sHP}, s{sT}, 1
    s_lshl_b32 s{sHP}, s{sHP}, 3
    s_and_b32 s{sT+2}, s{sT+1}, 7
    s_add_u32 s{sHP}, s{sHP}, s{sT+2}
    s_and_b32 s{sW4}, s{sWAVE}, 3
    s_mul_i32 s{sBB}, s{sHP}, 5
    s_and_b32 s{sBB}, s{sBB}, 7
    s_sub_u32 s{sBB}, 8, s{sBB}
    s_min_u32 s{sBB}, s{sBB}, 4
    s_mov_b32 s{sL}, {LOG2E:#x}
    s_mov_b32 s{sL+1}, {LOG2E:#x}
    s_cmp_ge_u32 s{sWAVE}, 4
    s_cbranch_scc1 L_lq
    """)

    def xfrag_addr(vBA, t):
        e(f"""
        v_and_b32 v{t}, 31, v0
        v_lshrrev_b32 v{t+1}, 5, v0
        v_bfe_u32 v{t+2}, v{t}, 1, 3
        v_xor_b32 v{t+2}, v{t+2}, v{t+1}
        v_lshlrev_b32 v{t+2}, 4, v{t+2}
        s_lshl_b32 s{sT}, s{sW4}, 5
        v_add_u32 v{t}, s{sT}, v{t}
        v_lshlrev_b32 v{t}, 7, v{t}
        v_add_u32 v{vBA}, v{t}, v{t+2}
        v_xor_b32 v{vBA+1}, 32, v{vBA}
        v_xor_b32 v{vBA+2}, 64, v{vBA}
        v_xor_b32 v{vBA+3}, 96, v{vBA}
        """)
    class Base:
        def __init__(self, regs): self.regs = regs; self.cur = 0
        def set(self, s):
            so = (s % R) * SLOT
            want = (so // 65536) * 65536
            if want != self.cur:
                d = (want - self.cur) & 0xffffffff
                for r in self.regs: e(f"v_add_u32 v{r}, {d}, v{r}")
                self.cur = want
            return so - self.cur

    ACC = 64; FB = [112, 128]; WF = 144; KB = 168; VB = 180; PK0 = 192; PK1 = 208; EP = 224; EN = 112; PH = 64; TM = 244
    vAA = 10; vBA = 14
    e(f"""
    v_lshlrev_b32 v2, 4, v0
    s_lshl_b32 s{sT}, s{sW4}, 10
    s_add_u32 s{sT}, s{sT}, {L_ZERO}
    v_add_u32 v2, s{sT}, v2
    v_mov_b32 v4, 0
    v_mov_b32 v5, 0
    v_mov_b32 v6, 0
    v_mov_b32 v7, 0
    s_cmp_eq_u32 s{sW4}, 3
    s_cbranch_scc1 L_kv_nz
    ds_write_b128 v2, v[4:7]
L_kv_nz:
    """)
    lane_decomp32(2, 3, 4, 5, 6)
    e(f"""
    v_lshlrev_b32 v5, 3, v5          ; 8Q
    v_mul_u32_u24 v6, 5, v6          ; 5hh
    v_lshrrev_b32 v7, 1, v2          ; G>>1
    v_lshlrev_b32 v7, 3, v7
    v_add_u32 v7, v7, v3             ; krow
    v_lshlrev_b32 v7, 8, v7
    v_add_u32 v7, 16384, v7
    v_lshlrev_b32 v8, 2, v3          ; 4rp
    s_sub_u32 s{sT+1}, 4, s{sBB}     ; 4-b
    """)
    for T in range(3):
        immc = 0; imms = 0
        for Q in range(4):
            q = TKV[T][Q] or TKV[T][0]
            immc |= q[1] << (8*Q); imms |= (8*q[0]) << (8*Q)
        e(f"""
        s_mov_b32 s{sT}, {immc}
        v_bfe_u32 v18, s{sT}, v5, 8
        v_add_u32 v18, v18, v6           ; cc
        v_lshrrev_b32 v19, 1, v18        ; j
        v_mov_b32 v9, s{sT+1}
        v_cmp_le_u32 vcc, s{sBB}, v19    ; j >= b
        v_mov_b32 v20, 0
        s_nop 0
        v_cndmask_b32 v9, v20, v9, vcc   ; (j>=b) ? 4-b : 0
        v_add_u32 v19, v19, v9           ; pos8
        s_mov_b32 s{sT}, {imms}
        v_bfe_u32 v9, s{sT}, v5, 8       ; 8*seg
        v_add3_u32 v19, v19, v9, v8
        v_and_b32 v19, 15, v19
        v_lshlrev_b32 v19, 4, v19
        v_and_b32 v18, 1, v18
        v_lshlrev_b32 v18, 3, v18
        v_add3_u32 v{vAA+T}, v7, v19, v18
        """)
    xfrag_addr(vBA, 2)
    for r in range(48): e(f"v_mov_b32 v{ACC+r}, 0")
    def kv_reads(kk, buf, sb):
        b = FB[buf]
        e(f"ds_read_b128 v[{b+12}:{b+15}], v{vBA+kk} offset:{sb}")
        for T in range(3):
            for rd in range(2):
                e(f"ds_read_b64_tr_b16 v[{b+4*T+2*rd}:{b+4*T+2*rd+1}], v{vAA+T} offset:{sb+(16*kk+4*rd)*256}")
    def kv_mfmas(buf):
        b = FB[buf]
        for T in range(3):
            e(f"v_mfma_f32_32x32x16_bf16 v[{ACC+16*T}:{ACC+16*T+15}], v[{b+4*T}:{b+4*T+3}], v[{b+12}:{b+15}], v[{ACC+16*T}:{ACC+16*T+15}]")
    srd_done = False
    e("s_waitcnt lgkmcnt(0)")
    srd(S_WS, 16, 0x10000000)
    srd(S_A, 14, 256)
    e(f"""
    s_or_b32 s{sT}, s{sRC}, s{sHP}
    s_or_b32 s{sT}, s{sT}, s{sW4}
    s_cmp_lg_u32 s{sT}, 0
    s_cbranch_scc1 L_kv_nn
    s_memrealtime s[{sT+2}:{sT+3}]
    s_waitcnt lgkmcnt(0)
    s_or_b32 s{sT+2}, s{sT+2}, 1
    v_mov_b32 v2, 0
    v_mov_b32 v3, s{sT+2}
    s_mov_b64 exec, 1
    buffer_store_dword v3, v2, s[{S_A}:{S_A+3}], 0 offen sc1
    s_mov_b64 exec, -1
L_kv_nn:
    """)
    stamp(1)
    e("s_barrier")
    stamp(2)
    base = Base([vAA, vAA+1, vAA+2, vBA, vBA+1, vBA+2, vBA+3])
    sb = base.set(0)
    kv_reads(0, 0, sb)
    for s in range(NST):
        for kk in range(3):
            kv_reads(kk+1, (kk+1) & 1, sb)
            e("s_waitcnt lgkmcnt(7)")
            kv_mfmas(kk & 1)
        if s == 4:
            pass
        e("s_waitcnt lgkmcnt(0)")
        e("s_barrier")
        if s + 1 < NST:
            sb = base.set(s+1)
            kv_reads(0, 0, sb)
        else:
            pass
        kv_mfmas(1)
    stamp(3)
    wphi_frags(WF, 18, 22)
    e("s_nop 7")
    loc = {}
    for T, qs in enumerate(TKV):
        for Q, q in enumerate(qs):
            if q is not None: loc[q] = ACC + 16*T + 4*Q
    e("s_nop 7")
    if dump == "kvacc":
        dump_regs([loc[(sg, j)] + x for sg in range(2) for j in range(5) for x in range(4)], 0, "kvacc")
    for j in range(5):
        e(f"v_cvt_pk_bf16_f32 v{KB+2*j}, v{loc[(0,j)]}, v{loc[(0,j)]+1}")
        e(f"v_cvt_pk_bf16_f32 v{KB+2*j+1}, v{loc[(0,j)]+2}, v{loc[(0,j)]+3}")
    e(f"v_mov_b32 v{KB+10}, 0"); e(f"v_mov_b32 v{KB+11}, 0")
    for j in range(5):
        e(f"v_cvt_pk_bf16_f32 v{VB+2*j}, v{loc[(1,j)]}, v{loc[(1,j)]+1}")
        e(f"v_cvt_pk_bf16_f32 v{VB+2*j+1}, v{loc[(1,j)]+2}, v{loc[(1,j)]+3}")
    e(f"v_mov_b32 v{VB+10}, 0x3f80"); e(f"v_mov_b32 v{VB+11}, 0")
    e("s_waitcnt lgkmcnt(0)")
    feature_map(KB, WF, PK0, PK1)
    vRA = 18
    e(f"""
    v_and_b32 v2, 31, v0
    v_lshrrev_b32 v3, 5, v0
    v_lshlrev_b32 v3, 14, v3
    s_lshl_b32 s{sT}, s{sW4}, 5
    v_add_u32 v2, s{sT}, v2
    v_lshlrev_b32 v2, 7, v2
    v_add_u32 v2, v2, v3
    v_add_u32 v2, {L_PK}, v2
    v_and_b32 v3, 7, v0
    v_bfe_u32 v4, v0, 3, 1
    v_lshlrev_b32 v4, 2, v4
    v_xor_b32 v3, v3, v4
    v_lshlrev_b32 v3, 4, v3
    v_add_u32 v{vRA}, v2, v3
    """)
    for u in range(1, 8): e(f"v_xor_b32 v{vRA+u}, {16*u}, v{vRA}")
    for u in range(3):
        e(f"ds_write_b128 v{vRA+5+u}, v[{VB+4*u}:{VB+4*u+3}]")
    e("s_nop 7")
    if dump == "pk":
        e("s_nop 7")
        dump_regs([PK0+i for i in range(16)] + [PK1+i for i in range(4)], 0, "pk")
    softmax_pair(PK0, PK1, EP, EN, PH, TM)
    if dump == "phik":
        dump_regs([PH+i for i in range(20)], 0, "phik")
    for u in range(5):
        e(f"ds_write_b128 v{vRA+u}, v[{PH+4*u}:{PH+4*u+3}]")
    subbar(0)
    stamp(4)
    vKA = 26
    vKB = 28
    e(f"""
    v_lshrrev_b32 v2, 4, v0            ; G
    v_bfe_u32 v3, v0, 2, 2             ; rp
    v_and_b32 v4, 3, v0                ; c
    v_lshlrev_b32 v5, 3, v2
    v_add_u32 v5, v5, v3
    v_lshlrev_b32 v5, 7, v5            ; *128
    s_lshr_b32 s{sT}, s{sW4}, 1
    s_lshl_b32 s{sT}, s{sT}, 14
    s_add_u32 s{sT}, s{sT}, {L_PK}
    v_add_u32 v5, s{sT}, v5
    v_and_b32 v6, 1, v2
    v_lshlrev_b32 v6, 2, v6
    v_xor_b32 v6, v6, v3
    v_lshrrev_b32 v7, 1, v4            ; c>>1
    v_and_b32 v8, 1, v4                ; sub
    v_lshlrev_b32 v8, 3, v8
    v_add_u32 v5, v5, v8               ; + sub*8
    s_and_b32 s{sT+1}, s{sW4}, 1
    v_add_u32 v9, 5, v7
    v_mov_b32 v19, 7
    s_cmp_eq_u32 s{sT+1}, 1
    s_cselect_b64 vcc, -1, 0
    v_cndmask_b32 v9, v9, v19, vcc
    v_xor_b32 v9, v9, v6
    v_lshlrev_b32 v9, 4, v9
    v_add_u32 v{vKA}, v5, v9
    v_xor_b32 v{vKA+1}, 64, v{vKA}
    v_add_u32 v{vKA+1}, 512, v{vKA+1}
    """)
    for ct in range(3):
        if ct < 2:
            e(f"v_add_u32 v9, {2*ct}, v7")
        else:
            e(f"v_mov_b32 v9, 4")
        e(f"""
        v_xor_b32 v9, v9, v6
        v_lshlrev_b32 v9, 4, v9
        v_add_u32 v{vKB+2*ct}, v5, v9
        v_xor_b32 v{vKB+2*ct+1}, 64, v{vKB+2*ct}
        v_add_u32 v{vKB+2*ct+1}, 512, v{vKB+2*ct+1}
        """)
    KD = 192
    KF = 64
    for kap in range(4):
        f = KF + 16*kap
        for rd in range(2):
            e(f"ds_read_b64_tr_b16 v[{f+2*rd}:{f+2*rd+1}], v{vKA+rd} offset:{4096*kap}")
        for ct in range(3):
            for rd in range(2):
                e(f"ds_read_b64_tr_b16 v[{f+4+4*ct+2*rd}:{f+4+4*ct+2*rd+1}], v{vKB+2*ct+rd} offset:{4096*kap}")
    for kap in range(4):
        f = KF + 16*kap
        e(f"s_waitcnt lgkmcnt({min(15, 8*(3-kap))})")
        for ct in range(3):
            c = "0" if kap == 0 else f"v[{KD+4*ct}:{KD+4*ct+3}]"
            e(f"v_mfma_f32_16x16x32_bf16 v[{KD+4*ct}:{KD+4*ct+3}], v[{f}:{f+3}], v[{f+4+4*ct}:{f+4+4*ct+3}], {c}")
    e(f"""
    v_lshrrev_b32 v2, 4, v0            ; g
    v_and_b32 v3, 15, v0
    s_lshr_b32 s{sT}, s{sW4}, 1
    s_mul_i32 s{sT}, s{sT}, 6
    s_and_b32 s{sT+1}, s{sW4}, 1
    s_lshl_b32 s{sT+2}, s{sT+1}, 2
    s_add_u32 s{sT}, s{sT}, s{sT+2}
    v_add_u32 v4, s{sT}, v2            ; hd*6+dq
    v_mul_u32_u24 v4, 40, v4
    v_add_u32 v4, v4, v3
    v_lshlrev_b32 v4, 3, v4
    v_mov_b32 v5, 0x40000000
    s_mul_i32 s{sT+2}, s{sT+1}, 2      ; rt*2
    s_sub_u32 s{sT+2}, 4, s{sT+2}
    v_cmp_gt_u32 vcc, s{sT+2}, v2
    s_nop 1
    v_cndmask_b32 v4, v5, v4, vcc
    v_cmp_gt_u32 vcc, 8, v3
    s_nop 1
    v_cndmask_b32 v5, v5, v4, vcc
    s_lshl_b32 s{sT}, s{sHP}, 4
    s_add_u32 s{sT}, s{sT}, s{sRC}
    s_lshl_b32 s{sT}, s{sT}, 12
    s_add_u32 s{sT}, s{sT}, {WS_PART}
    """)
    e("s_nop 3")
    for ct in range(3):
        e(f"v_cvt_pk_bf16_f32 v{KD+16+2*ct}, v{KD+4*ct}, v{KD+4*ct+1}")
        e(f"v_cvt_pk_bf16_f32 v{KD+16+2*ct+1}, v{KD+4*ct+2}, v{KD+4*ct+3}")
    for ct in range(3):
        va = 4 if ct < 2 else 5
        e(f"buffer_store_dwordx2 v[{KD+16+2*ct}:{KD+16+2*ct+1}], v{va}, s[{S_WS}:{S_WS+3}], s{sT} offen offset:{128*ct} sc1")
    get_nonce(6)
    e("s_waitcnt vmcnt(0)")
    subbar(1)
    e(f"""
    s_lshl_b32 s{sT+1}, s{sHP}, 4
    s_add_u32 s{sT+1}, s{sT+1}, s{sRC}
    s_lshl_b32 s{sT+1}, s{sT+1}, 7
    s_add_u32 s{sT+1}, s{sT+1}, {WS_F1}
    s_cmp_lg_u32 s{sW4}, 0
    s_cbranch_scc1 L_kv_nf
    v_mov_b32 v2, 0
    v_mov_b32 v3, s{sNONCE}
    s_mov_b64 exec, 1
    buffer_store_dword v3, v2, s[{S_WS}:{S_WS+3}], s{sT+1} offen sc1
    s_mov_b64 exec, -1
L_kv_nf:
    """)
    stamp(5)
    srd(S_B, 10, 640*1280)
    e(f"""
    v_mul_u32_u24 v2, 52, v0
    v_lshrrev_b32 v2, 8, v2            ; j = l/5
    v_mul_u32_u24 v3, 5, v2
    v_sub_u32 v3, v0, v3               ; u5
    v_lshlrev_b32 v3, 4, v3
    v_mul_u32_u24 v4, 1280, v2
    v_add_u32 v34, v4, v3              ; V_lin
    v_add_u32 v4, 16, v2
    v_add_u32 v5, 32, v2
    v_cmp_le_u32 vcc, 4, v2
    s_nop 1
    v_cndmask_b32 v4, v4, v5, vcc
    v_mul_u32_u24 v4, 1280, v4
    v_add_u32 v35, v4, v3              ; V_split
    s_mul_i32 s{sT+4}, s{sHP}, 80
    v_cmp_gt_u32 vcc, 40, v0
    s_nop 1
    s_mov_b64 exec, vcc
    """)
    for w in range(4):
        lab = f"L_wo_{w}"
        a.label(lab)
        if w < 3:
            e(f"s_cmp_lg_u32 s{sW4}, {w}")
            e(f"s_cbranch_scc1 L_wo_{w+1}")
        for m in range(20):
            ci = 4*m + w
            hp_, c5 = divmod(ci, 5)
            rowb = 40*hp_ + [0, 8, 20, 28, 0][c5]
            ldsb = (L_WO_A + ci*640) if ci < 48 else (L_WO_B + (ci-48)*640)
            e(f"s_mov_b32 m0, {ldsb}")
            e(f"s_add_u32 s{sT}, s{sT+4}, {rowb*1280}")
            e(f"buffer_load_dwordx4 v{35 if c5 == 4 else 34}, s[{S_B}:{S_B+3}], s{sT} offen lds")
        if w < 3: e("s_branch L_wo_done")
    a.label("L_wo_done")
    e("s_mov_b64 exec, -1")
    e(f"""
    s_lshl_b32 s{sT+1}, s{sHP}, 11
    s_add_u32 s{sT+1}, s{sT+1}, {WS_F1}
    """)
    poll_flags(sT+1, 2)
    stamp(6)
    PL = 64
    e(f"""
    s_lshl_b32 s{sT}, s{sW4}, 6
    v_add_u32 v2, s{sT}, v0            ; tau
    v_lshlrev_b32 v3, 4, v2
    v_mov_b32 v4, 0x40000000
    v_cmp_gt_u32 vcc, 240, v2
    s_nop 1
    v_cndmask_b32 v3, v4, v3, vcc
    s_lshl_b32 s{sT}, s{sHP}, 16
    s_add_u32 s{sT}, s{sT}, {WS_PART}
    """)
    for r in range(16):
        e(f"buffer_load_dwordx4 v[{PL+4*r}:{PL+4*r+3}], v3, s[{S_WS}:{S_WS+3}], s{sT} offen sc1")
        e(f"s_add_u32 s{sT}, s{sT}, 4096")
    SUM = 128
    for r in range(16):
        e(f"s_waitcnt vmcnt({15-r})")
        for i in range(4):
            src = PL + 4*r + i
            if r == 0:
                e(f"v_lshlrev_b32 v{SUM+2*i}, 16, v{src}")
                e(f"v_and_b32 v{SUM+2*i+1}, 0xffff0000, v{src}")
            else:
                e(f"v_lshlrev_b32 v{SUM+8}, 16, v{src}")
                e(f"v_and_b32 v{SUM+9}, 0xffff0000, v{src}")
                e(f"v_pk_add_f32 v[{SUM+2*i}:{SUM+2*i+1}], v[{SUM+2*i}:{SUM+2*i+1}], v[{SUM+8}:{SUM+9}]")
    for i in range(4):
        e(f"v_cvt_pk_bf16_f32 v{SUM+10+i}, v{SUM+2*i}, v{SUM+2*i+1}")
    e(f"""
    v_mul_u32_u24 v4, 205, v2
    v_lshrrev_b32 v4, 12, v4
    v_mul_u32_u24 v5, 20, v4
    v_sub_u32 v5, v2, v5               ; fp
    v_mul_u32_u24 v5, 96, v5
    v_mul_u32_u24 v6, 43, v4
    v_lshrrev_b32 v6, 8, v6
    v_mul_u32_u24 v7, 6, v6
    v_sub_u32 v7, v4, v7               ; dq
    v_mul_u32_u24 v6, 1920, v6
    v_lshlrev_b32 v7, 3, v7
    v_add3_u32 v5, v5, v6, v7
    v_add_u32 v5, {L_KVF}, v5
    v_cmp_gt_u32 vcc, 240, v2
    s_and_saveexec_b64 s[{sEX}:{sEX+1}], vcc
    ds_write_b64 v5, v[{SUM+10}:{SUM+11}]
    ds_write_b64 v5, v[{SUM+12}:{SUM+13}] offset:48
    s_mov_b64 exec, -1
    """)
    e("s_waitcnt vmcnt(0)")
    subsignal(2)
    stamp(7)
    e(f"""
    s_lshl_b32 s{sT+1}, s{sRC}, 11
    s_add_u32 s{sT+1}, s{sT+1}, {WS_F2}
    """)
    vWA = 10
    e(f"""
    v_lshrrev_b32 v2, 4, v0            ; G
    v_bfe_u32 v3, v0, 2, 2             ; rp
    v_and_b32 v4, 3, v0                ; c
    v_lshlrev_b32 v5, 3, v2
    v_add_u32 v5, v5, v3
    v_mul_u32_u24 v5, 80, v5
    v_lshlrev_b32 v6, 3, v4
    v_add_u32 v{vWA}, v5, v6
    v_add_u32 v{vWA+1}, 32, v{vWA}
    v_and_b32 v4, 1, v4
    v_lshlrev_b32 v6, 3, v4
    v_add3_u32 v{vWA+2}, v5, v6, 64
    """)
    subwait(2)
    poll_flags(sT+1, 2)
    stamp(8)
    OF = 96
    e(f"""
    v_lshlrev_b32 v2, 4, v0
    s_lshl_b32 s{sT}, s{sRC}, 3
    s_lshl_b32 s{sT+1}, s{sW4}, 1
    s_add_u32 s{sT}, s{sT}, s{sT+1}
    s_mul_i32 s{sT}, s{sT}, 20480
    s_add_u32 s{sT}, s{sT}, {WS_O}
    s_add_u32 s{sT+1}, s{sT}, 20480
    """)
    for sg in range(20):
        for tt in range(2):
            d = OF + (tt*20+sg)*4
            e(f"buffer_load_dwordx4 v[{d}:{d+3}], v2, s[{S_WS}:{S_WS+3}], s{sT+tt} offen offset:{(sg%4)*1024} sc1")
        if sg % 4 == 3:
            e(f"s_add_u32 s{sT}, s{sT}, 4096"); e(f"s_add_u32 s{sT+1}, s{sT+1}, 4096")
    OD = 40
    AB = [64, 76]
    def wo_reads(sg, buf):
        ofs = (L_WO_A + sg*32*80) if sg < 12 else (L_WO_B + (sg-12)*32*80)
        for nt in range(3):
            for rd in range(2):
                e(f"ds_read_b64_tr_b16 v[{AB[buf]+4*nt+2*rd}:{AB[buf]+4*nt+2*rd+1}], v{vWA+nt} offset:{ofs - wo_base[0] + rd*4*80}")
    wo_base = [L_WO_A]
    for nt in range(3): e(f"v_add_u32 v{vWA+nt}, {L_WO_A}, v{vWA+nt}")
    wo_reads(0, 0)
    for sg in range(20):
        if sg + 1 < 20:
            if sg + 1 == 12:
                for nt in range(3): e(f"v_subrev_u32 v{vWA+nt}, {L_WO_A}, v{vWA+nt}")
                wo_base[0] = 0
            wo_reads(sg+1, (sg+1) & 1)
            e(f"s_waitcnt vmcnt({2*(19-sg)}) lgkmcnt(6)")
        else:
            e("s_waitcnt vmcnt(0) lgkmcnt(0)")
        for tt in range(2):
            for nt in range(3):
                D = OD + (tt*3+nt)*4
                c = "0" if sg == 0 else f"v[{D}:{D+3}]"
                b = AB[sg & 1] + 4*nt
                o = OF + (tt*20+sg)*4
                e(f"v_mfma_f32_16x16x32_bf16 v[{D}:{D+3}], v[{b}:{b+3}], v[{o}:{o+3}], {c}")
    srd(S_B, 12, 2048*1280)
    e(f"""
    v_and_b32 v2, 15, v0               ; t'
    v_lshrrev_b32 v3, 4, v0            ; g
    s_lshl_b32 s{sT}, s{sRC}, 7
    s_lshl_b32 s{sT+1}, s{sW4}, 5
    s_add_u32 s{sT}, s{sT}, s{sT+1}
    v_add_u32 v2, s{sT}, v2
    v_mul_u32_u24 v2, 1280, v2
    v_lshlrev_b32 v4, 3, v3
    v_add_u32 v2, v2, v4
    v_mov_b32 v5, 0x40000000
    v_cmp_gt_u32 vcc, 2, v3
    s_mul_i32 s{sT}, s{sHP}, 80
    s_add_u32 s{sT+1}, s{sT}, {16*1280}
    v_cndmask_b32 v5, v5, v2, vcc
    s_nop 3
    """)
    for tt in range(2):
        for nt in range(3):
            D = OD + (tt*3+nt)*4
            P = 64 + (tt*3+nt)*2
            e(f"v_cvt_pk_bf16_f32 v{P}, v{D}, v{D+1}")
            e(f"v_cvt_pk_bf16_f32 v{P+1}, v{D+2}, v{D+3}")
    for tt in range(2):
        for nt in range(3):
            P = 64 + (tt*3+nt)*2
            e(f"buffer_store_dwordx2 v[{P}:{P+1}], v{2 if nt < 2 else 5}, s[{S_B}:{S_B+3}], s{sT+tt} offen offset:{32*nt}")
    e("s_branch L_fin")

    a.label("L_lq")
    vVX, vVW, vWQ = 10, 11, 12
    vBA = 14
    XF = 64
    e(f"""
    v_lshrrev_b32 v2, 3, v0                 ; l>>3
    s_lshl_b32 s{sT}, s{sW4}, 3
    v_add_u32 v2, s{sT}, v2
    v_mul_u32_u24 v2, 1280, v2
    v_lshrrev_b32 v3, 4, v0                 ; r = l>>4
    s_and_b32 s{sT}, s{sW4}, 1
    s_lshl_b32 s{sT}, s{sT}, 2
    v_add_u32 v4, s{sT}, v3
    v_and_b32 v5, 7, v0
    v_xor_b32 v5, v5, v4
    v_lshlrev_b32 v5, 4, v5
    v_add_u32 v{vVX}, v2, v5
    ; W_kv
    v_and_b32 v4, 15, v0
    v_lshlrev_b32 v5, 2, v3
    v_sub_u32 v4, v4, v5
    v_and_b32 v4, 15, v4                    ; pos
    v_lshrrev_b32 v5, 3, v4                 ; seg
    v_bfe_u32 v6, v4, 2, 1                  ; part
    v_and_b32 v7, 3, v4                     ; i4
    v_mul_lo_u32 v8, v6, s{sBB}
    v_add_u32 v8, v8, v7                    ; j
    v_mov_b32 v9, 5
    v_mov_b32 v13, s{sBB}
    v_cmp_eq_u32 vcc, 0, v6
    s_lshl_b32 s{sT}, s{sW4}, 2
    v_add_u32 v2, s{sT}, v3
    v_cndmask_b32 v9, v9, v13, vcc
    v_cmp_lt_u32 vcc, v8, v9
    v_mul_u32_u24 v2, 3840, v2
    v_add_u32 v5, 1, v5
    v_mul_u32_u24 v5, 1280, v5
    v_lshlrev_b32 v8, 4, v8
    v_add3_u32 v{vVW}, v2, v5, v8
    v_mov_b32 v7, 0x40000000
    v_cndmask_b32 v{vVW}, v7, v{vVW}, vcc
    s_mul_i32 s{sSOFX}, s{sRC}, {128*1280}
    s_mul_i32 s{sSOFW}, s{sHP}, 80
    s_lshl_b32 s{sM0}, s{sW4}, 10
    s_waitcnt lgkmcnt(0)
    """)
    srd(S_X, 4, 2048*1280)
    srd(S_W, 6, 640*3840)
    def issue_stage(s):
        m0b = (s % R) * SLOT
        for m in range(4):
            e(f"s_add_u32 m0, s{sM0}, {m0b + m*4096}")
            e(f"s_add_u32 s{sT}, s{sSOFX}, {m*32*1280 + s*128}")
            e(f"buffer_load_dwordx4 v{vVX}, s[{S_X}:{S_X+3}], s{sT} offen lds")
            e(f"s_add_u32 m0, s{sM0}, {m0b + 16384 + m*4096}")
            e(f"s_add_u32 s{sT}, s{sSOFW}, {m*16*3840 + s*64*3840}")
            e(f"buffer_load_dwordx4 v{vVW}, s[{S_W}:{S_W+3}], s{sT} offen lds")
    issue_stage(0)
    srd(S_A, 8, 32*800)
    e(f"""
    v_lshlrev_b32 v2, 4, v0
    s_and_b32 s{sT}, s{sW4}, 1
    s_lshl_b32 s{sT}, s{sT}, 10
    s_add_u32 m0, s{sT}, {L_PHI}
    s_mul_i32 s{sT+1}, s{sHP}, 1600
    s_add_u32 s{sT}, s{sT}, s{sT+1}
    buffer_load_dwordx4 v2, s[{S_A}:{S_A+3}], s{sT} offen lds
    """)
    issue_stage(1)
    srd(S_WS, 16, 0x10000000)
    xfrag_addr(vBA, 2)
    e(f"""
    v_mul_u32_u24 v2, 52, v0
    v_lshrrev_b32 v2, 8, v2
    v_mul_u32_u24 v3, 5, v2
    v_sub_u32 v3, v0, v3
    v_lshlrev_b32 v3, 4, v3
    v_mul_u32_u24 v2, 3840, v2
    v_add_u32 v{vWQ}, v2, v3
    v_cmp_gt_u32 vcc, 40, v0
    s_mov_b64 s[{sEX}:{sEX+1}], vcc
    """)
    def issue_wq(i0, i1):
        e(f"s_mov_b64 exec, s[{sEX}:{sEX+1}]")
        for m in range(i0, i1):
            e(f"s_mul_i32 s{sT}, s{sW4}, 640")
            e(f"s_add_u32 m0, s{sT}, {L_WQ + m*4*640}")
            e(f"s_mul_i32 s{sT}, s{sW4}, {8*3840}")
            e(f"s_add_u32 s{sT}, s{sT}, s{sSOFW}")
            e(f"s_add_u32 s{sT}, s{sT}, {m*32*3840}")
            e(f"buffer_load_dwordx4 v{vWQ}, s[{S_W}:{S_W+3}], s{sT} offen lds")
        e("s_mov_b64 exec, -1")
    base = Base([vBA, vBA+1, vBA+2, vBA+3])
    stamp(1)
    for s in range(NST):
        if s <= 8: e("s_waitcnt vmcnt(8) lgkmcnt(0)")
        else: e("s_waitcnt vmcnt(10) lgkmcnt(0)")
        e("s_barrier")
        if s == 0: stamp(2)
        sb = base.set(s)
        for kk in range(4):
            d = XF + 16*s + 4*kk
            e(f"ds_read_b128 v[{d}:{d+3}], v{vBA+kk} offset:{sb}")
        if s + 2 < NST: issue_stage(s+2)
        elif s == 8: issue_wq(0, 10)
        else: issue_wq(10, 20)
    e("s_waitcnt lgkmcnt(0)")
    e("s_barrier")
    stamp(3)
    e("s_waitcnt vmcnt(0)")
    subbar(3)
    stamp(4)
    QA = 224; QF = [32, 40]; vQA = 18
    lane_decomp32(2, 3, 4, 5, 6)
    e(f"""
    v_lshrrev_b32 v7, 1, v2
    v_lshlrev_b32 v7, 3, v7
    v_add_u32 v7, v7, v3
    v_mul_u32_u24 v7, 80, v7
    v_mul_u32_u24 v6, 40, v6            ; hh*5*8
    v_add3_u32 v7, v7, v6, {L_WQ - 65536 if False else 0}
    v_add_u32 v7, {L_WQ}, v7
    v_lshlrev_b32 v5, 3, v5             ; 8Q
    v_add_u32 v{vQA}, v7, v5
    v_add_u32 v{vQA+1}, 32, v7
    """)
    def q_reads(k, buf):
        for T in range(2):
            for rd in range(2):
                e(f"ds_read_b64_tr_b16 v[{QF[buf]+4*T+2*rd}:{QF[buf]+4*T+2*rd+1}], v{vQA+T} offset:{(16*k+4*rd)*80}")
    q_reads(0, 0)
    for k in range(40):
        if k + 1 < 40:
            q_reads(k+1, (k+1) & 1)
            e("s_waitcnt lgkmcnt(4)")
        else:
            e("s_waitcnt lgkmcnt(0)")
        for T in range(2):
            c = "0" if k == 0 else f"v[{QA+16*T}:{QA+16*T+15}]"
            e(f"v_mfma_f32_32x32x16_bf16 v[{QA+16*T}:{QA+16*T+15}], v[{QF[k&1]+4*T}:{QF[k&1]+4*T+3}], v[{XF+4*k}:{XF+4*k+3}], {c}")
    stamp(5)
    WF = 64; QB = 88; PQ0 = 100; PQ1 = 116; EP = 132; EN = 152; PH = 172; TM = 192
    srd(S_A, 14, 256)
    wphi_frags(WF, 20, 22)
    e("s_nop 7")
    e("s_nop 7")
    if dump == "qacc":
        dump_regs([QA+i for i in range(20)], 0, "qacc")
    for j in range(5):
        src = QA + 4*j if j < 4 else QA + 16
        e(f"v_cvt_pk_bf16_f32 v{QB+2*j}, v{src}, v{src+1}")
        e(f"v_cvt_pk_bf16_f32 v{QB+2*j+1}, v{src+2}, v{src+3}")
    e(f"v_mov_b32 v{QB+10}, 0"); e(f"v_mov_b32 v{QB+11}, 0")
    e("s_waitcnt lgkmcnt(0)")
    feature_map(QB, WF, PQ0, PQ1)
    get_nonce(2)
    e("s_nop 7")
    softmax_pair(PQ0, PQ1, EP, EN, PH, TM)
    if dump == "phiq":
        dump_regs([PH+i for i in range(20)], 0, "phiq")
    stamp(6)
    vOA = 20
    lane_decomp32(2, 3, 4, 5, 6)
    e(f"""
    v_mul_u32_u24 v7, 1920, v6
    v_mul_u32_u24 v8, 48, v3
    v_lshlrev_b32 v9, 3, v5
    v_add3_u32 v7, v7, v8, v9
    v_add_u32 v7, {L_KVF}, v7           ; U=0
    v_lshrrev_b32 v8, 1, v2
    v_mov_b32 v9, {L_ZERO}
    v_cmp_eq_u32 vcc, v8, v6
    s_nop 1
    v_cndmask_b32 v{vOA}, v9, v7, vcc
    v_cmp_gt_u32 s[{sEX}:{sEX+1}], 2, v5
    s_nop 1
    s_and_b64 vcc, vcc, s[{sEX}:{sEX+1}]
    v_add_u32 v7, 32, v7
    s_nop 0
    v_cndmask_b32 v{vOA+1}, v9, v7, vcc
    """)
    subwait(2)
    stamp(7)
    KA = 64
    N0 = 104; N1 = 120
    for U in range(2):
        for st in range(5):
            for rd in range(2):
                d = KA + (U*5+st)*4 + 2*rd
                e(f"ds_read_b64_tr_b16 v[{d}:{d+1}], v{vOA+U} offset:{(8*st+4*rd)*48}")
    e("s_waitcnt lgkmcnt(10)")
    for U, N in ((0, N0), (1, N1)):
        if U == 1: e("s_waitcnt lgkmcnt(0)")
        for st in range(5):
            c = "0" if st == 0 else f"v[{N}:{N+15}]"
            d = KA + (U*5+st)*4
            e(f"v_mfma_f32_32x32x16_bf16 v[{N}:{N+15}], v[{d}:{d+3}], v[{PH+4*st}:{PH+4*st+3}], {c}")
    e(f"""
    v_and_b32 v2, 15, v0
    v_lshlrev_b32 v2, 4, v2
    v_bfe_u32 v3, v0, 4, 1
    v_mul_u32_u24 v3, 20480, v3
    v_add_u32 v2, v2, v3
    v_lshrrev_b32 v4, 5, v0            ; h
    v_lshlrev_b32 v5, 9, v4            ; 2h*256
    v_add_u32 v5, v5, v2               ; chunk 2h
    v_lshlrev_b32 v6, 3, v4
    v_add_u32 v6, v6, v2
    s_lshl_b32 s{sT}, s{sRC}, 3
    s_lshl_b32 s{sT+1}, s{sW4}, 1
    s_add_u32 s{sT}, s{sT}, s{sT+1}
    s_mul_i32 s{sT}, s{sT}, 20480
    s_mul_i32 s{sT+1}, s{sHP}, 1280
    s_add_u32 s{sT}, s{sT}, s{sT+1}
    s_add_u32 s{sT}, s{sT}, {WS_O}
    s_nop 7
    v_add_f32 v8, 0x358637bd, v{N1+4}
    v_rcp_f32 v8, v8
    s_nop 0
    """)
    OB = 136
    for i in range(8):
        e(f"v_pk_mul_f32 v[{N0+2*i}:{N0+2*i+1}], v[{N0+2*i}:{N0+2*i+1}], v[8:9] op_sel_hi:[1,0]")
    for i in range(2):
        e(f"v_pk_mul_f32 v[{N1+2*i}:{N1+2*i+1}], v[{N1+2*i}:{N1+2*i+1}], v[8:9] op_sel_hi:[1,0]")
    for i in range(8):
        e(f"v_cvt_pk_bf16_f32 v{OB+i}, v{N0+2*i}, v{N0+2*i+1}")
    for i in range(2):
        e(f"v_cvt_pk_bf16_f32 v{OB+8+i}, v{N1+2*i}, v{N1+2*i+1}")
    e(f"""
    buffer_store_dwordx4 v[{OB}:{OB+3}], v5, s[{S_WS}:{S_WS+3}], s{sT} offen sc1
    buffer_store_dwordx4 v[{OB+4}:{OB+7}], v5, s[{S_WS}:{S_WS+3}], s{sT} offen offset:256 sc1
    buffer_store_dwordx2 v[{OB+8}:{OB+9}], v6, s[{S_WS}:{S_WS+3}], s{sT} offen offset:1024 sc1
    s_waitcnt vmcnt(0)
    """)
    subbar(4)
    e(f"""
    s_lshl_b32 s{sT+1}, s{sRC}, 4
    s_add_u32 s{sT+1}, s{sT+1}, s{sHP}
    s_lshl_b32 s{sT+1}, s{sT+1}, 7
    s_add_u32 s{sT+1}, s{sT+1}, {WS_F2}
    s_cmp_lg_u32 s{sW4}, 0
    s_cbranch_scc1 L_fin
    v_mov_b32 v2, 0
    v_mov_b32 v3, s{sNONCE}
    s_mov_b64 exec, 1
    buffer_store_dword v3, v2, s[{S_WS}:{S_WS+3}], s{sT+1} offen sc1
    s_mov_b64 exec, -1
    """)
    a.label("L_fin")
    if dbgspan:
        e(f"""
        s_waitcnt vmcnt(0)
        s_memrealtime s[92:93]
        s_memtime s[94:95]
        s_waitcnt lgkmcnt(0)
        s_mov_b32 s72, s14
        s_and_b32 s73, s15, 0xffff
        s_mov_b32 s74, 256
        s_mov_b32 s75, 0x20000
        s_not_b32 s96, s96
        s_sub_u32 s94, s94, s98
        v_mov_b32 v2, 0
        v_mov_b32 v3, s96
        v_mov_b32 v4, s92
        v_mov_b32 v5, s94
        s_mov_b64 exec, 1
        buffer_atomic_umax v3, v2, s[72:75], 0 offen offset:8
        buffer_atomic_umax v4, v2, s[72:75], 0 offen offset:12
        buffer_atomic_umax v5, v2, s[72:75], 0 offen offset:16
        s_mov_b64 exec, -1
        """)
    if stamps:
        e("s_waitcnt vmcnt(0)")
        stamp(8 if False else 10)
        e(f"""
        s_waitcnt lgkmcnt(0)
        s_lshl_b32 s{sT}, s2, 3
        s_add_u32 s{sT}, s{sT}, s{sWAVE}
        s_lshl_b32 s{sT}, s{sT}, 6
        s_add_u32 s{sT}, s{sT}, {WS_STAMP}
        v_mov_b32 v2, 0
        """)
        for i in range(NS): e(f"v_mov_b32 v{20+i}, s{sST+2*i}")
        e(f"""
        s_mov_b64 exec, 1
        buffer_store_dwordx4 v[20:23], v2, s[{S_WS}:{S_WS+3}], s{sT} offen
        buffer_store_dwordx4 v[24:27], v2, s[{S_WS}:{S_WS+3}], s{sT} offen offset:16
        buffer_store_dwordx4 v[28:31], v2, s[{S_WS}:{S_WS+3}], s{sT} offen offset:32
        """)
    a.label("L_end")
    e("s_endpgm")
    if extra_empty:
        hdr = HEADER + f"; @launch kernel={KN} grid=(256,1,1) block=(512,1,1) lds={LDS_BYTES}\n"
        hdr += "".join(f"; @launch kernel=em{i}_kernel grid=(256,1,1) block=(256,1,1) lds=0\n" for i in range(extra_empty))
    else:
        hdr = HEADER + f"; @launch grid=(256,1,1) block=(512,1,1) lds={LDS_BYTES}\n"
    emt = "".join(f".globl em{i}_kernel\n.p2align 8\n.type em{i}_kernel,@function\nem{i}_kernel:\n    s_endpgm\n" for i in range(extra_empty))
    emd = "".join(kernel_desc(f"em{i}_kernel", 8, 16, 8) for i in range(extra_empty))
    return hdr + f""".amdgcn_target "amdgcn-amd-amdhsa--gfx950"
.text
.globl {KN}
.p2align 8
.type {KN},@function
{KN}:
""" + a.text() + emt + """.section .rodata,"a"
""" + kernel_desc(KN, 256, 102, 256) + emd

if __name__ == "__main__":
    import argparse
    ap = argparse.ArgumentParser()
    ap.add_argument("--stamps", action="store_true")
    ap.add_argument("--dump", default=None)
    ap.add_argument("--dbgspan", action="store_true")
    ap.add_argument("--empty", type=int, default=0)
    args = ap.parse_args()
    print(gen(stamps=args.stamps, dump=args.dump, dbgspan=args.dbgspan, extra_empty=args.empty))
```

```python
import sys
from asmlib import *
from lay2 import TKV, TQ

KN = "standalone__linear_kernel_hedgehog__prompt_kernel"
NST = 10
SLOT = 32768
R = 3
L_WQ = 98304
L_PHI = 149504
L_ZERO = 151552
L_CNT = 153600
L_KVF = 154624
L_PK = 32768
L_WO_A = 65536
L_WO_B = 0
LDS_BYTES = 158720
WS_PART = 0x000000
WS_O = 0x100000
WS_F1 = 0x400000
WS_F2 = 0x408000
WS_STAMP = 0x700000
WS_DBG = 0x800000
LOG2E = 0x3fb8aa3b
NLOG2E = 0xbfb8aa3b

class G:
    pass

def gen(stamps=False, dump=None, stop=None, dbgspan=False, extra_empty=0, spin=0, rspin=0, until=0):
    a = Asm(); e = a.e
    S_X, S_W, S_WS = 20, 24, 28
    S_A, S_B = 72, 76
    sWAVE, sW4, sRC, sHP, sBB = 32, 33, 34, 35, 36
    sT = 40
    sSOFX, sSOFW, sM0 = 52, 53, 54
    sNONCE = 55
    sL = 56
    sEX = 58
    sST = 80
    NS = 11
    def stamp(i):
        if stamps: e(f"s_memtime s[{sST+2*i}:{sST+2*i+1}]")
    def rstamp(i):
        if stamps: e(f"s_memrealtime s[{sST+2*i}:{sST+2*i+1}]")
    def srd(dst, ptr, nbytes):
        e(f"""
        s_mov_b32 s{dst}, s{ptr}
        s_and_b32 s{dst+1}, s{ptr+1}, 0xffff
        s_mov_b32 s{dst+2}, {nbytes}
        s_mov_b32 s{dst+3}, 0x20000
        """)
    def subbar(idx, target=4, tmp=2):
        lab = a.newlabel("SB")
        e(f"""
        v_mov_b32 v{tmp}, {L_CNT + 4*idx}
        v_mov_b32 v{tmp+1}, 1
        s_mov_b64 exec, 1
        ds_add_u32 v{tmp}, v{tmp+1}
        s_mov_b64 exec, -1
        """)
        subwait(idx, target, tmp, lab)
    def subsignal(idx, tmp=2):
        e(f"""
        v_mov_b32 v{tmp}, {L_CNT + 4*idx}
        v_mov_b32 v{tmp+1}, 1
        s_mov_b64 exec, 1
        ds_add_u32 v{tmp}, v{tmp+1}
        s_mov_b64 exec, -1
        """)
    def subwait(idx, target=4, tmp=2, lab=None):
        lab = lab or a.newlabel("SW")
        e(f"v_mov_b32 v{tmp}, {L_CNT + 4*idx}")
        e(f"s_mov_b32 s60, 0x80000")
        a.label(lab)
        e(f"""
        s_sub_u32 s60, s60, 1
        s_cbranch_scc1 L_end
        ds_read_b32 v{tmp+1}, v{tmp}
        s_waitcnt lgkmcnt(0)
        v_readfirstlane_b32 s{sT}, v{tmp+1}
        s_nop 0
        s_cmp_lt_u32 s{sT}, {target}
        s_cbranch_scc1 {lab}
        """)
    def get_nonce(vtmp):
        lab = a.newlabel("NC")
        e(f"v_mov_b32 v{vtmp}, 0")
        e(f"s_mov_b32 s60, 0x8000")
        a.label(lab)
        e(f"""
        s_sub_u32 s60, s60, 1
        s_cbranch_scc1 L_end
        buffer_load_dword v{vtmp+1}, v{vtmp}, s[{S_A}:{S_A+3}], 0 offen sc1
        s_waitcnt vmcnt(0)
        v_readfirstlane_b32 s{sNONCE}, v{vtmp+1}
        s_nop 0
        s_cmp_eq_u32 s{sNONCE}, 0
        s_cbranch_scc1 {lab}
        """)
    def poll_flags(base_s, vtmp):
        lab = a.newlabel("PF")
        e(f"""
        v_and_b32 v{vtmp}, 15, v0
        v_lshlrev_b32 v{vtmp}, 7, v{vtmp}
        s_mov_b32 s60, 0x8000
        """)
        a.label(lab)
        e(f"""
        s_sub_u32 s60, s60, 1
        s_cbranch_scc1 L_end
        buffer_load_dword v{vtmp+1}, v{vtmp}, s[{S_WS}:{S_WS+3}], s{base_s} offen sc1
        s_waitcnt vmcnt(0)
        v_cmp_ne_u32 vcc, s{sNONCE}, v{vtmp+1}
        s_cbranch_vccnz {lab}
        """)
    def dump_regs(regs, off, tag):
        n = len(regs)
        e(f"""
        s_lshl_b32 s{sT}, s2, 3
        s_add_u32 s{sT}, s{sT}, s{sWAVE}
        s_mul_i32 s{sT}, s{sT}, {n*256}
        s_add_u32 s{sT}, s{sT}, {WS_DBG + off}
        v_lshlrev_b32 v2, 2, v0
        """)
        for i, r in enumerate(regs):
            e(f"buffer_store_dword v{r}, v2, s[{S_WS}:{S_WS+3}], s{sT} offen offset:{(i%16)*256}")
            if i % 16 == 15: e(f"s_add_u32 s{sT}, s{sT}, 4096")
        e("s_waitcnt vmcnt(0)")

    def softmax_pair(P0, P1, EP, EN, PH, tm):
        p = [P0 + i for i in range(16)] + [P1 + i for i in range(4)]
        tM, tN, tA, tB, tS, tR = tm, tm+1, tm+2, tm+4, tm+6, tm+6
        e(f"v_max3_f32 v{tM}, v{p[0]}, v{p[1]}, v{p[2]}")
        e(f"v_min3_f32 v{tN}, v{p[0]}, v{p[1]}, v{p[2]}")
        for i in range(3, 19, 2):
            e(f"v_max3_f32 v{tM}, v{tM}, v{p[i]}, v{p[i+1]}")
            e(f"v_min3_f32 v{tN}, v{tN}, v{p[i]}, v{p[i+1]}")
        e(f"v_max_f32 v{tM}, v{tM}, v{p[19]}")
        e(f"v_min_f32 v{tN}, v{tN}, v{p[19]}")
        e(f"v_mul_f32 v{tA}, {NLOG2E:#x}, v{tM}")
        e(f"v_mul_f32 v{tB}, {LOG2E:#x}, v{tN}")
        for i in range(10):
            e(f"v_pk_fma_f32 v[{EP+2*i}:{EP+2*i+1}], v[{p[2*i]}:{p[2*i]+1}], s[{sL}:{sL+1}], v[{tA}:{tA+1}] op_sel_hi:[1,1,0]")
        for i in range(10):
            e(f"v_pk_fma_f32 v[{EN+2*i}:{EN+2*i+1}], v[{p[2*i]}:{p[2*i]+1}], s[{sL}:{sL+1}], v[{tB}:{tB+1}] op_sel_hi:[1,1,0] neg_lo:[1,0,0] neg_hi:[1,0,0]")
        for i in range(20): e(f"v_exp_f32 v{EP+i}, v{EP+i}")
        for i in range(20): e(f"v_exp_f32 v{EN+i}, v{EN+i}")
        e(f"v_pk_add_f32 v[{tA}:{tA+1}], v[{EP}:{EP+1}], v[{EP+2}:{EP+3}]")
        e(f"v_pk_add_f32 v[{tB}:{tB+1}], v[{EN}:{EN+1}], v[{EN+2}:{EN+3}]")
        for i in range(2, 10):
            e(f"v_pk_add_f32 v[{tA}:{tA+1}], v[{tA}:{tA+1}], v[{EP+2*i}:{EP+2*i+1}]")
            e(f"v_pk_add_f32 v[{tB}:{tB+1}], v[{tB}:{tB+1}], v[{EN+2*i}:{EN+2*i+1}]")
        e(f"v_add_f32 v{tA}, v{tA}, v{tA+1}")
        e(f"v_add_f32 v{tB}, v{tB}, v{tB+1}")
        e(f"v_rcp_f32 v{tA}, v{tA}")
        e(f"v_rcp_f32 v{tB}, v{tB}")
        e("s_nop 0")
        for i in range(10):
            e(f"v_pk_mul_f32 v[{EP+2*i}:{EP+2*i+1}], v[{EP+2*i}:{EP+2*i+1}], v[{tA}:{tA+1}] op_sel_hi:[1,0]")
        for i in range(10):
            e(f"v_pk_mul_f32 v[{EN+2*i}:{EN+2*i+1}], v[{EN+2*i}:{EN+2*i+1}], v[{tB}:{tB+1}] op_sel_hi:[1,0]")
        for i in range(10):
            e(f"v_cvt_pk_bf16_f32 v{PH+i}, v{EP+2*i}, v{EP+2*i+1}")
        for i in range(10):
            e(f"v_cvt_pk_bf16_f32 v{PH+10+i}, v{EN+2*i}, v{EN+2*i+1}")

    def lane_decomp32(vG, vrp, vc, vQ, vhh):
        e(f"""
        v_lshrrev_b32 v{vG}, 4, v0
        v_bfe_u32 v{vrp}, v0, 2, 2
        v_and_b32 v{vc}, 3, v0
        v_and_b32 v{vQ}, 1, v{vG}
        v_lshlrev_b32 v{vQ}, 1, v{vQ}
        v_lshrrev_b32 v{vhh}, 1, v{vc}
        v_add_u32 v{vQ}, v{vQ}, v{vhh}
        v_and_b32 v{vhh}, 1, v{vc}
        """)

    def wphi_frags(WF, va, t):
        vG, vrp, vc, vQ, vhh = t, t+1, t+2, t+3, t+4
        lane_decomp32(vG, vrp, vc, vQ, vhh)
        e(f"""
        v_mul_u32_u24 v{t+5}, 800, v{vhh}
        v_mul_u32_u24 v{t+6}, 40, v{vrp}
        v_add_u32 v{t+5}, v{t+5}, v{t+6}
        v_lshlrev_b32 v{t+6}, 3, v{vQ}
        v_add_u32 v{t+5}, v{t+5}, v{t+6}
        v_add_u32 v{t+5}, {L_PHI}, v{t+5}
        v_lshrrev_b32 v{t+6}, 1, v{vG}
        v_mov_b32 v{va+1}, {L_ZERO}
        v_cmp_eq_u32 vcc, v{t+6}, v{vhh}
        s_nop 1
        v_cndmask_b32 v{va}, v{va+1}, v{t+5}, vcc
        v_cmp_eq_u32 s[{sEX}:{sEX+1}], 0, v{vQ}
        s_nop 1
        s_and_b64 vcc, vcc, s[{sEX}:{sEX+1}]
        v_add_u32 v{t+5}, 32, v{t+5}
        s_nop 0
        v_cndmask_b32 v{va+1}, v{va+1}, v{t+5}, vcc
        """)
        for u in range(2):
            for step in range(3):
                for rd in range(2):
                    d = WF + u*12 + step*4 + 2*rd
                    if step == 2 and rd == 1:
                        e(f"v_mov_b32 v{d}, 0"); e(f"v_mov_b32 v{d+1}, 0")
                    else:
                        e(f"ds_read_b64_tr_b16 v[{d}:{d+1}], v{va+u} offset:{(8*step+4*rd)*40}")

    def feature_map(SRC, WF, P0, P1):
        for step in range(3):
            for u, P in ((0, P0), (1, P1)):
                c = "0" if step == 0 else f"v[{P}:{P+15}]"
                e(f"v_mfma_f32_32x32x16_bf16 v[{P}:{P+15}], v[{WF+u*12+step*4}:{WF+u*12+step*4+3}], v[{SRC+4*step}:{SRC+4*step+3}], {c}")

    e(f"""
    s_load_dwordx8 s[4:11], s[0:1], 0
    s_load_dwordx4 s[12:15], s[0:1], 32
    s_load_dwordx2 s[16:17], s[0:1], 48
    s_cmp_ge_u32 s2, 256
    s_cbranch_scc1 L_end
    """)
    stamp(0); rstamp(9)
    if until:
        e("s_memrealtime s[98:99]")
    if dbgspan:
        e("s_memrealtime s[96:97]")
        e("s_memtime s[98:99]")
    e(f"""
    v_lshrrev_b32 v1, 6, v0
    v_and_b32 v0, 63, v0
    s_and_b32 s{sT}, s2, 7
    s_lshr_b32 s{sT+1}, s2, 3
    v_readfirstlane_b32 s{sWAVE}, v1
    s_lshr_b32 s{sRC}, s{sT}, 1
    s_lshl_b32 s{sRC}, s{sRC}, 2
    s_lshr_b32 s{sT+2}, s{sT+1}, 3
    s_add_u32 s{sRC}, s{sRC}, s{sT+2}
    s_and_b32 s{sHP}, s{sT}, 1
    s_lshl_b32 s{sHP}, s{sHP}, 3
    s_and_b32 s{sT+2}, s{sT+1}, 7
    s_add_u32 s{sHP}, s{sHP}, s{sT+2}
    s_and_b32 s{sW4}, s{sWAVE}, 3
    s_mul_i32 s{sBB}, s{sHP}, 5
    s_and_b32 s{sBB}, s{sBB}, 7
    s_sub_u32 s{sBB}, 8, s{sBB}
    s_min_u32 s{sBB}, s{sBB}, 4
    s_mov_b32 s{sL}, {LOG2E:#x}
    s_mov_b32 s{sL+1}, {LOG2E:#x}
    s_cmp_ge_u32 s{sWAVE}, 4
    s_cbranch_scc1 L_lq
    """)

    def xfrag_addr(vBA, t):
        e(f"""
        v_and_b32 v{t}, 31, v0
        v_lshrrev_b32 v{t+1}, 5, v0
        v_bfe_u32 v{t+2}, v{t}, 1, 3
        v_xor_b32 v{t+2}, v{t+2}, v{t+1}
        v_lshlrev_b32 v{t+2}, 4, v{t+2}
        s_lshl_b32 s{sT}, s{sW4}, 5
        v_add_u32 v{t}, s{sT}, v{t}
        v_lshlrev_b32 v{t}, 7, v{t}
        v_add_u32 v{vBA}, v{t}, v{t+2}
        v_xor_b32 v{vBA+1}, 32, v{vBA}
        v_xor_b32 v{vBA+2}, 64, v{vBA}
        v_xor_b32 v{vBA+3}, 96, v{vBA}
        """)
    class Base:
        def __init__(self, regs): self.regs = regs; self.cur = 0
        def set(self, s):
            so = (s % R) * SLOT
            want = (so // 65536) * 65536
            if want != self.cur:
                d = (want - self.cur) & 0xffffffff
                for r in self.regs: e(f"v_add_u32 v{r}, {d}, v{r}")
                self.cur = want
            return so - self.cur

    ACC = 64; FB = [112, 128]; WF = 144; KB = 168; VB = 180; PK0 = 192; PK1 = 208; EP = 224; EN = 112; PH = 64; TM = 244
    vAA = 10; vBA = 14
    e(f"""
    v_lshlrev_b32 v2, 4, v0
    s_lshl_b32 s{sT}, s{sW4}, 10
    s_add_u32 s{sT}, s{sT}, {L_ZERO}
    v_add_u32 v2, s{sT}, v2
    v_mov_b32 v4, 0
    v_mov_b32 v5, 0
    v_mov_b32 v6, 0
    v_mov_b32 v7, 0
    s_cmp_eq_u32 s{sW4}, 3
    s_cbranch_scc1 L_kv_nz
    ds_write_b128 v2, v[4:7]
L_kv_nz:
    """)
    lane_decomp32(2, 3, 4, 5, 6)
    e(f"""
    v_lshlrev_b32 v5, 3, v5          ; 8Q
    v_mul_u32_u24 v6, 5, v6          ; 5hh
    v_lshrrev_b32 v7, 1, v2          ; G>>1
    v_lshlrev_b32 v7, 3, v7
    v_add_u32 v7, v7, v3             ; krow
    v_lshlrev_b32 v7, 8, v7
    v_add_u32 v7, 16384, v7
    v_lshlrev_b32 v8, 2, v3          ; 4rp
    s_sub_u32 s{sT+1}, 4, s{sBB}     ; 4-b
    """)
    for T in range(3):
        immc = 0; imms = 0
        for Q in range(4):
            q = TKV[T][Q] or TKV[T][0]
            immc |= q[1] << (8*Q); imms |= (8*q[0]) << (8*Q)
        e(f"""
        s_mov_b32 s{sT}, {immc}
        v_bfe_u32 v18, s{sT}, v5, 8
        v_add_u32 v18, v18, v6           ; cc
        v_lshrrev_b32 v19, 1, v18        ; j
        v_mov_b32 v9, s{sT+1}
        v_cmp_le_u32 vcc, s{sBB}, v19    ; j >= b
        v_mov_b32 v20, 0
        s_nop 0
        v_cndmask_b32 v9, v20, v9, vcc   ; (j>=b) ? 4-b : 0
        v_add_u32 v19, v19, v9           ; pos8
        s_mov_b32 s{sT}, {imms}
        v_bfe_u32 v9, s{sT}, v5, 8       ; 8*seg
        v_add3_u32 v19, v19, v9, v8
        v_and_b32 v19, 15, v19
        v_lshlrev_b32 v19, 4, v19
        v_and_b32 v18, 1, v18
        v_lshlrev_b32 v18, 3, v18
        v_add3_u32 v{vAA+T}, v7, v19, v18
        """)
    xfrag_addr(vBA, 2)
    for r in range(48): e(f"v_mov_b32 v{ACC+r}, 0")
    def kv_reads(kk, buf, sb):
        b = FB[buf]
        e(f"ds_read_b128 v[{b+12}:{b+15}], v{vBA+kk} offset:{sb}")
        for T in range(3):
            for rd in range(2):
                e(f"ds_read_b64_tr_b16 v[{b+4*T+2*rd}:{b+4*T+2*rd+1}], v{vAA+T} offset:{sb+(16*kk+4*rd)*256}")
    def kv_mfmas(buf):
        b = FB[buf]
        for T in range(3):
            e(f"v_mfma_f32_32x32x16_bf16 v[{ACC+16*T}:{ACC+16*T+15}], v[{b+4*T}:{b+4*T+3}], v[{b+12}:{b+15}], v[{ACC+16*T}:{ACC+16*T+15}]")
    srd_done = False
    e("s_waitcnt lgkmcnt(0)")
    srd(S_WS, 16, 0x10000000)
    srd(S_A, 14, 256)
    e(f"""
    s_or_b32 s{sT}, s{sRC}, s{sHP}
    s_or_b32 s{sT}, s{sT}, s{sW4}
    s_cmp_lg_u32 s{sT}, 0
    s_cbranch_scc1 L_kv_nn
    s_memrealtime s[{sT+2}:{sT+3}]
    s_waitcnt lgkmcnt(0)
    s_or_b32 s{sT+2}, s{sT+2}, 1
    v_mov_b32 v2, 0
    v_mov_b32 v3, s{sT+2}
    s_mov_b64 exec, 1
    buffer_store_dword v3, v2, s[{S_A}:{S_A+3}], 0 offen sc1
    s_mov_b64 exec, -1
L_kv_nn:
    """)
    stamp(1)
    e("s_barrier")
    stamp(2)
    base = Base([vAA, vAA+1, vAA+2, vBA, vBA+1, vBA+2, vBA+3])
    sb = base.set(0)
    kv_reads(0, 0, sb)
    for s in range(NST):
        for kk in range(3):
            kv_reads(kk+1, (kk+1) & 1, sb)
            e("s_waitcnt lgkmcnt(7)")
            kv_mfmas(kk & 1)
        if s == 4:
            pass
        e("s_waitcnt lgkmcnt(0)")
        e("s_barrier")
        if s + 1 < NST:
            sb = base.set(s+1)
            kv_reads(0, 0, sb)
        else:
            pass
        kv_mfmas(1)
    stamp(3)
    wphi_frags(WF, 18, 22)
    e("s_nop 7")
    loc = {}
    for T, qs in enumerate(TKV):
        for Q, q in enumerate(qs):
            if q is not None: loc[q] = ACC + 16*T + 4*Q
    e("s_nop 7")
    if dump == "kvacc":
        dump_regs([loc[(sg, j)] + x for sg in range(2) for j in range(5) for x in range(4)], 0, "kvacc")
    for j in range(5):
        e(f"v_cvt_pk_bf16_f32 v{KB+2*j}, v{loc[(0,j)]}, v{loc[(0,j)]+1}")
        e(f"v_cvt_pk_bf16_f32 v{KB+2*j+1}, v{loc[(0,j)]+2}, v{loc[(0,j)]+3}")
    e(f"v_mov_b32 v{KB+10}, 0"); e(f"v_mov_b32 v{KB+11}, 0")
    for j in range(5):
        e(f"v_cvt_pk_bf16_f32 v{VB+2*j}, v{loc[(1,j)]}, v{loc[(1,j)]+1}")
        e(f"v_cvt_pk_bf16_f32 v{VB+2*j+1}, v{loc[(1,j)]+2}, v{loc[(1,j)]+3}")
    e(f"v_mov_b32 v{VB+10}, 0x3f80"); e(f"v_mov_b32 v{VB+11}, 0")
    e("s_waitcnt lgkmcnt(0)")
    feature_map(KB, WF, PK0, PK1)
    vRA = 18
    e(f"""
    v_and_b32 v2, 31, v0
    v_lshrrev_b32 v3, 5, v0
    v_lshlrev_b32 v3, 14, v3
    s_lshl_b32 s{sT}, s{sW4}, 5
    v_add_u32 v2, s{sT}, v2
    v_lshlrev_b32 v2, 7, v2
    v_add_u32 v2, v2, v3
    v_add_u32 v2, {L_PK}, v2
    v_and_b32 v3, 7, v0
    v_bfe_u32 v4, v0, 3, 1
    v_lshlrev_b32 v4, 2, v4
    v_xor_b32 v3, v3, v4
    v_lshlrev_b32 v3, 4, v3
    v_add_u32 v{vRA}, v2, v3
    """)
    for u in range(1, 8): e(f"v_xor_b32 v{vRA+u}, {16*u}, v{vRA}")
    for u in range(3):
        e(f"ds_write_b128 v{vRA+5+u}, v[{VB+4*u}:{VB+4*u+3}]")
    e("s_nop 7")
    if dump == "pk":
        e("s_nop 7")
        dump_regs([PK0+i for i in range(16)] + [PK1+i for i in range(4)], 0, "pk")
    softmax_pair(PK0, PK1, EP, EN, PH, TM)
    if dump == "phik":
        dump_regs([PH+i for i in range(20)], 0, "phik")
    for u in range(5):
        e(f"ds_write_b128 v{vRA+u}, v[{PH+4*u}:{PH+4*u+3}]")
    subbar(0)
    stamp(4)
    vKA = 26
    vKB = 28
    e(f"""
    v_lshrrev_b32 v2, 4, v0            ; G
    v_bfe_u32 v3, v0, 2, 2             ; rp
    v_and_b32 v4, 3, v0                ; c
    v_lshlrev_b32 v5, 3, v2
    v_add_u32 v5, v5, v3
    v_lshlrev_b32 v5, 7, v5            ; *128
    s_lshr_b32 s{sT}, s{sW4}, 1
    s_lshl_b32 s{sT}, s{sT}, 14
    s_add_u32 s{sT}, s{sT}, {L_PK}
    v_add_u32 v5, s{sT}, v5
    v_and_b32 v6, 1, v2
    v_lshlrev_b32 v6, 2, v6
    v_xor_b32 v6, v6, v3
    v_lshrrev_b32 v7, 1, v4            ; c>>1
    v_and_b32 v8, 1, v4                ; sub
    v_lshlrev_b32 v8, 3, v8
    v_add_u32 v5, v5, v8               ; + sub*8
    s_and_b32 s{sT+1}, s{sW4}, 1
    v_add_u32 v9, 5, v7
    v_mov_b32 v19, 7
    s_cmp_eq_u32 s{sT+1}, 1
    s_cselect_b64 vcc, -1, 0
    v_cndmask_b32 v9, v9, v19, vcc
    v_xor_b32 v9, v9, v6
    v_lshlrev_b32 v9, 4, v9
    v_add_u32 v{vKA}, v5, v9
    v_xor_b32 v{vKA+1}, 64, v{vKA}
    v_add_u32 v{vKA+1}, 512, v{vKA+1}
    """)
    for ct in range(3):
        if ct < 2:
            e(f"v_add_u32 v9, {2*ct}, v7")
        else:
            e(f"v_mov_b32 v9, 4")
        e(f"""
        v_xor_b32 v9, v9, v6
        v_lshlrev_b32 v9, 4, v9
        v_add_u32 v{vKB+2*ct}, v5, v9
        v_xor_b32 v{vKB+2*ct+1}, 64, v{vKB+2*ct}
        v_add_u32 v{vKB+2*ct+1}, 512, v{vKB+2*ct+1}
        """)
    KD = 192
    KF = 64
    for kap in range(4):
        f = KF + 16*kap
        for rd in range(2):
            e(f"ds_read_b64_tr_b16 v[{f+2*rd}:{f+2*rd+1}], v{vKA+rd} offset:{4096*kap}")
        for ct in range(3):
            for rd in range(2):
                e(f"ds_read_b64_tr_b16 v[{f+4+4*ct+2*rd}:{f+4+4*ct+2*rd+1}], v{vKB+2*ct+rd} offset:{4096*kap}")
    for kap in range(4):
        f = KF + 16*kap
        e(f"s_waitcnt lgkmcnt({min(15, 8*(3-kap))})")
        for ct in range(3):
            c = "0" if kap == 0 else f"v[{KD+4*ct}:{KD+4*ct+3}]"
            e(f"v_mfma_f32_16x16x32_bf16 v[{KD+4*ct}:{KD+4*ct+3}], v[{f}:{f+3}], v[{f+4+4*ct}:{f+4+4*ct+3}], {c}")
    e(f"""
    v_lshrrev_b32 v2, 4, v0            ; g
    v_and_b32 v3, 15, v0
    s_lshr_b32 s{sT}, s{sW4}, 1
    s_mul_i32 s{sT}, s{sT}, 6
    s_and_b32 s{sT+1}, s{sW4}, 1
    s_lshl_b32 s{sT+2}, s{sT+1}, 2
    s_add_u32 s{sT}, s{sT}, s{sT+2}
    v_add_u32 v4, s{sT}, v2            ; hd*6+dq
    v_mul_u32_u24 v4, 40, v4
    v_add_u32 v4, v4, v3
    v_lshlrev_b32 v4, 3, v4
    v_mov_b32 v5, 0x40000000
    s_mul_i32 s{sT+2}, s{sT+1}, 2      ; rt*2
    s_sub_u32 s{sT+2}, 4, s{sT+2}
    v_cmp_gt_u32 vcc, s{sT+2}, v2
    s_nop 1
    v_cndmask_b32 v4, v5, v4, vcc
    v_cmp_gt_u32 vcc, 8, v3
    s_nop 1
    v_cndmask_b32 v5, v5, v4, vcc
    s_lshl_b32 s{sT}, s{sHP}, 4
    s_add_u32 s{sT}, s{sT}, s{sRC}
    s_lshl_b32 s{sT}, s{sT}, 12
    s_add_u32 s{sT}, s{sT}, {WS_PART}
    """)
    e("s_nop 3")
    for ct in range(3):
        e(f"v_cvt_pk_bf16_f32 v{KD+16+2*ct}, v{KD+4*ct}, v{KD+4*ct+1}")
        e(f"v_cvt_pk_bf16_f32 v{KD+16+2*ct+1}, v{KD+4*ct+2}, v{KD+4*ct+3}")
    for ct in range(3):
        va = 4 if ct < 2 else 5
        e(f"buffer_store_dwordx2 v[{KD+16+2*ct}:{KD+16+2*ct+1}], v{va}, s[{S_WS}:{S_WS+3}], s{sT} offen offset:{128*ct} sc1")
    get_nonce(6)
    e("s_waitcnt vmcnt(0)")
    subbar(1)
    e(f"""
    s_lshl_b32 s{sT+1}, s{sHP}, 4
    s_add_u32 s{sT+1}, s{sT+1}, s{sRC}
    s_lshl_b32 s{sT+1}, s{sT+1}, 7
    s_add_u32 s{sT+1}, s{sT+1}, {WS_F1}
    s_cmp_lg_u32 s{sW4}, 0
    s_cbranch_scc1 L_kv_nf
    v_mov_b32 v2, 0
    v_mov_b32 v3, s{sNONCE}
    s_mov_b64 exec, 1
    buffer_store_dword v3, v2, s[{S_WS}:{S_WS+3}], s{sT+1} offen sc1
    s_mov_b64 exec, -1
L_kv_nf:
    """)
    stamp(5)
    srd(S_B, 10, 640*1280)
    e(f"""
    v_mul_u32_u24 v2, 52, v0
    v_lshrrev_b32 v2, 8, v2            ; j = l/5
    v_mul_u32_u24 v3, 5, v2
    v_sub_u32 v3, v0, v3               ; u5
    v_lshlrev_b32 v3, 4, v3
    v_mul_u32_u24 v4, 1280, v2
    v_add_u32 v34, v4, v3              ; V_lin
    v_add_u32 v4, 16, v2
    v_add_u32 v5, 32, v2
    v_cmp_le_u32 vcc, 4, v2
    s_nop 1
    v_cndmask_b32 v4, v4, v5, vcc
    v_mul_u32_u24 v4, 1280, v4
    v_add_u32 v35, v4, v3              ; V_split
    s_mul_i32 s{sT+4}, s{sHP}, 80
    v_cmp_gt_u32 vcc, 40, v0
    s_nop 1
    s_mov_b64 exec, vcc
    """)
    for w in range(4):
        lab = f"L_wo_{w}"
        a.label(lab)
        if w < 3:
            e(f"s_cmp_lg_u32 s{sW4}, {w}")
            e(f"s_cbranch_scc1 L_wo_{w+1}")
        for m in range(20):
            ci = 4*m + w
            hp_, c5 = divmod(ci, 5)
            rowb = 40*hp_ + [0, 8, 20, 28, 0][c5]
            ldsb = (L_WO_A + ci*640) if ci < 48 else (L_WO_B + (ci-48)*640)
            e(f"s_mov_b32 m0, {ldsb}")
            e(f"s_add_u32 s{sT}, s{sT+4}, {rowb*1280}")
            e(f"buffer_load_dwordx4 v{35 if c5 == 4 else 34}, s[{S_B}:{S_B+3}], s{sT} offen lds")
        if w < 3: e("s_branch L_wo_done")
    a.label("L_wo_done")
    e("s_mov_b64 exec, -1")
    e(f"""
    s_lshl_b32 s{sT+1}, s{sHP}, 11
    s_add_u32 s{sT+1}, s{sT+1}, {WS_F1}
    """)
    poll_flags(sT+1, 2)
    stamp(6)
    PL = 64
    e(f"""
    s_lshl_b32 s{sT}, s{sW4}, 6
    v_add_u32 v2, s{sT}, v0            ; tau
    v_lshlrev_b32 v3, 4, v2
    v_mov_b32 v4, 0x40000000
    v_cmp_gt_u32 vcc, 240, v2
    s_nop 1
    v_cndmask_b32 v3, v4, v3, vcc
    s_lshl_b32 s{sT}, s{sHP}, 16
    s_add_u32 s{sT}, s{sT}, {WS_PART}
    """)
    for r in range(16):
        e(f"buffer_load_dwordx4 v[{PL+4*r}:{PL+4*r+3}], v3, s[{S_WS}:{S_WS+3}], s{sT} offen sc1")
        e(f"s_add_u32 s{sT}, s{sT}, 4096")
    SUM = 128
    for r in range(16):
        e(f"s_waitcnt vmcnt({15-r})")
        for i in range(4):
            src = PL + 4*r + i
            if r == 0:
                e(f"v_lshlrev_b32 v{SUM+2*i}, 16, v{src}")
                e(f"v_and_b32 v{SUM+2*i+1}, 0xffff0000, v{src}")
            else:
                e(f"v_lshlrev_b32 v{SUM+8}, 16, v{src}")
                e(f"v_and_b32 v{SUM+9}, 0xffff0000, v{src}")
                e(f"v_pk_add_f32 v[{SUM+2*i}:{SUM+2*i+1}], v[{SUM+2*i}:{SUM+2*i+1}], v[{SUM+8}:{SUM+9}]")
    for i in range(4):
        e(f"v_cvt_pk_bf16_f32 v{SUM+10+i}, v{SUM+2*i}, v{SUM+2*i+1}")
    e(f"""
    v_mul_u32_u24 v4, 205, v2
    v_lshrrev_b32 v4, 12, v4
    v_mul_u32_u24 v5, 20, v4
    v_sub_u32 v5, v2, v5               ; fp
    v_mul_u32_u24 v5, 96, v5
    v_mul_u32_u24 v6, 43, v4
    v_lshrrev_b32 v6, 8, v6
    v_mul_u32_u24 v7, 6, v6
    v_sub_u32 v7, v4, v7               ; dq
    v_mul_u32_u24 v6, 1920, v6
    v_lshlrev_b32 v7, 3, v7
    v_add3_u32 v5, v5, v6, v7
    v_add_u32 v5, {L_KVF}, v5
    v_cmp_gt_u32 vcc, 240, v2
    s_and_saveexec_b64 s[{sEX}:{sEX+1}], vcc
    ds_write_b64 v5, v[{SUM+10}:{SUM+11}]
    ds_write_b64 v5, v[{SUM+12}:{SUM+13}] offset:48
    s_mov_b64 exec, -1
    """)
    e("s_waitcnt vmcnt(0)")
    subsignal(2)
    stamp(7)
    e(f"""
    s_lshl_b32 s{sT+1}, s{sRC}, 11
    s_add_u32 s{sT+1}, s{sT+1}, {WS_F2}
    """)
    vWA = 10
    e(f"""
    v_lshrrev_b32 v2, 4, v0            ; G
    v_bfe_u32 v3, v0, 2, 2             ; rp
    v_and_b32 v4, 3, v0                ; c
    v_lshlrev_b32 v5, 3, v2
    v_add_u32 v5, v5, v3
    v_mul_u32_u24 v5, 80, v5
    v_lshlrev_b32 v6, 3, v4
    v_add_u32 v{vWA}, v5, v6
    v_add_u32 v{vWA+1}, 32, v{vWA}
    v_and_b32 v4, 1, v4
    v_lshlrev_b32 v6, 3, v4
    v_add3_u32 v{vWA+2}, v5, v6, 64
    """)
    subwait(2)
    poll_flags(sT+1, 2)
    stamp(8)
    OF = 96
    e(f"""
    v_lshlrev_b32 v2, 4, v0
    s_lshl_b32 s{sT}, s{sRC}, 3
    s_lshl_b32 s{sT+1}, s{sW4}, 1
    s_add_u32 s{sT}, s{sT}, s{sT+1}
    s_mul_i32 s{sT}, s{sT}, 20480
    s_add_u32 s{sT}, s{sT}, {WS_O}
    s_add_u32 s{sT+1}, s{sT}, 20480
    """)
    for sg in range(20):
        for tt in range(2):
            d = OF + (tt*20+sg)*4
            e(f"buffer_load_dwordx4 v[{d}:{d+3}], v2, s[{S_WS}:{S_WS+3}], s{sT+tt} offen offset:{(sg%4)*1024} sc1")
        if sg % 4 == 3:
            e(f"s_add_u32 s{sT}, s{sT}, 4096"); e(f"s_add_u32 s{sT+1}, s{sT+1}, 4096")
    OD = 40
    AB = [64, 76]
    def wo_reads(sg, buf):
        ofs = (L_WO_A + sg*32*80) if sg < 12 else (L_WO_B + (sg-12)*32*80)
        for nt in range(3):
            for rd in range(2):
                e(f"ds_read_b64_tr_b16 v[{AB[buf]+4*nt+2*rd}:{AB[buf]+4*nt+2*rd+1}], v{vWA+nt} offset:{ofs - wo_base[0] + rd*4*80}")
    wo_base = [L_WO_A]
    for nt in range(3): e(f"v_add_u32 v{vWA+nt}, {L_WO_A}, v{vWA+nt}")
    wo_reads(0, 0)
    for sg in range(20):
        if sg + 1 < 20:
            if sg + 1 == 12:
                for nt in range(3): e(f"v_subrev_u32 v{vWA+nt}, {L_WO_A}, v{vWA+nt}")
                wo_base[0] = 0
            wo_reads(sg+1, (sg+1) & 1)
            e(f"s_waitcnt vmcnt({2*(19-sg)}) lgkmcnt(6)")
        else:
            e("s_waitcnt vmcnt(0) lgkmcnt(0)")
        for tt in range(2):
            for nt in range(3):
                D = OD + (tt*3+nt)*4
                c = "0" if sg == 0 else f"v[{D}:{D+3}]"
                b = AB[sg & 1] + 4*nt
                o = OF + (tt*20+sg)*4
                e(f"v_mfma_f32_16x16x32_bf16 v[{D}:{D+3}], v[{b}:{b+3}], v[{o}:{o+3}], {c}")
    srd(S_B, 12, 2048*1280)
    e(f"""
    v_and_b32 v2, 15, v0               ; t'
    v_lshrrev_b32 v3, 4, v0            ; g
    s_lshl_b32 s{sT}, s{sRC}, 7
    s_lshl_b32 s{sT+1}, s{sW4}, 5
    s_add_u32 s{sT}, s{sT}, s{sT+1}
    v_add_u32 v2, s{sT}, v2
    v_mul_u32_u24 v2, 1280, v2
    v_lshlrev_b32 v4, 3, v3
    v_add_u32 v2, v2, v4
    v_mov_b32 v5, 0x40000000
    v_cmp_gt_u32 vcc, 2, v3
    s_mul_i32 s{sT}, s{sHP}, 80
    s_add_u32 s{sT+1}, s{sT}, {16*1280}
    v_cndmask_b32 v5, v5, v2, vcc
    s_nop 3
    """)
    for tt in range(2):
        for nt in range(3):
            D = OD + (tt*3+nt)*4
            P = 64 + (tt*3+nt)*2
            e(f"v_cvt_pk_bf16_f32 v{P}, v{D}, v{D+1}")
            e(f"v_cvt_pk_bf16_f32 v{P+1}, v{D+2}, v{D+3}")
    for tt in range(2):
        for nt in range(3):
            P = 64 + (tt*3+nt)*2
            e(f"buffer_store_dwordx2 v[{P}:{P+1}], v{2 if nt < 2 else 5}, s[{S_B}:{S_B+3}], s{sT+tt} offen offset:{32*nt}")
    e("s_branch L_fin")

    a.label("L_lq")
    vVX, vVW, vWQ = 10, 11, 12
    vBA = 14
    XF = 64
    e(f"""
    v_lshrrev_b32 v2, 3, v0                 ; l>>3
    s_lshl_b32 s{sT}, s{sW4}, 3
    v_add_u32 v2, s{sT}, v2
    v_mul_u32_u24 v2, 1280, v2
    v_lshrrev_b32 v3, 4, v0                 ; r = l>>4
    s_and_b32 s{sT}, s{sW4}, 1
    s_lshl_b32 s{sT}, s{sT}, 2
    v_add_u32 v4, s{sT}, v3
    v_and_b32 v5, 7, v0
    v_xor_b32 v5, v5, v4
    v_lshlrev_b32 v5, 4, v5
    v_add_u32 v{vVX}, v2, v5
    ; W_kv
    v_and_b32 v4, 15, v0
    v_lshlrev_b32 v5, 2, v3
    v_sub_u32 v4, v4, v5
    v_and_b32 v4, 15, v4                    ; pos
    v_lshrrev_b32 v5, 3, v4                 ; seg
    v_bfe_u32 v6, v4, 2, 1                  ; part
    v_and_b32 v7, 3, v4                     ; i4
    v_mul_lo_u32 v8, v6, s{sBB}
    v_add_u32 v8, v8, v7                    ; j
    v_mov_b32 v9, 5
    v_mov_b32 v13, s{sBB}
    v_cmp_eq_u32 vcc, 0, v6
    s_lshl_b32 s{sT}, s{sW4}, 2
    v_add_u32 v2, s{sT}, v3
    v_cndmask_b32 v9, v9, v13, vcc
    v_cmp_lt_u32 vcc, v8, v9
    v_mul_u32_u24 v2, 3840, v2
    v_add_u32 v5, 1, v5
    v_mul_u32_u24 v5, 1280, v5
    v_lshlrev_b32 v8, 4, v8
    v_add3_u32 v{vVW}, v2, v5, v8
    v_mov_b32 v7, 0x40000000
    v_cndmask_b32 v{vVW}, v7, v{vVW}, vcc
    s_mul_i32 s{sSOFX}, s{sRC}, {128*1280}
    s_mul_i32 s{sSOFW}, s{sHP}, 80
    s_lshl_b32 s{sM0}, s{sW4}, 10
    s_waitcnt lgkmcnt(0)
    """)
    srd(S_X, 4, 2048*1280)
    srd(S_W, 6, 640*3840)
    def issue_stage(s):
        m0b = (s % R) * SLOT
        for m in range(4):
            e(f"s_add_u32 m0, s{sM0}, {m0b + m*4096}")
            e(f"s_add_u32 s{sT}, s{sSOFX}, {m*32*1280 + s*128}")
            e(f"buffer_load_dwordx4 v{vVX}, s[{S_X}:{S_X+3}], s{sT} offen lds")
            e(f"s_add_u32 m0, s{sM0}, {m0b + 16384 + m*4096}")
            e(f"s_add_u32 s{sT}, s{sSOFW}, {m*16*3840 + s*64*3840}")
            e(f"buffer_load_dwordx4 v{vVW}, s[{S_W}:{S_W+3}], s{sT} offen lds")
    issue_stage(0)
    srd(S_A, 8, 32*800)
    e(f"""
    v_lshlrev_b32 v2, 4, v0
    s_and_b32 s{sT}, s{sW4}, 1
    s_lshl_b32 s{sT}, s{sT}, 10
    s_add_u32 m0, s{sT}, {L_PHI}
    s_mul_i32 s{sT+1}, s{sHP}, 1600
    s_add_u32 s{sT}, s{sT}, s{sT+1}
    buffer_load_dwordx4 v2, s[{S_A}:{S_A+3}], s{sT} offen lds
    """)
    issue_stage(1)
    srd(S_WS, 16, 0x10000000)
    xfrag_addr(vBA, 2)
    e(f"""
    v_mul_u32_u24 v2, 52, v0
    v_lshrrev_b32 v2, 8, v2
    v_mul_u32_u24 v3, 5, v2
    v_sub_u32 v3, v0, v3
    v_lshlrev_b32 v3, 4, v3
    v_mul_u32_u24 v2, 3840, v2
    v_add_u32 v{vWQ}, v2, v3
    v_cmp_gt_u32 vcc, 40, v0
    s_mov_b64 s[{sEX}:{sEX+1}], vcc
    """)
    def issue_wq(i0, i1):
        e(f"s_mov_b64 exec, s[{sEX}:{sEX+1}]")
        for m in range(i0, i1):
            e(f"s_mul_i32 s{sT}, s{sW4}, 640")
            e(f"s_add_u32 m0, s{sT}, {L_WQ + m*4*640}")
            e(f"s_mul_i32 s{sT}, s{sW4}, {8*3840}")
            e(f"s_add_u32 s{sT}, s{sT}, s{sSOFW}")
            e(f"s_add_u32 s{sT}, s{sT}, {m*32*3840}")
            e(f"buffer_load_dwordx4 v{vWQ}, s[{S_W}:{S_W+3}], s{sT} offen lds")
        e("s_mov_b64 exec, -1")
    base = Base([vBA, vBA+1, vBA+2, vBA+3])
    stamp(1)
    for s in range(NST):
        if s <= 8: e("s_waitcnt vmcnt(8) lgkmcnt(0)")
        else: e("s_waitcnt vmcnt(10) lgkmcnt(0)")
        e("s_barrier")
        if s == 0: stamp(2)
        sb = base.set(s)
        for kk in range(4):
            d = XF + 16*s + 4*kk
            e(f"ds_read_b128 v[{d}:{d+3}], v{vBA+kk} offset:{sb}")
        if s + 2 < NST: issue_stage(s+2)
        elif s == 8: issue_wq(0, 10)
        else: issue_wq(10, 20)
    e("s_waitcnt lgkmcnt(0)")
    e("s_barrier")
    stamp(3)
    e("s_waitcnt vmcnt(0)")
    subbar(3)
    stamp(4)
    QA = 224; QF = [32, 40]; vQA = 18
    lane_decomp32(2, 3, 4, 5, 6)
    e(f"""
    v_lshrrev_b32 v7, 1, v2
    v_lshlrev_b32 v7, 3, v7
    v_add_u32 v7, v7, v3
    v_mul_u32_u24 v7, 80, v7
    v_mul_u32_u24 v6, 40, v6            ; hh*5*8
    v_add3_u32 v7, v7, v6, {L_WQ - 65536 if False else 0}
    v_add_u32 v7, {L_WQ}, v7
    v_lshlrev_b32 v5, 3, v5             ; 8Q
    v_add_u32 v{vQA}, v7, v5
    v_add_u32 v{vQA+1}, 32, v7
    """)
    def q_reads(k, buf):
        for T in range(2):
            for rd in range(2):
                e(f"ds_read_b64_tr_b16 v[{QF[buf]+4*T+2*rd}:{QF[buf]+4*T+2*rd+1}], v{vQA+T} offset:{(16*k+4*rd)*80}")
    q_reads(0, 0)
    for k in range(40):
        if k + 1 < 40:
            q_reads(k+1, (k+1) & 1)
            e("s_waitcnt lgkmcnt(4)")
        else:
            e("s_waitcnt lgkmcnt(0)")
        for T in range(2):
            c = "0" if k == 0 else f"v[{QA+16*T}:{QA+16*T+15}]"
            e(f"v_mfma_f32_32x32x16_bf16 v[{QA+16*T}:{QA+16*T+15}], v[{QF[k&1]+4*T}:{QF[k&1]+4*T+3}], v[{XF+4*k}:{XF+4*k+3}], {c}")
    stamp(5)
    WF = 64; QB = 88; PQ0 = 100; PQ1 = 116; EP = 132; EN = 152; PH = 172; TM = 192
    srd(S_A, 14, 256)
    wphi_frags(WF, 20, 22)
    e("s_nop 7")
    e("s_nop 7")
    if dump == "qacc":
        dump_regs([QA+i for i in range(20)], 0, "qacc")
    for j in range(5):
        src = QA + 4*j if j < 4 else QA + 16
        e(f"v_cvt_pk_bf16_f32 v{QB+2*j}, v{src}, v{src+1}")
        e(f"v_cvt_pk_bf16_f32 v{QB+2*j+1}, v{src+2}, v{src+3}")
    e(f"v_mov_b32 v{QB+10}, 0"); e(f"v_mov_b32 v{QB+11}, 0")
    e("s_waitcnt lgkmcnt(0)")
    feature_map(QB, WF, PQ0, PQ1)
    get_nonce(2)
    e("s_nop 7")
    softmax_pair(PQ0, PQ1, EP, EN, PH, TM)
    if dump == "phiq":
        dump_regs([PH+i for i in range(20)], 0, "phiq")
    stamp(6)
    vOA = 20
    lane_decomp32(2, 3, 4, 5, 6)
    e(f"""
    v_mul_u32_u24 v7, 1920, v6
    v_mul_u32_u24 v8, 48, v3
    v_lshlrev_b32 v9, 3, v5
    v_add3_u32 v7, v7, v8, v9
    v_add_u32 v7, {L_KVF}, v7           ; U=0
    v_lshrrev_b32 v8, 1, v2
    v_mov_b32 v9, {L_ZERO}
    v_cmp_eq_u32 vcc, v8, v6
    s_nop 1
    v_cndmask_b32 v{vOA}, v9, v7, vcc
    v_cmp_gt_u32 s[{sEX}:{sEX+1}], 2, v5
    s_nop 1
    s_and_b64 vcc, vcc, s[{sEX}:{sEX+1}]
    v_add_u32 v7, 32, v7
    s_nop 0
    v_cndmask_b32 v{vOA+1}, v9, v7, vcc
    """)
    subwait(2)
    stamp(7)
    KA = 64
    N0 = 104; N1 = 120
    for U in range(2):
        for st in range(5):
            for rd in range(2):
                d = KA + (U*5+st)*4 + 2*rd
                e(f"ds_read_b64_tr_b16 v[{d}:{d+1}], v{vOA+U} offset:{(8*st+4*rd)*48}")
    e("s_waitcnt lgkmcnt(10)")
    for U, N in ((0, N0), (1, N1)):
        if U == 1: e("s_waitcnt lgkmcnt(0)")
        for st in range(5):
            c = "0" if st == 0 else f"v[{N}:{N+15}]"
            d = KA + (U*5+st)*4
            e(f"v_mfma_f32_32x32x16_bf16 v[{N}:{N+15}], v[{d}:{d+3}], v[{PH+4*st}:{PH+4*st+3}], {c}")
    e(f"""
    v_and_b32 v2, 15, v0
    v_lshlrev_b32 v2, 4, v2
    v_bfe_u32 v3, v0, 4, 1
    v_mul_u32_u24 v3, 20480, v3
    v_add_u32 v2, v2, v3
    v_lshrrev_b32 v4, 5, v0            ; h
    v_lshlrev_b32 v5, 9, v4            ; 2h*256
    v_add_u32 v5, v5, v2               ; chunk 2h
    v_lshlrev_b32 v6, 3, v4
    v_add_u32 v6, v6, v2
    s_lshl_b32 s{sT}, s{sRC}, 3
    s_lshl_b32 s{sT+1}, s{sW4}, 1
    s_add_u32 s{sT}, s{sT}, s{sT+1}
    s_mul_i32 s{sT}, s{sT}, 20480
    s_mul_i32 s{sT+1}, s{sHP}, 1280
    s_add_u32 s{sT}, s{sT}, s{sT+1}
    s_add_u32 s{sT}, s{sT}, {WS_O}
    s_nop 7
    v_add_f32 v8, 0x358637bd, v{N1+4}
    v_rcp_f32 v8, v8
    s_nop 0
    """)
    OB = 136
    for i in range(8):
        e(f"v_pk_mul_f32 v[{N0+2*i}:{N0+2*i+1}], v[{N0+2*i}:{N0+2*i+1}], v[8:9] op_sel_hi:[1,0]")
    for i in range(2):
        e(f"v_pk_mul_f32 v[{N1+2*i}:{N1+2*i+1}], v[{N1+2*i}:{N1+2*i+1}], v[8:9] op_sel_hi:[1,0]")
    for i in range(8):
        e(f"v_cvt_pk_bf16_f32 v{OB+i}, v{N0+2*i}, v{N0+2*i+1}")
    for i in range(2):
        e(f"v_cvt_pk_bf16_f32 v{OB+8+i}, v{N1+2*i}, v{N1+2*i+1}")
    e(f"""
    buffer_store_dwordx4 v[{OB}:{OB+3}], v5, s[{S_WS}:{S_WS+3}], s{sT} offen sc1
    buffer_store_dwordx4 v[{OB+4}:{OB+7}], v5, s[{S_WS}:{S_WS+3}], s{sT} offen offset:256 sc1
    buffer_store_dwordx2 v[{OB+8}:{OB+9}], v6, s[{S_WS}:{S_WS+3}], s{sT} offen offset:1024 sc1
    s_waitcnt vmcnt(0)
    """)
    subbar(4)
    e(f"""
    s_lshl_b32 s{sT+1}, s{sRC}, 4
    s_add_u32 s{sT+1}, s{sT+1}, s{sHP}
    s_lshl_b32 s{sT+1}, s{sT+1}, 7
    s_add_u32 s{sT+1}, s{sT+1}, {WS_F2}
    s_cmp_lg_u32 s{sW4}, 0
    s_cbranch_scc1 L_fin
    v_mov_b32 v2, 0
    v_mov_b32 v3, s{sNONCE}
    s_mov_b64 exec, 1
    buffer_store_dword v3, v2, s[{S_WS}:{S_WS+3}], s{sT+1} offen sc1
    s_mov_b64 exec, -1
    """)
    a.label("L_fin")
    if until:
        e(f"""
        s_waitcnt vmcnt(0) lgkmcnt(0)
L_until:
        s_memrealtime s[94:95]
        s_waitcnt lgkmcnt(0)
        s_sub_u32 s96, s94, s98
        s_cmp_lt_u32 s96, {until}
        s_cbranch_scc1 L_until
        """)
    if spin or rspin:
        ins = "s_memtime" if spin else "s_memrealtime"
        e(f"""
        s_waitcnt vmcnt(0)
        {ins} s[92:93]
        s_waitcnt lgkmcnt(0)
L_spin:
        {ins} s[94:95]
        s_waitcnt lgkmcnt(0)
        s_sub_u32 s96, s94, s92
        s_cmp_lt_u32 s96, {spin or rspin}
        s_cbranch_scc1 L_spin
        """)
    if dbgspan:
        e(f"""
        s_waitcnt vmcnt(0)
        s_memrealtime s[92:93]
        s_memtime s[94:95]
        s_waitcnt lgkmcnt(0)
        s_mov_b32 s72, s14
        s_and_b32 s73, s15, 0xffff
        s_mov_b32 s74, 256
        s_mov_b32 s75, 0x20000
        s_not_b32 s96, s96
        s_sub_u32 s94, s94, s98
        v_mov_b32 v2, 0
        v_mov_b32 v3, s96
        v_mov_b32 v4, s92
        v_mov_b32 v5, s94
        s_mov_b64 exec, 1
        buffer_atomic_umax v3, v2, s[72:75], 0 offen offset:8
        buffer_atomic_umax v4, v2, s[72:75], 0 offen offset:12
        buffer_atomic_umax v5, v2, s[72:75], 0 offen offset:16
        s_mov_b64 exec, -1
        """)
    if stamps:
        e("s_waitcnt vmcnt(0)")
        stamp(8 if False else 10)
        e(f"""
        s_waitcnt lgkmcnt(0)
        s_lshl_b32 s{sT}, s2, 3
        s_add_u32 s{sT}, s{sT}, s{sWAVE}
        s_lshl_b32 s{sT}, s{sT}, 6
        s_add_u32 s{sT}, s{sT}, {WS_STAMP}
        v_mov_b32 v2, 0
        """)
        for i in range(NS): e(f"v_mov_b32 v{20+i}, s{sST+2*i}")
        e(f"""
        s_mov_b64 exec, 1
        buffer_store_dwordx4 v[20:23], v2, s[{S_WS}:{S_WS+3}], s{sT} offen
        buffer_store_dwordx4 v[24:27], v2, s[{S_WS}:{S_WS+3}], s{sT} offen offset:16
        buffer_store_dwordx4 v[28:31], v2, s[{S_WS}:{S_WS+3}], s{sT} offen offset:32
        """)
    a.label("L_end")
    e("s_endpgm")
    if extra_empty:
        hdr = HEADER + f"; @launch kernel={KN} grid=(256,1,1) block=(512,1,1) lds={LDS_BYTES}\n"
        hdr += "".join(f"; @launch kernel=em{i}_kernel grid=(256,1,1) block=(256,1,1) lds=0\n" for i in range(extra_empty))
    else:
        hdr = HEADER + f"; @launch grid=(256,1,1) block=(512,1,1) lds={LDS_BYTES}\n"
    emt = "".join(f".globl em{i}_kernel\n.p2align 8\n.type em{i}_kernel,@function\nem{i}_kernel:\n    s_endpgm\n" for i in range(extra_empty))
    emd = "".join(kernel_desc(f"em{i}_kernel", 8, 16, 8) for i in range(extra_empty))
    return hdr + f""".amdgcn_target "amdgcn-amd-amdhsa--gfx950"
.text
.globl {KN}
.p2align 8
.type {KN},@function
{KN}:
""" + a.text() + emt + """.section .rodata,"a"
""" + kernel_desc(KN, 256, 102, 256) + emd

if __name__ == "__main__":
    import argparse
    ap = argparse.ArgumentParser()
    ap.add_argument("--stamps", action="store_true")
    ap.add_argument("--dump", default=None)
    ap.add_argument("--dbgspan", action="store_true")
    ap.add_argument("--empty", type=int, default=0)
    ap.add_argument("--spin", type=int, default=0)
    ap.add_argument("--rspin", type=int, default=0)
    ap.add_argument("--until", type=int, default=0)
    args = ap.parse_args()
    print(gen(stamps=args.stamps, dump=args.dump, dbgspan=args.dbgspan, extra_empty=args.empty, spin=args.spin, rspin=args.rspin, until=args.until))
```

```python
import sys
from asmlib import *
from lay2 import TKV, TQ

KN = "standalone__linear_kernel_hedgehog__prompt_kernel"
NST = 10
SLOT = 32768
R = 3
L_WQ = 98304
L_PHI = 149504
L_ZERO = 151552
L_CNT = 153600
L_KVF = 154624
L_PK = 32768
L_WO19 = 158464
LDS_BYTES = 163840
def L_WO(sg): return sg*5120 if sg <= 18 else L_WO19
WO_P1 = [0,1,2,3,4,5,13,14,15,16,17,18,19]
WO_P2 = [6,7,8,9,10,11,12]
WS_PART = 0x000000
WS_O = 0x100000
WS_RDY = 0x400000
WS_STAMP = 0x700000
WS_DBG = 0x800000
LOG2E = 0x3fb8aa3b
NLOG2E = 0xbfb8aa3b
SPIN_G = 0x8000
SPIN_L = 0x80000

def gen(stamps=False, dump=None, stagest=False, exp='', until=0):
    a = Asm(); e = a.e
    S_X, S_W, S_WS = 20, 24, 28
    S_A, S_B = 72, 76
    sWAVE, sW4, sRC, sHP, sBB = 32, 33, 34, 35, 36
    sT = 40
    sSOFX, sSOFW, sM0 = 52, 53, 54
    sNONCE = 55
    sL = 56
    sEX = 58
    sSPIN = 60
    sU, sV = 62, 63
    sST = 80
    NS = 11
    def sstamp(i):
        if stagest: e(f"s_memtime s[{sST+2*i}:{sST+2*i+1}]")
    def stamp(i):
        if stamps and not (stagest and i > 0): e(f"s_memtime s[{sST+2*i}:{sST+2*i+1}]")
    def rstamp(i):
        if stamps and not stagest: e(f"s_memrealtime s[{sST+2*i}:{sST+2*i+1}]")
    def srd(dst, ptr, nbytes):
        e(f"""
        s_mov_b32 s{dst}, s{ptr}
        s_and_b32 s{dst+1}, s{ptr+1}, 0xffff
        s_mov_b32 s{dst+2}, {nbytes}
        s_mov_b32 s{dst+3}, 0x20000
        """)
    def subsignal(idx, tmp=2):
        e(f"""
        v_mov_b32 v{tmp}, {L_CNT + 4*idx}
        v_mov_b32 v{tmp+1}, 1
        s_mov_b64 exec, 1
        ds_add_u32 v{tmp}, v{tmp+1}
        s_mov_b64 exec, -1
        """)
    def subwait(idx, target=4, tmp=2):
        lab = a.newlabel("SW")
        e(f"v_mov_b32 v{tmp}, {L_CNT + 4*idx}")
        e(f"s_mov_b32 s{sSPIN}, {SPIN_L}")
        a.label(lab)
        e(f"""
        s_sub_u32 s{sSPIN}, s{sSPIN}, 1
        s_cbranch_scc1 L_end
        ds_read_b32 v{tmp+1}, v{tmp}
        s_waitcnt lgkmcnt(0)
        v_readfirstlane_b32 s{sT}, v{tmp+1}
        s_nop 0
        s_cmp_lt_u32 s{sT}, {target}
        s_cbranch_scc1 {lab}
        """)
    def subbar(idx, target=4, tmp=2):
        subsignal(idx, tmp); subwait(idx, target, tmp)
    def dump_regs(regs, off):
        n = len(regs)
        e(f"""
        s_lshl_b32 s{sT}, s2, 3
        s_add_u32 s{sT}, s{sT}, s{sWAVE}
        s_mul_i32 s{sT}, s{sT}, {n*256}
        s_add_u32 s{sT}, s{sT}, {WS_DBG + off}
        v_lshlrev_b32 v2, 2, v0
        """)
        for i, r in enumerate(regs):
            e(f"buffer_store_dword v{r}, v2, s[{S_WS}:{S_WS+3}], s{sT} offen offset:{(i%16)*256}")
            if i % 16 == 15: e(f"s_add_u32 s{sT}, s{sT}, 4096")
        e("s_waitcnt vmcnt(0)")
    def softmax_pair(P0, P1, EP, EN, PH, tm):
        p = [P0 + i for i in range(16)] + [P1 + i for i in range(4)]
        tM, tN, tA, tB = tm, tm+1, tm+2, tm+4
        e(f"v_max3_f32 v{tM}, v{p[0]}, v{p[1]}, v{p[2]}")
        e(f"v_min3_f32 v{tN}, v{p[0]}, v{p[1]}, v{p[2]}")
        for i in range(3, 19, 2):
            e(f"v_max3_f32 v{tM}, v{tM}, v{p[i]}, v{p[i+1]}")
            e(f"v_min3_f32 v{tN}, v{tN}, v{p[i]}, v{p[i+1]}")
        e(f"v_max_f32 v{tM}, v{tM}, v{p[19]}")
        e(f"v_min_f32 v{tN}, v{tN}, v{p[19]}")
        e(f"v_mul_f32 v{tA}, {NLOG2E:#x}, v{tM}")
        e(f"v_mul_f32 v{tB}, {LOG2E:#x}, v{tN}")
        for i in range(20):
            e(f"v_fma_f32 v{EP+i}, v{p[i]}, s{sL}, v{tA}")
            e(f"v_fma_f32 v{EN+i}, -v{p[i]}, s{sL}, v{tB}")
        for i in range(20):
            e(f"v_exp_f32 v{EP+i}, v{EP+i}")
            e(f"v_exp_f32 v{EN+i}, v{EN+i}")
        e(f"v_add_f32 v{tA}, v{EP}, v{EP+1}"); e(f"v_add_f32 v{tB}, v{EN}, v{EN+1}")
        e(f"v_add_f32 v{tA+1}, v{EP+2}, v{EP+3}"); e(f"v_add_f32 v{tB+1}, v{EN+2}, v{EN+3}")
        for i in range(4, 20, 2):
            e(f"v_add_f32 v{tA}, v{tA}, v{EP+i}"); e(f"v_add_f32 v{tB}, v{tB}, v{EN+i}")
            e(f"v_add_f32 v{tA+1}, v{tA+1}, v{EP+i+1}"); e(f"v_add_f32 v{tB+1}, v{tB+1}, v{EN+i+1}")
        e(f"v_add_f32 v{tA}, v{tA}, v{tA+1}")
        e(f"v_add_f32 v{tB}, v{tB}, v{tB+1}")
        e(f"v_rcp_f32 v{tA}, v{tA}")
        e(f"v_rcp_f32 v{tB}, v{tB}")
        e("s_nop 0")
        for i in range(10):
            e(f"v_mul_f32 v{EP+2*i}, v{EP+2*i}, v{tA}"); e(f"v_mul_f32 v{EP+2*i+1}, v{EP+2*i+1}, v{tA}")
            e(f"v_mul_f32 v{EN+2*i}, v{EN+2*i}, v{tB}"); e(f"v_mul_f32 v{EN+2*i+1}, v{EN+2*i+1}, v{tB}")
            e(f"v_cvt_pk_bf16_f32 v{PH+i}, v{EP+2*i}, v{EP+2*i+1}")
            e(f"v_cvt_pk_bf16_f32 v{PH+10+i}, v{EN+2*i}, v{EN+2*i+1}")
    def lane_decomp32(vG, vrp, vc, vQ, vhh):
        e(f"""
        v_lshrrev_b32 v{vG}, 4, v0
        v_bfe_u32 v{vrp}, v0, 2, 2
        v_and_b32 v{vc}, 3, v0
        v_and_b32 v{vQ}, 1, v{vG}
        v_lshlrev_b32 v{vQ}, 1, v{vQ}
        v_lshrrev_b32 v{vhh}, 1, v{vc}
        v_add_u32 v{vQ}, v{vQ}, v{vhh}
        v_and_b32 v{vhh}, 1, v{vc}
        """)
    def wphi_frags(WF, va, t):
        vG, vrp, vc, vQ, vhh = t, t+1, t+2, t+3, t+4
        lane_decomp32(vG, vrp, vc, vQ, vhh)
        e(f"""
        v_mul_u32_u24 v{t+5}, 800, v{vhh}
        v_mul_u32_u24 v{t+6}, 40, v{vrp}
        v_add_u32 v{t+5}, v{t+5}, v{t+6}
        v_lshlrev_b32 v{t+6}, 3, v{vQ}
        v_add_u32 v{t+5}, v{t+5}, v{t+6}
        v_add_u32 v{t+5}, {L_PHI}, v{t+5}
        v_lshrrev_b32 v{t+6}, 1, v{vG}
        v_mov_b32 v{va+1}, {L_ZERO}
        v_cmp_eq_u32 vcc, v{t+6}, v{vhh}
        s_nop 1
        v_cndmask_b32 v{va}, v{va+1}, v{t+5}, vcc
        v_cmp_eq_u32 s[{sEX}:{sEX+1}], 0, v{vQ}
        s_nop 1
        s_and_b64 vcc, vcc, s[{sEX}:{sEX+1}]
        v_add_u32 v{t+5}, 32, v{t+5}
        s_nop 0
        v_cndmask_b32 v{va+1}, v{va+1}, v{t+5}, vcc
        """)
        for u in range(2):
            for step in range(3):
                for rd in range(2):
                    d = WF + u*12 + step*4 + 2*rd
                    if step == 2 and rd == 1:
                        e(f"v_mov_b32 v{d}, 0"); e(f"v_mov_b32 v{d+1}, 0")
                    else:
                        e(f"ds_read_b64_tr_b16 v[{d}:{d+1}], v{va+u} offset:{(8*step+4*rd)*40}")
    def feature_map(SRC, WF, P0, P1):
        for step in range(3):
            for u, P in ((0, P0), (1, P1)):
                c = "0" if step == 0 else f"v[{P}:{P+15}]"
                e(f"v_mfma_f32_32x32x16_bf16 v[{P}:{P+15}], v[{WF+u*12+step*4}:{WF+u*12+step*4+3}], v[{SRC+4*step}:{SRC+4*step+3}], {c}")
    def xfrag_addr(vBA, t):
        e(f"""
        v_and_b32 v{t}, 31, v0
        v_lshrrev_b32 v{t+1}, 5, v0
        v_bfe_u32 v{t+2}, v{t}, 1, 3
        v_xor_b32 v{t+2}, v{t+2}, v{t+1}
        v_lshlrev_b32 v{t+2}, 4, v{t+2}
        s_lshl_b32 s{sT}, s{sW4}, 5
        v_add_u32 v{t}, s{sT}, v{t}
        v_lshlrev_b32 v{t}, 7, v{t}
        v_add_u32 v{vBA}, v{t}, v{t+2}
        v_xor_b32 v{vBA+1}, 32, v{vBA}
        v_xor_b32 v{vBA+2}, 64, v{vBA}
        v_xor_b32 v{vBA+3}, 96, v{vBA}
        """)
    class Base:
        def __init__(self, regs): self.regs = regs; self.cur = 0
        def set(self, s):
            so = (s % R) * SLOT
            want = (so // 65536) * 65536
            if want != self.cur:
                d = (want - self.cur) & 0xffffffff
                for r in self.regs: e(f"v_add_u32 v{r}, {d}, v{r}")
                self.cur = want
            return so - self.cur
    def wo_setup(vWO, t):
        e(f"""
        v_mul_u32_u24 v{t}, 26, v0
        v_lshrrev_b32 v{t}, 8, v{t}          ; l/10 for l<64
        v_mul_u32_u24 v{t+1}, 10, v{t}
        v_sub_u32 v{t+1}, v0, v{t+1}
        v_lshlrev_b32 v{t+1}, 4, v{t+1}
        v_mul_u32_u24 v{t}, 1280, v{t}
        v_add_u32 v{vWO}, v{t}, v{t+1}
        v_cmp_gt_u32 vcc, 40, v0
        s_lshr_b32 s{sU}, s{sHP}, 1
        s_mul_i32 s{sU}, s{sU}, 160
        s_mul_i32 s{sV}, s{sW4}, {40*1280}
        s_add_u32 s{sU}, s{sU}, s{sV}        ; + G*40 rows
        s_lshr_b32 s{sV}, s{sW4}, 1
        s_lshl_b32 s{sV}, s{sV}, 4
        s_and_b32 s{sT}, s{sW4}, 1
        s_lshl_b32 s{sT}, s{sT}, 2
        s_add_u32 s{sV}, s{sV}, s{sT}
        s_mul_i32 s{sV}, s{sV}, 160          ; pi0*160
        s_mov_b64 s[{sEX}:{sEX+1}], vcc
        """)
    def wo_dma(sg, rd, vWO):
        blk, c5 = divmod(sg, 5)
        if c5 < 4: row = 160*blk + [0, 8, 20, 28][c5] + 4*rd
        else: row = 160*blk + 16 + 20*rd
        e(f"s_add_u32 m0, s{sV}, {L_WO(sg) + rd*8*160}")
        e(f"s_add_u32 s{sT}, s{sU}, {row*1280}")
        e(f"buffer_load_dwordx4 v{vWO}, s[{S_B}:{S_B+3}], s{sT} offen lds")

    e(f"""
    s_load_dwordx8 s[4:11], s[0:1], 0
    s_load_dwordx4 s[12:15], s[0:1], 32
    s_load_dwordx2 s[16:17], s[0:1], 48
    s_cmp_ge_u32 s2, 256
    s_cbranch_scc1 L_end
    """)
    if 'half' in exp:
        e("s_bitcmp1_b32 s2, 6")
        e("s_cbranch_scc1 L_end")
    if 'quarter' in exp:
        e("s_and_b32 s40, s2, 0x60")
        e("s_cmp_lg_u32 s40, 0")
        e("s_cbranch_scc1 L_end")
    stamp(0); rstamp(9)
    if until: e("s_memrealtime s[98:99]")
    e(f"""
    v_lshrrev_b32 v1, 6, v0
    v_and_b32 v0, 63, v0
    s_and_b32 s{sT}, s2, 7
    s_lshr_b32 s{sT+1}, s2, 3
    v_readfirstlane_b32 s{sWAVE}, v1
    s_lshr_b32 s{sRC}, s{sT}, 1
    s_lshl_b32 s{sRC}, s{sRC}, 2
    s_lshr_b32 s{sT+2}, s{sT+1}, 3
    s_add_u32 s{sRC}, s{sRC}, s{sT+2}
    s_and_b32 s{sHP}, s{sT}, 1
    s_lshl_b32 s{sHP}, s{sHP}, 3
    s_and_b32 s{sT+2}, s{sT+1}, 7
    s_add_u32 s{sHP}, s{sHP}, s{sT+2}
    s_and_b32 s{sW4}, s{sWAVE}, 3
    s_mul_i32 s{sBB}, s{sHP}, 5
    s_and_b32 s{sBB}, s{sBB}, 7
    s_sub_u32 s{sBB}, 8, s{sBB}
    s_min_u32 s{sBB}, s{sBB}, 4
    s_mov_b32 s{sL}, {LOG2E:#x}
    s_cmp_ge_u32 s{sWAVE}, 4
    s_cbranch_scc1 L_lq
    """)

    ACC = 64; FB = [112, 128]; WF = 144; KB = 168; VB = 180; PK0 = 192; PK1 = 208; EP = 224; EN = 112; PH = 64; TM = 244
    vAA = 10; vBA = 14
    vPA, vPB = 34, 35
    sPART = 64
    e(f"""
    s_lshl_b32 s{sPART}, s{sHP}, 4
    s_add_u32 s{sPART}, s{sPART}, s{sRC}
    s_lshl_b32 s{sPART}, s{sPART}, 12
    s_add_u32 s{sPART}, s{sPART}, {WS_PART}
    s_waitcnt lgkmcnt(0)
    """)
    srd(S_WS, 16, 0x10000000)
    srd(S_A, 14, 256)
    e(f"""
    s_or_b32 s{sT}, s{sRC}, s{sHP}
    s_or_b32 s{sT}, s{sT}, s{sW4}
    s_cmp_lg_u32 s{sT}, 0
    s_cbranch_scc1 L_kv_nn
    s_memrealtime s[{sT+4}:{sT+5}]
    s_waitcnt lgkmcnt(0)
    s_or_b32 s{sT+4}, s{sT+4}, 1
    v_mov_b32 v2, 0
    v_mov_b32 v3, s{sT+4}
    s_mov_b64 exec, 1
    buffer_store_dword v3, v2, s[{S_A}:{S_A+3}], 0 offen sc1
    s_mov_b64 exec, -1
L_kv_nn:
    """)
    e(f"""
    v_lshlrev_b32 v2, 4, v0
    s_lshl_b32 s{sT}, s{sW4}, 10
    s_add_u32 s{sT}, s{sT}, {L_ZERO}
    v_add_u32 v2, s{sT}, v2
    v_mov_b32 v24, 0
    v_mov_b32 v25, 0
    v_mov_b32 v26, 0
    v_mov_b32 v27, 0
    s_cmp_eq_u32 s{sW4}, 3
    s_cbranch_scc1 L_kv_nz
    ds_write_b128 v2, v[24:27]
L_kv_nz:
    """)
    lane_decomp32(2, 3, 4, 5, 6)
    e(f"""
    v_lshlrev_b32 v5, 3, v5          ; 8Q
    v_mul_u32_u24 v6, 5, v6          ; 5hh
    v_lshrrev_b32 v7, 1, v2
    v_lshlrev_b32 v7, 3, v7
    v_add_u32 v7, v7, v3             ; krow
    v_lshlrev_b32 v7, 8, v7
    v_add_u32 v7, 16384, v7
    v_lshlrev_b32 v8, 2, v3          ; 4rp
    s_sub_u32 s{sT+1}, 4, s{sBB}
    """)
    for T in range(3):
        immc = 0; imms = 0
        for Q in range(4):
            q = TKV[T][Q] or TKV[T][0]
            immc |= q[1] << (8*Q); imms |= (8*q[0]) << (8*Q)
        e(f"""
        s_mov_b32 s{sT}, {immc}
        v_bfe_u32 v18, s{sT}, v5, 8
        v_add_u32 v18, v18, v6
        v_lshrrev_b32 v19, 1, v18
        v_mov_b32 v9, s{sT+1}
        v_cmp_le_u32 vcc, s{sBB}, v19
        v_mov_b32 v20, 0
        s_nop 0
        v_cndmask_b32 v9, v20, v9, vcc
        v_add_u32 v19, v19, v9
        s_mov_b32 s{sT}, {imms}
        v_bfe_u32 v9, s{sT}, v5, 8
        v_add3_u32 v19, v19, v9, v8
        v_and_b32 v19, 15, v19
        v_lshlrev_b32 v19, 4, v19
        v_and_b32 v18, 1, v18
        v_lshlrev_b32 v18, 3, v18
        v_add3_u32 v{vAA+T}, v7, v19, v18
        """)
    xfrag_addr(vBA, 2)
    def kv_reads(kk, buf, sb):
        b = FB[buf]
        e(f"ds_read_b128 v[{b+12}:{b+15}], v{vBA+kk} offset:{sb}")
        for T in range(3):
            for rd in range(2):
                e(f"ds_read_b64_tr_b16 v[{b+4*T+2*rd}:{b+4*T+2*rd+1}], v{vAA+T} offset:{sb+(16*kk+4*rd)*256}")
    def kv_mfmas(buf, first=False):
        b = FB[buf]
        for T in range(3):
            c = "0" if first else f"v[{ACC+16*T}:{ACC+16*T+15}]"
            e(f"v_mfma_f32_32x32x16_bf16 v[{ACC+16*T}:{ACC+16*T+15}], v[{b+4*T}:{b+4*T+3}], v[{b+12}:{b+15}], {c}")
    e("s_waitcnt lgkmcnt(0)")
    stamp(1)
    e("s_barrier")
    stamp(2)
    vNC, vRF = 38, 36
    base = Base([vAA, vAA+1, vAA+2, vBA, vBA+1, vBA+2, vBA+3])
    sb = base.set(0)
    kv_reads(0, 0, sb)
    for s in range(NST):
        for kk in range(3):
            kv_reads(kk+1, (kk+1) & 1, sb)
            e("s_waitcnt lgkmcnt(7)")
            kv_mfmas(kk & 1, first=(s == 0 and kk == 0))
        if s == 0:
            e(f"v_mov_b32 v{vNC}, 0")
            e(f"buffer_load_dword v{vNC+1}, v{vNC}, s[{S_A}:{S_A+3}], 0 offen sc1")
        if s == 1: wphi_frags(WF, 18, 22)
        if s == 2 and 'p1only' not in exp:
            lab = a.newlabel("NF"); lab2 = a.newlabel("NC")
            e(f"""
            s_waitcnt vmcnt(0)
            v_readfirstlane_b32 s{sNONCE}, v{vNC+1}
            s_mov_b32 s{sSPIN}, {SPIN_G}
            s_cmp_lg_u32 s{sNONCE}, 0
            s_cbranch_scc1 {lab}
{lab2}:
            s_sub_u32 s{sSPIN}, s{sSPIN}, 1
            s_cbranch_scc1 L_end
            buffer_load_dword v{vNC+1}, v{vNC}, s[{S_A}:{S_A+3}], 0 offen sc1
            s_waitcnt vmcnt(0)
            v_readfirstlane_b32 s{sNONCE}, v{vNC+1}
            s_nop 0
            s_cmp_eq_u32 s{sNONCE}, 0
            s_cbranch_scc1 {lab2}
{lab}:
            """)
        if s == 3:
            lab = a.newlabel("RD")
            e(f"""
            s_cmp_lg_u32 s{sW4}, 0
            s_cbranch_scc1 {lab}
            s_lshl_b32 s{sT}, s{sHP}, 4
            s_add_u32 s{sT}, s{sT}, s{sRC}
            s_lshl_b32 s{sT}, s{sT}, 7
            s_add_u32 s{sT}, s{sT}, {WS_RDY}
            v_mov_b32 v2, 0
            v_mov_b32 v3, s{sNONCE}
            s_mov_b64 exec, 1
            buffer_store_dword v3, v2, s[{S_WS}:{S_WS+3}], s{sT} offen sc1
            s_mov_b64 exec, -1
{lab}:
            """)
        if s == 7:
            e(f"""
            v_and_b32 v2, 15, v0
            s_lshl_b32 s{sT}, s{sHP}, 4
            v_add_u32 v3, s{sT}, v2            ; hp*16 + r
            v_lshlrev_b32 v4, 4, v2
            v_add_u32 v4, s{sRC}, v4           ; h'*16 + rc
            v_bfe_u32 v5, v0, 4, 1
            v_cmp_eq_u32 vcc, 0, v5
            s_mov_b32 s{sT+1}, {WS_RDY}
            s_nop 0
            v_cndmask_b32 v3, v4, v3, vcc
            v_lshlrev_b32 v{vRF}, 7, v3
            buffer_load_dword v{vRF+1}, v{vRF}, s[{S_WS}:{S_WS+3}], s{sT+1} offen sc1
            """)
        e("s_waitcnt lgkmcnt(0)")
        e("s_barrier")
        sstamp(s+1)
        if s + 1 < NST:
            sb = base.set(s+1)
            kv_reads(0, 0, sb)
        kv_mfmas(1)
    stamp(3)
    if 'p1only' in exp: e("s_branch L_fin")
    loc = {}
    for T, qs in enumerate(TKV):
        for Q, q in enumerate(qs):
            if q is not None: loc[q] = ACC + 16*T + 4*Q
    vRA = 18
    e(f"""
    v_and_b32 v2, 31, v0
    v_lshrrev_b32 v3, 5, v0
    v_lshlrev_b32 v3, 14, v3
    s_lshl_b32 s{sT}, s{sW4}, 5
    v_add_u32 v2, s{sT}, v2
    v_lshlrev_b32 v2, 7, v2
    v_add_u32 v2, v2, v3
    v_add_u32 v2, {L_PK}, v2
    v_and_b32 v3, 7, v0
    v_bfe_u32 v4, v0, 3, 1
    v_lshlrev_b32 v4, 2, v4
    v_xor_b32 v3, v3, v4
    v_lshlrev_b32 v3, 4, v3
    v_add_u32 v{vRA}, v2, v3
    """)
    for u in range(1, 8): e(f"v_xor_b32 v{vRA+u}, {16*u}, v{vRA}")
    if dump == "kvacc":
        e("s_nop 7"); dump_regs([loc[(sg, j)] + x for sg in range(2) for j in range(5) for x in range(4)], 0)
    for j in range(5):
        e(f"v_cvt_pk_bf16_f32 v{KB+2*j}, v{loc[(0,j)]}, v{loc[(0,j)]+1}")
        e(f"v_cvt_pk_bf16_f32 v{KB+2*j+1}, v{loc[(0,j)]+2}, v{loc[(0,j)]+3}")
    e(f"v_mov_b32 v{KB+10}, 0"); e(f"v_mov_b32 v{KB+11}, 0")
    e("s_nop 0")
    feature_map(KB, WF, PK0, PK1)
    for j in range(5):
        e(f"v_cvt_pk_bf16_f32 v{VB+2*j}, v{loc[(1,j)]}, v{loc[(1,j)]+1}")
        e(f"v_cvt_pk_bf16_f32 v{VB+2*j+1}, v{loc[(1,j)]+2}, v{loc[(1,j)]+3}")
    e(f"v_mov_b32 v{VB+10}, 0x3f80"); e(f"v_mov_b32 v{VB+11}, 0")
    for u in range(3):
        e(f"ds_write_b128 v{vRA+5+u}, v[{VB+4*u}:{VB+4*u+3}]")
    vKA = 26; vKB = 28
    e(f"""
    v_lshrrev_b32 v2, 4, v0            ; G
    v_bfe_u32 v3, v0, 2, 2             ; rp
    v_and_b32 v4, 3, v0                ; c
    v_lshlrev_b32 v5, 3, v2
    v_add_u32 v5, v5, v3
    v_lshlrev_b32 v5, 7, v5
    s_lshr_b32 s{sT}, s{sW4}, 1
    s_lshl_b32 s{sT}, s{sT}, 14
    s_add_u32 s{sT}, s{sT}, {L_PK}
    v_add_u32 v5, s{sT}, v5
    v_and_b32 v6, 1, v2
    v_lshlrev_b32 v6, 2, v6
    v_xor_b32 v6, v6, v3
    v_lshrrev_b32 v7, 1, v4
    v_and_b32 v8, 1, v4
    v_lshlrev_b32 v8, 3, v8
    v_add_u32 v5, v5, v8
    s_and_b32 s{sT+1}, s{sW4}, 1
    v_add_u32 v9, 5, v7
    v_mov_b32 v40, 7
    s_cmp_eq_u32 s{sT+1}, 1
    s_cselect_b64 vcc, -1, 0
    v_cndmask_b32 v9, v9, v40, vcc
    v_xor_b32 v9, v9, v6
    v_lshlrev_b32 v9, 4, v9
    v_add_u32 v{vKA}, v5, v9
    v_xor_b32 v{vKA+1}, 64, v{vKA}
    v_add_u32 v{vKA+1}, 512, v{vKA+1}
    """)
    for ct in range(3):
        if ct < 2: e(f"v_add_u32 v9, {2*ct}, v7")
        else: e(f"v_mov_b32 v9, 4")
        e(f"""
        v_xor_b32 v9, v9, v6
        v_lshlrev_b32 v9, 4, v9
        v_add_u32 v{vKB+2*ct}, v5, v9
        v_xor_b32 v{vKB+2*ct+1}, 64, v{vKB+2*ct}
        v_add_u32 v{vKB+2*ct+1}, 512, v{vKB+2*ct+1}
        """)
    e(f"""
    v_lshrrev_b32 v2, 4, v0            ; g
    v_and_b32 v3, 15, v0
    s_lshr_b32 s{sT}, s{sW4}, 1
    s_mul_i32 s{sT}, s{sT}, 6
    s_and_b32 s{sT+1}, s{sW4}, 1
    s_lshl_b32 s{sT+2}, s{sT+1}, 2
    s_add_u32 s{sT}, s{sT}, s{sT+2}
    v_add_u32 v4, s{sT}, v2
    v_mul_u32_u24 v4, 40, v4
    v_add_u32 v4, v4, v3
    v_lshlrev_b32 v4, 3, v4
    v_mov_b32 v5, 0x40000000
    s_lshl_b32 s{sT+2}, s{sT+1}, 1
    s_sub_u32 s{sT+2}, 4, s{sT+2}
    v_cmp_gt_u32 vcc, s{sT+2}, v2
    s_nop 1
    v_cndmask_b32 v{vPA}, v5, v4, vcc
    v_cmp_gt_u32 vcc, 8, v3
    s_nop 1
    v_cndmask_b32 v{vPB}, v5, v{vPA}, vcc
    """)
    if dump == "pk":
        dump_regs([PK0+i for i in range(16)] + [PK1+i for i in range(4)], 0)
    softmax_pair(PK0, PK1, EP, EN, PH, TM)
    if dump == "phik": dump_regs([PH+i for i in range(20)], 0)
    for u in range(5):
        e(f"ds_write_b128 v{vRA+u}, v[{PH+4*u}:{PH+4*u+3}]")
    subbar(0)
    stamp(4)
    KD = 192; KF = 64
    for kap in range(4):
        f = KF + 16*kap
        for rd in range(2):
            e(f"ds_read_b64_tr_b16 v[{f+2*rd}:{f+2*rd+1}], v{vKA+rd} offset:{4096*kap}")
        for ct in range(3):
            for rd in range(2):
                e(f"ds_read_b64_tr_b16 v[{f+4+4*ct+2*rd}:{f+4+4*ct+2*rd+1}], v{vKB+2*ct+rd} offset:{4096*kap}")
    for kap in range(4):
        f = KF + 16*kap
        e(f"s_waitcnt lgkmcnt({min(15, 8*(3-kap))})")
        for ct in range(3):
            c = "0" if kap == 0 else f"v[{KD+4*ct}:{KD+4*ct+3}]"
            e(f"v_mfma_f32_16x16x32_bf16 v[{KD+4*ct}:{KD+4*ct+3}], v[{f}:{f+3}], v[{f+4+4*ct}:{f+4+4*ct+3}], {c}")
    subsignal(1)
    vWO = 40
    srd(S_B, 10, 640*1280)
    wo_setup(vWO, 2)
    for ct in range(3):
        e(f"v_cvt_pk_bf16_f32 v{KD+16+2*ct}, v{KD+4*ct}, v{KD+4*ct+1}")
        e(f"v_cvt_pk_bf16_f32 v{KD+16+2*ct+1}, v{KD+4*ct+2}, v{KD+4*ct+3}")
    for ct in range(3):
        e(f"v_min_u32 v{KD+16+2*ct}, -2, v{KD+16+2*ct}")
    for ct in range(3):
        e(f"buffer_store_dwordx2 v[{KD+16+2*ct}:{KD+16+2*ct+1}], v{vPA if ct < 2 else vPB}, s[{S_WS}:{S_WS+3}], s{sPART} offen offset:{128*ct} sc1")
    stamp(5)
    lab = a.newlabel("RC"); lab2 = a.newlabel("RP")
    e(f"""
    s_waitcnt vmcnt(3)
    s_mov_b32 s{sSPIN}, {SPIN_G}
    s_mov_b32 s{sT+1}, {WS_RDY}
    v_cmp_ne_u32 vcc, s{sNONCE}, v{vRF+1}
    s_cbranch_vccz {lab}
{lab2}:
    s_sub_u32 s{sSPIN}, s{sSPIN}, 1
    s_cbranch_scc1 L_end
    buffer_load_dword v{vRF+1}, v{vRF}, s[{S_WS}:{S_WS+3}], s{sT+1} offen sc1
    s_waitcnt vmcnt(0)
    v_cmp_ne_u32 vcc, s{sNONCE}, v{vRF+1}
    s_cbranch_vccnz {lab2}
{lab}:
    """)
    subwait(1)
    e(f"s_mov_b64 exec, s[{sEX}:{sEX+1}]")
    for sg in WO_P2:
        for rd in range(2): wo_dma(sg, rd, vWO)
    e("s_mov_b64 exec, -1")
    PL = 64; SUM = 128
    e(f"""
    v_and_b32 v2, 15, v0
    v_lshlrev_b32 v2, 12, v2           ; r*4096
    s_lshl_b32 s{sT+4}, s{sHP}, 16
    s_add_u32 s{sT+4}, s{sT+4}, {WS_PART}
    s_add_u32 s{sT+5}, s{sT+4}, {((1*6+5)*40+39)*8}
    s_mov_b32 s{sSPIN}, {SPIN_G}
    s_lshl_b32 s{sT}, s{sW4}, 6
    v_add_u32 v6, s{sT}, v0            ; tau
    v_lshlrev_b32 v7, 4, v6
    v_mov_b32 v4, 0x40000000
    v_cmp_gt_u32 vcc, 240, v6
    s_nop 1
    v_cndmask_b32 v7, v4, v7, vcc
    s_branch L_s1_sweep
L_s1_hint:
    s_sub_u32 s{sSPIN}, s{sSPIN}, 1
    s_cbranch_scc1 L_end
    buffer_load_dword v3, v2, s[{S_WS}:{S_WS+3}], s{sT+5} offen sc1
    s_waitcnt vmcnt(0)
    v_cmp_eq_u32 vcc, -1, v3
    s_cbranch_vccnz L_s1_hint
    """)
    a.label("L_s1_sweep")
    stamp(6)
    e(f"""
    s_sub_u32 s{sSPIN}, s{sSPIN}, 1
    s_cbranch_scc1 L_end
    s_mov_b32 s{sT}, s{sT+4}
    """)
    for r in range(16):
        e(f"buffer_load_dwordx4 v[{PL+4*r}:{PL+4*r+3}], v7, s[{S_WS}:{S_WS+3}], s{sT} offen sc1")
        e(f"s_add_u32 s{sT}, s{sT}, 4096")
    for r in range(16):
        e(f"s_waitcnt vmcnt({15-r})")
        if r == 0: e(f"v_max_u32 v{SUM+10}, v{PL}, v{PL+2}")
        else: e(f"v_max3_u32 v{SUM+10}, v{SUM+10}, v{PL+4*r}, v{PL+4*r+2}")
        for i in range(4):
            src = PL + 4*r + i
            if r == 0:
                e(f"v_lshlrev_b32 v{SUM+2*i}, 16, v{src}")
                e(f"v_and_b32 v{SUM+2*i+1}, 0xffff0000, v{src}")
            else:
                e(f"v_lshlrev_b32 v{SUM+8}, 16, v{src}")
                e(f"v_and_b32 v{SUM+9}, 0xffff0000, v{src}")
                e(f"v_add_f32 v{SUM+2*i}, v{SUM+2*i}, v{SUM+8}")
                e(f"v_add_f32 v{SUM+2*i+1}, v{SUM+2*i+1}, v{SUM+9}")
    e(f"""
    v_cmp_eq_u32 vcc, -1, v{SUM+10}
    s_cbranch_vccnz L_s1_hint
    """)
    for i in range(4):
        e(f"v_cvt_pk_bf16_f32 v{SUM+12+i}, v{SUM+2*i}, v{SUM+2*i+1}")
    e(f"""
    v_mul_u32_u24 v4, 205, v6
    v_lshrrev_b32 v4, 12, v4           ; tau/20
    v_mul_u32_u24 v5, 20, v4
    v_sub_u32 v5, v6, v5               ; fp
    v_mul_u32_u24 v5, 96, v5
    v_mul_u32_u24 v8, 43, v4
    v_lshrrev_b32 v8, 8, v8            ; hd
    v_mul_u32_u24 v9, 6, v8
    v_sub_u32 v9, v4, v9               ; dq
    v_mul_u32_u24 v8, 1920, v8
    v_lshlrev_b32 v9, 3, v9
    v_add3_u32 v5, v5, v8, v9
    v_add_u32 v5, {L_KVF}, v5
    v_cmp_gt_u32 vcc, 240, v6
    s_and_saveexec_b64 s[{sEX}:{sEX+1}], vcc
    ds_write_b64 v5, v[{SUM+12}:{SUM+13}]
    ds_write_b64 v5, v[{SUM+14}:{SUM+15}] offset:48
    s_mov_b64 exec, -1
    """)
    subsignal(2)
    subsignal(6)
    stamp(7)
    vWA = 10
    e(f"""
    v_lshrrev_b32 v2, 4, v0            ; G
    v_bfe_u32 v3, v0, 2, 2             ; rp
    v_and_b32 v4, 3, v0                ; c
    v_lshrrev_b32 v5, 1, v2
    v_lshlrev_b32 v5, 4, v5            ; 16*(G>>1)
    v_and_b32 v6, 1, v2
    v_lshlrev_b32 v6, 2, v6            ; 4*(G&1)
    v_add3_u32 v5, v5, v6, v3
    v_mul_u32_u24 v5, 160, v5
    v_lshlrev_b32 v4, 3, v4
    v_add_u32 v{vWA}, v5, v4
    v_add_u32 v{vWA+1}, 0x10000, v{vWA}
    v_add_u32 v{vWA+2}, 0x20000, v{vWA}
    s_and_b32 s{sT}, s{sHP}, 1
    s_lshl_b32 s{sT}, s{sT}, 2
    s_add_u32 s{sT}, s{sT}, s{sW4}     ; tt
    s_lshl_b32 s{sT+1}, s{sRC}, 3
    s_add_u32 s{sT+6}, s{sT}, s{sT+1}
    s_mul_i32 s{sT+4}, s{sT+6}, 20480
    s_add_u32 s{sT+4}, s{sT+4}, {WS_O}
    v_and_b32 v2, 15, v0
    v_lshrrev_b32 v3, 2, v2
    v_mul_u32_u24 v3, 5120, v3
    v_and_b32 v4, 3, v2
    v_lshlrev_b32 v4, 8, v4
    v_add3_u32 v2, v3, v4, 0
    v_add_u32 v2, 4096, v2
    v_lshlrev_b32 v7, 4, v0            ; lane*16
    """)
    OF = 96; OD = 40; AB = [176, 196, 216, 236, 60, 16]
    NB = len(AB)
    def wo_reads(sg):
        L = L_WO(sg); reg = vWA + L // 65536; b = AB[sg % NB]
        assert (L // 65536) == ((L + 1408) // 65536)
        off = L % 65536
        for nt in range(5):
            for rd in range(2):
                e(f"ds_read_b64_tr_b16 v[{b+4*nt+2*rd}:{b+4*nt+2*rd+1}], v{reg} offset:{off + rd*1280 + nt*32}")
    subwait(5, tmp=8)
    subwait(6, tmp=8)
    for sg in range(NB): wo_reads(sg)
    e(f"""
    s_mov_b32 s{sSPIN}, {SPIN_G}
L_s2_hint:
    s_sub_u32 s{sSPIN}, s{sSPIN}, 1
    s_cbranch_scc1 L_end
    buffer_load_dword v3, v2, s[{S_WS}:{S_WS+3}], s{sT+4} offen sc1
    s_waitcnt vmcnt(0)
    v_cmp_eq_u32 vcc, -1, v3
    s_cbranch_vccnz L_s2_hint
    """)
    stamp(8)
    e(f"s_mov_b32 s{sT}, s{sT+4}")
    for sg in range(20):
        d = OF + 4*sg
        e(f"buffer_load_dwordx4 v[{d}:{d+3}], v7, s[{S_WS}:{S_WS+3}], s{sT} offen offset:{(sg%4)*1024} sc1")
        if sg % 4 == 3: e(f"s_add_u32 s{sT}, s{sT}, 4096")
    retries = []
    for sg in range(20):
        e(f"s_waitcnt vmcnt({19-sg}) lgkmcnt({10 if (sg >= 1 and sg + NB - 1 < 20) else 0})")
        o = OF + 4*sg
        a.label(f"L_chk_{sg}")
        e(f"v_max_u32 v2, v{o}, v{o+2}")
        e(f"v_cmp_eq_u32 vcc, -1, v2")
        e(f"s_cbranch_vccnz L_rt_{sg}")
        retries.append(sg)
        for nt in range(5):
            D = OD + 4*nt
            c = "0" if sg == 0 else f"v[{D}:{D+3}]"
            b = AB[sg % NB] + 4*nt
            e(f"v_mfma_f32_16x16x32_bf16 v[{D}:{D+3}], v[{b}:{b+3}], v[{o}:{o+3}], {c}")
        if sg + NB < 20: wo_reads(sg + NB)
    srd(S_B, 12, 2048*1280)
    e(f"""
    v_and_b32 v2, 15, v0
    v_lshrrev_b32 v3, 4, v0
    s_lshl_b32 s{sT}, s{sT+6}, 4
    v_add_u32 v2, s{sT}, v2
    v_mul_u32_u24 v2, 1280, v2
    v_lshlrev_b32 v4, 3, v3
    v_add_u32 v2, v2, v4
    s_lshr_b32 s{sT}, s{sHP}, 1
    s_mul_i32 s{sT}, s{sT}, 160
    """)
    for nt in range(5):
        D = OD + 4*nt; P = 64 + 2*nt
        e(f"v_cvt_pk_bf16_f32 v{P}, v{D}, v{D+1}")
        e(f"v_cvt_pk_bf16_f32 v{P+1}, v{D+2}, v{D+3}")
    for nt in range(5):
        P = 64 + 2*nt
        e(f"buffer_store_dwordx2 v[{P}:{P+1}], v2, s[{S_B}:{S_B+3}], s{sT} offen offset:{32*nt}")
    e("s_branch L_fin")
    for sg in retries:
        o = OF + 4*sg
        a.label(f"L_rt_{sg}")
        e(f"""
        s_sub_u32 s{sSPIN}, s{sSPIN}, 1
        s_cbranch_scc1 L_end
        s_add_u32 s{sT}, s{sT+4}, {sg*1024}
        buffer_load_dwordx4 v[{o}:{o+3}], v7, s[{S_WS}:{S_WS+3}], s{sT} offen sc1
        s_waitcnt vmcnt(0)
        s_branch L_chk_{sg}
        """)

    a.label("L_lq")
    vVX, vVW, vWQ = 10, 11, 12
    vBA = 14
    XF = 64
    e(f"""
    v_lshrrev_b32 v2, 3, v0
    s_lshl_b32 s{sT}, s{sW4}, 3
    v_add_u32 v2, s{sT}, v2
    v_mul_u32_u24 v2, 1280, v2
    v_lshrrev_b32 v3, 4, v0                 ; r = l>>4
    s_and_b32 s{sT}, s{sW4}, 1
    s_lshl_b32 s{sT}, s{sT}, 2
    v_add_u32 v4, s{sT}, v3
    v_and_b32 v5, 7, v0
    v_xor_b32 v5, v5, v4
    v_lshlrev_b32 v5, 4, v5
    v_add_u32 v{vVX}, v2, v5
    v_and_b32 v4, 15, v0
    v_lshlrev_b32 v5, 2, v3
    v_sub_u32 v4, v4, v5
    v_and_b32 v4, 15, v4                    ; pos
    v_lshrrev_b32 v5, 3, v4                 ; seg
    v_bfe_u32 v6, v4, 2, 1                  ; part
    v_and_b32 v7, 3, v4                     ; i4
    v_mul_lo_u32 v8, v6, s{sBB}
    v_add_u32 v8, v8, v7                    ; j
    v_mov_b32 v9, 5
    v_mov_b32 v13, s{sBB}
    v_cmp_eq_u32 vcc, 0, v6
    s_lshl_b32 s{sT}, s{sW4}, 2
    v_add_u32 v2, s{sT}, v3
    v_cndmask_b32 v9, v9, v13, vcc
    v_cmp_lt_u32 vcc, v8, v9
    v_mul_u32_u24 v2, 3840, v2
    v_add_u32 v5, 1, v5
    v_mul_u32_u24 v5, 1280, v5
    v_lshlrev_b32 v8, 4, v8
    v_add3_u32 v{vVW}, v2, v5, v8
    v_mov_b32 v7, 0x40000000
    v_cndmask_b32 v{vVW}, v7, v{vVW}, vcc
    s_mul_i32 s{sSOFX}, s{sRC}, {128*1280}
    s_mul_i32 s{sSOFW}, s{sHP}, 80
    s_lshl_b32 s{sM0}, s{sW4}, 10
    s_waitcnt lgkmcnt(0)
    """)
    srd(S_X, 4, 2048*1280)
    srd(S_W, 6, 640*3840)
    rotmode = [x for x in exp.split(',') if x.startswith('rot')]
    if rotmode:
        rm = rotmode[0]
        if rm == 'rot1': e(f"s_and_b32 s65, s{sHP}, 1")
        elif rm == 'rot5': e(f"s_and_b32 s65, s{sHP}, 1"); e("s_mul_i32 s65, s65, 5")
        elif rm == 'rotrc': e(f"s_and_b32 s65, s{sRC}, 1")
        elif rm == 'rothp': e(f"s_and_b32 s65, s{sHP}, 7")
        elif rm == 'rotmix': e(f"s_xor_b32 s65, s{sHP}, s{sRC}"); e("s_and_b32 s65, s65, 1")
    def issue_stage(s):
        m0b = (s % R) * SLOT
        if rotmode:
            e(f"s_add_u32 s66, s65, {s}")
            e(f"s_sub_u32 s67, s66, 10")
            e(f"s_cmp_ge_u32 s66, 10")
            e(f"s_cselect_b32 s66, s67, s66")
            e(f"s_mul_i32 s67, s66, {64*3840}")
            e(f"s_lshl_b32 s66, s66, 7")
            e(f"s_add_u32 s66, s66, s{sSOFX}")
            e(f"s_add_u32 s67, s67, s{sSOFW}")
            for m in range(4):
                e(f"s_add_u32 m0, s{sM0}, {m0b + m*4096}")
                e(f"s_add_u32 s{sT}, s66, {m*32*1280}")
                e(f"buffer_load_dwordx4 v{vVX}, s[{S_X}:{S_X+3}], s{sT} offen lds")
                e(f"s_add_u32 m0, s{sM0}, {m0b + 16384 + m*4096}")
                e(f"s_add_u32 s{sT}, s67, {m*16*3840}")
                e(f"buffer_load_dwordx4 v{vVW}, s[{S_W}:{S_W+3}], s{sT} offen lds")
            return
        for m in range(4):
            e(f"s_add_u32 m0, s{sM0}, {m0b + m*4096}")
            e(f"s_add_u32 s{sT}, s{sSOFX}, {m*32*1280 + s*128}")
            e(f"buffer_load_dwordx4 v{vVX}, s[{S_X}:{S_X+3}], s{sT} offen lds")
            e(f"s_add_u32 m0, s{sM0}, {m0b + 16384 + m*4096}")
            e(f"s_add_u32 s{sT}, s{sSOFW}, {m*16*3840 + s*64*3840}")
            e(f"buffer_load_dwordx4 v{vVW}, s[{S_W}:{S_W+3}], s{sT} offen lds")
    issue_stage(0)
    srd(S_A, 8, 32*800)
    e(f"""
    v_lshlrev_b32 v2, 4, v0
    s_and_b32 s{sT}, s{sW4}, 1
    s_lshl_b32 s{sT}, s{sT}, 10
    s_add_u32 m0, s{sT}, {L_PHI}
    s_mul_i32 s{sT+1}, s{sHP}, 1600
    s_add_u32 s{sT}, s{sT}, s{sT+1}
    buffer_load_dwordx4 v2, s[{S_A}:{S_A+3}], s{sT} offen lds
    """)
    issue_stage(1)
    srd(S_WS, 16, 0x10000000)
    sPART = 64
    e(f"""
    s_lshl_b32 s{sPART}, s{sHP}, 4
    s_add_u32 s{sPART}, s{sPART}, s{sRC}
    s_lshl_b32 s{sPART}, s{sPART}, 12
    s_add_u32 s{sPART}, s{sPART}, {WS_PART}
    v_mov_b32 v40, -1
    v_mov_b32 v41, -1
    v_mov_b32 v42, -1
    v_mov_b32 v43, -1
    s_lshl_b32 s{sT}, s{sW4}, 6
    v_add_u32 v2, s{sT}, v0            ; tau
    v_lshlrev_b32 v8, 4, v2
    v_mov_b32 v3, 0x40000000
    v_cmp_gt_u32 vcc, 240, v2
    v_lshrrev_b32 v9, 4, v0            ; g = l>>4
    v_and_b32 v44, 15, v0
    v_cndmask_b32 v8, v3, v8, vcc
    v_lshlrev_b32 v44, 4, v44          ; t'*16
    s_lshl_b32 s{sT}, s{sRC}, 3
    s_lshl_b32 s{sT+1}, s{sW4}, 1
    s_add_u32 s{sT}, s{sT}, s{sT+1}
    s_mul_i32 s{sT}, s{sT}, 20480
    s_lshr_b32 s{sT+1}, s{sHP}, 2
    s_mul_i32 s{sT+1}, s{sT+1}, 5120
    s_add_u32 s{sT}, s{sT}, s{sT+1}
    s_and_b32 s{sT+1}, s{sHP}, 3
    s_lshl_b32 s{sT+1}, s{sT+1}, 8
    s_add_u32 s{sT}, s{sT}, s{sT+1}
    s_add_u32 s{sT+3}, s{sT}, {WS_O}
    v_lshlrev_b32 v45, 10, v9
    v_add_u32 v45, v45, v44            ; i=0
    v_mov_b32 v46, 4096
    v_add_u32 v47, -1, v9
    v_lshlrev_b32 v47, 10, v47
    v_add_u32 v47, 20480, v47
    v_cmp_eq_u32 vcc, 0, v9
    s_nop 1
    v_cndmask_b32 v46, v47, v46, vcc
    v_add_u32 v46, v46, v44            ; i=1
    v_add_u32 v47, 3, v9
    v_lshlrev_b32 v47, 10, v47
    v_add_u32 v47, 20480, v47
    v_add_u32 v47, v47, v44
    v_cmp_gt_u32 vcc, 2, v9
    s_nop 1
    v_cndmask_b32 v47, v3, v47, vcc    ; i=2
    buffer_store_dwordx4 v[40:43], v8, s[{S_WS}:{S_WS+3}], s{sPART} offen sc1
    buffer_store_dwordx4 v[40:43], v45, s[{S_WS}:{S_WS+3}], s{sT+3} offen sc1
    buffer_store_dwordx4 v[40:43], v46, s[{S_WS}:{S_WS+3}], s{sT+3} offen sc1
    buffer_store_dwordx4 v[40:43], v47, s[{S_WS}:{S_WS+3}], s{sT+3} offen sc1
    """)
    xfrag_addr(vBA, 2)
    e(f"""
    v_mul_u32_u24 v2, 52, v0
    v_lshrrev_b32 v2, 8, v2
    v_mul_u32_u24 v3, 5, v2
    v_sub_u32 v3, v0, v3
    v_lshlrev_b32 v3, 4, v3
    v_mul_u32_u24 v2, 3840, v2
    v_add_u32 v{vWQ}, v2, v3
    v_cmp_gt_u32 vcc, 40, v0
    s_nop 1
    s_mov_b64 s[{sEX}:{sEX+1}], vcc
    """)
    def issue_wq(i0, i1):
        e(f"s_mov_b64 exec, s[{sEX}:{sEX+1}]")
        e(f"s_mul_i32 s{sT+1}, s{sW4}, 640")
        e(f"s_mul_i32 s{sT+2}, s{sW4}, {8*3840}")
        e(f"s_add_u32 s{sT+2}, s{sT+2}, s{sSOFW}")
        for m in range(i0, i1):
            e(f"s_add_u32 m0, s{sT+1}, {L_WQ + m*4*640}")
            e(f"s_add_u32 s{sT}, s{sT+2}, {m*32*3840}")
            e(f"buffer_load_dwordx4 v{vWQ}, s[{S_W}:{S_W+3}], s{sT} offen lds")
        e("s_mov_b64 exec, -1")
    base = Base([vBA, vBA+1, vBA+2, vBA+3])
    stamp(1)
    for s in range(NST):
        if s <= 1: e("s_waitcnt vmcnt(12) lgkmcnt(0)")
        elif s <= 8: e("s_waitcnt vmcnt(8) lgkmcnt(0)")
        else: e("s_waitcnt vmcnt(10) lgkmcnt(0)")
        e("s_barrier")
        sstamp(s+1)
        if s == 0: stamp(2)
        sb = base.set(s)
        for kk in range(4):
            d = XF + 16*s + 4*kk
            e(f"ds_read_b128 v[{d}:{d+3}], v{vBA+kk} offset:{sb}")
        if s + 2 < NST: issue_stage(s+2)
        elif s == 8: issue_wq(0, 10)
        else: issue_wq(10, 20)
    QA = 224; vQA = 18; vWO = 56
    lane_decomp32(2, 3, 4, 5, 6)
    e(f"""
    v_lshrrev_b32 v7, 1, v2
    v_lshlrev_b32 v7, 3, v7
    v_add_u32 v7, v7, v3
    v_mul_u32_u24 v7, 80, v7
    v_mul_u32_u24 v6, 40, v6
    v_add_u32 v7, v7, v6
    v_add_u32 v7, {L_WQ}, v7
    v_lshlrev_b32 v5, 3, v5
    v_add_u32 v{vQA}, v7, v5
    v_add_u32 v{vQA+1}, 32, v7
    """)
    srd(S_B, 10, 640*1280)
    wo_setup(vWO, 2)
    e("s_waitcnt vmcnt(10) lgkmcnt(0)")
    e("s_barrier")
    if 'prio' in exp: e("s_setprio 1")
    stamp(3)
    if 'p1only' in exp:
        e("s_waitcnt vmcnt(0)")
        e("s_branch L_fin")
    QF3 = [32, 40, 48]
    def q_reads3(k):
        b = QF3[k % 3]
        for T in range(2):
            for rd in range(2):
                e(f"ds_read_b64_tr_b16 v[{b+4*T+2*rd}:{b+4*T+2*rd+1}], v{vQA+T} offset:{(16*k+4*rd)*80}")
    wolist = [(sg, rd) for sg in WO_P1 for rd in range(2)]
    nwo = 0
    q_reads3(0); q_reads3(1)
    for k in range(40):
        if k + 2 < 40:
            q_reads3(k+2)
            e("s_waitcnt lgkmcnt(8)")
        elif k + 1 < 40: e("s_waitcnt lgkmcnt(4)")
        else: e("s_waitcnt lgkmcnt(0)")
        for T in range(2):
            c = "0" if k == 0 else f"v[{QA+16*T}:{QA+16*T+15}]"
            b = QF3[k % 3]
            e(f"v_mfma_f32_32x32x16_bf16 v[{QA+16*T}:{QA+16*T+15}], v[{b+4*T}:{b+4*T+3}], v[{XF+4*k}:{XF+4*k+3}], {c}")
        if k == 17:
            e(f"s_waitcnt vmcnt({nwo})")
            subbar(3, tmp=60)
        if k >= 6 and nwo < len(wolist):
            e(f"s_mov_b64 exec, s[{sEX}:{sEX+1}]")
            wo_dma(*wolist[nwo], vWO); nwo += 1
            e("s_mov_b64 exec, -1")
    assert nwo == len(wolist), nwo
    if 'prio' in exp: e("s_setprio 0")
    stamp(5)
    WF = 64; QB = 88; PQ0 = 100; PQ1 = 116; EP = 132; EN = 152; PH = 172; TM = 192
    wphi_frags(WF, 20, 22)
    if dump == "qacc":
        e("s_nop 7"); dump_regs([QA+i for i in range(20)], 0)
    for j in range(5):
        src = QA + 4*j if j < 4 else QA + 16
        e(f"v_cvt_pk_bf16_f32 v{QB+2*j}, v{src}, v{src+1}")
        e(f"v_cvt_pk_bf16_f32 v{QB+2*j+1}, v{src+2}, v{src+3}")
    e(f"v_mov_b32 v{QB+10}, 0"); e(f"v_mov_b32 v{QB+11}, 0")
    e("s_waitcnt lgkmcnt(0)")
    feature_map(QB, WF, PQ0, PQ1)
    vOA = 20
    lane_decomp32(2, 3, 4, 5, 6)
    e(f"""
    v_mul_u32_u24 v7, 1920, v6
    v_mul_u32_u24 v8, 48, v3
    v_lshlrev_b32 v9, 3, v5
    v_add3_u32 v7, v7, v8, v9
    v_add_u32 v7, {L_KVF}, v7
    v_lshrrev_b32 v8, 1, v2
    v_mov_b32 v9, {L_ZERO}
    v_cmp_eq_u32 vcc, v8, v6
    s_nop 1
    v_cndmask_b32 v{vOA}, v9, v7, vcc
    v_cmp_gt_u32 s[{sEX}:{sEX+1}], 2, v5
    s_nop 1
    s_and_b64 vcc, vcc, s[{sEX}:{sEX+1}]
    v_add_u32 v7, 32, v7
    s_nop 0
    v_cndmask_b32 v{vOA+1}, v9, v7, vcc
    v_and_b32 v2, 15, v0
    v_lshlrev_b32 v2, 4, v2
    v_bfe_u32 v3, v0, 4, 1
    v_mul_u32_u24 v3, 20480, v3
    v_add_u32 v2, v2, v3
    v_lshrrev_b32 v4, 5, v0            ; h
    v_lshlrev_b32 v5, 11, v4           ; c5 = 2h -> 2h*1024
    v_add_u32 v22, v5, v2
    v_lshlrev_b32 v6, 3, v4
    v_add_u32 v23, v6, v2
    s_lshl_b32 s{sT+4}, s{sRC}, 3
    s_lshl_b32 s{sT+1}, s{sW4}, 1
    s_add_u32 s{sT+4}, s{sT+4}, s{sT+1}
    s_mul_i32 s{sT+4}, s{sT+4}, 20480
    s_lshr_b32 s{sT+1}, s{sHP}, 2
    s_mul_i32 s{sT+1}, s{sT+1}, 5120
    s_add_u32 s{sT+4}, s{sT+4}, s{sT+1}
    s_and_b32 s{sT+1}, s{sHP}, 3
    s_lshl_b32 s{sT+1}, s{sT+1}, 8
    s_add_u32 s{sT+4}, s{sT+4}, s{sT+1}
    s_add_u32 s{sT+4}, s{sT+4}, {WS_O}
    s_add_u32 s{sT+5}, s{sT+4}, 4096
    """)
    softmax_pair(PQ0, PQ1, EP, EN, PH, TM)
    if dump == "phiq": dump_regs([PH+i for i in range(20)], 0)
    e("s_waitcnt vmcnt(0)")
    subsignal(5)
    stamp(6)
    subwait(2)
    stamp(7)
    KA = 64; N0 = 104; N1 = 120
    for st in range(5):
        for U in range(2):
            for rd in range(2):
                d = KA + (U*5+st)*4 + 2*rd
                e(f"ds_read_b64_tr_b16 v[{d}:{d+1}], v{vOA+U} offset:{(8*st+4*rd)*48}")
    for st in range(5):
        e(f"s_waitcnt lgkmcnt({min(15, 4*(4-st))})")
        for U, N in ((0, N0), (1, N1)):
            c = "0" if st == 0 else f"v[{N}:{N+15}]"
            d = KA + (U*5+st)*4
            e(f"v_mfma_f32_32x32x16_bf16 v[{N}:{N+15}], v[{d}:{d+3}], v[{PH+4*st}:{PH+4*st+3}], {c}")
    e("s_nop 7")
    e("s_nop 3")
    e(f"v_add_f32 v8, 0x358637bd, v{N1+4}")
    e("v_rcp_f32 v8, v8")
    e("s_nop 0")
    OB = 136
    for i in range(8):
        e(f"v_mul_f32 v{N0+2*i}, v{N0+2*i}, v8"); e(f"v_mul_f32 v{N0+2*i+1}, v{N0+2*i+1}, v8")
        e(f"v_cvt_pk_bf16_f32 v{OB+i}, v{N0+2*i}, v{N0+2*i+1}")
    for i in range(2):
        e(f"v_mul_f32 v{N1+2*i}, v{N1+2*i}, v8"); e(f"v_mul_f32 v{N1+2*i+1}, v{N1+2*i+1}, v8")
        e(f"v_cvt_pk_bf16_f32 v{OB+8+i}, v{N1+2*i}, v{N1+2*i+1}")
    for i in (0, 2, 4, 6, 8):
        e(f"v_min_u32 v{OB+i}, -2, v{OB+i}")
    e(f"""
    buffer_store_dwordx4 v[{OB}:{OB+3}], v22, s[{S_WS}:{S_WS+3}], s{sT+4} offen sc1
    buffer_store_dwordx4 v[{OB+4}:{OB+7}], v22, s[{S_WS}:{S_WS+3}], s{sT+4} offen offset:1024 sc1
    buffer_store_dwordx2 v[{OB+8}:{OB+9}], v23, s[{S_WS}:{S_WS+3}], s{sT+5} offen sc1
    """)
    a.label("L_fin")
    if until:
        e(f"""
        s_waitcnt vmcnt(0) lgkmcnt(0)
L_until:
        s_memrealtime s[94:95]
        s_waitcnt lgkmcnt(0)
        s_sub_u32 s96, s94, s98
        s_cmp_lt_u32 s96, {until}
        s_cbranch_scc1 L_until
        """)
    if stamps:
        stamp(10)
        e("s_waitcnt vmcnt(0)")
        e(f"""
        s_waitcnt lgkmcnt(0)
        s_lshl_b32 s{sT}, s2, 3
        s_add_u32 s{sT}, s{sT}, s{sWAVE}
        s_lshl_b32 s{sT}, s{sT}, 6
        s_add_u32 s{sT}, s{sT}, {WS_STAMP}
        v_mov_b32 v2, 0
        """)
        for i in range(NS): e(f"v_mov_b32 v{20+i}, s{sST+2*i}")
        e(f"""
        s_mov_b64 exec, 1
        buffer_store_dwordx4 v[20:23], v2, s[{S_WS}:{S_WS+3}], s{sT} offen
        buffer_store_dwordx4 v[24:27], v2, s[{S_WS}:{S_WS+3}], s{sT} offen offset:16
        buffer_store_dwordx4 v[28:31], v2, s[{S_WS}:{S_WS+3}], s{sT} offen offset:32
        """)
    a.label("L_end")
    e("s_endpgm")
    hdr = HEADER + f"; @launch grid=(256,1,1) block=(512,1,1) lds={LDS_BYTES}\n"
    return hdr + f""".amdgcn_target "amdgcn-amd-amdhsa--gfx950"
.text
.globl {KN}
.p2align 8
.type {KN},@function
{KN}:
""" + a.text() + """.section .rodata,"a"
""" + kernel_desc(KN, 256, 102, 256)

if __name__ == "__main__":
    import argparse
    ap = argparse.ArgumentParser()
    ap.add_argument("--stamps", action="store_true")
    ap.add_argument("--dump", default=None)
    ap.add_argument("--stagest", action="store_true")
    ap.add_argument("--exp", default="")
    ap.add_argument("--until", type=int, default=0)
    args = ap.parse_args()
    print(gen(stamps=args.stamps, dump=args.dump, stagest=args.stagest, exp=args.exp, until=args.until))
```

```python
import sys
from asmlib import *
from lay2 import TKV, TQ

KN = "standalone__linear_kernel_hedgehog__prompt_kernel"
NST = 10
SLOT = 32768
R = 3
L_WQ = 98304
L_PHI = 149504
L_ZERO = 151552
L_CNT = 153600
L_KVF = 154624
L_PK = 32768
L_WO19 = 158464
LDS_BYTES = 163840
def L_WO(sg): return sg*5120 if sg <= 18 else L_WO19
WO_P1 = [0,1,2,3,4,5,13,14,15,16,17,18,19]
WO_P2 = [6,7,8,9,10,11,12]
WS_PART = 0x000000
WS_O = 0x100000
WS_RDY = 0x400000
WS_STAMP = 0x700000
WS_DBG = 0x800000
LOG2E = 0x3fb8aa3b
NLOG2E = 0xbfb8aa3b
SPIN_G = 0x8000
SPIN_L = 0x80000

def gen(stamps=False, dump=None, stagest=False, exp='', until=0, dbgwg=-1, dbgwave=0):
    a = Asm(); e = a.e
    S_X, S_W, S_WS = 20, 24, 28
    S_A, S_B = 72, 76
    sWAVE, sW4, sRC, sHP, sBB = 32, 33, 34, 35, 36
    sT = 40
    sSOFX, sSOFW, sM0 = 52, 53, 54
    sNONCE = 55
    sL = 56
    sEX = 58
    sSPIN = 60
    sU, sV = 62, 63
    sST = 80
    NS = 11
    def sstamp(i):
        if stagest: e(f"s_memtime s[{sST+2*i}:{sST+2*i+1}]")
    def stamp(i):
        if stamps and not (stagest and i > 0): e(f"s_memtime s[{sST+2*i}:{sST+2*i+1}]")
    def rstamp(i):
        if stamps and not stagest: e(f"s_memrealtime s[{sST+2*i}:{sST+2*i+1}]")
    def srd(dst, ptr, nbytes):
        e(f"""
        s_mov_b32 s{dst}, s{ptr}
        s_and_b32 s{dst+1}, s{ptr+1}, 0xffff
        s_mov_b32 s{dst+2}, {nbytes}
        s_mov_b32 s{dst+3}, 0x20000
        """)
    def subsignal(idx, tmp=2):
        e(f"""
        v_mov_b32 v{tmp}, {L_CNT + 4*idx}
        v_mov_b32 v{tmp+1}, 1
        s_mov_b64 exec, 1
        ds_add_u32 v{tmp}, v{tmp+1}
        s_mov_b64 exec, -1
        """)
    def subwait(idx, target=4, tmp=2):
        lab = a.newlabel("SW")
        e(f"v_mov_b32 v{tmp}, {L_CNT + 4*idx}")
        e(f"s_mov_b32 s{sSPIN}, {SPIN_L}")
        a.label(lab)
        e(f"""
        s_sub_u32 s{sSPIN}, s{sSPIN}, 1
        s_cbranch_scc1 L_end
        ds_read_b32 v{tmp+1}, v{tmp}
        s_waitcnt lgkmcnt(0)
        v_readfirstlane_b32 s{sT}, v{tmp+1}
        s_nop 0
        s_cmp_lt_u32 s{sT}, {target}
        s_cbranch_scc1 {lab}
        """)
    def subbar(idx, target=4, tmp=2):
        subsignal(idx, tmp); subwait(idx, target, tmp)
    def dump_regs(regs, off):
        n = len(regs)
        e(f"""
        s_lshl_b32 s{sT}, s2, 3
        s_add_u32 s{sT}, s{sT}, s{sWAVE}
        s_mul_i32 s{sT}, s{sT}, {n*256}
        s_add_u32 s{sT}, s{sT}, {WS_DBG + off}
        v_lshlrev_b32 v2, 2, v0
        """)
        for i, r in enumerate(regs):
            e(f"buffer_store_dword v{r}, v2, s[{S_WS}:{S_WS+3}], s{sT} offen offset:{(i%16)*256}")
            if i % 16 == 15: e(f"s_add_u32 s{sT}, s{sT}, 4096")
        e("s_waitcnt vmcnt(0)")
    def softmax_pair(P0, P1, EP, EN, PH, tm):
        p = [P0 + i for i in range(16)] + [P1 + i for i in range(4)]
        tM, tN, tA, tB = tm, tm+1, tm+2, tm+4
        e(f"v_max3_f32 v{tM}, v{p[0]}, v{p[1]}, v{p[2]}")
        e(f"v_min3_f32 v{tN}, v{p[0]}, v{p[1]}, v{p[2]}")
        for i in range(3, 19, 2):
            e(f"v_max3_f32 v{tM}, v{tM}, v{p[i]}, v{p[i+1]}")
            e(f"v_min3_f32 v{tN}, v{tN}, v{p[i]}, v{p[i+1]}")
        e(f"v_max_f32 v{tM}, v{tM}, v{p[19]}")
        e(f"v_min_f32 v{tN}, v{tN}, v{p[19]}")
        e(f"v_mul_f32 v{tA}, {NLOG2E:#x}, v{tM}")
        e(f"v_mul_f32 v{tB}, {LOG2E:#x}, v{tN}")
        for i in range(20):
            e(f"v_fma_f32 v{EP+i}, v{p[i]}, s{sL}, v{tA}")
            e(f"v_fma_f32 v{EN+i}, -v{p[i]}, s{sL}, v{tB}")
        for i in range(20):
            e(f"v_exp_f32 v{EP+i}, v{EP+i}")
            e(f"v_exp_f32 v{EN+i}, v{EN+i}")
        e(f"v_add_f32 v{tA}, v{EP}, v{EP+1}"); e(f"v_add_f32 v{tB}, v{EN}, v{EN+1}")
        e(f"v_add_f32 v{tA+1}, v{EP+2}, v{EP+3}"); e(f"v_add_f32 v{tB+1}, v{EN+2}, v{EN+3}")
        for i in range(4, 20, 2):
            e(f"v_add_f32 v{tA}, v{tA}, v{EP+i}"); e(f"v_add_f32 v{tB}, v{tB}, v{EN+i}")
            e(f"v_add_f32 v{tA+1}, v{tA+1}, v{EP+i+1}"); e(f"v_add_f32 v{tB+1}, v{tB+1}, v{EN+i+1}")
        e(f"v_add_f32 v{tA}, v{tA}, v{tA+1}")
        e(f"v_add_f32 v{tB}, v{tB}, v{tB+1}")
        e(f"v_rcp_f32 v{tA}, v{tA}")
        e(f"v_rcp_f32 v{tB}, v{tB}")
        e("s_nop 0")
        for i in range(10):
            e(f"v_mul_f32 v{EP+2*i}, v{EP+2*i}, v{tA}"); e(f"v_mul_f32 v{EP+2*i+1}, v{EP+2*i+1}, v{tA}")
            e(f"v_mul_f32 v{EN+2*i}, v{EN+2*i}, v{tB}"); e(f"v_mul_f32 v{EN+2*i+1}, v{EN+2*i+1}, v{tB}")
            e(f"v_cvt_pk_bf16_f32 v{PH+i}, v{EP+2*i}, v{EP+2*i+1}")
            e(f"v_cvt_pk_bf16_f32 v{PH+10+i}, v{EN+2*i}, v{EN+2*i+1}")
    def lane_decomp32(vG, vrp, vc, vQ, vhh):
        e(f"""
        v_lshrrev_b32 v{vG}, 4, v0
        v_bfe_u32 v{vrp}, v0, 2, 2
        v_and_b32 v{vc}, 3, v0
        v_and_b32 v{vQ}, 1, v{vG}
        v_lshlrev_b32 v{vQ}, 1, v{vQ}
        v_lshrrev_b32 v{vhh}, 1, v{vc}
        v_add_u32 v{vQ}, v{vQ}, v{vhh}
        v_and_b32 v{vhh}, 1, v{vc}
        """)
    def wphi_frags(WF, va, t):
        vG, vrp, vc, vQ, vhh = t, t+1, t+2, t+3, t+4
        lane_decomp32(vG, vrp, vc, vQ, vhh)
        e(f"""
        v_mul_u32_u24 v{t+5}, 800, v{vhh}
        v_mul_u32_u24 v{t+6}, 40, v{vrp}
        v_add_u32 v{t+5}, v{t+5}, v{t+6}
        v_lshlrev_b32 v{t+6}, 3, v{vQ}
        v_add_u32 v{t+5}, v{t+5}, v{t+6}
        v_add_u32 v{t+5}, {L_PHI}, v{t+5}
        v_lshrrev_b32 v{t+6}, 1, v{vG}
        v_mov_b32 v{va+1}, {L_ZERO}
        v_cmp_eq_u32 vcc, v{t+6}, v{vhh}
        s_nop 1
        v_cndmask_b32 v{va}, v{va+1}, v{t+5}, vcc
        v_cmp_eq_u32 s[{sEX}:{sEX+1}], 0, v{vQ}
        s_nop 1
        s_and_b64 vcc, vcc, s[{sEX}:{sEX+1}]
        v_add_u32 v{t+5}, 32, v{t+5}
        s_nop 0
        v_cndmask_b32 v{va+1}, v{va+1}, v{t+5}, vcc
        """)
        for u in range(2):
            for step in range(3):
                for rd in range(2):
                    d = WF + u*12 + step*4 + 2*rd
                    if step == 2 and rd == 1:
                        e(f"v_mov_b32 v{d}, 0"); e(f"v_mov_b32 v{d+1}, 0")
                    else:
                        e(f"ds_read_b64_tr_b16 v[{d}:{d+1}], v{va+u} offset:{(8*step+4*rd)*40}")
    def feature_map(SRC, WF, P0, P1):
        for step in range(3):
            for u, P in ((0, P0), (1, P1)):
                c = "0" if step == 0 else f"v[{P}:{P+15}]"
                e(f"v_mfma_f32_32x32x16_bf16 v[{P}:{P+15}], v[{WF+u*12+step*4}:{WF+u*12+step*4+3}], v[{SRC+4*step}:{SRC+4*step+3}], {c}")
    def xfrag_addr(vBA, t):
        e(f"""
        v_and_b32 v{t}, 31, v0
        v_lshrrev_b32 v{t+1}, 5, v0
        v_bfe_u32 v{t+2}, v{t}, 1, 3
        v_xor_b32 v{t+2}, v{t+2}, v{t+1}
        v_lshlrev_b32 v{t+2}, 4, v{t+2}
        s_lshl_b32 s{sT}, s{sW4}, 5
        v_add_u32 v{t}, s{sT}, v{t}
        v_lshlrev_b32 v{t}, 7, v{t}
        v_add_u32 v{vBA}, v{t}, v{t+2}
        v_xor_b32 v{vBA+1}, 32, v{vBA}
        v_xor_b32 v{vBA+2}, 64, v{vBA}
        v_xor_b32 v{vBA+3}, 96, v{vBA}
        """)
    class Base:
        def __init__(self, regs): self.regs = regs; self.cur = 0
        def set(self, s):
            so = (s % R) * SLOT
            want = (so // 65536) * 65536
            if want != self.cur:
                d = (want - self.cur) & 0xffffffff
                for r in self.regs: e(f"v_add_u32 v{r}, {d}, v{r}")
                self.cur = want
            return so - self.cur
    def wo_setup(vWO, t):
        e(f"""
        v_mul_u32_u24 v{t}, 26, v0
        v_lshrrev_b32 v{t}, 8, v{t}          ; l/10 for l<64
        v_mul_u32_u24 v{t+1}, 10, v{t}
        v_sub_u32 v{t+1}, v0, v{t+1}
        v_lshlrev_b32 v{t+1}, 4, v{t+1}
        v_mul_u32_u24 v{t}, 1280, v{t}
        v_add_u32 v{vWO}, v{t}, v{t+1}
        v_cmp_gt_u32 vcc, 40, v0
        s_lshr_b32 s{sU}, s{sHP}, 1
        s_mul_i32 s{sU}, s{sU}, 160
        s_mul_i32 s{sV}, s{sW4}, {40*1280}
        s_add_u32 s{sU}, s{sU}, s{sV}        ; + G*40 rows
        s_lshr_b32 s{sV}, s{sW4}, 1
        s_lshl_b32 s{sV}, s{sV}, 4
        s_and_b32 s{sT}, s{sW4}, 1
        s_lshl_b32 s{sT}, s{sT}, 2
        s_add_u32 s{sV}, s{sV}, s{sT}
        s_mul_i32 s{sV}, s{sV}, 160          ; pi0*160
        s_mov_b64 s[{sEX}:{sEX+1}], vcc
        """)
    def wo_dma(sg, rd, vWO):
        blk, c5 = divmod(sg, 5)
        if c5 < 4: row = 160*blk + [0, 8, 20, 28][c5] + 4*rd
        else: row = 160*blk + 16 + 20*rd
        e(f"s_add_u32 m0, s{sV}, {L_WO(sg) + rd*8*160}")
        e(f"s_add_u32 s{sT}, s{sU}, {row*1280}")
        e(f"buffer_load_dwordx4 v{vWO}, s[{S_B}:{S_B+3}], s{sT} offen lds")

    e(f"""
    s_load_dwordx8 s[4:11], s[0:1], 0
    s_load_dwordx4 s[12:15], s[0:1], 32
    s_load_dwordx2 s[16:17], s[0:1], 48
    s_cmp_ge_u32 s2, 256
    s_cbranch_scc1 L_end
    """)
    if 'half' in exp:
        e("s_bitcmp1_b32 s2, 6")
        e("s_cbranch_scc1 L_end")
    if 'quarter' in exp:
        e("s_and_b32 s40, s2, 0x60")
        e("s_cmp_lg_u32 s40, 0")
        e("s_cbranch_scc1 L_end")
    stamp(0); rstamp(9)
    if until: e("s_memrealtime s[98:99]")
    e(f"""
    v_lshrrev_b32 v1, 6, v0
    v_and_b32 v0, 63, v0
    s_and_b32 s{sT}, s2, 7
    s_lshr_b32 s{sT+1}, s2, 3
    v_readfirstlane_b32 s{sWAVE}, v1
    s_lshr_b32 s{sRC}, s{sT}, 1
    s_lshl_b32 s{sRC}, s{sRC}, 2
    s_lshr_b32 s{sT+2}, s{sT+1}, 3
    s_add_u32 s{sRC}, s{sRC}, s{sT+2}
    s_and_b32 s{sHP}, s{sT}, 1
    s_lshl_b32 s{sHP}, s{sHP}, 3
    s_and_b32 s{sT+2}, s{sT+1}, 7
    s_add_u32 s{sHP}, s{sHP}, s{sT+2}
    s_and_b32 s{sW4}, s{sWAVE}, 3
    s_mul_i32 s{sBB}, s{sHP}, 5
    s_and_b32 s{sBB}, s{sBB}, 7
    s_sub_u32 s{sBB}, 8, s{sBB}
    s_min_u32 s{sBB}, s{sBB}, 4
    s_mov_b32 s{sL}, {LOG2E:#x}
    s_cmp_ge_u32 s{sWAVE}, 4
    s_cbranch_scc1 L_lq
    """)

    ACC = 64; FB = [112, 128]; WF = 144; KB = 168; VB = 180; PK0 = 192; PK1 = 208; EP = 224; EN = 112; PH = 64; TM = 244
    vAA = 10; vBA = 14
    vPA, vPB = 34, 35
    sPART = 64
    e(f"""
    s_lshl_b32 s{sPART}, s{sHP}, 4
    s_add_u32 s{sPART}, s{sPART}, s{sRC}
    s_lshl_b32 s{sPART}, s{sPART}, 12
    s_add_u32 s{sPART}, s{sPART}, {WS_PART}
    s_waitcnt lgkmcnt(0)
    """)
    srd(S_WS, 16, 0x10000000)
    srd(S_A, 14, 256)
    e(f"""
    s_or_b32 s{sT}, s{sRC}, s{sHP}
    s_or_b32 s{sT}, s{sT}, s{sW4}
    s_cmp_lg_u32 s{sT}, 0
    s_cbranch_scc1 L_kv_nn
    s_memrealtime s[{sT+4}:{sT+5}]
    s_waitcnt lgkmcnt(0)
    s_or_b32 s{sT+4}, s{sT+4}, 1
    v_mov_b32 v2, 0
    v_mov_b32 v3, s{sT+4}
    s_mov_b64 exec, 1
    buffer_store_dword v3, v2, s[{S_A}:{S_A+3}], 0 offen sc1
    s_mov_b64 exec, -1
L_kv_nn:
    """)
    e(f"""
    v_lshlrev_b32 v2, 4, v0
    s_lshl_b32 s{sT}, s{sW4}, 10
    s_add_u32 s{sT}, s{sT}, {L_ZERO}
    v_add_u32 v2, s{sT}, v2
    v_mov_b32 v24, 0
    v_mov_b32 v25, 0
    v_mov_b32 v26, 0
    v_mov_b32 v27, 0
    s_cmp_eq_u32 s{sW4}, 3
    s_cbranch_scc1 L_kv_nz
    ds_write_b128 v2, v[24:27]
L_kv_nz:
    """)
    lane_decomp32(2, 3, 4, 5, 6)
    e(f"""
    v_lshlrev_b32 v5, 3, v5          ; 8Q
    v_mul_u32_u24 v6, 5, v6          ; 5hh
    v_lshrrev_b32 v7, 1, v2
    v_lshlrev_b32 v7, 3, v7
    v_add_u32 v7, v7, v3             ; krow
    v_lshlrev_b32 v7, 8, v7
    v_add_u32 v7, 16384, v7
    v_lshlrev_b32 v8, 2, v3          ; 4rp
    s_sub_u32 s{sT+1}, 4, s{sBB}
    """)
    for T in range(3):
        immc = 0; imms = 0
        for Q in range(4):
            q = TKV[T][Q] or TKV[T][0]
            immc |= q[1] << (8*Q); imms |= (8*q[0]) << (8*Q)
        e(f"""
        s_mov_b32 s{sT}, {immc}
        v_bfe_u32 v18, s{sT}, v5, 8
        v_add_u32 v18, v18, v6
        v_lshrrev_b32 v19, 1, v18
        v_mov_b32 v9, s{sT+1}
        v_cmp_le_u32 vcc, s{sBB}, v19
        v_mov_b32 v20, 0
        s_nop 0
        v_cndmask_b32 v9, v20, v9, vcc
        v_add_u32 v19, v19, v9
        s_mov_b32 s{sT}, {imms}
        v_bfe_u32 v9, s{sT}, v5, 8
        v_add3_u32 v19, v19, v9, v8
        v_and_b32 v19, 15, v19
        v_lshlrev_b32 v19, 4, v19
        v_and_b32 v18, 1, v18
        v_lshlrev_b32 v18, 3, v18
        v_add3_u32 v{vAA+T}, v7, v19, v18
        """)
    xfrag_addr(vBA, 2)
    def kv_reads(kk, buf, sb):
        b = FB[buf]
        e(f"ds_read_b128 v[{b+12}:{b+15}], v{vBA+kk} offset:{sb}")
        for T in range(3):
            for rd in range(2):
                e(f"ds_read_b64_tr_b16 v[{b+4*T+2*rd}:{b+4*T+2*rd+1}], v{vAA+T} offset:{sb+(16*kk+4*rd)*256}")
    def kv_mfmas(buf, first=False):
        b = FB[buf]
        for T in range(3):
            c = "0" if first else f"v[{ACC+16*T}:{ACC+16*T+15}]"
            e(f"v_mfma_f32_32x32x16_bf16 v[{ACC+16*T}:{ACC+16*T+15}], v[{b+4*T}:{b+4*T+3}], v[{b+12}:{b+15}], {c}")
    e("s_waitcnt lgkmcnt(0)")
    stamp(1)
    e("s_barrier")
    stamp(2)
    vNC, vRF = 38, 36
    base = Base([vAA, vAA+1, vAA+2, vBA, vBA+1, vBA+2, vBA+3])
    sb = base.set(0)
    kv_reads(0, 0, sb)
    for s in range(NST):
        for kk in range(3):
            kv_reads(kk+1, (kk+1) & 1, sb)
            e("s_waitcnt lgkmcnt(7)")
            kv_mfmas(kk & 1, first=(s == 0 and kk == 0))
        if s == 0:
            e(f"v_mov_b32 v{vNC}, 0")
            e(f"buffer_load_dword v{vNC+1}, v{vNC}, s[{S_A}:{S_A+3}], 0 offen sc1")
        if s == 1: wphi_frags(WF, 18, 22)
        if s == 2 and 'p1only' not in exp:
            lab = a.newlabel("NF"); lab2 = a.newlabel("NC")
            e(f"""
            s_waitcnt vmcnt(0)
            v_readfirstlane_b32 s{sNONCE}, v{vNC+1}
            s_mov_b32 s{sSPIN}, {SPIN_G}
            s_cmp_lg_u32 s{sNONCE}, 0
            s_cbranch_scc1 {lab}
{lab2}:
            s_sub_u32 s{sSPIN}, s{sSPIN}, 1
            s_cbranch_scc1 L_end
            buffer_load_dword v{vNC+1}, v{vNC}, s[{S_A}:{S_A+3}], 0 offen sc1
            s_waitcnt vmcnt(0)
            v_readfirstlane_b32 s{sNONCE}, v{vNC+1}
            s_nop 0
            s_cmp_eq_u32 s{sNONCE}, 0
            s_cbranch_scc1 {lab2}
{lab}:
            """)
        if s == 3:
            lab = a.newlabel("RD")
            e(f"""
            s_cmp_lg_u32 s{sW4}, 0
            s_cbranch_scc1 {lab}
            s_lshl_b32 s{sT}, s{sHP}, 4
            s_add_u32 s{sT}, s{sT}, s{sRC}
            s_lshl_b32 s{sT}, s{sT}, 7
            s_add_u32 s{sT}, s{sT}, {WS_RDY}
            v_mov_b32 v2, 0
            v_mov_b32 v3, s{sNONCE}
            s_mov_b64 exec, 1
            buffer_store_dword v3, v2, s[{S_WS}:{S_WS+3}], s{sT} offen sc1
            s_mov_b64 exec, -1
{lab}:
            """)
        if s == 7:
            e(f"""
            v_and_b32 v2, 15, v0
            s_lshl_b32 s{sT}, s{sHP}, 4
            v_add_u32 v3, s{sT}, v2            ; hp*16 + r
            v_lshlrev_b32 v4, 4, v2
            v_add_u32 v4, s{sRC}, v4           ; h'*16 + rc
            v_bfe_u32 v5, v0, 4, 1
            v_cmp_eq_u32 vcc, 0, v5
            s_mov_b32 s{sT+1}, {WS_RDY}
            s_nop 0
            v_cndmask_b32 v3, v4, v3, vcc
            v_lshlrev_b32 v{vRF}, 7, v3
            buffer_load_dword v{vRF+1}, v{vRF}, s[{S_WS}:{S_WS+3}], s{sT+1} offen sc1
            """)
        e("s_waitcnt lgkmcnt(0)")
        e("s_barrier")
        sstamp(s+1)
        if s + 1 < NST:
            sb = base.set(s+1)
            kv_reads(0, 0, sb)
        kv_mfmas(1)
    stamp(3)
    if 'p1only' in exp: e("s_branch L_fin")
    loc = {}
    for T, qs in enumerate(TKV):
        for Q, q in enumerate(qs):
            if q is not None: loc[q] = ACC + 16*T + 4*Q
    vRA = 18
    e(f"""
    v_and_b32 v2, 31, v0
    v_lshrrev_b32 v3, 5, v0
    v_lshlrev_b32 v3, 14, v3
    s_lshl_b32 s{sT}, s{sW4}, 5
    v_add_u32 v2, s{sT}, v2
    v_lshlrev_b32 v2, 7, v2
    v_add_u32 v2, v2, v3
    v_add_u32 v2, {L_PK}, v2
    v_and_b32 v3, 7, v0
    v_bfe_u32 v4, v0, 3, 1
    v_lshlrev_b32 v4, 2, v4
    v_xor_b32 v3, v3, v4
    v_lshlrev_b32 v3, 4, v3
    v_add_u32 v{vRA}, v2, v3
    """)
    for u in range(1, 8): e(f"v_xor_b32 v{vRA+u}, {16*u}, v{vRA}")
    if dump == "kvacc":
        e("s_nop 7"); dump_regs([loc[(sg, j)] + x for sg in range(2) for j in range(5) for x in range(4)], 0)
    for j in range(5):
        e(f"v_cvt_pk_bf16_f32 v{KB+2*j}, v{loc[(0,j)]}, v{loc[(0,j)]+1}")
        e(f"v_cvt_pk_bf16_f32 v{KB+2*j+1}, v{loc[(0,j)]+2}, v{loc[(0,j)]+3}")
    e(f"v_mov_b32 v{KB+10}, 0"); e(f"v_mov_b32 v{KB+11}, 0")
    e("s_nop 0")
    feature_map(KB, WF, PK0, PK1)
    for j in range(5):
        e(f"v_cvt_pk_bf16_f32 v{VB+2*j}, v{loc[(1,j)]}, v{loc[(1,j)]+1}")
        e(f"v_cvt_pk_bf16_f32 v{VB+2*j+1}, v{loc[(1,j)]+2}, v{loc[(1,j)]+3}")
    e(f"v_mov_b32 v{VB+10}, 0x3f80"); e(f"v_mov_b32 v{VB+11}, 0")
    for u in range(3):
        e(f"ds_write_b128 v{vRA+5+u}, v[{VB+4*u}:{VB+4*u+3}]")
    vKA = 26; vKB = 28
    e(f"""
    v_lshrrev_b32 v2, 4, v0            ; G
    v_bfe_u32 v3, v0, 2, 2             ; rp
    v_and_b32 v4, 3, v0                ; c
    v_lshlrev_b32 v5, 3, v2
    v_add_u32 v5, v5, v3
    v_lshlrev_b32 v5, 7, v5
    s_lshr_b32 s{sT}, s{sW4}, 1
    s_lshl_b32 s{sT}, s{sT}, 14
    s_add_u32 s{sT}, s{sT}, {L_PK}
    v_add_u32 v5, s{sT}, v5
    v_and_b32 v6, 1, v2
    v_lshlrev_b32 v6, 2, v6
    v_xor_b32 v6, v6, v3
    v_lshrrev_b32 v7, 1, v4
    v_and_b32 v8, 1, v4
    v_lshlrev_b32 v8, 3, v8
    v_add_u32 v5, v5, v8
    s_and_b32 s{sT+1}, s{sW4}, 1
    v_add_u32 v9, 5, v7
    v_mov_b32 v40, 7
    s_cmp_eq_u32 s{sT+1}, 1
    s_cselect_b64 vcc, -1, 0
    v_cndmask_b32 v9, v9, v40, vcc
    v_xor_b32 v9, v9, v6
    v_lshlrev_b32 v9, 4, v9
    v_add_u32 v{vKA}, v5, v9
    v_xor_b32 v{vKA+1}, 64, v{vKA}
    v_add_u32 v{vKA+1}, 512, v{vKA+1}
    """)
    for ct in range(3):
        if ct < 2: e(f"v_add_u32 v9, {2*ct}, v7")
        else: e(f"v_mov_b32 v9, 4")
        e(f"""
        v_xor_b32 v9, v9, v6
        v_lshlrev_b32 v9, 4, v9
        v_add_u32 v{vKB+2*ct}, v5, v9
        v_xor_b32 v{vKB+2*ct+1}, 64, v{vKB+2*ct}
        v_add_u32 v{vKB+2*ct+1}, 512, v{vKB+2*ct+1}
        """)
    e(f"""
    v_lshrrev_b32 v2, 4, v0            ; g
    v_and_b32 v3, 15, v0
    s_lshr_b32 s{sT}, s{sW4}, 1
    s_mul_i32 s{sT}, s{sT}, 6
    s_and_b32 s{sT+1}, s{sW4}, 1
    s_lshl_b32 s{sT+2}, s{sT+1}, 2
    s_add_u32 s{sT}, s{sT}, s{sT+2}
    v_add_u32 v4, s{sT}, v2
    v_mul_u32_u24 v4, 40, v4
    v_add_u32 v4, v4, v3
    v_lshlrev_b32 v4, 3, v4
    v_mov_b32 v5, 0x40000000
    s_lshl_b32 s{sT+2}, s{sT+1}, 1
    s_sub_u32 s{sT+2}, 4, s{sT+2}
    v_cmp_gt_u32 vcc, s{sT+2}, v2
    s_nop 1
    v_cndmask_b32 v{vPA}, v5, v4, vcc
    v_cmp_gt_u32 vcc, 8, v3
    s_nop 1
    v_cndmask_b32 v{vPB}, v5, v{vPA}, vcc
    """)
    if dump == "pk":
        dump_regs([PK0+i for i in range(16)] + [PK1+i for i in range(4)], 0)
    softmax_pair(PK0, PK1, EP, EN, PH, TM)
    if dump == "phik": dump_regs([PH+i for i in range(20)], 0)
    for u in range(5):
        e(f"ds_write_b128 v{vRA+u}, v[{PH+4*u}:{PH+4*u+3}]")
    subbar(0)
    stamp(4)
    KD = 192; KF = 64
    for kap in range(4):
        f = KF + 16*kap
        for rd in range(2):
            e(f"ds_read_b64_tr_b16 v[{f+2*rd}:{f+2*rd+1}], v{vKA+rd} offset:{4096*kap}")
        for ct in range(3):
            for rd in range(2):
                e(f"ds_read_b64_tr_b16 v[{f+4+4*ct+2*rd}:{f+4+4*ct+2*rd+1}], v{vKB+2*ct+rd} offset:{4096*kap}")
    for kap in range(4):
        f = KF + 16*kap
        e(f"s_waitcnt lgkmcnt({min(15, 8*(3-kap))})")
        for ct in range(3):
            c = "0" if kap == 0 else f"v[{KD+4*ct}:{KD+4*ct+3}]"
            e(f"v_mfma_f32_16x16x32_bf16 v[{KD+4*ct}:{KD+4*ct+3}], v[{f}:{f+3}], v[{f+4+4*ct}:{f+4+4*ct+3}], {c}")
    subsignal(1)
    vWO = 40
    srd(S_B, 10, 640*1280)
    wo_setup(vWO, 2)
    for ct in range(3):
        e(f"v_cvt_pk_bf16_f32 v{KD+16+2*ct}, v{KD+4*ct}, v{KD+4*ct+1}")
        e(f"v_cvt_pk_bf16_f32 v{KD+16+2*ct+1}, v{KD+4*ct+2}, v{KD+4*ct+3}")
    for ct in range(3):
        e(f"v_min_u32 v{KD+16+2*ct}, -2, v{KD+16+2*ct}")
    for ct in range(3):
        e(f"buffer_store_dwordx2 v[{KD+16+2*ct}:{KD+16+2*ct+1}], v{vPA if ct < 2 else vPB}, s[{S_WS}:{S_WS+3}], s{sPART} offen offset:{128*ct} sc1")
    stamp(5)
    lab = a.newlabel("RC"); lab2 = a.newlabel("RP")
    e(f"""
    s_waitcnt vmcnt(3)
    s_mov_b32 s{sSPIN}, {SPIN_G}
    s_mov_b32 s{sT+1}, {WS_RDY}
    v_cmp_ne_u32 vcc, s{sNONCE}, v{vRF+1}
    s_cbranch_vccz {lab}
{lab2}:
    s_sub_u32 s{sSPIN}, s{sSPIN}, 1
    s_cbranch_scc1 L_end
    buffer_load_dword v{vRF+1}, v{vRF}, s[{S_WS}:{S_WS+3}], s{sT+1} offen sc1
    s_waitcnt vmcnt(0)
    v_cmp_ne_u32 vcc, s{sNONCE}, v{vRF+1}
    s_cbranch_vccnz {lab2}
{lab}:
    """)
    subwait(1)
    e(f"s_mov_b64 exec, s[{sEX}:{sEX+1}]")
    for sg in WO_P2:
        for rd in range(2): wo_dma(sg, rd, vWO)
    e("s_mov_b64 exec, -1")
    PL = 64; SUM = 128
    e(f"""
    v_and_b32 v2, 15, v0
    v_lshlrev_b32 v2, 12, v2           ; r*4096
    s_lshl_b32 s{sT+4}, s{sHP}, 16
    s_add_u32 s{sT+4}, s{sT+4}, {WS_PART}
    s_add_u32 s{sT+5}, s{sT+4}, {((1*6+5)*40+39)*8}
    s_mov_b32 s{sSPIN}, {SPIN_G}
    s_lshl_b32 s{sT}, s{sW4}, 6
    v_add_u32 v6, s{sT}, v0            ; tau
    v_lshlrev_b32 v7, 4, v6
    v_mov_b32 v4, 0x40000000
    v_cmp_gt_u32 vcc, 240, v6
    s_nop 1
    v_cndmask_b32 v7, v4, v7, vcc
    s_branch L_s1_sweep
L_s1_hint:
    s_sub_u32 s{sSPIN}, s{sSPIN}, 1
    s_cbranch_scc1 L_end
    buffer_load_dword v3, v2, s[{S_WS}:{S_WS+3}], s{sT+5} offen sc1
    s_waitcnt vmcnt(0)
    v_cmp_eq_u32 vcc, -1, v3
    s_cbranch_vccnz L_s1_hint
    """)
    a.label("L_s1_sweep")
    stamp(6)
    e(f"""
    s_sub_u32 s{sSPIN}, s{sSPIN}, 1
    s_cbranch_scc1 L_end
    s_mov_b32 s{sT}, s{sT+4}
    """)
    for r in range(16):
        e(f"buffer_load_dwordx4 v[{PL+4*r}:{PL+4*r+3}], v7, s[{S_WS}:{S_WS+3}], s{sT} offen sc1")
        e(f"s_add_u32 s{sT}, s{sT}, 4096")
    for r in range(16):
        e(f"s_waitcnt vmcnt({15-r})")
        if r == 0: e(f"v_max_u32 v{SUM+10}, v{PL}, v{PL+2}")
        else: e(f"v_max3_u32 v{SUM+10}, v{SUM+10}, v{PL+4*r}, v{PL+4*r+2}")
        for i in range(4):
            src = PL + 4*r + i
            if r == 0:
                e(f"v_lshlrev_b32 v{SUM+2*i}, 16, v{src}")
                e(f"v_and_b32 v{SUM+2*i+1}, 0xffff0000, v{src}")
            else:
                e(f"v_lshlrev_b32 v{SUM+8}, 16, v{src}")
                e(f"v_and_b32 v{SUM+9}, 0xffff0000, v{src}")
                e(f"v_add_f32 v{SUM+2*i}, v{SUM+2*i}, v{SUM+8}")
                e(f"v_add_f32 v{SUM+2*i+1}, v{SUM+2*i+1}, v{SUM+9}")
    e(f"""
    v_cmp_eq_u32 vcc, -1, v{SUM+10}
    s_cbranch_vccnz L_s1_hint
    """)
    for i in range(4):
        e(f"v_cvt_pk_bf16_f32 v{SUM+12+i}, v{SUM+2*i}, v{SUM+2*i+1}")
    e(f"""
    v_mul_u32_u24 v4, 205, v6
    v_lshrrev_b32 v4, 12, v4           ; tau/20
    v_mul_u32_u24 v5, 20, v4
    v_sub_u32 v5, v6, v5               ; fp
    v_mul_u32_u24 v5, 96, v5
    v_mul_u32_u24 v8, 43, v4
    v_lshrrev_b32 v8, 8, v8            ; hd
    v_mul_u32_u24 v9, 6, v8
    v_sub_u32 v9, v4, v9               ; dq
    v_mul_u32_u24 v8, 1920, v8
    v_lshlrev_b32 v9, 3, v9
    v_add3_u32 v5, v5, v8, v9
    v_add_u32 v5, {L_KVF}, v5
    v_cmp_gt_u32 vcc, 240, v6
    s_and_saveexec_b64 s[{sEX}:{sEX+1}], vcc
    ds_write_b64 v5, v[{SUM+12}:{SUM+13}]
    ds_write_b64 v5, v[{SUM+14}:{SUM+15}] offset:48
    s_mov_b64 exec, -1
    """)
    subsignal(2)
    subsignal(6)
    stamp(7)
    vWA = 10
    e(f"""
    v_lshrrev_b32 v2, 4, v0            ; G
    v_bfe_u32 v3, v0, 2, 2             ; rp
    v_and_b32 v4, 3, v0                ; c
    v_lshrrev_b32 v5, 1, v2
    v_lshlrev_b32 v5, 4, v5            ; 16*(G>>1)
    v_and_b32 v6, 1, v2
    v_lshlrev_b32 v6, 2, v6            ; 4*(G&1)
    v_add3_u32 v5, v5, v6, v3
    v_mul_u32_u24 v5, 160, v5
    v_lshlrev_b32 v4, 3, v4
    v_add_u32 v{vWA}, v5, v4
    v_add_u32 v{vWA+1}, 0x10000, v{vWA}
    v_add_u32 v{vWA+2}, 0x20000, v{vWA}
    s_and_b32 s{sT}, s{sHP}, 1
    s_lshl_b32 s{sT}, s{sT}, 2
    s_add_u32 s{sT}, s{sT}, s{sW4}     ; tt
    s_lshl_b32 s{sT+1}, s{sRC}, 3
    s_add_u32 s{sT+6}, s{sT}, s{sT+1}
    s_mul_i32 s{sT+4}, s{sT+6}, 20480
    s_add_u32 s{sT+4}, s{sT+4}, {WS_O}
    v_and_b32 v2, 15, v0
    v_lshrrev_b32 v3, 2, v2
    v_mul_u32_u24 v3, 5120, v3
    v_and_b32 v4, 3, v2
    v_lshlrev_b32 v4, 8, v4
    v_add3_u32 v2, v3, v4, 0
    v_add_u32 v2, 4096, v2
    v_lshlrev_b32 v7, 4, v0            ; lane*16
    """)
    OF = 96; OD = 40; AB = [176, 196, 216, 236, 60, 16]
    NB = len(AB)
    def wo_reads(sg):
        L = L_WO(sg); reg = vWA + L // 65536; b = AB[sg % NB]
        assert (L // 65536) == ((L + 1408) // 65536)
        off = L % 65536
        for nt in range(5):
            for rd in range(2):
                e(f"ds_read_b64_tr_b16 v[{b+4*nt+2*rd}:{b+4*nt+2*rd+1}], v{reg} offset:{off + rd*1280 + nt*32}")
    subwait(5, tmp=8)
    subwait(6, tmp=8)
    for sg in range(NB): wo_reads(sg)
    e(f"""
    s_mov_b32 s{sSPIN}, {SPIN_G}
L_s2_hint:
    s_sub_u32 s{sSPIN}, s{sSPIN}, 1
    s_cbranch_scc1 L_end
    buffer_load_dword v3, v2, s[{S_WS}:{S_WS+3}], s{sT+4} offen sc1
    s_waitcnt vmcnt(0)
    v_cmp_eq_u32 vcc, -1, v3
    s_cbranch_vccnz L_s2_hint
    """)
    stamp(8)
    e(f"s_mov_b32 s{sT}, s{sT+4}")
    for sg in range(20):
        d = OF + 4*sg
        e(f"buffer_load_dwordx4 v[{d}:{d+3}], v7, s[{S_WS}:{S_WS+3}], s{sT} offen offset:{(sg%4)*1024} sc1")
        if sg % 4 == 3: e(f"s_add_u32 s{sT}, s{sT}, 4096")
    retries = []
    for sg in range(20):
        e(f"s_waitcnt vmcnt({19-sg}) lgkmcnt({10 if (sg >= 1 and sg + NB - 1 < 20) else 0})")
        o = OF + 4*sg
        a.label(f"L_chk_{sg}")
        e(f"v_max_u32 v2, v{o}, v{o+2}")
        e(f"v_cmp_eq_u32 vcc, -1, v2")
        e(f"s_cbranch_vccnz L_rt_{sg}")
        retries.append(sg)
        for nt in range(5):
            D = OD + 4*nt
            c = "0" if sg == 0 else f"v[{D}:{D+3}]"
            b = AB[sg % NB] + 4*nt
            e(f"v_mfma_f32_16x16x32_bf16 v[{D}:{D+3}], v[{b}:{b+3}], v[{o}:{o+3}], {c}")
        if sg + NB < 20: wo_reads(sg + NB)
    srd(S_B, 12, 2048*1280)
    e(f"""
    v_and_b32 v2, 15, v0
    v_lshrrev_b32 v3, 4, v0
    s_lshl_b32 s{sT}, s{sT+6}, 4
    v_add_u32 v2, s{sT}, v2
    v_mul_u32_u24 v2, 1280, v2
    v_lshlrev_b32 v4, 3, v3
    v_add_u32 v2, v2, v4
    s_lshr_b32 s{sT}, s{sHP}, 1
    s_mul_i32 s{sT}, s{sT}, 160
    """)
    for nt in range(5):
        D = OD + 4*nt; P = 64 + 2*nt
        e(f"v_cvt_pk_bf16_f32 v{P}, v{D}, v{D+1}")
        e(f"v_cvt_pk_bf16_f32 v{P+1}, v{D+2}, v{D+3}")
    for nt in range(5):
        P = 64 + 2*nt
        e(f"buffer_store_dwordx2 v[{P}:{P+1}], v2, s[{S_B}:{S_B+3}], s{sT} offen offset:{32*nt}")
    e("s_branch L_fin")
    for sg in retries:
        o = OF + 4*sg
        a.label(f"L_rt_{sg}")
        e(f"""
        s_sub_u32 s{sSPIN}, s{sSPIN}, 1
        s_cbranch_scc1 L_end
        s_add_u32 s{sT}, s{sT+4}, {sg*1024}
        buffer_load_dwordx4 v[{o}:{o+3}], v7, s[{S_WS}:{S_WS+3}], s{sT} offen sc1
        s_waitcnt vmcnt(0)
        s_branch L_chk_{sg}
        """)

    a.label("L_lq")
    vVX, vVW, vWQ = 10, 11, 12
    vBA = 14
    XF = 64
    e(f"""
    v_lshrrev_b32 v2, 3, v0
    s_lshl_b32 s{sT}, s{sW4}, 3
    v_add_u32 v2, s{sT}, v2
    v_mul_u32_u24 v2, 1280, v2
    v_lshrrev_b32 v3, 4, v0                 ; r = l>>4
    s_and_b32 s{sT}, s{sW4}, 1
    s_lshl_b32 s{sT}, s{sT}, 2
    v_add_u32 v4, s{sT}, v3
    v_and_b32 v5, 7, v0
    v_xor_b32 v5, v5, v4
    v_lshlrev_b32 v5, 4, v5
    v_add_u32 v{vVX}, v2, v5
    v_and_b32 v4, 15, v0
    v_lshlrev_b32 v5, 2, v3
    v_sub_u32 v4, v4, v5
    v_and_b32 v4, 15, v4                    ; pos
    v_lshrrev_b32 v5, 3, v4                 ; seg
    v_bfe_u32 v6, v4, 2, 1                  ; part
    v_and_b32 v7, 3, v4                     ; i4
    v_mul_lo_u32 v8, v6, s{sBB}
    v_add_u32 v8, v8, v7                    ; j
    v_mov_b32 v9, 5
    v_mov_b32 v13, s{sBB}
    v_cmp_eq_u32 vcc, 0, v6
    s_lshl_b32 s{sT}, s{sW4}, 2
    v_add_u32 v2, s{sT}, v3
    v_cndmask_b32 v9, v9, v13, vcc
    v_cmp_lt_u32 vcc, v8, v9
    v_mul_u32_u24 v2, 3840, v2
    v_add_u32 v5, 1, v5
    v_mul_u32_u24 v5, 1280, v5
    v_lshlrev_b32 v8, 4, v8
    v_add3_u32 v{vVW}, v2, v5, v8
    v_mov_b32 v7, 0x40000000
    v_cndmask_b32 v{vVW}, v7, v{vVW}, vcc
    s_mul_i32 s{sSOFX}, s{sRC}, {128*1280}
    s_mul_i32 s{sSOFW}, s{sHP}, 80
    s_lshl_b32 s{sM0}, s{sW4}, 10
    s_waitcnt lgkmcnt(0)
    """)
    srd(S_X, 4, 2048*1280)
    srd(S_W, 6, 640*3840)
    rotmode = [x for x in exp.split(',') if x.startswith('rot')]
    if rotmode:
        rm = rotmode[0]
        if rm == 'rot1': e(f"s_and_b32 s65, s{sHP}, 1")
        elif rm == 'rot5': e(f"s_and_b32 s65, s{sHP}, 1"); e("s_mul_i32 s65, s65, 5")
        elif rm == 'rotrc': e(f"s_and_b32 s65, s{sRC}, 1")
        elif rm == 'rothp': e(f"s_and_b32 s65, s{sHP}, 7")
        elif rm == 'rotmix': e(f"s_xor_b32 s65, s{sHP}, s{sRC}"); e("s_and_b32 s65, s65, 1")
    def issue_stage(s):
        m0b = (s % R) * SLOT
        if rotmode:
            e(f"s_add_u32 s66, s65, {s}")
            e(f"s_sub_u32 s67, s66, 10")
            e(f"s_cmp_ge_u32 s66, 10")
            e(f"s_cselect_b32 s66, s67, s66")
            e(f"s_mul_i32 s67, s66, {64*3840}")
            e(f"s_lshl_b32 s66, s66, 7")
            e(f"s_add_u32 s66, s66, s{sSOFX}")
            e(f"s_add_u32 s67, s67, s{sSOFW}")
            for m in range(4):
                e(f"s_add_u32 m0, s{sM0}, {m0b + m*4096}")
                e(f"s_add_u32 s{sT}, s66, {m*32*1280}")
                e(f"buffer_load_dwordx4 v{vVX}, s[{S_X}:{S_X+3}], s{sT} offen lds")
                e(f"s_add_u32 m0, s{sM0}, {m0b + 16384 + m*4096}")
                e(f"s_add_u32 s{sT}, s67, {m*16*3840}")
                e(f"buffer_load_dwordx4 v{vVW}, s[{S_W}:{S_W+3}], s{sT} offen lds")
            return
        for m in range(4):
            e(f"s_add_u32 m0, s{sM0}, {m0b + m*4096}")
            e(f"s_add_u32 s{sT}, s{sSOFX}, {m*32*1280 + s*128}")
            e(f"buffer_load_dwordx4 v{vVX}, s[{S_X}:{S_X+3}], s{sT} offen lds")
            e(f"s_add_u32 m0, s{sM0}, {m0b + 16384 + m*4096}")
            e(f"s_add_u32 s{sT}, s{sSOFW}, {m*16*3840 + s*64*3840}")
            e(f"buffer_load_dwordx4 v{vVW}, s[{S_W}:{S_W+3}], s{sT} offen lds")
    issue_stage(0)
    srd(S_A, 8, 32*800)
    e(f"""
    v_lshlrev_b32 v2, 4, v0
    s_and_b32 s{sT}, s{sW4}, 1
    s_lshl_b32 s{sT}, s{sT}, 10
    s_add_u32 m0, s{sT}, {L_PHI}
    s_mul_i32 s{sT+1}, s{sHP}, 1600
    s_add_u32 s{sT}, s{sT}, s{sT+1}
    buffer_load_dwordx4 v2, s[{S_A}:{S_A+3}], s{sT} offen lds
    """)
    issue_stage(1)
    srd(S_WS, 16, 0x10000000)
    sPART = 64
    e(f"""
    s_lshl_b32 s{sPART}, s{sHP}, 4
    s_add_u32 s{sPART}, s{sPART}, s{sRC}
    s_lshl_b32 s{sPART}, s{sPART}, 12
    s_add_u32 s{sPART}, s{sPART}, {WS_PART}
    v_mov_b32 v40, -1
    v_mov_b32 v41, -1
    v_mov_b32 v42, -1
    v_mov_b32 v43, -1
    s_lshl_b32 s{sT}, s{sW4}, 6
    v_add_u32 v2, s{sT}, v0            ; tau
    v_lshlrev_b32 v8, 4, v2
    v_mov_b32 v3, 0x40000000
    v_cmp_gt_u32 vcc, 240, v2
    v_lshrrev_b32 v9, 4, v0            ; g = l>>4
    v_and_b32 v44, 15, v0
    v_cndmask_b32 v8, v3, v8, vcc
    v_lshlrev_b32 v44, 4, v44          ; t'*16
    s_lshl_b32 s{sT}, s{sRC}, 3
    s_lshl_b32 s{sT+1}, s{sW4}, 1
    s_add_u32 s{sT}, s{sT}, s{sT+1}
    s_mul_i32 s{sT}, s{sT}, 20480
    s_lshr_b32 s{sT+1}, s{sHP}, 2
    s_mul_i32 s{sT+1}, s{sT+1}, 5120
    s_add_u32 s{sT}, s{sT}, s{sT+1}
    s_and_b32 s{sT+1}, s{sHP}, 3
    s_lshl_b32 s{sT+1}, s{sT+1}, 8
    s_add_u32 s{sT}, s{sT}, s{sT+1}
    s_add_u32 s{sT+3}, s{sT}, {WS_O}
    v_lshlrev_b32 v45, 10, v9
    v_add_u32 v45, v45, v44            ; i=0
    v_mov_b32 v46, 4096
    v_add_u32 v47, -1, v9
    v_lshlrev_b32 v47, 10, v47
    v_add_u32 v47, 20480, v47
    v_cmp_eq_u32 vcc, 0, v9
    s_nop 1
    v_cndmask_b32 v46, v47, v46, vcc
    v_add_u32 v46, v46, v44            ; i=1
    v_add_u32 v47, 3, v9
    v_lshlrev_b32 v47, 10, v47
    v_add_u32 v47, 20480, v47
    v_add_u32 v47, v47, v44
    v_cmp_gt_u32 vcc, 2, v9
    s_nop 1
    v_cndmask_b32 v47, v3, v47, vcc    ; i=2
    buffer_store_dwordx4 v[40:43], v8, s[{S_WS}:{S_WS+3}], s{sPART} offen sc1
    buffer_store_dwordx4 v[40:43], v45, s[{S_WS}:{S_WS+3}], s{sT+3} offen sc1
    buffer_store_dwordx4 v[40:43], v46, s[{S_WS}:{S_WS+3}], s{sT+3} offen sc1
    buffer_store_dwordx4 v[40:43], v47, s[{S_WS}:{S_WS+3}], s{sT+3} offen sc1
    """)
    xfrag_addr(vBA, 2)
    e(f"""
    v_mul_u32_u24 v2, 52, v0
    v_lshrrev_b32 v2, 8, v2
    v_mul_u32_u24 v3, 5, v2
    v_sub_u32 v3, v0, v3
    v_lshlrev_b32 v3, 4, v3
    v_mul_u32_u24 v2, 3840, v2
    v_add_u32 v{vWQ}, v2, v3
    v_cmp_gt_u32 vcc, 40, v0
    s_nop 1
    s_mov_b64 s[{sEX}:{sEX+1}], vcc
    """)
    def issue_wq(i0, i1):
        e(f"s_mov_b64 exec, s[{sEX}:{sEX+1}]")
        e(f"s_mul_i32 s{sT+1}, s{sW4}, 640")
        e(f"s_mul_i32 s{sT+2}, s{sW4}, {8*3840}")
        e(f"s_add_u32 s{sT+2}, s{sT+2}, s{sSOFW}")
        for m in range(i0, i1):
            e(f"s_add_u32 m0, s{sT+1}, {L_WQ + m*4*640}")
            e(f"s_add_u32 s{sT}, s{sT+2}, {m*32*3840}")
            e(f"buffer_load_dwordx4 v{vWQ}, s[{S_W}:{S_W+3}], s{sT} offen lds")
        e("s_mov_b64 exec, -1")
    base = Base([vBA, vBA+1, vBA+2, vBA+3])
    stamp(1)
    for s in range(NST):
        if s <= 1: e("s_waitcnt vmcnt(12) lgkmcnt(0)")
        elif s <= 8: e("s_waitcnt vmcnt(8) lgkmcnt(0)")
        else: e("s_waitcnt vmcnt(10) lgkmcnt(0)")
        e("s_barrier")
        sstamp(s+1)
        if s == 0: stamp(2)
        sb = base.set(s)
        for kk in range(4):
            d = XF + 16*s + 4*kk
            e(f"ds_read_b128 v[{d}:{d+3}], v{vBA+kk} offset:{sb}")
        if s + 2 < NST: issue_stage(s+2)
        elif s == 8: issue_wq(0, 10)
        else: issue_wq(10, 20)
    QA = 224; vQA = 18; vWO = 56
    lane_decomp32(2, 3, 4, 5, 6)
    e(f"""
    v_lshrrev_b32 v7, 1, v2
    v_lshlrev_b32 v7, 3, v7
    v_add_u32 v7, v7, v3
    v_mul_u32_u24 v7, 80, v7
    v_mul_u32_u24 v6, 40, v6
    v_add_u32 v7, v7, v6
    v_add_u32 v7, {L_WQ}, v7
    v_lshlrev_b32 v5, 3, v5
    v_add_u32 v{vQA}, v7, v5
    v_add_u32 v{vQA+1}, 32, v7
    """)
    srd(S_B, 10, 640*1280)
    wo_setup(vWO, 2)
    e("s_waitcnt vmcnt(10) lgkmcnt(0)")
    e("s_barrier")
    if 'prio' in exp: e("s_setprio 1")
    stamp(3)
    if 'p1only' in exp:
        e("s_waitcnt vmcnt(0)")
        e("s_branch L_fin")
    QF3 = [32, 40, 48]
    def q_reads3(k):
        b = QF3[k % 3]
        for T in range(2):
            for rd in range(2):
                e(f"ds_read_b64_tr_b16 v[{b+4*T+2*rd}:{b+4*T+2*rd+1}], v{vQA+T} offset:{(16*k+4*rd)*80}")
    wolist = [(sg, rd) for sg in WO_P1 for rd in range(2)]
    nwo = 0
    q_reads3(0); q_reads3(1)
    for k in range(40):
        if k + 2 < 40:
            q_reads3(k+2)
            e("s_waitcnt lgkmcnt(8)")
        elif k + 1 < 40: e("s_waitcnt lgkmcnt(4)")
        else: e("s_waitcnt lgkmcnt(0)")
        for T in range(2):
            c = "0" if k == 0 else f"v[{QA+16*T}:{QA+16*T+15}]"
            b = QF3[k % 3]
            e(f"v_mfma_f32_32x32x16_bf16 v[{QA+16*T}:{QA+16*T+15}], v[{b+4*T}:{b+4*T+3}], v[{XF+4*k}:{XF+4*k+3}], {c}")
        if k == 17:
            e(f"s_waitcnt vmcnt({nwo})")
            subbar(3, tmp=60)
        if k >= 6 and nwo < len(wolist):
            e(f"s_mov_b64 exec, s[{sEX}:{sEX+1}]")
            wo_dma(*wolist[nwo], vWO); nwo += 1
            e("s_mov_b64 exec, -1")
    assert nwo == len(wolist), nwo
    if 'prio' in exp: e("s_setprio 0")
    stamp(5)
    WF = 64; QB = 88; PQ0 = 100; PQ1 = 116; EP = 132; EN = 152; PH = 172; TM = 192
    wphi_frags(WF, 20, 22)
    if dump == "qacc":
        e("s_nop 7"); dump_regs([QA+i for i in range(20)], 0)
    for j in range(5):
        src = QA + 4*j if j < 4 else QA + 16
        e(f"v_cvt_pk_bf16_f32 v{QB+2*j}, v{src}, v{src+1}")
        e(f"v_cvt_pk_bf16_f32 v{QB+2*j+1}, v{src+2}, v{src+3}")
    e(f"v_mov_b32 v{QB+10}, 0"); e(f"v_mov_b32 v{QB+11}, 0")
    e("s_waitcnt lgkmcnt(0)")
    feature_map(QB, WF, PQ0, PQ1)
    vOA = 20
    lane_decomp32(2, 3, 4, 5, 6)
    e(f"""
    v_mul_u32_u24 v7, 1920, v6
    v_mul_u32_u24 v8, 48, v3
    v_lshlrev_b32 v9, 3, v5
    v_add3_u32 v7, v7, v8, v9
    v_add_u32 v7, {L_KVF}, v7
    v_lshrrev_b32 v8, 1, v2
    v_mov_b32 v9, {L_ZERO}
    v_cmp_eq_u32 vcc, v8, v6
    s_nop 1
    v_cndmask_b32 v{vOA}, v9, v7, vcc
    v_cmp_gt_u32 s[{sEX}:{sEX+1}], 2, v5
    s_nop 1
    s_and_b64 vcc, vcc, s[{sEX}:{sEX+1}]
    v_add_u32 v7, 32, v7
    s_nop 0
    v_cndmask_b32 v{vOA+1}, v9, v7, vcc
    v_and_b32 v2, 15, v0
    v_lshlrev_b32 v2, 4, v2
    v_bfe_u32 v3, v0, 4, 1
    v_mul_u32_u24 v3, 20480, v3
    v_add_u32 v2, v2, v3
    v_lshrrev_b32 v4, 5, v0            ; h
    v_lshlrev_b32 v5, 11, v4           ; c5 = 2h -> 2h*1024
    v_add_u32 v22, v5, v2
    v_lshlrev_b32 v6, 3, v4
    v_add_u32 v23, v6, v2
    s_lshl_b32 s{sT+4}, s{sRC}, 3
    s_lshl_b32 s{sT+1}, s{sW4}, 1
    s_add_u32 s{sT+4}, s{sT+4}, s{sT+1}
    s_mul_i32 s{sT+4}, s{sT+4}, 20480
    s_lshr_b32 s{sT+1}, s{sHP}, 2
    s_mul_i32 s{sT+1}, s{sT+1}, 5120
    s_add_u32 s{sT+4}, s{sT+4}, s{sT+1}
    s_and_b32 s{sT+1}, s{sHP}, 3
    s_lshl_b32 s{sT+1}, s{sT+1}, 8
    s_add_u32 s{sT+4}, s{sT+4}, s{sT+1}
    s_add_u32 s{sT+4}, s{sT+4}, {WS_O}
    s_add_u32 s{sT+5}, s{sT+4}, 4096
    """)
    softmax_pair(PQ0, PQ1, EP, EN, PH, TM)
    if dump == "phiq": dump_regs([PH+i for i in range(20)], 0)
    e("s_waitcnt vmcnt(0)")
    subsignal(5)
    stamp(6)
    subwait(2)
    stamp(7)
    KA = 64; N0 = 104; N1 = 120
    for st in range(5):
        for U in range(2):
            for rd in range(2):
                d = KA + (U*5+st)*4 + 2*rd
                e(f"ds_read_b64_tr_b16 v[{d}:{d+1}], v{vOA+U} offset:{(8*st+4*rd)*48}")
    for st in range(5):
        e(f"s_waitcnt lgkmcnt({min(15, 4*(4-st))})")
        for U, N in ((0, N0), (1, N1)):
            c = "0" if st == 0 else f"v[{N}:{N+15}]"
            d = KA + (U*5+st)*4
            e(f"v_mfma_f32_32x32x16_bf16 v[{N}:{N+15}], v[{d}:{d+3}], v[{PH+4*st}:{PH+4*st+3}], {c}")
    e("s_nop 7")
    e("s_nop 3")
    e(f"v_add_f32 v8, 0x358637bd, v{N1+4}")
    e("v_rcp_f32 v8, v8")
    e("s_nop 0")
    OB = 136
    for i in range(8):
        e(f"v_mul_f32 v{N0+2*i}, v{N0+2*i}, v8"); e(f"v_mul_f32 v{N0+2*i+1}, v{N0+2*i+1}, v8")
        e(f"v_cvt_pk_bf16_f32 v{OB+i}, v{N0+2*i}, v{N0+2*i+1}")
    for i in range(2):
        e(f"v_mul_f32 v{N1+2*i}, v{N1+2*i}, v8"); e(f"v_mul_f32 v{N1+2*i+1}, v{N1+2*i+1}, v8")
        e(f"v_cvt_pk_bf16_f32 v{OB+8+i}, v{N1+2*i}, v{N1+2*i+1}")
    for i in (0, 2, 4, 6, 8):
        e(f"v_min_u32 v{OB+i}, -2, v{OB+i}")
    e(f"""
    buffer_store_dwordx4 v[{OB}:{OB+3}], v22, s[{S_WS}:{S_WS+3}], s{sT+4} offen sc1
    buffer_store_dwordx4 v[{OB+4}:{OB+7}], v22, s[{S_WS}:{S_WS+3}], s{sT+4} offen offset:1024 sc1
    buffer_store_dwordx2 v[{OB+8}:{OB+9}], v23, s[{S_WS}:{S_WS+3}], s{sT+5} offen sc1
    """)
    a.label("L_fin")
    if until:
        e(f"""
        s_waitcnt vmcnt(0) lgkmcnt(0)
L_until:
        s_memrealtime s[94:95]
        s_waitcnt lgkmcnt(0)
        s_sub_u32 s96, s94, s98
        s_cmp_lt_u32 s96, {until}
        s_cbranch_scc1 L_until
        """)
    if stamps:
        stamp(10)
        e("s_waitcnt vmcnt(0)")
        e(f"""
        s_waitcnt lgkmcnt(0)
        s_lshl_b32 s{sT}, s2, 3
        s_add_u32 s{sT}, s{sT}, s{sWAVE}
        s_lshl_b32 s{sT}, s{sT}, 6
        s_add_u32 s{sT}, s{sT}, {WS_STAMP}
        v_mov_b32 v2, 0
        """)
        for i in range(NS): e(f"v_mov_b32 v{20+i}, s{sST+2*i}")
        e(f"""
        s_mov_b64 exec, 1
        buffer_store_dwordx4 v[20:23], v2, s[{S_WS}:{S_WS+3}], s{sT} offen
        buffer_store_dwordx4 v[24:27], v2, s[{S_WS}:{S_WS+3}], s{sT} offen offset:16
        buffer_store_dwordx4 v[28:31], v2, s[{S_WS}:{S_WS+3}], s{sT} offen offset:32
        """)
    if dbgwg >= 0:
        e(f"""
        s_cmp_lg_u32 s2, {dbgwg}
        s_cbranch_scc1 L_end
        s_cmp_lg_u32 s{sWAVE}, {dbgwave}
        s_cbranch_scc1 L_end
        s_mov_b64 exec, -1
        s_mov_b32 s72, s14
        s_and_b32 s73, s15, 0xffff
        s_mov_b32 s74, 256
        s_mov_b32 s75, 0x20000
        """)
        for i in range(1, NS):
            e(f"s_sub_u32 s{sT}, s{sST+2*i}, s{sST}")
            e(f"v_mov_b32 v{20+i}, s{sT}")
        e("v_mov_b32 v2, 0")
        e("s_mov_b64 exec, 1")
        for i in range(1, NS):
            e(f"buffer_store_dword v{20+i}, v2, s[72:75], 0 offen offset:{4*i}")
    a.label("L_end")
    e("s_endpgm")
    hdr = HEADER + f"; @launch grid=(256,1,1) block=(512,1,1) lds={LDS_BYTES}\n"
    return hdr + f""".amdgcn_target "amdgcn-amd-amdhsa--gfx950"
.text
.globl {KN}
.p2align 8
.type {KN},@function
{KN}:
""" + a.text() + """.section .rodata,"a"
""" + kernel_desc(KN, 256, 102, 256)

if __name__ == "__main__":
    import argparse
    ap = argparse.ArgumentParser()
    ap.add_argument("--stamps", action="store_true")
    ap.add_argument("--dump", default=None)
    ap.add_argument("--stagest", action="store_true")
    ap.add_argument("--exp", default="")
    ap.add_argument("--until", type=int, default=0)
    ap.add_argument("--dbgwg", type=int, default=-1)
    ap.add_argument("--dbgwave", type=int, default=0)
    args = ap.parse_args()
    print(gen(stamps=args.stamps, dump=args.dump, stagest=args.stagest, exp=args.exp, until=args.until, dbgwg=args.dbgwg, dbgwave=args.dbgwave))
```

```python
import sys
from asmlib import *
from lay2 import TKV, TQ

KN = "standalone__linear_kernel_hedgehog__prompt_kernel"
NST = 10
SLOT = 32768
R = 3
L_WQ = 98304
L_PHI = 149504
L_ZERO = 151552
L_CNT = 153600
L_KVF = 154624
L_PK = 32768
L_WO19 = 158464
LDS_BYTES = 163840
def L_WO(sg): return sg*5120 if sg <= 18 else L_WO19
WO_P1 = [0,1,2,3,4,5,13,14,15,16,17,18,19]
WO_P2 = [6,7,8,9,10,11,12]
WS_PART = 0x000000
WS_O = 0x100000
WS_RDY = 0x400000
WS_STAMP = 0x700000
WS_DBG = 0x800000
PF = True
PFS_ALL = {'pre': [('x',2),('kv',2),('x',6),('kv',5),('kv',8),('q',0),('q',1),('wo',0),('wo',1)]}
PFS_A = {'pre': [('x',2),('kv',2),('kv',5)], 0: [('x',6),('kv',8),('q',0),('q',1)], 2: [('wo',0),('wo',1)]}
PFS_B = {'pre': [('x',2),('kv',2)], 0: [('kv',5),('x',6)], 1: [('kv',8),('q',0),('q',1)], 3: [('wo',0),('wo',1)]}
PFS_C = {'pre': [('x',0),('kv',0),('x',4),('kv',3),('kv',6),('x',8),('kv',9),('q',0),('q',1)], 2: [('wo',0),('wo',1)]}
PFS = PFS_ALL
LOG2E = 0x3fb8aa3b
NLOG2E = 0xbfb8aa3b
SPIN_G = 0x8000
SPIN_L = 0x80000

def gen(stamps=False, dump=None, stagest=False, exp='', until=0, dbgwg=-1, dbgwave=0):
    a = Asm(); e = a.e
    S_X, S_W, S_WS = 20, 24, 28
    S_A, S_B = 72, 76
    sWAVE, sW4, sRC, sHP, sBB = 32, 33, 34, 35, 36
    sT = 40
    sSOFX, sSOFW, sM0 = 52, 53, 54
    sNONCE = 55
    sL = 56
    sEX = 58
    sSPIN = 60
    sU, sV = 62, 63
    sST = 80
    NS = 11
    def sstamp(i):
        if stagest: e(f"s_memtime s[{sST+2*i}:{sST+2*i+1}]")
    def stamp(i):
        if stamps and not (stagest and i > 0): e(f"s_memtime s[{sST+2*i}:{sST+2*i+1}]")
    def rstamp(i):
        if stamps and not stagest: e(f"s_memrealtime s[{sST+2*i}:{sST+2*i+1}]")
    def srd(dst, ptr, nbytes):
        e(f"""
        s_mov_b32 s{dst}, s{ptr}
        s_and_b32 s{dst+1}, s{ptr+1}, 0xffff
        s_mov_b32 s{dst+2}, {nbytes}
        s_mov_b32 s{dst+3}, 0x20000
        """)
    def subsignal(idx, tmp=2):
        e(f"""
        v_mov_b32 v{tmp}, {L_CNT + 4*idx}
        v_mov_b32 v{tmp+1}, 1
        s_mov_b64 exec, 1
        ds_add_u32 v{tmp}, v{tmp+1}
        s_mov_b64 exec, -1
        """)
    def subwait(idx, target=4, tmp=2):
        lab = a.newlabel("SW")
        e(f"v_mov_b32 v{tmp}, {L_CNT + 4*idx}")
        e(f"s_mov_b32 s{sSPIN}, {SPIN_L}")
        a.label(lab)
        e(f"""
        s_sub_u32 s{sSPIN}, s{sSPIN}, 1
        s_cbranch_scc1 L_end
        ds_read_b32 v{tmp+1}, v{tmp}
        s_waitcnt lgkmcnt(0)
        v_readfirstlane_b32 s{sT}, v{tmp+1}
        s_nop 0
        s_cmp_lt_u32 s{sT}, {target}
        s_cbranch_scc1 {lab}
        """)
    def subbar(idx, target=4, tmp=2):
        subsignal(idx, tmp); subwait(idx, target, tmp)
    def dump_regs(regs, off):
        n = len(regs)
        e(f"""
        s_lshl_b32 s{sT}, s2, 3
        s_add_u32 s{sT}, s{sT}, s{sWAVE}
        s_mul_i32 s{sT}, s{sT}, {n*256}
        s_add_u32 s{sT}, s{sT}, {WS_DBG + off}
        v_lshlrev_b32 v2, 2, v0
        """)
        for i, r in enumerate(regs):
            e(f"buffer_store_dword v{r}, v2, s[{S_WS}:{S_WS+3}], s{sT} offen offset:{(i%16)*256}")
            if i % 16 == 15: e(f"s_add_u32 s{sT}, s{sT}, 4096")
        e("s_waitcnt vmcnt(0)")
    def softmax_pair(P0, P1, EP, EN, PH, tm):
        p = [P0 + i for i in range(16)] + [P1 + i for i in range(4)]
        tM, tN, tA, tB = tm, tm+1, tm+2, tm+4
        e(f"v_max3_f32 v{tM}, v{p[0]}, v{p[1]}, v{p[2]}")
        e(f"v_min3_f32 v{tN}, v{p[0]}, v{p[1]}, v{p[2]}")
        for i in range(3, 19, 2):
            e(f"v_max3_f32 v{tM}, v{tM}, v{p[i]}, v{p[i+1]}")
            e(f"v_min3_f32 v{tN}, v{tN}, v{p[i]}, v{p[i+1]}")
        e(f"v_max_f32 v{tM}, v{tM}, v{p[19]}")
        e(f"v_min_f32 v{tN}, v{tN}, v{p[19]}")
        e(f"v_mul_f32 v{tA}, {NLOG2E:#x}, v{tM}")
        e(f"v_mul_f32 v{tB}, {LOG2E:#x}, v{tN}")
        for i in range(20):
            e(f"v_fma_f32 v{EP+i}, v{p[i]}, s{sL}, v{tA}")
            e(f"v_fma_f32 v{EN+i}, -v{p[i]}, s{sL}, v{tB}")
        for i in range(20):
            e(f"v_exp_f32 v{EP+i}, v{EP+i}")
            e(f"v_exp_f32 v{EN+i}, v{EN+i}")
        e(f"v_add_f32 v{tA}, v{EP}, v{EP+1}"); e(f"v_add_f32 v{tB}, v{EN}, v{EN+1}")
        e(f"v_add_f32 v{tA+1}, v{EP+2}, v{EP+3}"); e(f"v_add_f32 v{tB+1}, v{EN+2}, v{EN+3}")
        for i in range(4, 20, 2):
            e(f"v_add_f32 v{tA}, v{tA}, v{EP+i}"); e(f"v_add_f32 v{tB}, v{tB}, v{EN+i}")
            e(f"v_add_f32 v{tA+1}, v{tA+1}, v{EP+i+1}"); e(f"v_add_f32 v{tB+1}, v{tB+1}, v{EN+i+1}")
        e(f"v_add_f32 v{tA}, v{tA}, v{tA+1}")
        e(f"v_add_f32 v{tB}, v{tB}, v{tB+1}")
        e(f"v_rcp_f32 v{tA}, v{tA}")
        e(f"v_rcp_f32 v{tB}, v{tB}")
        e("s_nop 0")
        for i in range(10):
            e(f"v_mul_f32 v{EP+2*i}, v{EP+2*i}, v{tA}"); e(f"v_mul_f32 v{EP+2*i+1}, v{EP+2*i+1}, v{tA}")
            e(f"v_mul_f32 v{EN+2*i}, v{EN+2*i}, v{tB}"); e(f"v_mul_f32 v{EN+2*i+1}, v{EN+2*i+1}, v{tB}")
            e(f"v_cvt_pk_bf16_f32 v{PH+i}, v{EP+2*i}, v{EP+2*i+1}")
            e(f"v_cvt_pk_bf16_f32 v{PH+10+i}, v{EN+2*i}, v{EN+2*i+1}")
    def lane_decomp32(vG, vrp, vc, vQ, vhh):
        e(f"""
        v_lshrrev_b32 v{vG}, 4, v0
        v_bfe_u32 v{vrp}, v0, 2, 2
        v_and_b32 v{vc}, 3, v0
        v_and_b32 v{vQ}, 1, v{vG}
        v_lshlrev_b32 v{vQ}, 1, v{vQ}
        v_lshrrev_b32 v{vhh}, 1, v{vc}
        v_add_u32 v{vQ}, v{vQ}, v{vhh}
        v_and_b32 v{vhh}, 1, v{vc}
        """)
    def wphi_frags(WF, va, t):
        vG, vrp, vc, vQ, vhh = t, t+1, t+2, t+3, t+4
        lane_decomp32(vG, vrp, vc, vQ, vhh)
        e(f"""
        v_mul_u32_u24 v{t+5}, 800, v{vhh}
        v_mul_u32_u24 v{t+6}, 40, v{vrp}
        v_add_u32 v{t+5}, v{t+5}, v{t+6}
        v_lshlrev_b32 v{t+6}, 3, v{vQ}
        v_add_u32 v{t+5}, v{t+5}, v{t+6}
        v_add_u32 v{t+5}, {L_PHI}, v{t+5}
        v_lshrrev_b32 v{t+6}, 1, v{vG}
        v_mov_b32 v{va+1}, {L_ZERO}
        v_cmp_eq_u32 vcc, v{t+6}, v{vhh}
        s_nop 1
        v_cndmask_b32 v{va}, v{va+1}, v{t+5}, vcc
        v_cmp_eq_u32 s[{sEX}:{sEX+1}], 0, v{vQ}
        s_nop 1
        s_and_b64 vcc, vcc, s[{sEX}:{sEX+1}]
        v_add_u32 v{t+5}, 32, v{t+5}
        s_nop 0
        v_cndmask_b32 v{va+1}, v{va+1}, v{t+5}, vcc
        """)
        for u in range(2):
            for step in range(3):
                for rd in range(2):
                    d = WF + u*12 + step*4 + 2*rd
                    if step == 2 and rd == 1:
                        e(f"v_mov_b32 v{d}, 0"); e(f"v_mov_b32 v{d+1}, 0")
                    else:
                        e(f"ds_read_b64_tr_b16 v[{d}:{d+1}], v{va+u} offset:{(8*step+4*rd)*40}")
    def feature_map(SRC, WF, P0, P1):
        for step in range(3):
            for u, P in ((0, P0), (1, P1)):
                c = "0" if step == 0 else f"v[{P}:{P+15}]"
                e(f"v_mfma_f32_32x32x16_bf16 v[{P}:{P+15}], v[{WF+u*12+step*4}:{WF+u*12+step*4+3}], v[{SRC+4*step}:{SRC+4*step+3}], {c}")
    def xfrag_addr(vBA, t):
        e(f"""
        v_and_b32 v{t}, 31, v0
        v_lshrrev_b32 v{t+1}, 5, v0
        v_bfe_u32 v{t+2}, v{t}, 1, 3
        v_xor_b32 v{t+2}, v{t+2}, v{t+1}
        v_lshlrev_b32 v{t+2}, 4, v{t+2}
        s_lshl_b32 s{sT}, s{sW4}, 5
        v_add_u32 v{t}, s{sT}, v{t}
        v_lshlrev_b32 v{t}, 7, v{t}
        v_add_u32 v{vBA}, v{t}, v{t+2}
        v_xor_b32 v{vBA+1}, 32, v{vBA}
        v_xor_b32 v{vBA+2}, 64, v{vBA}
        v_xor_b32 v{vBA+3}, 96, v{vBA}
        """)
    class Base:
        def __init__(self, regs): self.regs = regs; self.cur = 0
        def set(self, s):
            so = (s % R) * SLOT
            want = (so // 65536) * 65536
            if want != self.cur:
                d = (want - self.cur) & 0xffffffff
                for r in self.regs: e(f"v_add_u32 v{r}, {d}, v{r}")
                self.cur = want
            return so - self.cur
    def wo_setup(vWO, t):
        e(f"""
        v_mul_u32_u24 v{t}, 26, v0
        v_lshrrev_b32 v{t}, 8, v{t}          ; l/10 for l<64
        v_mul_u32_u24 v{t+1}, 10, v{t}
        v_sub_u32 v{t+1}, v0, v{t+1}
        v_lshlrev_b32 v{t+1}, 4, v{t+1}
        v_mul_u32_u24 v{t}, 1280, v{t}
        v_add_u32 v{vWO}, v{t}, v{t+1}
        v_cmp_gt_u32 vcc, 40, v0
        s_lshr_b32 s{sU}, s{sHP}, 1
        s_mul_i32 s{sU}, s{sU}, 160
        s_mul_i32 s{sV}, s{sW4}, {40*1280}
        s_add_u32 s{sU}, s{sU}, s{sV}        ; + G*40 rows
        s_lshr_b32 s{sV}, s{sW4}, 1
        s_lshl_b32 s{sV}, s{sV}, 4
        s_and_b32 s{sT}, s{sW4}, 1
        s_lshl_b32 s{sT}, s{sT}, 2
        s_add_u32 s{sV}, s{sV}, s{sT}
        s_mul_i32 s{sV}, s{sV}, 160          ; pi0*160
        s_mov_b64 s[{sEX}:{sEX+1}], vcc
        """)
    def wo_dma(sg, rd, vWO):
        blk, c5 = divmod(sg, 5)
        if c5 < 4: row = 160*blk + [0, 8, 20, 28][c5] + 4*rd
        else: row = 160*blk + 16 + 20*rd
        e(f"s_add_u32 m0, s{sV}, {L_WO(sg) + rd*8*160}")
        e(f"s_add_u32 s{sT}, s{sU}, {row*1280}")
        e(f"buffer_load_dwordx4 v{vWO}, s[{S_B}:{S_B+3}], s{sT} offen lds")

    e(f"""
    s_load_dwordx8 s[4:11], s[0:1], 0
    s_load_dwordx4 s[12:15], s[0:1], 32
    s_load_dwordx2 s[16:17], s[0:1], 48
    s_cmp_ge_u32 s2, 256
    s_cbranch_scc1 L_end
    """)
    if 'half' in exp:
        e("s_bitcmp1_b32 s2, 6")
        e("s_cbranch_scc1 L_end")
    if 'quarter' in exp:
        e("s_and_b32 s40, s2, 0x60")
        e("s_cmp_lg_u32 s40, 0")
        e("s_cbranch_scc1 L_end")
    stamp(0); rstamp(9)
    if until: e("s_memrealtime s[98:99]")
    e(f"""
    v_lshrrev_b32 v1, 6, v0
    v_and_b32 v0, 63, v0
    s_and_b32 s{sT}, s2, 7
    s_lshr_b32 s{sT+1}, s2, 3
    v_readfirstlane_b32 s{sWAVE}, v1
    s_lshr_b32 s{sRC}, s{sT}, 1
    s_lshl_b32 s{sRC}, s{sRC}, 2
    s_lshr_b32 s{sT+2}, s{sT+1}, 3
    s_add_u32 s{sRC}, s{sRC}, s{sT+2}
    s_and_b32 s{sHP}, s{sT}, 1
    s_lshl_b32 s{sHP}, s{sHP}, 3
    s_and_b32 s{sT+2}, s{sT+1}, 7
    s_add_u32 s{sHP}, s{sHP}, s{sT+2}
    s_and_b32 s{sW4}, s{sWAVE}, 3
    s_mul_i32 s{sBB}, s{sHP}, 5
    s_and_b32 s{sBB}, s{sBB}, 7
    s_sub_u32 s{sBB}, 8, s{sBB}
    s_min_u32 s{sBB}, s{sBB}, 4
    s_mov_b32 s{sL}, {LOG2E:#x}
    s_cmp_ge_u32 s{sWAVE}, 4
    s_cbranch_scc1 L_lq
    """)

    ACC = 64; FB = [112, 128]; WF = 144; KB = 168; VB = 180; PK0 = 192; PK1 = 208; EP = 224; EN = 112; PH = 64; TM = 244
    vAA = 10; vBA = 14
    vPA, vPB = 34, 35
    sPART = 64
    e(f"""
    s_lshl_b32 s{sPART}, s{sHP}, 4
    s_add_u32 s{sPART}, s{sPART}, s{sRC}
    s_lshl_b32 s{sPART}, s{sPART}, 12
    s_add_u32 s{sPART}, s{sPART}, {WS_PART}
    s_waitcnt lgkmcnt(0)
    """)
    srd(S_WS, 16, 0x10000000)
    srd(S_A, 14, 256)
    if PF:
        e(f"""
        s_lshr_b32 s{sT+1}, s2, 3               ; j
        s_and_b32 s{sT+2}, s2, 1
        s_mul_i32 s{sT+2}, s{sT+2}, 640         ; column half (bytes)
        v_mov_b32 v3, 0x40000000
        s_cmp_eq_u32 s{sW4}, 0
        s_cbranch_scc1 L_t_x
        s_cmp_eq_u32 s{sW4}, 1
        s_cbranch_scc1 L_t_kv
        ; waves 2,3
        v_mul_u32_u24 v2, 52, v0
        v_lshrrev_b32 v2, 8, v2                 ; l/5
        v_mul_u32_u24 v4, 5, v2
        v_sub_u32 v4, v0, v4
        v_lshlrev_b32 v4, 7, v4                 ; li*128
        s_mul_i32 s{sT+3}, s{sT+1}, 10
        v_add_u32 v2, s{sT+3}, v2               ; row
        s_mov_b32 s{sT+4}, 3840
        s_cmp_eq_u32 s{sW4}, 2
        s_cselect_b32 s{sT+4}, s{sT+4}, 1280
        v_mul_lo_u32 v2, v2, s{sT+4}
        v_add3_u32 v37, v2, v4, s{sT+2}
        v_cmp_gt_u32 vcc, 50, v0
        s_cmp_eq_u32 s{sW4}, 2
        s_cbranch_scc1 L_t_q
        v_cndmask_b32 v37, v3, v37, vcc
        """)
        srd(S_X, 10, 640*1280)
        e(f"""
        s_branch L_t_done
L_t_q:
        v_cndmask_b32 v37, v3, v37, vcc
        """)
        srd(S_X, 6, 640*3840)
        e(f"""
        s_branch L_t_done
L_t_kv:
        v_mul_u32_u24 v2, 13, v0
        v_lshrrev_b32 v2, 8, v2
        v_mul_u32_u24 v4, 20, v2
        v_sub_u32 v4, v0, v4                    ; l%20
        v_mul_u32_u24 v5, 26, v4
        v_lshrrev_b32 v5, 8, v5                 ; r = (l%20)/10
        v_mul_u32_u24 v6, 10, v5
        v_sub_u32 v4, v4, v6                    ; l%10
        v_mul_u32_u24 v6, 52, v4
        v_lshrrev_b32 v6, 8, v6                 ; ty
        v_mul_u32_u24 v7, 5, v6
        v_sub_u32 v4, v4, v7                    ; li
        v_lshlrev_b32 v4, 7, v4
        v_lshlrev_b32 v2, 6, v2                 ; 64q
        v_add_u32 v2, v2, v5
        s_lshl_b32 s{sT+3}, s{sT+1}, 1
        v_add_u32 v2, s{sT+3}, v2               ; row
        v_mul_u32_u24 v2, 3840, v2
        v_add_u32 v6, 1, v6
        v_mul_u32_u24 v6, 1280, v6
        v_add3_u32 v2, v2, v4, v6
        v_add_u32 v37, s{sT+2}, v2
        v_cmp_gt_u32 vcc, 60, v0
        s_nop 1
        v_cndmask_b32 v37, v3, v37, vcc
        """)
        srd(S_X, 6, 640*3840)
        e(f"""
        s_branch L_t_done
L_t_x:
        v_and_b32 v2, 15, v0
        s_lshr_b32 s{sT+2}, s2, 1
        s_and_b32 s{sT+2}, s{sT+2}, 3
        s_lshl_b32 s{sT+2}, s{sT+2}, 9
        s_lshl_b32 s{sT+3}, s{sT+1}, 4
        s_add_u32 s{sT+2}, s{sT+2}, s{sT+3}
        v_add_u32 v2, s{sT+2}, v2
        v_mul_u32_u24 v2, 1280, v2
        v_lshrrev_b32 v4, 4, v0
        v_lshlrev_b32 v4, 7, v4
        v_add_u32 v37, v2, v4
        """)
        srd(S_X, 4, 2048*1280)
        a.label("L_t_done")
    def touch(wave, soff):
        if not PF: return
        lab = a.newlabel("TT")
        e(f"""
        s_cmp_lg_u32 s{sW4}, {wave}
        s_cbranch_scc1 {lab}
        s_mov_b32 s{sT}, {soff}
        buffer_load_dword v36, v37, s[{S_X}:{S_X+3}], s{sT} offen
{lab}:
        """)
    def xq(st0): return (0, st0*128)
    def kvq(st0): return (1, st0*64*3840)
    SCHED = PFS
    e(f"""
    s_or_b32 s{sT}, s{sRC}, s{sHP}
    s_or_b32 s{sT}, s{sT}, s{sW4}
    s_cmp_lg_u32 s{sT}, 0
    s_cbranch_scc1 L_kv_nn
    s_memrealtime s[{sT+4}:{sT+5}]
    s_waitcnt lgkmcnt(0)
    s_or_b32 s{sT+4}, s{sT+4}, 1
    v_mov_b32 v2, 0
    v_mov_b32 v3, s{sT+4}
    s_mov_b64 exec, 1
    buffer_store_dword v3, v2, s[{S_A}:{S_A+3}], 0 offen sc1
    s_mov_b64 exec, -1
L_kv_nn:
    """)
    e(f"""
    v_lshlrev_b32 v2, 4, v0
    s_lshl_b32 s{sT}, s{sW4}, 10
    s_add_u32 s{sT}, s{sT}, {L_ZERO}
    v_add_u32 v2, s{sT}, v2
    v_mov_b32 v24, 0
    v_mov_b32 v25, 0
    v_mov_b32 v26, 0
    v_mov_b32 v27, 0
    s_cmp_eq_u32 s{sW4}, 3
    s_cbranch_scc1 L_kv_nz
    ds_write_b128 v2, v[24:27]
L_kv_nz:
    """)
    lane_decomp32(2, 3, 4, 5, 6)
    e(f"""
    v_lshlrev_b32 v5, 3, v5          ; 8Q
    v_mul_u32_u24 v6, 5, v6          ; 5hh
    v_lshrrev_b32 v7, 1, v2
    v_lshlrev_b32 v7, 3, v7
    v_add_u32 v7, v7, v3             ; krow
    v_lshlrev_b32 v7, 8, v7
    v_add_u32 v7, 16384, v7
    v_lshlrev_b32 v8, 2, v3          ; 4rp
    s_sub_u32 s{sT+1}, 4, s{sBB}
    """)
    for T in range(3):
        immc = 0; imms = 0
        for Q in range(4):
            q = TKV[T][Q] or TKV[T][0]
            immc |= q[1] << (8*Q); imms |= (8*q[0]) << (8*Q)
        e(f"""
        s_mov_b32 s{sT}, {immc}
        v_bfe_u32 v18, s{sT}, v5, 8
        v_add_u32 v18, v18, v6
        v_lshrrev_b32 v19, 1, v18
        v_mov_b32 v9, s{sT+1}
        v_cmp_le_u32 vcc, s{sBB}, v19
        v_mov_b32 v20, 0
        s_nop 0
        v_cndmask_b32 v9, v20, v9, vcc
        v_add_u32 v19, v19, v9
        s_mov_b32 s{sT}, {imms}
        v_bfe_u32 v9, s{sT}, v5, 8
        v_add3_u32 v19, v19, v9, v8
        v_and_b32 v19, 15, v19
        v_lshlrev_b32 v19, 4, v19
        v_and_b32 v18, 1, v18
        v_lshlrev_b32 v18, 3, v18
        v_add3_u32 v{vAA+T}, v7, v19, v18
        """)
    xfrag_addr(vBA, 2)
    def kv_reads(kk, buf, sb):
        b = FB[buf]
        e(f"ds_read_b128 v[{b+12}:{b+15}], v{vBA+kk} offset:{sb}")
        for T in range(3):
            for rd in range(2):
                e(f"ds_read_b64_tr_b16 v[{b+4*T+2*rd}:{b+4*T+2*rd+1}], v{vAA+T} offset:{sb+(16*kk+4*rd)*256}")
    def kv_mfmas(buf, first=False):
        b = FB[buf]
        for T in range(3):
            c = "0" if first else f"v[{ACC+16*T}:{ACC+16*T+15}]"
            e(f"v_mfma_f32_32x32x16_bf16 v[{ACC+16*T}:{ACC+16*T+15}], v[{b+4*T}:{b+4*T+3}], v[{b+12}:{b+15}], {c}")
    def run_sched(when):
        for item in SCHED.get(when, []):
            kind, arg = item
            if kind == 'x': touch(*xq(arg))
            elif kind == 'kv': touch(*kvq(arg))
            elif kind == 'q': touch(2, arg*320*3840)
            elif kind == 'wo': touch(3, arg*320*1280)
    run_sched('pre')
    e("s_waitcnt lgkmcnt(0)")
    stamp(1)
    e("s_barrier")
    stamp(2)
    vNC, vRF = 38, 42
    base = Base([vAA, vAA+1, vAA+2, vBA, vBA+1, vBA+2, vBA+3])
    sb = base.set(0)
    kv_reads(0, 0, sb)
    for s in range(NST):
        for kk in range(3):
            kv_reads(kk+1, (kk+1) & 1, sb)
            e("s_waitcnt lgkmcnt(7)")
            kv_mfmas(kk & 1, first=(s == 0 and kk == 0))
        run_sched(s)
        if s == 0:
            e(f"v_mov_b32 v{vNC}, 0")
            e(f"buffer_load_dword v{vNC+1}, v{vNC}, s[{S_A}:{S_A+3}], 0 offen sc1")
        if s == 1: wphi_frags(WF, 18, 22)
        if s == 2 and 'p1only' not in exp:
            lab = a.newlabel("NF"); lab2 = a.newlabel("NC")
            e(f"""
            s_waitcnt vmcnt(0)
            v_readfirstlane_b32 s{sNONCE}, v{vNC+1}
            s_mov_b32 s{sSPIN}, {SPIN_G}
            s_cmp_lg_u32 s{sNONCE}, 0
            s_cbranch_scc1 {lab}
{lab2}:
            s_sub_u32 s{sSPIN}, s{sSPIN}, 1
            s_cbranch_scc1 L_end
            buffer_load_dword v{vNC+1}, v{vNC}, s[{S_A}:{S_A+3}], 0 offen sc1
            s_waitcnt vmcnt(0)
            v_readfirstlane_b32 s{sNONCE}, v{vNC+1}
            s_nop 0
            s_cmp_eq_u32 s{sNONCE}, 0
            s_cbranch_scc1 {lab2}
{lab}:
            """)
        if s == 3:
            lab = a.newlabel("RD")
            e(f"""
            s_cmp_lg_u32 s{sW4}, 0
            s_cbranch_scc1 {lab}
            s_lshl_b32 s{sT}, s{sHP}, 4
            s_add_u32 s{sT}, s{sT}, s{sRC}
            s_lshl_b32 s{sT}, s{sT}, 7
            s_add_u32 s{sT}, s{sT}, {WS_RDY}
            v_mov_b32 v2, 0
            v_mov_b32 v3, s{sNONCE}
            s_mov_b64 exec, 1
            buffer_store_dword v3, v2, s[{S_WS}:{S_WS+3}], s{sT} offen sc1
            s_mov_b64 exec, -1
{lab}:
            """)
        if s == 7:
            e(f"""
            v_and_b32 v2, 15, v0
            s_lshl_b32 s{sT}, s{sHP}, 4
            v_add_u32 v3, s{sT}, v2            ; hp*16 + r
            v_lshlrev_b32 v4, 4, v2
            v_add_u32 v4, s{sRC}, v4           ; h'*16 + rc
            v_bfe_u32 v5, v0, 4, 1
            v_cmp_eq_u32 vcc, 0, v5
            s_mov_b32 s{sT+1}, {WS_RDY}
            s_nop 0
            v_cndmask_b32 v3, v4, v3, vcc
            v_lshlrev_b32 v{vRF}, 7, v3
            buffer_load_dword v{vRF+1}, v{vRF}, s[{S_WS}:{S_WS+3}], s{sT+1} offen sc1
            """)
        e("s_waitcnt lgkmcnt(0)")
        e("s_barrier")
        sstamp(s+1)
        if s + 1 < NST:
            sb = base.set(s+1)
            kv_reads(0, 0, sb)
        kv_mfmas(1)
    stamp(3)
    if 'p1only' in exp: e("s_branch L_fin")
    loc = {}
    for T, qs in enumerate(TKV):
        for Q, q in enumerate(qs):
            if q is not None: loc[q] = ACC + 16*T + 4*Q
    vRA = 18
    e(f"""
    v_and_b32 v2, 31, v0
    v_lshrrev_b32 v3, 5, v0
    v_lshlrev_b32 v3, 14, v3
    s_lshl_b32 s{sT}, s{sW4}, 5
    v_add_u32 v2, s{sT}, v2
    v_lshlrev_b32 v2, 7, v2
    v_add_u32 v2, v2, v3
    v_add_u32 v2, {L_PK}, v2
    v_and_b32 v3, 7, v0
    v_bfe_u32 v4, v0, 3, 1
    v_lshlrev_b32 v4, 2, v4
    v_xor_b32 v3, v3, v4
    v_lshlrev_b32 v3, 4, v3
    v_add_u32 v{vRA}, v2, v3
    """)
    for u in range(1, 8): e(f"v_xor_b32 v{vRA+u}, {16*u}, v{vRA}")
    if dump == "kvacc":
        e("s_nop 7"); dump_regs([loc[(sg, j)] + x for sg in range(2) for j in range(5) for x in range(4)], 0)
    for j in range(5):
        e(f"v_cvt_pk_bf16_f32 v{KB+2*j}, v{loc[(0,j)]}, v{loc[(0,j)]+1}")
        e(f"v_cvt_pk_bf16_f32 v{KB+2*j+1}, v{loc[(0,j)]+2}, v{loc[(0,j)]+3}")
    e(f"v_mov_b32 v{KB+10}, 0"); e(f"v_mov_b32 v{KB+11}, 0")
    e("s_nop 0")
    feature_map(KB, WF, PK0, PK1)
    for j in range(5):
        e(f"v_cvt_pk_bf16_f32 v{VB+2*j}, v{loc[(1,j)]}, v{loc[(1,j)]+1}")
        e(f"v_cvt_pk_bf16_f32 v{VB+2*j+1}, v{loc[(1,j)]+2}, v{loc[(1,j)]+3}")
    e(f"v_mov_b32 v{VB+10}, 0x3f80"); e(f"v_mov_b32 v{VB+11}, 0")
    for u in range(3):
        e(f"ds_write_b128 v{vRA+5+u}, v[{VB+4*u}:{VB+4*u+3}]")
    vKA = 26; vKB = 28
    e(f"""
    v_lshrrev_b32 v2, 4, v0            ; G
    v_bfe_u32 v3, v0, 2, 2             ; rp
    v_and_b32 v4, 3, v0                ; c
    v_lshlrev_b32 v5, 3, v2
    v_add_u32 v5, v5, v3
    v_lshlrev_b32 v5, 7, v5
    s_lshr_b32 s{sT}, s{sW4}, 1
    s_lshl_b32 s{sT}, s{sT}, 14
    s_add_u32 s{sT}, s{sT}, {L_PK}
    v_add_u32 v5, s{sT}, v5
    v_and_b32 v6, 1, v2
    v_lshlrev_b32 v6, 2, v6
    v_xor_b32 v6, v6, v3
    v_lshrrev_b32 v7, 1, v4
    v_and_b32 v8, 1, v4
    v_lshlrev_b32 v8, 3, v8
    v_add_u32 v5, v5, v8
    s_and_b32 s{sT+1}, s{sW4}, 1
    v_add_u32 v9, 5, v7
    v_mov_b32 v40, 7
    s_cmp_eq_u32 s{sT+1}, 1
    s_cselect_b64 vcc, -1, 0
    v_cndmask_b32 v9, v9, v40, vcc
    v_xor_b32 v9, v9, v6
    v_lshlrev_b32 v9, 4, v9
    v_add_u32 v{vKA}, v5, v9
    v_xor_b32 v{vKA+1}, 64, v{vKA}
    v_add_u32 v{vKA+1}, 512, v{vKA+1}
    """)
    for ct in range(3):
        if ct < 2: e(f"v_add_u32 v9, {2*ct}, v7")
        else: e(f"v_mov_b32 v9, 4")
        e(f"""
        v_xor_b32 v9, v9, v6
        v_lshlrev_b32 v9, 4, v9
        v_add_u32 v{vKB+2*ct}, v5, v9
        v_xor_b32 v{vKB+2*ct+1}, 64, v{vKB+2*ct}
        v_add_u32 v{vKB+2*ct+1}, 512, v{vKB+2*ct+1}
        """)
    e(f"""
    v_lshrrev_b32 v2, 4, v0            ; g
    v_and_b32 v3, 15, v0
    s_lshr_b32 s{sT}, s{sW4}, 1
    s_mul_i32 s{sT}, s{sT}, 6
    s_and_b32 s{sT+1}, s{sW4}, 1
    s_lshl_b32 s{sT+2}, s{sT+1}, 2
    s_add_u32 s{sT}, s{sT}, s{sT+2}
    v_add_u32 v4, s{sT}, v2
    v_mul_u32_u24 v4, 40, v4
    v_add_u32 v4, v4, v3
    v_lshlrev_b32 v4, 3, v4
    v_mov_b32 v5, 0x40000000
    s_lshl_b32 s{sT+2}, s{sT+1}, 1
    s_sub_u32 s{sT+2}, 4, s{sT+2}
    v_cmp_gt_u32 vcc, s{sT+2}, v2
    s_nop 1
    v_cndmask_b32 v{vPA}, v5, v4, vcc
    v_cmp_gt_u32 vcc, 8, v3
    s_nop 1
    v_cndmask_b32 v{vPB}, v5, v{vPA}, vcc
    """)
    if dump == "pk":
        dump_regs([PK0+i for i in range(16)] + [PK1+i for i in range(4)], 0)
    softmax_pair(PK0, PK1, EP, EN, PH, TM)
    if dump == "phik": dump_regs([PH+i for i in range(20)], 0)
    for u in range(5):
        e(f"ds_write_b128 v{vRA+u}, v[{PH+4*u}:{PH+4*u+3}]")
    subbar(0)
    stamp(4)
    KD = 192; KF = 64
    for kap in range(4):
        f = KF + 16*kap
        for rd in range(2):
            e(f"ds_read_b64_tr_b16 v[{f+2*rd}:{f+2*rd+1}], v{vKA+rd} offset:{4096*kap}")
        for ct in range(3):
            for rd in range(2):
                e(f"ds_read_b64_tr_b16 v[{f+4+4*ct+2*rd}:{f+4+4*ct+2*rd+1}], v{vKB+2*ct+rd} offset:{4096*kap}")
    for kap in range(4):
        f = KF + 16*kap
        e(f"s_waitcnt lgkmcnt({min(15, 8*(3-kap))})")
        for ct in range(3):
            c = "0" if kap == 0 else f"v[{KD+4*ct}:{KD+4*ct+3}]"
            e(f"v_mfma_f32_16x16x32_bf16 v[{KD+4*ct}:{KD+4*ct+3}], v[{f}:{f+3}], v[{f+4+4*ct}:{f+4+4*ct+3}], {c}")
    subsignal(1)
    vWO = 40
    srd(S_B, 10, 640*1280)
    wo_setup(vWO, 2)
    for ct in range(3):
        e(f"v_cvt_pk_bf16_f32 v{KD+16+2*ct}, v{KD+4*ct}, v{KD+4*ct+1}")
        e(f"v_cvt_pk_bf16_f32 v{KD+16+2*ct+1}, v{KD+4*ct+2}, v{KD+4*ct+3}")
    for ct in range(3):
        e(f"v_min_u32 v{KD+16+2*ct}, -2, v{KD+16+2*ct}")
    for ct in range(3):
        e(f"buffer_store_dwordx2 v[{KD+16+2*ct}:{KD+16+2*ct+1}], v{vPA if ct < 2 else vPB}, s[{S_WS}:{S_WS+3}], s{sPART} offen offset:{128*ct} sc1")
    stamp(5)
    lab = a.newlabel("RC"); lab2 = a.newlabel("RP")
    e(f"""
    s_waitcnt vmcnt(3)
    s_mov_b32 s{sSPIN}, {SPIN_G}
    s_mov_b32 s{sT+1}, {WS_RDY}
    v_cmp_ne_u32 vcc, s{sNONCE}, v{vRF+1}
    s_cbranch_vccz {lab}
{lab2}:
    s_sub_u32 s{sSPIN}, s{sSPIN}, 1
    s_cbranch_scc1 L_end
    buffer_load_dword v{vRF+1}, v{vRF}, s[{S_WS}:{S_WS+3}], s{sT+1} offen sc1
    s_waitcnt vmcnt(0)
    v_cmp_ne_u32 vcc, s{sNONCE}, v{vRF+1}
    s_cbranch_vccnz {lab2}
{lab}:
    """)
    subwait(1)
    e(f"s_mov_b64 exec, s[{sEX}:{sEX+1}]")
    for sg in WO_P2:
        for rd in range(2): wo_dma(sg, rd, vWO)
    e("s_mov_b64 exec, -1")
    PL = 64; SUM = 128
    e(f"""
    v_and_b32 v2, 15, v0
    v_lshlrev_b32 v2, 12, v2           ; r*4096
    s_lshl_b32 s{sT+4}, s{sHP}, 16
    s_add_u32 s{sT+4}, s{sT+4}, {WS_PART}
    s_add_u32 s{sT+5}, s{sT+4}, {((1*6+5)*40+39)*8}
    s_mov_b32 s{sSPIN}, {SPIN_G}
    s_lshl_b32 s{sT}, s{sW4}, 6
    v_add_u32 v6, s{sT}, v0            ; tau
    v_lshlrev_b32 v7, 4, v6
    v_mov_b32 v4, 0x40000000
    v_cmp_gt_u32 vcc, 240, v6
    s_nop 1
    v_cndmask_b32 v7, v4, v7, vcc
    s_branch L_s1_sweep
L_s1_hint:
    s_sub_u32 s{sSPIN}, s{sSPIN}, 1
    s_cbranch_scc1 L_end
    buffer_load_dword v3, v2, s[{S_WS}:{S_WS+3}], s{sT+5} offen sc1
    s_waitcnt vmcnt(0)
    v_cmp_eq_u32 vcc, -1, v3
    s_cbranch_vccnz L_s1_hint
    """)
    a.label("L_s1_sweep")
    stamp(6)
    e(f"""
    s_sub_u32 s{sSPIN}, s{sSPIN}, 1
    s_cbranch_scc1 L_end
    s_mov_b32 s{sT}, s{sT+4}
    """)
    for r in range(16):
        e(f"buffer_load_dwordx4 v[{PL+4*r}:{PL+4*r+3}], v7, s[{S_WS}:{S_WS+3}], s{sT} offen sc1")
        e(f"s_add_u32 s{sT}, s{sT}, 4096")
    for r in range(16):
        e(f"s_waitcnt vmcnt({15-r})")
        if r == 0: e(f"v_max_u32 v{SUM+10}, v{PL}, v{PL+2}")
        else: e(f"v_max3_u32 v{SUM+10}, v{SUM+10}, v{PL+4*r}, v{PL+4*r+2}")
        for i in range(4):
            src = PL + 4*r + i
            if r == 0:
                e(f"v_lshlrev_b32 v{SUM+2*i}, 16, v{src}")
                e(f"v_and_b32 v{SUM+2*i+1}, 0xffff0000, v{src}")
            else:
                e(f"v_lshlrev_b32 v{SUM+8}, 16, v{src}")
                e(f"v_and_b32 v{SUM+9}, 0xffff0000, v{src}")
                e(f"v_add_f32 v{SUM+2*i}, v{SUM+2*i}, v{SUM+8}")
                e(f"v_add_f32 v{SUM+2*i+1}, v{SUM+2*i+1}, v{SUM+9}")
    e(f"""
    v_cmp_eq_u32 vcc, -1, v{SUM+10}
    s_cbranch_vccnz L_s1_hint
    """)
    for i in range(4):
        e(f"v_cvt_pk_bf16_f32 v{SUM+12+i}, v{SUM+2*i}, v{SUM+2*i+1}")
    e(f"""
    v_mul_u32_u24 v4, 205, v6
    v_lshrrev_b32 v4, 12, v4           ; tau/20
    v_mul_u32_u24 v5, 20, v4
    v_sub_u32 v5, v6, v5               ; fp
    v_mul_u32_u24 v5, 96, v5
    v_mul_u32_u24 v8, 43, v4
    v_lshrrev_b32 v8, 8, v8            ; hd
    v_mul_u32_u24 v9, 6, v8
    v_sub_u32 v9, v4, v9               ; dq
    v_mul_u32_u24 v8, 1920, v8
    v_lshlrev_b32 v9, 3, v9
    v_add3_u32 v5, v5, v8, v9
    v_add_u32 v5, {L_KVF}, v5
    v_cmp_gt_u32 vcc, 240, v6
    s_and_saveexec_b64 s[{sEX}:{sEX+1}], vcc
    ds_write_b64 v5, v[{SUM+12}:{SUM+13}]
    ds_write_b64 v5, v[{SUM+14}:{SUM+15}] offset:48
    s_mov_b64 exec, -1
    """)
    subsignal(2)
    subsignal(6)
    stamp(7)
    vWA = 10
    e(f"""
    v_lshrrev_b32 v2, 4, v0            ; G
    v_bfe_u32 v3, v0, 2, 2             ; rp
    v_and_b32 v4, 3, v0                ; c
    v_lshrrev_b32 v5, 1, v2
    v_lshlrev_b32 v5, 4, v5            ; 16*(G>>1)
    v_and_b32 v6, 1, v2
    v_lshlrev_b32 v6, 2, v6            ; 4*(G&1)
    v_add3_u32 v5, v5, v6, v3
    v_mul_u32_u24 v5, 160, v5
    v_lshlrev_b32 v4, 3, v4
    v_add_u32 v{vWA}, v5, v4
    v_add_u32 v{vWA+1}, 0x10000, v{vWA}
    v_add_u32 v{vWA+2}, 0x20000, v{vWA}
    s_and_b32 s{sT}, s{sHP}, 1
    s_lshl_b32 s{sT}, s{sT}, 2
    s_add_u32 s{sT}, s{sT}, s{sW4}     ; tt
    s_lshl_b32 s{sT+1}, s{sRC}, 3
    s_add_u32 s{sT+6}, s{sT}, s{sT+1}
    s_mul_i32 s{sT+4}, s{sT+6}, 20480
    s_add_u32 s{sT+4}, s{sT+4}, {WS_O}
    v_and_b32 v2, 15, v0
    v_lshrrev_b32 v3, 2, v2
    v_mul_u32_u24 v3, 5120, v3
    v_and_b32 v4, 3, v2
    v_lshlrev_b32 v4, 8, v4
    v_add3_u32 v2, v3, v4, 0
    v_add_u32 v2, 4096, v2
    v_lshlrev_b32 v7, 4, v0            ; lane*16
    """)
    OF = 96; OD = 40; AB = [176, 196, 216, 236, 60, 16]
    NB = len(AB)
    def wo_reads(sg):
        L = L_WO(sg); reg = vWA + L // 65536; b = AB[sg % NB]
        assert (L // 65536) == ((L + 1408) // 65536)
        off = L % 65536
        for nt in range(5):
            for rd in range(2):
                e(f"ds_read_b64_tr_b16 v[{b+4*nt+2*rd}:{b+4*nt+2*rd+1}], v{reg} offset:{off + rd*1280 + nt*32}")
    subwait(5, tmp=8)
    subwait(6, tmp=8)
    for sg in range(NB): wo_reads(sg)
    e(f"""
    s_mov_b32 s{sSPIN}, {SPIN_G}
L_s2_hint:
    s_sub_u32 s{sSPIN}, s{sSPIN}, 1
    s_cbranch_scc1 L_end
    buffer_load_dword v3, v2, s[{S_WS}:{S_WS+3}], s{sT+4} offen sc1
    s_waitcnt vmcnt(0)
    v_cmp_eq_u32 vcc, -1, v3
    s_cbranch_vccnz L_s2_hint
    """)
    stamp(8)
    e(f"s_mov_b32 s{sT}, s{sT+4}")
    for sg in range(20):
        d = OF + 4*sg
        e(f"buffer_load_dwordx4 v[{d}:{d+3}], v7, s[{S_WS}:{S_WS+3}], s{sT} offen offset:{(sg%4)*1024} sc1")
        if sg % 4 == 3: e(f"s_add_u32 s{sT}, s{sT}, 4096")
    retries = []
    for sg in range(20):
        e(f"s_waitcnt vmcnt({19-sg}) lgkmcnt({10 if (sg >= 1 and sg + NB - 1 < 20) else 0})")
        o = OF + 4*sg
        a.label(f"L_chk_{sg}")
        e(f"v_max_u32 v2, v{o}, v{o+2}")
        e(f"v_cmp_eq_u32 vcc, -1, v2")
        e(f"s_cbranch_vccnz L_rt_{sg}")
        retries.append(sg)
        for nt in range(5):
            D = OD + 4*nt
            c = "0" if sg == 0 else f"v[{D}:{D+3}]"
            b = AB[sg % NB] + 4*nt
            e(f"v_mfma_f32_16x16x32_bf16 v[{D}:{D+3}], v[{b}:{b+3}], v[{o}:{o+3}], {c}")
        if sg + NB < 20: wo_reads(sg + NB)
    srd(S_B, 12, 2048*1280)
    e(f"""
    v_and_b32 v2, 15, v0
    v_lshrrev_b32 v3, 4, v0
    s_lshl_b32 s{sT}, s{sT+6}, 4
    v_add_u32 v2, s{sT}, v2
    v_mul_u32_u24 v2, 1280, v2
    v_lshlrev_b32 v4, 3, v3
    v_add_u32 v2, v2, v4
    s_lshr_b32 s{sT}, s{sHP}, 1
    s_mul_i32 s{sT}, s{sT}, 160
    """)
    for nt in range(5):
        D = OD + 4*nt; P = 64 + 2*nt
        e(f"v_cvt_pk_bf16_f32 v{P}, v{D}, v{D+1}")
        e(f"v_cvt_pk_bf16_f32 v{P+1}, v{D+2}, v{D+3}")
    for nt in range(5):
        P = 64 + 2*nt
        e(f"buffer_store_dwordx2 v[{P}:{P+1}], v2, s[{S_B}:{S_B+3}], s{sT} offen offset:{32*nt}")
    e("s_branch L_fin")
    for sg in retries:
        o = OF + 4*sg
        a.label(f"L_rt_{sg}")
        e(f"""
        s_sub_u32 s{sSPIN}, s{sSPIN}, 1
        s_cbranch_scc1 L_end
        s_add_u32 s{sT}, s{sT+4}, {sg*1024}
        buffer_load_dwordx4 v[{o}:{o+3}], v7, s[{S_WS}:{S_WS+3}], s{sT} offen sc1
        s_waitcnt vmcnt(0)
        s_branch L_chk_{sg}
        """)

    a.label("L_lq")
    vVX, vVW, vWQ = 10, 11, 12
    vBA = 14
    XF = 64
    e(f"""
    v_lshrrev_b32 v2, 3, v0
    s_lshl_b32 s{sT}, s{sW4}, 3
    v_add_u32 v2, s{sT}, v2
    v_mul_u32_u24 v2, 1280, v2
    v_lshrrev_b32 v3, 4, v0                 ; r = l>>4
    s_and_b32 s{sT}, s{sW4}, 1
    s_lshl_b32 s{sT}, s{sT}, 2
    v_add_u32 v4, s{sT}, v3
    v_and_b32 v5, 7, v0
    v_xor_b32 v5, v5, v4
    v_lshlrev_b32 v5, 4, v5
    v_add_u32 v{vVX}, v2, v5
    v_and_b32 v4, 15, v0
    v_lshlrev_b32 v5, 2, v3
    v_sub_u32 v4, v4, v5
    v_and_b32 v4, 15, v4                    ; pos
    v_lshrrev_b32 v5, 3, v4                 ; seg
    v_bfe_u32 v6, v4, 2, 1                  ; part
    v_and_b32 v7, 3, v4                     ; i4
    v_mul_lo_u32 v8, v6, s{sBB}
    v_add_u32 v8, v8, v7                    ; j
    v_mov_b32 v9, 5
    v_mov_b32 v13, s{sBB}
    v_cmp_eq_u32 vcc, 0, v6
    s_lshl_b32 s{sT}, s{sW4}, 2
    v_add_u32 v2, s{sT}, v3
    v_cndmask_b32 v9, v9, v13, vcc
    v_cmp_lt_u32 vcc, v8, v9
    v_mul_u32_u24 v2, 3840, v2
    v_add_u32 v5, 1, v5
    v_mul_u32_u24 v5, 1280, v5
    v_lshlrev_b32 v8, 4, v8
    v_add3_u32 v{vVW}, v2, v5, v8
    v_mov_b32 v7, 0x40000000
    v_cndmask_b32 v{vVW}, v7, v{vVW}, vcc
    s_mul_i32 s{sSOFX}, s{sRC}, {128*1280}
    s_mul_i32 s{sSOFW}, s{sHP}, 80
    s_lshl_b32 s{sM0}, s{sW4}, 10
    s_waitcnt lgkmcnt(0)
    """)
    srd(S_X, 4, 2048*1280)
    srd(S_W, 6, 640*3840)
    rotmode = [x for x in exp.split(',') if x.startswith('rot')]
    if rotmode:
        rm = rotmode[0]
        if rm == 'rot1': e(f"s_and_b32 s65, s{sHP}, 1")
        elif rm == 'rot5': e(f"s_and_b32 s65, s{sHP}, 1"); e("s_mul_i32 s65, s65, 5")
        elif rm == 'rotrc': e(f"s_and_b32 s65, s{sRC}, 1")
        elif rm == 'rothp': e(f"s_and_b32 s65, s{sHP}, 7")
        elif rm == 'rotmix': e(f"s_xor_b32 s65, s{sHP}, s{sRC}"); e("s_and_b32 s65, s65, 1")
    def issue_stage(s):
        m0b = (s % R) * SLOT
        if rotmode:
            e(f"s_add_u32 s66, s65, {s}")
            e(f"s_sub_u32 s67, s66, 10")
            e(f"s_cmp_ge_u32 s66, 10")
            e(f"s_cselect_b32 s66, s67, s66")
            e(f"s_mul_i32 s67, s66, {64*3840}")
            e(f"s_lshl_b32 s66, s66, 7")
            e(f"s_add_u32 s66, s66, s{sSOFX}")
            e(f"s_add_u32 s67, s67, s{sSOFW}")
            for m in range(4):
                e(f"s_add_u32 m0, s{sM0}, {m0b + m*4096}")
                e(f"s_add_u32 s{sT}, s66, {m*32*1280}")
                e(f"buffer_load_dwordx4 v{vVX}, s[{S_X}:{S_X+3}], s{sT} offen lds")
                e(f"s_add_u32 m0, s{sM0}, {m0b + 16384 + m*4096}")
                e(f"s_add_u32 s{sT}, s67, {m*16*3840}")
                e(f"buffer_load_dwordx4 v{vVW}, s[{S_W}:{S_W+3}], s{sT} offen lds")
            return
        for m in range(4):
            e(f"s_add_u32 m0, s{sM0}, {m0b + m*4096}")
            e(f"s_add_u32 s{sT}, s{sSOFX}, {m*32*1280 + s*128}")
            e(f"buffer_load_dwordx4 v{vVX}, s[{S_X}:{S_X+3}], s{sT} offen lds")
            e(f"s_add_u32 m0, s{sM0}, {m0b + 16384 + m*4096}")
            e(f"s_add_u32 s{sT}, s{sSOFW}, {m*16*3840 + s*64*3840}")
            e(f"buffer_load_dwordx4 v{vVW}, s[{S_W}:{S_W+3}], s{sT} offen lds")
    issue_stage(0)
    srd(S_A, 8, 32*800)
    e(f"""
    v_lshlrev_b32 v2, 4, v0
    s_and_b32 s{sT}, s{sW4}, 1
    s_lshl_b32 s{sT}, s{sT}, 10
    s_add_u32 m0, s{sT}, {L_PHI}
    s_mul_i32 s{sT+1}, s{sHP}, 1600
    s_add_u32 s{sT}, s{sT}, s{sT+1}
    buffer_load_dwordx4 v2, s[{S_A}:{S_A+3}], s{sT} offen lds
    """)
    issue_stage(1)
    srd(S_WS, 16, 0x10000000)
    sPART = 64
    e(f"""
    s_lshl_b32 s{sPART}, s{sHP}, 4
    s_add_u32 s{sPART}, s{sPART}, s{sRC}
    s_lshl_b32 s{sPART}, s{sPART}, 12
    s_add_u32 s{sPART}, s{sPART}, {WS_PART}
    v_mov_b32 v40, -1
    v_mov_b32 v41, -1
    v_mov_b32 v42, -1
    v_mov_b32 v43, -1
    s_lshl_b32 s{sT}, s{sW4}, 6
    v_add_u32 v2, s{sT}, v0            ; tau
    v_lshlrev_b32 v8, 4, v2
    v_mov_b32 v3, 0x40000000
    v_cmp_gt_u32 vcc, 240, v2
    v_lshrrev_b32 v9, 4, v0            ; g = l>>4
    v_and_b32 v44, 15, v0
    v_cndmask_b32 v8, v3, v8, vcc
    v_lshlrev_b32 v44, 4, v44          ; t'*16
    s_lshl_b32 s{sT}, s{sRC}, 3
    s_lshl_b32 s{sT+1}, s{sW4}, 1
    s_add_u32 s{sT}, s{sT}, s{sT+1}
    s_mul_i32 s{sT}, s{sT}, 20480
    s_lshr_b32 s{sT+1}, s{sHP}, 2
    s_mul_i32 s{sT+1}, s{sT+1}, 5120
    s_add_u32 s{sT}, s{sT}, s{sT+1}
    s_and_b32 s{sT+1}, s{sHP}, 3
    s_lshl_b32 s{sT+1}, s{sT+1}, 8
    s_add_u32 s{sT}, s{sT}, s{sT+1}
    s_add_u32 s{sT+3}, s{sT}, {WS_O}
    v_lshlrev_b32 v45, 10, v9
    v_add_u32 v45, v45, v44            ; i=0
    v_mov_b32 v46, 4096
    v_add_u32 v47, -1, v9
    v_lshlrev_b32 v47, 10, v47
    v_add_u32 v47, 20480, v47
    v_cmp_eq_u32 vcc, 0, v9
    s_nop 1
    v_cndmask_b32 v46, v47, v46, vcc
    v_add_u32 v46, v46, v44            ; i=1
    v_add_u32 v47, 3, v9
    v_lshlrev_b32 v47, 10, v47
    v_add_u32 v47, 20480, v47
    v_add_u32 v47, v47, v44
    v_cmp_gt_u32 vcc, 2, v9
    s_nop 1
    v_cndmask_b32 v47, v3, v47, vcc    ; i=2
    buffer_store_dwordx4 v[40:43], v8, s[{S_WS}:{S_WS+3}], s{sPART} offen sc1
    buffer_store_dwordx4 v[40:43], v45, s[{S_WS}:{S_WS+3}], s{sT+3} offen sc1
    buffer_store_dwordx4 v[40:43], v46, s[{S_WS}:{S_WS+3}], s{sT+3} offen sc1
    buffer_store_dwordx4 v[40:43], v47, s[{S_WS}:{S_WS+3}], s{sT+3} offen sc1
    """)
    xfrag_addr(vBA, 2)
    e(f"""
    v_mul_u32_u24 v2, 52, v0
    v_lshrrev_b32 v2, 8, v2
    v_mul_u32_u24 v3, 5, v2
    v_sub_u32 v3, v0, v3
    v_lshlrev_b32 v3, 4, v3
    v_mul_u32_u24 v2, 3840, v2
    v_add_u32 v{vWQ}, v2, v3
    v_cmp_gt_u32 vcc, 40, v0
    s_nop 1
    s_mov_b64 s[{sEX}:{sEX+1}], vcc
    """)
    def issue_wq(i0, i1):
        e(f"s_mov_b64 exec, s[{sEX}:{sEX+1}]")
        e(f"s_mul_i32 s{sT+1}, s{sW4}, 640")
        e(f"s_mul_i32 s{sT+2}, s{sW4}, {8*3840}")
        e(f"s_add_u32 s{sT+2}, s{sT+2}, s{sSOFW}")
        for m in range(i0, i1):
            e(f"s_add_u32 m0, s{sT+1}, {L_WQ + m*4*640}")
            e(f"s_add_u32 s{sT}, s{sT+2}, {m*32*3840}")
            e(f"buffer_load_dwordx4 v{vWQ}, s[{S_W}:{S_W+3}], s{sT} offen lds")
        e("s_mov_b64 exec, -1")
    base = Base([vBA, vBA+1, vBA+2, vBA+3])
    stamp(1)
    for s in range(NST):
        if s <= 1: e("s_waitcnt vmcnt(12) lgkmcnt(0)")
        elif s <= 8: e("s_waitcnt vmcnt(8) lgkmcnt(0)")
        else: e("s_waitcnt vmcnt(10) lgkmcnt(0)")
        e("s_barrier")
        sstamp(s+1)
        if s == 0: stamp(2)
        sb = base.set(s)
        for kk in range(4):
            d = XF + 16*s + 4*kk
            e(f"ds_read_b128 v[{d}:{d+3}], v{vBA+kk} offset:{sb}")
        if s + 2 < NST: issue_stage(s+2)
        elif s == 8: issue_wq(0, 10)
        else: issue_wq(10, 20)
    QA = 224; vQA = 18; vWO = 56
    lane_decomp32(2, 3, 4, 5, 6)
    e(f"""
    v_lshrrev_b32 v7, 1, v2
    v_lshlrev_b32 v7, 3, v7
    v_add_u32 v7, v7, v3
    v_mul_u32_u24 v7, 80, v7
    v_mul_u32_u24 v6, 40, v6
    v_add_u32 v7, v7, v6
    v_add_u32 v7, {L_WQ}, v7
    v_lshlrev_b32 v5, 3, v5
    v_add_u32 v{vQA}, v7, v5
    v_add_u32 v{vQA+1}, 32, v7
    """)
    srd(S_B, 10, 640*1280)
    wo_setup(vWO, 2)
    e("s_waitcnt vmcnt(10) lgkmcnt(0)")
    e("s_barrier")
    if 'prio' in exp: e("s_setprio 1")
    stamp(3)
    if 'p1only' in exp:
        e("s_waitcnt vmcnt(0)")
        e("s_branch L_fin")
    QF3 = [32, 40, 48]
    def q_reads3(k):
        b = QF3[k % 3]
        for T in range(2):
            for rd in range(2):
                e(f"ds_read_b64_tr_b16 v[{b+4*T+2*rd}:{b+4*T+2*rd+1}], v{vQA+T} offset:{(16*k+4*rd)*80}")
    wolist = [(sg, rd) for sg in WO_P1 for rd in range(2)]
    nwo = 0
    q_reads3(0); q_reads3(1)
    for k in range(40):
        if k + 2 < 40:
            q_reads3(k+2)
            e("s_waitcnt lgkmcnt(8)")
        elif k + 1 < 40: e("s_waitcnt lgkmcnt(4)")
        else: e("s_waitcnt lgkmcnt(0)")
        for T in range(2):
            c = "0" if k == 0 else f"v[{QA+16*T}:{QA+16*T+15}]"
            b = QF3[k % 3]
            e(f"v_mfma_f32_32x32x16_bf16 v[{QA+16*T}:{QA+16*T+15}], v[{b+4*T}:{b+4*T+3}], v[{XF+4*k}:{XF+4*k+3}], {c}")
        if k == 17:
            e(f"s_waitcnt vmcnt({nwo})")
            subbar(3, tmp=60)
        if k >= 6 and nwo < len(wolist):
            e(f"s_mov_b64 exec, s[{sEX}:{sEX+1}]")
            wo_dma(*wolist[nwo], vWO); nwo += 1
            e("s_mov_b64 exec, -1")
    assert nwo == len(wolist), nwo
    if 'prio' in exp: e("s_setprio 0")
    stamp(5)
    WF = 64; QB = 88; PQ0 = 100; PQ1 = 116; EP = 132; EN = 152; PH = 172; TM = 192
    wphi_frags(WF, 20, 22)
    if dump == "qacc":
        e("s_nop 7"); dump_regs([QA+i for i in range(20)], 0)
    for j in range(5):
        src = QA + 4*j if j < 4 else QA + 16
        e(f"v_cvt_pk_bf16_f32 v{QB+2*j}, v{src}, v{src+1}")
        e(f"v_cvt_pk_bf16_f32 v{QB+2*j+1}, v{src+2}, v{src+3}")
    e(f"v_mov_b32 v{QB+10}, 0"); e(f"v_mov_b32 v{QB+11}, 0")
    e("s_waitcnt lgkmcnt(0)")
    feature_map(QB, WF, PQ0, PQ1)
    vOA = 20
    lane_decomp32(2, 3, 4, 5, 6)
    e(f"""
    v_mul_u32_u24 v7, 1920, v6
    v_mul_u32_u24 v8, 48, v3
    v_lshlrev_b32 v9, 3, v5
    v_add3_u32 v7, v7, v8, v9
    v_add_u32 v7, {L_KVF}, v7
    v_lshrrev_b32 v8, 1, v2
    v_mov_b32 v9, {L_ZERO}
    v_cmp_eq_u32 vcc, v8, v6
    s_nop 1
    v_cndmask_b32 v{vOA}, v9, v7, vcc
    v_cmp_gt_u32 s[{sEX}:{sEX+1}], 2, v5
    s_nop 1
    s_and_b64 vcc, vcc, s[{sEX}:{sEX+1}]
    v_add_u32 v7, 32, v7
    s_nop 0
    v_cndmask_b32 v{vOA+1}, v9, v7, vcc
    v_and_b32 v2, 15, v0
    v_lshlrev_b32 v2, 4, v2
    v_bfe_u32 v3, v0, 4, 1
    v_mul_u32_u24 v3, 20480, v3
    v_add_u32 v2, v2, v3
    v_lshrrev_b32 v4, 5, v0            ; h
    v_lshlrev_b32 v5, 11, v4           ; c5 = 2h -> 2h*1024
    v_add_u32 v22, v5, v2
    v_lshlrev_b32 v6, 3, v4
    v_add_u32 v23, v6, v2
    s_lshl_b32 s{sT+4}, s{sRC}, 3
    s_lshl_b32 s{sT+1}, s{sW4}, 1
    s_add_u32 s{sT+4}, s{sT+4}, s{sT+1}
    s_mul_i32 s{sT+4}, s{sT+4}, 20480
    s_lshr_b32 s{sT+1}, s{sHP}, 2
    s_mul_i32 s{sT+1}, s{sT+1}, 5120
    s_add_u32 s{sT+4}, s{sT+4}, s{sT+1}
    s_and_b32 s{sT+1}, s{sHP}, 3
    s_lshl_b32 s{sT+1}, s{sT+1}, 8
    s_add_u32 s{sT+4}, s{sT+4}, s{sT+1}
    s_add_u32 s{sT+4}, s{sT+4}, {WS_O}
    s_add_u32 s{sT+5}, s{sT+4}, 4096
    """)
    softmax_pair(PQ0, PQ1, EP, EN, PH, TM)
    if dump == "phiq": dump_regs([PH+i for i in range(20)], 0)
    e("s_waitcnt vmcnt(0)")
    subsignal(5)
    stamp(6)
    subwait(2)
    stamp(7)
    KA = 64; N0 = 104; N1 = 120
    for st in range(5):
        for U in range(2):
            for rd in range(2):
                d = KA + (U*5+st)*4 + 2*rd
                e(f"ds_read_b64_tr_b16 v[{d}:{d+1}], v{vOA+U} offset:{(8*st+4*rd)*48}")
    for st in range(5):
        e(f"s_waitcnt lgkmcnt({min(15, 4*(4-st))})")
        for U, N in ((0, N0), (1, N1)):
            c = "0" if st == 0 else f"v[{N}:{N+15}]"
            d = KA + (U*5+st)*4
            e(f"v_mfma_f32_32x32x16_bf16 v[{N}:{N+15}], v[{d}:{d+3}], v[{PH+4*st}:{PH+4*st+3}], {c}")
    e("s_nop 7")
    e("s_nop 3")
    e(f"v_add_f32 v8, 0x358637bd, v{N1+4}")
    e("v_rcp_f32 v8, v8")
    e("s_nop 0")
    OB = 136
    for i in range(8):
        e(f"v_mul_f32 v{N0+2*i}, v{N0+2*i}, v8"); e(f"v_mul_f32 v{N0+2*i+1}, v{N0+2*i+1}, v8")
        e(f"v_cvt_pk_bf16_f32 v{OB+i}, v{N0+2*i}, v{N0+2*i+1}")
    for i in range(2):
        e(f"v_mul_f32 v{N1+2*i}, v{N1+2*i}, v8"); e(f"v_mul_f32 v{N1+2*i+1}, v{N1+2*i+1}, v8")
        e(f"v_cvt_pk_bf16_f32 v{OB+8+i}, v{N1+2*i}, v{N1+2*i+1}")
    for i in (0, 2, 4, 6, 8):
        e(f"v_min_u32 v{OB+i}, -2, v{OB+i}")
    e(f"""
    buffer_store_dwordx4 v[{OB}:{OB+3}], v22, s[{S_WS}:{S_WS+3}], s{sT+4} offen sc1
    buffer_store_dwordx4 v[{OB+4}:{OB+7}], v22, s[{S_WS}:{S_WS+3}], s{sT+4} offen offset:1024 sc1
    buffer_store_dwordx2 v[{OB+8}:{OB+9}], v23, s[{S_WS}:{S_WS+3}], s{sT+5} offen sc1
    """)
    a.label("L_fin")
    if until:
        e(f"""
        s_waitcnt vmcnt(0) lgkmcnt(0)
L_until:
        s_memrealtime s[94:95]
        s_waitcnt lgkmcnt(0)
        s_sub_u32 s96, s94, s98
        s_cmp_lt_u32 s96, {until}
        s_cbranch_scc1 L_until
        """)
    if stamps:
        stamp(10)
        e("s_waitcnt vmcnt(0)")
        e(f"""
        s_waitcnt lgkmcnt(0)
        s_lshl_b32 s{sT}, s2, 3
        s_add_u32 s{sT}, s{sT}, s{sWAVE}
        s_lshl_b32 s{sT}, s{sT}, 6
        s_add_u32 s{sT}, s{sT}, {WS_STAMP}
        v_mov_b32 v2, 0
        """)
        for i in range(NS): e(f"v_mov_b32 v{20+i}, s{sST+2*i}")
        e(f"""
        s_mov_b64 exec, 1
        buffer_store_dwordx4 v[20:23], v2, s[{S_WS}:{S_WS+3}], s{sT} offen
        buffer_store_dwordx4 v[24:27], v2, s[{S_WS}:{S_WS+3}], s{sT} offen offset:16
        buffer_store_dwordx4 v[28:31], v2, s[{S_WS}:{S_WS+3}], s{sT} offen offset:32
        """)
    if dbgwg >= 0:
        e(f"""
        s_cmp_lg_u32 s2, {dbgwg}
        s_cbranch_scc1 L_end
        s_cmp_lg_u32 s{sWAVE}, {dbgwave}
        s_cbranch_scc1 L_end
        s_mov_b64 exec, -1
        s_mov_b32 s72, s14
        s_and_b32 s73, s15, 0xffff
        s_mov_b32 s74, 256
        s_mov_b32 s75, 0x20000
        """)
        for i in range(1, NS):
            e(f"s_sub_u32 s{sT}, s{sST+2*i}, s{sST}")
            e(f"v_mov_b32 v{20+i}, s{sT}")
        e("v_mov_b32 v2, 0")
        e("s_mov_b64 exec, 1")
        for i in range(1, NS):
            e(f"buffer_store_dword v{20+i}, v2, s[72:75], 0 offen offset:{4*i}")
    a.label("L_end")
    e("s_endpgm")
    hdr = HEADER + f"; @launch grid=(256,1,1) block=(512,1,1) lds={LDS_BYTES}\n"
    return hdr + f""".amdgcn_target "amdgcn-amd-amdhsa--gfx950"
.text
.globl {KN}
.p2align 8
.type {KN},@function
{KN}:
""" + a.text() + """.section .rodata,"a"
""" + kernel_desc(KN, 256, 102, 256)

if __name__ == "__main__":
    import argparse
    ap = argparse.ArgumentParser()
    ap.add_argument("--stamps", action="store_true")
    ap.add_argument("--dump", default=None)
    ap.add_argument("--stagest", action="store_true")
    ap.add_argument("--exp", default="")
    ap.add_argument("--until", type=int, default=0)
    ap.add_argument("--dbgwg", type=int, default=-1)
    ap.add_argument("--dbgwave", type=int, default=0)
    ap.add_argument("--pf", default="all")
    args = ap.parse_args()
    if args.pf == "none": PF = False
    else: PFS = {"all": PFS_ALL, "a": PFS_A, "b": PFS_B, "c": PFS_C}[args.pf]
    print(gen(stamps=args.stamps, dump=args.dump, stagest=args.stagest, exp=args.exp, until=args.until, dbgwg=args.dbgwg, dbgwave=args.dbgwave))
```

```python
import sys
from asmlib import *
from lay2 import TKV, TQ

KN = "standalone__linear_kernel_hedgehog__prompt_kernel"
NST = 10
SLOT = 32768
R = 3
L_WQ = 98304
L_PHI = 149504
L_ZERO = 151552
L_CNT = 153600
L_KVF = 154624
L_PK = 32768
L_WO19 = 158464
LDS_BYTES = 163840
def L_WO(sg): return sg*5120 if sg <= 18 else L_WO19
WO_P1 = [0,1,2,3,4,5,13,14,15,16,17,18,19]
WO_P2 = [6,7,8,9,10,11,12]
WS_PART = 0x000000
WS_O = 0x100000
WS_RDY = 0x400000
WS_STAMP = 0x700000
WS_DBG = 0x800000
PF = True
TLB = True
GPF = False
GPF_FLAGS = ''
GPF_MODE = 'early'
PFS_ALL = {'pre': [('x',2),('kv',2),('x',6),('kv',5),('kv',8),('q',0),('q',1),('wo',0),('wo',1)]}
PFS_A = {'pre': [('x',2),('kv',2),('kv',5)], 0: [('x',6),('kv',8),('q',0),('q',1)], 2: [('wo',0),('wo',1)]}
PFS_B = {'pre': [('x',2),('kv',2)], 0: [('kv',5),('x',6)], 1: [('kv',8),('q',0),('q',1)], 3: [('wo',0),('wo',1)]}
PFS_C = {'pre': [('x',0),('kv',0),('x',4),('kv',3),('kv',6),('x',8),('kv',9),('q',0),('q',1)], 2: [('wo',0),('wo',1)]}
def mk_sched(D, first=2, qat=4, woat=6):
    sc = {'pre': [('st', None)] * (D - first + 0)}
    nxt = D
    for st in range(10):
        lst = []
        if nxt < 10: lst.append(('st', None)); nxt += 1
        if st == qat: lst += [('q',0)]
        if st == qat+1: lst += [('q',1)]
        if st == woat: lst += [('wo',0)]
        if st == woat+1: lst += [('wo',1)]
        sc[st] = lst
    return sc
PF_FIRST = 2
CODE_LINES = 224
PFS = mk_sched(5)
LOG2E = 0x3fb8aa3b
NLOG2E = 0xbfb8aa3b
SPIN_G = 0x8000
SPIN_L = 0x80000

def gen(stamps=False, dump=None, stagest=False, exp='', until=0, dbgwg=-1, dbgwave=0):
    a = Asm(); e = a.e
    S_X, S_W, S_WS = 20, 24, 28
    S_A, S_B = 72, 76
    sWAVE, sW4, sRC, sHP, sBB = 32, 33, 34, 35, 36
    sT = 40
    sSOFX, sSOFW, sM0 = 52, 53, 54
    sNONCE = 55
    sL = 56
    sEX = 58
    sSPIN = 60
    sU, sV = 62, 63
    sST = 80
    NS = 11
    def sstamp(i):
        if stagest: e(f"s_memtime s[{sST+2*i}:{sST+2*i+1}]")
    def stamp(i):
        if stamps and not (stagest and i > 0): e(f"s_memtime s[{sST+2*i}:{sST+2*i+1}]")
    def rstamp(i):
        if stamps and not stagest: e(f"s_memrealtime s[{sST+2*i}:{sST+2*i+1}]")
    def srd(dst, ptr, nbytes):
        e(f"""
        s_mov_b32 s{dst}, s{ptr}
        s_and_b32 s{dst+1}, s{ptr+1}, 0xffff
        s_mov_b32 s{dst+2}, {nbytes}
        s_mov_b32 s{dst+3}, 0x20000
        """)
    def subsignal(idx, tmp=2):
        e(f"""
        v_mov_b32 v{tmp}, {L_CNT + 4*idx}
        v_mov_b32 v{tmp+1}, 1
        s_mov_b64 exec, 1
        ds_add_u32 v{tmp}, v{tmp+1}
        s_mov_b64 exec, -1
        """)
    def subwait(idx, target=4, tmp=2):
        lab = a.newlabel("SW")
        e(f"v_mov_b32 v{tmp}, {L_CNT + 4*idx}")
        e(f"s_mov_b32 s{sSPIN}, {SPIN_L}")
        a.label(lab)
        e(f"""
        s_sub_u32 s{sSPIN}, s{sSPIN}, 1
        s_cbranch_scc1 L_end
        ds_read_b32 v{tmp+1}, v{tmp}
        s_waitcnt lgkmcnt(0)
        v_readfirstlane_b32 s{sT}, v{tmp+1}
        s_nop 0
        s_cmp_lt_u32 s{sT}, {target}
        s_cbranch_scc1 {lab}
        """)
    def subbar(idx, target=4, tmp=2):
        subsignal(idx, tmp); subwait(idx, target, tmp)
    def dump_regs(regs, off):
        n = len(regs)
        e(f"""
        s_lshl_b32 s{sT}, s2, 3
        s_add_u32 s{sT}, s{sT}, s{sWAVE}
        s_mul_i32 s{sT}, s{sT}, {n*256}
        s_add_u32 s{sT}, s{sT}, {WS_DBG + off}
        v_lshlrev_b32 v2, 2, v0
        """)
        for i, r in enumerate(regs):
            e(f"buffer_store_dword v{r}, v2, s[{S_WS}:{S_WS+3}], s{sT} offen offset:{(i%16)*256}")
            if i % 16 == 15: e(f"s_add_u32 s{sT}, s{sT}, 4096")
        e("s_waitcnt vmcnt(0)")
    def softmax_pair(P0, P1, EP, EN, PH, tm):
        p = [P0 + i for i in range(16)] + [P1 + i for i in range(4)]
        tM, tN, tA, tB = tm, tm+1, tm+2, tm+4
        e(f"v_max3_f32 v{tM}, v{p[0]}, v{p[1]}, v{p[2]}")
        e(f"v_min3_f32 v{tN}, v{p[0]}, v{p[1]}, v{p[2]}")
        for i in range(3, 19, 2):
            e(f"v_max3_f32 v{tM}, v{tM}, v{p[i]}, v{p[i+1]}")
            e(f"v_min3_f32 v{tN}, v{tN}, v{p[i]}, v{p[i+1]}")
        e(f"v_max_f32 v{tM}, v{tM}, v{p[19]}")
        e(f"v_min_f32 v{tN}, v{tN}, v{p[19]}")
        e(f"v_mul_f32 v{tA}, {NLOG2E:#x}, v{tM}")
        e(f"v_mul_f32 v{tB}, {LOG2E:#x}, v{tN}")
        for i in range(20):
            e(f"v_fma_f32 v{EP+i}, v{p[i]}, s{sL}, v{tA}")
            e(f"v_fma_f32 v{EN+i}, -v{p[i]}, s{sL}, v{tB}")
        for i in range(20):
            e(f"v_exp_f32 v{EP+i}, v{EP+i}")
            e(f"v_exp_f32 v{EN+i}, v{EN+i}")
        e(f"v_add_f32 v{tA}, v{EP}, v{EP+1}"); e(f"v_add_f32 v{tB}, v{EN}, v{EN+1}")
        e(f"v_add_f32 v{tA+1}, v{EP+2}, v{EP+3}"); e(f"v_add_f32 v{tB+1}, v{EN+2}, v{EN+3}")
        for i in range(4, 20, 2):
            e(f"v_add_f32 v{tA}, v{tA}, v{EP+i}"); e(f"v_add_f32 v{tB}, v{tB}, v{EN+i}")
            e(f"v_add_f32 v{tA+1}, v{tA+1}, v{EP+i+1}"); e(f"v_add_f32 v{tB+1}, v{tB+1}, v{EN+i+1}")
        e(f"v_add_f32 v{tA}, v{tA}, v{tA+1}")
        e(f"v_add_f32 v{tB}, v{tB}, v{tB+1}")
        e(f"v_rcp_f32 v{tA}, v{tA}")
        e(f"v_rcp_f32 v{tB}, v{tB}")
        e("s_nop 0")
        for i in range(10):
            e(f"v_mul_f32 v{EP+2*i}, v{EP+2*i}, v{tA}"); e(f"v_mul_f32 v{EP+2*i+1}, v{EP+2*i+1}, v{tA}")
            e(f"v_mul_f32 v{EN+2*i}, v{EN+2*i}, v{tB}"); e(f"v_mul_f32 v{EN+2*i+1}, v{EN+2*i+1}, v{tB}")
            e(f"v_cvt_pk_bf16_f32 v{PH+i}, v{EP+2*i}, v{EP+2*i+1}")
            e(f"v_cvt_pk_bf16_f32 v{PH+10+i}, v{EN+2*i}, v{EN+2*i+1}")
    def lane_decomp32(vG, vrp, vc, vQ, vhh):
        e(f"""
        v_lshrrev_b32 v{vG}, 4, v0
        v_bfe_u32 v{vrp}, v0, 2, 2
        v_and_b32 v{vc}, 3, v0
        v_and_b32 v{vQ}, 1, v{vG}
        v_lshlrev_b32 v{vQ}, 1, v{vQ}
        v_lshrrev_b32 v{vhh}, 1, v{vc}
        v_add_u32 v{vQ}, v{vQ}, v{vhh}
        v_and_b32 v{vhh}, 1, v{vc}
        """)
    def wphi_frags(WF, va, t):
        vG, vrp, vc, vQ, vhh = t, t+1, t+2, t+3, t+4
        lane_decomp32(vG, vrp, vc, vQ, vhh)
        e(f"""
        v_mul_u32_u24 v{t+5}, 800, v{vhh}
        v_mul_u32_u24 v{t+6}, 40, v{vrp}
        v_add_u32 v{t+5}, v{t+5}, v{t+6}
        v_lshlrev_b32 v{t+6}, 3, v{vQ}
        v_add_u32 v{t+5}, v{t+5}, v{t+6}
        v_add_u32 v{t+5}, {L_PHI}, v{t+5}
        v_lshrrev_b32 v{t+6}, 1, v{vG}
        v_mov_b32 v{va+1}, {L_ZERO}
        v_cmp_eq_u32 vcc, v{t+6}, v{vhh}
        s_nop 1
        v_cndmask_b32 v{va}, v{va+1}, v{t+5}, vcc
        v_cmp_eq_u32 s[{sEX}:{sEX+1}], 0, v{vQ}
        s_nop 1
        s_and_b64 vcc, vcc, s[{sEX}:{sEX+1}]
        v_add_u32 v{t+5}, 32, v{t+5}
        s_nop 0
        v_cndmask_b32 v{va+1}, v{va+1}, v{t+5}, vcc
        """)
        for u in range(2):
            for step in range(3):
                for rd in range(2):
                    d = WF + u*12 + step*4 + 2*rd
                    if step == 2 and rd == 1:
                        e(f"v_mov_b32 v{d}, 0"); e(f"v_mov_b32 v{d+1}, 0")
                    else:
                        e(f"ds_read_b64_tr_b16 v[{d}:{d+1}], v{va+u} offset:{(8*step+4*rd)*40}")
    def feature_map(SRC, WF, P0, P1):
        for step in range(3):
            for u, P in ((0, P0), (1, P1)):
                c = "0" if step == 0 else f"v[{P}:{P+15}]"
                e(f"v_mfma_f32_32x32x16_bf16 v[{P}:{P+15}], v[{WF+u*12+step*4}:{WF+u*12+step*4+3}], v[{SRC+4*step}:{SRC+4*step+3}], {c}")
    def xfrag_addr(vBA, t):
        e(f"""
        v_and_b32 v{t}, 31, v0
        v_lshrrev_b32 v{t+1}, 5, v0
        v_bfe_u32 v{t+2}, v{t}, 1, 3
        v_xor_b32 v{t+2}, v{t+2}, v{t+1}
        v_lshlrev_b32 v{t+2}, 4, v{t+2}
        s_lshl_b32 s{sT}, s{sW4}, 5
        v_add_u32 v{t}, s{sT}, v{t}
        v_lshlrev_b32 v{t}, 7, v{t}
        v_add_u32 v{vBA}, v{t}, v{t+2}
        v_xor_b32 v{vBA+1}, 32, v{vBA}
        v_xor_b32 v{vBA+2}, 64, v{vBA}
        v_xor_b32 v{vBA+3}, 96, v{vBA}
        """)
    class Base:
        def __init__(self, regs): self.regs = regs; self.cur = 0
        def set(self, s):
            so = (s % R) * SLOT
            want = (so // 65536) * 65536
            if want != self.cur:
                d = (want - self.cur) & 0xffffffff
                for r in self.regs: e(f"v_add_u32 v{r}, {d}, v{r}")
                self.cur = want
            return so - self.cur
    def wo_setup(vWO, t):
        e(f"""
        v_mul_u32_u24 v{t}, 26, v0
        v_lshrrev_b32 v{t}, 8, v{t}          ; l/10 for l<64
        v_mul_u32_u24 v{t+1}, 10, v{t}
        v_sub_u32 v{t+1}, v0, v{t+1}
        v_lshlrev_b32 v{t+1}, 4, v{t+1}
        v_mul_u32_u24 v{t}, 1280, v{t}
        v_add_u32 v{vWO}, v{t}, v{t+1}
        v_cmp_gt_u32 vcc, 40, v0
        s_lshr_b32 s{sU}, s{sHP}, 1
        s_mul_i32 s{sU}, s{sU}, 160
        s_mul_i32 s{sV}, s{sW4}, {40*1280}
        s_add_u32 s{sU}, s{sU}, s{sV}        ; + G*40 rows
        s_lshr_b32 s{sV}, s{sW4}, 1
        s_lshl_b32 s{sV}, s{sV}, 4
        s_and_b32 s{sT}, s{sW4}, 1
        s_lshl_b32 s{sT}, s{sT}, 2
        s_add_u32 s{sV}, s{sV}, s{sT}
        s_mul_i32 s{sV}, s{sV}, 160          ; pi0*160
        s_mov_b64 s[{sEX}:{sEX+1}], vcc
        """)
    def wo_dma(sg, rd, vWO):
        blk, c5 = divmod(sg, 5)
        if c5 < 4: row = 160*blk + [0, 8, 20, 28][c5] + 4*rd
        else: row = 160*blk + 16 + 20*rd
        e(f"s_add_u32 m0, s{sV}, {L_WO(sg) + rd*8*160}")
        e(f"s_add_u32 s{sT}, s{sU}, {row*1280}")
        e(f"buffer_load_dwordx4 v{vWO}, s[{S_B}:{S_B+3}], s{sT} offen lds")

    e(f"""
    s_load_dwordx8 s[4:11], s[0:1], 0
    s_load_dwordx4 s[12:15], s[0:1], 32
    s_load_dwordx2 s[16:17], s[0:1], 48
    s_cmp_ge_u32 s2, 256
    s_cbranch_scc1 L_end
    """)
    if 'half' in exp:
        e("s_bitcmp1_b32 s2, 6")
        e("s_cbranch_scc1 L_end")
    if 'quarter' in exp:
        e("s_and_b32 s40, s2, 0x60")
        e("s_cmp_lg_u32 s40, 0")
        e("s_cbranch_scc1 L_end")
    stamp(0); rstamp(9)
    if until: e("s_memrealtime s[98:99]")
    e(f"""
    v_lshrrev_b32 v1, 6, v0
    v_and_b32 v0, 63, v0
    s_and_b32 s{sT}, s2, 7
    s_lshr_b32 s{sT+1}, s2, 3
    v_readfirstlane_b32 s{sWAVE}, v1
    s_lshr_b32 s{sRC}, s{sT}, 1
    s_lshl_b32 s{sRC}, s{sRC}, 2
    s_lshr_b32 s{sT+2}, s{sT+1}, 3
    s_add_u32 s{sRC}, s{sRC}, s{sT+2}
    s_and_b32 s{sHP}, s{sT}, 1
    s_lshl_b32 s{sHP}, s{sHP}, 3
    s_and_b32 s{sT+2}, s{sT+1}, 7
    s_add_u32 s{sHP}, s{sHP}, s{sT+2}
    s_and_b32 s{sW4}, s{sWAVE}, 3
    s_mul_i32 s{sBB}, s{sHP}, 5
    s_and_b32 s{sBB}, s{sBB}, 7
    s_sub_u32 s{sBB}, 8, s{sBB}
    s_min_u32 s{sBB}, s{sBB}, 4
    s_mov_b32 s{sL}, {LOG2E:#x}
    s_cmp_ge_u32 s{sWAVE}, 4
    s_cbranch_scc1 L_lq
    """)

    ACC = 64; FB = [112, 128]; WF = 144; KB = 168; VB = 180; PK0 = 192; PK1 = 208; EP = 224; EN = 112; PH = 64; TM = 244
    vAA = 10; vBA = 14
    vPA, vPB = 34, 35
    sPART = 64
    e(f"""
    s_lshl_b32 s{sPART}, s{sHP}, 4
    s_add_u32 s{sPART}, s{sPART}, s{sRC}
    s_lshl_b32 s{sPART}, s{sPART}, 12
    s_add_u32 s{sPART}, s{sPART}, {WS_PART}
    s_waitcnt lgkmcnt(0)
    """)
    if TLB:
        e(f"""
        v_mov_b32 v2, s4
        v_mov_b32 v3, s5
        """)
        for lane, (lo, off) in {2: (6,0), 3: (6,1), 4: (8,0), 5: (10,0), 6: (12,0), 7: (12,1), 8: (16,0), 9: (16,1), 10: (14,0)}.items():
            pass
        e(f"""
        v_writelane_b32 v2, s6, 2
        v_writelane_b32 v3, s7, 2
        v_writelane_b32 v2, s6, 3
        v_writelane_b32 v3, s7, 3
        v_writelane_b32 v2, s8, 4
        v_writelane_b32 v3, s9, 4
        v_writelane_b32 v2, s10, 5
        v_writelane_b32 v3, s11, 5
        v_writelane_b32 v2, s12, 6
        v_writelane_b32 v3, s13, 6
        v_writelane_b32 v2, s12, 7
        v_writelane_b32 v3, s13, 7
        v_writelane_b32 v2, s16, 8
        v_writelane_b32 v3, s17, 8
        v_writelane_b32 v2, s16, 9
        v_writelane_b32 v3, s17, 9
        v_writelane_b32 v2, s14, 10
        v_writelane_b32 v3, s15, 10
        s_mov_b32 s{sT}, 0x28a
        s_mov_b32 s{sT+1}, 0
        v_mov_b32 v4, 0
        v_mov_b32 v5, 0x200000
        s_mov_b64 vcc, s[{sT}:{sT+1}]
        v_cndmask_b32 v4, v4, v5, vcc
        v_add_co_u32 v2, vcc, v2, v4
        s_nop 1
        v_addc_co_u32 v3, vcc, 0, v3, vcc
        s_mov_b64 exec, 0x7ff
        global_load_dword v47, v[2:3], off
        s_mov_b64 exec, -1
        """)
    def gpf_linear():
            e(f"""
            s_cmp_eq_u32 s{sW4}, 3
            s_cbranch_scc1 L_gpf_done
            s_lshl_b32 s{sT}, s{sW4}, 6
            v_add_u32 v2, s{sT}, v0                 ; n
            s_mul_i32 s{sT}, s2, 80
            s_mul_i32 s{sT+1}, s2, 75
            s_mul_i32 s{sT+2}, s2, 25
            s_sub_u32 s{sT+1}, s{sT+1}, 80
            s_sub_u32 s{sT+2}, s{sT+2}, 155
            v_mov_b32 v3, s{sT+2}
            v_mov_b32 v4, s10
            v_mov_b32 v5, s11
            v_mov_b32 v6, s{sT+1}
            v_mov_b32 v7, s6
            v_mov_b32 v8, s7
            v_cmp_gt_u32 vcc, 155, v2
            s_nop 1
            v_cndmask_b32 v3, v3, v6, vcc
            v_cndmask_b32 v4, v4, v7, vcc
            v_cndmask_b32 v5, v5, v8, vcc
            v_mov_b32 v6, s{sT}
            v_mov_b32 v7, s4
            v_mov_b32 v8, s5
            v_cmp_gt_u32 vcc, 80, v2
            s_nop 1
            v_cndmask_b32 v3, v3, v6, vcc
            v_cndmask_b32 v4, v4, v7, vcc
            v_cndmask_b32 v5, v5, v8, vcc
            v_add_u32 v3, v3, v2
            v_lshlrev_b32 v3, 7, v3
            v_add_co_u32 v4, vcc, v4, v3
            s_nop 1
            v_addc_co_u32 v5, vcc, 0, v5, vcc
            v_cmp_gt_u32 vcc, 180, v2
            s_nop 1
            s_mov_b64 exec, vcc
            global_load_dword v48, v[4:5], off {GPF_FLAGS}
            s_mov_b64 exec, -1
    L_gpf_done:
            """)

    def gpf_k(wave):
        lab = a.newlabel("GK")
        s0 = [2, 5, 8][wave]; ns = [3, 3, 2][wave]
        nx = 8*ns; nwl = ns*1920; per = (nwl + 255)//256
        e(f"""
        s_cmp_lg_u32 s{sW4}, {wave}
        s_cbranch_scc1 {lab}
        ; x lanes [0,{nx}): row = 8*wg + l/{ns}, line = {s0} + l%{ns}
        v_mul_u32_u24 v2, {86 if ns == 3 else 128}, v0
        v_lshrrev_b32 v2, 8, v2                  ; l/ns
        v_mul_u32_u24 v3, {ns}, v2
        v_sub_u32 v3, v0, v3                     ; l%ns
        s_lshl_b32 s{sT}, s2, 3
        v_add_u32 v2, s{sT}, v2
        v_mul_u32_u24 v2, 10, v2
        v_add3_u32 v2, v2, v3, {s0}
        s_mul_i32 s{sT}, s2, {nwl}
        s_lshr_b32 s{sT}, s{sT}, 8
        v_subrev_u32 v3, {nx}, v0
        v_add_u32 v3, s{sT}, v3
        v_min_u32 v3, {nwl-1}, v3
        v_add_u32 v3, {s0*1920}, v3
        ; wo lanes: line = 25*wg + (l - {nx+per})
        s_mul_i32 s{sT}, s2, 25
        v_subrev_u32 v4, {nx+per}, v0
        v_add_u32 v4, s{sT}, v4
        v_mov_b32 v5, s10
        v_mov_b32 v6, s11
        v_mov_b32 v7, s6
        v_mov_b32 v8, s7
        v_cmp_gt_u32 vcc, {nx+per}, v0
        s_nop 1
        v_cndmask_b32 v4, v4, v3, vcc
        v_cndmask_b32 v5, v5, v7, vcc
        v_cndmask_b32 v6, v6, v8, vcc
        v_mov_b32 v7, s4
        v_mov_b32 v8, s5
        v_cmp_gt_u32 vcc, {nx}, v0
        s_nop 1
        v_cndmask_b32 v4, v4, v2, vcc
        v_cndmask_b32 v5, v5, v7, vcc
        v_cndmask_b32 v6, v6, v8, vcc
        v_lshlrev_b32 v4, 7, v4
        v_add_co_u32 v5, vcc, v5, v4
        s_nop 1
        v_addc_co_u32 v6, vcc, 0, v6, vcc
        v_mov_b32 v4, v5
        v_mov_b32 v5, v6
        v_cmp_gt_u32 vcc, {nx+per+(25 if wave == 2 else 0)}, v0
        s_nop 1
        s_mov_b64 exec, vcc
        global_load_dword v48, v[4:5], off
        s_mov_b64 exec, -1
{lab}:
        """)
    if GPF and GPF_MODE == 'early': gpf_linear()
    if GPF and GPF_MODE == 'kearly':
        for w_ in range(3): gpf_k(w_)
    srd(S_WS, 16, 0x10000000)
    srd(S_A, 14, 256)
    if PF:
        srd(S_X, 6, 640*3840)
        e(f"""
        v_mov_b32 v37, 0x40000000
        v_mov_b32 v44, s6
        v_mov_b32 v45, s7
        v_mov_b32 v46, 0
        s_lshr_b32 s{sT+1}, s2, 3               ; j
        s_and_b32 s{sT+2}, s2, 1
        s_mul_i32 s{sT+2}, s{sT+2}, 640         ; column half (bytes)
        v_mov_b32 v3, 0x40000000
        s_cmp_eq_u32 s{sW4}, 0
        s_cbranch_scc1 L_t_x
        s_cmp_eq_u32 s{sW4}, 1
        s_cbranch_scc1 L_t_kv
        ; waves 2,3
        v_mul_u32_u24 v2, 52, v0
        v_lshrrev_b32 v2, 8, v2                 ; l/5
        v_mul_u32_u24 v4, 5, v2
        v_sub_u32 v4, v0, v4
        v_lshlrev_b32 v4, 7, v4                 ; li*128
        s_mul_i32 s{sT+3}, s{sT+1}, 10
        v_add_u32 v2, s{sT+3}, v2               ; row
        s_mov_b32 s{sT+4}, 3840
        s_cmp_eq_u32 s{sW4}, 2
        s_cselect_b32 s{sT+4}, s{sT+4}, 1280
        v_mul_lo_u32 v2, v2, s{sT+4}
        v_add3_u32 v37, v2, v4, s{sT+2}
        v_cmp_gt_u32 vcc, 50, v0
        s_cmp_eq_u32 s{sW4}, 2
        s_cbranch_scc1 L_t_q
        v_cndmask_b32 v37, v3, v37, vcc
        """)
        srd(S_X, 10, 640*1280)
        e(f"""
        s_branch L_t_done
L_t_q:
        v_cndmask_b32 v37, v3, v37, vcc
        """)
        srd(S_X, 6, 640*3840)
        e(f"""
        s_branch L_t_done
L_t_kv:
        s_getpc_b64 s[{sT+4}:{sT+5}]
L_pc_ref:
        s_mul_i32 s{sT+3}, s{sT+1}, 7
        v_add_u32 v2, s{sT+3}, v0
        v_min_u32 v2, (L_code_end-{KN})/128, v2
        v_lshlrev_b32 v2, 7, v2
        s_sub_u32 s{sT+4}, s{sT+4}, L_pc_ref-{KN}
        s_subb_u32 s{sT+5}, s{sT+5}, 0
        v_mov_b32 v5, s{sT+5}
        v_add_co_u32 v4, vcc, s{sT+4}, v2
        s_nop 1
        v_addc_co_u32 v5, vcc, 0, v5, vcc
        v_cmp_gt_u32 vcc, 7, v0
        s_nop 1
        s_mov_b64 exec, vcc
        global_load_dword v36, v[4:5], off
        s_mov_b64 exec, -1
        s_branch L_t_done
L_t_x:
        ; wave 0: per-stage touch: lanes 0..15 x lines, lanes 16..35 W k/v lines ; v[44:45] address, v46 stride
        s_lshr_b32 s{sT+3}, s2, 1
        s_and_b32 s{sT+3}, s{sT+3}, 3
        s_lshl_b32 s{sT+3}, s{sT+3}, 9
        s_lshl_b32 s{sT+4}, s{sT+1}, 4
        s_add_u32 s{sT+3}, s{sT+3}, s{sT+4}      ; rcg*512 + 16j
        v_and_b32 v2, 15, v0
        v_add_u32 v2, s{sT+3}, v2
        v_mul_u32_u24 v2, 1280, v2               ; x offset
        v_subrev_u32 v4, 16, v0                  ; m = l-16
        v_min_u32 v4, 19, v4
        v_mul_u32_u24 v5, 26, v4
        v_lshrrev_b32 v5, 8, v5                  ; r = m/10
        v_mul_u32_u24 v6, 10, v5
        v_sub_u32 v4, v4, v6                     ; m%10
        v_mul_u32_u24 v6, 52, v4
        v_lshrrev_b32 v6, 8, v6                  ; ty
        v_mul_u32_u24 v7, 5, v6
        v_sub_u32 v4, v4, v7                     ; li
        v_lshlrev_b32 v4, 7, v4
        s_lshl_b32 s{sT+3}, s{sT+1}, 1
        v_add_u32 v5, s{sT+3}, v5                ; 2j + r
        v_mul_u32_u24 v5, 3840, v5
        v_add_u32 v6, 1, v6
        v_mul_u32_u24 v6, 1280, v6
        v_add3_u32 v4, v4, v5, v6
        v_add_u32 v4, s{sT+2}, v4                ; W offset
        v_cmp_gt_u32 vcc, 16, v0
        v_mov_b32 v5, s6
        v_mov_b32 v6, s4
        v_mov_b32 v7, s7
        v_mov_b32 v8, s5
        v_cndmask_b32 v2, v4, v2, vcc            ; offset
        v_cndmask_b32 v5, v5, v6, vcc
        v_cndmask_b32 v7, v7, v8, vcc
        v_mov_b32 v4, {64*3840}
        v_mov_b32 v6, 128
        v_cndmask_b32 v46, v4, v6, vcc           ; stride
        v_add_co_u32 v44, vcc, v5, v2
        s_nop 1
        v_addc_co_u32 v45, vcc, 0, v7, vcc
        ; advance to first touched stage
        v_mul_u32_u24 v4, {PF_FIRST}, v46
        v_add_co_u32 v44, vcc, v44, v4
        s_nop 1
        v_addc_co_u32 v45, vcc, 0, v45, vcc
        """)
        a.label("L_t_done")
    def touch(wave, soff):
        if not PF: return
        lab = a.newlabel("TT")
        e(f"""
        s_cmp_lg_u32 s{sW4}, {wave}
        s_cbranch_scc1 {lab}
        s_mov_b32 s{sT}, {soff}
        buffer_load_dword v36, v37, s[{S_X}:{S_X+3}], s{sT} offen
{lab}:
        """)
    def xq(st0): return (0, st0*128)
    def kvq(st0): return (1, st0*64*3840)
    SCHED = PFS
    e(f"""
    s_or_b32 s{sT}, s{sRC}, s{sHP}
    s_or_b32 s{sT}, s{sT}, s{sW4}
    s_cmp_lg_u32 s{sT}, 0
    s_cbranch_scc1 L_kv_nn
    s_memrealtime s[{sT+4}:{sT+5}]
    s_waitcnt lgkmcnt(0)
    s_or_b32 s{sT+4}, s{sT+4}, 1
    v_mov_b32 v2, 0
    v_mov_b32 v3, s{sT+4}
    s_mov_b64 exec, 1
    buffer_store_dword v3, v2, s[{S_A}:{S_A+3}], 0 offen sc1
    s_mov_b64 exec, -1
L_kv_nn:
    """)
    e(f"""
    v_lshlrev_b32 v2, 4, v0
    s_lshl_b32 s{sT}, s{sW4}, 10
    s_add_u32 s{sT}, s{sT}, {L_ZERO}
    v_add_u32 v2, s{sT}, v2
    v_mov_b32 v24, 0
    v_mov_b32 v25, 0
    v_mov_b32 v26, 0
    v_mov_b32 v27, 0
    s_cmp_eq_u32 s{sW4}, 3
    s_cbranch_scc1 L_kv_nz
    ds_write_b128 v2, v[24:27]
L_kv_nz:
    """)
    lane_decomp32(2, 3, 4, 5, 6)
    e(f"""
    v_lshlrev_b32 v5, 3, v5          ; 8Q
    v_mul_u32_u24 v6, 5, v6          ; 5hh
    v_lshrrev_b32 v7, 1, v2
    v_lshlrev_b32 v7, 3, v7
    v_add_u32 v7, v7, v3             ; krow
    v_lshlrev_b32 v7, 8, v7
    v_add_u32 v7, 16384, v7
    v_lshlrev_b32 v8, 2, v3          ; 4rp
    s_sub_u32 s{sT+1}, 4, s{sBB}
    """)
    for T in range(3):
        immc = 0; imms = 0
        for Q in range(4):
            q = TKV[T][Q] or TKV[T][0]
            immc |= q[1] << (8*Q); imms |= (8*q[0]) << (8*Q)
        e(f"""
        s_mov_b32 s{sT}, {immc}
        v_bfe_u32 v18, s{sT}, v5, 8
        v_add_u32 v18, v18, v6
        v_lshrrev_b32 v19, 1, v18
        v_mov_b32 v9, s{sT+1}
        v_cmp_le_u32 vcc, s{sBB}, v19
        v_mov_b32 v20, 0
        s_nop 0
        v_cndmask_b32 v9, v20, v9, vcc
        v_add_u32 v19, v19, v9
        s_mov_b32 s{sT}, {imms}
        v_bfe_u32 v9, s{sT}, v5, 8
        v_add3_u32 v19, v19, v9, v8
        v_and_b32 v19, 15, v19
        v_lshlrev_b32 v19, 4, v19
        v_and_b32 v18, 1, v18
        v_lshlrev_b32 v18, 3, v18
        v_add3_u32 v{vAA+T}, v7, v19, v18
        """)
    xfrag_addr(vBA, 2)
    def kv_reads(kk, buf, sb):
        b = FB[buf]
        e(f"ds_read_b128 v[{b+12}:{b+15}], v{vBA+kk} offset:{sb}")
        for T in range(3):
            for rd in range(2):
                e(f"ds_read_b64_tr_b16 v[{b+4*T+2*rd}:{b+4*T+2*rd+1}], v{vAA+T} offset:{sb+(16*kk+4*rd)*256}")
    def kv_mfmas(buf, first=False):
        b = FB[buf]
        for T in range(3):
            c = "0" if first else f"v[{ACC+16*T}:{ACC+16*T+15}]"
            e(f"v_mfma_f32_32x32x16_bf16 v[{ACC+16*T}:{ACC+16*T+15}], v[{b+4*T}:{b+4*T+3}], v[{b+12}:{b+15}], {c}")
    def touch_stage():
        lab = a.newlabel("TS")
        e(f"""
        s_cmp_lg_u32 s{sW4}, 0
        s_cbranch_scc1 {lab}
        global_load_dword v36, v[44:45], off
        v_add_co_u32 v44, vcc, v44, v46
        s_nop 1
        v_addc_co_u32 v45, vcc, 0, v45, vcc
{lab}:
        """)
    def run_sched(when):
        if not PF: return
        for item in SCHED.get(when, []):
            kind, arg = item
            if kind == 'st': touch_stage()
            elif kind == 'q': touch(2, arg*320*3840)
            elif kind == 'wo': touch(3, arg*320*1280)
    run_sched('pre')
    if GPF and GPF_MODE == 'late': gpf_linear()
    if GPF and GPF_MODE == 'klate':
        for w_ in range(3): gpf_k(w_)
    if GPF and GPF_MODE == 'kstag':
        gpf_k(0); gpf_k(1)
    e("s_waitcnt lgkmcnt(0)")
    stamp(1)
    e("s_barrier")
    stamp(2)
    vNC, vRF = 38, 42
    base = Base([vAA, vAA+1, vAA+2, vBA, vBA+1, vBA+2, vBA+3])
    if GPF and GPF_MODE == 'kb0':
        for w_ in range(3): gpf_k(w_)
    if GPF and GPF_MODE in ('kb012', 'kb0w'): gpf_k(0)
    if GPF and GPF_MODE == 'kb0w': gpf_k(1)
    sb = base.set(0)
    kv_reads(0, 0, sb)
    for s in range(NST):
        for kk in range(3):
            kv_reads(kk+1, (kk+1) & 1, sb)
            e("s_waitcnt lgkmcnt(7)")
            kv_mfmas(kk & 1, first=(s == 0 and kk == 0))
        run_sched(s)
        if GPF and GPF_MODE == 'kstag' and s == 0: gpf_k(2)
        if GPF and GPF_MODE == 'kb012' and s == 0: gpf_k(1)
        if GPF and GPF_MODE == 'kb012' and s == 1: gpf_k(2)
        if GPF and GPF_MODE == 'kb0w' and s == 0: gpf_k(2)
        if s == 0:
            e(f"v_mov_b32 v{vNC}, 0")
            e(f"buffer_load_dword v{vNC+1}, v{vNC}, s[{S_A}:{S_A+3}], 0 offen sc1")
        if s == 1: wphi_frags(WF, 18, 22)
        if s == 2 and 'p1only' not in exp:
            lab = a.newlabel("NF"); lab2 = a.newlabel("NC")
            e(f"""
            s_waitcnt vmcnt(0)
            v_readfirstlane_b32 s{sNONCE}, v{vNC+1}
            s_mov_b32 s{sSPIN}, {SPIN_G}
            s_cmp_lg_u32 s{sNONCE}, 0
            s_cbranch_scc1 {lab}
{lab2}:
            s_sub_u32 s{sSPIN}, s{sSPIN}, 1
            s_cbranch_scc1 L_end
            buffer_load_dword v{vNC+1}, v{vNC}, s[{S_A}:{S_A+3}], 0 offen sc1
            s_waitcnt vmcnt(0)
            v_readfirstlane_b32 s{sNONCE}, v{vNC+1}
            s_nop 0
            s_cmp_eq_u32 s{sNONCE}, 0
            s_cbranch_scc1 {lab2}
{lab}:
            """)
        if s == 3:
            lab = a.newlabel("RD")
            e(f"""
            s_cmp_lg_u32 s{sW4}, 0
            s_cbranch_scc1 {lab}
            s_add_u32 s{sT}, s{sPART}, 3840
            v_mov_b32 v2, 0
            v_mov_b32 v3, s{sNONCE}
            s_mov_b64 exec, 1
            buffer_store_dword v3, v2, s[{S_WS}:{S_WS+3}], s{sT} offen sc1
            s_mov_b64 exec, -1
{lab}:
            """)
        if s == 7:
            e(f"""
            v_and_b32 v2, 15, v0
            s_lshl_b32 s{sT}, s{sHP}, 4
            v_add_u32 v3, s{sT}, v2            ; hp*16 + r
            v_lshlrev_b32 v4, 4, v2
            v_add_u32 v4, s{sRC}, v4           ; h'*16 + rc
            v_bfe_u32 v5, v0, 4, 1
            v_cmp_eq_u32 vcc, 0, v5
            s_mov_b32 s{sT+1}, {WS_PART + 3840}
            s_nop 0
            v_cndmask_b32 v3, v4, v3, vcc
            v_lshlrev_b32 v{vRF}, 12, v3
            buffer_load_dword v{vRF+1}, v{vRF}, s[{S_WS}:{S_WS+3}], s{sT+1} offen sc1
            """)
        e("s_waitcnt lgkmcnt(0)")
        e("s_barrier")
        sstamp(s+1)
        if s + 1 < NST:
            sb = base.set(s+1)
            kv_reads(0, 0, sb)
        kv_mfmas(1)
    stamp(3)
    if 'p1only' in exp: e("s_branch L_fin")
    loc = {}
    for T, qs in enumerate(TKV):
        for Q, q in enumerate(qs):
            if q is not None: loc[q] = ACC + 16*T + 4*Q
    vRA = 18
    e(f"""
    v_and_b32 v2, 31, v0
    v_lshrrev_b32 v3, 5, v0
    v_lshlrev_b32 v3, 14, v3
    s_lshl_b32 s{sT}, s{sW4}, 5
    v_add_u32 v2, s{sT}, v2
    v_lshlrev_b32 v2, 7, v2
    v_add_u32 v2, v2, v3
    v_add_u32 v2, {L_PK}, v2
    v_and_b32 v3, 7, v0
    v_bfe_u32 v4, v0, 3, 1
    v_lshlrev_b32 v4, 2, v4
    v_xor_b32 v3, v3, v4
    v_lshlrev_b32 v3, 4, v3
    v_add_u32 v{vRA}, v2, v3
    """)
    for u in range(1, 8): e(f"v_xor_b32 v{vRA+u}, {16*u}, v{vRA}")
    if dump == "kvacc":
        e("s_nop 7"); dump_regs([loc[(sg, j)] + x for sg in range(2) for j in range(5) for x in range(4)], 0)
    for j in range(5):
        e(f"v_cvt_pk_bf16_f32 v{KB+2*j}, v{loc[(0,j)]}, v{loc[(0,j)]+1}")
        e(f"v_cvt_pk_bf16_f32 v{KB+2*j+1}, v{loc[(0,j)]+2}, v{loc[(0,j)]+3}")
    e(f"v_mov_b32 v{KB+10}, 0"); e(f"v_mov_b32 v{KB+11}, 0")
    e("s_nop 0")
    feature_map(KB, WF, PK0, PK1)
    for j in range(5):
        e(f"v_cvt_pk_bf16_f32 v{VB+2*j}, v{loc[(1,j)]}, v{loc[(1,j)]+1}")
        e(f"v_cvt_pk_bf16_f32 v{VB+2*j+1}, v{loc[(1,j)]+2}, v{loc[(1,j)]+3}")
    e(f"v_mov_b32 v{VB+10}, 0x3f80"); e(f"v_mov_b32 v{VB+11}, 0")
    for u in range(3):
        e(f"ds_write_b128 v{vRA+5+u}, v[{VB+4*u}:{VB+4*u+3}]")
    vKA = 26; vKB = 28
    e(f"""
    v_lshrrev_b32 v2, 4, v0            ; G
    v_bfe_u32 v3, v0, 2, 2             ; rp
    v_and_b32 v4, 3, v0                ; c
    v_lshlrev_b32 v5, 3, v2
    v_add_u32 v5, v5, v3
    v_lshlrev_b32 v5, 7, v5
    s_lshr_b32 s{sT}, s{sW4}, 1
    s_lshl_b32 s{sT}, s{sT}, 14
    s_add_u32 s{sT}, s{sT}, {L_PK}
    v_add_u32 v5, s{sT}, v5
    v_and_b32 v6, 1, v2
    v_lshlrev_b32 v6, 2, v6
    v_xor_b32 v6, v6, v3
    v_lshrrev_b32 v7, 1, v4
    v_and_b32 v8, 1, v4
    v_lshlrev_b32 v8, 3, v8
    v_add_u32 v5, v5, v8
    s_and_b32 s{sT+1}, s{sW4}, 1
    v_add_u32 v9, 5, v7
    v_mov_b32 v40, 7
    s_cmp_eq_u32 s{sT+1}, 1
    s_cselect_b64 vcc, -1, 0
    v_cndmask_b32 v9, v9, v40, vcc
    v_xor_b32 v9, v9, v6
    v_lshlrev_b32 v9, 4, v9
    v_add_u32 v{vKA}, v5, v9
    v_xor_b32 v{vKA+1}, 64, v{vKA}
    v_add_u32 v{vKA+1}, 512, v{vKA+1}
    """)
    for ct in range(3):
        if ct < 2: e(f"v_add_u32 v9, {2*ct}, v7")
        else: e(f"v_mov_b32 v9, 4")
        e(f"""
        v_xor_b32 v9, v9, v6
        v_lshlrev_b32 v9, 4, v9
        v_add_u32 v{vKB+2*ct}, v5, v9
        v_xor_b32 v{vKB+2*ct+1}, 64, v{vKB+2*ct}
        v_add_u32 v{vKB+2*ct+1}, 512, v{vKB+2*ct+1}
        """)
    e(f"""
    v_lshrrev_b32 v2, 4, v0            ; g
    v_and_b32 v3, 15, v0
    s_lshr_b32 s{sT}, s{sW4}, 1
    s_mul_i32 s{sT}, s{sT}, 6
    s_and_b32 s{sT+1}, s{sW4}, 1
    s_lshl_b32 s{sT+2}, s{sT+1}, 2
    s_add_u32 s{sT}, s{sT}, s{sT+2}
    v_add_u32 v4, s{sT}, v2
    v_mul_u32_u24 v4, 40, v4
    v_add_u32 v4, v4, v3
    v_lshlrev_b32 v4, 3, v4
    v_mov_b32 v5, 0x40000000
    s_lshl_b32 s{sT+2}, s{sT+1}, 1
    s_sub_u32 s{sT+2}, 4, s{sT+2}
    v_cmp_gt_u32 vcc, s{sT+2}, v2
    s_nop 1
    v_cndmask_b32 v{vPA}, v5, v4, vcc
    v_cmp_gt_u32 vcc, 8, v3
    s_nop 1
    v_cndmask_b32 v{vPB}, v5, v{vPA}, vcc
    """)
    if dump == "pk":
        dump_regs([PK0+i for i in range(16)] + [PK1+i for i in range(4)], 0)
    softmax_pair(PK0, PK1, EP, EN, PH, TM)
    if dump == "phik": dump_regs([PH+i for i in range(20)], 0)
    for u in range(5):
        e(f"ds_write_b128 v{vRA+u}, v[{PH+4*u}:{PH+4*u+3}]")
    subbar(0)
    stamp(4)
    KD = 192; KF = 64
    for kap in range(4):
        f = KF + 16*kap
        for rd in range(2):
            e(f"ds_read_b64_tr_b16 v[{f+2*rd}:{f+2*rd+1}], v{vKA+rd} offset:{4096*kap}")
        for ct in range(3):
            for rd in range(2):
                e(f"ds_read_b64_tr_b16 v[{f+4+4*ct+2*rd}:{f+4+4*ct+2*rd+1}], v{vKB+2*ct+rd} offset:{4096*kap}")
    for kap in range(4):
        f = KF + 16*kap
        e(f"s_waitcnt lgkmcnt({min(15, 8*(3-kap))})")
        for ct in range(3):
            c = "0" if kap == 0 else f"v[{KD+4*ct}:{KD+4*ct+3}]"
            e(f"v_mfma_f32_16x16x32_bf16 v[{KD+4*ct}:{KD+4*ct+3}], v[{f}:{f+3}], v[{f+4+4*ct}:{f+4+4*ct+3}], {c}")
    subsignal(1)
    vWO = 40
    srd(S_B, 10, 640*1280)
    wo_setup(vWO, 2)
    for ct in range(3):
        e(f"v_cvt_pk_bf16_f32 v{KD+16+2*ct}, v{KD+4*ct}, v{KD+4*ct+1}")
        e(f"v_cvt_pk_bf16_f32 v{KD+16+2*ct+1}, v{KD+4*ct+2}, v{KD+4*ct+3}")
    for ct in range(3):
        e(f"v_min_u32 v{KD+16+2*ct}, -2, v{KD+16+2*ct}")
    for ct in range(3):
        e(f"buffer_store_dwordx2 v[{KD+16+2*ct}:{KD+16+2*ct+1}], v{vPA if ct < 2 else vPB}, s[{S_WS}:{S_WS+3}], s{sPART} offen offset:{128*ct} sc1")
    stamp(5)
    lab = a.newlabel("RC"); lab2 = a.newlabel("RP")
    e(f"""
    s_waitcnt vmcnt(3)
    s_mov_b32 s{sSPIN}, {SPIN_G}
    s_mov_b32 s{sT+1}, {WS_PART + 3840}
    v_cmp_ne_u32 vcc, s{sNONCE}, v{vRF+1}
    s_cbranch_vccz {lab}
{lab2}:
    s_sub_u32 s{sSPIN}, s{sSPIN}, 1
    s_cbranch_scc1 L_end
    buffer_load_dword v{vRF+1}, v{vRF}, s[{S_WS}:{S_WS+3}], s{sT+1} offen sc1
    s_waitcnt vmcnt(0)
    v_cmp_ne_u32 vcc, s{sNONCE}, v{vRF+1}
    s_cbranch_vccnz {lab2}
{lab}:
    """)
    subwait(1)
    e(f"s_mov_b64 exec, s[{sEX}:{sEX+1}]")
    for sg in WO_P2:
        for rd in range(2): wo_dma(sg, rd, vWO)
    e("s_mov_b64 exec, -1")
    PL = 64; SUM = 128
    e(f"""
    v_and_b32 v2, 15, v0
    v_lshlrev_b32 v2, 12, v2           ; r*4096
    s_lshl_b32 s{sT+4}, s{sHP}, 16
    s_add_u32 s{sT+4}, s{sT+4}, {WS_PART}
    s_add_u32 s{sT+5}, s{sT+4}, {((1*6+5)*40+39)*8}
    s_mov_b32 s{sSPIN}, {SPIN_G}
    s_lshl_b32 s{sT}, s{sW4}, 6
    v_add_u32 v6, s{sT}, v0            ; tau
    v_lshlrev_b32 v7, 4, v6
    v_mov_b32 v4, 0x40000000
    v_cmp_gt_u32 vcc, 240, v6
    s_nop 1
    v_cndmask_b32 v7, v4, v7, vcc
    s_branch L_s1_sweep
L_s1_hint:
    s_sub_u32 s{sSPIN}, s{sSPIN}, 1
    s_cbranch_scc1 L_end
    buffer_load_dword v3, v2, s[{S_WS}:{S_WS+3}], s{sT+5} offen sc1
    s_waitcnt vmcnt(0)
    v_cmp_eq_u32 vcc, -1, v3
    s_cbranch_vccnz L_s1_hint
    """)
    a.label("L_s1_sweep")
    stamp(6)
    e(f"""
    s_sub_u32 s{sSPIN}, s{sSPIN}, 1
    s_cbranch_scc1 L_end
    s_mov_b32 s{sT}, s{sT+4}
    """)
    for r in range(16):
        e(f"buffer_load_dwordx4 v[{PL+4*r}:{PL+4*r+3}], v7, s[{S_WS}:{S_WS+3}], s{sT} offen sc1")
        e(f"s_add_u32 s{sT}, s{sT}, 4096")
    for r in range(16):
        e(f"s_waitcnt vmcnt({15-r})")
        if r == 0: e(f"v_max_u32 v{SUM+10}, v{PL}, v{PL+2}")
        else: e(f"v_max3_u32 v{SUM+10}, v{SUM+10}, v{PL+4*r}, v{PL+4*r+2}")
        for i in range(4):
            src = PL + 4*r + i
            if r == 0:
                e(f"v_lshlrev_b32 v{SUM+2*i}, 16, v{src}")
                e(f"v_and_b32 v{SUM+2*i+1}, 0xffff0000, v{src}")
            else:
                e(f"v_lshlrev_b32 v{SUM+8}, 16, v{src}")
                e(f"v_and_b32 v{SUM+9}, 0xffff0000, v{src}")
                e(f"v_add_f32 v{SUM+2*i}, v{SUM+2*i}, v{SUM+8}")
                e(f"v_add_f32 v{SUM+2*i+1}, v{SUM+2*i+1}, v{SUM+9}")
    e(f"""
    v_cmp_eq_u32 vcc, -1, v{SUM+10}
    s_cbranch_vccnz L_s1_hint
    """)
    for i in range(4):
        e(f"v_cvt_pk_bf16_f32 v{SUM+12+i}, v{SUM+2*i}, v{SUM+2*i+1}")
    e(f"""
    v_mul_u32_u24 v4, 205, v6
    v_lshrrev_b32 v4, 12, v4           ; tau/20
    v_mul_u32_u24 v5, 20, v4
    v_sub_u32 v5, v6, v5               ; fp
    v_mul_u32_u24 v5, 96, v5
    v_mul_u32_u24 v8, 43, v4
    v_lshrrev_b32 v8, 8, v8            ; hd
    v_mul_u32_u24 v9, 6, v8
    v_sub_u32 v9, v4, v9               ; dq
    v_mul_u32_u24 v8, 1920, v8
    v_lshlrev_b32 v9, 3, v9
    v_add3_u32 v5, v5, v8, v9
    v_add_u32 v5, {L_KVF}, v5
    v_cmp_gt_u32 vcc, 240, v6
    s_and_saveexec_b64 s[{sEX}:{sEX+1}], vcc
    ds_write_b64 v5, v[{SUM+12}:{SUM+13}]
    ds_write_b64 v5, v[{SUM+14}:{SUM+15}] offset:48
    s_mov_b64 exec, -1
    """)
    subsignal(2)
    stamp(7)
    e(f"""
    v_cmp_gt_u32 vcc, 40, v0
    s_nop 1
    s_mov_b64 s[{sEX}:{sEX+1}], vcc
    """)
    subwait(5, tmp=8)
    e(f"s_mov_b64 exec, s[{sEX}:{sEX+1}]")
    for sg in WO_P1:
        for rd in range(2): wo_dma(sg, rd, vWO)
    e("s_mov_b64 exec, -1")
    vWA = 10
    e(f"""
    v_lshrrev_b32 v2, 4, v0            ; G
    v_bfe_u32 v3, v0, 2, 2             ; rp
    v_and_b32 v4, 3, v0                ; c
    v_lshrrev_b32 v5, 1, v2
    v_lshlrev_b32 v5, 4, v5            ; 16*(G>>1)
    v_and_b32 v6, 1, v2
    v_lshlrev_b32 v6, 2, v6            ; 4*(G&1)
    v_add3_u32 v5, v5, v6, v3
    v_mul_u32_u24 v5, 160, v5
    v_lshlrev_b32 v4, 3, v4
    v_add_u32 v{vWA}, v5, v4
    v_add_u32 v{vWA+1}, 0x10000, v{vWA}
    v_add_u32 v{vWA+2}, 0x20000, v{vWA}
    s_and_b32 s{sT}, s{sHP}, 1
    s_lshl_b32 s{sT}, s{sT}, 2
    s_add_u32 s{sT}, s{sT}, s{sW4}     ; tt
    s_lshl_b32 s{sT+1}, s{sRC}, 3
    s_add_u32 s{sT+6}, s{sT}, s{sT+1}
    s_mul_i32 s{sT+4}, s{sT+6}, 20480
    s_add_u32 s{sT+4}, s{sT+4}, {WS_O}
    v_and_b32 v2, 15, v0
    v_lshrrev_b32 v3, 2, v2
    v_mul_u32_u24 v3, 5120, v3
    v_and_b32 v4, 3, v2
    v_lshlrev_b32 v4, 8, v4
    v_add3_u32 v2, v3, v4, 0
    v_add_u32 v2, 4096, v2
    v_lshlrev_b32 v7, 4, v0            ; lane*16
    """)
    OF = 96; OD = 40; AB = [176, 196, 216, 236, 60, 16]
    NB = len(AB)
    def wo_reads(sg):
        L = L_WO(sg); reg = vWA + L // 65536; b = AB[sg % NB]
        assert (L // 65536) == ((L + 1408) // 65536)
        off = L % 65536
        for nt in range(5):
            for rd in range(2):
                e(f"ds_read_b64_tr_b16 v[{b+4*nt+2*rd}:{b+4*nt+2*rd+1}], v{reg} offset:{off + rd*1280 + nt*32}")
    e("s_waitcnt vmcnt(0)")
    subbar(6, tmp=8)
    for sg in range(NB): wo_reads(sg)
    e(f"""
    s_mov_b32 s{sSPIN}, {SPIN_G}
L_s2_hint:
    s_sub_u32 s{sSPIN}, s{sSPIN}, 1
    s_cbranch_scc1 L_end
    buffer_load_dword v3, v2, s[{S_WS}:{S_WS+3}], s{sT+4} offen sc1
    s_waitcnt vmcnt(0)
    v_cmp_eq_u32 vcc, -1, v3
    s_cbranch_vccnz L_s2_hint
    """)
    stamp(8)
    e(f"s_mov_b32 s{sT}, s{sT+4}")
    for sg in range(20):
        d = OF + 4*sg
        e(f"buffer_load_dwordx4 v[{d}:{d+3}], v7, s[{S_WS}:{S_WS+3}], s{sT} offen offset:{(sg%4)*1024} sc1")
        if sg % 4 == 3: e(f"s_add_u32 s{sT}, s{sT}, 4096")
    retries = []
    for sg in range(20):
        e(f"s_waitcnt vmcnt({19-sg}) lgkmcnt({10 if (sg >= 1 and sg + NB - 1 < 20) else 0})")
        o = OF + 4*sg
        a.label(f"L_chk_{sg}")
        e(f"v_max_u32 v2, v{o}, v{o+2}")
        e(f"v_cmp_eq_u32 vcc, -1, v2")
        e(f"s_cbranch_vccnz L_rt_{sg}")
        retries.append(sg)
        for nt in range(5):
            D = OD + 4*nt
            c = "0" if sg == 0 else f"v[{D}:{D+3}]"
            b = AB[sg % NB] + 4*nt
            e(f"v_mfma_f32_16x16x32_bf16 v[{D}:{D+3}], v[{b}:{b+3}], v[{o}:{o+3}], {c}")
        if sg + NB < 20: wo_reads(sg + NB)
    srd(S_B, 12, 2048*1280)
    e(f"""
    v_and_b32 v2, 15, v0
    v_lshrrev_b32 v3, 4, v0
    s_lshl_b32 s{sT}, s{sT+6}, 4
    v_add_u32 v2, s{sT}, v2
    v_mul_u32_u24 v2, 1280, v2
    v_lshlrev_b32 v4, 3, v3
    v_add_u32 v2, v2, v4
    s_lshr_b32 s{sT}, s{sHP}, 1
    s_mul_i32 s{sT}, s{sT}, 160
    """)
    for nt in range(5):
        D = OD + 4*nt; P = 64 + 2*nt
        e(f"v_cvt_pk_bf16_f32 v{P}, v{D}, v{D+1}")
        e(f"v_cvt_pk_bf16_f32 v{P+1}, v{D+2}, v{D+3}")
    for nt in range(5):
        P = 64 + 2*nt
        e(f"buffer_store_dwordx2 v[{P}:{P+1}], v2, s[{S_B}:{S_B+3}], s{sT} offen offset:{32*nt}")
    e("s_branch L_fin")
    for sg in retries:
        o = OF + 4*sg
        a.label(f"L_rt_{sg}")
        e(f"""
        s_sub_u32 s{sSPIN}, s{sSPIN}, 1
        s_cbranch_scc1 L_end
        s_add_u32 s{sT}, s{sT+4}, {sg*1024}
        buffer_load_dwordx4 v[{o}:{o+3}], v7, s[{S_WS}:{S_WS+3}], s{sT} offen sc1
        s_waitcnt vmcnt(0)
        s_branch L_chk_{sg}
        """)

    a.label("L_lq")
    vVX, vVW, vWQ = 10, 11, 12
    vBA = 14
    XF = 64
    e(f"""
    v_lshrrev_b32 v2, 3, v0
    s_lshl_b32 s{sT}, s{sW4}, 3
    v_add_u32 v2, s{sT}, v2
    v_mul_u32_u24 v2, 1280, v2
    v_lshrrev_b32 v3, 4, v0                 ; r = l>>4
    s_and_b32 s{sT}, s{sW4}, 1
    s_lshl_b32 s{sT}, s{sT}, 2
    v_add_u32 v4, s{sT}, v3
    v_and_b32 v5, 7, v0
    v_xor_b32 v5, v5, v4
    v_lshlrev_b32 v5, 4, v5
    v_add_u32 v{vVX}, v2, v5
    v_and_b32 v4, 15, v0
    v_lshlrev_b32 v5, 2, v3
    v_sub_u32 v4, v4, v5
    v_and_b32 v4, 15, v4                    ; pos
    v_lshrrev_b32 v5, 3, v4                 ; seg
    v_bfe_u32 v6, v4, 2, 1                  ; part
    v_and_b32 v7, 3, v4                     ; i4
    v_mul_lo_u32 v8, v6, s{sBB}
    v_add_u32 v8, v8, v7                    ; j
    v_mov_b32 v9, 5
    v_mov_b32 v13, s{sBB}
    v_cmp_eq_u32 vcc, 0, v6
    s_lshl_b32 s{sT}, s{sW4}, 2
    v_add_u32 v2, s{sT}, v3
    v_cndmask_b32 v9, v9, v13, vcc
    v_cmp_lt_u32 vcc, v8, v9
    v_mul_u32_u24 v2, 3840, v2
    v_add_u32 v5, 1, v5
    v_mul_u32_u24 v5, 1280, v5
    v_lshlrev_b32 v8, 4, v8
    v_add3_u32 v{vVW}, v2, v5, v8
    v_mov_b32 v7, 0x40000000
    v_cndmask_b32 v{vVW}, v7, v{vVW}, vcc
    s_mul_i32 s{sSOFX}, s{sRC}, {128*1280}
    s_mul_i32 s{sSOFW}, s{sHP}, 80
    s_lshl_b32 s{sM0}, s{sW4}, 10
    """)
    stamp(4)
    e("s_waitcnt lgkmcnt(0)")
    stamp(8)
    srd(S_X, 4, 2048*1280)
    srd(S_W, 6, 640*3840)
    rotmode = [x for x in exp.split(',') if x.startswith('rot')]
    if rotmode:
        rm = rotmode[0]
        if rm == 'rot1': e(f"s_and_b32 s65, s{sHP}, 1")
        elif rm == 'rot5': e(f"s_and_b32 s65, s{sHP}, 1"); e("s_mul_i32 s65, s65, 5")
        elif rm == 'rotrc': e(f"s_and_b32 s65, s{sRC}, 1")
        elif rm == 'rothp': e(f"s_and_b32 s65, s{sHP}, 7")
        elif rm == 'rotmix': e(f"s_xor_b32 s65, s{sHP}, s{sRC}"); e("s_and_b32 s65, s65, 1")
    def issue_stage(s):
        m0b = (s % R) * SLOT
        if rotmode:
            e(f"s_add_u32 s66, s65, {s}")
            e(f"s_sub_u32 s67, s66, 10")
            e(f"s_cmp_ge_u32 s66, 10")
            e(f"s_cselect_b32 s66, s67, s66")
            e(f"s_mul_i32 s67, s66, {64*3840}")
            e(f"s_lshl_b32 s66, s66, 7")
            e(f"s_add_u32 s66, s66, s{sSOFX}")
            e(f"s_add_u32 s67, s67, s{sSOFW}")
            for m in range(4):
                e(f"s_add_u32 m0, s{sM0}, {m0b + m*4096}")
                e(f"s_add_u32 s{sT}, s66, {m*32*1280}")
                e(f"buffer_load_dwordx4 v{vVX}, s[{S_X}:{S_X+3}], s{sT} offen lds")
                e(f"s_add_u32 m0, s{sM0}, {m0b + 16384 + m*4096}")
                e(f"s_add_u32 s{sT}, s67, {m*16*3840}")
                e(f"buffer_load_dwordx4 v{vVW}, s[{S_W}:{S_W+3}], s{sT} offen lds")
            return
        for m in range(4):
            e(f"s_add_u32 m0, s{sM0}, {m0b + m*4096}")
            e(f"s_add_u32 s{sT}, s{sSOFX}, {m*32*1280 + s*128}")
            e(f"buffer_load_dwordx4 v{vVX}, s[{S_X}:{S_X+3}], s{sT} offen lds")
            e(f"s_add_u32 m0, s{sM0}, {m0b + 16384 + m*4096}")
            e(f"s_add_u32 s{sT}, s{sSOFW}, {m*16*3840 + s*64*3840}")
            e(f"buffer_load_dwordx4 v{vVW}, s[{S_W}:{S_W+3}], s{sT} offen lds")
    issue_stage(0)
    srd(S_A, 8, 32*800)
    e(f"""
    v_lshlrev_b32 v2, 4, v0
    s_and_b32 s{sT}, s{sW4}, 1
    s_lshl_b32 s{sT}, s{sT}, 10
    s_add_u32 m0, s{sT}, {L_PHI}
    s_mul_i32 s{sT+1}, s{sHP}, 1600
    s_add_u32 s{sT}, s{sT}, s{sT+1}
    buffer_load_dwordx4 v2, s[{S_A}:{S_A+3}], s{sT} offen lds
    """)
    issue_stage(1)
    srd(S_WS, 16, 0x10000000)
    sPART = 64
    e(f"""
    s_lshl_b32 s{sPART}, s{sHP}, 4
    s_add_u32 s{sPART}, s{sPART}, s{sRC}
    s_lshl_b32 s{sPART}, s{sPART}, 12
    s_add_u32 s{sPART}, s{sPART}, {WS_PART}
    v_mov_b32 v40, -1
    v_mov_b32 v41, -1
    v_mov_b32 v42, -1
    v_mov_b32 v43, -1
    s_lshl_b32 s{sT}, s{sW4}, 6
    v_add_u32 v2, s{sT}, v0            ; tau
    v_lshlrev_b32 v8, 4, v2
    v_mov_b32 v3, 0x40000000
    v_cmp_gt_u32 vcc, 240, v2
    v_lshrrev_b32 v9, 4, v0            ; g = l>>4
    v_and_b32 v44, 15, v0
    v_cndmask_b32 v8, v3, v8, vcc
    v_lshlrev_b32 v44, 4, v44          ; t'*16
    s_lshl_b32 s{sT}, s{sRC}, 3
    s_lshl_b32 s{sT+1}, s{sW4}, 1
    s_add_u32 s{sT}, s{sT}, s{sT+1}
    s_mul_i32 s{sT}, s{sT}, 20480
    s_lshr_b32 s{sT+1}, s{sHP}, 2
    s_mul_i32 s{sT+1}, s{sT+1}, 5120
    s_add_u32 s{sT}, s{sT}, s{sT+1}
    s_and_b32 s{sT+1}, s{sHP}, 3
    s_lshl_b32 s{sT+1}, s{sT+1}, 8
    s_add_u32 s{sT}, s{sT}, s{sT+1}
    s_add_u32 s{sT+3}, s{sT}, {WS_O}
    v_lshlrev_b32 v45, 10, v9
    v_add_u32 v45, v45, v44            ; i=0
    v_mov_b32 v46, 4096
    v_add_u32 v47, -1, v9
    v_lshlrev_b32 v47, 10, v47
    v_add_u32 v47, 20480, v47
    v_cmp_eq_u32 vcc, 0, v9
    s_nop 1
    v_cndmask_b32 v46, v47, v46, vcc
    v_add_u32 v46, v46, v44            ; i=1
    v_add_u32 v47, 3, v9
    v_lshlrev_b32 v47, 10, v47
    v_add_u32 v47, 20480, v47
    v_add_u32 v47, v47, v44
    v_cmp_gt_u32 vcc, 2, v9
    s_nop 1
    v_cndmask_b32 v47, v3, v47, vcc    ; i=2
    buffer_store_dwordx4 v[40:43], v8, s[{S_WS}:{S_WS+3}], s{sPART} offen sc1
    buffer_store_dwordx4 v[40:43], v45, s[{S_WS}:{S_WS+3}], s{sT+3} offen sc1
    buffer_store_dwordx4 v[40:43], v46, s[{S_WS}:{S_WS+3}], s{sT+3} offen sc1
    buffer_store_dwordx4 v[40:43], v47, s[{S_WS}:{S_WS+3}], s{sT+3} offen sc1
    """)
    xfrag_addr(vBA, 2)
    e(f"""
    v_mul_u32_u24 v2, 52, v0
    v_lshrrev_b32 v2, 8, v2
    v_mul_u32_u24 v3, 5, v2
    v_sub_u32 v3, v0, v3
    v_lshlrev_b32 v3, 4, v3
    v_mul_u32_u24 v2, 3840, v2
    v_add_u32 v{vWQ}, v2, v3
    v_cmp_gt_u32 vcc, 40, v0
    s_nop 1
    s_mov_b64 s[{sEX}:{sEX+1}], vcc
    """)
    def issue_wq(i0, i1):
        e(f"s_mov_b64 exec, s[{sEX}:{sEX+1}]")
        e(f"s_mul_i32 s{sT+1}, s{sW4}, 640")
        e(f"s_mul_i32 s{sT+2}, s{sW4}, {8*3840}")
        e(f"s_add_u32 s{sT+2}, s{sT+2}, s{sSOFW}")
        for m in range(i0, i1):
            e(f"s_add_u32 m0, s{sT+1}, {L_WQ + m*4*640}")
            e(f"s_add_u32 s{sT}, s{sT+2}, {m*32*3840}")
            e(f"buffer_load_dwordx4 v{vWQ}, s[{S_W}:{S_W+3}], s{sT} offen lds")
        e("s_mov_b64 exec, -1")
    base = Base([vBA, vBA+1, vBA+2, vBA+3])
    stamp(1)
    for s in range(NST):
        if s <= 1: e("s_waitcnt vmcnt(12) lgkmcnt(0)")
        elif s <= 8: e("s_waitcnt vmcnt(8) lgkmcnt(0)")
        else: e("s_waitcnt vmcnt(10) lgkmcnt(0)")
        e("s_barrier")
        sstamp(s+1)
        if s == 0: stamp(2)
        sb = base.set(s)
        for kk in range(4):
            d = XF + 16*s + 4*kk
            e(f"ds_read_b128 v[{d}:{d+3}], v{vBA+kk} offset:{sb}")
        if s + 2 < NST: issue_stage(s+2)
        elif s == 8: issue_wq(0, 10)
        else: issue_wq(10, 20)
    QA = 224; vQA = 18; vWO = 56
    lane_decomp32(2, 3, 4, 5, 6)
    e(f"""
    v_lshrrev_b32 v7, 1, v2
    v_lshlrev_b32 v7, 3, v7
    v_add_u32 v7, v7, v3
    v_mul_u32_u24 v7, 80, v7
    v_mul_u32_u24 v6, 40, v6
    v_add_u32 v7, v7, v6
    v_add_u32 v7, {L_WQ}, v7
    v_lshlrev_b32 v5, 3, v5
    v_add_u32 v{vQA}, v7, v5
    v_add_u32 v{vQA+1}, 32, v7
    """)
    e("s_waitcnt vmcnt(10) lgkmcnt(0)")
    e("s_barrier")
    if 'prio' in exp: e("s_setprio 1")
    stamp(3)
    if 'p1only' in exp:
        e("s_waitcnt vmcnt(0)")
        e("s_branch L_fin")
    QF3 = [32, 40, 48]
    def q_reads3(k):
        b = QF3[k % 3]
        for T in range(2):
            for rd in range(2):
                e(f"ds_read_b64_tr_b16 v[{b+4*T+2*rd}:{b+4*T+2*rd+1}], v{vQA+T} offset:{(16*k+4*rd)*80}")
    wolist = [(sg, rd) for sg in WO_P1 for rd in range(2)]
    nwo = 0
    q_reads3(0); q_reads3(1)
    for k in range(40):
        if k + 2 < 40:
            q_reads3(k+2)
            e("s_waitcnt lgkmcnt(8)")
        elif k + 1 < 40: e("s_waitcnt lgkmcnt(4)")
        else: e("s_waitcnt lgkmcnt(0)")
        for T in range(2):
            c = "0" if k == 0 else f"v[{QA+16*T}:{QA+16*T+15}]"
            b = QF3[k % 3]
            e(f"v_mfma_f32_32x32x16_bf16 v[{QA+16*T}:{QA+16*T+15}], v[{b+4*T}:{b+4*T+3}], v[{XF+4*k}:{XF+4*k+3}], {c}")
        if k == 17:
            e(f"s_waitcnt vmcnt(0)")
            subbar(3, tmp=60)
    if 'prio' in exp: e("s_setprio 0")
    stamp(5)
    WF = 64; QB = 88; PQ0 = 100; PQ1 = 116; EP = 132; EN = 152; PH = 172; TM = 192
    wphi_frags(WF, 20, 22)
    if dump == "qacc":
        e("s_nop 7"); dump_regs([QA+i for i in range(20)], 0)
    for j in range(5):
        src = QA + 4*j if j < 4 else QA + 16
        e(f"v_cvt_pk_bf16_f32 v{QB+2*j}, v{src}, v{src+1}")
        e(f"v_cvt_pk_bf16_f32 v{QB+2*j+1}, v{src+2}, v{src+3}")
    e(f"v_mov_b32 v{QB+10}, 0"); e(f"v_mov_b32 v{QB+11}, 0")
    e("s_waitcnt lgkmcnt(0)")
    feature_map(QB, WF, PQ0, PQ1)
    vOA = 20
    lane_decomp32(2, 3, 4, 5, 6)
    e(f"""
    v_mul_u32_u24 v7, 1920, v6
    v_mul_u32_u24 v8, 48, v3
    v_lshlrev_b32 v9, 3, v5
    v_add3_u32 v7, v7, v8, v9
    v_add_u32 v7, {L_KVF}, v7
    v_lshrrev_b32 v8, 1, v2
    v_mov_b32 v9, {L_ZERO}
    v_cmp_eq_u32 vcc, v8, v6
    s_nop 1
    v_cndmask_b32 v{vOA}, v9, v7, vcc
    v_cmp_gt_u32 s[{sEX}:{sEX+1}], 2, v5
    s_nop 1
    s_and_b64 vcc, vcc, s[{sEX}:{sEX+1}]
    v_add_u32 v7, 32, v7
    s_nop 0
    v_cndmask_b32 v{vOA+1}, v9, v7, vcc
    ; o store addresses: tile base (rc*8 + 2w + (t>>4))*20480 + (5*(hp>>2))*1024 + (hp&3)*256 + c5*1024 + (t&15)*16
    v_and_b32 v2, 15, v0
    v_lshlrev_b32 v2, 4, v2
    v_bfe_u32 v3, v0, 4, 1
    v_mul_u32_u24 v3, 20480, v3
    v_add_u32 v2, v2, v3
    v_lshrrev_b32 v4, 5, v0            ; h
    v_lshlrev_b32 v5, 11, v4           ; c5 = 2h -> 2h*1024
    v_add_u32 v22, v5, v2
    v_lshlrev_b32 v6, 3, v4
    v_add_u32 v23, v6, v2
    s_lshl_b32 s{sT+4}, s{sRC}, 3
    s_lshl_b32 s{sT+1}, s{sW4}, 1
    s_add_u32 s{sT+4}, s{sT+4}, s{sT+1}
    s_mul_i32 s{sT+4}, s{sT+4}, 20480
    s_lshr_b32 s{sT+1}, s{sHP}, 2
    s_mul_i32 s{sT+1}, s{sT+1}, 5120
    s_add_u32 s{sT+4}, s{sT+4}, s{sT+1}
    s_and_b32 s{sT+1}, s{sHP}, 3
    s_lshl_b32 s{sT+1}, s{sT+1}, 8
    s_add_u32 s{sT+4}, s{sT+4}, s{sT+1}
    s_add_u32 s{sT+4}, s{sT+4}, {WS_O}
    s_add_u32 s{sT+5}, s{sT+4}, 4096
    """)
    softmax_pair(PQ0, PQ1, EP, EN, PH, TM)
    if dump == "phiq": dump_regs([PH+i for i in range(20)], 0)
    stamp(6)
    subwait(2)
    stamp(7)
    KA = 64; N0 = 104; N1 = 120
    for st in range(5):
        for U in range(2):
            for rd in range(2):
                d = KA + (U*5+st)*4 + 2*rd
                e(f"ds_read_b64_tr_b16 v[{d}:{d+1}], v{vOA+U} offset:{(8*st+4*rd)*48}")
    for st in range(5):
        e(f"s_waitcnt lgkmcnt({min(15, 4*(4-st))})")
        for U, N in ((0, N0), (1, N1)):
            c = "0" if st == 0 else f"v[{N}:{N+15}]"
            d = KA + (U*5+st)*4
            e(f"v_mfma_f32_32x32x16_bf16 v[{N}:{N+15}], v[{d}:{d+3}], v[{PH+4*st}:{PH+4*st+3}], {c}")
    e("s_nop 7")
    e("s_nop 3")
    e(f"v_add_f32 v8, 0x358637bd, v{N1+4}")
    e("v_rcp_f32 v8, v8")
    e("s_nop 0")
    OB = 136
    for i in range(8):
        e(f"v_mul_f32 v{N0+2*i}, v{N0+2*i}, v8"); e(f"v_mul_f32 v{N0+2*i+1}, v{N0+2*i+1}, v8")
        e(f"v_cvt_pk_bf16_f32 v{OB+i}, v{N0+2*i}, v{N0+2*i+1}")
    for i in range(2):
        e(f"v_mul_f32 v{N1+2*i}, v{N1+2*i}, v8"); e(f"v_mul_f32 v{N1+2*i+1}, v{N1+2*i+1}, v8")
        e(f"v_cvt_pk_bf16_f32 v{OB+8+i}, v{N1+2*i}, v{N1+2*i+1}")
    for i in (0, 2, 4, 6, 8):
        e(f"v_min_u32 v{OB+i}, -2, v{OB+i}")
    e(f"""
    buffer_store_dwordx4 v[{OB}:{OB+3}], v22, s[{S_WS}:{S_WS+3}], s{sT+4} offen sc1
    buffer_store_dwordx4 v[{OB+4}:{OB+7}], v22, s[{S_WS}:{S_WS+3}], s{sT+4} offen offset:1024 sc1
    buffer_store_dwordx2 v[{OB+8}:{OB+9}], v23, s[{S_WS}:{S_WS+3}], s{sT+5} offen sc1
    """)
    subsignal(5)
    a.label("L_fin")
    if until:
        e(f"""
        s_waitcnt vmcnt(0) lgkmcnt(0)
L_until:
        s_memrealtime s[94:95]
        s_waitcnt lgkmcnt(0)
        s_sub_u32 s96, s94, s98
        s_cmp_lt_u32 s96, {until}
        s_cbranch_scc1 L_until
        """)
    if stamps:
        stamp(10)
        e("s_waitcnt vmcnt(0)")
        e(f"""
        s_waitcnt lgkmcnt(0)
        s_lshl_b32 s{sT}, s2, 3
        s_add_u32 s{sT}, s{sT}, s{sWAVE}
        s_lshl_b32 s{sT}, s{sT}, 6
        s_add_u32 s{sT}, s{sT}, {WS_STAMP}
        v_mov_b32 v2, 0
        """)
        for i in range(NS): e(f"v_mov_b32 v{20+i}, s{sST+2*i}")
        e(f"""
        s_mov_b64 exec, 1
        buffer_store_dwordx4 v[20:23], v2, s[{S_WS}:{S_WS+3}], s{sT} offen
        buffer_store_dwordx4 v[24:27], v2, s[{S_WS}:{S_WS+3}], s{sT} offen offset:16
        buffer_store_dwordx4 v[28:31], v2, s[{S_WS}:{S_WS+3}], s{sT} offen offset:32
        """)
    if dbgwg >= 0:
        e(f"""
        s_cmp_lg_u32 s2, {dbgwg}
        s_cbranch_scc1 L_end
        s_cmp_lg_u32 s{sWAVE}, {dbgwave}
        s_cbranch_scc1 L_end
        s_mov_b64 exec, -1
        s_mov_b32 s72, s14
        s_and_b32 s73, s15, 0xffff
        s_mov_b32 s74, 256
        s_mov_b32 s75, 0x20000
        """)
        for i in range(1, NS):
            e(f"s_sub_u32 s{sT}, s{sST+2*i}, s{sST}")
            e(f"v_mov_b32 v{20+i}, s{sT}")
        e("v_mov_b32 v2, 0")
        e("s_mov_b64 exec, 1")
        for i in range(1, NS):
            e(f"buffer_store_dword v{20+i}, v2, s[72:75], 0 offen offset:{4*i}")
    a.label("L_end")
    e("s_endpgm")
    a.label("L_code_end")
    hdr = HEADER + f"; @launch grid=(256,1,1) block=(512,1,1) lds={LDS_BYTES}\n"
    return hdr + f""".amdgcn_target "amdgcn-amd-amdhsa--gfx950"
.text
.globl {KN}
.p2align 8
.type {KN},@function
{KN}:
""" + a.text() + """.section .rodata,"a"
""" + kernel_desc(KN, 256, 102, 256)

if __name__ == "__main__":
    import argparse
    ap = argparse.ArgumentParser()
    ap.add_argument("--stamps", action="store_true")
    ap.add_argument("--dump", default=None)
    ap.add_argument("--stagest", action="store_true")
    ap.add_argument("--exp", default="")
    ap.add_argument("--until", type=int, default=0)
    ap.add_argument("--dbgwg", type=int, default=-1)
    ap.add_argument("--dbgwave", type=int, default=0)
    ap.add_argument("--pf", default="5")
    ap.add_argument("--notlb", action="store_true")
    ap.add_argument("--gpf", nargs="?", const="", default=None)
    args = ap.parse_args()
    if args.notlb: TLB = False
    GPF = args.gpf is not None
    GPF_MODE = args.gpf or "early"
    if args.pf == "none": PF = False
    else:
        d = args.pf.split(",")
        PFS = mk_sched(int(d[0]), 2, int(d[1]) if len(d) > 1 else 4, int(d[2]) if len(d) > 2 else 6)
    print(gen(stamps=args.stamps, dump=args.dump, stagest=args.stagest, exp=args.exp, until=args.until, dbgwg=args.dbgwg, dbgwave=args.dbgwave))
```

```python
import sys
from asmlib import *
from lay2 import TKV, TQ

KN = "standalone__linear_kernel_hedgehog__prompt_kernel"
NST = 10
SLOT = 32768
R = 3
L_WQ = 98304
L_PHI = 149504
L_ZERO = 151552
L_CNT = 153600
L_KVF = 154624
L_PK = 32768
L_WO19 = 158464
LDS_BYTES = 163840
def L_WO(sg): return sg*5120 if sg <= 18 else L_WO19
WO_P1 = [0,1,2,3,4,5,13,14,15,16,17,18,19]
WO_P2 = [6,7,8,9,10,11,12]
WS_PART = 0x000000
WS_O = 0x100000
WS_RDY = 0x400000
WS_STAMP = 0x700000
WS_DBG = 0x800000
PF = False
GPF = True
GPF_CODE = True
PFS_TAB = {
 'b':  {'pre': [('x',2),('kv',2)], 0: [('kv',5),('x',6)], 1: [('kv',8),('q',0),('q',1)], 3: [('wo',0),('wo',1)]},
 'e1': {'e': [('x',0),('kv',2),('code',0)], 'pre': [('x',4)], 0: [('kv',5),('x',8)], 1: [('kv',8)], 3: [('q',0)], 4: [('q',1)], 6: [('wo',0)], 7: [('wo',1)]},
 'e2': {'e': [('x',2),('kv',2),('code',0)], 0: [('kv',5),('x',6)], 1: [('kv',8)], 3: [('q',0)], 4: [('q',1)], 6: [('wo',0)], 7: [('wo',1)]},
 'e3': {'e': [('x',0),('kv',0),('code',0)], 'pre': [('x',4),('kv',3)], 0: [('kv',6),('x',8)], 1: [('kv',9)], 3: [('q',0)], 4: [('q',1)], 6: [('wo',0)], 7: [('wo',1)]},
 'e4': {'e': [('x',2),('kv',2),('code',0)], 'pre': [('x',6),('kv',5)], 0: [('kv',8)], 2: [('q',0)], 3: [('q',1)], 5: [('wo',0)], 6: [('wo',1)]},
 'e5': {'e': [('code',0)], 'pre': [('x',2),('kv',2)], 0: [('kv',5),('x',6)], 2: [('kv',8)], 4: [('q',0)], 5: [('q',1)], 7: [('wo',0)], 8: [('wo',1)]},
 'wo': {'e': [('code',0)], 4: [('q',0)], 5: [('q',1)], 7: [('wo',0)], 8: [('wo',1)]},
}
PFS = PFS_TAB['b']
LOG2E = 0x3fb8aa3b
NLOG2E = 0xbfb8aa3b
SPIN_G = 0x8000
SPIN_L = 0x80000

def gen(stamps=False, dump=None, stagest=False, exp='', until=0, dbgwg=-1, dbgwave=0):
    a = Asm(); e = a.e
    S_X, S_W, S_WS = 20, 24, 28
    S_A, S_B = 72, 76
    sWAVE, sW4, sRC, sHP, sBB = 32, 33, 34, 35, 36
    sT = 40
    sSOFX, sSOFW, sM0 = 52, 53, 54
    sNONCE = 55
    sL = 56
    sEX = 58
    sSPIN = 60
    sU, sV = 62, 63
    sST = 80
    NS = 11
    def sstamp(i):
        if stagest: e(f"s_memtime s[{sST+2*i}:{sST+2*i+1}]")
    def stamp(i):
        if stamps and not (stagest and i > 0): e(f"s_memtime s[{sST+2*i}:{sST+2*i+1}]")
    def rstamp(i):
        if stamps and not stagest: e(f"s_memrealtime s[{sST+2*i}:{sST+2*i+1}]")
    def srd(dst, ptr, nbytes):
        e(f"""
        s_mov_b32 s{dst}, s{ptr}
        s_and_b32 s{dst+1}, s{ptr+1}, 0xffff
        s_mov_b32 s{dst+2}, {nbytes}
        s_mov_b32 s{dst+3}, 0x20000
        """)
    def subsignal(idx, tmp=2):
        e(f"""
        v_mov_b32 v{tmp}, {L_CNT + 4*idx}
        v_mov_b32 v{tmp+1}, 1
        s_mov_b64 exec, 1
        ds_add_u32 v{tmp}, v{tmp+1}
        s_mov_b64 exec, -1
        """)
    def subwait(idx, target=4, tmp=2):
        lab = a.newlabel("SW")
        e(f"v_mov_b32 v{tmp}, {L_CNT + 4*idx}")
        e(f"s_mov_b32 s{sSPIN}, {SPIN_L}")
        a.label(lab)
        e(f"""
        s_sub_u32 s{sSPIN}, s{sSPIN}, 1
        s_cbranch_scc1 L_end
        ds_read_b32 v{tmp+1}, v{tmp}
        s_waitcnt lgkmcnt(0)
        v_readfirstlane_b32 s{sT}, v{tmp+1}
        s_nop 0
        s_cmp_lt_u32 s{sT}, {target}
        s_cbranch_scc1 {lab}
        """)
    def subbar(idx, target=4, tmp=2):
        subsignal(idx, tmp); subwait(idx, target, tmp)
    def dump_regs(regs, off):
        n = len(regs)
        e(f"""
        s_lshl_b32 s{sT}, s2, 3
        s_add_u32 s{sT}, s{sT}, s{sWAVE}
        s_mul_i32 s{sT}, s{sT}, {n*256}
        s_add_u32 s{sT}, s{sT}, {WS_DBG + off}
        v_lshlrev_b32 v2, 2, v0
        """)
        for i, r in enumerate(regs):
            e(f"buffer_store_dword v{r}, v2, s[{S_WS}:{S_WS+3}], s{sT} offen offset:{(i%16)*256}")
            if i % 16 == 15: e(f"s_add_u32 s{sT}, s{sT}, 4096")
        e("s_waitcnt vmcnt(0)")
    def softmax_pair(P0, P1, EP, EN, PH, tm):
        p = [P0 + i for i in range(16)] + [P1 + i for i in range(4)]
        tM, tN, tA, tB = tm, tm+1, tm+2, tm+4
        e(f"v_max3_f32 v{tM}, v{p[0]}, v{p[1]}, v{p[2]}")
        e(f"v_min3_f32 v{tN}, v{p[0]}, v{p[1]}, v{p[2]}")
        for i in range(3, 19, 2):
            e(f"v_max3_f32 v{tM}, v{tM}, v{p[i]}, v{p[i+1]}")
            e(f"v_min3_f32 v{tN}, v{tN}, v{p[i]}, v{p[i+1]}")
        e(f"v_max_f32 v{tM}, v{tM}, v{p[19]}")
        e(f"v_min_f32 v{tN}, v{tN}, v{p[19]}")
        e(f"v_mul_f32 v{tA}, {NLOG2E:#x}, v{tM}")
        e(f"v_mul_f32 v{tB}, {LOG2E:#x}, v{tN}")
        for i in range(20):
            e(f"v_fma_f32 v{EP+i}, v{p[i]}, s{sL}, v{tA}")
            e(f"v_fma_f32 v{EN+i}, -v{p[i]}, s{sL}, v{tB}")
        for i in range(20):
            e(f"v_exp_f32 v{EP+i}, v{EP+i}")
            e(f"v_exp_f32 v{EN+i}, v{EN+i}")
        e(f"v_add_f32 v{tA}, v{EP}, v{EP+1}"); e(f"v_add_f32 v{tB}, v{EN}, v{EN+1}")
        e(f"v_add_f32 v{tA+1}, v{EP+2}, v{EP+3}"); e(f"v_add_f32 v{tB+1}, v{EN+2}, v{EN+3}")
        for i in range(4, 20, 2):
            e(f"v_add_f32 v{tA}, v{tA}, v{EP+i}"); e(f"v_add_f32 v{tB}, v{tB}, v{EN+i}")
            e(f"v_add_f32 v{tA+1}, v{tA+1}, v{EP+i+1}"); e(f"v_add_f32 v{tB+1}, v{tB+1}, v{EN+i+1}")
        e(f"v_add_f32 v{tA}, v{tA}, v{tA+1}")
        e(f"v_add_f32 v{tB}, v{tB}, v{tB+1}")
        e(f"v_rcp_f32 v{tA}, v{tA}")
        e(f"v_rcp_f32 v{tB}, v{tB}")
        e("s_nop 0")
        for i in range(10):
            e(f"v_mul_f32 v{EP+2*i}, v{EP+2*i}, v{tA}"); e(f"v_mul_f32 v{EP+2*i+1}, v{EP+2*i+1}, v{tA}")
            e(f"v_mul_f32 v{EN+2*i}, v{EN+2*i}, v{tB}"); e(f"v_mul_f32 v{EN+2*i+1}, v{EN+2*i+1}, v{tB}")
            e(f"v_cvt_pk_bf16_f32 v{PH+i}, v{EP+2*i}, v{EP+2*i+1}")
            e(f"v_cvt_pk_bf16_f32 v{PH+10+i}, v{EN+2*i}, v{EN+2*i+1}")
    def lane_decomp32(vG, vrp, vc, vQ, vhh):
        e(f"""
        v_lshrrev_b32 v{vG}, 4, v0
        v_bfe_u32 v{vrp}, v0, 2, 2
        v_and_b32 v{vc}, 3, v0
        v_and_b32 v{vQ}, 1, v{vG}
        v_lshlrev_b32 v{vQ}, 1, v{vQ}
        v_lshrrev_b32 v{vhh}, 1, v{vc}
        v_add_u32 v{vQ}, v{vQ}, v{vhh}
        v_and_b32 v{vhh}, 1, v{vc}
        """)
    def wphi_frags(WF, va, t):
        vG, vrp, vc, vQ, vhh = t, t+1, t+2, t+3, t+4
        lane_decomp32(vG, vrp, vc, vQ, vhh)
        e(f"""
        v_mul_u32_u24 v{t+5}, 800, v{vhh}
        v_mul_u32_u24 v{t+6}, 40, v{vrp}
        v_add_u32 v{t+5}, v{t+5}, v{t+6}
        v_lshlrev_b32 v{t+6}, 3, v{vQ}
        v_add_u32 v{t+5}, v{t+5}, v{t+6}
        v_add_u32 v{t+5}, {L_PHI}, v{t+5}
        v_lshrrev_b32 v{t+6}, 1, v{vG}
        v_mov_b32 v{va+1}, {L_ZERO}
        v_cmp_eq_u32 vcc, v{t+6}, v{vhh}
        s_nop 1
        v_cndmask_b32 v{va}, v{va+1}, v{t+5}, vcc
        v_cmp_eq_u32 s[{sEX}:{sEX+1}], 0, v{vQ}
        s_nop 1
        s_and_b64 vcc, vcc, s[{sEX}:{sEX+1}]
        v_add_u32 v{t+5}, 32, v{t+5}
        s_nop 0
        v_cndmask_b32 v{va+1}, v{va+1}, v{t+5}, vcc
        """)
        for u in range(2):
            for step in range(3):
                for rd in range(2):
                    d = WF + u*12 + step*4 + 2*rd
                    if step == 2 and rd == 1:
                        e(f"v_mov_b32 v{d}, 0"); e(f"v_mov_b32 v{d+1}, 0")
                    else:
                        e(f"ds_read_b64_tr_b16 v[{d}:{d+1}], v{va+u} offset:{(8*step+4*rd)*40}")
    def feature_map(SRC, WF, P0, P1):
        for step in range(3):
            for u, P in ((0, P0), (1, P1)):
                c = "0" if step == 0 else f"v[{P}:{P+15}]"
                e(f"v_mfma_f32_32x32x16_bf16 v[{P}:{P+15}], v[{WF+u*12+step*4}:{WF+u*12+step*4+3}], v[{SRC+4*step}:{SRC+4*step+3}], {c}")
    def xfrag_addr(vBA, t):
        e(f"""
        v_and_b32 v{t}, 31, v0
        v_lshrrev_b32 v{t+1}, 5, v0
        v_bfe_u32 v{t+2}, v{t}, 1, 3
        v_xor_b32 v{t+2}, v{t+2}, v{t+1}
        v_lshlrev_b32 v{t+2}, 4, v{t+2}
        s_lshl_b32 s{sT}, s{sW4}, 5
        v_add_u32 v{t}, s{sT}, v{t}
        v_lshlrev_b32 v{t}, 7, v{t}
        v_add_u32 v{vBA}, v{t}, v{t+2}
        v_xor_b32 v{vBA+1}, 32, v{vBA}
        v_xor_b32 v{vBA+2}, 64, v{vBA}
        v_xor_b32 v{vBA+3}, 96, v{vBA}
        """)
    class Base:
        def __init__(self, regs): self.regs = regs; self.cur = 0
        def set(self, s):
            so = (s % R) * SLOT
            want = (so // 65536) * 65536
            if want != self.cur:
                d = (want - self.cur) & 0xffffffff
                for r in self.regs: e(f"v_add_u32 v{r}, {d}, v{r}")
                self.cur = want
            return so - self.cur
    def wo_setup(vWO, t):
        e(f"""
        v_mul_u32_u24 v{t}, 26, v0
        v_lshrrev_b32 v{t}, 8, v{t}          ; l/10 for l<64
        v_mul_u32_u24 v{t+1}, 10, v{t}
        v_sub_u32 v{t+1}, v0, v{t+1}
        v_lshlrev_b32 v{t+1}, 4, v{t+1}
        v_mul_u32_u24 v{t}, 1280, v{t}
        v_add_u32 v{vWO}, v{t}, v{t+1}
        v_cmp_gt_u32 vcc, 40, v0
        s_lshr_b32 s{sU}, s{sHP}, 1
        s_mul_i32 s{sU}, s{sU}, 160
        s_mul_i32 s{sV}, s{sW4}, {40*1280}
        s_add_u32 s{sU}, s{sU}, s{sV}        ; + G*40 rows
        s_lshr_b32 s{sV}, s{sW4}, 1
        s_lshl_b32 s{sV}, s{sV}, 4
        s_and_b32 s{sT}, s{sW4}, 1
        s_lshl_b32 s{sT}, s{sT}, 2
        s_add_u32 s{sV}, s{sV}, s{sT}
        s_mul_i32 s{sV}, s{sV}, 160          ; pi0*160
        s_mov_b64 s[{sEX}:{sEX+1}], vcc
        """)
    def wo_dma(sg, rd, vWO):
        blk, c5 = divmod(sg, 5)
        if c5 < 4: row = 160*blk + [0, 8, 20, 28][c5] + 4*rd
        else: row = 160*blk + 16 + 20*rd
        e(f"s_add_u32 m0, s{sV}, {L_WO(sg) + rd*8*160}")
        e(f"s_add_u32 s{sT}, s{sU}, {row*1280}")
        e(f"buffer_load_dwordx4 v{vWO}, s[{S_B}:{S_B+3}], s{sT} offen lds")

    e(f"""
    s_load_dwordx8 s[4:11], s[0:1], 0
    s_load_dwordx4 s[12:15], s[0:1], 32
    s_load_dwordx2 s[16:17], s[0:1], 48
    s_cmp_ge_u32 s2, 256
    s_cbranch_scc1 L_end
    """)
    if 'half' in exp:
        e("s_bitcmp1_b32 s2, 6")
        e("s_cbranch_scc1 L_end")
    if 'quarter' in exp:
        e("s_and_b32 s40, s2, 0x60")
        e("s_cmp_lg_u32 s40, 0")
        e("s_cbranch_scc1 L_end")
    stamp(0); rstamp(9)
    if until: e("s_memrealtime s[98:99]")
    e(f"""
    v_lshrrev_b32 v1, 6, v0
    v_and_b32 v0, 63, v0
    s_and_b32 s{sT}, s2, 7
    s_lshr_b32 s{sT+1}, s2, 3
    v_readfirstlane_b32 s{sWAVE}, v1
    s_lshr_b32 s{sRC}, s{sT}, 1
    s_lshl_b32 s{sRC}, s{sRC}, 2
    s_lshr_b32 s{sT+2}, s{sT+1}, 3
    s_add_u32 s{sRC}, s{sRC}, s{sT+2}
    s_and_b32 s{sHP}, s{sT}, 1
    s_lshl_b32 s{sHP}, s{sHP}, 3
    s_and_b32 s{sT+2}, s{sT+1}, 7
    s_add_u32 s{sHP}, s{sHP}, s{sT+2}
    s_and_b32 s{sW4}, s{sWAVE}, 3
    s_mul_i32 s{sBB}, s{sHP}, 5
    s_and_b32 s{sBB}, s{sBB}, 7
    s_sub_u32 s{sBB}, 8, s{sBB}
    s_min_u32 s{sBB}, s{sBB}, 4
    s_mov_b32 s{sL}, {LOG2E:#x}
    s_cmp_ge_u32 s{sWAVE}, 4
    s_cbranch_scc1 L_lq
    """)
    if GPF:
        e(f"""
        s_lshl_b32 s{sT}, s{sW4}, 6
        v_add_u32 v2, s{sT}, v0                 ; n = 64*w + lane  (0..255)
        s_mul_i32 s{sT}, s2, 80
        s_mul_i32 s{sT+1}, s2, 75
        s_mul_i32 s{sT+2}, s2, 25
        s_sub_u32 s{sT+1}, s{sT+1}, 80
        s_sub_u32 s{sT+2}, s{sT+2}, 155
        s_waitcnt lgkmcnt(0)
        v_mov_b32 v3, s{sT+2}
        v_mov_b32 v4, s10
        v_mov_b32 v5, s11
        v_mov_b32 v6, s{sT+1}
        v_mov_b32 v7, s6
        v_mov_b32 v8, s7
        v_cmp_gt_u32 vcc, 155, v2
        s_nop 1
        v_cndmask_b32 v3, v3, v6, vcc
        v_cndmask_b32 v4, v4, v7, vcc
        v_cndmask_b32 v5, v5, v8, vcc
        v_mov_b32 v6, s{sT}
        v_mov_b32 v7, s4
        v_mov_b32 v8, s5
        v_cmp_gt_u32 vcc, 80, v2
        s_nop 1
        v_cndmask_b32 v3, v3, v6, vcc
        v_cndmask_b32 v4, v4, v7, vcc
        v_cndmask_b32 v5, v5, v8, vcc
        v_add_u32 v3, v3, v2
        v_lshlrev_b32 v3, 7, v3
        v_add_co_u32 v4, vcc, v4, v3
        s_nop 1
        v_addc_co_u32 v5, vcc, 0, v5, vcc
        """)
        if GPF_CODE:
            e(f"""
            s_getpc_b64 s[{sT+4}:{sT+5}]
L_pc_ref:
            s_min_u32 s{sT+3}, s2, (L_code_end-{KN})/128
            s_lshl_b32 s{sT+3}, s{sT+3}, 7
            s_sub_u32 s{sT+4}, s{sT+4}, L_pc_ref-{KN}
            s_subb_u32 s{sT+5}, s{sT+5}, 0
            s_add_u32 s{sT+4}, s{sT+4}, s{sT+3}
            s_addc_u32 s{sT+5}, s{sT+5}, 0
            s_min_u32 s{sT+3}, s2, 199
            s_lshl_b32 s{sT+3}, s{sT+3}, 7
            s_add_u32 s{sT+6}, s8, s{sT+3}
            s_addc_u32 s{sT+7}, s9, 0
            s_cmp_lg_u32 s{sW4}, 2
            s_cbranch_scc1 L_gpf_go
            v_writelane_b32 v4, s{sT+4}, 52
            v_writelane_b32 v5, s{sT+5}, 52
            v_writelane_b32 v4, s{sT+6}, 53
            v_writelane_b32 v5, s{sT+7}, 53
L_gpf_go:
            v_cmp_gt_u32 vcc, 182, v2
            """)
        else:
            e("v_cmp_gt_u32 vcc, 180, v2")
        e(f"""
        s_nop 1
        s_and_saveexec_b64 s[{sT}:{sT+1}], vcc
        s_cbranch_execz L_gpf_done
        global_load_dword v48, v[4:5], off
L_gpf_done:
        s_mov_b64 exec, -1
        """)

    ACC = 64; FB = [112, 128]; WF = 144; KB = 168; VB = 180; PK0 = 192; PK1 = 208; EP = 224; EN = 112; PH = 64; TM = 244
    vAA = 10; vBA = 14
    vPA, vPB = 34, 35
    sPART = 64
    e(f"""
    s_lshl_b32 s{sPART}, s{sHP}, 4
    s_add_u32 s{sPART}, s{sPART}, s{sRC}
    s_lshl_b32 s{sPART}, s{sPART}, 12
    s_add_u32 s{sPART}, s{sPART}, {WS_PART}
    s_waitcnt lgkmcnt(0)
    """)
    srd(S_WS, 16, 0x10000000)
    srd(S_A, 14, 256)
    if PF:
        srd(S_X, 6, 640*3840)
        e(f"""
        v_mov_b32 v37, 0x40000000
        s_lshr_b32 s{sT+1}, s2, 3               ; j
        s_and_b32 s{sT+2}, s2, 1
        s_mul_i32 s{sT+2}, s{sT+2}, 640         ; column half (bytes)
        v_mov_b32 v3, 0x40000000
        s_cmp_eq_u32 s{sW4}, 0
        s_cbranch_scc1 L_t_x
        s_cmp_eq_u32 s{sW4}, 1
        s_cbranch_scc1 L_t_kv
        v_mul_u32_u24 v2, 52, v0
        v_lshrrev_b32 v2, 8, v2                 ; l/5
        v_mul_u32_u24 v4, 5, v2
        v_sub_u32 v4, v0, v4
        v_lshlrev_b32 v4, 7, v4                 ; li*128
        s_mul_i32 s{sT+3}, s{sT+1}, 10
        v_add_u32 v2, s{sT+3}, v2               ; row
        s_mov_b32 s{sT+4}, 3840
        s_cmp_eq_u32 s{sW4}, 2
        s_cselect_b32 s{sT+4}, s{sT+4}, 1280
        v_mul_lo_u32 v2, v2, s{sT+4}
        v_add3_u32 v37, v2, v4, s{sT+2}
        v_cmp_gt_u32 vcc, 50, v0
        s_nop 1
        v_cndmask_b32 v37, v3, v37, vcc
        s_cmp_eq_u32 s{sW4}, 2
        s_cbranch_scc1 L_t_done
        """)
        srd(S_X, 10, 640*1280)
        e(f"""
        s_branch L_t_done
L_t_kv:
        v_mul_u32_u24 v2, 13, v0
        v_lshrrev_b32 v2, 8, v2                 ; q = l/20
        v_mul_u32_u24 v4, 20, v2
        v_sub_u32 v4, v0, v4                    ; l%20
        v_mul_u32_u24 v5, 26, v4
        v_lshrrev_b32 v5, 8, v5                 ; r = (l%20)/10
        v_mul_u32_u24 v6, 10, v5
        v_sub_u32 v4, v4, v6                    ; l%10
        v_mul_u32_u24 v6, 52, v4
        v_lshrrev_b32 v6, 8, v6                 ; ty
        v_mul_u32_u24 v7, 5, v6
        v_sub_u32 v4, v4, v7                    ; li
        v_lshlrev_b32 v4, 7, v4
        v_lshlrev_b32 v2, 6, v2                 ; 64q
        v_add_u32 v2, v2, v5
        s_lshl_b32 s{sT+3}, s{sT+1}, 1
        v_add_u32 v2, s{sT+3}, v2               ; row
        v_mul_u32_u24 v2, 3840, v2
        v_add_u32 v6, 1, v6
        v_mul_u32_u24 v6, 1280, v6
        v_add3_u32 v2, v2, v4, v6
        v_add_u32 v37, s{sT+2}, v2
        v_cmp_gt_u32 vcc, 60, v0
        s_nop 1
        v_cndmask_b32 v37, v3, v37, vcc
        s_branch L_t_done
L_t_x:
        v_and_b32 v2, 15, v0
        s_lshr_b32 s{sT+2}, s2, 1
        s_and_b32 s{sT+2}, s{sT+2}, 3
        s_lshl_b32 s{sT+2}, s{sT+2}, 9
        s_lshl_b32 s{sT+3}, s{sT+1}, 4
        s_add_u32 s{sT+2}, s{sT+2}, s{sT+3}
        v_add_u32 v2, s{sT+2}, v2
        v_mul_u32_u24 v2, 1280, v2
        v_lshrrev_b32 v4, 4, v0
        v_lshlrev_b32 v4, 7, v4
        v_add_u32 v37, v2, v4
        """)
        srd(S_X, 4, 2048*1280)
        a.label("L_t_done")
    def touch(wave, soff):
        if not PF: return
        lab = a.newlabel("TT")
        e(f"""
        s_cmp_lg_u32 s{sW4}, {wave}
        s_cbranch_scc1 {lab}
        s_mov_b32 s{sT}, {soff}
        buffer_load_dword v36, v37, s[{S_X}:{S_X+3}], s{sT} offen
{lab}:
        """)
    def code_touch():
        lab = a.newlabel("CT")
        e(f"""
        s_cmp_lg_u32 s{sW4}, 3
        s_cbranch_scc1 {lab}
        s_getpc_b64 s[{sT+4}:{sT+5}]
L_pc_ref:
        s_lshr_b32 s{sT+3}, s2, 3
        s_mul_i32 s{sT+3}, s{sT+3}, 7
        v_add_u32 v2, s{sT+3}, v0
        v_min_u32 v2, (L_code_end-{KN})/128, v2
        v_lshlrev_b32 v2, 7, v2
        s_sub_u32 s{sT+4}, s{sT+4}, L_pc_ref-{KN}
        s_subb_u32 s{sT+5}, s{sT+5}, 0
        v_mov_b32 v5, s{sT+5}
        v_add_co_u32 v4, vcc, s{sT+4}, v2
        s_nop 1
        v_addc_co_u32 v5, vcc, 0, v5, vcc
        v_cmp_gt_u32 vcc, 7, v0
        s_nop 1
        s_mov_b64 exec, vcc
        global_load_dword v47, v[4:5], off
        s_mov_b64 exec, -1
{lab}:
        """)
    def run_sched(when):
        if not PF: return
        for kind, arg in PFS.get(when, []):
            if kind == 'x': touch(0, arg*128)
            elif kind == 'kv': touch(1, arg*64*3840)
            elif kind == 'q': touch(2, arg*320*3840)
            elif kind == 'wo': touch(3, arg*320*1280)
            elif kind == 'code': code_touch()
    run_sched('e')
    e(f"""
    s_or_b32 s{sT}, s{sRC}, s{sHP}
    s_or_b32 s{sT}, s{sT}, s{sW4}
    s_cmp_lg_u32 s{sT}, 0
    s_cbranch_scc1 L_kv_nn
    s_memrealtime s[{sT+4}:{sT+5}]
    s_waitcnt lgkmcnt(0)
    s_or_b32 s{sT+4}, s{sT+4}, 1
    v_mov_b32 v2, 0
    v_mov_b32 v3, s{sT+4}
    s_mov_b64 exec, 1
    buffer_store_dword v3, v2, s[{S_A}:{S_A+3}], 0 offen sc1
    s_mov_b64 exec, -1
L_kv_nn:
    """)
    e(f"""
    v_lshlrev_b32 v2, 4, v0
    s_lshl_b32 s{sT}, s{sW4}, 10
    s_add_u32 s{sT}, s{sT}, {L_ZERO}
    v_add_u32 v2, s{sT}, v2
    v_mov_b32 v24, 0
    v_mov_b32 v25, 0
    v_mov_b32 v26, 0
    v_mov_b32 v27, 0
    s_cmp_eq_u32 s{sW4}, 3
    s_cbranch_scc1 L_kv_nz
    ds_write_b128 v2, v[24:27]
L_kv_nz:
    """)
    lane_decomp32(2, 3, 4, 5, 6)
    e(f"""
    v_lshlrev_b32 v5, 3, v5          ; 8Q
    v_mul_u32_u24 v6, 5, v6          ; 5hh
    v_lshrrev_b32 v7, 1, v2
    v_lshlrev_b32 v7, 3, v7
    v_add_u32 v7, v7, v3             ; krow
    v_lshlrev_b32 v7, 8, v7
    v_add_u32 v7, 16384, v7
    v_lshlrev_b32 v8, 2, v3          ; 4rp
    s_sub_u32 s{sT+1}, 4, s{sBB}
    """)
    for T in range(3):
        immc = 0; imms = 0
        for Q in range(4):
            q = TKV[T][Q] or TKV[T][0]
            immc |= q[1] << (8*Q); imms |= (8*q[0]) << (8*Q)
        e(f"""
        s_mov_b32 s{sT}, {immc}
        v_bfe_u32 v18, s{sT}, v5, 8
        v_add_u32 v18, v18, v6
        v_lshrrev_b32 v19, 1, v18
        v_mov_b32 v9, s{sT+1}
        v_cmp_le_u32 vcc, s{sBB}, v19
        v_mov_b32 v20, 0
        s_nop 0
        v_cndmask_b32 v9, v20, v9, vcc
        v_add_u32 v19, v19, v9
        s_mov_b32 s{sT}, {imms}
        v_bfe_u32 v9, s{sT}, v5, 8
        v_add3_u32 v19, v19, v9, v8
        v_and_b32 v19, 15, v19
        v_lshlrev_b32 v19, 4, v19
        v_and_b32 v18, 1, v18
        v_lshlrev_b32 v18, 3, v18
        v_add3_u32 v{vAA+T}, v7, v19, v18
        """)
    xfrag_addr(vBA, 2)
    def kv_reads(kk, buf, sb):
        b = FB[buf]
        e(f"ds_read_b128 v[{b+12}:{b+15}], v{vBA+kk} offset:{sb}")
        for T in range(3):
            for rd in range(2):
                e(f"ds_read_b64_tr_b16 v[{b+4*T+2*rd}:{b+4*T+2*rd+1}], v{vAA+T} offset:{sb+(16*kk+4*rd)*256}")
    def kv_mfmas(buf, first=False):
        b = FB[buf]
        for T in range(3):
            c = "0" if first else f"v[{ACC+16*T}:{ACC+16*T+15}]"
            e(f"v_mfma_f32_32x32x16_bf16 v[{ACC+16*T}:{ACC+16*T+15}], v[{b+4*T}:{b+4*T+3}], v[{b+12}:{b+15}], {c}")
    run_sched('pre')
    e("s_waitcnt lgkmcnt(0)")
    stamp(1)
    e("s_barrier")
    stamp(2)
    vNC, vRF = 38, 42
    base = Base([vAA, vAA+1, vAA+2, vBA, vBA+1, vBA+2, vBA+3])
    sb = base.set(0)
    kv_reads(0, 0, sb)
    for s in range(NST):
        for kk in range(3):
            kv_reads(kk+1, (kk+1) & 1, sb)
            e("s_waitcnt lgkmcnt(7)")
            kv_mfmas(kk & 1, first=(s == 0 and kk == 0))
        run_sched(s)
        if s == 0:
            e(f"v_mov_b32 v{vNC}, 0")
            e(f"buffer_load_dword v{vNC+1}, v{vNC}, s[{S_A}:{S_A+3}], 0 offen sc1")
        if s == 1: wphi_frags(WF, 18, 22)
        if s == 2 and 'p1only' not in exp:
            lab = a.newlabel("NF"); lab2 = a.newlabel("NC")
            e(f"""
            s_waitcnt vmcnt(0)
            v_readfirstlane_b32 s{sNONCE}, v{vNC+1}
            s_mov_b32 s{sSPIN}, {SPIN_G}
            s_cmp_lg_u32 s{sNONCE}, 0
            s_cbranch_scc1 {lab}
{lab2}:
            s_sub_u32 s{sSPIN}, s{sSPIN}, 1
            s_cbranch_scc1 L_end
            buffer_load_dword v{vNC+1}, v{vNC}, s[{S_A}:{S_A+3}], 0 offen sc1
            s_waitcnt vmcnt(0)
            v_readfirstlane_b32 s{sNONCE}, v{vNC+1}
            s_nop 0
            s_cmp_eq_u32 s{sNONCE}, 0
            s_cbranch_scc1 {lab2}
{lab}:
            """)
        if s == 3:
            lab = a.newlabel("RD")
            e(f"""
            s_cmp_lg_u32 s{sW4}, 0
            s_cbranch_scc1 {lab}
            s_add_u32 s{sT}, s{sPART}, 3840
            v_mov_b32 v2, 0
            v_mov_b32 v3, s{sNONCE}
            s_mov_b64 exec, 1
            buffer_store_dword v3, v2, s[{S_WS}:{S_WS+3}], s{sT} offen sc1
            s_mov_b64 exec, -1
{lab}:
            """)
        if s == 7:
            e(f"""
            v_and_b32 v2, 15, v0
            s_lshl_b32 s{sT}, s{sHP}, 4
            v_add_u32 v3, s{sT}, v2            ; hp*16 + r
            v_lshlrev_b32 v4, 4, v2
            v_add_u32 v4, s{sRC}, v4           ; h'*16 + rc
            v_bfe_u32 v5, v0, 4, 1
            v_cmp_eq_u32 vcc, 0, v5
            s_mov_b32 s{sT+1}, {WS_PART + 3840}
            s_nop 0
            v_cndmask_b32 v3, v4, v3, vcc
            v_lshlrev_b32 v{vRF}, 12, v3
            buffer_load_dword v{vRF+1}, v{vRF}, s[{S_WS}:{S_WS+3}], s{sT+1} offen sc1
            """)
        e("s_waitcnt lgkmcnt(0)")
        if s + 1 < NST: e("s_barrier")
        sstamp(s+1)
        if s + 1 < NST:
            sb = base.set(s+1)
            kv_reads(0, 0, sb)
        kv_mfmas(1)
    stamp(3)
    if 'p1only' in exp: e("s_branch L_fin")
    loc = {}
    for T, qs in enumerate(TKV):
        for Q, q in enumerate(qs):
            if q is not None: loc[q] = ACC + 16*T + 4*Q
    vRA = 18
    e(f"""
    v_and_b32 v2, 31, v0
    v_lshrrev_b32 v3, 5, v0
    v_lshlrev_b32 v3, 14, v3
    s_lshl_b32 s{sT}, s{sW4}, 5
    v_add_u32 v2, s{sT}, v2
    v_lshlrev_b32 v2, 7, v2
    v_add_u32 v2, v2, v3
    v_add_u32 v2, {L_PK}, v2
    v_and_b32 v3, 7, v0
    v_bfe_u32 v4, v0, 3, 1
    v_lshlrev_b32 v4, 2, v4
    v_xor_b32 v3, v3, v4
    v_lshlrev_b32 v3, 4, v3
    v_add_u32 v{vRA}, v2, v3
    """)
    for u in range(1, 8): e(f"v_xor_b32 v{vRA+u}, {16*u}, v{vRA}")
    if dump == "kvacc":
        e("s_nop 7"); dump_regs([loc[(sg, j)] + x for sg in range(2) for j in range(5) for x in range(4)], 0)
    for j in range(5):
        e(f"v_cvt_pk_bf16_f32 v{KB+2*j}, v{loc[(0,j)]}, v{loc[(0,j)]+1}")
        e(f"v_cvt_pk_bf16_f32 v{KB+2*j+1}, v{loc[(0,j)]+2}, v{loc[(0,j)]+3}")
    e(f"v_mov_b32 v{KB+10}, 0"); e(f"v_mov_b32 v{KB+11}, 0")
    e("s_nop 0")
    feature_map(KB, WF, PK0, PK1)
    for j in range(5):
        e(f"v_cvt_pk_bf16_f32 v{VB+2*j}, v{loc[(1,j)]}, v{loc[(1,j)]+1}")
        e(f"v_cvt_pk_bf16_f32 v{VB+2*j+1}, v{loc[(1,j)]+2}, v{loc[(1,j)]+3}")
    e(f"v_mov_b32 v{VB+10}, 0x3f80"); e(f"v_mov_b32 v{VB+11}, 0")
    for u in range(3):
        e(f"ds_write_b128 v{vRA+5+u}, v[{VB+4*u}:{VB+4*u+3}]")
    vKA = 26; vKB = 28
    e(f"""
    v_lshrrev_b32 v2, 4, v0            ; G
    v_bfe_u32 v3, v0, 2, 2             ; rp
    v_and_b32 v4, 3, v0                ; c
    v_lshlrev_b32 v5, 3, v2
    v_add_u32 v5, v5, v3
    v_lshlrev_b32 v5, 7, v5
    s_lshr_b32 s{sT}, s{sW4}, 1
    s_lshl_b32 s{sT}, s{sT}, 14
    s_add_u32 s{sT}, s{sT}, {L_PK}
    v_add_u32 v5, s{sT}, v5
    v_and_b32 v6, 1, v2
    v_lshlrev_b32 v6, 2, v6
    v_xor_b32 v6, v6, v3
    v_lshrrev_b32 v7, 1, v4
    v_and_b32 v8, 1, v4
    v_lshlrev_b32 v8, 3, v8
    v_add_u32 v5, v5, v8
    s_and_b32 s{sT+1}, s{sW4}, 1
    v_add_u32 v9, 5, v7
    v_mov_b32 v40, 7
    s_cmp_eq_u32 s{sT+1}, 1
    s_cselect_b64 vcc, -1, 0
    v_cndmask_b32 v9, v9, v40, vcc
    v_xor_b32 v9, v9, v6
    v_lshlrev_b32 v9, 4, v9
    v_add_u32 v{vKA}, v5, v9
    v_xor_b32 v{vKA+1}, 64, v{vKA}
    v_add_u32 v{vKA+1}, 512, v{vKA+1}
    """)
    for ct in range(3):
        if ct < 2: e(f"v_add_u32 v9, {2*ct}, v7")
        else: e(f"v_mov_b32 v9, 4")
        e(f"""
        v_xor_b32 v9, v9, v6
        v_lshlrev_b32 v9, 4, v9
        v_add_u32 v{vKB+2*ct}, v5, v9
        v_xor_b32 v{vKB+2*ct+1}, 64, v{vKB+2*ct}
        v_add_u32 v{vKB+2*ct+1}, 512, v{vKB+2*ct+1}
        """)
    e(f"""
    v_lshrrev_b32 v2, 4, v0            ; g
    v_and_b32 v3, 15, v0
    s_lshr_b32 s{sT}, s{sW4}, 1
    s_mul_i32 s{sT}, s{sT}, 6
    s_and_b32 s{sT+1}, s{sW4}, 1
    s_lshl_b32 s{sT+2}, s{sT+1}, 2
    s_add_u32 s{sT}, s{sT}, s{sT+2}
    v_add_u32 v4, s{sT}, v2
    v_mul_u32_u24 v4, 40, v4
    v_add_u32 v4, v4, v3
    v_lshlrev_b32 v4, 3, v4
    v_mov_b32 v5, 0x40000000
    s_lshl_b32 s{sT+2}, s{sT+1}, 1
    s_sub_u32 s{sT+2}, 4, s{sT+2}
    v_cmp_gt_u32 vcc, s{sT+2}, v2
    s_nop 1
    v_cndmask_b32 v{vPA}, v5, v4, vcc
    v_cmp_gt_u32 vcc, 8, v3
    s_nop 1
    v_cndmask_b32 v{vPB}, v5, v{vPA}, vcc
    """)
    if dump == "pk":
        dump_regs([PK0+i for i in range(16)] + [PK1+i for i in range(4)], 0)
    softmax_pair(PK0, PK1, EP, EN, PH, TM)
    if dump == "phik": dump_regs([PH+i for i in range(20)], 0)
    for u in range(5):
        e(f"ds_write_b128 v{vRA+u}, v[{PH+4*u}:{PH+4*u+3}]")
    subbar(0)
    stamp(4)
    KD = 192; KF = 64
    for kap in range(4):
        f = KF + 16*kap
        for rd in range(2):
            e(f"ds_read_b64_tr_b16 v[{f+2*rd}:{f+2*rd+1}], v{vKA+rd} offset:{4096*kap}")
        for ct in range(3):
            for rd in range(2):
                e(f"ds_read_b64_tr_b16 v[{f+4+4*ct+2*rd}:{f+4+4*ct+2*rd+1}], v{vKB+2*ct+rd} offset:{4096*kap}")
    for kap in range(4):
        f = KF + 16*kap
        e(f"s_waitcnt lgkmcnt({min(15, 8*(3-kap))})")
        for ct in range(3):
            c = "0" if kap == 0 else f"v[{KD+4*ct}:{KD+4*ct+3}]"
            e(f"v_mfma_f32_16x16x32_bf16 v[{KD+4*ct}:{KD+4*ct+3}], v[{f}:{f+3}], v[{f+4+4*ct}:{f+4+4*ct+3}], {c}")
    subsignal(1)
    vWO = 40
    srd(S_B, 10, 640*1280)
    wo_setup(vWO, 2)
    for ct in range(3):
        e(f"v_cvt_pk_bf16_f32 v{KD+16+2*ct}, v{KD+4*ct}, v{KD+4*ct+1}")
        e(f"v_cvt_pk_bf16_f32 v{KD+16+2*ct+1}, v{KD+4*ct+2}, v{KD+4*ct+3}")
    for ct in range(3):
        e(f"v_min_u32 v{KD+16+2*ct}, -2, v{KD+16+2*ct}")
    for ct in range(3):
        e(f"buffer_store_dwordx2 v[{KD+16+2*ct}:{KD+16+2*ct+1}], v{vPA if ct < 2 else vPB}, s[{S_WS}:{S_WS+3}], s{sPART} offen offset:{128*ct} sc1")
    stamp(5)
    lab = a.newlabel("RC"); lab2 = a.newlabel("RP")
    e(f"""
    s_waitcnt vmcnt(3)
    s_mov_b32 s{sSPIN}, {SPIN_G}
    s_mov_b32 s{sT+1}, {WS_PART + 3840}
    v_cmp_ne_u32 vcc, s{sNONCE}, v{vRF+1}
    s_cbranch_vccz {lab}
{lab2}:
    s_sub_u32 s{sSPIN}, s{sSPIN}, 1
    s_cbranch_scc1 L_end
    buffer_load_dword v{vRF+1}, v{vRF}, s[{S_WS}:{S_WS+3}], s{sT+1} offen sc1
    s_waitcnt vmcnt(0)
    v_cmp_ne_u32 vcc, s{sNONCE}, v{vRF+1}
    s_cbranch_vccnz {lab2}
{lab}:
    """)
    subwait(1, target=8)
    e(f"s_mov_b64 exec, s[{sEX}:{sEX+1}]")
    for sg in WO_P2:
        for rd in range(2): wo_dma(sg, rd, vWO)
    e("s_mov_b64 exec, -1")
    PL = 64; SUM = 128
    e(f"""
    v_and_b32 v2, 15, v0
    v_lshlrev_b32 v2, 12, v2           ; r*4096
    s_lshl_b32 s{sT+4}, s{sHP}, 16
    s_add_u32 s{sT+4}, s{sT+4}, {WS_PART}
    s_add_u32 s{sT+5}, s{sT+4}, {((1*6+5)*40+39)*8}
    s_mov_b32 s{sSPIN}, {SPIN_G}
    s_lshl_b32 s{sT}, s{sW4}, 6
    v_add_u32 v6, s{sT}, v0            ; tau
    v_lshlrev_b32 v7, 4, v6
    v_mov_b32 v4, 0x40000000
    v_cmp_gt_u32 vcc, 240, v6
    s_nop 1
    v_cndmask_b32 v7, v4, v7, vcc
    s_branch L_s1_sweep
L_s1_hint:
    s_sub_u32 s{sSPIN}, s{sSPIN}, 1
    s_cbranch_scc1 L_end
    buffer_load_dword v3, v2, s[{S_WS}:{S_WS+3}], s{sT+5} offen sc1
    s_waitcnt vmcnt(0)
    v_cmp_eq_u32 vcc, -1, v3
    s_cbranch_vccnz L_s1_hint
    """)
    a.label("L_s1_sweep")
    stamp(6)
    e(f"""
    s_sub_u32 s{sSPIN}, s{sSPIN}, 1
    s_cbranch_scc1 L_end
    s_mov_b32 s{sT}, s{sT+4}
    """)
    for r in range(16):
        e(f"buffer_load_dwordx4 v[{PL+4*r}:{PL+4*r+3}], v7, s[{S_WS}:{S_WS+3}], s{sT} offen sc1")
        e(f"s_add_u32 s{sT}, s{sT}, 4096")
    for r in range(16):
        e(f"s_waitcnt vmcnt({15-r})")
        if r == 0: e(f"v_max_u32 v{SUM+10}, v{PL}, v{PL+2}")
        else: e(f"v_max3_u32 v{SUM+10}, v{SUM+10}, v{PL+4*r}, v{PL+4*r+2}")
        for i in range(4):
            src = PL + 4*r + i
            if r == 0:
                e(f"v_lshlrev_b32 v{SUM+2*i}, 16, v{src}")
                e(f"v_and_b32 v{SUM+2*i+1}, 0xffff0000, v{src}")
            else:
                e(f"v_lshlrev_b32 v{SUM+8}, 16, v{src}")
                e(f"v_and_b32 v{SUM+9}, 0xffff0000, v{src}")
                e(f"v_add_f32 v{SUM+2*i}, v{SUM+2*i}, v{SUM+8}")
                e(f"v_add_f32 v{SUM+2*i+1}, v{SUM+2*i+1}, v{SUM+9}")
    e(f"""
    v_cmp_eq_u32 vcc, -1, v{SUM+10}
    s_cbranch_vccnz L_s1_hint
    """)
    for i in range(4):
        e(f"v_cvt_pk_bf16_f32 v{SUM+12+i}, v{SUM+2*i}, v{SUM+2*i+1}")
    e(f"""
    v_mul_u32_u24 v4, 205, v6
    v_lshrrev_b32 v4, 12, v4           ; tau/20
    v_mul_u32_u24 v5, 20, v4
    v_sub_u32 v5, v6, v5               ; fp
    v_mul_u32_u24 v5, 96, v5
    v_mul_u32_u24 v8, 43, v4
    v_lshrrev_b32 v8, 8, v8            ; hd
    v_mul_u32_u24 v9, 6, v8
    v_sub_u32 v9, v4, v9               ; dq
    v_mul_u32_u24 v8, 1920, v8
    v_lshlrev_b32 v9, 3, v9
    v_add3_u32 v5, v5, v8, v9
    v_add_u32 v5, {L_KVF}, v5
    v_cmp_gt_u32 vcc, 240, v6
    s_and_saveexec_b64 s[{sEX}:{sEX+1}], vcc
    ds_write_b64 v5, v[{SUM+12}:{SUM+13}]
    ds_write_b64 v5, v[{SUM+14}:{SUM+15}] offset:48
    s_mov_b64 exec, -1
    """)
    subsignal(2)
    stamp(7)
    e(f"""
    v_cmp_gt_u32 vcc, 40, v0
    s_nop 1
    s_mov_b64 s[{sEX}:{sEX+1}], vcc
    """)
    subwait(5, tmp=8)
    e(f"s_mov_b64 exec, s[{sEX}:{sEX+1}]")
    for sg in WO_P1:
        for rd in range(2): wo_dma(sg, rd, vWO)
    e("s_mov_b64 exec, -1")
    vWA = 10
    e(f"""
    v_lshrrev_b32 v2, 4, v0            ; G
    v_bfe_u32 v3, v0, 2, 2             ; rp
    v_and_b32 v4, 3, v0                ; c
    v_lshrrev_b32 v5, 1, v2
    v_lshlrev_b32 v5, 4, v5            ; 16*(G>>1)
    v_and_b32 v6, 1, v2
    v_lshlrev_b32 v6, 2, v6            ; 4*(G&1)
    v_add3_u32 v5, v5, v6, v3
    v_mul_u32_u24 v5, 160, v5
    v_lshlrev_b32 v4, 3, v4
    v_add_u32 v{vWA}, v5, v4
    v_add_u32 v{vWA+1}, 0x10000, v{vWA}
    v_add_u32 v{vWA+2}, 0x20000, v{vWA}
    s_and_b32 s{sT}, s{sHP}, 1
    s_lshl_b32 s{sT}, s{sT}, 2
    s_add_u32 s{sT}, s{sT}, s{sW4}     ; tt
    s_lshl_b32 s{sT+1}, s{sRC}, 3
    s_add_u32 s{sT+6}, s{sT}, s{sT+1}
    s_mul_i32 s{sT+4}, s{sT+6}, 20480
    s_add_u32 s{sT+4}, s{sT+4}, {WS_O}
    v_and_b32 v2, 15, v0
    v_lshrrev_b32 v3, 2, v2
    v_mul_u32_u24 v3, 5120, v3
    v_and_b32 v4, 3, v2
    v_lshlrev_b32 v4, 8, v4
    v_add3_u32 v2, v3, v4, 0
    v_add_u32 v2, 4096, v2
    v_lshlrev_b32 v7, 4, v0            ; lane*16
    """)
    OF = 96; OD = 40; AB = [176, 196, 216, 236, 60, 16]
    NB = len(AB)
    def wo_reads(sg):
        L = L_WO(sg); reg = vWA + L // 65536; b = AB[sg % NB]
        assert (L // 65536) == ((L + 1408) // 65536)
        off = L % 65536
        for nt in range(5):
            for rd in range(2):
                e(f"ds_read_b64_tr_b16 v[{b+4*nt+2*rd}:{b+4*nt+2*rd+1}], v{reg} offset:{off + rd*1280 + nt*32}")
    e("s_waitcnt vmcnt(0)")
    subbar(6, tmp=8)
    for sg in range(NB): wo_reads(sg)
    e(f"""
    s_mov_b32 s{sSPIN}, {SPIN_G}
L_s2_hint:
    s_sub_u32 s{sSPIN}, s{sSPIN}, 1
    s_cbranch_scc1 L_end
    buffer_load_dword v3, v2, s[{S_WS}:{S_WS+3}], s{sT+4} offen sc1
    s_waitcnt vmcnt(0)
    v_cmp_eq_u32 vcc, -1, v3
    s_cbranch_vccnz L_s2_hint
    """)
    stamp(8)
    e(f"s_mov_b32 s{sT}, s{sT+4}")
    for sg in range(20):
        d = OF + 4*sg
        e(f"buffer_load_dwordx4 v[{d}:{d+3}], v7, s[{S_WS}:{S_WS+3}], s{sT} offen offset:{(sg%4)*1024} sc1")
        if sg % 4 == 3: e(f"s_add_u32 s{sT}, s{sT}, 4096")
    retries = []
    for sg in range(20):
        e(f"s_waitcnt vmcnt({19-sg}) lgkmcnt({10 if (sg >= 1 and sg + NB - 1 < 20) else 0})")
        o = OF + 4*sg
        a.label(f"L_chk_{sg}")
        e(f"v_max_u32 v2, v{o}, v{o+2}")
        e(f"v_cmp_eq_u32 vcc, -1, v2")
        e(f"s_cbranch_vccnz L_rt_{sg}")
        retries.append(sg)
        for nt in range(5):
            D = OD + 4*nt
            c = "0" if sg == 0 else f"v[{D}:{D+3}]"
            b = AB[sg % NB] + 4*nt
            e(f"v_mfma_f32_16x16x32_bf16 v[{D}:{D+3}], v[{b}:{b+3}], v[{o}:{o+3}], {c}")
        if sg + NB < 20: wo_reads(sg + NB)
    srd(S_B, 12, 2048*1280)
    e(f"""
    v_and_b32 v2, 15, v0
    v_lshrrev_b32 v3, 4, v0
    s_lshl_b32 s{sT}, s{sT+6}, 4
    v_add_u32 v2, s{sT}, v2
    v_mul_u32_u24 v2, 1280, v2
    v_lshlrev_b32 v4, 3, v3
    v_add_u32 v2, v2, v4
    s_lshr_b32 s{sT}, s{sHP}, 1
    s_mul_i32 s{sT}, s{sT}, 160
    """)
    for nt in range(5):
        D = OD + 4*nt; P = 64 + 2*nt
        e(f"v_cvt_pk_bf16_f32 v{P}, v{D}, v{D+1}")
        e(f"v_cvt_pk_bf16_f32 v{P+1}, v{D+2}, v{D+3}")
    for nt in range(5):
        P = 64 + 2*nt
        e(f"buffer_store_dwordx2 v[{P}:{P+1}], v2, s[{S_B}:{S_B+3}], s{sT} offen offset:{32*nt}")
    e("s_branch L_fin")
    for sg in retries:
        o = OF + 4*sg
        a.label(f"L_rt_{sg}")
        e(f"""
        s_sub_u32 s{sSPIN}, s{sSPIN}, 1
        s_cbranch_scc1 L_end
        s_add_u32 s{sT}, s{sT+4}, {sg*1024}
        buffer_load_dwordx4 v[{o}:{o+3}], v7, s[{S_WS}:{S_WS+3}], s{sT} offen sc1
        s_waitcnt vmcnt(0)
        s_branch L_chk_{sg}
        """)

    a.label("L_lq")
    vVX, vVW, vWQ = 10, 11, 12
    vBA = 14
    XF = 64
    e(f"""
    v_lshrrev_b32 v2, 3, v0
    s_lshl_b32 s{sT}, s{sW4}, 3
    v_add_u32 v2, s{sT}, v2
    v_mul_u32_u24 v2, 1280, v2
    v_lshrrev_b32 v3, 4, v0                 ; r = l>>4
    s_and_b32 s{sT}, s{sW4}, 1
    s_lshl_b32 s{sT}, s{sT}, 2
    v_add_u32 v4, s{sT}, v3
    v_and_b32 v5, 7, v0
    v_xor_b32 v5, v5, v4
    v_lshlrev_b32 v5, 4, v5
    v_add_u32 v{vVX}, v2, v5
    v_and_b32 v4, 15, v0
    v_lshlrev_b32 v5, 2, v3
    v_sub_u32 v4, v4, v5
    v_and_b32 v4, 15, v4                    ; pos
    v_lshrrev_b32 v5, 3, v4                 ; seg
    v_bfe_u32 v6, v4, 2, 1                  ; part
    v_and_b32 v7, 3, v4                     ; i4
    v_mul_lo_u32 v8, v6, s{sBB}
    v_add_u32 v8, v8, v7                    ; j
    v_mov_b32 v9, 5
    v_mov_b32 v13, s{sBB}
    v_cmp_eq_u32 vcc, 0, v6
    s_lshl_b32 s{sT}, s{sW4}, 2
    v_add_u32 v2, s{sT}, v3
    v_cndmask_b32 v9, v9, v13, vcc
    v_cmp_lt_u32 vcc, v8, v9
    v_mul_u32_u24 v2, 3840, v2
    v_add_u32 v5, 1, v5
    v_mul_u32_u24 v5, 1280, v5
    v_lshlrev_b32 v8, 4, v8
    v_add3_u32 v{vVW}, v2, v5, v8
    v_mov_b32 v7, 0x40000000
    v_cndmask_b32 v{vVW}, v7, v{vVW}, vcc
    s_mul_i32 s{sSOFX}, s{sRC}, {128*1280}
    s_mul_i32 s{sSOFW}, s{sHP}, 80
    s_lshl_b32 s{sM0}, s{sW4}, 10
    """)
    stamp(4)
    e("s_waitcnt lgkmcnt(0)")
    stamp(8)
    srd(S_X, 4, 2048*1280)
    srd(S_W, 6, 640*3840)
    rotmode = [x for x in exp.split(',') if x.startswith('rot')]
    if rotmode:
        rm = rotmode[0]
        if rm == 'rot1': e(f"s_and_b32 s65, s{sHP}, 1")
        elif rm == 'rot5': e(f"s_and_b32 s65, s{sHP}, 1"); e("s_mul_i32 s65, s65, 5")
        elif rm == 'rotrc': e(f"s_and_b32 s65, s{sRC}, 1")
        elif rm == 'rothp': e(f"s_and_b32 s65, s{sHP}, 7")
        elif rm == 'rotmix': e(f"s_xor_b32 s65, s{sHP}, s{sRC}"); e("s_and_b32 s65, s65, 1")
    def issue_stage(s):
        m0b = (s % R) * SLOT
        if rotmode:
            e(f"s_add_u32 s66, s65, {s}")
            e(f"s_sub_u32 s67, s66, 10")
            e(f"s_cmp_ge_u32 s66, 10")
            e(f"s_cselect_b32 s66, s67, s66")
            e(f"s_mul_i32 s67, s66, {64*3840}")
            e(f"s_lshl_b32 s66, s66, 7")
            e(f"s_add_u32 s66, s66, s{sSOFX}")
            e(f"s_add_u32 s67, s67, s{sSOFW}")
            for m in range(4):
                e(f"s_add_u32 m0, s{sM0}, {m0b + m*4096}")
                e(f"s_add_u32 s{sT}, s66, {m*32*1280}")
                e(f"buffer_load_dwordx4 v{vVX}, s[{S_X}:{S_X+3}], s{sT} offen lds")
                e(f"s_add_u32 m0, s{sM0}, {m0b + 16384 + m*4096}")
                e(f"s_add_u32 s{sT}, s67, {m*16*3840}")
                e(f"buffer_load_dwordx4 v{vVW}, s[{S_W}:{S_W+3}], s{sT} offen lds")
            return
        for m in range(4):
            e(f"s_add_u32 m0, s{sM0}, {m0b + m*4096}")
            e(f"s_add_u32 s{sT}, s{sSOFX}, {m*32*1280 + s*128}")
            e(f"buffer_load_dwordx4 v{vVX}, s[{S_X}:{S_X+3}], s{sT} offen lds")
            e(f"s_add_u32 m0, s{sM0}, {m0b + 16384 + m*4096}")
            e(f"s_add_u32 s{sT}, s{sSOFW}, {m*16*3840 + s*64*3840}")
            e(f"buffer_load_dwordx4 v{vVW}, s[{S_W}:{S_W+3}], s{sT} offen lds")
    issue_stage(0)
    srd(S_A, 8, 32*800)
    e(f"""
    v_lshlrev_b32 v2, 4, v0
    s_and_b32 s{sT}, s{sW4}, 1
    s_lshl_b32 s{sT}, s{sT}, 10
    s_add_u32 m0, s{sT}, {L_PHI}
    s_mul_i32 s{sT+1}, s{sHP}, 1600
    s_add_u32 s{sT}, s{sT}, s{sT+1}
    buffer_load_dwordx4 v2, s[{S_A}:{S_A+3}], s{sT} offen lds
    """)
    issue_stage(1)
    srd(S_WS, 16, 0x10000000)
    sPART = 64
    e(f"""
    s_lshl_b32 s{sPART}, s{sHP}, 4
    s_add_u32 s{sPART}, s{sPART}, s{sRC}
    s_lshl_b32 s{sPART}, s{sPART}, 12
    s_add_u32 s{sPART}, s{sPART}, {WS_PART}
    v_mov_b32 v40, -1
    v_mov_b32 v41, -1
    v_mov_b32 v42, -1
    v_mov_b32 v43, -1
    s_lshl_b32 s{sT}, s{sW4}, 6
    v_add_u32 v2, s{sT}, v0            ; tau
    v_lshlrev_b32 v8, 4, v2
    v_mov_b32 v3, 0x40000000
    v_cmp_gt_u32 vcc, 240, v2
    v_lshrrev_b32 v9, 4, v0            ; g = l>>4
    v_and_b32 v44, 15, v0
    v_cndmask_b32 v8, v3, v8, vcc
    v_lshlrev_b32 v44, 4, v44          ; t'*16
    s_lshl_b32 s{sT}, s{sRC}, 3
    s_lshl_b32 s{sT+1}, s{sW4}, 1
    s_add_u32 s{sT}, s{sT}, s{sT+1}
    s_mul_i32 s{sT}, s{sT}, 20480
    s_lshr_b32 s{sT+1}, s{sHP}, 2
    s_mul_i32 s{sT+1}, s{sT+1}, 5120
    s_add_u32 s{sT}, s{sT}, s{sT+1}
    s_and_b32 s{sT+1}, s{sHP}, 3
    s_lshl_b32 s{sT+1}, s{sT+1}, 8
    s_add_u32 s{sT}, s{sT}, s{sT+1}
    s_add_u32 s{sT+3}, s{sT}, {WS_O}
    v_lshlrev_b32 v45, 10, v9
    v_add_u32 v45, v45, v44            ; i=0
    v_mov_b32 v46, 4096
    v_add_u32 v47, -1, v9
    v_lshlrev_b32 v47, 10, v47
    v_add_u32 v47, 20480, v47
    v_cmp_eq_u32 vcc, 0, v9
    s_nop 1
    v_cndmask_b32 v46, v47, v46, vcc
    v_add_u32 v46, v46, v44            ; i=1
    v_add_u32 v47, 3, v9
    v_lshlrev_b32 v47, 10, v47
    v_add_u32 v47, 20480, v47
    v_add_u32 v47, v47, v44
    v_cmp_gt_u32 vcc, 2, v9
    s_nop 1
    v_cndmask_b32 v47, v3, v47, vcc    ; i=2
    buffer_store_dwordx4 v[40:43], v8, s[{S_WS}:{S_WS+3}], s{sPART} offen sc1
    buffer_store_dwordx4 v[40:43], v45, s[{S_WS}:{S_WS+3}], s{sT+3} offen sc1
    buffer_store_dwordx4 v[40:43], v46, s[{S_WS}:{S_WS+3}], s{sT+3} offen sc1
    buffer_store_dwordx4 v[40:43], v47, s[{S_WS}:{S_WS+3}], s{sT+3} offen sc1
    """)
    xfrag_addr(vBA, 2)
    e(f"""
    v_mul_u32_u24 v2, 52, v0
    v_lshrrev_b32 v2, 8, v2
    v_mul_u32_u24 v3, 5, v2
    v_sub_u32 v3, v0, v3
    v_lshlrev_b32 v3, 4, v3
    v_mul_u32_u24 v2, 3840, v2
    v_add_u32 v{vWQ}, v2, v3
    v_cmp_gt_u32 vcc, 40, v0
    s_nop 1
    s_mov_b64 s[{sEX}:{sEX+1}], vcc
    """)
    def issue_wq(i0, i1):
        e(f"s_mov_b64 exec, s[{sEX}:{sEX+1}]")
        e(f"s_mul_i32 s{sT+1}, s{sW4}, 640")
        e(f"s_mul_i32 s{sT+2}, s{sW4}, {8*3840}")
        e(f"s_add_u32 s{sT+2}, s{sT+2}, s{sSOFW}")
        for m in range(i0, i1):
            e(f"s_add_u32 m0, s{sT+1}, {L_WQ + m*4*640}")
            e(f"s_add_u32 s{sT}, s{sT+2}, {m*32*3840}")
            e(f"buffer_load_dwordx4 v{vWQ}, s[{S_W}:{S_W+3}], s{sT} offen lds")
        e("s_mov_b64 exec, -1")
    base = Base([vBA, vBA+1, vBA+2, vBA+3])
    stamp(1)
    for s in range(NST):
        if s <= 1: e("s_waitcnt vmcnt(12) lgkmcnt(0)")
        elif s <= 8: e("s_waitcnt vmcnt(8) lgkmcnt(0)")
        else: e("s_waitcnt vmcnt(0) lgkmcnt(0)")
        e("s_barrier")
        sstamp(s+1)
        if s == 0: stamp(2)
        sb = base.set(s)
        for kk in range(4):
            d = XF + 16*s + 4*kk
            e(f"ds_read_b128 v[{d}:{d+3}], v{vBA+kk} offset:{sb}")
        if s + 2 < NST: issue_stage(s+2)
        if s == NST - 1:
            issue_wq(0, 10)
            issue_wq(10, 20)
    QA = 224; vQA = 18; vWO = 56
    lane_decomp32(2, 3, 4, 5, 6)
    e(f"""
    v_lshrrev_b32 v7, 1, v2
    v_lshlrev_b32 v7, 3, v7
    v_add_u32 v7, v7, v3
    v_mul_u32_u24 v7, 80, v7
    v_mul_u32_u24 v6, 40, v6
    v_add_u32 v7, v7, v6
    v_add_u32 v7, {L_WQ}, v7
    v_lshlrev_b32 v5, 3, v5
    v_add_u32 v{vQA}, v7, v5
    v_add_u32 v{vQA+1}, 32, v7
    """)
    e("s_waitcnt lgkmcnt(0)")
    subsignal(1, tmp=60)
    e("s_waitcnt vmcnt(10)")
    subbar(7, tmp=60)
    if 'prio' in exp: e("s_setprio 1")
    stamp(3)
    if 'p1only' in exp:
        e("s_waitcnt vmcnt(0)")
        e("s_branch L_fin")
    QF3 = [32, 40, 48]
    def q_reads3(k):
        b = QF3[k % 3]
        for T in range(2):
            for rd in range(2):
                e(f"ds_read_b64_tr_b16 v[{b+4*T+2*rd}:{b+4*T+2*rd+1}], v{vQA+T} offset:{(16*k+4*rd)*80}")
    wolist = [(sg, rd) for sg in WO_P1 for rd in range(2)]
    nwo = 0
    q_reads3(0); q_reads3(1)
    for k in range(40):
        if k + 2 < 40:
            q_reads3(k+2)
            e("s_waitcnt lgkmcnt(8)")
        elif k + 1 < 40: e("s_waitcnt lgkmcnt(4)")
        else: e("s_waitcnt lgkmcnt(0)")
        for T in range(2):
            c = "0" if k == 0 else f"v[{QA+16*T}:{QA+16*T+15}]"
            b = QF3[k % 3]
            e(f"v_mfma_f32_32x32x16_bf16 v[{QA+16*T}:{QA+16*T+15}], v[{b+4*T}:{b+4*T+3}], v[{XF+4*k}:{XF+4*k+3}], {c}")
        if k == 17:
            e(f"s_waitcnt vmcnt(0)")
            subbar(3, tmp=60)
    if 'prio' in exp: e("s_setprio 0")
    stamp(5)
    WF = 64; QB = 88; PQ0 = 100; PQ1 = 116; EP = 132; EN = 152; PH = 172; TM = 192
    wphi_frags(WF, 20, 22)
    if dump == "qacc":
        e("s_nop 7"); dump_regs([QA+i for i in range(20)], 0)
    for j in range(5):
        src = QA + 4*j if j < 4 else QA + 16
        e(f"v_cvt_pk_bf16_f32 v{QB+2*j}, v{src}, v{src+1}")
        e(f"v_cvt_pk_bf16_f32 v{QB+2*j+1}, v{src+2}, v{src+3}")
    e(f"v_mov_b32 v{QB+10}, 0"); e(f"v_mov_b32 v{QB+11}, 0")
    e("s_waitcnt lgkmcnt(0)")
    feature_map(QB, WF, PQ0, PQ1)
    vOA = 20
    lane_decomp32(2, 3, 4, 5, 6)
    e(f"""
    v_mul_u32_u24 v7, 1920, v6
    v_mul_u32_u24 v8, 48, v3
    v_lshlrev_b32 v9, 3, v5
    v_add3_u32 v7, v7, v8, v9
    v_add_u32 v7, {L_KVF}, v7
    v_lshrrev_b32 v8, 1, v2
    v_mov_b32 v9, {L_ZERO}
    v_cmp_eq_u32 vcc, v8, v6
    s_nop 1
    v_cndmask_b32 v{vOA}, v9, v7, vcc
    v_cmp_gt_u32 s[{sEX}:{sEX+1}], 2, v5
    s_nop 1
    s_and_b64 vcc, vcc, s[{sEX}:{sEX+1}]
    v_add_u32 v7, 32, v7
    s_nop 0
    v_cndmask_b32 v{vOA+1}, v9, v7, vcc
    v_and_b32 v2, 15, v0
    v_lshlrev_b32 v2, 4, v2
    v_bfe_u32 v3, v0, 4, 1
    v_mul_u32_u24 v3, 20480, v3
    v_add_u32 v2, v2, v3
    v_lshrrev_b32 v4, 5, v0            ; h
    v_lshlrev_b32 v5, 11, v4           ; c5 = 2h -> 2h*1024
    v_add_u32 v22, v5, v2
    v_lshlrev_b32 v6, 3, v4
    v_add_u32 v23, v6, v2
    s_lshl_b32 s{sT+4}, s{sRC}, 3
    s_lshl_b32 s{sT+1}, s{sW4}, 1
    s_add_u32 s{sT+4}, s{sT+4}, s{sT+1}
    s_mul_i32 s{sT+4}, s{sT+4}, 20480
    s_lshr_b32 s{sT+1}, s{sHP}, 2
    s_mul_i32 s{sT+1}, s{sT+1}, 5120
    s_add_u32 s{sT+4}, s{sT+4}, s{sT+1}
    s_and_b32 s{sT+1}, s{sHP}, 3
    s_lshl_b32 s{sT+1}, s{sT+1}, 8
    s_add_u32 s{sT+4}, s{sT+4}, s{sT+1}
    s_add_u32 s{sT+4}, s{sT+4}, {WS_O}
    s_add_u32 s{sT+5}, s{sT+4}, 4096
    """)
    softmax_pair(PQ0, PQ1, EP, EN, PH, TM)
    if dump == "phiq": dump_regs([PH+i for i in range(20)], 0)
    stamp(6)
    subwait(2)
    stamp(7)
    KA = 64; N0 = 104; N1 = 120
    for st in range(5):
        for U in range(2):
            for rd in range(2):
                d = KA + (U*5+st)*4 + 2*rd
                e(f"ds_read_b64_tr_b16 v[{d}:{d+1}], v{vOA+U} offset:{(8*st+4*rd)*48}")
    for st in range(5):
        e(f"s_waitcnt lgkmcnt({min(15, 4*(4-st))})")
        for U, N in ((0, N0), (1, N1)):
            c = "0" if st == 0 else f"v[{N}:{N+15}]"
            d = KA + (U*5+st)*4
            e(f"v_mfma_f32_32x32x16_bf16 v[{N}:{N+15}], v[{d}:{d+3}], v[{PH+4*st}:{PH+4*st+3}], {c}")
    e("s_nop 7")
    e("s_nop 3")
    e(f"v_add_f32 v8, 0x358637bd, v{N1+4}")
    e("v_rcp_f32 v8, v8")
    e("s_nop 0")
    OB = 136
    for i in range(8):
        e(f"v_mul_f32 v{N0+2*i}, v{N0+2*i}, v8"); e(f"v_mul_f32 v{N0+2*i+1}, v{N0+2*i+1}, v8")
        e(f"v_cvt_pk_bf16_f32 v{OB+i}, v{N0+2*i}, v{N0+2*i+1}")
    for i in range(2):
        e(f"v_mul_f32 v{N1+2*i}, v{N1+2*i}, v8"); e(f"v_mul_f32 v{N1+2*i+1}, v{N1+2*i+1}, v8")
        e(f"v_cvt_pk_bf16_f32 v{OB+8+i}, v{N1+2*i}, v{N1+2*i+1}")
    for i in (0, 2, 4, 6, 8):
        e(f"v_min_u32 v{OB+i}, -2, v{OB+i}")
    e(f"""
    buffer_store_dwordx4 v[{OB}:{OB+3}], v22, s[{S_WS}:{S_WS+3}], s{sT+4} offen sc1
    buffer_store_dwordx4 v[{OB+4}:{OB+7}], v22, s[{S_WS}:{S_WS+3}], s{sT+4} offen offset:1024 sc1
    buffer_store_dwordx2 v[{OB+8}:{OB+9}], v23, s[{S_WS}:{S_WS+3}], s{sT+5} offen sc1
    """)
    subsignal(5)
    a.label("L_fin")
    if until:
        e(f"""
        s_waitcnt vmcnt(0) lgkmcnt(0)
L_until:
        s_memrealtime s[94:95]
        s_waitcnt lgkmcnt(0)
        s_sub_u32 s96, s94, s98
        s_cmp_lt_u32 s96, {until}
        s_cbranch_scc1 L_until
        """)
    if stamps:
        stamp(10)
        e("s_waitcnt vmcnt(0)")
        e(f"""
        s_waitcnt lgkmcnt(0)
        s_lshl_b32 s{sT}, s2, 3
        s_add_u32 s{sT}, s{sT}, s{sWAVE}
        s_lshl_b32 s{sT}, s{sT}, 6
        s_add_u32 s{sT}, s{sT}, {WS_STAMP}
        v_mov_b32 v2, 0
        """)
        for i in range(NS): e(f"v_mov_b32 v{20+i}, s{sST+2*i}")
        e(f"""
        s_mov_b64 exec, 1
        buffer_store_dwordx4 v[20:23], v2, s[{S_WS}:{S_WS+3}], s{sT} offen
        buffer_store_dwordx4 v[24:27], v2, s[{S_WS}:{S_WS+3}], s{sT} offen offset:16
        buffer_store_dwordx4 v[28:31], v2, s[{S_WS}:{S_WS+3}], s{sT} offen offset:32
        """)
    if dbgwg >= 0:
        e(f"""
        s_cmp_lg_u32 s2, {dbgwg}
        s_cbranch_scc1 L_end
        s_cmp_lg_u32 s{sWAVE}, {dbgwave}
        s_cbranch_scc1 L_end
        s_mov_b64 exec, -1
        s_mov_b32 s72, s14
        s_and_b32 s73, s15, 0xffff
        s_mov_b32 s74, 256
        s_mov_b32 s75, 0x20000
        """)
        for i in range(1, NS):
            e(f"s_sub_u32 s{sT}, s{sST+2*i}, s{sST}")
            e(f"v_mov_b32 v{20+i}, s{sT}")
        e("v_mov_b32 v2, 0")
        e("s_mov_b64 exec, 1")
        for i in range(1, NS):
            e(f"buffer_store_dword v{20+i}, v2, s[72:75], 0 offen offset:{4*i}")
    a.label("L_end")
    e("s_endpgm")
    a.label("L_code_end")
    hdr = HEADER + f"; @launch grid=(256,1,1) block=(512,1,1) lds={LDS_BYTES}\n"
    return hdr + f""".amdgcn_target "amdgcn-amd-amdhsa--gfx950"
.text
.globl {KN}
.p2align 8
.type {KN},@function
{KN}:
""" + a.text() + """.section .rodata,"a"
""" + kernel_desc(KN, 256, 102, 256)

if __name__ == "__main__":
    import argparse
    ap = argparse.ArgumentParser()
    ap.add_argument("--stamps", action="store_true")
    ap.add_argument("--dump", default=None)
    ap.add_argument("--stagest", action="store_true")
    ap.add_argument("--exp", default="")
    ap.add_argument("--until", type=int, default=0)
    ap.add_argument("--dbgwg", type=int, default=-1)
    ap.add_argument("--dbgwave", type=int, default=0)
    ap.add_argument("--pf", default="none")
    ap.add_argument("--nogpf", action="store_true")
    ap.add_argument("--nocode", action="store_true")
    args = ap.parse_args()
    if args.pf == "none": PF = False
    else: PF = True; PFS = PFS_TAB[args.pf]
    if args.nogpf: GPF = False
    if args.nocode: GPF_CODE = False
    print(gen(stamps=args.stamps, dump=args.dump, stagest=args.stagest, exp=args.exp, until=args.until, dbgwg=args.dbgwg, dbgwave=args.dbgwave))
```

```python
import sys
from asmlib import *
from lay2 import TKV, TQ

KN = "standalone__linear_kernel_hedgehog__prompt_kernel"
NST = 10
SLOT = 32768
R = 3
L_WQ = 98304
L_PHI = 149504
L_ZERO = 151552
L_CNT = 153600
L_KVF = 154624
L_PK = 32768
L_WO19 = 158464
LDS_BYTES = 163840
def L_WO(sg): return sg*5120 if sg <= 18 else L_WO19
WO_P1 = [0,1,2,3,4,5,13,14,15,16,17,18,19]
WO_P2 = [6,7,8,9,10,11,12]
WO_PA = [0,1,2,3,4,5]
WO_PC = [0,1,2,3]
WO_PD = [4,5,13,14,15,16,17,18,19]
WS_PART = 0x000000
WS_O = 0x100000
WS_RDY = 0x400000
WS_STAMP = 0x700000
WS_DBG = 0x800000
PF = False
GPF = True
GPF_CODE = True
PFS_TAB = {
 'b':  {'pre': [('x',2),('kv',2)], 0: [('kv',5),('x',6)], 1: [('kv',8),('q',0),('q',1)], 3: [('wo',0),('wo',1)]},
 'e1': {'e': [('x',0),('kv',2),('code',0)], 'pre': [('x',4)], 0: [('kv',5),('x',8)], 1: [('kv',8)], 3: [('q',0)], 4: [('q',1)], 6: [('wo',0)], 7: [('wo',1)]},
 'e2': {'e': [('x',2),('kv',2),('code',0)], 0: [('kv',5),('x',6)], 1: [('kv',8)], 3: [('q',0)], 4: [('q',1)], 6: [('wo',0)], 7: [('wo',1)]},
 'e3': {'e': [('x',0),('kv',0),('code',0)], 'pre': [('x',4),('kv',3)], 0: [('kv',6),('x',8)], 1: [('kv',9)], 3: [('q',0)], 4: [('q',1)], 6: [('wo',0)], 7: [('wo',1)]},
 'e4': {'e': [('x',2),('kv',2),('code',0)], 'pre': [('x',6),('kv',5)], 0: [('kv',8)], 2: [('q',0)], 3: [('q',1)], 5: [('wo',0)], 6: [('wo',1)]},
 'e5': {'e': [('code',0)], 'pre': [('x',2),('kv',2)], 0: [('kv',5),('x',6)], 2: [('kv',8)], 4: [('q',0)], 5: [('q',1)], 7: [('wo',0)], 8: [('wo',1)]},
 'wo': {'e': [('code',0)], 4: [('q',0)], 5: [('q',1)], 7: [('wo',0)], 8: [('wo',1)]},
 'l1': {5: [('q',0)], 6: [('q',1)], 8: [('wo',0)], 9: [('wo',1)]},
 'l2': {8: [('wo',0)], 9: [('wo',1)]},
 'l3': {3: [('q',0)], 4: [('q',1)], 6: [('wo',0)], 7: [('wo',1)]},
 'l4': {6: [('q',0)], 7: [('q',1)], 9: [('wo',0),('wo',1)]},
}
PFS = PFS_TAB['b']
LOG2E = 0x3fb8aa3b
NLOG2E = 0xbfb8aa3b
SPIN_G = 0x8000
SPIN_L = 0x80000

def gen(stamps=False, dump=None, stagest=False, exp='', until=0, dbgwg=-1, dbgwave=0):
    a = Asm(); e = a.e
    S_X, S_W, S_WS = 20, 24, 28
    S_A, S_B = 72, 76
    sWAVE, sW4, sRC, sHP, sBB = 32, 33, 34, 35, 36
    sT = 40
    sSOFX, sSOFW, sM0 = 52, 53, 54
    sNONCE = 55
    sL = 56
    sEX = 58
    sSPIN = 60
    sU, sV = 62, 63
    sUS = 65
    sBLK, sG = 66, 67
    sST = 80
    NS = 11
    def sstamp(i):
        if stagest: e(f"s_memtime s[{sST+2*i}:{sST+2*i+1}]")
    def stamp(i):
        if stamps and not (stagest and i > 0): e(f"s_memtime s[{sST+2*i}:{sST+2*i+1}]")
    def rstamp(i):
        if stamps and not stagest: e(f"s_memrealtime s[{sST+2*i}:{sST+2*i+1}]")
    def srd(dst, ptr, nbytes):
        e(f"""
        s_mov_b32 s{dst}, s{ptr}
        s_and_b32 s{dst+1}, s{ptr+1}, 0xffff
        s_mov_b32 s{dst+2}, {nbytes}
        s_mov_b32 s{dst+3}, 0x20000
        """)
    def subsignal(idx, tmp=2):
        e(f"""
        v_mov_b32 v{tmp}, {L_CNT + 4*idx}
        v_mov_b32 v{tmp+1}, 1
        s_mov_b64 exec, 1
        ds_add_u32 v{tmp}, v{tmp+1}
        s_mov_b64 exec, -1
        """)
    def subwait(idx, target=4, tmp=2):
        lab = a.newlabel("SW")
        e(f"v_mov_b32 v{tmp}, {L_CNT + 4*idx}")
        e(f"s_mov_b32 s{sSPIN}, {SPIN_L}")
        a.label(lab)
        e(f"""
        s_sub_u32 s{sSPIN}, s{sSPIN}, 1
        s_cbranch_scc1 L_end
        ds_read_b32 v{tmp+1}, v{tmp}
        s_waitcnt lgkmcnt(0)
        v_readfirstlane_b32 s{sT}, v{tmp+1}
        s_nop 0
        s_cmp_lt_u32 s{sT}, {target}
        s_cbranch_scc1 {lab}
        """)
    def subbar(idx, target=4, tmp=2):
        subsignal(idx, tmp); subwait(idx, target, tmp)
    def dump_regs(regs, off):
        n = len(regs)
        e(f"""
        s_lshl_b32 s{sT}, s2, 3
        s_add_u32 s{sT}, s{sT}, s{sWAVE}
        s_mul_i32 s{sT}, s{sT}, {n*256}
        s_add_u32 s{sT}, s{sT}, {WS_DBG + off}
        v_lshlrev_b32 v2, 2, v0
        """)
        for i, r in enumerate(regs):
            e(f"buffer_store_dword v{r}, v2, s[{S_WS}:{S_WS+3}], s{sT} offen offset:{(i%16)*256}")
            if i % 16 == 15: e(f"s_add_u32 s{sT}, s{sT}, 4096")
        e("s_waitcnt vmcnt(0)")
    def softmax_pair(P0, P1, EP, EN, PH, tm):
        p = [P0 + i for i in range(16)] + [P1 + i for i in range(4)]
        tM, tN, tA, tB = tm, tm+1, tm+2, tm+4
        e(f"v_max3_f32 v{tM}, v{p[0]}, v{p[1]}, v{p[2]}")
        e(f"v_min3_f32 v{tN}, v{p[0]}, v{p[1]}, v{p[2]}")
        for i in range(3, 19, 2):
            e(f"v_max3_f32 v{tM}, v{tM}, v{p[i]}, v{p[i+1]}")
            e(f"v_min3_f32 v{tN}, v{tN}, v{p[i]}, v{p[i+1]}")
        e(f"v_max_f32 v{tM}, v{tM}, v{p[19]}")
        e(f"v_min_f32 v{tN}, v{tN}, v{p[19]}")
        e(f"v_mul_f32 v{tA}, {NLOG2E:#x}, v{tM}")
        e(f"v_mul_f32 v{tB}, {LOG2E:#x}, v{tN}")
        for i in range(20):
            e(f"v_fma_f32 v{EP+i}, v{p[i]}, s{sL}, v{tA}")
            e(f"v_fma_f32 v{EN+i}, -v{p[i]}, s{sL}, v{tB}")
        for i in range(20):
            e(f"v_exp_f32 v{EP+i}, v{EP+i}")
            e(f"v_exp_f32 v{EN+i}, v{EN+i}")
        e(f"v_add_f32 v{tA}, v{EP}, v{EP+1}"); e(f"v_add_f32 v{tB}, v{EN}, v{EN+1}")
        e(f"v_add_f32 v{tA+1}, v{EP+2}, v{EP+3}"); e(f"v_add_f32 v{tB+1}, v{EN+2}, v{EN+3}")
        for i in range(4, 20, 2):
            e(f"v_add_f32 v{tA}, v{tA}, v{EP+i}"); e(f"v_add_f32 v{tB}, v{tB}, v{EN+i}")
            e(f"v_add_f32 v{tA+1}, v{tA+1}, v{EP+i+1}"); e(f"v_add_f32 v{tB+1}, v{tB+1}, v{EN+i+1}")
        e(f"v_add_f32 v{tA}, v{tA}, v{tA+1}")
        e(f"v_add_f32 v{tB}, v{tB}, v{tB+1}")
        e(f"v_rcp_f32 v{tA}, v{tA}")
        e(f"v_rcp_f32 v{tB}, v{tB}")
        e("s_nop 0")
        for i in range(10):
            e(f"v_mul_f32 v{EP+2*i}, v{EP+2*i}, v{tA}"); e(f"v_mul_f32 v{EP+2*i+1}, v{EP+2*i+1}, v{tA}")
            e(f"v_mul_f32 v{EN+2*i}, v{EN+2*i}, v{tB}"); e(f"v_mul_f32 v{EN+2*i+1}, v{EN+2*i+1}, v{tB}")
            e(f"v_cvt_pk_bf16_f32 v{PH+i}, v{EP+2*i}, v{EP+2*i+1}")
            e(f"v_cvt_pk_bf16_f32 v{PH+10+i}, v{EN+2*i}, v{EN+2*i+1}")
    def lane_decomp32(vG, vrp, vc, vQ, vhh):
        e(f"""
        v_lshrrev_b32 v{vG}, 4, v0
        v_bfe_u32 v{vrp}, v0, 2, 2
        v_and_b32 v{vc}, 3, v0
        v_and_b32 v{vQ}, 1, v{vG}
        v_lshlrev_b32 v{vQ}, 1, v{vQ}
        v_lshrrev_b32 v{vhh}, 1, v{vc}
        v_add_u32 v{vQ}, v{vQ}, v{vhh}
        v_and_b32 v{vhh}, 1, v{vc}
        """)
    def wphi_frags(WF, va, t):
        vG, vrp, vc, vQ, vhh = t, t+1, t+2, t+3, t+4
        lane_decomp32(vG, vrp, vc, vQ, vhh)
        e(f"""
        v_mul_u32_u24 v{t+5}, 800, v{vhh}
        v_mul_u32_u24 v{t+6}, 40, v{vrp}
        v_add_u32 v{t+5}, v{t+5}, v{t+6}
        v_lshlrev_b32 v{t+6}, 3, v{vQ}
        v_add_u32 v{t+5}, v{t+5}, v{t+6}
        v_add_u32 v{t+5}, {L_PHI}, v{t+5}
        v_lshrrev_b32 v{t+6}, 1, v{vG}
        v_mov_b32 v{va+1}, {L_ZERO}
        v_cmp_eq_u32 vcc, v{t+6}, v{vhh}
        s_nop 1
        v_cndmask_b32 v{va}, v{va+1}, v{t+5}, vcc
        v_cmp_eq_u32 s[{sEX}:{sEX+1}], 0, v{vQ}
        s_nop 1
        s_and_b64 vcc, vcc, s[{sEX}:{sEX+1}]
        v_add_u32 v{t+5}, 32, v{t+5}
        s_nop 0
        v_cndmask_b32 v{va+1}, v{va+1}, v{t+5}, vcc
        """)
        for u in range(2):
            for step in range(3):
                for rd in range(2):
                    d = WF + u*12 + step*4 + 2*rd
                    if step == 2 and rd == 1:
                        e(f"v_mov_b32 v{d}, 0"); e(f"v_mov_b32 v{d+1}, 0")
                    else:
                        e(f"ds_read_b64_tr_b16 v[{d}:{d+1}], v{va+u} offset:{(8*step+4*rd)*40}")
    def feature_map(SRC, WF, P0, P1):
        for step in range(3):
            for u, P in ((0, P0), (1, P1)):
                c = "0" if step == 0 else f"v[{P}:{P+15}]"
                e(f"v_mfma_f32_32x32x16_bf16 v[{P}:{P+15}], v[{WF+u*12+step*4}:{WF+u*12+step*4+3}], v[{SRC+4*step}:{SRC+4*step+3}], {c}")
    def xfrag_addr(vBA, t):
        e(f"""
        v_and_b32 v{t}, 31, v0
        v_lshrrev_b32 v{t+1}, 5, v0
        v_bfe_u32 v{t+2}, v{t}, 1, 3
        v_xor_b32 v{t+2}, v{t+2}, v{t+1}
        v_lshlrev_b32 v{t+2}, 4, v{t+2}
        s_lshl_b32 s{sT}, s{sW4}, 5
        v_add_u32 v{t}, s{sT}, v{t}
        v_lshlrev_b32 v{t}, 7, v{t}
        v_add_u32 v{vBA}, v{t}, v{t+2}
        v_xor_b32 v{vBA+1}, 32, v{vBA}
        v_xor_b32 v{vBA+2}, 64, v{vBA}
        v_xor_b32 v{vBA+3}, 96, v{vBA}
        """)
    class Base:
        def __init__(self, regs): self.regs = regs; self.cur = 0
        def set(self, s):
            so = (s % R) * SLOT
            want = (so // 65536) * 65536
            if want != self.cur:
                d = (want - self.cur) & 0xffffffff
                for r in self.regs: e(f"v_add_u32 v{r}, {d}, v{r}")
                self.cur = want
            return so - self.cur
    def wo_setup(vWO, t):
        e(f"""
        v_mul_u32_u24 v{t}, 26, v0
        v_lshrrev_b32 v{t}, 8, v{t}          ; l/10 for l<64
        v_mul_u32_u24 v{t+1}, 10, v{t}
        v_sub_u32 v{t+1}, v0, v{t+1}
        v_lshlrev_b32 v{t+1}, 4, v{t+1}
        v_mul_u32_u24 v{t}, 1280, v{t}
        v_add_u32 v{vWO}, v{t}, v{t+1}
        v_cmp_gt_u32 vcc, 40, v0
        s_lshr_b32 s{sU}, s{sHP}, 1
        s_mul_i32 s{sU}, s{sU}, 160
        s_lshl_b32 s{sT}, s{sW4}, 1          ; 2G
        s_lshr_b32 s{sV}, s{sW4}, 1          ; G>=2
        s_add_u32 s{sUS}, s{sT}, 1
        s_sub_u32 s{sUS}, s{sUS}, s{sV}      ; slow h8 = 2G + (G<2)
        s_add_u32 s{sT}, s{sT}, s{sV}        ; fast h8 = 2G + (G>=2)
        s_mul_i32 s{sUS}, s{sUS}, {40*1280}
        s_add_u32 s{sUS}, s{sUS}, s{sU}
        s_mul_i32 s{sT}, s{sT}, {40*1280}
        s_add_u32 s{sU}, s{sU}, s{sT}
        s_lshr_b32 s{sV}, s{sW4}, 1
        s_lshl_b32 s{sV}, s{sV}, 4
        s_and_b32 s{sT}, s{sW4}, 1
        s_lshl_b32 s{sT}, s{sT}, 2
        s_add_u32 s{sV}, s{sV}, s{sT}
        s_mul_i32 s{sV}, s{sV}, 160          ; pi0*160
        s_mov_b64 s[{sEX}:{sEX+1}], vcc
        """)
    def wo_dma(sg, rd, vWO):
        blk, c5 = divmod(sg, 5)
        if c5 < 4: row = 320*(blk & 1) + [0, 8, 20, 28][c5] + 4*rd
        else: row = 320*(blk & 1) + 16 + 20*rd
        e(f"s_add_u32 m0, s{sV}, {L_WO(sg) + rd*8*160}")
        e(f"s_add_u32 s{sT}, s{sUS if blk >= 2 else sU}, {row*1280}")
        e(f"buffer_load_dwordx4 v{vWO}, s[{S_B}:{S_B+3}], s{sT} offen lds")

    e(f"""
    s_load_dwordx8 s[4:11], s[0:1], 0
    s_load_dwordx4 s[12:15], s[0:1], 32
    s_load_dwordx2 s[16:17], s[0:1], 48
    s_cmp_ge_u32 s2, 256
    s_cbranch_scc1 L_end
    """)
    if 'half' in exp:
        e("s_bitcmp1_b32 s2, 6")
        e("s_cbranch_scc1 L_end")
    if 'quarter' in exp:
        e("s_and_b32 s40, s2, 0x60")
        e("s_cmp_lg_u32 s40, 0")
        e("s_cbranch_scc1 L_end")
    stamp(0); rstamp(9)
    if until: e("s_memrealtime s[98:99]")
    e(f"""
    v_lshrrev_b32 v1, 6, v0
    v_and_b32 v0, 63, v0
    s_and_b32 s{sT}, s2, 7
    s_lshr_b32 s{sT+1}, s2, 3
    v_readfirstlane_b32 s{sWAVE}, v1
    s_lshr_b32 s{sRC}, s{sT}, 1
    s_lshl_b32 s{sRC}, s{sRC}, 2
    s_lshr_b32 s{sT+2}, s{sT+1}, 3
    s_add_u32 s{sRC}, s{sRC}, s{sT+2}
    s_and_b32 s{sHP}, s{sT}, 1
    s_lshl_b32 s{sHP}, s{sHP}, 3
    s_and_b32 s{sT+2}, s{sT+1}, 7
    s_add_u32 s{sHP}, s{sHP}, s{sT+2}
    s_and_b32 s{sW4}, s{sWAVE}, 3
    s_mul_i32 s{sBB}, s{sHP}, 5
    s_and_b32 s{sBB}, s{sBB}, 7
    s_sub_u32 s{sBB}, 8, s{sBB}
    s_min_u32 s{sBB}, s{sBB}, 4
    s_mov_b32 s{sL}, {LOG2E:#x}
    s_and_b32 s{sT}, s{sHP}, 7
    s_lshr_b32 s{sG}, s{sT}, 1                 ; G = (hp&7)>>1
    s_lshr_b32 s{sBLK}, 0x5a, s{sT}
    s_and_b32 s{sBLK}, s{sBLK}, 1
    s_lshl_b32 s{sBLK}, s{sBLK}, 1
    s_lshr_b32 s{sT}, s{sHP}, 3
    s_add_u32 s{sBLK}, s{sBLK}, s{sT}
    s_cmp_ge_u32 s{sWAVE}, 4
    s_cbranch_scc1 L_lq
    """)
    if GPF:
        e(f"""
        s_lshl_b32 s{sT}, s{sW4}, 6
        v_add_u32 v2, s{sT}, v0                 ; n = 64*w + lane  (0..255)
        s_mul_i32 s{sT}, s2, 80
        s_mul_i32 s{sT+1}, s2, 75
        s_mul_i32 s{sT+2}, s2, 25
        s_sub_u32 s{sT+1}, s{sT+1}, 80
        s_sub_u32 s{sT+2}, s{sT+2}, 155
        s_waitcnt lgkmcnt(0)
        v_mov_b32 v3, s{sT+2}
        v_mov_b32 v4, s10
        v_mov_b32 v5, s11
        v_mov_b32 v6, s{sT+1}
        v_mov_b32 v7, s6
        v_mov_b32 v8, s7
        v_cmp_gt_u32 vcc, 155, v2
        s_nop 1
        v_cndmask_b32 v3, v3, v6, vcc
        v_cndmask_b32 v4, v4, v7, vcc
        v_cndmask_b32 v5, v5, v8, vcc
        v_mov_b32 v6, s{sT}
        v_mov_b32 v7, s4
        v_mov_b32 v8, s5
        v_cmp_gt_u32 vcc, 80, v2
        s_nop 1
        v_cndmask_b32 v3, v3, v6, vcc
        v_cndmask_b32 v4, v4, v7, vcc
        v_cndmask_b32 v5, v5, v8, vcc
        v_add_u32 v3, v3, v2
        v_lshlrev_b32 v3, 7, v3
        v_add_co_u32 v4, vcc, v4, v3
        s_nop 1
        v_addc_co_u32 v5, vcc, 0, v5, vcc
        """)
        if GPF_CODE:
            e(f"""
            s_getpc_b64 s[{sT+4}:{sT+5}]
L_pc_ref:
            s_min_u32 s{sT+3}, s2, (L_code_end-{KN})/128
            s_lshl_b32 s{sT+3}, s{sT+3}, 7
            s_sub_u32 s{sT+4}, s{sT+4}, L_pc_ref-{KN}
            s_subb_u32 s{sT+5}, s{sT+5}, 0
            s_add_u32 s{sT+4}, s{sT+4}, s{sT+3}
            s_addc_u32 s{sT+5}, s{sT+5}, 0
            s_min_u32 s{sT+3}, s2, 199
            s_lshl_b32 s{sT+3}, s{sT+3}, 7
            s_add_u32 s{sT+6}, s8, s{sT+3}
            s_addc_u32 s{sT+7}, s9, 0
            s_cmp_lg_u32 s{sW4}, 2
            s_cbranch_scc1 L_gpf_go
            v_writelane_b32 v4, s{sT+4}, 52
            v_writelane_b32 v5, s{sT+5}, 52
            v_writelane_b32 v4, s{sT+6}, 53
            v_writelane_b32 v5, s{sT+7}, 53
L_gpf_go:
            v_cmp_gt_u32 vcc, 182, v2
            """)
        else:
            e("v_cmp_gt_u32 vcc, 180, v2")
        e(f"""
        s_nop 1
        s_and_saveexec_b64 s[{sT}:{sT+1}], vcc
        s_cbranch_execz L_gpf_done
        global_load_dword v48, v[4:5], off
L_gpf_done:
        s_mov_b64 exec, -1
        """)

    ACC = 64; FB = [112, 128]; WF = 144; KB = 168; VB = 180; PK0 = 192; PK1 = 208; EP = 224; EN = 112; PH = 64; TM = 244
    vAA = 10; vBA = 14
    vPA, vPB = 34, 35
    sPART = 64
    e(f"""
    s_lshl_b32 s{sPART}, s{sHP}, 4
    s_add_u32 s{sPART}, s{sPART}, s{sRC}
    s_lshl_b32 s{sPART}, s{sPART}, 12
    s_add_u32 s{sPART}, s{sPART}, {WS_PART}
    s_waitcnt lgkmcnt(0)
    """)
    srd(S_WS, 16, 0x10000000)
    srd(S_A, 14, 256)
    if PF:
        srd(S_X, 6, 640*3840)
        e(f"""
        v_mov_b32 v37, 0x40000000
        s_lshr_b32 s{sT+1}, s2, 3               ; j
        s_and_b32 s{sT+2}, s2, 1
        s_mul_i32 s{sT+2}, s{sT+2}, 640         ; column half (bytes)
        v_mov_b32 v3, 0x40000000
        s_cmp_eq_u32 s{sW4}, 0
        s_cbranch_scc1 L_t_x
        s_cmp_eq_u32 s{sW4}, 1
        s_cbranch_scc1 L_t_kv
        v_mul_u32_u24 v2, 52, v0
        v_lshrrev_b32 v2, 8, v2                 ; l/5
        v_mul_u32_u24 v4, 5, v2
        v_sub_u32 v4, v0, v4
        v_lshlrev_b32 v4, 7, v4                 ; li*128
        s_mul_i32 s{sT+3}, s{sT+1}, 10
        v_add_u32 v2, s{sT+3}, v2               ; row
        s_mov_b32 s{sT+4}, 3840
        s_cmp_eq_u32 s{sW4}, 2
        s_cselect_b32 s{sT+4}, s{sT+4}, 1280
        v_mul_lo_u32 v2, v2, s{sT+4}
        v_add3_u32 v37, v2, v4, s{sT+2}
        v_cmp_gt_u32 vcc, 50, v0
        s_nop 1
        v_cndmask_b32 v37, v3, v37, vcc
        s_cmp_eq_u32 s{sW4}, 2
        s_cbranch_scc1 L_t_done
        """)
        srd(S_X, 10, 640*1280)
        e(f"""
        s_branch L_t_done
L_t_kv:
        v_mul_u32_u24 v2, 13, v0
        v_lshrrev_b32 v2, 8, v2                 ; q = l/20
        v_mul_u32_u24 v4, 20, v2
        v_sub_u32 v4, v0, v4                    ; l%20
        v_mul_u32_u24 v5, 26, v4
        v_lshrrev_b32 v5, 8, v5                 ; r = (l%20)/10
        v_mul_u32_u24 v6, 10, v5
        v_sub_u32 v4, v4, v6                    ; l%10
        v_mul_u32_u24 v6, 52, v4
        v_lshrrev_b32 v6, 8, v6                 ; ty
        v_mul_u32_u24 v7, 5, v6
        v_sub_u32 v4, v4, v7                    ; li
        v_lshlrev_b32 v4, 7, v4
        v_lshlrev_b32 v2, 6, v2                 ; 64q
        v_add_u32 v2, v2, v5
        s_lshl_b32 s{sT+3}, s{sT+1}, 1
        v_add_u32 v2, s{sT+3}, v2               ; row
        v_mul_u32_u24 v2, 3840, v2
        v_add_u32 v6, 1, v6
        v_mul_u32_u24 v6, 1280, v6
        v_add3_u32 v2, v2, v4, v6
        v_add_u32 v37, s{sT+2}, v2
        v_cmp_gt_u32 vcc, 60, v0
        s_nop 1
        v_cndmask_b32 v37, v3, v37, vcc
        s_branch L_t_done
L_t_x:
        v_and_b32 v2, 15, v0
        s_lshr_b32 s{sT+2}, s2, 1
        s_and_b32 s{sT+2}, s{sT+2}, 3
        s_lshl_b32 s{sT+2}, s{sT+2}, 9
        s_lshl_b32 s{sT+3}, s{sT+1}, 4
        s_add_u32 s{sT+2}, s{sT+2}, s{sT+3}
        v_add_u32 v2, s{sT+2}, v2
        v_mul_u32_u24 v2, 1280, v2
        v_lshrrev_b32 v4, 4, v0
        v_lshlrev_b32 v4, 7, v4
        v_add_u32 v37, v2, v4
        """)
        srd(S_X, 4, 2048*1280)
        a.label("L_t_done")
    def touch(wave, soff):
        if not PF: return
        lab = a.newlabel("TT")
        e(f"""
        s_cmp_lg_u32 s{sW4}, {wave}
        s_cbranch_scc1 {lab}
        s_mov_b32 s{sT}, {soff}
        buffer_load_dword v36, v37, s[{S_X}:{S_X+3}], s{sT} offen
{lab}:
        """)
    def code_touch():
        lab = a.newlabel("CT")
        e(f"""
        s_cmp_lg_u32 s{sW4}, 3
        s_cbranch_scc1 {lab}
        s_getpc_b64 s[{sT+4}:{sT+5}]
L_pc_ref:
        s_lshr_b32 s{sT+3}, s2, 3
        s_mul_i32 s{sT+3}, s{sT+3}, 7
        v_add_u32 v2, s{sT+3}, v0
        v_min_u32 v2, (L_code_end-{KN})/128, v2
        v_lshlrev_b32 v2, 7, v2
        s_sub_u32 s{sT+4}, s{sT+4}, L_pc_ref-{KN}
        s_subb_u32 s{sT+5}, s{sT+5}, 0
        v_mov_b32 v5, s{sT+5}
        v_add_co_u32 v4, vcc, s{sT+4}, v2
        s_nop 1
        v_addc_co_u32 v5, vcc, 0, v5, vcc
        v_cmp_gt_u32 vcc, 7, v0
        s_nop 1
        s_mov_b64 exec, vcc
        global_load_dword v47, v[4:5], off
        s_mov_b64 exec, -1
{lab}:
        """)
    def run_sched(when):
        if not PF: return
        for kind, arg in PFS.get(when, []):
            if kind == 'x': touch(0, arg*128)
            elif kind == 'kv': touch(1, arg*64*3840)
            elif kind == 'q': touch(2, arg*320*3840)
            elif kind == 'wo': touch(3, arg*320*1280)
            elif kind == 'code': code_touch()
    run_sched('e')
    e(f"""
    s_or_b32 s{sT}, s{sRC}, s{sHP}
    s_or_b32 s{sT}, s{sT}, s{sW4}
    s_cmp_lg_u32 s{sT}, 0
    s_cbranch_scc1 L_kv_nn
    s_memrealtime s[{sT+4}:{sT+5}]
    s_waitcnt lgkmcnt(0)
    s_or_b32 s{sT+4}, s{sT+4}, 1
    v_mov_b32 v2, 0
    v_mov_b32 v3, s{sT+4}
    s_mov_b64 exec, 1
    buffer_store_dword v3, v2, s[{S_A}:{S_A+3}], 0 offen sc1
    s_mov_b64 exec, -1
L_kv_nn:
    """)
    e(f"""
    v_lshlrev_b32 v2, 4, v0
    s_lshl_b32 s{sT}, s{sW4}, 10
    s_add_u32 s{sT}, s{sT}, {L_ZERO}
    v_add_u32 v2, s{sT}, v2
    v_mov_b32 v24, 0
    v_mov_b32 v25, 0
    v_mov_b32 v26, 0
    v_mov_b32 v27, 0
    s_cmp_eq_u32 s{sW4}, 3
    s_cbranch_scc1 L_kv_nz
    ds_write_b128 v2, v[24:27]
L_kv_nz:
    """)
    lane_decomp32(2, 3, 4, 5, 6)
    e(f"""
    v_lshlrev_b32 v5, 3, v5          ; 8Q
    v_mul_u32_u24 v6, 5, v6          ; 5hh
    v_lshrrev_b32 v7, 1, v2
    v_lshlrev_b32 v7, 3, v7
    v_add_u32 v7, v7, v3             ; krow
    v_lshlrev_b32 v7, 8, v7
    v_add_u32 v7, 16384, v7
    v_lshlrev_b32 v8, 2, v3          ; 4rp
    s_sub_u32 s{sT+1}, 4, s{sBB}
    """)
    for T in range(3):
        immc = 0; imms = 0
        for Q in range(4):
            q = TKV[T][Q] or TKV[T][0]
            immc |= q[1] << (8*Q); imms |= (8*q[0]) << (8*Q)
        e(f"""
        s_mov_b32 s{sT}, {immc}
        v_bfe_u32 v18, s{sT}, v5, 8
        v_add_u32 v18, v18, v6
        v_lshrrev_b32 v19, 1, v18
        v_mov_b32 v9, s{sT+1}
        v_cmp_le_u32 vcc, s{sBB}, v19
        v_mov_b32 v20, 0
        s_nop 0
        v_cndmask_b32 v9, v20, v9, vcc
        v_add_u32 v19, v19, v9
        s_mov_b32 s{sT}, {imms}
        v_bfe_u32 v9, s{sT}, v5, 8
        v_add3_u32 v19, v19, v9, v8
        v_and_b32 v19, 15, v19
        v_lshlrev_b32 v19, 4, v19
        v_and_b32 v18, 1, v18
        v_lshlrev_b32 v18, 3, v18
        v_add3_u32 v{vAA+T}, v7, v19, v18
        """)
    xfrag_addr(vBA, 2)
    def kv_reads(kk, buf, sb):
        b = FB[buf]
        e(f"ds_read_b128 v[{b+12}:{b+15}], v{vBA+kk} offset:{sb}")
        for T in range(3):
            for rd in range(2):
                e(f"ds_read_b64_tr_b16 v[{b+4*T+2*rd}:{b+4*T+2*rd+1}], v{vAA+T} offset:{sb+(16*kk+4*rd)*256}")
    def kv_mfmas(buf, first=False):
        b = FB[buf]
        for T in range(3):
            c = "0" if first else f"v[{ACC+16*T}:{ACC+16*T+15}]"
            e(f"v_mfma_f32_32x32x16_bf16 v[{ACC+16*T}:{ACC+16*T+15}], v[{b+4*T}:{b+4*T+3}], v[{b+12}:{b+15}], {c}")
    run_sched('pre')
    e("s_waitcnt lgkmcnt(0)")
    stamp(1)
    e("s_barrier")
    stamp(2)
    vNC, vRF = 38, 42
    base = Base([vAA, vAA+1, vAA+2, vBA, vBA+1, vBA+2, vBA+3])
    sb = base.set(0)
    kv_reads(0, 0, sb)
    for s in range(NST):
        for kk in range(3):
            kv_reads(kk+1, (kk+1) & 1, sb)
            e("s_waitcnt lgkmcnt(7)")
            kv_mfmas(kk & 1, first=(s == 0 and kk == 0))
        run_sched(s)
        if s == 0:
            e(f"v_mov_b32 v{vNC}, 0")
            e(f"buffer_load_dword v{vNC+1}, v{vNC}, s[{S_A}:{S_A+3}], 0 offen sc1")
        if s == 1: wphi_frags(WF, 18, 22)
        if s == 2 and 'p1only' not in exp:
            lab = a.newlabel("NF"); lab2 = a.newlabel("NC")
            e(f"""
            s_waitcnt vmcnt(0)
            v_readfirstlane_b32 s{sNONCE}, v{vNC+1}
            s_mov_b32 s{sSPIN}, {SPIN_G}
            s_cmp_lg_u32 s{sNONCE}, 0
            s_cbranch_scc1 {lab}
{lab2}:
            s_sub_u32 s{sSPIN}, s{sSPIN}, 1
            s_cbranch_scc1 L_end
            buffer_load_dword v{vNC+1}, v{vNC}, s[{S_A}:{S_A+3}], 0 offen sc1
            s_waitcnt vmcnt(0)
            v_readfirstlane_b32 s{sNONCE}, v{vNC+1}
            s_nop 0
            s_cmp_eq_u32 s{sNONCE}, 0
            s_cbranch_scc1 {lab2}
{lab}:
            """)
        if s == 3:
            lab = a.newlabel("RD")
            e(f"""
            s_cmp_lg_u32 s{sW4}, 0
            s_cbranch_scc1 {lab}
            s_add_u32 s{sT}, s{sPART}, 3840
            v_mov_b32 v2, 0
            v_mov_b32 v3, s{sNONCE}
            s_mov_b64 exec, 1
            buffer_store_dword v3, v2, s[{S_WS}:{S_WS+3}], s{sT} offen sc1
            s_mov_b64 exec, -1
{lab}:
            """)
        if s == 7:
            e(f"""
            v_and_b32 v2, 15, v0
            s_lshl_b32 s{sT}, s{sHP}, 4
            v_add_u32 v3, s{sT}, v2            ; hp*16 + r
            v_lshlrev_b32 v4, 4, v2
            v_add_u32 v4, s{sRC}, v4           ; h'*16 + rc
            v_bfe_u32 v5, v0, 4, 1
            v_cmp_eq_u32 vcc, 0, v5
            s_mov_b32 s{sT+1}, {WS_PART + 3840}
            s_nop 0
            v_cndmask_b32 v3, v4, v3, vcc
            v_lshlrev_b32 v{vRF}, 12, v3
            buffer_load_dword v{vRF+1}, v{vRF}, s[{S_WS}:{S_WS+3}], s{sT+1} offen sc1
            """)
        e("s_waitcnt lgkmcnt(0)")
        if s + 1 < NST: e("s_barrier")
        sstamp(s+1)
        if s + 1 < NST:
            sb = base.set(s+1)
            kv_reads(0, 0, sb)
        kv_mfmas(1)
    stamp(3)
    if 'p1only' in exp: e("s_branch L_fin")
    loc = {}
    for T, qs in enumerate(TKV):
        for Q, q in enumerate(qs):
            if q is not None: loc[q] = ACC + 16*T + 4*Q
    vRA = 18
    e(f"""
    v_and_b32 v2, 31, v0
    v_lshrrev_b32 v3, 5, v0
    v_lshlrev_b32 v3, 14, v3
    s_lshl_b32 s{sT}, s{sW4}, 5
    v_add_u32 v2, s{sT}, v2
    v_lshlrev_b32 v2, 7, v2
    v_add_u32 v2, v2, v3
    v_add_u32 v2, {L_PK}, v2
    v_and_b32 v3, 7, v0
    v_bfe_u32 v4, v0, 3, 1
    v_lshlrev_b32 v4, 2, v4
    v_xor_b32 v3, v3, v4
    v_lshlrev_b32 v3, 4, v3
    v_add_u32 v{vRA}, v2, v3
    """)
    for u in range(1, 8): e(f"v_xor_b32 v{vRA+u}, {16*u}, v{vRA}")
    if dump == "kvacc":
        e("s_nop 7"); dump_regs([loc[(sg, j)] + x for sg in range(2) for j in range(5) for x in range(4)], 0)
    for j in range(5):
        e(f"v_cvt_pk_bf16_f32 v{KB+2*j}, v{loc[(0,j)]}, v{loc[(0,j)]+1}")
        e(f"v_cvt_pk_bf16_f32 v{KB+2*j+1}, v{loc[(0,j)]+2}, v{loc[(0,j)]+3}")
    e(f"v_mov_b32 v{KB+10}, 0"); e(f"v_mov_b32 v{KB+11}, 0")
    e("s_nop 0")
    feature_map(KB, WF, PK0, PK1)
    for j in range(5):
        e(f"v_cvt_pk_bf16_f32 v{VB+2*j}, v{loc[(1,j)]}, v{loc[(1,j)]+1}")
        e(f"v_cvt_pk_bf16_f32 v{VB+2*j+1}, v{loc[(1,j)]+2}, v{loc[(1,j)]+3}")
    e(f"v_mov_b32 v{VB+10}, 0x3f80"); e(f"v_mov_b32 v{VB+11}, 0")
    for u in range(3):
        e(f"ds_write_b128 v{vRA+5+u}, v[{VB+4*u}:{VB+4*u+3}]")
    vKA = 26; vKB = 28
    e(f"""
    v_lshrrev_b32 v2, 4, v0            ; G
    v_bfe_u32 v3, v0, 2, 2             ; rp
    v_and_b32 v4, 3, v0                ; c
    v_lshlrev_b32 v5, 3, v2
    v_add_u32 v5, v5, v3
    v_lshlrev_b32 v5, 7, v5
    s_lshr_b32 s{sT}, s{sW4}, 1
    s_lshl_b32 s{sT}, s{sT}, 14
    s_add_u32 s{sT}, s{sT}, {L_PK}
    v_add_u32 v5, s{sT}, v5
    v_and_b32 v6, 1, v2
    v_lshlrev_b32 v6, 2, v6
    v_xor_b32 v6, v6, v3
    v_lshrrev_b32 v7, 1, v4
    v_and_b32 v8, 1, v4
    v_lshlrev_b32 v8, 3, v8
    v_add_u32 v5, v5, v8
    s_and_b32 s{sT+1}, s{sW4}, 1
    v_add_u32 v9, 5, v7
    v_mov_b32 v40, 7
    s_cmp_eq_u32 s{sT+1}, 1
    s_cselect_b64 vcc, -1, 0
    v_cndmask_b32 v9, v9, v40, vcc
    v_xor_b32 v9, v9, v6
    v_lshlrev_b32 v9, 4, v9
    v_add_u32 v{vKA}, v5, v9
    v_xor_b32 v{vKA+1}, 64, v{vKA}
    v_add_u32 v{vKA+1}, 512, v{vKA+1}
    """)
    for ct in range(3):
        if ct < 2: e(f"v_add_u32 v9, {2*ct}, v7")
        else: e(f"v_mov_b32 v9, 4")
        e(f"""
        v_xor_b32 v9, v9, v6
        v_lshlrev_b32 v9, 4, v9
        v_add_u32 v{vKB+2*ct}, v5, v9
        v_xor_b32 v{vKB+2*ct+1}, 64, v{vKB+2*ct}
        v_add_u32 v{vKB+2*ct+1}, 512, v{vKB+2*ct+1}
        """)
    e(f"""
    v_lshrrev_b32 v2, 4, v0            ; g
    v_and_b32 v3, 15, v0
    s_lshr_b32 s{sT}, s{sW4}, 1
    s_mul_i32 s{sT}, s{sT}, 6
    s_and_b32 s{sT+1}, s{sW4}, 1
    s_lshl_b32 s{sT+2}, s{sT+1}, 2
    s_add_u32 s{sT}, s{sT}, s{sT+2}
    v_add_u32 v4, s{sT}, v2
    v_mul_u32_u24 v4, 40, v4
    v_add_u32 v4, v4, v3
    v_lshlrev_b32 v4, 3, v4
    v_mov_b32 v5, 0x40000000
    s_lshl_b32 s{sT+2}, s{sT+1}, 1
    s_sub_u32 s{sT+2}, 4, s{sT+2}
    v_cmp_gt_u32 vcc, s{sT+2}, v2
    s_nop 1
    v_cndmask_b32 v{vPA}, v5, v4, vcc
    v_cmp_gt_u32 vcc, 8, v3
    s_nop 1
    v_cndmask_b32 v{vPB}, v5, v{vPA}, vcc
    """)
    if dump == "pk":
        dump_regs([PK0+i for i in range(16)] + [PK1+i for i in range(4)], 0)
    softmax_pair(PK0, PK1, EP, EN, PH, TM)
    if dump == "phik": dump_regs([PH+i for i in range(20)], 0)
    for u in range(5):
        e(f"ds_write_b128 v{vRA+u}, v[{PH+4*u}:{PH+4*u+3}]")
    subbar(0)
    stamp(4)
    KD = 192; KF = 64
    for kap in range(4):
        f = KF + 16*kap
        for rd in range(2):
            e(f"ds_read_b64_tr_b16 v[{f+2*rd}:{f+2*rd+1}], v{vKA+rd} offset:{4096*kap}")
        for ct in range(3):
            for rd in range(2):
                e(f"ds_read_b64_tr_b16 v[{f+4+4*ct+2*rd}:{f+4+4*ct+2*rd+1}], v{vKB+2*ct+rd} offset:{4096*kap}")
    for kap in range(4):
        f = KF + 16*kap
        e(f"s_waitcnt lgkmcnt({min(15, 8*(3-kap))})")
        for ct in range(3):
            c = "0" if kap == 0 else f"v[{KD+4*ct}:{KD+4*ct+3}]"
            e(f"v_mfma_f32_16x16x32_bf16 v[{KD+4*ct}:{KD+4*ct+3}], v[{f}:{f+3}], v[{f+4+4*ct}:{f+4+4*ct+3}], {c}")
    subsignal(1)
    vWO = 40
    srd(S_B, 10, 640*1280)
    wo_setup(vWO, 2)
    for ct in range(3):
        e(f"v_cvt_pk_bf16_f32 v{KD+16+2*ct}, v{KD+4*ct}, v{KD+4*ct+1}")
        e(f"v_cvt_pk_bf16_f32 v{KD+16+2*ct+1}, v{KD+4*ct+2}, v{KD+4*ct+3}")
    for ct in range(3):
        e(f"v_min_u32 v{KD+16+2*ct}, -2, v{KD+16+2*ct}")
    for ct in range(3):
        e(f"buffer_store_dwordx2 v[{KD+16+2*ct}:{KD+16+2*ct+1}], v{vPA if ct < 2 else vPB}, s[{S_WS}:{S_WS+3}], s{sPART} offen offset:{128*ct} sc1")
    stamp(5)
    lab = a.newlabel("RC"); lab2 = a.newlabel("RP")
    e(f"""
    s_waitcnt vmcnt(3)
    s_mov_b32 s{sSPIN}, {SPIN_G}
    s_mov_b32 s{sT+1}, {WS_PART + 3840}
    v_cmp_ne_u32 vcc, s{sNONCE}, v{vRF+1}
    s_cbranch_vccz {lab}
{lab2}:
    s_sub_u32 s{sSPIN}, s{sSPIN}, 1
    s_cbranch_scc1 L_end
    buffer_load_dword v{vRF+1}, v{vRF}, s[{S_WS}:{S_WS+3}], s{sT+1} offen sc1
    s_waitcnt vmcnt(0)
    v_cmp_ne_u32 vcc, s{sNONCE}, v{vRF+1}
    s_cbranch_vccnz {lab2}
{lab}:
    """)
    subwait(1, target=8)
    e(f"s_mov_b64 exec, s[{sEX}:{sEX+1}]")
    for sg in WO_P2:
        for rd in range(2): wo_dma(sg, rd, vWO)
    e("s_mov_b64 exec, -1")
    PL = 64; SUM = 128; IDA = 144; sFC = 68; sMK = 70
    e(f"""
    s_mov_b32 s{sFC}, 0
    s_mov_b64 s[{sMK}:{sMK+1}], s[{sEX}:{sEX+1}]
    v_and_b32 v2, 15, v0
    v_lshrrev_b32 v3, 4, v0            ; G
    v_lshrrev_b32 v4, 3, v2            ; i>>3
    v_and_b32 v5, 7, v2                ; j*
    v_lshrrev_b32 v6, 1, v5            ; reg
    v_and_b32 v5, 1, v5
    v_lshlrev_b32 v5, 4, v5
    v_mov_b32 v8, 0x3f80
    v_lshlrev_b32 v8, v5, v8           ; 1.0 in the right half
    v_mov_b32 v9, 0
    """)
    for u in range(2):
        e(f"v_add_u32 v13, {2*u}, v4")
        e(f"v_cmp_eq_u32 s[{sT}:{sT+1}], v13, v3")
        for rr in range(4):
            e(f"v_cmp_eq_u32 vcc, {rr}, v6")
            e(f"s_nop 0")
            e(f"s_and_b64 vcc, vcc, s[{sT}:{sT+1}]")
            e(f"v_cndmask_b32 v{IDA+4*u+rr}, v9, v8, vcc")
    e(f"""
    v_and_b32 v2, 15, v0
    v_lshlrev_b32 v2, 12, v2           ; r*4096
    s_lshl_b32 s{sT+4}, s{sHP}, 16
    s_add_u32 s{sT+4}, s{sT+4}, {WS_PART}
    s_add_u32 s{sT+5}, s{sT+4}, {((1*6+5)*40+39)*8}
    s_mov_b32 s{sSPIN}, {SPIN_G}
    s_lshl_b32 s{sT}, s{sW4}, 6
    v_add_u32 v6, s{sT}, v0            ; tau
    v_lshlrev_b32 v7, 4, v6
    v_mov_b32 v4, 0x40000000
    v_cmp_gt_u32 vcc, 240, v6
    s_nop 1
    v_cndmask_b32 v7, v4, v7, vcc
    s_branch L_s1_sweep
L_s1_hint:
    s_sub_u32 s{sSPIN}, s{sSPIN}, 1
    s_cbranch_scc1 L_end
    buffer_load_dword v3, v2, s[{S_WS}:{S_WS+3}], s{sT+5} offen sc1
    s_waitcnt vmcnt(0)
    v_cmp_eq_u32 vcc, -1, v3
    s_cbranch_vccnz L_s1_hint
    """)
    a.label("L_s1_sweep")
    stamp(6)
    e(f"""
    s_sub_u32 s{sSPIN}, s{sSPIN}, 1
    s_cbranch_scc1 L_end
    s_mov_b32 s{sT}, s{sT+4}
    """)
    for r in range(16):
        e(f"buffer_load_dwordx4 v[{PL+4*r}:{PL+4*r+3}], v7, s[{S_WS}:{S_WS+3}], s{sT} offen sc1")
        e(f"s_add_u32 s{sT}, s{sT}, 4096")
    nC = 2*len(WO_PC)
    e(f"""
    s_cmp_lg_u32 s{sFC}, 0
    s_cbranch_scc1 L_s1_noC
    s_mov_b32 s{sFC}, 1
    s_mov_b64 exec, s[{sMK}:{sMK+1}]
    """)
    for sg in WO_PC:
        for rd in range(2): wo_dma(sg, rd, vWO)
    e("s_mov_b64 exec, -1")
    def reduce(extra, tag):
        for r in range(16):
            e(f"s_waitcnt vmcnt({min(63, 15-r+extra)})")
            if r == 0: e(f"v_max_u32 v{SUM+10}, v{PL}, v{PL+2}")
            else: e(f"v_max3_u32 v{SUM+10}, v{SUM+10}, v{PL+4*r}, v{PL+4*r+2}")
            for u in range(2):
                c = "0" if r == 0 else f"v[{SUM+4*u}:{SUM+4*u+3}]"
                e(f"v_mfma_f32_16x16x32_bf16 v[{SUM+4*u}:{SUM+4*u+3}], v[{IDA+4*u}:{IDA+4*u+3}], v[{PL+4*r}:{PL+4*r+3}], {c}")
    reduce(nC, "a")
    e("s_branch L_s1_chk")
    a.label("L_s1_noC")
    reduce(0, "b")
    a.label("L_s1_chk")
    e(f"""
    v_cmp_eq_u32 vcc, -1, v{SUM+10}
    s_cbranch_vccnz L_s1_hint
    """)
    e(f"""
    v_and_b32 v2, 15, v0
    v_lshrrev_b32 v3, 5, v0            ; g>>1
    v_lshlrev_b32 v3, 4, v3
    s_lshl_b32 s{sT}, s{sW4}, 6
    v_add3_u32 v2, v2, v3, s{sT}
    v_bfe_u32 v3, v0, 4, 1             ; p
    v_mul_u32_u24 v3, 48, v3
    """)
    for u in range(2):
        t = 4 + 2*u
        e(f"""
        v_add_u32 v8, {32*u}, v2           ; tau
        v_mul_u32_u24 v9, 205, v8
        v_lshrrev_b32 v9, 12, v9           ; tau/20
        v_mul_u32_u24 v{t}, 20, v9
        v_sub_u32 v{t}, v8, v{t}           ; fp
        v_mul_u32_u24 v{t}, 96, v{t}
        v_mul_u32_u24 v13, 43, v9
        v_lshrrev_b32 v13, 8, v13          ; hd
        v_mul_u32_u24 v{t+1}, 6, v13
        v_sub_u32 v{t+1}, v9, v{t+1}       ; dq
        v_mul_u32_u24 v13, 1920, v13
        v_lshlrev_b32 v{t+1}, 3, v{t+1}
        v_add3_u32 v{t}, v{t}, v13, v{t+1}
        v_add3_u32 v{t}, v{t}, v3, 0
        v_add_u32 v{t}, {L_KVF}, v{t}
        v_mov_b32 v{t+1}, {L_CNT + 512}
        v_cmp_gt_u32 vcc, 240, v8
        s_nop 1
        v_cndmask_b32 v{t}, v{t+1}, v{t}, vcc
        """)
    for u in range(2):
        e(f"v_cvt_pk_bf16_f32 v{SUM+12+2*u}, v{SUM+4*u}, v{SUM+4*u+1}")
        e(f"v_cvt_pk_bf16_f32 v{SUM+13+2*u}, v{SUM+4*u+2}, v{SUM+4*u+3}")
    e(f"ds_write_b64 v4, v[{SUM+12}:{SUM+13}]")
    e(f"ds_write_b64 v6, v[{SUM+14}:{SUM+15}]")
    subsignal(2)
    stamp(7)
    vWA = 10
    e(f"""
    v_lshrrev_b32 v2, 4, v0            ; G
    v_bfe_u32 v3, v0, 2, 2             ; rp
    v_and_b32 v4, 3, v0                ; c
    v_lshrrev_b32 v5, 1, v2
    v_lshlrev_b32 v5, 4, v5            ; 16*(G>>1)
    v_and_b32 v6, 1, v2
    v_lshlrev_b32 v6, 2, v6            ; 4*(G&1)
    v_add3_u32 v5, v5, v6, v3
    v_mul_u32_u24 v5, 160, v5
    v_lshlrev_b32 v4, 3, v4
    v_add_u32 v{vWA}, v5, v4
    v_add_u32 v{vWA+1}, 0x10000, v{vWA}
    v_add_u32 v{vWA+2}, 0x20000, v{vWA}
    s_and_b32 s{sT}, s{sHP}, 1
    s_lshl_b32 s{sT}, s{sT}, 2
    s_add_u32 s{sT}, s{sT}, s{sW4}     ; tt
    s_lshl_b32 s{sT+1}, s{sRC}, 3
    s_add_u32 s{sT+6}, s{sT}, s{sT+1}
    s_mul_i32 s{sT+4}, s{sT+6}, 20480
    s_add_u32 s{sT+4}, s{sT+4}, {WS_O}
    v_and_b32 v2, 15, v0
    v_lshrrev_b32 v3, 2, v2
    v_mul_u32_u24 v3, 5120, v3
    v_and_b32 v4, 3, v2
    v_lshlrev_b32 v4, 8, v4
    v_add3_u32 v2, v3, v4, 0
    v_add_u32 v2, 4096, v2
    v_lshlrev_b32 v7, 4, v0            ; lane*16
    """)
    OF = 96; OD = 40; AB = [176, 196, 216, 236, 60, 16]
    NB = len(AB)
    def wo_reads(sg):
        L = L_WO(sg); reg = vWA + L // 65536; b = AB[sg % NB]
        assert (L // 65536) == ((L + 1408) // 65536)
        off = L % 65536
        for nt in range(5):
            for rd in range(2):
                e(f"ds_read_b64_tr_b16 v[{b+4*nt+2*rd}:{b+4*nt+2*rd+1}], v{reg} offset:{off + rd*1280 + nt*32}")
    nD = 2*len(WO_PD)
    subwait(5, tmp=8)
    if 'p5st' in exp: stamp(1)
    e(f"buffer_load_dword v3, v2, s[{S_WS}:{S_WS+3}], s{sT+4} offen sc1")
    e(f"s_mov_b64 exec, s[{sMK}:{sMK+1}]")
    for sg in WO_PD:
        for rd in range(2): wo_dma(sg, rd, vWO)
    e("s_mov_b64 exec, -1")
    if 'p5st' in exp: stamp(2)
    e(f"""
    s_waitcnt vmcnt({nD})
    s_mov_b32 s{sSPIN}, {SPIN_G}
    s_mov_b32 s{sT+2}, 0x00ff00ff
    s_mov_b32 s{sT+3}, 0x00ff00ff
L_s2f_chk:
    v_cmp_eq_u32 vcc, -1, v3
    s_and_b64 vcc, vcc, s[{sT+2}:{sT+3}]
    s_cbranch_vccz L_s2f_go
    s_sub_u32 s{sSPIN}, s{sSPIN}, 1
    s_cbranch_scc1 L_end
    buffer_load_dword v3, v2, s[{S_WS}:{S_WS+3}], s{sT+4} offen sc1
    s_waitcnt vmcnt(0)
    s_branch L_s2f_chk
L_s2f_go:
    s_mov_b32 s{sT}, s{sT+4}
    """)
    if 'p5st' in exp: stamp(3)
    def oload(sg):
        d = OF + 4*sg
        e(f"buffer_load_dwordx4 v[{d}:{d+3}], v7, s[{S_WS}:{S_WS+3}], s{sT} offen offset:{(sg%4)*1024} sc1")
        if sg % 4 == 3: e(f"s_add_u32 s{sT}, s{sT}, 4096")
    for sg in range(10): oload(sg)
    e(f"""
    s_mov_b32 s{sT+2}, 0xff00ff00
    s_mov_b32 s{sT+3}, 0xff00ff00
    v_cmp_eq_u32 vcc, -1, v3
    s_and_b64 vcc, vcc, s[{sT+2}:{sT+3}]
    s_cbranch_vccz L_s2_all
    buffer_load_dword v3, v2, s[{S_WS}:{S_WS+3}], s{sT+4} offen sc1
    s_branch L_s2_p
L_s2_all:
    s_mov_b32 s{sFC}, 2
    """)
    for sg in range(10, 20): oload(sg)
    a.label("L_s2_p")
    e("s_waitcnt vmcnt(11)")
    if 'p5st' in exp: stamp(4)
    subsignal(6, tmp=8)
    subwait(6, tmp=8)
    if 'p5st' in exp: stamp(5)
    for sg in range(NB): wo_reads(sg)
    stamp(8)
    retries = []
    def process(sg, vm, lg):
        e(f"s_waitcnt vmcnt({vm}) lgkmcnt({lg})")
        o = OF + 4*sg
        a.label(f"L_chk_{sg}")
        e(f"v_max_u32 v13, v{o}, v{o+2}")
        e(f"v_cmp_eq_u32 vcc, -1, v13")
        e(f"s_cbranch_vccnz L_rt_{sg}")
        retries.append(sg)
        for nt in range(5):
            D = OD + 4*nt
            c = "0" if sg == 0 else f"v[{D}:{D+3}]"
            b = AB[sg % NB] + 4*nt
            e(f"v_mfma_f32_16x16x32_bf16 v[{D}:{D+3}], v[{b}:{b+3}], v[{o}:{o+3}], {c}")
        if sg + NB < 20: wo_reads(sg + NB)
    e(f"s_mov_b32 s{sSPIN}, {SPIN_G}")
    for sg in range(10):
        process(sg, 10 - sg, 10 if sg >= 1 else 0)
    if 'p5st' in exp: stamp(6)
    e(f"""
    s_cmp_eq_u32 s{sFC}, 2
    s_cbranch_scc1 L_s2_have
    s_waitcnt vmcnt(0)
    s_mov_b32 s{sT+2}, 0xff00ff00
    s_mov_b32 s{sT+3}, 0xff00ff00
L_s2_chk:
    v_cmp_eq_u32 vcc, -1, v3
    s_and_b64 vcc, vcc, s[{sT+2}:{sT+3}]
    s_cbranch_vccz L_s2_go
    s_sub_u32 s{sSPIN}, s{sSPIN}, 1
    s_cbranch_scc1 L_end
    buffer_load_dword v3, v2, s[{S_WS}:{S_WS+3}], s{sT+4} offen sc1
    s_waitcnt vmcnt(0)
    s_branch L_s2_chk
L_s2_go:
    s_add_u32 s{sT}, s{sT+4}, {8*1024}
    """)
    for sg in range(10, 20): oload(sg)
    a.label("L_s2_have")
    if 'p5st' in exp: stamp(9)
    for sg in range(10, 20):
        lg = 10 if (sg + NB - 1 < 20) else 0
        process(sg, 19 - sg, lg)
    srd(S_B, 12, 2048*1280)
    e(f"""
    v_and_b32 v2, 15, v0
    v_lshrrev_b32 v3, 4, v0
    s_lshl_b32 s{sT}, s{sT+6}, 4
    v_add_u32 v2, s{sT}, v2
    v_mul_u32_u24 v2, 1280, v2
    v_lshlrev_b32 v4, 3, v3
    v_add_u32 v2, v2, v4
    s_lshr_b32 s{sT}, s{sHP}, 1
    s_mul_i32 s{sT}, s{sT}, 160
    """)
    for nt in range(5):
        D = OD + 4*nt; P = 64 + 2*nt
        e(f"v_cvt_pk_bf16_f32 v{P}, v{D}, v{D+1}")
        e(f"v_cvt_pk_bf16_f32 v{P+1}, v{D+2}, v{D+3}")
    for nt in range(5):
        P = 64 + 2*nt
        e(f"buffer_store_dwordx2 v[{P}:{P+1}], v2, s[{S_B}:{S_B+3}], s{sT} offen offset:{32*nt}")
    e("s_branch L_fin")
    for sg in retries:
        o = OF + 4*sg
        a.label(f"L_rt_{sg}")
        e(f"""
        s_sub_u32 s{sSPIN}, s{sSPIN}, 1
        s_cbranch_scc1 L_end
        s_add_u32 s{sT}, s{sT+4}, {sg*1024}
        buffer_load_dwordx4 v[{o}:{o+3}], v7, s[{S_WS}:{S_WS+3}], s{sT} offen sc1
        s_waitcnt vmcnt(0)
        s_branch L_chk_{sg}
        """)

    a.label("L_lq")
    vVX, vVW, vWQ = 10, 11, 12
    vBA = 14
    XF = 64
    e(f"""
    v_lshrrev_b32 v2, 3, v0
    s_lshl_b32 s{sT}, s{sW4}, 3
    v_add_u32 v2, s{sT}, v2
    v_mul_u32_u24 v2, 1280, v2
    v_lshrrev_b32 v3, 4, v0                 ; r = l>>4
    s_and_b32 s{sT}, s{sW4}, 1
    s_lshl_b32 s{sT}, s{sT}, 2
    v_add_u32 v4, s{sT}, v3
    v_and_b32 v5, 7, v0
    v_xor_b32 v5, v5, v4
    v_lshlrev_b32 v5, 4, v5
    v_add_u32 v{vVX}, v2, v5
    v_and_b32 v4, 15, v0
    v_lshlrev_b32 v5, 2, v3
    v_sub_u32 v4, v4, v5
    v_and_b32 v4, 15, v4                    ; pos
    v_lshrrev_b32 v5, 3, v4                 ; seg
    v_bfe_u32 v6, v4, 2, 1                  ; part
    v_and_b32 v7, 3, v4                     ; i4
    v_mul_lo_u32 v8, v6, s{sBB}
    v_add_u32 v8, v8, v7                    ; j
    v_mov_b32 v9, 5
    v_mov_b32 v13, s{sBB}
    v_cmp_eq_u32 vcc, 0, v6
    s_lshl_b32 s{sT}, s{sW4}, 2
    v_add_u32 v2, s{sT}, v3
    v_cndmask_b32 v9, v9, v13, vcc
    v_cmp_lt_u32 vcc, v8, v9
    v_mul_u32_u24 v2, 3840, v2
    v_add_u32 v5, 1, v5
    v_mul_u32_u24 v5, 1280, v5
    v_lshlrev_b32 v8, 4, v8
    v_add3_u32 v{vVW}, v2, v5, v8
    v_mov_b32 v7, 0x40000000
    v_cndmask_b32 v{vVW}, v7, v{vVW}, vcc
    s_mul_i32 s{sSOFX}, s{sRC}, {128*1280}
    s_mul_i32 s{sSOFW}, s{sHP}, 80
    s_lshl_b32 s{sM0}, s{sW4}, 10
    """)
    stamp(4)
    e("s_waitcnt lgkmcnt(0)")
    stamp(8)
    srd(S_X, 4, 2048*1280)
    srd(S_W, 6, 640*3840)
    rotmode = [x for x in exp.split(',') if x.startswith('rot')]
    if rotmode:
        rm = rotmode[0]
        if rm == 'rot1': e(f"s_and_b32 s65, s{sHP}, 1")
        elif rm == 'rot5': e(f"s_and_b32 s65, s{sHP}, 1"); e("s_mul_i32 s65, s65, 5")
        elif rm == 'rotrc': e(f"s_and_b32 s65, s{sRC}, 1")
        elif rm == 'rothp': e(f"s_and_b32 s65, s{sHP}, 7")
        elif rm == 'rotmix': e(f"s_xor_b32 s65, s{sHP}, s{sRC}"); e("s_and_b32 s65, s65, 1")
    def issue_stage(s):
        m0b = (s % R) * SLOT
        if rotmode:
            e(f"s_add_u32 s66, s65, {s}")
            e(f"s_sub_u32 s67, s66, 10")
            e(f"s_cmp_ge_u32 s66, 10")
            e(f"s_cselect_b32 s66, s67, s66")
            e(f"s_mul_i32 s67, s66, {64*3840}")
            e(f"s_lshl_b32 s66, s66, 7")
            e(f"s_add_u32 s66, s66, s{sSOFX}")
            e(f"s_add_u32 s67, s67, s{sSOFW}")
            for m in range(4):
                e(f"s_add_u32 m0, s{sM0}, {m0b + m*4096}")
                e(f"s_add_u32 s{sT}, s66, {m*32*1280}")
                e(f"buffer_load_dwordx4 v{vVX}, s[{S_X}:{S_X+3}], s{sT} offen lds")
                e(f"s_add_u32 m0, s{sM0}, {m0b + 16384 + m*4096}")
                e(f"s_add_u32 s{sT}, s67, {m*16*3840}")
                e(f"buffer_load_dwordx4 v{vVW}, s[{S_W}:{S_W+3}], s{sT} offen lds")
            return
        for m in range(4):
            e(f"s_add_u32 m0, s{sM0}, {m0b + m*4096}")
            e(f"s_add_u32 s{sT}, s{sSOFX}, {m*32*1280 + s*128}")
            e(f"buffer_load_dwordx4 v{vVX}, s[{S_X}:{S_X+3}], s{sT} offen lds")
            e(f"s_add_u32 m0, s{sM0}, {m0b + 16384 + m*4096}")
            e(f"s_add_u32 s{sT}, s{sSOFW}, {m*16*3840 + s*64*3840}")
            e(f"buffer_load_dwordx4 v{vVW}, s[{S_W}:{S_W+3}], s{sT} offen lds")
    issue_stage(0)
    srd(S_A, 8, 32*800)
    e(f"""
    v_lshlrev_b32 v2, 4, v0
    s_and_b32 s{sT}, s{sW4}, 1
    s_lshl_b32 s{sT}, s{sT}, 10
    s_add_u32 m0, s{sT}, {L_PHI}
    s_mul_i32 s{sT+1}, s{sHP}, 1600
    s_add_u32 s{sT}, s{sT}, s{sT+1}
    buffer_load_dwordx4 v2, s[{S_A}:{S_A+3}], s{sT} offen lds
    """)
    issue_stage(1)
    srd(S_WS, 16, 0x10000000)
    sPART = 64
    e(f"""
    s_lshl_b32 s{sPART}, s{sHP}, 4
    s_add_u32 s{sPART}, s{sPART}, s{sRC}
    s_lshl_b32 s{sPART}, s{sPART}, 12
    s_add_u32 s{sPART}, s{sPART}, {WS_PART}
    v_mov_b32 v40, -1
    v_mov_b32 v41, -1
    v_mov_b32 v42, -1
    v_mov_b32 v43, -1
    s_lshl_b32 s{sT}, s{sW4}, 6
    v_add_u32 v2, s{sT}, v0            ; tau
    v_lshlrev_b32 v8, 4, v2
    v_mov_b32 v3, 0x40000000
    v_cmp_gt_u32 vcc, 240, v2
    v_lshrrev_b32 v9, 4, v0            ; g = l>>4
    v_and_b32 v44, 15, v0
    v_cndmask_b32 v8, v3, v8, vcc
    v_lshlrev_b32 v44, 4, v44          ; t'*16
    s_lshl_b32 s{sT}, s{sRC}, 3
    s_lshl_b32 s{sT+1}, s{sW4}, 1
    s_add_u32 s{sT}, s{sT}, s{sT+1}
    s_mul_i32 s{sT}, s{sT}, 20480
    s_mul_i32 s{sT+1}, s{sBLK}, 5120
    s_add_u32 s{sT}, s{sT}, s{sT+1}
    s_lshl_b32 s{sT+1}, s{sG}, 8
    s_add_u32 s{sT}, s{sT}, s{sT+1}
    s_add_u32 s{sT+3}, s{sT}, {WS_O}
    v_lshlrev_b32 v45, 10, v9
    v_add_u32 v45, v45, v44            ; i=0
    v_mov_b32 v46, 4096
    v_add_u32 v47, -1, v9
    v_lshlrev_b32 v47, 10, v47
    v_add_u32 v47, 20480, v47
    v_cmp_eq_u32 vcc, 0, v9
    s_nop 1
    v_cndmask_b32 v46, v47, v46, vcc
    v_add_u32 v46, v46, v44            ; i=1
    v_add_u32 v47, 3, v9
    v_lshlrev_b32 v47, 10, v47
    v_add_u32 v47, 20480, v47
    v_add_u32 v47, v47, v44
    v_cmp_gt_u32 vcc, 2, v9
    s_nop 1
    v_cndmask_b32 v47, v3, v47, vcc    ; i=2
    buffer_store_dwordx4 v[40:43], v8, s[{S_WS}:{S_WS+3}], s{sPART} offen sc1
    buffer_store_dwordx4 v[40:43], v45, s[{S_WS}:{S_WS+3}], s{sT+3} offen sc1
    buffer_store_dwordx4 v[40:43], v46, s[{S_WS}:{S_WS+3}], s{sT+3} offen sc1
    buffer_store_dwordx4 v[40:43], v47, s[{S_WS}:{S_WS+3}], s{sT+3} offen sc1
    """)
    xfrag_addr(vBA, 2)
    e(f"""
    v_mul_u32_u24 v2, 52, v0
    v_lshrrev_b32 v2, 8, v2
    v_mul_u32_u24 v3, 5, v2
    v_sub_u32 v3, v0, v3
    v_lshlrev_b32 v3, 4, v3
    v_mul_u32_u24 v2, 3840, v2
    v_add_u32 v{vWQ}, v2, v3
    v_cmp_gt_u32 vcc, 40, v0
    s_nop 1
    s_mov_b64 s[{sEX}:{sEX+1}], vcc
    """)
    def issue_wq(i0, i1):
        e(f"s_mov_b64 exec, s[{sEX}:{sEX+1}]")
        e(f"s_mul_i32 s{sT+1}, s{sW4}, 640")
        e(f"s_mul_i32 s{sT+2}, s{sW4}, {8*3840}")
        e(f"s_add_u32 s{sT+2}, s{sT+2}, s{sSOFW}")
        for m in range(i0, i1):
            e(f"s_add_u32 m0, s{sT+1}, {L_WQ + m*4*640}")
            e(f"s_add_u32 s{sT}, s{sT+2}, {m*32*3840}")
            e(f"buffer_load_dwordx4 v{vWQ}, s[{S_W}:{S_W+3}], s{sT} offen lds")
        e("s_mov_b64 exec, -1")
    base = Base([vBA, vBA+1, vBA+2, vBA+3])
    stamp(1)
    for s in range(NST):
        if s <= 1: e("s_waitcnt vmcnt(12) lgkmcnt(0)")
        elif s <= 8: e("s_waitcnt vmcnt(8) lgkmcnt(0)")
        else: e("s_waitcnt vmcnt(0) lgkmcnt(0)")
        e("s_barrier")
        sstamp(s+1)
        if s == 0: stamp(2)
        sb = base.set(s)
        for kk in range(4):
            d = XF + 16*s + 4*kk
            e(f"ds_read_b128 v[{d}:{d+3}], v{vBA+kk} offset:{sb}")
        if s + 2 < NST: issue_stage(s+2)
        if s == NST - 1:
            issue_wq(0, 10)
            issue_wq(10, 20)
    QA = 224; vQA = 18; vWO = 56
    lane_decomp32(2, 3, 4, 5, 6)
    e(f"""
    v_lshrrev_b32 v7, 1, v2
    v_lshlrev_b32 v7, 3, v7
    v_add_u32 v7, v7, v3
    v_mul_u32_u24 v7, 80, v7
    v_mul_u32_u24 v6, 40, v6
    v_add_u32 v7, v7, v6
    v_add_u32 v7, {L_WQ}, v7
    v_lshlrev_b32 v5, 3, v5
    v_add_u32 v{vQA}, v7, v5
    v_add_u32 v{vQA+1}, 32, v7
    """)
    e("s_waitcnt lgkmcnt(0)")
    subsignal(1, tmp=60)
    e("s_waitcnt vmcnt(10)")
    subbar(7, tmp=60)
    if 'prio' in exp: e("s_setprio 1")
    stamp(3)
    if 'p1only' in exp:
        e("s_waitcnt vmcnt(0)")
        e("s_branch L_fin")
    nwo = 0
    QF3 = [24, 32, 40, 48]
    def q_reads3(k):
        b = QF3[k % 4]
        for T in range(2):
            for rd in range(2):
                e(f"ds_read_b64_tr_b16 v[{b+4*T+2*rd}:{b+4*T+2*rd+1}], v{vQA+T} offset:{(16*k+4*rd)*80}")
    q_reads3(0); q_reads3(1); q_reads3(2)
    for k in range(40):
        if k + 3 < 40:
            q_reads3(k+3)
            e("s_waitcnt lgkmcnt(12)")
        else: e(f"s_waitcnt lgkmcnt({4*(39-k)})")
        for T in range(2):
            c = "0" if k == 0 else f"v[{QA+16*T}:{QA+16*T+15}]"
            b = QF3[k % 4]
            e(f"v_mfma_f32_32x32x16_bf16 v[{QA+16*T}:{QA+16*T+15}], v[{b+4*T}:{b+4*T+3}], v[{XF+4*k}:{XF+4*k+3}], {c}")
        if k == 16:
            e(f"s_waitcnt vmcnt({nwo})")
            subbar(3, tmp=60)
    if 'prio' in exp: e("s_setprio 0")
    stamp(5)
    WF = 64; QB = 88; PQ0 = 100; PQ1 = 116; EP = 132; EN = 152; PH = 172; TM = 192
    wphi_frags(WF, 20, 22)
    if dump == "qacc":
        e("s_nop 7"); dump_regs([QA+i for i in range(20)], 0)
    for j in range(5):
        src = QA + 4*j if j < 4 else QA + 16
        e(f"v_cvt_pk_bf16_f32 v{QB+2*j}, v{src}, v{src+1}")
        e(f"v_cvt_pk_bf16_f32 v{QB+2*j+1}, v{src+2}, v{src+3}")
    e(f"v_mov_b32 v{QB+10}, 0"); e(f"v_mov_b32 v{QB+11}, 0")
    e("s_waitcnt lgkmcnt(0)")
    feature_map(QB, WF, PQ0, PQ1)
    vOA = 20
    lane_decomp32(2, 3, 4, 5, 6)
    e(f"""
    v_mul_u32_u24 v7, 1920, v6
    v_mul_u32_u24 v8, 48, v3
    v_lshlrev_b32 v9, 3, v5
    v_add3_u32 v7, v7, v8, v9
    v_add_u32 v7, {L_KVF}, v7
    v_lshrrev_b32 v8, 1, v2
    v_mov_b32 v9, {L_ZERO}
    v_cmp_eq_u32 vcc, v8, v6
    s_nop 1
    v_cndmask_b32 v{vOA}, v9, v7, vcc
    v_cmp_gt_u32 s[{sEX}:{sEX+1}], 2, v5
    s_nop 1
    s_and_b64 vcc, vcc, s[{sEX}:{sEX+1}]
    v_add_u32 v7, 32, v7
    s_nop 0
    v_cndmask_b32 v{vOA+1}, v9, v7, vcc
    v_and_b32 v2, 15, v0
    v_lshlrev_b32 v2, 4, v2
    v_bfe_u32 v3, v0, 4, 1
    v_mul_u32_u24 v3, 20480, v3
    v_add_u32 v2, v2, v3
    v_lshrrev_b32 v4, 5, v0            ; h
    v_lshlrev_b32 v5, 11, v4           ; c5 = 2h -> 2h*1024
    v_add_u32 v22, v5, v2
    v_lshlrev_b32 v6, 3, v4
    v_add_u32 v23, v6, v2
    s_lshl_b32 s{sT+4}, s{sRC}, 3
    s_lshl_b32 s{sT+1}, s{sW4}, 1
    s_add_u32 s{sT+4}, s{sT+4}, s{sT+1}
    s_mul_i32 s{sT+4}, s{sT+4}, 20480
    s_mul_i32 s{sT+1}, s{sBLK}, 5120
    s_add_u32 s{sT+4}, s{sT+4}, s{sT+1}
    s_lshl_b32 s{sT+1}, s{sG}, 8
    s_add_u32 s{sT+4}, s{sT+4}, s{sT+1}
    s_add_u32 s{sT+4}, s{sT+4}, {WS_O}
    s_add_u32 s{sT+5}, s{sT+4}, 4096
    """)
    softmax_pair(PQ0, PQ1, EP, EN, PH, TM)
    if dump == "phiq": dump_regs([PH+i for i in range(20)], 0)
    stamp(6)
    subwait(2)
    stamp(7)
    KA = 64; N0 = 104; N1 = 120
    for st in range(5):
        for U in range(2):
            for rd in range(2):
                d = KA + (U*5+st)*4 + 2*rd
                e(f"ds_read_b64_tr_b16 v[{d}:{d+1}], v{vOA+U} offset:{(8*st+4*rd)*48}")
    for st in range(5):
        e(f"s_waitcnt lgkmcnt({min(15, 4*(4-st))})")
        for U, N in ((0, N0), (1, N1)):
            c = "0" if st == 0 else f"v[{N}:{N+15}]"
            d = KA + (U*5+st)*4
            e(f"v_mfma_f32_32x32x16_bf16 v[{N}:{N+15}], v[{d}:{d+3}], v[{PH+4*st}:{PH+4*st+3}], {c}")
    e("s_nop 7")
    e("s_nop 3")
    e(f"v_add_f32 v8, 0x358637bd, v{N1+4}")
    e("v_rcp_f32 v8, v8")
    e("s_nop 0")
    OB = 136
    for i in range(8):
        e(f"v_mul_f32 v{N0+2*i}, v{N0+2*i}, v8"); e(f"v_mul_f32 v{N0+2*i+1}, v{N0+2*i+1}, v8")
        e(f"v_cvt_pk_bf16_f32 v{OB+i}, v{N0+2*i}, v{N0+2*i+1}")
    for i in range(2):
        e(f"v_mul_f32 v{N1+2*i}, v{N1+2*i}, v8"); e(f"v_mul_f32 v{N1+2*i+1}, v{N1+2*i+1}, v8")
        e(f"v_cvt_pk_bf16_f32 v{OB+8+i}, v{N1+2*i}, v{N1+2*i+1}")
    for i in (0, 2, 4, 6, 8):
        e(f"v_min_u32 v{OB+i}, -2, v{OB+i}")
    e(f"""
    buffer_store_dwordx4 v[{OB}:{OB+3}], v22, s[{S_WS}:{S_WS+3}], s{sT+4} offen sc1
    buffer_store_dwordx4 v[{OB+4}:{OB+7}], v22, s[{S_WS}:{S_WS+3}], s{sT+4} offen offset:1024 sc1
    buffer_store_dwordx2 v[{OB+8}:{OB+9}], v23, s[{S_WS}:{S_WS+3}], s{sT+5} offen sc1
    """)
    subsignal(5)
    a.label("L_fin")
    if until:
        e(f"""
        s_waitcnt vmcnt(0) lgkmcnt(0)
L_until:
        s_memrealtime s[94:95]
        s_waitcnt lgkmcnt(0)
        s_sub_u32 s96, s94, s98
        s_cmp_lt_u32 s96, {until}
        s_cbranch_scc1 L_until
        """)
    if stamps:
        stamp(10)
        e("s_waitcnt vmcnt(0)")
        e(f"""
        s_waitcnt lgkmcnt(0)
        s_lshl_b32 s{sT}, s2, 3
        s_add_u32 s{sT}, s{sT}, s{sWAVE}
        s_lshl_b32 s{sT}, s{sT}, 6
        s_add_u32 s{sT}, s{sT}, {WS_STAMP}
        v_mov_b32 v2, 0
        """)
        for i in range(NS): e(f"v_mov_b32 v{20+i}, s{sST+2*i}")
        e(f"""
        s_mov_b64 exec, 1
        buffer_store_dwordx4 v[20:23], v2, s[{S_WS}:{S_WS+3}], s{sT} offen
        buffer_store_dwordx4 v[24:27], v2, s[{S_WS}:{S_WS+3}], s{sT} offen offset:16
        buffer_store_dwordx4 v[28:31], v2, s[{S_WS}:{S_WS+3}], s{sT} offen offset:32
        """)
    if dbgwg >= 0:
        e(f"""
        s_cmp_lg_u32 s2, {dbgwg}
        s_cbranch_scc1 L_end
        s_cmp_lg_u32 s{sWAVE}, {dbgwave}
        s_cbranch_scc1 L_end
        s_mov_b64 exec, -1
        s_mov_b32 s72, s14
        s_and_b32 s73, s15, 0xffff
        s_mov_b32 s74, 256
        s_mov_b32 s75, 0x20000
        """)
        for i in range(1, NS):
            e(f"s_sub_u32 s{sT}, s{sST+2*i}, s{sST}")
            e(f"v_mov_b32 v{20+i}, s{sT}")
        e("v_mov_b32 v2, 0")
        e("s_mov_b64 exec, 1")
        for i in range(1, NS):
            e(f"buffer_store_dword v{20+i}, v2, s[72:75], 0 offen offset:{4*i}")
    if dbgwg == -2:
        e(f"""
        s_cmp_lg_u32 s{sWAVE}, {dbgwave}
        s_cbranch_scc1 L_end
        s_mov_b64 exec, -1
        s_mov_b32 s72, s14
        s_and_b32 s73, s15, 0xffff
        s_mov_b32 s74, 256
        s_mov_b32 s75, 0x20000
        """)
        for i in range(1, NS):
            e(f"s_sub_u32 s{sT}, s{sST+2*i}, s{sST}")
            e(f"v_mov_b32 v{20+i}, s{sT}")
        e("v_mov_b32 v2, 0")
        e("s_mov_b64 exec, 1")
        for i in range(1, NS):
            if i == 9: continue
            e(f"buffer_atomic_umax v{20+i}, v2, s[72:75], 0 offen offset:{4*i}")
    a.label("L_end")
    e("s_endpgm")
    a.label("L_code_end")
    hdr = HEADER + f"; @launch grid=(256,1,1) block=(512,1,1) lds={LDS_BYTES}\n"
    return hdr + f""".amdgcn_target "amdgcn-amd-amdhsa--gfx950"
.text
.globl {KN}
.p2align 8
.type {KN},@function
{KN}:
""" + a.text() + """.section .rodata,"a"
""" + kernel_desc(KN, 256, 102, 256)

if __name__ == "__main__":
    import argparse
    ap = argparse.ArgumentParser()
    ap.add_argument("--stamps", action="store_true")
    ap.add_argument("--dump", default=None)
    ap.add_argument("--stagest", action="store_true")
    ap.add_argument("--exp", default="")
    ap.add_argument("--until", type=int, default=0)
    ap.add_argument("--dbgwg", type=int, default=-1)
    ap.add_argument("--dbgwave", type=int, default=0)
    ap.add_argument("--pf", default="none")
    ap.add_argument("--nogpf", action="store_true")
    ap.add_argument("--nocode", action="store_true")
    args = ap.parse_args()
    if args.pf == "none": PF = False
    else: PF = True; PFS = PFS_TAB[args.pf]
    if args.nogpf: GPF = False
    if args.nocode: GPF_CODE = False
    print(gen(stamps=args.stamps, dump=args.dump, stagest=args.stagest, exp=args.exp, until=args.until, dbgwg=args.dbgwg, dbgwave=args.dbgwave))
```

```python
import sys
from asmlib import *
from lay2 import TKV, TQ

KN = "standalone__linear_kernel_hedgehog__prompt_kernel"
NST = 10
SLOT = 32768
R = 3
L_WQ = 98304
L_PHI = 149504
L_ZERO = 151552
L_CNT = 153600
L_KVF = 154624
L_PK = 32768
L_WO19 = 158464
LDS_BYTES = 163840
def L_WO(sg): return sg*5120 if sg <= 18 else L_WO19
WO_P1 = [0,1,2,3,4,5,13,14,15,16,17,18,19]
WO_P2 = [6,7,8,9,10,11,12]
WO_PA = [0,1,2,3,4,5]
WO_PC = [0,1,2,3]
WO_PD = [4,5,13,14,15,16,17,18,19]
WS_PART = 0x000000
WS_O = 0x100000
WS_RDY = 0x400000
WS_STAMP = 0x700000
WS_DBG = 0x800000
PF = False
GPF = True
GPF_CODE = True
PFS_TAB = {
 'b':  {'pre': [('x',2),('kv',2)], 0: [('kv',5),('x',6)], 1: [('kv',8),('q',0),('q',1)], 3: [('wo',0),('wo',1)]},
 'e1': {'e': [('x',0),('kv',2),('code',0)], 'pre': [('x',4)], 0: [('kv',5),('x',8)], 1: [('kv',8)], 3: [('q',0)], 4: [('q',1)], 6: [('wo',0)], 7: [('wo',1)]},
 'e2': {'e': [('x',2),('kv',2),('code',0)], 0: [('kv',5),('x',6)], 1: [('kv',8)], 3: [('q',0)], 4: [('q',1)], 6: [('wo',0)], 7: [('wo',1)]},
 'e3': {'e': [('x',0),('kv',0),('code',0)], 'pre': [('x',4),('kv',3)], 0: [('kv',6),('x',8)], 1: [('kv',9)], 3: [('q',0)], 4: [('q',1)], 6: [('wo',0)], 7: [('wo',1)]},
 'e4': {'e': [('x',2),('kv',2),('code',0)], 'pre': [('x',6),('kv',5)], 0: [('kv',8)], 2: [('q',0)], 3: [('q',1)], 5: [('wo',0)], 6: [('wo',1)]},
 'e5': {'e': [('code',0)], 'pre': [('x',2),('kv',2)], 0: [('kv',5),('x',6)], 2: [('kv',8)], 4: [('q',0)], 5: [('q',1)], 7: [('wo',0)], 8: [('wo',1)]},
 'wo': {'e': [('code',0)], 4: [('q',0)], 5: [('q',1)], 7: [('wo',0)], 8: [('wo',1)]},
 'l1': {5: [('q',0)], 6: [('q',1)], 8: [('wo',0)], 9: [('wo',1)]},
 'l2': {8: [('wo',0)], 9: [('wo',1)]},
 'l3': {3: [('q',0)], 4: [('q',1)], 6: [('wo',0)], 7: [('wo',1)]},
 'l4': {6: [('q',0)], 7: [('q',1)], 9: [('wo',0),('wo',1)]},
}
PFS = PFS_TAB['b']
LOG2E = 0x3fb8aa3b
NLOG2E = 0xbfb8aa3b
SPIN_G = 0x8000
SPIN_L = 0x80000

def set_call():
    global WO_PC, WO_PD
    WO_PC = [0,1,2,3,4,5,13,14,15,16,17,18,19]; WO_PD = []
def gen(stamps=False, dump=None, stagest=False, exp='', until=0, dbgwg=-1, dbgwave=0):
    a = Asm(); e = a.e
    S_X, S_W, S_WS = 20, 24, 28
    S_A, S_B = 72, 76
    sWAVE, sW4, sRC, sHP, sBB = 32, 33, 34, 35, 36
    sT = 40
    sSOFX, sSOFW, sM0 = 52, 53, 54
    sNONCE = 55
    sL = 56
    sEX = 58
    sSPIN = 60
    sU, sV = 62, 63
    sUS = 65
    sBLK, sG = 66, 67
    sST = 80
    NS = 11
    def sstamp(i):
        if stagest: e(f"s_memtime s[{sST+2*i}:{sST+2*i+1}]")
    def stamp(i):
        if stamps and not (stagest and i > 0): e(f"s_memtime s[{sST+2*i}:{sST+2*i+1}]")
    def rstamp(i):
        if stamps and not stagest: e(f"s_memrealtime s[{sST+2*i}:{sST+2*i+1}]")
    def srd(dst, ptr, nbytes):
        e(f"""
        s_mov_b32 s{dst}, s{ptr}
        s_and_b32 s{dst+1}, s{ptr+1}, 0xffff
        s_mov_b32 s{dst+2}, {nbytes}
        s_mov_b32 s{dst+3}, 0x20000
        """)
    def subsignal(idx, tmp=2):
        e(f"""
        v_mov_b32 v{tmp}, {L_CNT + 4*idx}
        v_mov_b32 v{tmp+1}, 1
        s_mov_b64 exec, 1
        ds_add_u32 v{tmp}, v{tmp+1}
        s_mov_b64 exec, -1
        """)
    def subwait(idx, target=4, tmp=2):
        lab = a.newlabel("SW")
        e(f"v_mov_b32 v{tmp}, {L_CNT + 4*idx}")
        e(f"s_mov_b32 s{sSPIN}, {SPIN_L}")
        a.label(lab)
        e(f"""
        s_sub_u32 s{sSPIN}, s{sSPIN}, 1
        s_cbranch_scc1 L_end
        ds_read_b32 v{tmp+1}, v{tmp}
        s_waitcnt lgkmcnt(0)
        v_readfirstlane_b32 s{sT}, v{tmp+1}
        s_nop 0
        s_cmp_lt_u32 s{sT}, {target}
        s_cbranch_scc1 {lab}
        """)
    def subbar(idx, target=4, tmp=2):
        subsignal(idx, tmp); subwait(idx, target, tmp)
    def dump_regs(regs, off):
        n = len(regs)
        e(f"""
        s_lshl_b32 s{sT}, s2, 3
        s_add_u32 s{sT}, s{sT}, s{sWAVE}
        s_mul_i32 s{sT}, s{sT}, {n*256}
        s_add_u32 s{sT}, s{sT}, {WS_DBG + off}
        v_lshlrev_b32 v2, 2, v0
        """)
        for i, r in enumerate(regs):
            e(f"buffer_store_dword v{r}, v2, s[{S_WS}:{S_WS+3}], s{sT} offen offset:{(i%16)*256}")
            if i % 16 == 15: e(f"s_add_u32 s{sT}, s{sT}, 4096")
        e("s_waitcnt vmcnt(0)")
    def softmax_pair(P0, P1, EP, EN, PH, tm):
        p = [P0 + i for i in range(16)] + [P1 + i for i in range(4)]
        tM, tN, tA, tB = tm, tm+1, tm+2, tm+4
        e(f"v_max3_f32 v{tM}, v{p[0]}, v{p[1]}, v{p[2]}")
        e(f"v_min3_f32 v{tN}, v{p[0]}, v{p[1]}, v{p[2]}")
        for i in range(3, 19, 2):
            e(f"v_max3_f32 v{tM}, v{tM}, v{p[i]}, v{p[i+1]}")
            e(f"v_min3_f32 v{tN}, v{tN}, v{p[i]}, v{p[i+1]}")
        e(f"v_max_f32 v{tM}, v{tM}, v{p[19]}")
        e(f"v_min_f32 v{tN}, v{tN}, v{p[19]}")
        e(f"v_mul_f32 v{tA}, {NLOG2E:#x}, v{tM}")
        e(f"v_mul_f32 v{tB}, {LOG2E:#x}, v{tN}")
        for i in range(20):
            e(f"v_fma_f32 v{EP+i}, v{p[i]}, s{sL}, v{tA}")
            e(f"v_fma_f32 v{EN+i}, -v{p[i]}, s{sL}, v{tB}")
        for i in range(20):
            e(f"v_exp_f32 v{EP+i}, v{EP+i}")
            e(f"v_exp_f32 v{EN+i}, v{EN+i}")
        e(f"v_add_f32 v{tA}, v{EP}, v{EP+1}"); e(f"v_add_f32 v{tB}, v{EN}, v{EN+1}")
        e(f"v_add_f32 v{tA+1}, v{EP+2}, v{EP+3}"); e(f"v_add_f32 v{tB+1}, v{EN+2}, v{EN+3}")
        for i in range(4, 20, 2):
            e(f"v_add_f32 v{tA}, v{tA}, v{EP+i}"); e(f"v_add_f32 v{tB}, v{tB}, v{EN+i}")
            e(f"v_add_f32 v{tA+1}, v{tA+1}, v{EP+i+1}"); e(f"v_add_f32 v{tB+1}, v{tB+1}, v{EN+i+1}")
        e(f"v_add_f32 v{tA}, v{tA}, v{tA+1}")
        e(f"v_add_f32 v{tB}, v{tB}, v{tB+1}")
        e(f"v_rcp_f32 v{tA}, v{tA}")
        e(f"v_rcp_f32 v{tB}, v{tB}")
        e("s_nop 0")
        for i in range(10):
            e(f"v_mul_f32 v{EP+2*i}, v{EP+2*i}, v{tA}"); e(f"v_mul_f32 v{EP+2*i+1}, v{EP+2*i+1}, v{tA}")
            e(f"v_mul_f32 v{EN+2*i}, v{EN+2*i}, v{tB}"); e(f"v_mul_f32 v{EN+2*i+1}, v{EN+2*i+1}, v{tB}")
            e(f"v_cvt_pk_bf16_f32 v{PH+i}, v{EP+2*i}, v{EP+2*i+1}")
            e(f"v_cvt_pk_bf16_f32 v{PH+10+i}, v{EN+2*i}, v{EN+2*i+1}")
    def lane_decomp32(vG, vrp, vc, vQ, vhh):
        e(f"""
        v_lshrrev_b32 v{vG}, 4, v0
        v_bfe_u32 v{vrp}, v0, 2, 2
        v_and_b32 v{vc}, 3, v0
        v_and_b32 v{vQ}, 1, v{vG}
        v_lshlrev_b32 v{vQ}, 1, v{vQ}
        v_lshrrev_b32 v{vhh}, 1, v{vc}
        v_add_u32 v{vQ}, v{vQ}, v{vhh}
        v_and_b32 v{vhh}, 1, v{vc}
        """)
    def wphi_frags(WF, va, t):
        vG, vrp, vc, vQ, vhh = t, t+1, t+2, t+3, t+4
        lane_decomp32(vG, vrp, vc, vQ, vhh)
        e(f"""
        v_mul_u32_u24 v{t+5}, 800, v{vhh}
        v_mul_u32_u24 v{t+6}, 40, v{vrp}
        v_add_u32 v{t+5}, v{t+5}, v{t+6}
        v_lshlrev_b32 v{t+6}, 3, v{vQ}
        v_add_u32 v{t+5}, v{t+5}, v{t+6}
        v_add_u32 v{t+5}, {L_PHI}, v{t+5}
        v_lshrrev_b32 v{t+6}, 1, v{vG}
        v_mov_b32 v{va+1}, {L_ZERO}
        v_cmp_eq_u32 vcc, v{t+6}, v{vhh}
        s_nop 1
        v_cndmask_b32 v{va}, v{va+1}, v{t+5}, vcc
        v_cmp_eq_u32 s[{sEX}:{sEX+1}], 0, v{vQ}
        s_nop 1
        s_and_b64 vcc, vcc, s[{sEX}:{sEX+1}]
        v_add_u32 v{t+5}, 32, v{t+5}
        s_nop 0
        v_cndmask_b32 v{va+1}, v{va+1}, v{t+5}, vcc
        """)
        for u in range(2):
            for step in range(3):
                for rd in range(2):
                    d = WF + u*12 + step*4 + 2*rd
                    if step == 2 and rd == 1:
                        e(f"v_mov_b32 v{d}, 0"); e(f"v_mov_b32 v{d+1}, 0")
                    else:
                        e(f"ds_read_b64_tr_b16 v[{d}:{d+1}], v{va+u} offset:{(8*step+4*rd)*40}")
    def feature_map(SRC, WF, P0, P1):
        for step in range(3):
            for u, P in ((0, P0), (1, P1)):
                c = "0" if step == 0 else f"v[{P}:{P+15}]"
                e(f"v_mfma_f32_32x32x16_bf16 v[{P}:{P+15}], v[{WF+u*12+step*4}:{WF+u*12+step*4+3}], v[{SRC+4*step}:{SRC+4*step+3}], {c}")
    def xfrag_addr(vBA, t):
        e(f"""
        v_and_b32 v{t}, 31, v0
        v_lshrrev_b32 v{t+1}, 5, v0
        v_bfe_u32 v{t+2}, v{t}, 1, 3
        v_xor_b32 v{t+2}, v{t+2}, v{t+1}
        v_lshlrev_b32 v{t+2}, 4, v{t+2}
        s_lshl_b32 s{sT}, s{sW4}, 5
        v_add_u32 v{t}, s{sT}, v{t}
        v_lshlrev_b32 v{t}, 7, v{t}
        v_add_u32 v{vBA}, v{t}, v{t+2}
        v_xor_b32 v{vBA+1}, 32, v{vBA}
        v_xor_b32 v{vBA+2}, 64, v{vBA}
        v_xor_b32 v{vBA+3}, 96, v{vBA}
        """)
    class Base:
        def __init__(self, regs): self.regs = regs; self.cur = 0
        def set(self, s):
            so = (s % R) * SLOT
            want = (so // 65536) * 65536
            if want != self.cur:
                d = (want - self.cur) & 0xffffffff
                for r in self.regs: e(f"v_add_u32 v{r}, {d}, v{r}")
                self.cur = want
            return so - self.cur
    def wo_setup(vWO, t):
        e(f"""
        v_mul_u32_u24 v{t}, 26, v0
        v_lshrrev_b32 v{t}, 8, v{t}          ; l/10 for l<64
        v_mul_u32_u24 v{t+1}, 10, v{t}
        v_sub_u32 v{t+1}, v0, v{t+1}
        v_lshlrev_b32 v{t+1}, 4, v{t+1}
        v_mul_u32_u24 v{t}, 1280, v{t}
        v_add_u32 v{vWO}, v{t}, v{t+1}
        v_cmp_gt_u32 vcc, 40, v0
        s_lshr_b32 s{sU}, s{sHP}, 1
        s_mul_i32 s{sU}, s{sU}, 160
        s_lshl_b32 s{sT}, s{sW4}, 1          ; 2G
        s_lshr_b32 s{sV}, s{sW4}, 1          ; G>=2
        s_add_u32 s{sUS}, s{sT}, 1
        s_sub_u32 s{sUS}, s{sUS}, s{sV}      ; slow h8 = 2G + (G<2)
        s_add_u32 s{sT}, s{sT}, s{sV}        ; fast h8 = 2G + (G>=2)
        s_mul_i32 s{sUS}, s{sUS}, {40*1280}
        s_add_u32 s{sUS}, s{sUS}, s{sU}
        s_mul_i32 s{sT}, s{sT}, {40*1280}
        s_add_u32 s{sU}, s{sU}, s{sT}
        s_lshr_b32 s{sV}, s{sW4}, 1
        s_lshl_b32 s{sV}, s{sV}, 4
        s_and_b32 s{sT}, s{sW4}, 1
        s_lshl_b32 s{sT}, s{sT}, 2
        s_add_u32 s{sV}, s{sV}, s{sT}
        s_mul_i32 s{sV}, s{sV}, 160          ; pi0*160
        s_mov_b64 s[{sEX}:{sEX+1}], vcc
        """)
    def wo_dma(sg, rd, vWO):
        blk, c5 = divmod(sg, 5)
        if c5 < 4: row = 320*(blk & 1) + [0, 8, 20, 28][c5] + 4*rd
        else: row = 320*(blk & 1) + 16 + 20*rd
        e(f"s_add_u32 m0, s{sV}, {L_WO(sg) + rd*8*160}")
        e(f"s_add_u32 s{sT}, s{sUS if blk >= 2 else sU}, {row*1280}")
        e(f"buffer_load_dwordx4 v{vWO}, s[{S_B}:{S_B+3}], s{sT} offen lds")

    e(f"""
    s_load_dwordx8 s[4:11], s[0:1], 0
    s_load_dwordx4 s[12:15], s[0:1], 32
    s_load_dwordx2 s[16:17], s[0:1], 48
    s_cmp_ge_u32 s2, 256
    s_cbranch_scc1 L_end
    """)
    if 'half' in exp:
        e("s_bitcmp1_b32 s2, 6")
        e("s_cbranch_scc1 L_end")
    if 'quarter' in exp:
        e("s_and_b32 s40, s2, 0x60")
        e("s_cmp_lg_u32 s40, 0")
        e("s_cbranch_scc1 L_end")
    stamp(0); rstamp(9)
    if until: e("s_memrealtime s[98:99]")
    e(f"""
    v_lshrrev_b32 v1, 6, v0
    v_and_b32 v0, 63, v0
    s_and_b32 s{sT}, s2, 7
    s_lshr_b32 s{sT+1}, s2, 3
    v_readfirstlane_b32 s{sWAVE}, v1
    s_lshr_b32 s{sRC}, s{sT}, 1
    s_lshl_b32 s{sRC}, s{sRC}, 2
    s_lshr_b32 s{sT+2}, s{sT+1}, 3
    s_add_u32 s{sRC}, s{sRC}, s{sT+2}
    s_and_b32 s{sHP}, s{sT}, 1
    s_lshl_b32 s{sHP}, s{sHP}, 3
    s_and_b32 s{sT+2}, s{sT+1}, 7
    s_add_u32 s{sHP}, s{sHP}, s{sT+2}
    s_and_b32 s{sW4}, s{sWAVE}, 3
    s_mul_i32 s{sBB}, s{sHP}, 5
    s_and_b32 s{sBB}, s{sBB}, 7
    s_sub_u32 s{sBB}, 8, s{sBB}
    s_min_u32 s{sBB}, s{sBB}, 4
    s_mov_b32 s{sL}, {LOG2E:#x}
    s_and_b32 s{sT}, s{sHP}, 7
    s_lshr_b32 s{sG}, s{sT}, 1                 ; G = (hp&7)>>1
    s_lshr_b32 s{sBLK}, 0x5a, s{sT}
    s_and_b32 s{sBLK}, s{sBLK}, 1
    s_lshl_b32 s{sBLK}, s{sBLK}, 1
    s_lshr_b32 s{sT}, s{sHP}, 3
    s_add_u32 s{sBLK}, s{sBLK}, s{sT}
    s_cmp_ge_u32 s{sWAVE}, 4
    s_cbranch_scc1 L_lq
    """)
    if GPF:
        e(f"""
        s_lshl_b32 s{sT}, s{sW4}, 6
        v_add_u32 v2, s{sT}, v0                 ; n = 64*w + lane  (0..255)
        s_mul_i32 s{sT}, s2, 80
        s_mul_i32 s{sT+1}, s2, 75
        s_mul_i32 s{sT+2}, s2, 25
        s_sub_u32 s{sT+1}, s{sT+1}, 80
        s_sub_u32 s{sT+2}, s{sT+2}, 155
        s_waitcnt lgkmcnt(0)
        v_mov_b32 v3, s{sT+2}
        v_mov_b32 v4, s10
        v_mov_b32 v5, s11
        v_mov_b32 v6, s{sT+1}
        v_mov_b32 v7, s6
        v_mov_b32 v8, s7
        v_cmp_gt_u32 vcc, 155, v2
        s_nop 1
        v_cndmask_b32 v3, v3, v6, vcc
        v_cndmask_b32 v4, v4, v7, vcc
        v_cndmask_b32 v5, v5, v8, vcc
        v_mov_b32 v6, s{sT}
        v_mov_b32 v7, s4
        v_mov_b32 v8, s5
        v_cmp_gt_u32 vcc, 80, v2
        s_nop 1
        v_cndmask_b32 v3, v3, v6, vcc
        v_cndmask_b32 v4, v4, v7, vcc
        v_cndmask_b32 v5, v5, v8, vcc
        v_add_u32 v3, v3, v2
        v_lshlrev_b32 v3, 7, v3
        v_add_co_u32 v4, vcc, v4, v3
        s_nop 1
        v_addc_co_u32 v5, vcc, 0, v5, vcc
        """)
        if GPF_CODE:
            e(f"""
            s_getpc_b64 s[{sT+4}:{sT+5}]
L_pc_ref:
            s_min_u32 s{sT+3}, s2, (L_code_end-{KN})/128
            s_lshl_b32 s{sT+3}, s{sT+3}, 7
            s_sub_u32 s{sT+4}, s{sT+4}, L_pc_ref-{KN}
            s_subb_u32 s{sT+5}, s{sT+5}, 0
            s_add_u32 s{sT+4}, s{sT+4}, s{sT+3}
            s_addc_u32 s{sT+5}, s{sT+5}, 0
            s_min_u32 s{sT+3}, s2, 199
            s_lshl_b32 s{sT+3}, s{sT+3}, 7
            s_add_u32 s{sT+6}, s8, s{sT+3}
            s_addc_u32 s{sT+7}, s9, 0
            s_cmp_lg_u32 s{sW4}, 2
            s_cbranch_scc1 L_gpf_go
            v_writelane_b32 v4, s{sT+4}, 52
            v_writelane_b32 v5, s{sT+5}, 52
            v_writelane_b32 v4, s{sT+6}, 53
            v_writelane_b32 v5, s{sT+7}, 53
L_gpf_go:
            v_cmp_gt_u32 vcc, 182, v2
            """)
        else:
            e("v_cmp_gt_u32 vcc, 180, v2")
        e(f"""
        s_nop 1
        s_and_saveexec_b64 s[{sT}:{sT+1}], vcc
        s_cbranch_execz L_gpf_done
        global_load_dword v48, v[4:5], off
L_gpf_done:
        s_mov_b64 exec, -1
        """)

    ACC = 64; FB = [112, 128]; WF = 144; KB = 168; VB = 180; PK0 = 192; PK1 = 208; EP = 224; EN = 112; PH = 64; TM = 244
    vAA = 10; vBA = 14
    vPA, vPB = 34, 35
    sPART = 64
    e(f"""
    s_lshl_b32 s{sPART}, s{sHP}, 4
    s_add_u32 s{sPART}, s{sPART}, s{sRC}
    s_lshl_b32 s{sPART}, s{sPART}, 12
    s_add_u32 s{sPART}, s{sPART}, {WS_PART}
    s_waitcnt lgkmcnt(0)
    """)
    srd(S_WS, 16, 0x10000000)
    srd(S_A, 14, 256)
    if PF:
        srd(S_X, 6, 640*3840)
        e(f"""
        v_mov_b32 v37, 0x40000000
        s_lshr_b32 s{sT+1}, s2, 3               ; j
        s_and_b32 s{sT+2}, s2, 1
        s_mul_i32 s{sT+2}, s{sT+2}, 640         ; column half (bytes)
        v_mov_b32 v3, 0x40000000
        s_cmp_eq_u32 s{sW4}, 0
        s_cbranch_scc1 L_t_x
        s_cmp_eq_u32 s{sW4}, 1
        s_cbranch_scc1 L_t_kv
        v_mul_u32_u24 v2, 52, v0
        v_lshrrev_b32 v2, 8, v2                 ; l/5
        v_mul_u32_u24 v4, 5, v2
        v_sub_u32 v4, v0, v4
        v_lshlrev_b32 v4, 7, v4                 ; li*128
        s_mul_i32 s{sT+3}, s{sT+1}, 10
        v_add_u32 v2, s{sT+3}, v2               ; row
        s_mov_b32 s{sT+4}, 3840
        s_cmp_eq_u32 s{sW4}, 2
        s_cselect_b32 s{sT+4}, s{sT+4}, 1280
        v_mul_lo_u32 v2, v2, s{sT+4}
        v_add3_u32 v37, v2, v4, s{sT+2}
        v_cmp_gt_u32 vcc, 50, v0
        s_nop 1
        v_cndmask_b32 v37, v3, v37, vcc
        s_cmp_eq_u32 s{sW4}, 2
        s_cbranch_scc1 L_t_done
        """)
        srd(S_X, 10, 640*1280)
        e(f"""
        s_branch L_t_done
L_t_kv:
        v_mul_u32_u24 v2, 13, v0
        v_lshrrev_b32 v2, 8, v2                 ; q = l/20
        v_mul_u32_u24 v4, 20, v2
        v_sub_u32 v4, v0, v4                    ; l%20
        v_mul_u32_u24 v5, 26, v4
        v_lshrrev_b32 v5, 8, v5                 ; r = (l%20)/10
        v_mul_u32_u24 v6, 10, v5
        v_sub_u32 v4, v4, v6                    ; l%10
        v_mul_u32_u24 v6, 52, v4
        v_lshrrev_b32 v6, 8, v6                 ; ty
        v_mul_u32_u24 v7, 5, v6
        v_sub_u32 v4, v4, v7                    ; li
        v_lshlrev_b32 v4, 7, v4
        v_lshlrev_b32 v2, 6, v2                 ; 64q
        v_add_u32 v2, v2, v5
        s_lshl_b32 s{sT+3}, s{sT+1}, 1
        v_add_u32 v2, s{sT+3}, v2               ; row
        v_mul_u32_u24 v2, 3840, v2
        v_add_u32 v6, 1, v6
        v_mul_u32_u24 v6, 1280, v6
        v_add3_u32 v2, v2, v4, v6
        v_add_u32 v37, s{sT+2}, v2
        v_cmp_gt_u32 vcc, 60, v0
        s_nop 1
        v_cndmask_b32 v37, v3, v37, vcc
        s_branch L_t_done
L_t_x:
        v_and_b32 v2, 15, v0
        s_lshr_b32 s{sT+2}, s2, 1
        s_and_b32 s{sT+2}, s{sT+2}, 3
        s_lshl_b32 s{sT+2}, s{sT+2}, 9
        s_lshl_b32 s{sT+3}, s{sT+1}, 4
        s_add_u32 s{sT+2}, s{sT+2}, s{sT+3}
        v_add_u32 v2, s{sT+2}, v2
        v_mul_u32_u24 v2, 1280, v2
        v_lshrrev_b32 v4, 4, v0
        v_lshlrev_b32 v4, 7, v4
        v_add_u32 v37, v2, v4
        """)
        srd(S_X, 4, 2048*1280)
        a.label("L_t_done")
    def touch(wave, soff):
        if not PF: return
        lab = a.newlabel("TT")
        e(f"""
        s_cmp_lg_u32 s{sW4}, {wave}
        s_cbranch_scc1 {lab}
        s_mov_b32 s{sT}, {soff}
        buffer_load_dword v36, v37, s[{S_X}:{S_X+3}], s{sT} offen
{lab}:
        """)
    def code_touch():
        lab = a.newlabel("CT")
        e(f"""
        s_cmp_lg_u32 s{sW4}, 3
        s_cbranch_scc1 {lab}
        s_getpc_b64 s[{sT+4}:{sT+5}]
L_pc_ref:
        s_lshr_b32 s{sT+3}, s2, 3
        s_mul_i32 s{sT+3}, s{sT+3}, 7
        v_add_u32 v2, s{sT+3}, v0
        v_min_u32 v2, (L_code_end-{KN})/128, v2
        v_lshlrev_b32 v2, 7, v2
        s_sub_u32 s{sT+4}, s{sT+4}, L_pc_ref-{KN}
        s_subb_u32 s{sT+5}, s{sT+5}, 0
        v_mov_b32 v5, s{sT+5}
        v_add_co_u32 v4, vcc, s{sT+4}, v2
        s_nop 1
        v_addc_co_u32 v5, vcc, 0, v5, vcc
        v_cmp_gt_u32 vcc, 7, v0
        s_nop 1
        s_mov_b64 exec, vcc
        global_load_dword v47, v[4:5], off
        s_mov_b64 exec, -1
{lab}:
        """)
    def run_sched(when):
        if not PF: return
        for kind, arg in PFS.get(when, []):
            if kind == 'x': touch(0, arg*128)
            elif kind == 'kv': touch(1, arg*64*3840)
            elif kind == 'q': touch(2, arg*320*3840)
            elif kind == 'wo': touch(3, arg*320*1280)
            elif kind == 'code': code_touch()
    run_sched('e')
    e(f"""
    s_or_b32 s{sT}, s{sRC}, s{sHP}
    s_or_b32 s{sT}, s{sT}, s{sW4}
    s_cmp_lg_u32 s{sT}, 0
    s_cbranch_scc1 L_kv_nn
    s_memrealtime s[{sT+4}:{sT+5}]
    s_waitcnt lgkmcnt(0)
    s_or_b32 s{sT+4}, s{sT+4}, 1
    v_mov_b32 v2, 0
    v_mov_b32 v3, s{sT+4}
    s_mov_b64 exec, 1
    buffer_store_dword v3, v2, s[{S_A}:{S_A+3}], 0 offen sc1
    s_mov_b64 exec, -1
L_kv_nn:
    """)
    e(f"""
    v_lshlrev_b32 v2, 4, v0
    s_lshl_b32 s{sT}, s{sW4}, 10
    s_add_u32 s{sT}, s{sT}, {L_ZERO}
    v_add_u32 v2, s{sT}, v2
    v_mov_b32 v24, 0
    v_mov_b32 v25, 0
    v_mov_b32 v26, 0
    v_mov_b32 v27, 0
    s_cmp_eq_u32 s{sW4}, 3
    s_cbranch_scc1 L_kv_nz
    ds_write_b128 v2, v[24:27]
L_kv_nz:
    """)
    lane_decomp32(2, 3, 4, 5, 6)
    e(f"""
    v_lshlrev_b32 v5, 3, v5          ; 8Q
    v_mul_u32_u24 v6, 5, v6          ; 5hh
    v_lshrrev_b32 v7, 1, v2
    v_lshlrev_b32 v7, 3, v7
    v_add_u32 v7, v7, v3             ; krow
    v_lshlrev_b32 v7, 8, v7
    v_add_u32 v7, 16384, v7
    v_lshlrev_b32 v8, 2, v3          ; 4rp
    s_sub_u32 s{sT+1}, 4, s{sBB}
    """)
    for T in range(3):
        immc = 0; imms = 0
        for Q in range(4):
            q = TKV[T][Q] or TKV[T][0]
            immc |= q[1] << (8*Q); imms |= (8*q[0]) << (8*Q)
        e(f"""
        s_mov_b32 s{sT}, {immc}
        v_bfe_u32 v18, s{sT}, v5, 8
        v_add_u32 v18, v18, v6
        v_lshrrev_b32 v19, 1, v18
        v_mov_b32 v9, s{sT+1}
        v_cmp_le_u32 vcc, s{sBB}, v19
        v_mov_b32 v20, 0
        s_nop 0
        v_cndmask_b32 v9, v20, v9, vcc
        v_add_u32 v19, v19, v9
        s_mov_b32 s{sT}, {imms}
        v_bfe_u32 v9, s{sT}, v5, 8
        v_add3_u32 v19, v19, v9, v8
        v_and_b32 v19, 15, v19
        v_lshlrev_b32 v19, 4, v19
        v_and_b32 v18, 1, v18
        v_lshlrev_b32 v18, 3, v18
        v_add3_u32 v{vAA+T}, v7, v19, v18
        """)
    xfrag_addr(vBA, 2)
    def kv_reads(kk, buf, sb):
        b = FB[buf]
        e(f"ds_read_b128 v[{b+12}:{b+15}], v{vBA+kk} offset:{sb}")
        for T in range(3):
            for rd in range(2):
                e(f"ds_read_b64_tr_b16 v[{b+4*T+2*rd}:{b+4*T+2*rd+1}], v{vAA+T} offset:{sb+(16*kk+4*rd)*256}")
    def kv_mfmas(buf, first=False):
        b = FB[buf]
        for T in range(3):
            c = "0" if first else f"v[{ACC+16*T}:{ACC+16*T+15}]"
            e(f"v_mfma_f32_32x32x16_bf16 v[{ACC+16*T}:{ACC+16*T+15}], v[{b+4*T}:{b+4*T+3}], v[{b+12}:{b+15}], {c}")
    run_sched('pre')
    e("s_waitcnt lgkmcnt(0)")
    stamp(1)
    e("s_barrier")
    stamp(2)
    vNC, vRF = 38, 42
    base = Base([vAA, vAA+1, vAA+2, vBA, vBA+1, vBA+2, vBA+3])
    sb = base.set(0)
    kv_reads(0, 0, sb)
    for s in range(NST):
        for kk in range(3):
            kv_reads(kk+1, (kk+1) & 1, sb)
            e("s_waitcnt lgkmcnt(7)")
            kv_mfmas(kk & 1, first=(s == 0 and kk == 0))
        run_sched(s)
        if s == 0:
            e(f"v_mov_b32 v{vNC}, 0")
            e(f"buffer_load_dword v{vNC+1}, v{vNC}, s[{S_A}:{S_A+3}], 0 offen sc1")
        if s == 1: wphi_frags(WF, 18, 22)
        if s == 2 and 'p1only' not in exp:
            lab = a.newlabel("NF"); lab2 = a.newlabel("NC")
            e(f"""
            s_waitcnt vmcnt(0)
            v_readfirstlane_b32 s{sNONCE}, v{vNC+1}
            s_mov_b32 s{sSPIN}, {SPIN_G}
            s_cmp_lg_u32 s{sNONCE}, 0
            s_cbranch_scc1 {lab}
{lab2}:
            s_sub_u32 s{sSPIN}, s{sSPIN}, 1
            s_cbranch_scc1 L_end
            buffer_load_dword v{vNC+1}, v{vNC}, s[{S_A}:{S_A+3}], 0 offen sc1
            s_waitcnt vmcnt(0)
            v_readfirstlane_b32 s{sNONCE}, v{vNC+1}
            s_nop 0
            s_cmp_eq_u32 s{sNONCE}, 0
            s_cbranch_scc1 {lab2}
{lab}:
            """)
        if s == 3:
            lab = a.newlabel("RD")
            e(f"""
            s_cmp_lg_u32 s{sW4}, 0
            s_cbranch_scc1 {lab}
            s_add_u32 s{sT}, s{sPART}, 3840
            v_mov_b32 v2, 0
            v_mov_b32 v3, s{sNONCE}
            s_mov_b64 exec, 1
            buffer_store_dword v3, v2, s[{S_WS}:{S_WS+3}], s{sT} offen sc1
            s_mov_b64 exec, -1
{lab}:
            """)
        if s == 7:
            e(f"""
            v_and_b32 v2, 15, v0
            s_lshl_b32 s{sT}, s{sHP}, 4
            v_add_u32 v3, s{sT}, v2            ; hp*16 + r
            v_lshlrev_b32 v4, 4, v2
            v_add_u32 v4, s{sRC}, v4           ; h'*16 + rc
            v_bfe_u32 v5, v0, 4, 1
            v_cmp_eq_u32 vcc, 0, v5
            s_mov_b32 s{sT+1}, {WS_PART + 3840}
            s_nop 0
            v_cndmask_b32 v3, v4, v3, vcc
            v_lshlrev_b32 v{vRF}, 12, v3
            buffer_load_dword v{vRF+1}, v{vRF}, s[{S_WS}:{S_WS+3}], s{sT+1} offen sc1
            """)
        e("s_waitcnt lgkmcnt(0)")
        if s + 1 < NST: e("s_barrier")
        sstamp(s+1)
        if s + 1 < NST:
            sb = base.set(s+1)
            kv_reads(0, 0, sb)
        kv_mfmas(1)
    stamp(3)
    if 'p1only' in exp: e("s_branch L_fin")
    loc = {}
    for T, qs in enumerate(TKV):
        for Q, q in enumerate(qs):
            if q is not None: loc[q] = ACC + 16*T + 4*Q
    vRA = 18
    e(f"""
    v_and_b32 v2, 31, v0
    v_lshrrev_b32 v3, 5, v0
    v_lshlrev_b32 v3, 14, v3
    s_lshl_b32 s{sT}, s{sW4}, 5
    v_add_u32 v2, s{sT}, v2
    v_lshlrev_b32 v2, 7, v2
    v_add_u32 v2, v2, v3
    v_add_u32 v2, {L_PK}, v2
    v_and_b32 v3, 7, v0
    v_bfe_u32 v4, v0, 3, 1
    v_lshlrev_b32 v4, 2, v4
    v_xor_b32 v3, v3, v4
    v_lshlrev_b32 v3, 4, v3
    v_add_u32 v{vRA}, v2, v3
    """)
    for u in range(1, 8): e(f"v_xor_b32 v{vRA+u}, {16*u}, v{vRA}")
    if dump == "kvacc":
        e("s_nop 7"); dump_regs([loc[(sg, j)] + x for sg in range(2) for j in range(5) for x in range(4)], 0)
    for j in range(5):
        e(f"v_cvt_pk_bf16_f32 v{KB+2*j}, v{loc[(0,j)]}, v{loc[(0,j)]+1}")
        e(f"v_cvt_pk_bf16_f32 v{KB+2*j+1}, v{loc[(0,j)]+2}, v{loc[(0,j)]+3}")
    e(f"v_mov_b32 v{KB+10}, 0"); e(f"v_mov_b32 v{KB+11}, 0")
    e("s_nop 0")
    feature_map(KB, WF, PK0, PK1)
    for j in range(5):
        e(f"v_cvt_pk_bf16_f32 v{VB+2*j}, v{loc[(1,j)]}, v{loc[(1,j)]+1}")
        e(f"v_cvt_pk_bf16_f32 v{VB+2*j+1}, v{loc[(1,j)]+2}, v{loc[(1,j)]+3}")
    e(f"v_mov_b32 v{VB+10}, 0x3f80"); e(f"v_mov_b32 v{VB+11}, 0")
    for u in range(3):
        e(f"ds_write_b128 v{vRA+5+u}, v[{VB+4*u}:{VB+4*u+3}]")
    vKA = 26; vKB = 28
    e(f"""
    v_lshrrev_b32 v2, 4, v0            ; G
    v_bfe_u32 v3, v0, 2, 2             ; rp
    v_and_b32 v4, 3, v0                ; c
    v_lshlrev_b32 v5, 3, v2
    v_add_u32 v5, v5, v3
    v_lshlrev_b32 v5, 7, v5
    s_lshr_b32 s{sT}, s{sW4}, 1
    s_lshl_b32 s{sT}, s{sT}, 14
    s_add_u32 s{sT}, s{sT}, {L_PK}
    v_add_u32 v5, s{sT}, v5
    v_and_b32 v6, 1, v2
    v_lshlrev_b32 v6, 2, v6
    v_xor_b32 v6, v6, v3
    v_lshrrev_b32 v7, 1, v4
    v_and_b32 v8, 1, v4
    v_lshlrev_b32 v8, 3, v8
    v_add_u32 v5, v5, v8
    s_and_b32 s{sT+1}, s{sW4}, 1
    v_add_u32 v9, 5, v7
    v_mov_b32 v40, 7
    s_cmp_eq_u32 s{sT+1}, 1
    s_cselect_b64 vcc, -1, 0
    v_cndmask_b32 v9, v9, v40, vcc
    v_xor_b32 v9, v9, v6
    v_lshlrev_b32 v9, 4, v9
    v_add_u32 v{vKA}, v5, v9
    v_xor_b32 v{vKA+1}, 64, v{vKA}
    v_add_u32 v{vKA+1}, 512, v{vKA+1}
    """)
    for ct in range(3):
        if ct < 2: e(f"v_add_u32 v9, {2*ct}, v7")
        else: e(f"v_mov_b32 v9, 4")
        e(f"""
        v_xor_b32 v9, v9, v6
        v_lshlrev_b32 v9, 4, v9
        v_add_u32 v{vKB+2*ct}, v5, v9
        v_xor_b32 v{vKB+2*ct+1}, 64, v{vKB+2*ct}
        v_add_u32 v{vKB+2*ct+1}, 512, v{vKB+2*ct+1}
        """)
    e(f"""
    v_lshrrev_b32 v2, 4, v0            ; g
    v_and_b32 v3, 15, v0
    s_lshr_b32 s{sT}, s{sW4}, 1
    s_mul_i32 s{sT}, s{sT}, 6
    s_and_b32 s{sT+1}, s{sW4}, 1
    s_lshl_b32 s{sT+2}, s{sT+1}, 2
    s_add_u32 s{sT}, s{sT}, s{sT+2}
    v_add_u32 v4, s{sT}, v2
    v_mul_u32_u24 v4, 40, v4
    v_add_u32 v4, v4, v3
    v_lshlrev_b32 v4, 3, v4
    v_mov_b32 v5, 0x40000000
    s_lshl_b32 s{sT+2}, s{sT+1}, 1
    s_sub_u32 s{sT+2}, 4, s{sT+2}
    v_cmp_gt_u32 vcc, s{sT+2}, v2
    s_nop 1
    v_cndmask_b32 v{vPA}, v5, v4, vcc
    v_cmp_gt_u32 vcc, 8, v3
    s_nop 1
    v_cndmask_b32 v{vPB}, v5, v{vPA}, vcc
    """)
    if dump == "pk":
        dump_regs([PK0+i for i in range(16)] + [PK1+i for i in range(4)], 0)
    softmax_pair(PK0, PK1, EP, EN, PH, TM)
    if dump == "phik": dump_regs([PH+i for i in range(20)], 0)
    for u in range(5):
        e(f"ds_write_b128 v{vRA+u}, v[{PH+4*u}:{PH+4*u+3}]")
    subbar(0)
    stamp(4)
    KD = 192; KF = 64
    for kap in range(4):
        f = KF + 16*kap
        for rd in range(2):
            e(f"ds_read_b64_tr_b16 v[{f+2*rd}:{f+2*rd+1}], v{vKA+rd} offset:{4096*kap}")
        for ct in range(3):
            for rd in range(2):
                e(f"ds_read_b64_tr_b16 v[{f+4+4*ct+2*rd}:{f+4+4*ct+2*rd+1}], v{vKB+2*ct+rd} offset:{4096*kap}")
    for kap in range(4):
        f = KF + 16*kap
        e(f"s_waitcnt lgkmcnt({min(15, 8*(3-kap))})")
        for ct in range(3):
            c = "0" if kap == 0 else f"v[{KD+4*ct}:{KD+4*ct+3}]"
            e(f"v_mfma_f32_16x16x32_bf16 v[{KD+4*ct}:{KD+4*ct+3}], v[{f}:{f+3}], v[{f+4+4*ct}:{f+4+4*ct+3}], {c}")
    subsignal(1)
    vWO = 40
    srd(S_B, 10, 640*1280)
    wo_setup(vWO, 2)
    for ct in range(3):
        e(f"v_cvt_pk_bf16_f32 v{KD+16+2*ct}, v{KD+4*ct}, v{KD+4*ct+1}")
        e(f"v_cvt_pk_bf16_f32 v{KD+16+2*ct+1}, v{KD+4*ct+2}, v{KD+4*ct+3}")
    for ct in range(3):
        e(f"v_min_u32 v{KD+16+2*ct}, -2, v{KD+16+2*ct}")
    for ct in range(3):
        e(f"buffer_store_dwordx2 v[{KD+16+2*ct}:{KD+16+2*ct+1}], v{vPA if ct < 2 else vPB}, s[{S_WS}:{S_WS+3}], s{sPART} offen offset:{128*ct} sc1")
    stamp(5)
    lab = a.newlabel("RC"); lab2 = a.newlabel("RP")
    e(f"""
    s_waitcnt vmcnt(3)
    s_mov_b32 s{sSPIN}, {SPIN_G}
    s_mov_b32 s{sT+1}, {WS_PART + 3840}
    v_cmp_ne_u32 vcc, s{sNONCE}, v{vRF+1}
    s_cbranch_vccz {lab}
{lab2}:
    s_sub_u32 s{sSPIN}, s{sSPIN}, 1
    s_cbranch_scc1 L_end
    buffer_load_dword v{vRF+1}, v{vRF}, s[{S_WS}:{S_WS+3}], s{sT+1} offen sc1
    s_waitcnt vmcnt(0)
    v_cmp_ne_u32 vcc, s{sNONCE}, v{vRF+1}
    s_cbranch_vccnz {lab2}
{lab}:
    """)
    subwait(1, target=8)
    e(f"s_mov_b64 exec, s[{sEX}:{sEX+1}]")
    for sg in WO_P2:
        for rd in range(2): wo_dma(sg, rd, vWO)
    e("s_mov_b64 exec, -1")
    PL = 64; SUM = 128; IDA = 144; sFC = 68; sMK = 70
    e(f"""
    s_mov_b32 s{sFC}, 0
    s_mov_b64 s[{sMK}:{sMK+1}], s[{sEX}:{sEX+1}]
    v_and_b32 v2, 15, v0
    v_lshrrev_b32 v3, 4, v0            ; G
    v_lshrrev_b32 v4, 3, v2            ; i>>3
    v_and_b32 v5, 7, v2                ; j*
    v_lshrrev_b32 v6, 1, v5            ; reg
    v_and_b32 v5, 1, v5
    v_lshlrev_b32 v5, 4, v5
    v_mov_b32 v8, 0x3f80
    v_lshlrev_b32 v8, v5, v8           ; 1.0 in the right half
    v_mov_b32 v9, 0
    """)
    for u in range(2):
        e(f"v_add_u32 v13, {2*u}, v4")
        e(f"v_cmp_eq_u32 s[{sT}:{sT+1}], v13, v3")
        for rr in range(4):
            e(f"v_cmp_eq_u32 vcc, {rr}, v6")
            e(f"s_nop 0")
            e(f"s_and_b64 vcc, vcc, s[{sT}:{sT+1}]")
            e(f"v_cndmask_b32 v{IDA+4*u+rr}, v9, v8, vcc")
    e(f"""
    v_and_b32 v2, 15, v0
    v_lshlrev_b32 v2, 12, v2           ; r*4096
    s_lshl_b32 s{sT+4}, s{sHP}, 16
    s_add_u32 s{sT+4}, s{sT+4}, {WS_PART}
    s_add_u32 s{sT+5}, s{sT+4}, {((1*6+5)*40+39)*8}
    s_mov_b32 s{sSPIN}, {SPIN_G}
    s_lshl_b32 s{sT}, s{sW4}, 6
    v_add_u32 v6, s{sT}, v0            ; tau
    v_lshlrev_b32 v7, 4, v6
    v_mov_b32 v4, 0x40000000
    v_cmp_gt_u32 vcc, 240, v6
    s_nop 1
    v_cndmask_b32 v7, v4, v7, vcc
    s_branch L_s1_sweep
L_s1_hint:
    s_sub_u32 s{sSPIN}, s{sSPIN}, 1
    s_cbranch_scc1 L_end
    buffer_load_dword v3, v2, s[{S_WS}:{S_WS+3}], s{sT+5} offen sc1
    s_waitcnt vmcnt(0)
    v_cmp_eq_u32 vcc, -1, v3
    s_cbranch_vccnz L_s1_hint
    """)
    a.label("L_s1_sweep")
    stamp(6)
    e(f"""
    s_sub_u32 s{sSPIN}, s{sSPIN}, 1
    s_cbranch_scc1 L_end
    s_mov_b32 s{sT}, s{sT+4}
    """)
    for r in range(16):
        e(f"buffer_load_dwordx4 v[{PL+4*r}:{PL+4*r+3}], v7, s[{S_WS}:{S_WS+3}], s{sT} offen sc1")
        e(f"s_add_u32 s{sT}, s{sT}, 4096")
    nC = 2*len(WO_PC)
    e(f"""
    s_cmp_lg_u32 s{sFC}, 0
    s_cbranch_scc1 L_s1_noC
    s_mov_b32 s{sFC}, 1
    s_mov_b64 exec, s[{sMK}:{sMK+1}]
    """)
    for sg in WO_PC:
        for rd in range(2): wo_dma(sg, rd, vWO)
    e("s_mov_b64 exec, -1")
    def reduce(extra, tag):
        for r in range(16):
            e(f"s_waitcnt vmcnt({min(63, 15-r+extra)})")
            if r == 0: e(f"v_max_u32 v{SUM+10}, v{PL}, v{PL+2}")
            else: e(f"v_max3_u32 v{SUM+10}, v{SUM+10}, v{PL+4*r}, v{PL+4*r+2}")
            for u in range(2):
                c = "0" if r == 0 else f"v[{SUM+4*u}:{SUM+4*u+3}]"
                e(f"v_mfma_f32_16x16x32_bf16 v[{SUM+4*u}:{SUM+4*u+3}], v[{IDA+4*u}:{IDA+4*u+3}], v[{PL+4*r}:{PL+4*r+3}], {c}")
    reduce(nC, "a")
    e("s_branch L_s1_chk")
    a.label("L_s1_noC")
    reduce(0, "b")
    a.label("L_s1_chk")
    e(f"""
    v_cmp_eq_u32 vcc, -1, v{SUM+10}
    s_cbranch_vccnz L_s1_hint
    """)
    e(f"""
    v_and_b32 v2, 15, v0
    v_lshrrev_b32 v3, 5, v0            ; g>>1
    v_lshlrev_b32 v3, 4, v3
    s_lshl_b32 s{sT}, s{sW4}, 6
    v_add3_u32 v2, v2, v3, s{sT}
    v_bfe_u32 v3, v0, 4, 1             ; p
    v_mul_u32_u24 v3, 48, v3
    """)
    for u in range(2):
        t = 4 + 2*u
        e(f"""
        v_add_u32 v8, {32*u}, v2           ; tau
        v_mul_u32_u24 v9, 205, v8
        v_lshrrev_b32 v9, 12, v9           ; tau/20
        v_mul_u32_u24 v{t}, 20, v9
        v_sub_u32 v{t}, v8, v{t}           ; fp
        v_mul_u32_u24 v{t}, 96, v{t}
        v_mul_u32_u24 v13, 43, v9
        v_lshrrev_b32 v13, 8, v13          ; hd
        v_mul_u32_u24 v{t+1}, 6, v13
        v_sub_u32 v{t+1}, v9, v{t+1}       ; dq
        v_mul_u32_u24 v13, 1920, v13
        v_lshlrev_b32 v{t+1}, 3, v{t+1}
        v_add3_u32 v{t}, v{t}, v13, v{t+1}
        v_add3_u32 v{t}, v{t}, v3, 0
        v_add_u32 v{t}, {L_KVF}, v{t}
        v_mov_b32 v{t+1}, {L_CNT + 512}
        v_cmp_gt_u32 vcc, 240, v8
        s_nop 1
        v_cndmask_b32 v{t}, v{t+1}, v{t}, vcc
        """)
    for u in range(2):
        e(f"v_cvt_pk_bf16_f32 v{SUM+12+2*u}, v{SUM+4*u}, v{SUM+4*u+1}")
        e(f"v_cvt_pk_bf16_f32 v{SUM+13+2*u}, v{SUM+4*u+2}, v{SUM+4*u+3}")
    e(f"ds_write_b64 v4, v[{SUM+12}:{SUM+13}]")
    e(f"ds_write_b64 v6, v[{SUM+14}:{SUM+15}]")
    subsignal(2)
    stamp(7)
    vWA = 10
    e(f"""
    v_lshrrev_b32 v2, 4, v0            ; G
    v_bfe_u32 v3, v0, 2, 2             ; rp
    v_and_b32 v4, 3, v0                ; c
    v_lshrrev_b32 v5, 1, v2
    v_lshlrev_b32 v5, 4, v5            ; 16*(G>>1)
    v_and_b32 v6, 1, v2
    v_lshlrev_b32 v6, 2, v6            ; 4*(G&1)
    v_add3_u32 v5, v5, v6, v3
    v_mul_u32_u24 v5, 160, v5
    v_lshlrev_b32 v4, 3, v4
    v_add_u32 v{vWA}, v5, v4
    v_add_u32 v{vWA+1}, 0x10000, v{vWA}
    v_add_u32 v{vWA+2}, 0x20000, v{vWA}
    s_and_b32 s{sT}, s{sHP}, 1
    s_lshl_b32 s{sT}, s{sT}, 2
    s_add_u32 s{sT}, s{sT}, s{sW4}     ; tt
    s_lshl_b32 s{sT+1}, s{sRC}, 3
    s_add_u32 s{sT+6}, s{sT}, s{sT+1}
    s_mul_i32 s{sT+4}, s{sT+6}, 20480
    s_add_u32 s{sT+4}, s{sT+4}, {WS_O}
    v_and_b32 v2, 15, v0
    v_lshrrev_b32 v3, 2, v2
    v_mul_u32_u24 v3, 5120, v3
    v_and_b32 v4, 3, v2
    v_lshlrev_b32 v4, 8, v4
    v_add3_u32 v2, v3, v4, 0
    v_add_u32 v2, 4096, v2
    v_lshlrev_b32 v7, 4, v0            ; lane*16
    """)
    OF = 96; OD = 40; AB = [176, 196, 216, 236, 60, 16]
    NB = len(AB)
    def wo_reads(sg):
        L = L_WO(sg); reg = vWA + L // 65536; b = AB[sg % NB]
        assert (L // 65536) == ((L + 1408) // 65536)
        off = L % 65536
        for nt in range(5):
            for rd in range(2):
                e(f"ds_read_b64_tr_b16 v[{b+4*nt+2*rd}:{b+4*nt+2*rd+1}], v{reg} offset:{off + rd*1280 + nt*32}")
    nD = 2*len(WO_PD)
    if WO_PD: subwait(5, tmp=8)
    if 'p5st' in exp: stamp(1)
    e(f"buffer_load_dword v3, v2, s[{S_WS}:{S_WS+3}], s{sT+4} offen sc1")
    e(f"s_mov_b64 exec, s[{sMK}:{sMK+1}]")
    for sg in WO_PD:
        for rd in range(2): wo_dma(sg, rd, vWO)
    e("s_mov_b64 exec, -1")
    if 'p5st' in exp: stamp(2)
    e(f"""
    s_waitcnt vmcnt({nD})
    s_mov_b32 s{sSPIN}, {SPIN_G}
    s_mov_b32 s{sT+2}, 0x00ff00ff
    s_mov_b32 s{sT+3}, 0x00ff00ff
L_s2f_chk:
    v_cmp_eq_u32 vcc, -1, v3
    s_and_b64 vcc, vcc, s[{sT+2}:{sT+3}]
    s_cbranch_vccz L_s2f_go
    s_sub_u32 s{sSPIN}, s{sSPIN}, 1
    s_cbranch_scc1 L_end
    buffer_load_dword v3, v2, s[{S_WS}:{S_WS+3}], s{sT+4} offen sc1
    s_waitcnt vmcnt(0)
    s_branch L_s2f_chk
L_s2f_go:
    s_mov_b32 s{sT}, s{sT+4}
    """)
    if 'p5st' in exp: stamp(3)
    def oload(sg):
        d = OF + 4*sg
        e(f"buffer_load_dwordx4 v[{d}:{d+3}], v7, s[{S_WS}:{S_WS+3}], s{sT} offen offset:{(sg%4)*1024} sc1")
        if sg % 4 == 3: e(f"s_add_u32 s{sT}, s{sT}, 4096")
    for sg in range(10): oload(sg)
    e(f"""
    s_mov_b32 s{sT+2}, 0xff00ff00
    s_mov_b32 s{sT+3}, 0xff00ff00
    v_cmp_eq_u32 vcc, -1, v3
    s_and_b64 vcc, vcc, s[{sT+2}:{sT+3}]
    s_cbranch_vccz L_s2_all
    buffer_load_dword v3, v2, s[{S_WS}:{S_WS+3}], s{sT+4} offen sc1
    s_branch L_s2_p
L_s2_all:
    s_mov_b32 s{sFC}, 2
    """)
    for sg in range(10, 20): oload(sg)
    a.label("L_s2_p")
    e("s_waitcnt vmcnt(11)")
    if 'p5st' in exp: stamp(4)
    subsignal(6, tmp=8)
    subwait(6, tmp=8)
    if 'p5st' in exp: stamp(5)
    for sg in range(NB): wo_reads(sg)
    stamp(8)
    retries = []
    def process(sg, vm, lg):
        e(f"s_waitcnt vmcnt({vm}) lgkmcnt({lg})")
        o = OF + 4*sg
        a.label(f"L_chk_{sg}")
        e(f"v_max_u32 v13, v{o}, v{o+2}")
        e(f"v_cmp_eq_u32 vcc, -1, v13")
        e(f"s_cbranch_vccnz L_rt_{sg}")
        retries.append(sg)
        for nt in range(5):
            D = OD + 4*nt
            c = "0" if sg == 0 else f"v[{D}:{D+3}]"
            b = AB[sg % NB] + 4*nt
            e(f"v_mfma_f32_16x16x32_bf16 v[{D}:{D+3}], v[{b}:{b+3}], v[{o}:{o+3}], {c}")
        if sg + NB < 20: wo_reads(sg + NB)
    e(f"s_mov_b32 s{sSPIN}, {SPIN_G}")
    for sg in range(10):
        process(sg, 10 - sg, 10 if sg >= 1 else 0)
    if 'p5st' in exp: stamp(6)
    e(f"""
    s_cmp_eq_u32 s{sFC}, 2
    s_cbranch_scc1 L_s2_have
    s_waitcnt vmcnt(0)
    s_mov_b32 s{sT+2}, 0xff00ff00
    s_mov_b32 s{sT+3}, 0xff00ff00
L_s2_chk:
    v_cmp_eq_u32 vcc, -1, v3
    s_and_b64 vcc, vcc, s[{sT+2}:{sT+3}]
    s_cbranch_vccz L_s2_go
    s_sub_u32 s{sSPIN}, s{sSPIN}, 1
    s_cbranch_scc1 L_end
    buffer_load_dword v3, v2, s[{S_WS}:{S_WS+3}], s{sT+4} offen sc1
    s_waitcnt vmcnt(0)
    s_branch L_s2_chk
L_s2_go:
    s_add_u32 s{sT}, s{sT+4}, {8*1024}
    """)
    for sg in range(10, 20): oload(sg)
    a.label("L_s2_have")
    if 'p5st' in exp: stamp(9)
    for sg in range(10, 20):
        lg = 10 if (sg + NB - 1 < 20) else 0
        process(sg, 19 - sg, lg)
    srd(S_B, 12, 2048*1280)
    e(f"""
    v_and_b32 v2, 15, v0
    v_lshrrev_b32 v3, 4, v0
    s_lshl_b32 s{sT}, s{sT+6}, 4
    v_add_u32 v2, s{sT}, v2
    v_mul_u32_u24 v2, 1280, v2
    v_lshlrev_b32 v4, 3, v3
    v_add_u32 v2, v2, v4
    s_lshr_b32 s{sT}, s{sHP}, 1
    s_mul_i32 s{sT}, s{sT}, 160
    """)
    for nt in range(5):
        D = OD + 4*nt; P = 64 + 2*nt
        e(f"v_cvt_pk_bf16_f32 v{P}, v{D}, v{D+1}")
        e(f"v_cvt_pk_bf16_f32 v{P+1}, v{D+2}, v{D+3}")
    for nt in range(5):
        P = 64 + 2*nt
        e(f"buffer_store_dwordx2 v[{P}:{P+1}], v2, s[{S_B}:{S_B+3}], s{sT} offen offset:{32*nt}")
    e("s_branch L_fin")
    for sg in retries:
        o = OF + 4*sg
        a.label(f"L_rt_{sg}")
        e(f"""
        s_sub_u32 s{sSPIN}, s{sSPIN}, 1
        s_cbranch_scc1 L_end
        s_add_u32 s{sT}, s{sT+4}, {sg*1024}
        buffer_load_dwordx4 v[{o}:{o+3}], v7, s[{S_WS}:{S_WS+3}], s{sT} offen sc1
        s_waitcnt vmcnt(0)
        s_branch L_chk_{sg}
        """)

    a.label("L_lq")
    vVX, vVW, vWQ = 10, 11, 12
    vBA = 14
    XF = 64
    e(f"""
    v_lshrrev_b32 v2, 3, v0
    s_lshl_b32 s{sT}, s{sW4}, 3
    v_add_u32 v2, s{sT}, v2
    v_mul_u32_u24 v2, 1280, v2
    v_lshrrev_b32 v3, 4, v0                 ; r = l>>4
    s_and_b32 s{sT}, s{sW4}, 1
    s_lshl_b32 s{sT}, s{sT}, 2
    v_add_u32 v4, s{sT}, v3
    v_and_b32 v5, 7, v0
    v_xor_b32 v5, v5, v4
    v_lshlrev_b32 v5, 4, v5
    v_add_u32 v{vVX}, v2, v5
    v_and_b32 v4, 15, v0
    v_lshlrev_b32 v5, 2, v3
    v_sub_u32 v4, v4, v5
    v_and_b32 v4, 15, v4                    ; pos
    v_lshrrev_b32 v5, 3, v4                 ; seg
    v_bfe_u32 v6, v4, 2, 1                  ; part
    v_and_b32 v7, 3, v4                     ; i4
    v_mul_lo_u32 v8, v6, s{sBB}
    v_add_u32 v8, v8, v7                    ; j
    v_mov_b32 v9, 5
    v_mov_b32 v13, s{sBB}
    v_cmp_eq_u32 vcc, 0, v6
    s_lshl_b32 s{sT}, s{sW4}, 2
    v_add_u32 v2, s{sT}, v3
    v_cndmask_b32 v9, v9, v13, vcc
    v_cmp_lt_u32 vcc, v8, v9
    v_mul_u32_u24 v2, 3840, v2
    v_add_u32 v5, 1, v5
    v_mul_u32_u24 v5, 1280, v5
    v_lshlrev_b32 v8, 4, v8
    v_add3_u32 v{vVW}, v2, v5, v8
    v_mov_b32 v7, 0x40000000
    v_cndmask_b32 v{vVW}, v7, v{vVW}, vcc
    s_mul_i32 s{sSOFX}, s{sRC}, {128*1280}
    s_mul_i32 s{sSOFW}, s{sHP}, 80
    s_lshl_b32 s{sM0}, s{sW4}, 10
    """)
    stamp(4)
    e("s_waitcnt lgkmcnt(0)")
    stamp(8)
    srd(S_X, 4, 2048*1280)
    srd(S_W, 6, 640*3840)
    rotmode = [x for x in exp.split(',') if x.startswith('rot')]
    if rotmode:
        rm = rotmode[0]
        if rm == 'rot1': e(f"s_and_b32 s65, s{sHP}, 1")
        elif rm == 'rot5': e(f"s_and_b32 s65, s{sHP}, 1"); e("s_mul_i32 s65, s65, 5")
        elif rm == 'rotrc': e(f"s_and_b32 s65, s{sRC}, 1")
        elif rm == 'rothp': e(f"s_and_b32 s65, s{sHP}, 7")
        elif rm == 'rotmix': e(f"s_xor_b32 s65, s{sHP}, s{sRC}"); e("s_and_b32 s65, s65, 1")
    def issue_stage(s):
        m0b = (s % R) * SLOT
        if rotmode:
            e(f"s_add_u32 s66, s65, {s}")
            e(f"s_sub_u32 s67, s66, 10")
            e(f"s_cmp_ge_u32 s66, 10")
            e(f"s_cselect_b32 s66, s67, s66")
            e(f"s_mul_i32 s67, s66, {64*3840}")
            e(f"s_lshl_b32 s66, s66, 7")
            e(f"s_add_u32 s66, s66, s{sSOFX}")
            e(f"s_add_u32 s67, s67, s{sSOFW}")
            for m in range(4):
                e(f"s_add_u32 m0, s{sM0}, {m0b + m*4096}")
                e(f"s_add_u32 s{sT}, s66, {m*32*1280}")
                e(f"buffer_load_dwordx4 v{vVX}, s[{S_X}:{S_X+3}], s{sT} offen lds")
                e(f"s_add_u32 m0, s{sM0}, {m0b + 16384 + m*4096}")
                e(f"s_add_u32 s{sT}, s67, {m*16*3840}")
                e(f"buffer_load_dwordx4 v{vVW}, s[{S_W}:{S_W+3}], s{sT} offen lds")
            return
        for m in range(4):
            e(f"s_add_u32 m0, s{sM0}, {m0b + m*4096}")
            e(f"s_add_u32 s{sT}, s{sSOFX}, {m*32*1280 + s*128}")
            e(f"buffer_load_dwordx4 v{vVX}, s[{S_X}:{S_X+3}], s{sT} offen lds")
            e(f"s_add_u32 m0, s{sM0}, {m0b + 16384 + m*4096}")
            e(f"s_add_u32 s{sT}, s{sSOFW}, {m*16*3840 + s*64*3840}")
            e(f"buffer_load_dwordx4 v{vVW}, s[{S_W}:{S_W+3}], s{sT} offen lds")
    issue_stage(0)
    srd(S_A, 8, 32*800)
    e(f"""
    v_lshlrev_b32 v2, 4, v0
    s_and_b32 s{sT}, s{sW4}, 1
    s_lshl_b32 s{sT}, s{sT}, 10
    s_add_u32 m0, s{sT}, {L_PHI}
    s_mul_i32 s{sT+1}, s{sHP}, 1600
    s_add_u32 s{sT}, s{sT}, s{sT+1}
    buffer_load_dwordx4 v2, s[{S_A}:{S_A+3}], s{sT} offen lds
    """)
    issue_stage(1)
    srd(S_WS, 16, 0x10000000)
    sPART = 64
    e(f"""
    s_lshl_b32 s{sPART}, s{sHP}, 4
    s_add_u32 s{sPART}, s{sPART}, s{sRC}
    s_lshl_b32 s{sPART}, s{sPART}, 12
    s_add_u32 s{sPART}, s{sPART}, {WS_PART}
    v_mov_b32 v40, -1
    v_mov_b32 v41, -1
    v_mov_b32 v42, -1
    v_mov_b32 v43, -1
    s_lshl_b32 s{sT}, s{sW4}, 6
    v_add_u32 v2, s{sT}, v0            ; tau
    v_lshlrev_b32 v8, 4, v2
    v_mov_b32 v3, 0x40000000
    v_cmp_gt_u32 vcc, 240, v2
    v_lshrrev_b32 v9, 4, v0            ; g = l>>4
    v_and_b32 v44, 15, v0
    v_cndmask_b32 v8, v3, v8, vcc
    v_lshlrev_b32 v44, 4, v44          ; t'*16
    s_lshl_b32 s{sT}, s{sRC}, 3
    s_lshl_b32 s{sT+1}, s{sW4}, 1
    s_add_u32 s{sT}, s{sT}, s{sT+1}
    s_mul_i32 s{sT}, s{sT}, 20480
    s_mul_i32 s{sT+1}, s{sBLK}, 5120
    s_add_u32 s{sT}, s{sT}, s{sT+1}
    s_lshl_b32 s{sT+1}, s{sG}, 8
    s_add_u32 s{sT}, s{sT}, s{sT+1}
    s_add_u32 s{sT+3}, s{sT}, {WS_O}
    v_lshlrev_b32 v45, 10, v9
    v_add_u32 v45, v45, v44            ; i=0
    v_mov_b32 v46, 4096
    v_add_u32 v47, -1, v9
    v_lshlrev_b32 v47, 10, v47
    v_add_u32 v47, 20480, v47
    v_cmp_eq_u32 vcc, 0, v9
    s_nop 1
    v_cndmask_b32 v46, v47, v46, vcc
    v_add_u32 v46, v46, v44            ; i=1
    v_add_u32 v47, 3, v9
    v_lshlrev_b32 v47, 10, v47
    v_add_u32 v47, 20480, v47
    v_add_u32 v47, v47, v44
    v_cmp_gt_u32 vcc, 2, v9
    s_nop 1
    v_cndmask_b32 v47, v3, v47, vcc    ; i=2
    buffer_store_dwordx4 v[40:43], v8, s[{S_WS}:{S_WS+3}], s{sPART} offen sc1
    buffer_store_dwordx4 v[40:43], v45, s[{S_WS}:{S_WS+3}], s{sT+3} offen sc1
    buffer_store_dwordx4 v[40:43], v46, s[{S_WS}:{S_WS+3}], s{sT+3} offen sc1
    buffer_store_dwordx4 v[40:43], v47, s[{S_WS}:{S_WS+3}], s{sT+3} offen sc1
    """)
    xfrag_addr(vBA, 2)
    e(f"""
    v_mul_u32_u24 v2, 52, v0
    v_lshrrev_b32 v2, 8, v2
    v_mul_u32_u24 v3, 5, v2
    v_sub_u32 v3, v0, v3
    v_lshlrev_b32 v3, 4, v3
    v_mul_u32_u24 v2, 3840, v2
    v_add_u32 v{vWQ}, v2, v3
    v_cmp_gt_u32 vcc, 40, v0
    s_nop 1
    s_mov_b64 s[{sEX}:{sEX+1}], vcc
    """)
    def issue_wq(i0, i1):
        e(f"s_mov_b64 exec, s[{sEX}:{sEX+1}]")
        e(f"s_mul_i32 s{sT+1}, s{sW4}, 640")
        e(f"s_mul_i32 s{sT+2}, s{sW4}, {8*3840}")
        e(f"s_add_u32 s{sT+2}, s{sT+2}, s{sSOFW}")
        for m in range(i0, i1):
            e(f"s_add_u32 m0, s{sT+1}, {L_WQ + m*4*640}")
            e(f"s_add_u32 s{sT}, s{sT+2}, {m*32*3840}")
            e(f"buffer_load_dwordx4 v{vWQ}, s[{S_W}:{S_W+3}], s{sT} offen lds")
        e("s_mov_b64 exec, -1")
    base = Base([vBA, vBA+1, vBA+2, vBA+3])
    stamp(1)
    for s in range(NST):
        if s <= 1: e("s_waitcnt vmcnt(12) lgkmcnt(0)")
        elif s <= 8: e("s_waitcnt vmcnt(8) lgkmcnt(0)")
        else: e("s_waitcnt vmcnt(0) lgkmcnt(0)")
        e("s_barrier")
        sstamp(s+1)
        if s == 0: stamp(2)
        sb = base.set(s)
        for kk in range(4):
            d = XF + 16*s + 4*kk
            e(f"ds_read_b128 v[{d}:{d+3}], v{vBA+kk} offset:{sb}")
        if s + 2 < NST: issue_stage(s+2)
        if s == NST - 1:
            issue_wq(0, 10)
            issue_wq(10, 20)
    QA = 224; vQA = 18; vWO = 56
    lane_decomp32(2, 3, 4, 5, 6)
    e(f"""
    v_lshrrev_b32 v7, 1, v2
    v_lshlrev_b32 v7, 3, v7
    v_add_u32 v7, v7, v3
    v_mul_u32_u24 v7, 80, v7
    v_mul_u32_u24 v6, 40, v6
    v_add_u32 v7, v7, v6
    v_add_u32 v7, {L_WQ}, v7
    v_lshlrev_b32 v5, 3, v5
    v_add_u32 v{vQA}, v7, v5
    v_add_u32 v{vQA+1}, 32, v7
    """)
    e("s_waitcnt lgkmcnt(0)")
    subsignal(1, tmp=60)
    e("s_waitcnt vmcnt(10)")
    subbar(7, tmp=60)
    if 'prio' in exp: e("s_setprio 1")
    stamp(3)
    if 'p1only' in exp:
        e("s_waitcnt vmcnt(0)")
        e("s_branch L_fin")
    nwo = 0
    QF3 = [24, 32, 40, 48]
    def q_reads3(k):
        b = QF3[k % 4]
        for T in range(2):
            for rd in range(2):
                e(f"ds_read_b64_tr_b16 v[{b+4*T+2*rd}:{b+4*T+2*rd+1}], v{vQA+T} offset:{(16*k+4*rd)*80}")
    q_reads3(0); q_reads3(1); q_reads3(2)
    for k in range(40):
        if k + 3 < 40:
            q_reads3(k+3)
            e("s_waitcnt lgkmcnt(12)")
        else: e(f"s_waitcnt lgkmcnt({4*(39-k)})")
        for T in range(2):
            c = "0" if k == 0 else f"v[{QA+16*T}:{QA+16*T+15}]"
            b = QF3[k % 4]
            e(f"v_mfma_f32_32x32x16_bf16 v[{QA+16*T}:{QA+16*T+15}], v[{b+4*T}:{b+4*T+3}], v[{XF+4*k}:{XF+4*k+3}], {c}")
        if k == 16:
            e(f"s_waitcnt vmcnt({nwo})")
            subbar(3, tmp=60)
    if 'prio' in exp: e("s_setprio 0")
    stamp(5)
    WF = 64; QB = 88; PQ0 = 100; PQ1 = 116; EP = 132; EN = 152; PH = 172; TM = 192
    wphi_frags(WF, 20, 22)
    if dump == "qacc":
        e("s_nop 7"); dump_regs([QA+i for i in range(20)], 0)
    for j in range(5):
        src = QA + 4*j if j < 4 else QA + 16
        e(f"v_cvt_pk_bf16_f32 v{QB+2*j}, v{src}, v{src+1}")
        e(f"v_cvt_pk_bf16_f32 v{QB+2*j+1}, v{src+2}, v{src+3}")
    e(f"v_mov_b32 v{QB+10}, 0"); e(f"v_mov_b32 v{QB+11}, 0")
    e("s_waitcnt lgkmcnt(0)")
    feature_map(QB, WF, PQ0, PQ1)
    vOA = 20
    lane_decomp32(2, 3, 4, 5, 6)
    e(f"""
    v_mul_u32_u24 v7, 1920, v6
    v_mul_u32_u24 v8, 48, v3
    v_lshlrev_b32 v9, 3, v5
    v_add3_u32 v7, v7, v8, v9
    v_add_u32 v7, {L_KVF}, v7
    v_lshrrev_b32 v8, 1, v2
    v_mov_b32 v9, {L_ZERO}
    v_cmp_eq_u32 vcc, v8, v6
    s_nop 1
    v_cndmask_b32 v{vOA}, v9, v7, vcc
    v_cmp_gt_u32 s[{sEX}:{sEX+1}], 2, v5
    s_nop 1
    s_and_b64 vcc, vcc, s[{sEX}:{sEX+1}]
    v_add_u32 v7, 32, v7
    s_nop 0
    v_cndmask_b32 v{vOA+1}, v9, v7, vcc
    v_and_b32 v2, 15, v0
    v_lshlrev_b32 v2, 4, v2
    v_bfe_u32 v3, v0, 4, 1
    v_mul_u32_u24 v3, 20480, v3
    v_add_u32 v2, v2, v3
    v_lshrrev_b32 v4, 5, v0            ; h
    v_lshlrev_b32 v5, 11, v4           ; c5 = 2h -> 2h*1024
    v_add_u32 v22, v5, v2
    v_lshlrev_b32 v6, 3, v4
    v_add_u32 v23, v6, v2
    s_lshl_b32 s{sT+4}, s{sRC}, 3
    s_lshl_b32 s{sT+1}, s{sW4}, 1
    s_add_u32 s{sT+4}, s{sT+4}, s{sT+1}
    s_mul_i32 s{sT+4}, s{sT+4}, 20480
    s_mul_i32 s{sT+1}, s{sBLK}, 5120
    s_add_u32 s{sT+4}, s{sT+4}, s{sT+1}
    s_lshl_b32 s{sT+1}, s{sG}, 8
    s_add_u32 s{sT+4}, s{sT+4}, s{sT+1}
    s_add_u32 s{sT+4}, s{sT+4}, {WS_O}
    s_add_u32 s{sT+5}, s{sT+4}, 4096
    """)
    softmax_pair(PQ0, PQ1, EP, EN, PH, TM)
    if dump == "phiq": dump_regs([PH+i for i in range(20)], 0)
    stamp(6)
    subwait(2)
    stamp(7)
    KA = 64; N0 = 104; N1 = 120
    for st in range(5):
        for U in range(2):
            for rd in range(2):
                d = KA + (U*5+st)*4 + 2*rd
                e(f"ds_read_b64_tr_b16 v[{d}:{d+1}], v{vOA+U} offset:{(8*st+4*rd)*48}")
    for st in range(5):
        e(f"s_waitcnt lgkmcnt({min(15, 4*(4-st))})")
        for U, N in ((0, N0), (1, N1)):
            c = "0" if st == 0 else f"v[{N}:{N+15}]"
            d = KA + (U*5+st)*4
            e(f"v_mfma_f32_32x32x16_bf16 v[{N}:{N+15}], v[{d}:{d+3}], v[{PH+4*st}:{PH+4*st+3}], {c}")
    e("s_nop 7")
    e("s_nop 3")
    e(f"v_add_f32 v8, 0x358637bd, v{N1+4}")
    e("v_rcp_f32 v8, v8")
    e("s_nop 0")
    OB = 136
    for i in range(8):
        e(f"v_mul_f32 v{N0+2*i}, v{N0+2*i}, v8"); e(f"v_mul_f32 v{N0+2*i+1}, v{N0+2*i+1}, v8")
        e(f"v_cvt_pk_bf16_f32 v{OB+i}, v{N0+2*i}, v{N0+2*i+1}")
    for i in range(2):
        e(f"v_mul_f32 v{N1+2*i}, v{N1+2*i}, v8"); e(f"v_mul_f32 v{N1+2*i+1}, v{N1+2*i+1}, v8")
        e(f"v_cvt_pk_bf16_f32 v{OB+8+i}, v{N1+2*i}, v{N1+2*i+1}")
    for i in (0, 2, 4, 6, 8):
        e(f"v_min_u32 v{OB+i}, -2, v{OB+i}")
    e(f"""
    buffer_store_dwordx4 v[{OB}:{OB+3}], v22, s[{S_WS}:{S_WS+3}], s{sT+4} offen sc1
    buffer_store_dwordx4 v[{OB+4}:{OB+7}], v22, s[{S_WS}:{S_WS+3}], s{sT+4} offen offset:1024 sc1
    buffer_store_dwordx2 v[{OB+8}:{OB+9}], v23, s[{S_WS}:{S_WS+3}], s{sT+5} offen sc1
    """)
    subsignal(5)
    a.label("L_fin")
    if until:
        e(f"""
        s_waitcnt vmcnt(0) lgkmcnt(0)
L_until:
        s_memrealtime s[94:95]
        s_waitcnt lgkmcnt(0)
        s_sub_u32 s96, s94, s98
        s_cmp_lt_u32 s96, {until}
        s_cbranch_scc1 L_until
        """)
    if stamps:
        stamp(10)
        e("s_waitcnt vmcnt(0)")
        e(f"""
        s_waitcnt lgkmcnt(0)
        s_lshl_b32 s{sT}, s2, 3
        s_add_u32 s{sT}, s{sT}, s{sWAVE}
        s_lshl_b32 s{sT}, s{sT}, 6
        s_add_u32 s{sT}, s{sT}, {WS_STAMP}
        v_mov_b32 v2, 0
        """)
        for i in range(NS): e(f"v_mov_b32 v{20+i}, s{sST+2*i}")
        e(f"""
        s_mov_b64 exec, 1
        buffer_store_dwordx4 v[20:23], v2, s[{S_WS}:{S_WS+3}], s{sT} offen
        buffer_store_dwordx4 v[24:27], v2, s[{S_WS}:{S_WS+3}], s{sT} offen offset:16
        buffer_store_dwordx4 v[28:31], v2, s[{S_WS}:{S_WS+3}], s{sT} offen offset:32
        """)
    if dbgwg >= 0:
        e(f"""
        s_cmp_lg_u32 s2, {dbgwg}
        s_cbranch_scc1 L_end
        s_cmp_lg_u32 s{sWAVE}, {dbgwave}
        s_cbranch_scc1 L_end
        s_mov_b64 exec, -1
        s_mov_b32 s72, s14
        s_and_b32 s73, s15, 0xffff
        s_mov_b32 s74, 256
        s_mov_b32 s75, 0x20000
        """)
        for i in range(1, NS):
            e(f"s_sub_u32 s{sT}, s{sST+2*i}, s{sST}")
            e(f"v_mov_b32 v{20+i}, s{sT}")
        e("v_mov_b32 v2, 0")
        e("s_mov_b64 exec, 1")
        for i in range(1, NS):
            e(f"buffer_store_dword v{20+i}, v2, s[72:75], 0 offen offset:{4*i}")
    if dbgwg == -2:
        e(f"""
        s_cmp_lg_u32 s{sWAVE}, {dbgwave}
        s_cbranch_scc1 L_end
        s_mov_b64 exec, -1
        s_mov_b32 s72, s14
        s_and_b32 s73, s15, 0xffff
        s_mov_b32 s74, 256
        s_mov_b32 s75, 0x20000
        """)
        for i in range(1, NS):
            e(f"s_sub_u32 s{sT}, s{sST+2*i}, s{sST}")
            e(f"v_mov_b32 v{20+i}, s{sT}")
        e("v_mov_b32 v2, 0")
        e("s_mov_b64 exec, 1")
        for i in range(1, NS):
            if i == 9: continue
            e(f"buffer_atomic_umax v{20+i}, v2, s[72:75], 0 offen offset:{4*i}")
    a.label("L_end")
    e("s_endpgm")
    a.label("L_code_end")
    hdr = HEADER + f"; @launch grid=(256,1,1) block=(512,1,1) lds={LDS_BYTES}\n"
    return hdr + f""".amdgcn_target "amdgcn-amd-amdhsa--gfx950"
.text
.globl {KN}
.p2align 8
.type {KN},@function
{KN}:
""" + a.text() + """.section .rodata,"a"
""" + kernel_desc(KN, 256, 102, 256)

if __name__ == "__main__":
    import argparse
    ap = argparse.ArgumentParser()
    ap.add_argument("--stamps", action="store_true")
    ap.add_argument("--dump", default=None)
    ap.add_argument("--stagest", action="store_true")
    ap.add_argument("--exp", default="")
    ap.add_argument("--until", type=int, default=0)
    ap.add_argument("--dbgwg", type=int, default=-1)
    ap.add_argument("--dbgwave", type=int, default=0)
    ap.add_argument("--pf", default="none")
    ap.add_argument("--nogpf", action="store_true")
    ap.add_argument("--nocode", action="store_true")
    ap.add_argument("--call", action="store_true")
    ap.add_argument("--cn", type=int, default=-1)
    args = ap.parse_args()
    if args.call: set_call()
    if args.cn >= 0:
        allp = [0,1,2,3,4,5,13,14,15,16,17,18,19]
        WO_PC = allp[:args.cn]; WO_PD = allp[args.cn:]
    if args.pf == "none": PF = False
    else: PF = True; PFS = PFS_TAB[args.pf]
    if args.nogpf: GPF = False
    if args.nocode: GPF_CODE = False
    print(gen(stamps=args.stamps, dump=args.dump, stagest=args.stagest, exp=args.exp, until=args.until, dbgwg=args.dbgwg, dbgwave=args.dbgwave))
```

```python
import sys
from asmlib import *
from lay2 import TKV, TQ

KN = "standalone__linear_kernel_hedgehog__prompt_kernel"
NST = 10
SLOT = 32768
R = 3
L_WQ = 98304
L_PHI = 149504
L_ZERO = 151552
L_CNT = 153600
L_KVF = 154624
L_PK = 32768
L_WO19 = 158464
LDS_BYTES = 163840
def L_WO(sg): return sg*5120 if sg <= 18 else L_WO19
WO_P1 = [0,1,2,3,4,5,13,14,15,16,17,18,19]
WO_P2 = [6,7,8,9,10,11,12]
WS_PART = 0x000000
WS_O = 0x100000
WS_RDY = 0x400000
WS_STAMP = 0x700000
WS_DBG = 0x800000
PF = False
VRED = True
OUTFL = ''
GPF = True
GPF_CODE = True
PFS_TAB = {
 'b':  {'pre': [('x',2),('kv',2)], 0: [('kv',5),('x',6)], 1: [('kv',8),('q',0),('q',1)], 3: [('wo',0),('wo',1)]},
 'e1': {'e': [('x',0),('kv',2),('code',0)], 'pre': [('x',4)], 0: [('kv',5),('x',8)], 1: [('kv',8)], 3: [('q',0)], 4: [('q',1)], 6: [('wo',0)], 7: [('wo',1)]},
 'e2': {'e': [('x',2),('kv',2),('code',0)], 0: [('kv',5),('x',6)], 1: [('kv',8)], 3: [('q',0)], 4: [('q',1)], 6: [('wo',0)], 7: [('wo',1)]},
 'e3': {'e': [('x',0),('kv',0),('code',0)], 'pre': [('x',4),('kv',3)], 0: [('kv',6),('x',8)], 1: [('kv',9)], 3: [('q',0)], 4: [('q',1)], 6: [('wo',0)], 7: [('wo',1)]},
 'e4': {'e': [('x',2),('kv',2),('code',0)], 'pre': [('x',6),('kv',5)], 0: [('kv',8)], 2: [('q',0)], 3: [('q',1)], 5: [('wo',0)], 6: [('wo',1)]},
 'e5': {'e': [('code',0)], 'pre': [('x',2),('kv',2)], 0: [('kv',5),('x',6)], 2: [('kv',8)], 4: [('q',0)], 5: [('q',1)], 7: [('wo',0)], 8: [('wo',1)]},
 'wo': {'e': [('code',0)], 4: [('q',0)], 5: [('q',1)], 7: [('wo',0)], 8: [('wo',1)]},
}
PFS = PFS_TAB['b']
LOG2E = 0x3fb8aa3b
NLOG2E = 0xbfb8aa3b
SPIN_G = 0x8000
SPIN_L = 0x80000

def gen(stamps=False, dump=None, stagest=False, exp='', until=0, dbgwg=-1, dbgwave=0):
    a = Asm(); e = a.e
    S_X, S_W, S_WS = 20, 24, 28
    S_A, S_B = 72, 76
    sWAVE, sW4, sRC, sHP, sBB = 32, 33, 34, 35, 36
    sT = 40
    sSOFX, sSOFW, sM0 = 52, 53, 54
    sNONCE = 55
    sL = 56
    sEX = 58
    sSPIN = 60
    sU, sV = 62, 63
    sST = 80
    NS = 11
    def sstamp(i):
        if stagest: e(f"s_memtime s[{sST+2*i}:{sST+2*i+1}]")
    def stamp(i):
        if stamps and not (stagest and i > 0): e(f"s_memtime s[{sST+2*i}:{sST+2*i+1}]")
    def rstamp(i):
        if stamps and not stagest: e(f"s_memrealtime s[{sST+2*i}:{sST+2*i+1}]")
    def srd(dst, ptr, nbytes):
        e(f"""
        s_mov_b32 s{dst}, s{ptr}
        s_and_b32 s{dst+1}, s{ptr+1}, 0xffff
        s_mov_b32 s{dst+2}, {nbytes}
        s_mov_b32 s{dst+3}, 0x20000
        """)
    def subsignal(idx, tmp=2):
        e(f"""
        v_mov_b32 v{tmp}, {L_CNT + 4*idx}
        v_mov_b32 v{tmp+1}, 1
        s_mov_b64 exec, 1
        ds_add_u32 v{tmp}, v{tmp+1}
        s_mov_b64 exec, -1
        """)
    def subwait(idx, target=4, tmp=2):
        lab = a.newlabel("SW")
        e(f"v_mov_b32 v{tmp}, {L_CNT + 4*idx}")
        e(f"s_mov_b32 s{sSPIN}, {SPIN_L}")
        a.label(lab)
        e(f"""
        s_sub_u32 s{sSPIN}, s{sSPIN}, 1
        s_cbranch_scc1 L_end
        ds_read_b32 v{tmp+1}, v{tmp}
        s_waitcnt lgkmcnt(0)
        v_readfirstlane_b32 s{sT}, v{tmp+1}
        s_nop 0
        s_cmp_lt_u32 s{sT}, {target}
        s_cbranch_scc1 {lab}
        """)
    def subbar(idx, target=4, tmp=2):
        subsignal(idx, tmp); subwait(idx, target, tmp)
    def dump_regs(regs, off):
        n = len(regs)
        e(f"""
        s_lshl_b32 s{sT}, s2, 3
        s_add_u32 s{sT}, s{sT}, s{sWAVE}
        s_mul_i32 s{sT}, s{sT}, {n*256}
        s_add_u32 s{sT}, s{sT}, {WS_DBG + off}
        v_lshlrev_b32 v2, 2, v0
        """)
        for i, r in enumerate(regs):
            e(f"buffer_store_dword v{r}, v2, s[{S_WS}:{S_WS+3}], s{sT} offen offset:{(i%16)*256}")
            if i % 16 == 15: e(f"s_add_u32 s{sT}, s{sT}, 4096")
        e("s_waitcnt vmcnt(0)")
    def softmax_pair(P0, P1, EP, EN, PH, tm):
        p = [P0 + i for i in range(16)] + [P1 + i for i in range(4)]
        tM, tN, tA, tB = tm, tm+1, tm+2, tm+4
        e(f"v_max3_f32 v{tM}, v{p[0]}, v{p[1]}, v{p[2]}")
        e(f"v_min3_f32 v{tN}, v{p[0]}, v{p[1]}, v{p[2]}")
        for i in range(3, 19, 2):
            e(f"v_max3_f32 v{tM}, v{tM}, v{p[i]}, v{p[i+1]}")
            e(f"v_min3_f32 v{tN}, v{tN}, v{p[i]}, v{p[i+1]}")
        e(f"v_max_f32 v{tM}, v{tM}, v{p[19]}")
        e(f"v_min_f32 v{tN}, v{tN}, v{p[19]}")
        e(f"v_mul_f32 v{tA}, {NLOG2E:#x}, v{tM}")
        e(f"v_mul_f32 v{tB}, {LOG2E:#x}, v{tN}")
        for i in range(20):
            e(f"v_fma_f32 v{EP+i}, v{p[i]}, s{sL}, v{tA}")
            e(f"v_fma_f32 v{EN+i}, -v{p[i]}, s{sL}, v{tB}")
        for i in range(20):
            e(f"v_exp_f32 v{EP+i}, v{EP+i}")
            e(f"v_exp_f32 v{EN+i}, v{EN+i}")
        e(f"v_add_f32 v{tA}, v{EP}, v{EP+1}"); e(f"v_add_f32 v{tB}, v{EN}, v{EN+1}")
        e(f"v_add_f32 v{tA+1}, v{EP+2}, v{EP+3}"); e(f"v_add_f32 v{tB+1}, v{EN+2}, v{EN+3}")
        for i in range(4, 20, 2):
            e(f"v_add_f32 v{tA}, v{tA}, v{EP+i}"); e(f"v_add_f32 v{tB}, v{tB}, v{EN+i}")
            e(f"v_add_f32 v{tA+1}, v{tA+1}, v{EP+i+1}"); e(f"v_add_f32 v{tB+1}, v{tB+1}, v{EN+i+1}")
        e(f"v_add_f32 v{tA}, v{tA}, v{tA+1}")
        e(f"v_add_f32 v{tB}, v{tB}, v{tB+1}")
        e(f"v_rcp_f32 v{tA}, v{tA}")
        e(f"v_rcp_f32 v{tB}, v{tB}")
        e("s_nop 0")
        for i in range(10):
            e(f"v_mul_f32 v{EP+2*i}, v{EP+2*i}, v{tA}"); e(f"v_mul_f32 v{EP+2*i+1}, v{EP+2*i+1}, v{tA}")
            e(f"v_mul_f32 v{EN+2*i}, v{EN+2*i}, v{tB}"); e(f"v_mul_f32 v{EN+2*i+1}, v{EN+2*i+1}, v{tB}")
            e(f"v_cvt_pk_bf16_f32 v{PH+i}, v{EP+2*i}, v{EP+2*i+1}")
            e(f"v_cvt_pk_bf16_f32 v{PH+10+i}, v{EN+2*i}, v{EN+2*i+1}")
    def lane_decomp32(vG, vrp, vc, vQ, vhh):
        e(f"""
        v_lshrrev_b32 v{vG}, 4, v0
        v_bfe_u32 v{vrp}, v0, 2, 2
        v_and_b32 v{vc}, 3, v0
        v_and_b32 v{vQ}, 1, v{vG}
        v_lshlrev_b32 v{vQ}, 1, v{vQ}
        v_lshrrev_b32 v{vhh}, 1, v{vc}
        v_add_u32 v{vQ}, v{vQ}, v{vhh}
        v_and_b32 v{vhh}, 1, v{vc}
        """)
    def wphi_frags(WF, va, t):
        vG, vrp, vc, vQ, vhh = t, t+1, t+2, t+3, t+4
        lane_decomp32(vG, vrp, vc, vQ, vhh)
        e(f"""
        v_mul_u32_u24 v{t+5}, 800, v{vhh}
        v_mul_u32_u24 v{t+6}, 40, v{vrp}
        v_add_u32 v{t+5}, v{t+5}, v{t+6}
        v_lshlrev_b32 v{t+6}, 3, v{vQ}
        v_add_u32 v{t+5}, v{t+5}, v{t+6}
        v_add_u32 v{t+5}, {L_PHI}, v{t+5}
        v_lshrrev_b32 v{t+6}, 1, v{vG}
        v_mov_b32 v{va+1}, {L_ZERO}
        v_cmp_eq_u32 vcc, v{t+6}, v{vhh}
        s_nop 1
        v_cndmask_b32 v{va}, v{va+1}, v{t+5}, vcc
        v_cmp_eq_u32 s[{sEX}:{sEX+1}], 0, v{vQ}
        s_nop 1
        s_and_b64 vcc, vcc, s[{sEX}:{sEX+1}]
        v_add_u32 v{t+5}, 32, v{t+5}
        s_nop 0
        v_cndmask_b32 v{va+1}, v{va+1}, v{t+5}, vcc
        """)
        for u in range(2):
            for step in range(3):
                for rd in range(2):
                    d = WF + u*12 + step*4 + 2*rd
                    if step == 2 and rd == 1:
                        e(f"v_mov_b32 v{d}, 0"); e(f"v_mov_b32 v{d+1}, 0")
                    else:
                        e(f"ds_read_b64_tr_b16 v[{d}:{d+1}], v{va+u} offset:{(8*step+4*rd)*40}")
    def feature_map(SRC, WF, P0, P1):
        for step in range(3):
            for u, P in ((0, P0), (1, P1)):
                c = "0" if step == 0 else f"v[{P}:{P+15}]"
                e(f"v_mfma_f32_32x32x16_bf16 v[{P}:{P+15}], v[{WF+u*12+step*4}:{WF+u*12+step*4+3}], v[{SRC+4*step}:{SRC+4*step+3}], {c}")
    def xfrag_addr(vBA, t):
        e(f"""
        v_and_b32 v{t}, 31, v0
        v_lshrrev_b32 v{t+1}, 5, v0
        v_bfe_u32 v{t+2}, v{t}, 1, 3
        v_xor_b32 v{t+2}, v{t+2}, v{t+1}
        v_lshlrev_b32 v{t+2}, 4, v{t+2}
        s_lshl_b32 s{sT}, s{sW4}, 5
        v_add_u32 v{t}, s{sT}, v{t}
        v_lshlrev_b32 v{t}, 7, v{t}
        v_add_u32 v{vBA}, v{t}, v{t+2}
        v_xor_b32 v{vBA+1}, 32, v{vBA}
        v_xor_b32 v{vBA+2}, 64, v{vBA}
        v_xor_b32 v{vBA+3}, 96, v{vBA}
        """)
    class Base:
        def __init__(self, regs): self.regs = regs; self.cur = 0
        def set(self, s):
            so = (s % R) * SLOT
            want = (so // 65536) * 65536
            if want != self.cur:
                d = (want - self.cur) & 0xffffffff
                for r in self.regs: e(f"v_add_u32 v{r}, {d}, v{r}")
                self.cur = want
            return so - self.cur
    def wo_setup(vWO, t):
        e(f"""
        v_mul_u32_u24 v{t}, 26, v0
        v_lshrrev_b32 v{t}, 8, v{t}          ; l/10 for l<64
        v_mul_u32_u24 v{t+1}, 10, v{t}
        v_sub_u32 v{t+1}, v0, v{t+1}
        v_lshlrev_b32 v{t+1}, 4, v{t+1}
        v_mul_u32_u24 v{t}, 1280, v{t}
        v_add_u32 v{vWO}, v{t}, v{t+1}
        v_cmp_gt_u32 vcc, 40, v0
        s_lshr_b32 s{sU}, s{sHP}, 1
        s_mul_i32 s{sU}, s{sU}, 160
        s_mul_i32 s{sV}, s{sW4}, {40*1280}
        s_add_u32 s{sU}, s{sU}, s{sV}        ; + G*40 rows
        s_lshr_b32 s{sV}, s{sW4}, 1
        s_lshl_b32 s{sV}, s{sV}, 4
        s_and_b32 s{sT}, s{sW4}, 1
        s_lshl_b32 s{sT}, s{sT}, 2
        s_add_u32 s{sV}, s{sV}, s{sT}
        s_mul_i32 s{sV}, s{sV}, 160          ; pi0*160
        s_mov_b64 s[{sEX}:{sEX+1}], vcc
        """)
    def wo_dma(sg, rd, vWO):
        blk, c5 = divmod(sg, 5)
        if c5 < 4: row = 160*blk + [0, 8, 20, 28][c5] + 4*rd
        else: row = 160*blk + 16 + 20*rd
        e(f"s_add_u32 m0, s{sV}, {L_WO(sg) + rd*8*160}")
        e(f"s_add_u32 s{sT}, s{sU}, {row*1280}")
        e(f"buffer_load_dwordx4 v{vWO}, s[{S_B}:{S_B+3}], s{sT} offen lds")

    e(f"""
    s_load_dwordx8 s[4:11], s[0:1], 0
    s_load_dwordx4 s[12:15], s[0:1], 32
    s_load_dwordx2 s[16:17], s[0:1], 48
    s_cmp_ge_u32 s2, 256
    s_cbranch_scc1 L_end
    """)
    if 'half' in exp:
        e("s_bitcmp1_b32 s2, 6")
        e("s_cbranch_scc1 L_end")
    if 'quarter' in exp:
        e("s_and_b32 s40, s2, 0x60")
        e("s_cmp_lg_u32 s40, 0")
        e("s_cbranch_scc1 L_end")
    stamp(0); rstamp(9)
    if until: e("s_memrealtime s[98:99]")
    e(f"""
    v_lshrrev_b32 v1, 6, v0
    v_and_b32 v0, 63, v0
    s_and_b32 s{sT}, s2, 7
    s_lshr_b32 s{sT+1}, s2, 3
    v_readfirstlane_b32 s{sWAVE}, v1
    s_lshr_b32 s{sRC}, s{sT}, 1
    s_lshl_b32 s{sRC}, s{sRC}, 2
    s_lshr_b32 s{sT+2}, s{sT+1}, 3
    s_add_u32 s{sRC}, s{sRC}, s{sT+2}
    s_and_b32 s{sHP}, s{sT}, 1
    s_lshl_b32 s{sHP}, s{sHP}, 3
    s_and_b32 s{sT+2}, s{sT+1}, 7
    s_add_u32 s{sHP}, s{sHP}, s{sT+2}
    s_and_b32 s{sW4}, s{sWAVE}, 3
    s_mul_i32 s{sBB}, s{sHP}, 5
    s_and_b32 s{sBB}, s{sBB}, 7
    s_sub_u32 s{sBB}, 8, s{sBB}
    s_min_u32 s{sBB}, s{sBB}, 4
    s_mov_b32 s{sL}, {LOG2E:#x}
    s_cmp_ge_u32 s{sWAVE}, 4
    s_cbranch_scc1 L_lq
    """)
    if GPF:
        e(f"""
        s_lshl_b32 s{sT}, s{sW4}, 6
        v_add_u32 v2, s{sT}, v0                 ; n = 64*w + lane  (0..255)
        s_mul_i32 s{sT}, s2, 80
        s_mul_i32 s{sT+1}, s2, 75
        s_mul_i32 s{sT+2}, s2, 25
        s_sub_u32 s{sT+1}, s{sT+1}, 80
        s_sub_u32 s{sT+2}, s{sT+2}, 155
        s_waitcnt lgkmcnt(0)
        v_mov_b32 v3, s{sT+2}
        v_mov_b32 v4, s10
        v_mov_b32 v5, s11
        v_mov_b32 v6, s{sT+1}
        v_mov_b32 v7, s6
        v_mov_b32 v8, s7
        v_cmp_gt_u32 vcc, 155, v2
        s_nop 1
        v_cndmask_b32 v3, v3, v6, vcc
        v_cndmask_b32 v4, v4, v7, vcc
        v_cndmask_b32 v5, v5, v8, vcc
        v_mov_b32 v6, s{sT}
        v_mov_b32 v7, s4
        v_mov_b32 v8, s5
        v_cmp_gt_u32 vcc, 80, v2
        s_nop 1
        v_cndmask_b32 v3, v3, v6, vcc
        v_cndmask_b32 v4, v4, v7, vcc
        v_cndmask_b32 v5, v5, v8, vcc
        v_add_u32 v3, v3, v2
        v_lshlrev_b32 v3, 7, v3
        v_add_co_u32 v4, vcc, v4, v3
        s_nop 1
        v_addc_co_u32 v5, vcc, 0, v5, vcc
        """)
        if GPF_CODE:
            e(f"""
            s_getpc_b64 s[{sT+4}:{sT+5}]
L_pc_ref:
            s_min_u32 s{sT+3}, s2, (L_code_end-{KN})/128
            s_lshl_b32 s{sT+3}, s{sT+3}, 7
            s_sub_u32 s{sT+4}, s{sT+4}, L_pc_ref-{KN}
            s_subb_u32 s{sT+5}, s{sT+5}, 0
            s_add_u32 s{sT+4}, s{sT+4}, s{sT+3}
            s_addc_u32 s{sT+5}, s{sT+5}, 0
            s_min_u32 s{sT+3}, s2, 199
            s_lshl_b32 s{sT+3}, s{sT+3}, 7
            s_add_u32 s{sT+6}, s8, s{sT+3}
            s_addc_u32 s{sT+7}, s9, 0
            s_cmp_lg_u32 s{sW4}, 2
            s_cbranch_scc1 L_gpf_go
            v_writelane_b32 v4, s{sT+4}, 52
            v_writelane_b32 v5, s{sT+5}, 52
            v_writelane_b32 v4, s{sT+6}, 53
            v_writelane_b32 v5, s{sT+7}, 53
L_gpf_go:
            v_cmp_gt_u32 vcc, 182, v2
            """)
        else:
            e("v_cmp_gt_u32 vcc, 180, v2")
        e(f"""
        s_nop 1
        s_and_saveexec_b64 s[{sT}:{sT+1}], vcc
        s_cbranch_execz L_gpf_done
        global_load_dword v48, v[4:5], off
L_gpf_done:
        s_mov_b64 exec, -1
        """)

    ACC = 64; FB = [112, 128]; WF = 144; KB = 168; VB = 180; PK0 = 192; PK1 = 208; EP = 224; EN = 112; PH = 64; TM = 244
    vAA = 10; vBA = 14
    vPA, vPB = 34, 35
    sPART = 64
    e(f"""
    s_lshl_b32 s{sPART}, s{sHP}, 4
    s_add_u32 s{sPART}, s{sPART}, s{sRC}
    s_lshl_b32 s{sPART}, s{sPART}, 12
    s_add_u32 s{sPART}, s{sPART}, {WS_PART}
    s_waitcnt lgkmcnt(0)
    """)
    srd(S_WS, 16, 0x10000000)
    srd(S_A, 14, 256)
    if PF:
        srd(S_X, 6, 640*3840)
        e(f"""
        v_mov_b32 v37, 0x40000000
        s_lshr_b32 s{sT+1}, s2, 3               ; j
        s_and_b32 s{sT+2}, s2, 1
        s_mul_i32 s{sT+2}, s{sT+2}, 640         ; column half (bytes)
        v_mov_b32 v3, 0x40000000
        s_cmp_eq_u32 s{sW4}, 0
        s_cbranch_scc1 L_t_x
        s_cmp_eq_u32 s{sW4}, 1
        s_cbranch_scc1 L_t_kv
        v_mul_u32_u24 v2, 52, v0
        v_lshrrev_b32 v2, 8, v2                 ; l/5
        v_mul_u32_u24 v4, 5, v2
        v_sub_u32 v4, v0, v4
        v_lshlrev_b32 v4, 7, v4                 ; li*128
        s_mul_i32 s{sT+3}, s{sT+1}, 10
        v_add_u32 v2, s{sT+3}, v2               ; row
        s_mov_b32 s{sT+4}, 3840
        s_cmp_eq_u32 s{sW4}, 2
        s_cselect_b32 s{sT+4}, s{sT+4}, 1280
        v_mul_lo_u32 v2, v2, s{sT+4}
        v_add3_u32 v37, v2, v4, s{sT+2}
        v_cmp_gt_u32 vcc, 50, v0
        s_nop 1
        v_cndmask_b32 v37, v3, v37, vcc
        s_cmp_eq_u32 s{sW4}, 2
        s_cbranch_scc1 L_t_done
        """)
        srd(S_X, 10, 640*1280)
        e(f"""
        s_branch L_t_done
L_t_kv:
        v_mul_u32_u24 v2, 13, v0
        v_lshrrev_b32 v2, 8, v2                 ; q = l/20
        v_mul_u32_u24 v4, 20, v2
        v_sub_u32 v4, v0, v4                    ; l%20
        v_mul_u32_u24 v5, 26, v4
        v_lshrrev_b32 v5, 8, v5                 ; r = (l%20)/10
        v_mul_u32_u24 v6, 10, v5
        v_sub_u32 v4, v4, v6                    ; l%10
        v_mul_u32_u24 v6, 52, v4
        v_lshrrev_b32 v6, 8, v6                 ; ty
        v_mul_u32_u24 v7, 5, v6
        v_sub_u32 v4, v4, v7                    ; li
        v_lshlrev_b32 v4, 7, v4
        v_lshlrev_b32 v2, 6, v2                 ; 64q
        v_add_u32 v2, v2, v5
        s_lshl_b32 s{sT+3}, s{sT+1}, 1
        v_add_u32 v2, s{sT+3}, v2               ; row
        v_mul_u32_u24 v2, 3840, v2
        v_add_u32 v6, 1, v6
        v_mul_u32_u24 v6, 1280, v6
        v_add3_u32 v2, v2, v4, v6
        v_add_u32 v37, s{sT+2}, v2
        v_cmp_gt_u32 vcc, 60, v0
        s_nop 1
        v_cndmask_b32 v37, v3, v37, vcc
        s_branch L_t_done
L_t_x:
        v_and_b32 v2, 15, v0
        s_lshr_b32 s{sT+2}, s2, 1
        s_and_b32 s{sT+2}, s{sT+2}, 3
        s_lshl_b32 s{sT+2}, s{sT+2}, 9
        s_lshl_b32 s{sT+3}, s{sT+1}, 4
        s_add_u32 s{sT+2}, s{sT+2}, s{sT+3}
        v_add_u32 v2, s{sT+2}, v2
        v_mul_u32_u24 v2, 1280, v2
        v_lshrrev_b32 v4, 4, v0
        v_lshlrev_b32 v4, 7, v4
        v_add_u32 v37, v2, v4
        """)
        srd(S_X, 4, 2048*1280)
        a.label("L_t_done")
    def touch(wave, soff):
        if not PF: return
        lab = a.newlabel("TT")
        e(f"""
        s_cmp_lg_u32 s{sW4}, {wave}
        s_cbranch_scc1 {lab}
        s_mov_b32 s{sT}, {soff}
        buffer_load_dword v36, v37, s[{S_X}:{S_X+3}], s{sT} offen
{lab}:
        """)
    def code_touch():
        lab = a.newlabel("CT")
        e(f"""
        s_cmp_lg_u32 s{sW4}, 3
        s_cbranch_scc1 {lab}
        s_getpc_b64 s[{sT+4}:{sT+5}]
L_pc_ref:
        s_lshr_b32 s{sT+3}, s2, 3
        s_mul_i32 s{sT+3}, s{sT+3}, 7
        v_add_u32 v2, s{sT+3}, v0
        v_min_u32 v2, (L_code_end-{KN})/128, v2
        v_lshlrev_b32 v2, 7, v2
        s_sub_u32 s{sT+4}, s{sT+4}, L_pc_ref-{KN}
        s_subb_u32 s{sT+5}, s{sT+5}, 0
        v_mov_b32 v5, s{sT+5}
        v_add_co_u32 v4, vcc, s{sT+4}, v2
        s_nop 1
        v_addc_co_u32 v5, vcc, 0, v5, vcc
        v_cmp_gt_u32 vcc, 7, v0
        s_nop 1
        s_mov_b64 exec, vcc
        global_load_dword v47, v[4:5], off
        s_mov_b64 exec, -1
{lab}:
        """)
    def run_sched(when):
        if not PF: return
        for kind, arg in PFS.get(when, []):
            if kind == 'x': touch(0, arg*128)
            elif kind == 'kv': touch(1, arg*64*3840)
            elif kind == 'q': touch(2, arg*320*3840)
            elif kind == 'wo': touch(3, arg*320*1280)
            elif kind == 'code': code_touch()
    run_sched('e')
    e(f"""
    s_or_b32 s{sT}, s{sRC}, s{sHP}
    s_or_b32 s{sT}, s{sT}, s{sW4}
    s_cmp_lg_u32 s{sT}, 0
    s_cbranch_scc1 L_kv_nn
    s_memrealtime s[{sT+4}:{sT+5}]
    s_waitcnt lgkmcnt(0)
    s_or_b32 s{sT+4}, s{sT+4}, 1
    v_mov_b32 v2, 0
    v_mov_b32 v3, s{sT+4}
    s_mov_b64 exec, 1
    buffer_store_dword v3, v2, s[{S_A}:{S_A+3}], 0 offen sc1
    s_mov_b64 exec, -1
L_kv_nn:
    """)
    e(f"""
    v_lshlrev_b32 v2, 4, v0
    s_lshl_b32 s{sT}, s{sW4}, 10
    s_add_u32 s{sT}, s{sT}, {L_ZERO}
    v_add_u32 v2, s{sT}, v2
    v_mov_b32 v24, 0
    v_mov_b32 v25, 0
    v_mov_b32 v26, 0
    v_mov_b32 v27, 0
    s_cmp_eq_u32 s{sW4}, 3
    s_cbranch_scc1 L_kv_nz
    ds_write_b128 v2, v[24:27]
L_kv_nz:
    """)
    lane_decomp32(2, 3, 4, 5, 6)
    e(f"""
    v_lshlrev_b32 v5, 3, v5          ; 8Q
    v_mul_u32_u24 v6, 5, v6          ; 5hh
    v_lshrrev_b32 v7, 1, v2
    v_lshlrev_b32 v7, 3, v7
    v_add_u32 v7, v7, v3             ; krow
    v_lshlrev_b32 v7, 8, v7
    v_add_u32 v7, 16384, v7
    v_lshlrev_b32 v8, 2, v3          ; 4rp
    s_sub_u32 s{sT+1}, 4, s{sBB}
    """)
    for T in range(3):
        immc = 0; imms = 0
        for Q in range(4):
            q = TKV[T][Q] or TKV[T][0]
            immc |= q[1] << (8*Q); imms |= (8*q[0]) << (8*Q)
        e(f"""
        s_mov_b32 s{sT}, {immc}
        v_bfe_u32 v18, s{sT}, v5, 8
        v_add_u32 v18, v18, v6
        v_lshrrev_b32 v19, 1, v18
        v_mov_b32 v9, s{sT+1}
        v_cmp_le_u32 vcc, s{sBB}, v19
        v_mov_b32 v20, 0
        s_nop 0
        v_cndmask_b32 v9, v20, v9, vcc
        v_add_u32 v19, v19, v9
        s_mov_b32 s{sT}, {imms}
        v_bfe_u32 v9, s{sT}, v5, 8
        v_add3_u32 v19, v19, v9, v8
        v_and_b32 v19, 15, v19
        v_lshlrev_b32 v19, 4, v19
        v_and_b32 v18, 1, v18
        v_lshlrev_b32 v18, 3, v18
        v_add3_u32 v{vAA+T}, v7, v19, v18
        """)
    xfrag_addr(vBA, 2)
    def kv_reads(kk, buf, sb):
        b = FB[buf]
        e(f"ds_read_b128 v[{b+12}:{b+15}], v{vBA+kk} offset:{sb}")
        for T in range(3):
            for rd in range(2):
                e(f"ds_read_b64_tr_b16 v[{b+4*T+2*rd}:{b+4*T+2*rd+1}], v{vAA+T} offset:{sb+(16*kk+4*rd)*256}")
    def kv_mfmas(buf, first=False):
        b = FB[buf]
        for T in range(3):
            c = "0" if first else f"v[{ACC+16*T}:{ACC+16*T+15}]"
            e(f"v_mfma_f32_32x32x16_bf16 v[{ACC+16*T}:{ACC+16*T+15}], v[{b+4*T}:{b+4*T+3}], v[{b+12}:{b+15}], {c}")
    run_sched('pre')
    e("s_waitcnt lgkmcnt(0)")
    stamp(1)
    e("s_barrier")
    stamp(2)
    vNC, vRF = 38, 42
    vRA = 18; vKA = 26; vKB = 28
    def hoist_pk():
        e(f"""
        v_and_b32 v2, 31, v0
        v_lshrrev_b32 v3, 5, v0
        v_lshlrev_b32 v3, 14, v3
        s_lshl_b32 s{sT}, s{sW4}, 5
        v_add_u32 v2, s{sT}, v2
        v_lshlrev_b32 v2, 7, v2
        v_add_u32 v2, v2, v3
        v_add_u32 v2, {L_PK}, v2
        v_and_b32 v3, 7, v0
        v_bfe_u32 v4, v0, 3, 1
        v_lshlrev_b32 v4, 2, v4
        v_xor_b32 v3, v3, v4
        v_lshlrev_b32 v3, 4, v3
        v_add_u32 v{vRA}, v2, v3
        """)
        for u in range(1, 8): e(f"v_xor_b32 v{vRA+u}, {16*u}, v{vRA}")

    def hoist_kv():
        e(f"""
        v_lshrrev_b32 v2, 4, v0            ; G
        v_bfe_u32 v3, v0, 2, 2             ; rp
        v_and_b32 v4, 3, v0                ; c
        v_lshlrev_b32 v5, 3, v2
        v_add_u32 v5, v5, v3
        v_lshlrev_b32 v5, 7, v5
        s_lshr_b32 s{sT}, s{sW4}, 1
        s_lshl_b32 s{sT}, s{sT}, 14
        s_add_u32 s{sT}, s{sT}, {L_PK}
        v_add_u32 v5, s{sT}, v5
        v_and_b32 v6, 1, v2
        v_lshlrev_b32 v6, 2, v6
        v_xor_b32 v6, v6, v3
        v_lshrrev_b32 v7, 1, v4
        v_and_b32 v8, 1, v4
        v_lshlrev_b32 v8, 3, v8
        v_add_u32 v5, v5, v8
        s_and_b32 s{sT+1}, s{sW4}, 1
        v_add_u32 v9, 5, v7
        v_mov_b32 v40, 7
        s_cmp_eq_u32 s{sT+1}, 1
        s_cselect_b64 vcc, -1, 0
        v_cndmask_b32 v9, v9, v40, vcc
        v_xor_b32 v9, v9, v6
        v_lshlrev_b32 v9, 4, v9
        v_add_u32 v{vKA}, v5, v9
        v_xor_b32 v{vKA+1}, 64, v{vKA}
        v_add_u32 v{vKA+1}, 512, v{vKA+1}
        """)
        for ct in range(3):
            if ct < 2: e(f"v_add_u32 v9, {2*ct}, v7")
            else: e(f"v_mov_b32 v9, 4")
            e(f"""
            v_xor_b32 v9, v9, v6
            v_lshlrev_b32 v9, 4, v9
            v_add_u32 v{vKB+2*ct}, v5, v9
            v_xor_b32 v{vKB+2*ct+1}, 64, v{vKB+2*ct}
            v_add_u32 v{vKB+2*ct+1}, 512, v{vKB+2*ct+1}
            """)
        e(f"""
        v_lshrrev_b32 v2, 4, v0            ; g
        v_and_b32 v3, 15, v0
        s_lshr_b32 s{sT}, s{sW4}, 1
        s_mul_i32 s{sT}, s{sT}, 6
        s_and_b32 s{sT+1}, s{sW4}, 1
        s_lshl_b32 s{sT+2}, s{sT+1}, 2
        s_add_u32 s{sT}, s{sT}, s{sT+2}
        v_add_u32 v4, s{sT}, v2
        v_mul_u32_u24 v4, 40, v4
        v_add_u32 v4, v4, v3
        v_lshlrev_b32 v4, 3, v4
        v_mov_b32 v5, 0x40000000
        s_lshl_b32 s{sT+2}, s{sT+1}, 1
        s_sub_u32 s{sT+2}, 4, s{sT+2}
        v_cmp_gt_u32 vcc, s{sT+2}, v2
        s_nop 1
        v_cndmask_b32 v{vPA}, v5, v4, vcc
        v_cmp_gt_u32 vcc, 8, v3
        s_nop 1
        v_cndmask_b32 v{vPB}, v5, v{vPA}, vcc
        """)

    base = Base([vAA, vAA+1, vAA+2, vBA, vBA+1, vBA+2, vBA+3])
    sb = base.set(0)
    kv_reads(0, 0, sb)
    for s in range(NST):
        for kk in range(3):
            kv_reads(kk+1, (kk+1) & 1, sb)
            e("s_waitcnt lgkmcnt(7)")
            kv_mfmas(kk & 1, first=(s == 0 and kk == 0))
        run_sched(s)
        if s == 0:
            e(f"v_mov_b32 v{vNC}, 0")
            e(f"buffer_load_dword v{vNC+1}, v{vNC}, s[{S_A}:{S_A+3}], 0 offen sc1")
        if s == 1: wphi_frags(WF, 18, 22)
        if s == 4: hoist_pk()
        if s == 5: hoist_kv()
        if s == 2 and 'p1only' not in exp:
            lab = a.newlabel("NF"); lab2 = a.newlabel("NC")
            e(f"""
            s_waitcnt vmcnt(0)
            v_readfirstlane_b32 s{sNONCE}, v{vNC+1}
            s_mov_b32 s{sSPIN}, {SPIN_G}
            s_cmp_lg_u32 s{sNONCE}, 0
            s_cbranch_scc1 {lab}
{lab2}:
            s_sub_u32 s{sSPIN}, s{sSPIN}, 1
            s_cbranch_scc1 L_end
            buffer_load_dword v{vNC+1}, v{vNC}, s[{S_A}:{S_A+3}], 0 offen sc1
            s_waitcnt vmcnt(0)
            v_readfirstlane_b32 s{sNONCE}, v{vNC+1}
            s_nop 0
            s_cmp_eq_u32 s{sNONCE}, 0
            s_cbranch_scc1 {lab2}
{lab}:
            """)
        if s == 3:
            lab = a.newlabel("RD")
            e(f"""
            s_cmp_lg_u32 s{sW4}, 0
            s_cbranch_scc1 {lab}
            s_add_u32 s{sT}, s{sPART}, 3840
            v_mov_b32 v2, 0
            v_mov_b32 v3, s{sNONCE}
            s_mov_b64 exec, 1
            buffer_store_dword v3, v2, s[{S_WS}:{S_WS+3}], s{sT} offen sc1
            s_mov_b64 exec, -1
{lab}:
            """)
        if s == 7:
            e(f"""
            v_and_b32 v2, 15, v0
            s_lshl_b32 s{sT}, s{sHP}, 4
            v_add_u32 v3, s{sT}, v2            ; hp*16 + r
            v_lshlrev_b32 v4, 4, v2
            v_add_u32 v4, s{sRC}, v4           ; h'*16 + rc
            v_bfe_u32 v5, v0, 4, 1
            v_cmp_eq_u32 vcc, 0, v5
            s_mov_b32 s{sT+1}, {WS_PART + 3840}
            s_nop 0
            v_cndmask_b32 v3, v4, v3, vcc
            v_lshlrev_b32 v{vRF}, 12, v3
            buffer_load_dword v{vRF+1}, v{vRF}, s[{S_WS}:{S_WS+3}], s{sT+1} offen sc1
            """)
        e("s_waitcnt lgkmcnt(0)")
        if s + 1 < NST: e("s_barrier")
        sstamp(s+1)
        if s + 1 < NST:
            sb = base.set(s+1)
            kv_reads(0, 0, sb)
        kv_mfmas(1)
    stamp(3)
    if 'p1only' in exp: e("s_branch L_fin")
    loc = {}
    for T, qs in enumerate(TKV):
        for Q, q in enumerate(qs):
            if q is not None: loc[q] = ACC + 16*T + 4*Q
    e("s_nop 9")
    if dump == "kvacc":
        e("s_nop 7"); dump_regs([loc[(sg, j)] + x for sg in range(2) for j in range(5) for x in range(4)], 0)
    for j in range(5):
        e(f"v_cvt_pk_bf16_f32 v{KB+2*j}, v{loc[(0,j)]}, v{loc[(0,j)]+1}")
        e(f"v_cvt_pk_bf16_f32 v{KB+2*j+1}, v{loc[(0,j)]+2}, v{loc[(0,j)]+3}")
    e(f"v_mov_b32 v{KB+10}, 0"); e(f"v_mov_b32 v{KB+11}, 0")
    e("s_nop 0")
    feature_map(KB, WF, PK0, PK1)
    for j in range(5):
        e(f"v_cvt_pk_bf16_f32 v{VB+2*j}, v{loc[(1,j)]}, v{loc[(1,j)]+1}")
        e(f"v_cvt_pk_bf16_f32 v{VB+2*j+1}, v{loc[(1,j)]+2}, v{loc[(1,j)]+3}")
    e(f"v_mov_b32 v{VB+10}, 0x3f80"); e(f"v_mov_b32 v{VB+11}, 0")
    for u in range(3):
        e(f"ds_write_b128 v{vRA+5+u}, v[{VB+4*u}:{VB+4*u+3}]")
    e("s_nop 7")
    e("s_nop 3")
    if dump == "pk":
        dump_regs([PK0+i for i in range(16)] + [PK1+i for i in range(4)], 0)
    softmax_pair(PK0, PK1, EP, EN, PH, TM)
    if dump == "phik": dump_regs([PH+i for i in range(20)], 0)
    for u in range(5):
        e(f"ds_write_b128 v{vRA+u}, v[{PH+4*u}:{PH+4*u+3}]")
    subbar(0)
    stamp(4)
    KD = 192; KF = 64
    for kap in range(4):
        f = KF + 16*kap
        for rd in range(2):
            e(f"ds_read_b64_tr_b16 v[{f+2*rd}:{f+2*rd+1}], v{vKA+rd} offset:{4096*kap}")
        for ct in range(3):
            for rd in range(2):
                e(f"ds_read_b64_tr_b16 v[{f+4+4*ct+2*rd}:{f+4+4*ct+2*rd+1}], v{vKB+2*ct+rd} offset:{4096*kap}")
    for kap in range(4):
        f = KF + 16*kap
        e(f"s_waitcnt lgkmcnt({min(15, 8*(3-kap))})")
        for ct in range(3):
            c = "0" if kap == 0 else f"v[{KD+4*ct}:{KD+4*ct+3}]"
            e(f"v_mfma_f32_16x16x32_bf16 v[{KD+4*ct}:{KD+4*ct+3}], v[{f}:{f+3}], v[{f+4+4*ct}:{f+4+4*ct+3}], {c}")
    subsignal(1)
    vWO = 40
    srd(S_B, 10, 640*1280)
    wo_setup(vWO, 2)
    for ct in range(3):
        e(f"v_cvt_pk_bf16_f32 v{KD+16+2*ct}, v{KD+4*ct}, v{KD+4*ct+1}")
        e(f"v_cvt_pk_bf16_f32 v{KD+16+2*ct+1}, v{KD+4*ct+2}, v{KD+4*ct+3}")
    for ct in range(3):
        e(f"v_min_u32 v{KD+16+2*ct}, -2, v{KD+16+2*ct}")
    for ct in range(3):
        e(f"buffer_store_dwordx2 v[{KD+16+2*ct}:{KD+16+2*ct+1}], v{vPA if ct < 2 else vPB}, s[{S_WS}:{S_WS+3}], s{sPART} offen offset:{128*ct} sc1")
    stamp(5)
    lab = a.newlabel("RC"); lab2 = a.newlabel("RP")
    e(f"""
    s_waitcnt vmcnt(3)
    s_mov_b32 s{sSPIN}, {SPIN_G}
    s_mov_b32 s{sT+1}, {WS_PART + 3840}
    v_cmp_ne_u32 vcc, s{sNONCE}, v{vRF+1}
    s_cbranch_vccz {lab}
{lab2}:
    s_sub_u32 s{sSPIN}, s{sSPIN}, 1
    s_cbranch_scc1 L_end
    buffer_load_dword v{vRF+1}, v{vRF}, s[{S_WS}:{S_WS+3}], s{sT+1} offen sc1
    s_waitcnt vmcnt(0)
    v_cmp_ne_u32 vcc, s{sNONCE}, v{vRF+1}
    s_cbranch_vccnz {lab2}
{lab}:
    """)
    subwait(1, target=8)
    e(f"s_mov_b64 exec, s[{sEX}:{sEX+1}]")
    for sg in WO_P2:
        for rd in range(2): wo_dma(sg, rd, vWO)
    e("s_mov_b64 exec, -1")
    PL = 64; SUM = 128; IDA = 144; sMASK = 69
    e(f"""
    s_lshl_b32 s{sT+4}, s{sHP}, 16
    s_add_u32 s{sT+4}, s{sT+4}, {WS_PART}
    s_lshl_b32 s{sT}, s{sW4}, 6
    v_add_u32 v6, s{sT}, v0            ; tau
    v_lshlrev_b32 v7, 4, v6
    v_mov_b32 v4, 0x40000000
    v_cmp_gt_u32 vcc, 240, v6
    s_mov_b32 s{sT}, s{sT+4}
    s_mov_b32 s{sMASK}, 0xffff
    v_cndmask_b32 v7, v4, v7, vcc
    """)
    stamp(6)
    for r in range(16):
        e(f"buffer_load_dwordx4 v[{PL+4*r}:{PL+4*r+3}], v7, s[{S_WS}:{S_WS+3}], s{sT} offen sc1")
        e(f"s_add_u32 s{sT}, s{sT}, 4096")
    if VRED:
        for i in range(8): e(f"v_mov_b32 v{SUM+i}, 0")
        e(f"""
        v_mul_u32_u24 v4, 205, v6
        v_lshrrev_b32 v4, 12, v4           ; tau/20
        v_mul_u32_u24 v5, 20, v4
        v_sub_u32 v5, v6, v5               ; fp
        v_mul_u32_u24 v5, 96, v5
        v_mul_u32_u24 v8, 43, v4
        v_lshrrev_b32 v8, 8, v8            ; hd
        v_mul_u32_u24 v9, 6, v8
        v_sub_u32 v9, v4, v9               ; dq
        v_mul_u32_u24 v8, 1920, v8
        v_lshlrev_b32 v9, 3, v9
        v_add3_u32 v5, v5, v8, v9
        v_add_u32 v4, {L_KVF}, v5
        v_mov_b32 v9, {L_CNT + 512}
        v_cmp_gt_u32 vcc, 240, v6
        s_nop 1
        v_cndmask_b32 v4, v9, v4, vcc
        v_add_u32 v5, 48, v4
        """)
    else:
        e(f"""
        v_and_b32 v2, 15, v0
        v_lshrrev_b32 v3, 4, v0            ; G
        v_lshrrev_b32 v4, 3, v2            ; i>>3
        v_and_b32 v5, 7, v2                ; j*
        v_lshrrev_b32 v8, 1, v5            ; reg
        v_and_b32 v5, 1, v5
        v_lshlrev_b32 v5, 4, v5
        v_mov_b32 v9, 0x3f80
        v_lshlrev_b32 v9, v5, v9           ; 1.0 in the right half
        v_mov_b32 v13, 0
        """)
        for u in range(2):
            e(f"v_add_u32 v5, {2*u}, v4")
            e(f"v_cmp_eq_u32 s[{sT}:{sT+1}], v5, v3")
            for rr in range(4):
                e(f"v_cmp_eq_u32 vcc, {rr}, v8")
                e(f"s_nop 0")
                e(f"s_and_b64 vcc, vcc, s[{sT}:{sT+1}]")
                e(f"v_cndmask_b32 v{IDA+4*u+rr}, v13, v9, vcc")
        for i in range(8): e(f"v_mov_b32 v{SUM+i}, 0")
        e(f"""
        v_and_b32 v2, 15, v0
        v_lshrrev_b32 v3, 5, v0            ; g>>1
        v_lshlrev_b32 v3, 4, v3
        s_lshl_b32 s{sT}, s{sW4}, 6
        v_add3_u32 v2, v2, v3, s{sT}
        v_bfe_u32 v3, v0, 4, 1             ; p
        v_mul_u32_u24 v3, 48, v3
        """)
        for u in range(2):
            t = 4 + u
            e(f"""
            v_add_u32 v8, {32*u}, v2           ; tau
            v_mul_u32_u24 v9, 205, v8
            v_lshrrev_b32 v9, 12, v9           ; tau/20
            v_mul_u32_u24 v{t}, 20, v9
            v_sub_u32 v{t}, v8, v{t}           ; fp
            v_mul_u32_u24 v{t}, 96, v{t}
            v_mul_u32_u24 v13, 43, v9
            v_lshrrev_b32 v13, 8, v13          ; hd
            v_mul_u32_u24 v41, 6, v13
            v_sub_u32 v41, v9, v41             ; dq
            v_mul_u32_u24 v13, 1920, v13
            v_lshlrev_b32 v41, 3, v41
            v_add3_u32 v{t}, v{t}, v13, v41
            v_add3_u32 v{t}, v{t}, v3, 0
            v_add_u32 v{t}, {L_KVF}, v{t}
            v_mov_b32 v41, {L_CNT + 512}
            v_cmp_gt_u32 vcc, 240, v8
            s_nop 1
            v_cndmask_b32 v{t}, v41, v{t}, vcc
            """)

    def acc(r, lab):
        e(f"""
        v_max_u32 v13, v{PL+4*r}, v{PL+4*r+2}
        v_cmp_eq_u32 vcc, -1, v13
        s_cbranch_vccnz {lab}
        s_bitset0_b32 s{sMASK}, {r}
        """)
        if VRED:
            for i in range(4):
                src = PL + 4*r + i
                e(f"v_lshlrev_b32 v{SUM+8}, 16, v{src}")
                e(f"v_and_b32 v{SUM+9}, 0xffff0000, v{src}")
                e(f"v_add_f32 v{SUM+2*i}, v{SUM+2*i}, v{SUM+8}")
                e(f"v_add_f32 v{SUM+2*i+1}, v{SUM+2*i+1}, v{SUM+9}")
        else:
            for u in range(2):
                e(f"v_mfma_f32_16x16x32_bf16 v[{SUM+4*u}:{SUM+4*u+3}], v[{IDA+4*u}:{IDA+4*u+3}], v[{PL+4*r}:{PL+4*r+3}], v[{SUM+4*u}:{SUM+4*u+3}]")
        a.label(lab)
    for r in range(16):
        e(f"s_waitcnt vmcnt({15-r})")
        if r == 0: e(f"v_max_u32 v{SUM+10}, v{PL}, v{PL+2}")
        else: e(f"v_max3_u32 v{SUM+10}, v{SUM+10}, v{PL+4*r}, v{PL+4*r+2}")
        for i in range(4):
            src = PL + 4*r + i
            e(f"v_lshlrev_b32 v{SUM+8}, 16, v{src}")
            e(f"v_and_b32 v{SUM+9}, 0xffff0000, v{src}")
            e(f"v_add_f32 v{SUM+2*i}, v{SUM+2*i}, v{SUM+8}")
            e(f"v_add_f32 v{SUM+2*i+1}, v{SUM+2*i+1}, v{SUM+9}")
    e(f"""
    v_cmp_eq_u32 vcc, -1, v{SUM+10}
    s_cbranch_vccz L_s1_done
    """)
    for i in range(8): e(f"v_mov_b32 v{SUM+i}, 0")
    for r in range(16):
        acc(r, f"L_s1a_{r}")
    e(f"""
    s_mov_b32 s{sSPIN}, {SPIN_G}
L_s1_loop:
    s_cmp_eq_u32 s{sMASK}, 0
    s_cbranch_scc1 L_s1_done
    s_sub_u32 s{sSPIN}, s{sSPIN}, 1
    s_cbranch_scc1 L_end
    """)
    for r in range(16):
        e(f"""
        s_bitcmp0_b32 s{sMASK}, {r}
        s_cbranch_scc1 L_s1l_{r}
        s_add_u32 s{sT}, s{sT+4}, {4096*r}
        buffer_load_dwordx4 v[{PL+4*r}:{PL+4*r+3}], v7, s[{S_WS}:{S_WS+3}], s{sT} offen sc1
L_s1l_{r}:
        """)
    e("s_waitcnt vmcnt(0)")
    for r in range(16):
        e(f"s_bitcmp0_b32 s{sMASK}, {r}")
        e(f"s_cbranch_scc1 L_s1b_{r}")
        acc(r, f"L_s1b_{r}")
    e("s_branch L_s1_loop")
    a.label("L_s1_done")
    e("s_nop 7")
    for u in range(2):
        e(f"v_cvt_pk_bf16_f32 v{SUM+12+2*u}, v{SUM+4*u}, v{SUM+4*u+1}")
        e(f"v_cvt_pk_bf16_f32 v{SUM+13+2*u}, v{SUM+4*u+2}, v{SUM+4*u+3}")
    e(f"ds_write_b64 v4, v[{SUM+12}:{SUM+13}]")
    e(f"ds_write_b64 v5, v[{SUM+14}:{SUM+15}]")
    subsignal(2)
    stamp(7)
    e(f"""
    v_cmp_gt_u32 vcc, 40, v0
    s_nop 1
    s_mov_b64 s[{sEX}:{sEX+1}], vcc
    """)
    subwait(5, tmp=8)
    e(f"s_mov_b64 exec, s[{sEX}:{sEX+1}]")
    for sg in WO_P1:
        for rd in range(2): wo_dma(sg, rd, vWO)
    e("s_mov_b64 exec, -1")
    vWA = 10
    e(f"""
    v_lshrrev_b32 v2, 4, v0            ; G
    v_bfe_u32 v3, v0, 2, 2             ; rp
    v_and_b32 v4, 3, v0                ; c
    v_lshrrev_b32 v5, 1, v2
    v_lshlrev_b32 v5, 4, v5            ; 16*(G>>1)
    v_and_b32 v6, 1, v2
    v_lshlrev_b32 v6, 2, v6            ; 4*(G&1)
    v_add3_u32 v5, v5, v6, v3
    v_mul_u32_u24 v5, 160, v5
    v_lshlrev_b32 v4, 3, v4
    v_add_u32 v{vWA}, v5, v4
    v_add_u32 v{vWA+1}, 0x10000, v{vWA}
    v_add_u32 v{vWA+2}, 0x20000, v{vWA}
    s_and_b32 s{sT}, s{sHP}, 1
    s_lshl_b32 s{sT}, s{sT}, 2
    s_add_u32 s{sT}, s{sT}, s{sW4}     ; tt
    s_lshl_b32 s{sT+1}, s{sRC}, 3
    s_add_u32 s{sT+6}, s{sT}, s{sT+1}
    s_mul_i32 s{sT+4}, s{sT+6}, 20480
    s_add_u32 s{sT+4}, s{sT+4}, {WS_O}
    v_and_b32 v2, 15, v0
    v_lshrrev_b32 v3, 2, v2
    v_mul_u32_u24 v3, 5120, v3
    v_and_b32 v4, 3, v2
    v_lshlrev_b32 v4, 8, v4
    v_add3_u32 v2, v3, v4, 0
    v_add_u32 v2, 4096, v2
    v_lshlrev_b32 v7, 4, v0            ; lane*16
    """)
    OF = 96; OD = 40; AB = [176, 196, 216, 236, 60, 16]
    NB = len(AB)
    def wo_reads(sg):
        L = L_WO(sg); reg = vWA + L // 65536; b = AB[sg % NB]
        assert (L // 65536) == ((L + 1408) // 65536)
        off = L % 65536
        for nt in range(5):
            for rd in range(2):
                e(f"ds_read_b64_tr_b16 v[{b+4*nt+2*rd}:{b+4*nt+2*rd+1}], v{reg} offset:{off + rd*1280 + nt*32}")
    e("s_waitcnt vmcnt(0)")
    subbar(6, tmp=8)
    for sg in range(NB): wo_reads(sg)
    e(f"""
    s_mov_b32 s{sSPIN}, {SPIN_G}
L_s2_hint:
    s_sub_u32 s{sSPIN}, s{sSPIN}, 1
    s_cbranch_scc1 L_end
    buffer_load_dword v3, v2, s[{S_WS}:{S_WS+3}], s{sT+4} offen sc1
    s_waitcnt vmcnt(0)
    v_cmp_eq_u32 vcc, -1, v3
    s_cbranch_vccnz L_s2_hint
    """)
    stamp(8)
    e(f"s_mov_b32 s{sT}, s{sT+4}")
    for sg in range(20):
        d = OF + 4*sg
        e(f"buffer_load_dwordx4 v[{d}:{d+3}], v7, s[{S_WS}:{S_WS+3}], s{sT} offen offset:{(sg%4)*1024} sc1")
        if sg % 4 == 3: e(f"s_add_u32 s{sT}, s{sT}, 4096")
    retries = []
    for sg in range(20):
        e(f"s_waitcnt vmcnt({19-sg}) lgkmcnt({10 if (sg >= 1 and sg + NB - 1 < 20) else 0})")
        o = OF + 4*sg
        a.label(f"L_chk_{sg}")
        e(f"v_max_u32 v2, v{o}, v{o+2}")
        e(f"v_cmp_eq_u32 vcc, -1, v2")
        e(f"s_cbranch_vccnz L_rt_{sg}")
        retries.append(sg)
        for nt in range(5):
            D = OD + 4*nt
            c = "0" if sg == 0 else f"v[{D}:{D+3}]"
            b = AB[sg % NB] + 4*nt
            e(f"v_mfma_f32_16x16x32_bf16 v[{D}:{D+3}], v[{b}:{b+3}], v[{o}:{o+3}], {c}")
        if sg + NB < 20: wo_reads(sg + NB)
    srd(S_B, 12, 2048*1280)
    e(f"""
    v_and_b32 v2, 15, v0
    v_lshrrev_b32 v3, 4, v0
    s_lshl_b32 s{sT}, s{sT+6}, 4
    v_add_u32 v2, s{sT}, v2
    v_mul_u32_u24 v2, 1280, v2
    v_lshlrev_b32 v4, 3, v3
    v_add_u32 v2, v2, v4
    s_lshr_b32 s{sT}, s{sHP}, 1
    s_mul_i32 s{sT}, s{sT}, 160
    """)
    for nt in range(5):
        D = OD + 4*nt; P = 64 + 2*nt
        e(f"v_cvt_pk_bf16_f32 v{P}, v{D}, v{D+1}")
        e(f"v_cvt_pk_bf16_f32 v{P+1}, v{D+2}, v{D+3}")
    for nt in range(5):
        P = 64 + 2*nt
        e(f"buffer_store_dwordx2 v[{P}:{P+1}], v2, s[{S_B}:{S_B+3}], s{sT} offen offset:{32*nt} {OUTFL}")
    e("s_branch L_fin")
    for sg in retries:
        o = OF + 4*sg
        a.label(f"L_rt_{sg}")
        e(f"""
        s_sub_u32 s{sSPIN}, s{sSPIN}, 1
        s_cbranch_scc1 L_end
        s_add_u32 s{sT}, s{sT+4}, {sg*1024}
        buffer_load_dwordx4 v[{o}:{o+3}], v7, s[{S_WS}:{S_WS+3}], s{sT} offen sc1
        s_waitcnt vmcnt(0)
        s_branch L_chk_{sg}
        """)

    a.label("L_lq")
    vVX, vVW, vWQ = 10, 11, 12
    vBA = 14
    XF = 64
    e(f"""
    v_lshrrev_b32 v2, 3, v0
    s_lshl_b32 s{sT}, s{sW4}, 3
    v_add_u32 v2, s{sT}, v2
    v_mul_u32_u24 v2, 1280, v2
    v_lshrrev_b32 v3, 4, v0                 ; r = l>>4
    s_and_b32 s{sT}, s{sW4}, 1
    s_lshl_b32 s{sT}, s{sT}, 2
    v_add_u32 v4, s{sT}, v3
    v_and_b32 v5, 7, v0
    v_xor_b32 v5, v5, v4
    v_lshlrev_b32 v5, 4, v5
    v_add_u32 v{vVX}, v2, v5
    v_and_b32 v4, 15, v0
    v_lshlrev_b32 v5, 2, v3
    v_sub_u32 v4, v4, v5
    v_and_b32 v4, 15, v4                    ; pos
    v_lshrrev_b32 v5, 3, v4                 ; seg
    v_bfe_u32 v6, v4, 2, 1                  ; part
    v_and_b32 v7, 3, v4                     ; i4
    v_mul_lo_u32 v8, v6, s{sBB}
    v_add_u32 v8, v8, v7                    ; j
    v_mov_b32 v9, 5
    v_mov_b32 v13, s{sBB}
    v_cmp_eq_u32 vcc, 0, v6
    s_lshl_b32 s{sT}, s{sW4}, 2
    v_add_u32 v2, s{sT}, v3
    v_cndmask_b32 v9, v9, v13, vcc
    v_cmp_lt_u32 vcc, v8, v9
    v_mul_u32_u24 v2, 3840, v2
    v_add_u32 v5, 1, v5
    v_mul_u32_u24 v5, 1280, v5
    v_lshlrev_b32 v8, 4, v8
    v_add3_u32 v{vVW}, v2, v5, v8
    v_mov_b32 v7, 0x40000000
    v_cndmask_b32 v{vVW}, v7, v{vVW}, vcc
    s_mul_i32 s{sSOFX}, s{sRC}, {128*1280}
    s_mul_i32 s{sSOFW}, s{sHP}, 80
    s_lshl_b32 s{sM0}, s{sW4}, 10
    """)
    stamp(4)
    e("s_waitcnt lgkmcnt(0)")
    stamp(8)
    srd(S_X, 4, 2048*1280)
    srd(S_W, 6, 640*3840)
    rotmode = [x for x in exp.split(',') if x.startswith('rot')]
    if rotmode:
        rm = rotmode[0]
        if rm == 'rot1': e(f"s_and_b32 s65, s{sHP}, 1")
        elif rm == 'rot5': e(f"s_and_b32 s65, s{sHP}, 1"); e("s_mul_i32 s65, s65, 5")
        elif rm == 'rotrc': e(f"s_and_b32 s65, s{sRC}, 1")
        elif rm == 'rothp': e(f"s_and_b32 s65, s{sHP}, 7")
        elif rm == 'rotmix': e(f"s_xor_b32 s65, s{sHP}, s{sRC}"); e("s_and_b32 s65, s65, 1")
    def issue_stage(s):
        m0b = (s % R) * SLOT
        if rotmode:
            e(f"s_add_u32 s66, s65, {s}")
            e(f"s_sub_u32 s67, s66, 10")
            e(f"s_cmp_ge_u32 s66, 10")
            e(f"s_cselect_b32 s66, s67, s66")
            e(f"s_mul_i32 s67, s66, {64*3840}")
            e(f"s_lshl_b32 s66, s66, 7")
            e(f"s_add_u32 s66, s66, s{sSOFX}")
            e(f"s_add_u32 s67, s67, s{sSOFW}")
            for m in range(4):
                e(f"s_add_u32 m0, s{sM0}, {m0b + m*4096}")
                e(f"s_add_u32 s{sT}, s66, {m*32*1280}")
                e(f"buffer_load_dwordx4 v{vVX}, s[{S_X}:{S_X+3}], s{sT} offen lds")
                e(f"s_add_u32 m0, s{sM0}, {m0b + 16384 + m*4096}")
                e(f"s_add_u32 s{sT}, s67, {m*16*3840}")
                e(f"buffer_load_dwordx4 v{vVW}, s[{S_W}:{S_W+3}], s{sT} offen lds")
            return
        for m in range(4):
            e(f"s_add_u32 m0, s{sM0}, {m0b + m*4096}")
            e(f"s_add_u32 s{sT}, s{sSOFX}, {m*32*1280 + s*128}")
            e(f"buffer_load_dwordx4 v{vVX}, s[{S_X}:{S_X+3}], s{sT} offen lds")
            e(f"s_add_u32 m0, s{sM0}, {m0b + 16384 + m*4096}")
            e(f"s_add_u32 s{sT}, s{sSOFW}, {m*16*3840 + s*64*3840}")
            e(f"buffer_load_dwordx4 v{vVW}, s[{S_W}:{S_W+3}], s{sT} offen lds")
    issue_stage(0)
    srd(S_A, 8, 32*800)
    e(f"""
    v_lshlrev_b32 v2, 4, v0
    s_and_b32 s{sT}, s{sW4}, 1
    s_lshl_b32 s{sT}, s{sT}, 10
    s_add_u32 m0, s{sT}, {L_PHI}
    s_mul_i32 s{sT+1}, s{sHP}, 1600
    s_add_u32 s{sT}, s{sT}, s{sT+1}
    buffer_load_dwordx4 v2, s[{S_A}:{S_A+3}], s{sT} offen lds
    """)
    issue_stage(1)
    srd(S_WS, 16, 0x10000000)
    sPART = 64
    e(f"""
    s_lshl_b32 s{sPART}, s{sHP}, 4
    s_add_u32 s{sPART}, s{sPART}, s{sRC}
    s_lshl_b32 s{sPART}, s{sPART}, 12
    s_add_u32 s{sPART}, s{sPART}, {WS_PART}
    v_mov_b32 v40, -1
    v_mov_b32 v41, -1
    v_mov_b32 v42, -1
    v_mov_b32 v43, -1
    s_lshl_b32 s{sT}, s{sW4}, 6
    v_add_u32 v2, s{sT}, v0            ; tau
    v_lshlrev_b32 v8, 4, v2
    v_mov_b32 v3, 0x40000000
    v_cmp_gt_u32 vcc, 240, v2
    v_lshrrev_b32 v9, 4, v0            ; g = l>>4
    v_and_b32 v44, 15, v0
    v_cndmask_b32 v8, v3, v8, vcc
    v_lshlrev_b32 v44, 4, v44          ; t'*16
    s_lshl_b32 s{sT}, s{sRC}, 3
    s_lshl_b32 s{sT+1}, s{sW4}, 1
    s_add_u32 s{sT}, s{sT}, s{sT+1}
    s_mul_i32 s{sT}, s{sT}, 20480
    s_lshr_b32 s{sT+1}, s{sHP}, 2
    s_mul_i32 s{sT+1}, s{sT+1}, 5120
    s_add_u32 s{sT}, s{sT}, s{sT+1}
    s_and_b32 s{sT+1}, s{sHP}, 3
    s_lshl_b32 s{sT+1}, s{sT+1}, 8
    s_add_u32 s{sT}, s{sT}, s{sT+1}
    s_add_u32 s{sT+3}, s{sT}, {WS_O}
    v_lshlrev_b32 v45, 10, v9
    v_add_u32 v45, v45, v44            ; i=0
    v_mov_b32 v46, 4096
    v_add_u32 v47, -1, v9
    v_lshlrev_b32 v47, 10, v47
    v_add_u32 v47, 20480, v47
    v_cmp_eq_u32 vcc, 0, v9
    s_nop 1
    v_cndmask_b32 v46, v47, v46, vcc
    v_add_u32 v46, v46, v44            ; i=1
    v_add_u32 v47, 3, v9
    v_lshlrev_b32 v47, 10, v47
    v_add_u32 v47, 20480, v47
    v_add_u32 v47, v47, v44
    v_cmp_gt_u32 vcc, 2, v9
    s_nop 1
    v_cndmask_b32 v47, v3, v47, vcc    ; i=2
    buffer_store_dwordx4 v[40:43], v8, s[{S_WS}:{S_WS+3}], s{sPART} offen sc1
    buffer_store_dwordx4 v[40:43], v45, s[{S_WS}:{S_WS+3}], s{sT+3} offen sc1
    buffer_store_dwordx4 v[40:43], v46, s[{S_WS}:{S_WS+3}], s{sT+3} offen sc1
    buffer_store_dwordx4 v[40:43], v47, s[{S_WS}:{S_WS+3}], s{sT+3} offen sc1
    """)
    xfrag_addr(vBA, 2)
    VQ = [12, 13, 22, 23, 62]
    for j in range(5):
        e(f"""
        v_add_u32 v2, {64*j}, v0               ; n = 64j + l  (0..319)
        v_mul_u32_u24 v3, 205, v2
        v_lshrrev_b32 v3, 10, v3               ; n/5
        v_mul_u32_u24 v4, 5, v3
        v_sub_u32 v4, v2, v4                   ; n%5
        v_lshlrev_b32 v4, 4, v4
        v_mul_u32_u24 v3, 3840, v3
        v_add_u32 v{VQ[j]}, v3, v4
        """)
    def issue_wq_all():
        for gi in range(3):
            lab = a.newlabel("WQ")
            if gi == 2:
                e(f"s_cmp_ge_u32 s{sW4}, 2")
                e(f"s_cbranch_scc1 {lab}")
            e(f"s_mul_i32 s{sT+1}, s{sW4}, 5120")
            e(f"s_mul_i32 s{sT+2}, s{sW4}, {64*3840}")
            e(f"s_add_u32 s{sT+2}, s{sT+2}, s{sSOFW}")
            e(f"s_add_u32 s{sT+2}, s{sT+2}, {gi*4*64*3840}")
            for j in range(5):
                e(f"s_add_u32 m0, s{sT+1}, {L_WQ + gi*4*5120 + j*1024}")
                e("s_nop 0")
                e(f"buffer_load_dwordx4 v{VQ[j]}, s[{S_W}:{S_W+3}], s{sT+2} offen lds")
            a.label(lab)
    base = Base([vBA, vBA+1, vBA+2, vBA+3])
    stamp(1)
    for s in range(NST):
        if s <= 1: e("s_waitcnt vmcnt(12) lgkmcnt(0)")
        elif s <= 8: e("s_waitcnt vmcnt(8) lgkmcnt(0)")
        else: e("s_waitcnt vmcnt(0) lgkmcnt(0)")
        e("s_barrier")
        sstamp(s+1)
        if s == 0: stamp(2)
        sb = base.set(s)
        for kk in range(4):
            d = XF + 16*s + 4*kk
            e(f"ds_read_b128 v[{d}:{d+3}], v{vBA+kk} offset:{sb}")
        if s + 2 < NST: issue_stage(s+2)
        if s == NST - 1:
            issue_wq_all()
    vOA = 56
    def HOIST_LQ():
        lane_decomp32(2, 3, 4, 5, 6)
        e(f"""
        v_mul_u32_u24 v7, 800, v6
        v_mul_u32_u24 v8, 40, v3
        v_add_u32 v7, v7, v8
        v_lshlrev_b32 v8, 3, v5
        v_add_u32 v7, v7, v8
        v_add_u32 v7, {L_PHI}, v7
        v_lshrrev_b32 v8, 1, v2
        v_mov_b32 v21, {L_ZERO}
        v_cmp_eq_u32 vcc, v8, v6
        s_nop 1
        v_cndmask_b32 v20, v21, v7, vcc
        v_cmp_eq_u32 s[46:47], 0, v5
        s_nop 1
        s_and_b64 vcc, vcc, s[46:47]
        v_add_u32 v7, 32, v7
        s_nop 0
        v_cndmask_b32 v21, v21, v7, vcc
        """)

        lane_decomp32(2, 3, 4, 5, 6)
        e(f"""
        v_mul_u32_u24 v7, 1920, v6
        v_mul_u32_u24 v8, 48, v3
        v_lshlrev_b32 v9, 3, v5
        v_add3_u32 v7, v7, v8, v9
        v_add_u32 v7, {L_KVF}, v7
        v_lshrrev_b32 v8, 1, v2
        v_mov_b32 v9, {L_ZERO}
        v_cmp_eq_u32 vcc, v8, v6
        s_nop 1
        v_cndmask_b32 v{vOA}, v9, v7, vcc
        v_cmp_gt_u32 s[46:47], 2, v5
        s_nop 1
        s_and_b64 vcc, vcc, s[46:47]
        v_add_u32 v7, 32, v7
        s_nop 0
        v_cndmask_b32 v{vOA+1}, v9, v7, vcc
        v_and_b32 v2, 15, v0
        v_lshlrev_b32 v2, 4, v2
        v_bfe_u32 v3, v0, 4, 1
        v_mul_u32_u24 v3, 20480, v3
        v_add_u32 v2, v2, v3
        v_lshrrev_b32 v4, 5, v0            ; h
        v_lshlrev_b32 v5, 11, v4           ; c5 = 2h -> 2h*1024
        v_add_u32 v58, v5, v2
        v_lshlrev_b32 v6, 3, v4
        v_add_u32 v59, v6, v2
        s_lshl_b32 s44, s{sRC}, 3
        s_lshl_b32 s{sT+1}, s{sW4}, 1
        s_add_u32 s44, s44, s{sT+1}
        s_mul_i32 s44, s44, 20480
        s_lshr_b32 s{sT+1}, s{sHP}, 2
        s_mul_i32 s{sT+1}, s{sT+1}, 5120
        s_add_u32 s44, s44, s{sT+1}
        s_and_b32 s{sT+1}, s{sHP}, 3
        s_lshl_b32 s{sT+1}, s{sT+1}, 8
        s_add_u32 s44, s44, s{sT+1}
        s_add_u32 s44, s44, {WS_O}
        s_add_u32 s45, s44, 4096
        """)

    QA = 224; vQA = 18; vWO = 56
    lane_decomp32(2, 3, 4, 5, 6)
    e(f"""
    v_lshrrev_b32 v7, 1, v2
    v_lshlrev_b32 v7, 3, v7
    v_add_u32 v7, v7, v3
    v_mul_u32_u24 v7, 80, v7
    v_mul_u32_u24 v6, 40, v6
    v_add_u32 v7, v7, v6
    v_add_u32 v7, {L_WQ}, v7
    v_lshlrev_b32 v5, 3, v5
    v_add_u32 v{vQA}, v7, v5
    v_add_u32 v{vQA+1}, 32, v7
    """)
    e("s_waitcnt lgkmcnt(0)")
    subsignal(1, tmp=60)
    HOIST_LQ()
    e("s_waitcnt vmcnt(0)")
    subbar(7, tmp=60)
    if 'prio' in exp: e("s_setprio 1")
    stamp(3)
    if 'p1only' in exp:
        e("s_waitcnt vmcnt(0)")
        e("s_branch L_fin")
    QF3 = [24, 32, 40, 48]
    def q_reads3(k):
        b = QF3[k % 4]
        for T in range(2):
            for rd in range(2):
                e(f"ds_read_b64_tr_b16 v[{b+4*T+2*rd}:{b+4*T+2*rd+1}], v{vQA+T} offset:{(16*k+4*rd)*80}")
    wolist = [(sg, rd) for sg in WO_P1 for rd in range(2)]
    nwo = 0
    q_reads3(0); q_reads3(1); q_reads3(2)
    for k in range(40):
        if k + 3 < 40:
            q_reads3(k+3)
            e("s_waitcnt lgkmcnt(12)")
        else: e(f"s_waitcnt lgkmcnt({4*(39-k)})")
        for T in range(2):
            c = "0" if k == 0 else f"v[{QA+16*T}:{QA+16*T+15}]"
            b = QF3[k % 4]
            e(f"v_mfma_f32_32x32x16_bf16 v[{QA+16*T}:{QA+16*T+15}], v[{b+4*T}:{b+4*T+3}], v[{XF+4*k}:{XF+4*k+3}], {c}")
    if 'prio' in exp: e("s_setprio 0")
    stamp(5)
    WF = 64; QB = 88; PQ0 = 100; PQ1 = 116; EP = 132; EN = 152; PH = 172; TM = 192
    for u in range(2):
        for step in range(3):
            for rd in range(2):
                d = WF + u*12 + step*4 + 2*rd
                if step == 2 and rd == 1:
                    e(f"v_mov_b32 v{d}, 0"); e(f"v_mov_b32 v{d+1}, 0")
                else:
                    e(f"ds_read_b64_tr_b16 v[{d}:{d+1}], v{20+u} offset:{(8*step+4*rd)*40}")
    e("s_nop 7")
    if dump == "qacc":
        e("s_nop 7"); dump_regs([QA+i for i in range(20)], 0)
    for j in range(5):
        src = QA + 4*j if j < 4 else QA + 16
        e(f"v_cvt_pk_bf16_f32 v{QB+2*j}, v{src}, v{src+1}")
        e(f"v_cvt_pk_bf16_f32 v{QB+2*j+1}, v{src+2}, v{src+3}")
    e(f"v_mov_b32 v{QB+10}, 0"); e(f"v_mov_b32 v{QB+11}, 0")
    e("s_waitcnt lgkmcnt(0)")
    feature_map(QB, WF, PQ0, PQ1)
    e("s_nop 7")
    e("s_nop 3")
    softmax_pair(PQ0, PQ1, EP, EN, PH, TM)
    if dump == "phiq": dump_regs([PH+i for i in range(20)], 0)
    stamp(6)
    subwait(2)
    stamp(7)
    KA = 64; N0 = 104; N1 = 120
    for st in range(5):
        for U in range(2):
            for rd in range(2):
                d = KA + (U*5+st)*4 + 2*rd
                e(f"ds_read_b64_tr_b16 v[{d}:{d+1}], v{vOA+U} offset:{(8*st+4*rd)*48}")
    for st in range(5):
        e(f"s_waitcnt lgkmcnt({min(15, 4*(4-st))})")
        for U, N in ((0, N0), (1, N1)):
            c = "0" if st == 0 else f"v[{N}:{N+15}]"
            d = KA + (U*5+st)*4
            e(f"v_mfma_f32_32x32x16_bf16 v[{N}:{N+15}], v[{d}:{d+3}], v[{PH+4*st}:{PH+4*st+3}], {c}")
    e("s_nop 7")
    e("s_nop 3")
    e(f"v_add_f32 v8, 0x358637bd, v{N1+4}")
    e("v_rcp_f32 v8, v8")
    e("s_nop 0")
    OB = 136
    for i in range(8):
        e(f"v_mul_f32 v{N0+2*i}, v{N0+2*i}, v8"); e(f"v_mul_f32 v{N0+2*i+1}, v{N0+2*i+1}, v8")
        e(f"v_cvt_pk_bf16_f32 v{OB+i}, v{N0+2*i}, v{N0+2*i+1}")
    for i in range(2):
        e(f"v_mul_f32 v{N1+2*i}, v{N1+2*i}, v8"); e(f"v_mul_f32 v{N1+2*i+1}, v{N1+2*i+1}, v8")
        e(f"v_cvt_pk_bf16_f32 v{OB+8+i}, v{N1+2*i}, v{N1+2*i+1}")
    for i in (0, 2, 4, 6, 8):
        e(f"v_min_u32 v{OB+i}, -2, v{OB+i}")
    e(f"""
    buffer_store_dwordx4 v[{OB}:{OB+3}], v58, s[{S_WS}:{S_WS+3}], s44 offen sc1
    buffer_store_dwordx4 v[{OB+4}:{OB+7}], v58, s[{S_WS}:{S_WS+3}], s44 offen offset:1024 sc1
    buffer_store_dwordx2 v[{OB+8}:{OB+9}], v59, s[{S_WS}:{S_WS+3}], s45 offen sc1
    """)
    subsignal(5)
    a.label("L_fin")
    if until:
        e(f"""
        s_waitcnt vmcnt(0) lgkmcnt(0)
L_until:
        s_memrealtime s[94:95]
        s_waitcnt lgkmcnt(0)
        s_sub_u32 s96, s94, s98
        s_cmp_lt_u32 s96, {until}
        s_cbranch_scc1 L_until
        """)
    if stamps:
        stamp(10)
        e("s_waitcnt vmcnt(0)")
        e(f"""
        s_waitcnt lgkmcnt(0)
        s_lshl_b32 s{sT}, s2, 3
        s_add_u32 s{sT}, s{sT}, s{sWAVE}
        s_lshl_b32 s{sT}, s{sT}, 6
        s_add_u32 s{sT}, s{sT}, {WS_STAMP}
        v_mov_b32 v2, 0
        """)
        for i in range(NS): e(f"v_mov_b32 v{20+i}, s{sST+2*i}")
        e(f"""
        s_mov_b64 exec, 1
        buffer_store_dwordx4 v[20:23], v2, s[{S_WS}:{S_WS+3}], s{sT} offen
        buffer_store_dwordx4 v[24:27], v2, s[{S_WS}:{S_WS+3}], s{sT} offen offset:16
        buffer_store_dwordx4 v[28:31], v2, s[{S_WS}:{S_WS+3}], s{sT} offen offset:32
        """)
    if dbgwg >= 0:
        e(f"""
        s_cmp_lg_u32 s2, {dbgwg}
        s_cbranch_scc1 L_end
        s_cmp_lg_u32 s{sWAVE}, {dbgwave}
        s_cbranch_scc1 L_end
        s_mov_b64 exec, -1
        s_mov_b32 s72, s14
        s_and_b32 s73, s15, 0xffff
        s_mov_b32 s74, 256
        s_mov_b32 s75, 0x20000
        """)
        for i in range(1, NS):
            e(f"s_sub_u32 s{sT}, s{sST+2*i}, s{sST}")
            e(f"v_mov_b32 v{20+i}, s{sT}")
        e("v_mov_b32 v2, 0")
        e("s_mov_b64 exec, 1")
        for i in range(1, NS):
            e(f"buffer_store_dword v{20+i}, v2, s[72:75], 0 offen offset:{4*i}")
    if dbgwg == -2:
        e(f"""
        s_cmp_lg_u32 s{sWAVE}, {dbgwave}
        s_cbranch_scc1 L_end
        s_mov_b64 exec, -1
        s_mov_b32 s72, s14
        s_and_b32 s73, s15, 0xffff
        s_mov_b32 s74, 256
        s_mov_b32 s75, 0x20000
        """)
        for i in range(1, NS):
            e(f"s_sub_u32 s{sT}, s{sST+2*i}, s{sST}")
            e(f"v_mov_b32 v{20+i}, s{sT}")
        e("v_mov_b32 v2, 0")
        e("s_mov_b64 exec, 1")
        for i in range(1, NS):
            if i == 9: continue
            e(f"buffer_atomic_umax v{20+i}, v2, s[72:75], 0 offen offset:{4*i}")
    a.label("L_end")
    e("s_endpgm")
    a.label("L_code_end")
    hdr = HEADER + f"; @launch grid=(256,1,1) block=(512,1,1) lds={LDS_BYTES}\n"
    return hdr + f""".amdgcn_target "amdgcn-amd-amdhsa--gfx950"
.text
.globl {KN}
.p2align 8
.type {KN},@function
{KN}:
""" + a.text() + """.section .rodata,"a"
""" + kernel_desc(KN, 256, 102, 256)

if __name__ == "__main__":
    import argparse
    ap = argparse.ArgumentParser()
    ap.add_argument("--stamps", action="store_true")
    ap.add_argument("--dump", default=None)
    ap.add_argument("--stagest", action="store_true")
    ap.add_argument("--exp", default="")
    ap.add_argument("--until", type=int, default=0)
    ap.add_argument("--dbgwg", type=int, default=-1)
    ap.add_argument("--dbgwave", type=int, default=0)
    ap.add_argument("--pf", default="none")
    ap.add_argument("--nogpf", action="store_true")
    ap.add_argument("--nocode", action="store_true")
    ap.add_argument("--outfl", default="")
    ap.add_argument("--vred", action="store_true")
    args = ap.parse_args()
    OUTFL = args.outfl.replace("+", " ")
    if args.pf == "none": PF = False
    else: PF = True; PFS = PFS_TAB[args.pf]
    if args.nogpf: GPF = False
    if args.nocode: GPF_CODE = False
    print(gen(stamps=args.stamps, dump=args.dump, stagest=args.stagest, exp=args.exp, until=args.until, dbgwg=args.dbgwg, dbgwave=args.dbgwave))
```

```python
import sys
from asmlib import *
from lay2 import TKV, TQ

KN = "standalone__linear_kernel_hedgehog__prompt_kernel"
NST = 10
SLOT = 32768
R = 3
L_WQ = 98304
L_PHI = 149504
L_ZERO = 151552
L_CNT = 153600
L_KVF = 154624
L_PK = 32768
L_WO19 = 158464
LDS_BYTES = 163840
def L_WO(sg): return sg*5120 if sg <= 18 else L_WO19
WO_P1 = [0,1,2,3,4,5,13,14,15,16,17,18,19]
WO_P2 = [6,7,8,9,10,11,12]
WS_PART = 0x000000
WS_O = 0x100000
WS_RDY = 0x400000
WS_STAMP = 0x700000
WS_DBG = 0x800000
PF = False
VRED = True
OUTFL = ''
GPF = True
GPF_CODE = True
PFS_TAB = {
 'b':  {'pre': [('x',2),('kv',2)], 0: [('kv',5),('x',6)], 1: [('kv',8),('q',0),('q',1)], 3: [('wo',0),('wo',1)]},
 'e1': {'e': [('x',0),('kv',2),('code',0)], 'pre': [('x',4)], 0: [('kv',5),('x',8)], 1: [('kv',8)], 3: [('q',0)], 4: [('q',1)], 6: [('wo',0)], 7: [('wo',1)]},
 'e2': {'e': [('x',2),('kv',2),('code',0)], 0: [('kv',5),('x',6)], 1: [('kv',8)], 3: [('q',0)], 4: [('q',1)], 6: [('wo',0)], 7: [('wo',1)]},
 'e3': {'e': [('x',0),('kv',0),('code',0)], 'pre': [('x',4),('kv',3)], 0: [('kv',6),('x',8)], 1: [('kv',9)], 3: [('q',0)], 4: [('q',1)], 6: [('wo',0)], 7: [('wo',1)]},
 'e4': {'e': [('x',2),('kv',2),('code',0)], 'pre': [('x',6),('kv',5)], 0: [('kv',8)], 2: [('q',0)], 3: [('q',1)], 5: [('wo',0)], 6: [('wo',1)]},
 'e5': {'e': [('code',0)], 'pre': [('x',2),('kv',2)], 0: [('kv',5),('x',6)], 2: [('kv',8)], 4: [('q',0)], 5: [('q',1)], 7: [('wo',0)], 8: [('wo',1)]},
 'wo': {'e': [('code',0)], 4: [('q',0)], 5: [('q',1)], 7: [('wo',0)], 8: [('wo',1)]},
}
PFS = PFS_TAB['b']
LOG2E = 0x3fb8aa3b
NLOG2E = 0xbfb8aa3b
SPIN_G = 0x8000
SPIN_L = 0x80000

def gen(stamps=False, dump=None, stagest=False, exp='', until=0, dbgwg=-1, dbgwave=0):
    a = Asm(); e = a.e
    S_X, S_W, S_WS = 20, 24, 28
    S_A, S_B = 72, 76
    sWAVE, sW4, sRC, sHP, sBB = 32, 33, 34, 35, 36
    sT = 40
    sSOFX, sSOFW, sM0 = 52, 53, 54
    sNONCE = 55
    sL = 56
    sEX = 58
    sSPIN = 60
    sU, sV = 62, 63
    sST = 80
    NS = 11
    def sstamp(i):
        if stagest: e(f"s_memtime s[{sST+2*i}:{sST+2*i+1}]")
    def stamp(i):
        if stamps and not (stagest and i > 0): e(f"s_memtime s[{sST+2*i}:{sST+2*i+1}]")
    def rstamp(i):
        if stamps and not stagest: e(f"s_memrealtime s[{sST+2*i}:{sST+2*i+1}]")
    def srd(dst, ptr, nbytes):
        e(f"""
        s_mov_b32 s{dst}, s{ptr}
        s_and_b32 s{dst+1}, s{ptr+1}, 0xffff
        s_mov_b32 s{dst+2}, {nbytes}
        s_mov_b32 s{dst+3}, 0x20000
        """)
    def subsignal(idx, tmp=2):
        e(f"""
        v_mov_b32 v{tmp}, {L_CNT + 4*idx}
        v_mov_b32 v{tmp+1}, 1
        s_mov_b64 exec, 1
        ds_add_u32 v{tmp}, v{tmp+1}
        s_mov_b64 exec, -1
        """)
    def subwait(idx, target=4, tmp=2):
        lab = a.newlabel("SW")
        e(f"v_mov_b32 v{tmp}, {L_CNT + 4*idx}")
        e(f"s_mov_b32 s{sSPIN}, {SPIN_L}")
        a.label(lab)
        e(f"""
        s_sub_u32 s{sSPIN}, s{sSPIN}, 1
        s_cbranch_scc1 L_end
        ds_read_b32 v{tmp+1}, v{tmp}
        s_waitcnt lgkmcnt(0)
        v_readfirstlane_b32 s{sT}, v{tmp+1}
        s_nop 0
        s_cmp_lt_u32 s{sT}, {target}
        s_cbranch_scc1 {lab}
        """)
    def subbar(idx, target=4, tmp=2):
        subsignal(idx, tmp); subwait(idx, target, tmp)
    def dump_regs(regs, off):
        n = len(regs)
        e(f"""
        s_lshl_b32 s{sT}, s2, 3
        s_add_u32 s{sT}, s{sT}, s{sWAVE}
        s_mul_i32 s{sT}, s{sT}, {n*256}
        s_add_u32 s{sT}, s{sT}, {WS_DBG + off}
        v_lshlrev_b32 v2, 2, v0
        """)
        for i, r in enumerate(regs):
            e(f"buffer_store_dword v{r}, v2, s[{S_WS}:{S_WS+3}], s{sT} offen offset:{(i%16)*256}")
            if i % 16 == 15: e(f"s_add_u32 s{sT}, s{sT}, 4096")
        e("s_waitcnt vmcnt(0)")
    def softmax_pair(P0, P1, EP, EN, PH, tm):
        p = [P0 + i for i in range(16)] + [P1 + i for i in range(4)]
        tM, tN, tA, tB = tm, tm+1, tm+2, tm+4
        e(f"v_max3_f32 v{tM}, v{p[0]}, v{p[1]}, v{p[2]}")
        e(f"v_min3_f32 v{tN}, v{p[0]}, v{p[1]}, v{p[2]}")
        for i in range(3, 19, 2):
            e(f"v_max3_f32 v{tM}, v{tM}, v{p[i]}, v{p[i+1]}")
            e(f"v_min3_f32 v{tN}, v{tN}, v{p[i]}, v{p[i+1]}")
        e(f"v_max_f32 v{tM}, v{tM}, v{p[19]}")
        e(f"v_min_f32 v{tN}, v{tN}, v{p[19]}")
        e(f"v_mul_f32 v{tA}, {NLOG2E:#x}, v{tM}")
        e(f"v_mul_f32 v{tB}, {LOG2E:#x}, v{tN}")
        for i in range(20):
            e(f"v_fma_f32 v{EP+i}, v{p[i]}, s{sL}, v{tA}")
            e(f"v_fma_f32 v{EN+i}, -v{p[i]}, s{sL}, v{tB}")
        for i in range(20):
            e(f"v_exp_f32 v{EP+i}, v{EP+i}")
            e(f"v_exp_f32 v{EN+i}, v{EN+i}")
        e(f"v_add_f32 v{tA}, v{EP}, v{EP+1}"); e(f"v_add_f32 v{tB}, v{EN}, v{EN+1}")
        e(f"v_add_f32 v{tA+1}, v{EP+2}, v{EP+3}"); e(f"v_add_f32 v{tB+1}, v{EN+2}, v{EN+3}")
        for i in range(4, 20, 2):
            e(f"v_add_f32 v{tA}, v{tA}, v{EP+i}"); e(f"v_add_f32 v{tB}, v{tB}, v{EN+i}")
            e(f"v_add_f32 v{tA+1}, v{tA+1}, v{EP+i+1}"); e(f"v_add_f32 v{tB+1}, v{tB+1}, v{EN+i+1}")
        e(f"v_add_f32 v{tA}, v{tA}, v{tA+1}")
        e(f"v_add_f32 v{tB}, v{tB}, v{tB+1}")
        e(f"v_rcp_f32 v{tA}, v{tA}")
        e(f"v_rcp_f32 v{tB}, v{tB}")
        e("s_nop 0")
        for i in range(10):
            e(f"v_mul_f32 v{EP+2*i}, v{EP+2*i}, v{tA}"); e(f"v_mul_f32 v{EP+2*i+1}, v{EP+2*i+1}, v{tA}")
            e(f"v_mul_f32 v{EN+2*i}, v{EN+2*i}, v{tB}"); e(f"v_mul_f32 v{EN+2*i+1}, v{EN+2*i+1}, v{tB}")
            e(f"v_cvt_pk_bf16_f32 v{PH+i}, v{EP+2*i}, v{EP+2*i+1}")
            e(f"v_cvt_pk_bf16_f32 v{PH+10+i}, v{EN+2*i}, v{EN+2*i+1}")
    def lane_decomp32(vG, vrp, vc, vQ, vhh):
        e(f"""
        v_lshrrev_b32 v{vG}, 4, v0
        v_bfe_u32 v{vrp}, v0, 2, 2
        v_and_b32 v{vc}, 3, v0
        v_and_b32 v{vQ}, 1, v{vG}
        v_lshlrev_b32 v{vQ}, 1, v{vQ}
        v_lshrrev_b32 v{vhh}, 1, v{vc}
        v_add_u32 v{vQ}, v{vQ}, v{vhh}
        v_and_b32 v{vhh}, 1, v{vc}
        """)
    def wphi_frags(WF, va, t):
        vG, vrp, vc, vQ, vhh = t, t+1, t+2, t+3, t+4
        lane_decomp32(vG, vrp, vc, vQ, vhh)
        e(f"""
        v_mul_u32_u24 v{t+5}, 800, v{vhh}
        v_mul_u32_u24 v{t+6}, 40, v{vrp}
        v_add_u32 v{t+5}, v{t+5}, v{t+6}
        v_lshlrev_b32 v{t+6}, 3, v{vQ}
        v_add_u32 v{t+5}, v{t+5}, v{t+6}
        v_add_u32 v{t+5}, {L_PHI}, v{t+5}
        v_lshrrev_b32 v{t+6}, 1, v{vG}
        v_mov_b32 v{va+1}, {L_ZERO}
        v_cmp_eq_u32 vcc, v{t+6}, v{vhh}
        s_nop 1
        v_cndmask_b32 v{va}, v{va+1}, v{t+5}, vcc
        v_cmp_eq_u32 s[{sEX}:{sEX+1}], 0, v{vQ}
        s_nop 1
        s_and_b64 vcc, vcc, s[{sEX}:{sEX+1}]
        v_add_u32 v{t+5}, 32, v{t+5}
        s_nop 0
        v_cndmask_b32 v{va+1}, v{va+1}, v{t+5}, vcc
        """)
        for u in range(2):
            for step in range(3):
                for rd in range(2):
                    d = WF + u*12 + step*4 + 2*rd
                    if step == 2 and rd == 1:
                        e(f"v_mov_b32 v{d}, 0"); e(f"v_mov_b32 v{d+1}, 0")
                    else:
                        e(f"ds_read_b64_tr_b16 v[{d}:{d+1}], v{va+u} offset:{(8*step+4*rd)*40}")
    def feature_map(SRC, WF, P0, P1):
        for step in range(3):
            for u, P in ((0, P0), (1, P1)):
                c = "0" if step == 0 else f"v[{P}:{P+15}]"
                e(f"v_mfma_f32_32x32x16_bf16 v[{P}:{P+15}], v[{WF+u*12+step*4}:{WF+u*12+step*4+3}], v[{SRC+4*step}:{SRC+4*step+3}], {c}")
    def xfrag_addr(vBA, t):
        e(f"""
        v_and_b32 v{t}, 31, v0
        v_lshrrev_b32 v{t+1}, 5, v0
        v_bfe_u32 v{t+2}, v{t}, 1, 3
        v_xor_b32 v{t+2}, v{t+2}, v{t+1}
        v_lshlrev_b32 v{t+2}, 4, v{t+2}
        s_lshl_b32 s{sT}, s{sW4}, 5
        v_add_u32 v{t}, s{sT}, v{t}
        v_lshlrev_b32 v{t}, 7, v{t}
        v_add_u32 v{vBA}, v{t}, v{t+2}
        v_xor_b32 v{vBA+1}, 32, v{vBA}
        v_xor_b32 v{vBA+2}, 64, v{vBA}
        v_xor_b32 v{vBA+3}, 96, v{vBA}
        """)
    class Base:
        def __init__(self, regs): self.regs = regs; self.cur = 0
        def set(self, s):
            so = (s % R) * SLOT
            want = (so // 65536) * 65536
            if want != self.cur:
                d = (want - self.cur) & 0xffffffff
                for r in self.regs: e(f"v_add_u32 v{r}, {d}, v{r}")
                self.cur = want
            return so - self.cur
    def wo_setup(vWO, t):
        e(f"""
        v_mul_u32_u24 v{t}, 26, v0
        v_lshrrev_b32 v{t}, 8, v{t}          ; l/10 for l<64
        v_mul_u32_u24 v{t+1}, 10, v{t}
        v_sub_u32 v{t+1}, v0, v{t+1}
        v_lshlrev_b32 v{t+1}, 4, v{t+1}
        v_mul_u32_u24 v{t}, 1280, v{t}
        v_add_u32 v{vWO}, v{t}, v{t+1}
        v_cmp_gt_u32 vcc, 40, v0
        s_lshr_b32 s{sU}, s{sHP}, 1
        s_mul_i32 s{sU}, s{sU}, 160
        s_mul_i32 s{sV}, s{sW4}, {40*1280}
        s_add_u32 s{sU}, s{sU}, s{sV}        ; + G*40 rows
        s_lshr_b32 s{sV}, s{sW4}, 1
        s_lshl_b32 s{sV}, s{sV}, 4
        s_and_b32 s{sT}, s{sW4}, 1
        s_lshl_b32 s{sT}, s{sT}, 2
        s_add_u32 s{sV}, s{sV}, s{sT}
        s_mul_i32 s{sV}, s{sV}, 160          ; pi0*160
        s_mov_b64 s[{sEX}:{sEX+1}], vcc
        """)
    def wo_dma(sg, rd, vWO):
        blk, c5 = divmod(sg, 5)
        if c5 < 4: row = 160*blk + [0, 8, 20, 28][c5] + 4*rd
        else: row = 160*blk + 16 + 20*rd
        e(f"s_add_u32 m0, s{sV}, {L_WO(sg) + rd*8*160}")
        e(f"s_add_u32 s{sT}, s{sU}, {row*1280}")
        e(f"buffer_load_dwordx4 v{vWO}, s[{S_B}:{S_B+3}], s{sT} offen lds")

    e(f"""
    s_load_dwordx8 s[4:11], s[0:1], 0
    s_load_dwordx4 s[12:15], s[0:1], 32
    s_load_dwordx2 s[16:17], s[0:1], 48
    s_cmp_ge_u32 s2, 256
    s_cbranch_scc1 L_end
    """)
    if 'half' in exp:
        e("s_bitcmp1_b32 s2, 6")
        e("s_cbranch_scc1 L_end")
    if 'quarter' in exp:
        e("s_and_b32 s40, s2, 0x60")
        e("s_cmp_lg_u32 s40, 0")
        e("s_cbranch_scc1 L_end")
    stamp(0); rstamp(9)
    if until: e("s_memrealtime s[98:99]")
    e(f"""
    v_lshrrev_b32 v1, 6, v0
    v_and_b32 v0, 63, v0
    s_and_b32 s{sT}, s2, 7
    s_lshr_b32 s{sT+1}, s2, 3
    v_readfirstlane_b32 s{sWAVE}, v1
    s_lshr_b32 s{sRC}, s{sT}, 1
    s_lshl_b32 s{sRC}, s{sRC}, 2
    s_lshr_b32 s{sT+2}, s{sT+1}, 3
    s_add_u32 s{sRC}, s{sRC}, s{sT+2}
    s_and_b32 s{sHP}, s{sT}, 1
    s_lshl_b32 s{sHP}, s{sHP}, 3
    s_and_b32 s{sT+2}, s{sT+1}, 7
    s_add_u32 s{sHP}, s{sHP}, s{sT+2}
    s_and_b32 s{sW4}, s{sWAVE}, 3
    s_mul_i32 s{sBB}, s{sHP}, 5
    s_and_b32 s{sBB}, s{sBB}, 7
    s_sub_u32 s{sBB}, 8, s{sBB}
    s_min_u32 s{sBB}, s{sBB}, 4
    s_mov_b32 s{sL}, {LOG2E:#x}
    s_cmp_ge_u32 s{sWAVE}, 4
    s_cbranch_scc1 L_lq
    """)
    if GPF:
        e(f"""
        s_lshl_b32 s{sT}, s{sW4}, 6
        v_add_u32 v2, s{sT}, v0                 ; n = 64*w + lane  (0..255)
        s_mul_i32 s{sT}, s2, 80
        s_mul_i32 s{sT+1}, s2, 75
        s_mul_i32 s{sT+2}, s2, 25
        s_sub_u32 s{sT+1}, s{sT+1}, 80
        s_sub_u32 s{sT+2}, s{sT+2}, 155
        s_waitcnt lgkmcnt(0)
        v_mov_b32 v3, s{sT+2}
        v_mov_b32 v4, s10
        v_mov_b32 v5, s11
        v_mov_b32 v6, s{sT+1}
        v_mov_b32 v7, s6
        v_mov_b32 v8, s7
        v_cmp_gt_u32 vcc, 155, v2
        s_nop 1
        v_cndmask_b32 v3, v3, v6, vcc
        v_cndmask_b32 v4, v4, v7, vcc
        v_cndmask_b32 v5, v5, v8, vcc
        v_mov_b32 v6, s{sT}
        v_mov_b32 v7, s4
        v_mov_b32 v8, s5
        v_cmp_gt_u32 vcc, 80, v2
        s_nop 1
        v_cndmask_b32 v3, v3, v6, vcc
        v_cndmask_b32 v4, v4, v7, vcc
        v_cndmask_b32 v5, v5, v8, vcc
        v_add_u32 v3, v3, v2
        v_lshlrev_b32 v3, 7, v3
        v_add_co_u32 v4, vcc, v4, v3
        s_nop 1
        v_addc_co_u32 v5, vcc, 0, v5, vcc
        """)
        if GPF_CODE:
            e(f"""
            s_getpc_b64 s[{sT+4}:{sT+5}]
L_pc_ref:
            s_min_u32 s{sT+3}, s2, (L_code_end-{KN})/128
            s_lshl_b32 s{sT+3}, s{sT+3}, 7
            s_sub_u32 s{sT+4}, s{sT+4}, L_pc_ref-{KN}
            s_subb_u32 s{sT+5}, s{sT+5}, 0
            s_add_u32 s{sT+4}, s{sT+4}, s{sT+3}
            s_addc_u32 s{sT+5}, s{sT+5}, 0
            s_min_u32 s{sT+3}, s2, 199
            s_lshl_b32 s{sT+3}, s{sT+3}, 7
            s_add_u32 s{sT+6}, s8, s{sT+3}
            s_addc_u32 s{sT+7}, s9, 0
            s_cmp_lg_u32 s{sW4}, 2
            s_cbranch_scc1 L_gpf_go
            v_writelane_b32 v4, s{sT+4}, 52
            v_writelane_b32 v5, s{sT+5}, 52
            v_writelane_b32 v4, s{sT+6}, 53
            v_writelane_b32 v5, s{sT+7}, 53
L_gpf_go:
            v_cmp_gt_u32 vcc, 182, v2
            """)
        else:
            e("v_cmp_gt_u32 vcc, 180, v2")
        e(f"""
        s_nop 1
        s_and_saveexec_b64 s[{sT}:{sT+1}], vcc
        s_cbranch_execz L_gpf_done
        global_load_dword v48, v[4:5], off
L_gpf_done:
        s_mov_b64 exec, -1
        """)

    ACC = 64; FB = [112, 128]; WF = 144; KB = 168; VB = 180; PK0 = 192; PK1 = 208; EP = 224; EN = 112; PH = 64; TM = 244
    vAA = 10; vBA = 14
    vPA, vPB = 34, 35
    sPART = 64
    e(f"""
    s_lshl_b32 s{sPART}, s{sHP}, 4
    s_add_u32 s{sPART}, s{sPART}, s{sRC}
    s_lshl_b32 s{sPART}, s{sPART}, 12
    s_add_u32 s{sPART}, s{sPART}, {WS_PART}
    s_waitcnt lgkmcnt(0)
    """)
    srd(S_WS, 16, 0x10000000)
    srd(S_A, 14, 256)
    if PF:
        srd(S_X, 6, 640*3840)
        e(f"""
        v_mov_b32 v37, 0x40000000
        s_lshr_b32 s{sT+1}, s2, 3               ; j
        s_and_b32 s{sT+2}, s2, 1
        s_mul_i32 s{sT+2}, s{sT+2}, 640         ; column half (bytes)
        v_mov_b32 v3, 0x40000000
        s_cmp_eq_u32 s{sW4}, 0
        s_cbranch_scc1 L_t_x
        s_cmp_eq_u32 s{sW4}, 1
        s_cbranch_scc1 L_t_kv
        v_mul_u32_u24 v2, 52, v0
        v_lshrrev_b32 v2, 8, v2                 ; l/5
        v_mul_u32_u24 v4, 5, v2
        v_sub_u32 v4, v0, v4
        v_lshlrev_b32 v4, 7, v4                 ; li*128
        s_mul_i32 s{sT+3}, s{sT+1}, 10
        v_add_u32 v2, s{sT+3}, v2               ; row
        s_mov_b32 s{sT+4}, 3840
        s_cmp_eq_u32 s{sW4}, 2
        s_cselect_b32 s{sT+4}, s{sT+4}, 1280
        v_mul_lo_u32 v2, v2, s{sT+4}
        v_add3_u32 v37, v2, v4, s{sT+2}
        v_cmp_gt_u32 vcc, 50, v0
        s_nop 1
        v_cndmask_b32 v37, v3, v37, vcc
        s_cmp_eq_u32 s{sW4}, 2
        s_cbranch_scc1 L_t_done
        """)
        srd(S_X, 10, 640*1280)
        e(f"""
        s_branch L_t_done
L_t_kv:
        v_mul_u32_u24 v2, 13, v0
        v_lshrrev_b32 v2, 8, v2                 ; q = l/20
        v_mul_u32_u24 v4, 20, v2
        v_sub_u32 v4, v0, v4                    ; l%20
        v_mul_u32_u24 v5, 26, v4
        v_lshrrev_b32 v5, 8, v5                 ; r = (l%20)/10
        v_mul_u32_u24 v6, 10, v5
        v_sub_u32 v4, v4, v6                    ; l%10
        v_mul_u32_u24 v6, 52, v4
        v_lshrrev_b32 v6, 8, v6                 ; ty
        v_mul_u32_u24 v7, 5, v6
        v_sub_u32 v4, v4, v7                    ; li
        v_lshlrev_b32 v4, 7, v4
        v_lshlrev_b32 v2, 6, v2                 ; 64q
        v_add_u32 v2, v2, v5
        s_lshl_b32 s{sT+3}, s{sT+1}, 1
        v_add_u32 v2, s{sT+3}, v2               ; row
        v_mul_u32_u24 v2, 3840, v2
        v_add_u32 v6, 1, v6
        v_mul_u32_u24 v6, 1280, v6
        v_add3_u32 v2, v2, v4, v6
        v_add_u32 v37, s{sT+2}, v2
        v_cmp_gt_u32 vcc, 60, v0
        s_nop 1
        v_cndmask_b32 v37, v3, v37, vcc
        s_branch L_t_done
L_t_x:
        v_and_b32 v2, 15, v0
        s_lshr_b32 s{sT+2}, s2, 1
        s_and_b32 s{sT+2}, s{sT+2}, 3
        s_lshl_b32 s{sT+2}, s{sT+2}, 9
        s_lshl_b32 s{sT+3}, s{sT+1}, 4
        s_add_u32 s{sT+2}, s{sT+2}, s{sT+3}
        v_add_u32 v2, s{sT+2}, v2
        v_mul_u32_u24 v2, 1280, v2
        v_lshrrev_b32 v4, 4, v0
        v_lshlrev_b32 v4, 7, v4
        v_add_u32 v37, v2, v4
        """)
        srd(S_X, 4, 2048*1280)
        a.label("L_t_done")
    def touch(wave, soff):
        if not PF: return
        lab = a.newlabel("TT")
        e(f"""
        s_cmp_lg_u32 s{sW4}, {wave}
        s_cbranch_scc1 {lab}
        s_mov_b32 s{sT}, {soff}
        buffer_load_dword v36, v37, s[{S_X}:{S_X+3}], s{sT} offen
{lab}:
        """)
    def code_touch():
        lab = a.newlabel("CT")
        e(f"""
        s_cmp_lg_u32 s{sW4}, 3
        s_cbranch_scc1 {lab}
        s_getpc_b64 s[{sT+4}:{sT+5}]
L_pc_ref:
        s_lshr_b32 s{sT+3}, s2, 3
        s_mul_i32 s{sT+3}, s{sT+3}, 7
        v_add_u32 v2, s{sT+3}, v0
        v_min_u32 v2, (L_code_end-{KN})/128, v2
        v_lshlrev_b32 v2, 7, v2
        s_sub_u32 s{sT+4}, s{sT+4}, L_pc_ref-{KN}
        s_subb_u32 s{sT+5}, s{sT+5}, 0
        v_mov_b32 v5, s{sT+5}
        v_add_co_u32 v4, vcc, s{sT+4}, v2
        s_nop 1
        v_addc_co_u32 v5, vcc, 0, v5, vcc
        v_cmp_gt_u32 vcc, 7, v0
        s_nop 1
        s_mov_b64 exec, vcc
        global_load_dword v47, v[4:5], off
        s_mov_b64 exec, -1
{lab}:
        """)
    def run_sched(when):
        if not PF: return
        for kind, arg in PFS.get(when, []):
            if kind == 'x': touch(0, arg*128)
            elif kind == 'kv': touch(1, arg*64*3840)
            elif kind == 'q': touch(2, arg*320*3840)
            elif kind == 'wo': touch(3, arg*320*1280)
            elif kind == 'code': code_touch()
    run_sched('e')
    e(f"""
    s_or_b32 s{sT}, s{sRC}, s{sHP}
    s_or_b32 s{sT}, s{sT}, s{sW4}
    s_cmp_lg_u32 s{sT}, 0
    s_cbranch_scc1 L_kv_nn
    s_memrealtime s[{sT+4}:{sT+5}]
    s_waitcnt lgkmcnt(0)
    s_or_b32 s{sT+4}, s{sT+4}, 1
    v_mov_b32 v2, 0
    v_mov_b32 v3, s{sT+4}
    s_mov_b64 exec, 1
    buffer_store_dword v3, v2, s[{S_A}:{S_A+3}], 0 offen sc1
    s_mov_b64 exec, -1
L_kv_nn:
    """)
    e(f"""
    v_lshlrev_b32 v2, 4, v0
    s_lshl_b32 s{sT}, s{sW4}, 10
    s_add_u32 s{sT}, s{sT}, {L_ZERO}
    v_add_u32 v2, s{sT}, v2
    v_mov_b32 v24, 0
    v_mov_b32 v25, 0
    v_mov_b32 v26, 0
    v_mov_b32 v27, 0
    s_cmp_eq_u32 s{sW4}, 3
    s_cbranch_scc1 L_kv_nz
    ds_write_b128 v2, v[24:27]
L_kv_nz:
    """)
    lane_decomp32(2, 3, 4, 5, 6)
    e(f"""
    v_lshlrev_b32 v5, 3, v5          ; 8Q
    v_mul_u32_u24 v6, 5, v6          ; 5hh
    v_lshrrev_b32 v7, 1, v2
    v_lshlrev_b32 v7, 3, v7
    v_add_u32 v7, v7, v3             ; krow
    v_lshlrev_b32 v7, 8, v7
    v_add_u32 v7, 16384, v7
    v_lshlrev_b32 v8, 2, v3          ; 4rp
    s_sub_u32 s{sT+1}, 4, s{sBB}
    """)
    for T in range(3):
        immc = 0; imms = 0
        for Q in range(4):
            q = TKV[T][Q] or TKV[T][0]
            immc |= q[1] << (8*Q); imms |= (8*q[0]) << (8*Q)
        e(f"""
        s_mov_b32 s{sT}, {immc}
        v_bfe_u32 v18, s{sT}, v5, 8
        v_add_u32 v18, v18, v6
        v_lshrrev_b32 v19, 1, v18
        v_mov_b32 v9, s{sT+1}
        v_cmp_le_u32 vcc, s{sBB}, v19
        v_mov_b32 v20, 0
        s_nop 0
        v_cndmask_b32 v9, v20, v9, vcc
        v_add_u32 v19, v19, v9
        s_mov_b32 s{sT}, {imms}
        v_bfe_u32 v9, s{sT}, v5, 8
        v_add3_u32 v19, v19, v9, v8
        v_and_b32 v19, 15, v19
        v_lshlrev_b32 v19, 4, v19
        v_and_b32 v18, 1, v18
        v_lshlrev_b32 v18, 3, v18
        v_add3_u32 v{vAA+T}, v7, v19, v18
        """)
    xfrag_addr(vBA, 2)
    def kv_reads(kk, buf, sb):
        b = FB[buf]
        e(f"ds_read_b128 v[{b+12}:{b+15}], v{vBA+kk} offset:{sb}")
        for T in range(3):
            for rd in range(2):
                e(f"ds_read_b64_tr_b16 v[{b+4*T+2*rd}:{b+4*T+2*rd+1}], v{vAA+T} offset:{sb+(16*kk+4*rd)*256}")
    def kv_mfmas(buf, first=False):
        b = FB[buf]
        for T in range(3):
            c = "0" if first else f"v[{ACC+16*T}:{ACC+16*T+15}]"
            e(f"v_mfma_f32_32x32x16_bf16 v[{ACC+16*T}:{ACC+16*T+15}], v[{b+4*T}:{b+4*T+3}], v[{b+12}:{b+15}], {c}")
    run_sched('pre')
    e("s_waitcnt lgkmcnt(0)")
    stamp(1)
    e("s_barrier")
    stamp(2)
    vNC, vRF = 38, 42
    vRA = 18; vKA = 26; vKB = 28
    def hoist_pk():
        e(f"""
        v_and_b32 v2, 31, v0
        v_lshrrev_b32 v3, 5, v0
        v_lshlrev_b32 v3, 14, v3
        s_lshl_b32 s{sT}, s{sW4}, 5
        v_add_u32 v2, s{sT}, v2
        v_lshlrev_b32 v2, 7, v2
        v_add_u32 v2, v2, v3
        v_add_u32 v2, {L_PK}, v2
        v_and_b32 v3, 7, v0
        v_bfe_u32 v4, v0, 3, 1
        v_lshlrev_b32 v4, 2, v4
        v_xor_b32 v3, v3, v4
        v_lshlrev_b32 v3, 4, v3
        v_add_u32 v{vRA}, v2, v3
        """)
        for u in range(1, 8): e(f"v_xor_b32 v{vRA+u}, {16*u}, v{vRA}")

    def hoist_kv():
        e(f"""
        v_lshrrev_b32 v2, 4, v0            ; G
        v_bfe_u32 v3, v0, 2, 2             ; rp
        v_and_b32 v4, 3, v0                ; c
        v_lshlrev_b32 v5, 3, v2
        v_add_u32 v5, v5, v3
        v_lshlrev_b32 v5, 7, v5
        s_lshr_b32 s{sT}, s{sW4}, 1
        s_lshl_b32 s{sT}, s{sT}, 14
        s_add_u32 s{sT}, s{sT}, {L_PK}
        v_add_u32 v5, s{sT}, v5
        v_and_b32 v6, 1, v2
        v_lshlrev_b32 v6, 2, v6
        v_xor_b32 v6, v6, v3
        v_lshrrev_b32 v7, 1, v4
        v_and_b32 v8, 1, v4
        v_lshlrev_b32 v8, 3, v8
        v_add_u32 v5, v5, v8
        s_and_b32 s{sT+1}, s{sW4}, 1
        v_add_u32 v9, 5, v7
        v_mov_b32 v40, 7
        s_cmp_eq_u32 s{sT+1}, 1
        s_cselect_b64 vcc, -1, 0
        v_cndmask_b32 v9, v9, v40, vcc
        v_xor_b32 v9, v9, v6
        v_lshlrev_b32 v9, 4, v9
        v_add_u32 v{vKA}, v5, v9
        v_xor_b32 v{vKA+1}, 64, v{vKA}
        v_add_u32 v{vKA+1}, 512, v{vKA+1}
        """)
        for ct in range(3):
            if ct < 2: e(f"v_add_u32 v9, {2*ct}, v7")
            else: e(f"v_mov_b32 v9, 4")
            e(f"""
            v_xor_b32 v9, v9, v6
            v_lshlrev_b32 v9, 4, v9
            v_add_u32 v{vKB+2*ct}, v5, v9
            v_xor_b32 v{vKB+2*ct+1}, 64, v{vKB+2*ct}
            v_add_u32 v{vKB+2*ct+1}, 512, v{vKB+2*ct+1}
            """)
        e(f"""
        v_lshrrev_b32 v2, 4, v0            ; g
        v_and_b32 v3, 15, v0
        s_lshr_b32 s{sT}, s{sW4}, 1
        s_mul_i32 s{sT}, s{sT}, 6
        s_and_b32 s{sT+1}, s{sW4}, 1
        s_lshl_b32 s{sT+2}, s{sT+1}, 2
        s_add_u32 s{sT}, s{sT}, s{sT+2}
        v_add_u32 v4, s{sT}, v2
        v_mul_u32_u24 v4, 40, v4
        v_add_u32 v4, v4, v3
        v_lshlrev_b32 v4, 3, v4
        v_mov_b32 v5, 0x40000000
        s_lshl_b32 s{sT+2}, s{sT+1}, 1
        s_sub_u32 s{sT+2}, 4, s{sT+2}
        v_cmp_gt_u32 vcc, s{sT+2}, v2
        s_nop 1
        v_cndmask_b32 v{vPA}, v5, v4, vcc
        v_cmp_gt_u32 vcc, 8, v3
        s_nop 1
        v_cndmask_b32 v{vPB}, v5, v{vPA}, vcc
        """)

    base = Base([vAA, vAA+1, vAA+2, vBA, vBA+1, vBA+2, vBA+3])
    sb = base.set(0)
    kv_reads(0, 0, sb)
    for s in range(NST):
        for kk in range(3):
            kv_reads(kk+1, (kk+1) & 1, sb)
            e("s_waitcnt lgkmcnt(7)")
            kv_mfmas(kk & 1, first=(s == 0 and kk == 0))
        run_sched(s)
        if s == 0:
            e(f"v_mov_b32 v{vNC}, 0")
            e(f"buffer_load_dword v{vNC+1}, v{vNC}, s[{S_A}:{S_A+3}], 0 offen sc1")
        if s == 1: wphi_frags(WF, 18, 22)
        if s == 4: hoist_pk()
        if s == 5: hoist_kv()
        if s == 2 and 'p1only' not in exp:
            lab = a.newlabel("NF"); lab2 = a.newlabel("NC")
            e(f"""
            s_waitcnt vmcnt(0)
            v_readfirstlane_b32 s{sNONCE}, v{vNC+1}
            s_mov_b32 s{sSPIN}, {SPIN_G}
            s_cmp_lg_u32 s{sNONCE}, 0
            s_cbranch_scc1 {lab}
{lab2}:
            s_sub_u32 s{sSPIN}, s{sSPIN}, 1
            s_cbranch_scc1 L_end
            buffer_load_dword v{vNC+1}, v{vNC}, s[{S_A}:{S_A+3}], 0 offen sc1
            s_waitcnt vmcnt(0)
            v_readfirstlane_b32 s{sNONCE}, v{vNC+1}
            s_nop 0
            s_cmp_eq_u32 s{sNONCE}, 0
            s_cbranch_scc1 {lab2}
{lab}:
            """)
        if s == 3:
            lab = a.newlabel("RD")
            e(f"""
            s_cmp_lg_u32 s{sW4}, 0
            s_cbranch_scc1 {lab}
            s_add_u32 s{sT}, s{sPART}, 3840
            v_mov_b32 v2, 0
            v_mov_b32 v3, s{sNONCE}
            s_mov_b64 exec, 1
            buffer_store_dword v3, v2, s[{S_WS}:{S_WS+3}], s{sT} offen sc1
            s_mov_b64 exec, -1
{lab}:
            """)
        if s == 7:
            e(f"""
            v_and_b32 v2, 15, v0
            s_lshl_b32 s{sT}, s{sHP}, 4
            v_add_u32 v3, s{sT}, v2            ; hp*16 + r
            v_lshlrev_b32 v4, 4, v2
            v_add_u32 v4, s{sRC}, v4           ; h'*16 + rc
            v_bfe_u32 v5, v0, 4, 1
            v_cmp_eq_u32 vcc, 0, v5
            s_mov_b32 s{sT+1}, {WS_PART + 3840}
            s_nop 0
            v_cndmask_b32 v3, v4, v3, vcc
            v_lshlrev_b32 v{vRF}, 12, v3
            buffer_load_dword v{vRF+1}, v{vRF}, s[{S_WS}:{S_WS+3}], s{sT+1} offen sc1
            """)
        e("s_waitcnt lgkmcnt(0)")
        if s + 1 < NST: e("s_barrier")
        sstamp(s+1)
        if s + 1 < NST:
            sb = base.set(s+1)
            kv_reads(0, 0, sb)
        kv_mfmas(1)
    stamp(3)
    if 'p1only' in exp: e("s_branch L_fin")
    loc = {}
    for T, qs in enumerate(TKV):
        for Q, q in enumerate(qs):
            if q is not None: loc[q] = ACC + 16*T + 4*Q
    e("s_nop 9")
    if dump == "kvacc":
        e("s_nop 7"); dump_regs([loc[(sg, j)] + x for sg in range(2) for j in range(5) for x in range(4)], 0)
    for j in range(5):
        e(f"v_cvt_pk_bf16_f32 v{KB+2*j}, v{loc[(0,j)]}, v{loc[(0,j)]+1}")
        e(f"v_cvt_pk_bf16_f32 v{KB+2*j+1}, v{loc[(0,j)]+2}, v{loc[(0,j)]+3}")
    e(f"v_mov_b32 v{KB+10}, 0"); e(f"v_mov_b32 v{KB+11}, 0")
    e("s_nop 0")
    feature_map(KB, WF, PK0, PK1)
    for j in range(5):
        e(f"v_cvt_pk_bf16_f32 v{VB+2*j}, v{loc[(1,j)]}, v{loc[(1,j)]+1}")
        e(f"v_cvt_pk_bf16_f32 v{VB+2*j+1}, v{loc[(1,j)]+2}, v{loc[(1,j)]+3}")
    e(f"v_mov_b32 v{VB+10}, 0x3f80"); e(f"v_mov_b32 v{VB+11}, 0")
    for u in range(3):
        e(f"ds_write_b128 v{vRA+5+u}, v[{VB+4*u}:{VB+4*u+3}]")
    e("s_nop 7")
    e("s_nop 3")
    if dump == "pk":
        dump_regs([PK0+i for i in range(16)] + [PK1+i for i in range(4)], 0)
    softmax_pair(PK0, PK1, EP, EN, PH, TM)
    if dump == "phik": dump_regs([PH+i for i in range(20)], 0)
    for u in range(5):
        e(f"ds_write_b128 v{vRA+u}, v[{PH+4*u}:{PH+4*u+3}]")
    subbar(0)
    stamp(4)
    KD = 192; KF = 64
    for kap in range(4):
        f = KF + 16*kap
        for rd in range(2):
            e(f"ds_read_b64_tr_b16 v[{f+2*rd}:{f+2*rd+1}], v{vKA+rd} offset:{4096*kap}")
        for ct in range(3):
            for rd in range(2):
                e(f"ds_read_b64_tr_b16 v[{f+4+4*ct+2*rd}:{f+4+4*ct+2*rd+1}], v{vKB+2*ct+rd} offset:{4096*kap}")
    for kap in range(4):
        f = KF + 16*kap
        e(f"s_waitcnt lgkmcnt({min(15, 8*(3-kap))})")
        for ct in range(3):
            c = "0" if kap == 0 else f"v[{KD+4*ct}:{KD+4*ct+3}]"
            e(f"v_mfma_f32_16x16x32_bf16 v[{KD+4*ct}:{KD+4*ct+3}], v[{f}:{f+3}], v[{f+4+4*ct}:{f+4+4*ct+3}], {c}")
    subsignal(1)
    vWO = 40
    srd(S_B, 10, 640*1280)
    wo_setup(vWO, 2)
    for ct in range(3):
        e(f"v_cvt_pk_bf16_f32 v{KD+16+2*ct}, v{KD+4*ct}, v{KD+4*ct+1}")
        e(f"v_cvt_pk_bf16_f32 v{KD+16+2*ct+1}, v{KD+4*ct+2}, v{KD+4*ct+3}")
    for ct in range(3):
        e(f"v_min_u32 v{KD+16+2*ct}, -2, v{KD+16+2*ct}")
    for ct in range(3):
        e(f"buffer_store_dwordx2 v[{KD+16+2*ct}:{KD+16+2*ct+1}], v{vPA if ct < 2 else vPB}, s[{S_WS}:{S_WS+3}], s{sPART} offen offset:{128*ct} sc1")
    stamp(5)
    lab = a.newlabel("RC"); lab2 = a.newlabel("RP")
    e(f"""
    s_waitcnt vmcnt(3)
    s_mov_b32 s{sSPIN}, {SPIN_G}
    s_mov_b32 s{sT+1}, {WS_PART + 3840}
    v_cmp_ne_u32 vcc, s{sNONCE}, v{vRF+1}
    s_cbranch_vccz {lab}
{lab2}:
    s_sub_u32 s{sSPIN}, s{sSPIN}, 1
    s_cbranch_scc1 L_end
    buffer_load_dword v{vRF+1}, v{vRF}, s[{S_WS}:{S_WS+3}], s{sT+1} offen sc1
    s_waitcnt vmcnt(0)
    v_cmp_ne_u32 vcc, s{sNONCE}, v{vRF+1}
    s_cbranch_vccnz {lab2}
{lab}:
    """)
    subwait(1, target=8)
    e(f"s_mov_b64 exec, s[{sEX}:{sEX+1}]")
    for sg in WO_P2:
        for rd in range(2): wo_dma(sg, rd, vWO)
    e("s_mov_b64 exec, -1")
    PL = 64; SUM = 128; IDA = 144; sMASK = 69
    e(f"""
    s_lshl_b32 s{sT+4}, s{sHP}, 16
    s_add_u32 s{sT+4}, s{sT+4}, {WS_PART}
    s_lshl_b32 s{sT}, s{sW4}, 6
    v_add_u32 v6, s{sT}, v0            ; tau
    v_lshlrev_b32 v7, 4, v6
    v_mov_b32 v4, 0x40000000
    v_cmp_gt_u32 vcc, 240, v6
    s_mov_b32 s{sT}, s{sT+4}
    s_mov_b32 s{sMASK}, 0xffff
    v_cndmask_b32 v7, v4, v7, vcc
    """)
    stamp(6)
    for r in range(16):
        e(f"buffer_load_dwordx4 v[{PL+4*r}:{PL+4*r+3}], v7, s[{S_WS}:{S_WS+3}], s{sT} offen sc1")
        e(f"s_add_u32 s{sT}, s{sT}, 4096")
    if VRED:
        for i in range(8): e(f"v_mov_b32 v{SUM+i}, 0")
        e(f"""
        v_mul_u32_u24 v4, 205, v6
        v_lshrrev_b32 v4, 12, v4           ; tau/20
        v_mul_u32_u24 v5, 20, v4
        v_sub_u32 v5, v6, v5               ; fp
        v_mul_u32_u24 v5, 96, v5
        v_mul_u32_u24 v8, 43, v4
        v_lshrrev_b32 v8, 8, v8            ; hd
        v_mul_u32_u24 v9, 6, v8
        v_sub_u32 v9, v4, v9               ; dq
        v_mul_u32_u24 v8, 1920, v8
        v_lshlrev_b32 v9, 3, v9
        v_add3_u32 v5, v5, v8, v9
        v_add_u32 v4, {L_KVF}, v5
        v_mov_b32 v9, {L_CNT + 512}
        v_cmp_gt_u32 vcc, 240, v6
        s_nop 1
        v_cndmask_b32 v4, v9, v4, vcc
        v_add_u32 v5, 48, v4
        """)
    else:
        e(f"""
        v_and_b32 v2, 15, v0
        v_lshrrev_b32 v3, 4, v0            ; G
        v_lshrrev_b32 v4, 3, v2            ; i>>3
        v_and_b32 v5, 7, v2                ; j*
        v_lshrrev_b32 v8, 1, v5            ; reg
        v_and_b32 v5, 1, v5
        v_lshlrev_b32 v5, 4, v5
        v_mov_b32 v9, 0x3f80
        v_lshlrev_b32 v9, v5, v9           ; 1.0 in the right half
        v_mov_b32 v13, 0
        """)
        for u in range(2):
            e(f"v_add_u32 v5, {2*u}, v4")
            e(f"v_cmp_eq_u32 s[{sT}:{sT+1}], v5, v3")
            for rr in range(4):
                e(f"v_cmp_eq_u32 vcc, {rr}, v8")
                e(f"s_nop 0")
                e(f"s_and_b64 vcc, vcc, s[{sT}:{sT+1}]")
                e(f"v_cndmask_b32 v{IDA+4*u+rr}, v13, v9, vcc")
        for i in range(8): e(f"v_mov_b32 v{SUM+i}, 0")
        e(f"""
        v_and_b32 v2, 15, v0
        v_lshrrev_b32 v3, 5, v0            ; g>>1
        v_lshlrev_b32 v3, 4, v3
        s_lshl_b32 s{sT}, s{sW4}, 6
        v_add3_u32 v2, v2, v3, s{sT}
        v_bfe_u32 v3, v0, 4, 1             ; p
        v_mul_u32_u24 v3, 48, v3
        """)
        for u in range(2):
            t = 4 + u
            e(f"""
            v_add_u32 v8, {32*u}, v2           ; tau
            v_mul_u32_u24 v9, 205, v8
            v_lshrrev_b32 v9, 12, v9           ; tau/20
            v_mul_u32_u24 v{t}, 20, v9
            v_sub_u32 v{t}, v8, v{t}           ; fp
            v_mul_u32_u24 v{t}, 96, v{t}
            v_mul_u32_u24 v13, 43, v9
            v_lshrrev_b32 v13, 8, v13          ; hd
            v_mul_u32_u24 v41, 6, v13
            v_sub_u32 v41, v9, v41             ; dq
            v_mul_u32_u24 v13, 1920, v13
            v_lshlrev_b32 v41, 3, v41
            v_add3_u32 v{t}, v{t}, v13, v41
            v_add3_u32 v{t}, v{t}, v3, 0
            v_add_u32 v{t}, {L_KVF}, v{t}
            v_mov_b32 v41, {L_CNT + 512}
            v_cmp_gt_u32 vcc, 240, v8
            s_nop 1
            v_cndmask_b32 v{t}, v41, v{t}, vcc
            """)

    def acc(r, lab):
        e(f"""
        v_max_u32 v13, v{PL+4*r}, v{PL+4*r+2}
        v_cmp_eq_u32 vcc, -1, v13
        s_cbranch_vccnz {lab}
        s_bitset0_b32 s{sMASK}, {r}
        """)
        if VRED:
            for i in range(4):
                src = PL + 4*r + i
                e(f"v_lshlrev_b32 v{SUM+8}, 16, v{src}")
                e(f"v_and_b32 v{SUM+9}, 0xffff0000, v{src}")
                e(f"v_add_f32 v{SUM+2*i}, v{SUM+2*i}, v{SUM+8}")
                e(f"v_add_f32 v{SUM+2*i+1}, v{SUM+2*i+1}, v{SUM+9}")
        else:
            for u in range(2):
                e(f"v_mfma_f32_16x16x32_bf16 v[{SUM+4*u}:{SUM+4*u+3}], v[{IDA+4*u}:{IDA+4*u+3}], v[{PL+4*r}:{PL+4*r+3}], v[{SUM+4*u}:{SUM+4*u+3}]")
        a.label(lab)
    for r in range(16):
        e(f"s_waitcnt vmcnt({15-r})")
        if r == 0: e(f"v_max_u32 v{SUM+10}, v{PL}, v{PL+2}")
        else: e(f"v_max3_u32 v{SUM+10}, v{SUM+10}, v{PL+4*r}, v{PL+4*r+2}")
        for i in range(4):
            src = PL + 4*r + i
            e(f"v_lshlrev_b32 v{SUM+8}, 16, v{src}")
            e(f"v_and_b32 v{SUM+9}, 0xffff0000, v{src}")
            e(f"v_add_f32 v{SUM+2*i}, v{SUM+2*i}, v{SUM+8}")
            e(f"v_add_f32 v{SUM+2*i+1}, v{SUM+2*i+1}, v{SUM+9}")
    e(f"""
    v_cmp_eq_u32 vcc, -1, v{SUM+10}
    s_cbranch_vccz L_s1_done
    """)
    for i in range(8): e(f"v_mov_b32 v{SUM+i}, 0")
    for r in range(16):
        acc(r, f"L_s1a_{r}")
    e(f"""
    s_mov_b32 s{sSPIN}, {SPIN_G}
L_s1_loop:
    s_cmp_eq_u32 s{sMASK}, 0
    s_cbranch_scc1 L_s1_done
    s_sub_u32 s{sSPIN}, s{sSPIN}, 1
    s_cbranch_scc1 L_end
    """)
    for r in range(16):
        e(f"""
        s_bitcmp0_b32 s{sMASK}, {r}
        s_cbranch_scc1 L_s1l_{r}
        s_add_u32 s{sT}, s{sT+4}, {4096*r}
        buffer_load_dwordx4 v[{PL+4*r}:{PL+4*r+3}], v7, s[{S_WS}:{S_WS+3}], s{sT} offen sc1
L_s1l_{r}:
        """)
    e("s_waitcnt vmcnt(0)")
    for r in range(16):
        e(f"s_bitcmp0_b32 s{sMASK}, {r}")
        e(f"s_cbranch_scc1 L_s1b_{r}")
        acc(r, f"L_s1b_{r}")
    e("s_branch L_s1_loop")
    a.label("L_s1_done")
    e("s_nop 7")
    for u in range(2):
        e(f"v_cvt_pk_bf16_f32 v{SUM+12+2*u}, v{SUM+4*u}, v{SUM+4*u+1}")
        e(f"v_cvt_pk_bf16_f32 v{SUM+13+2*u}, v{SUM+4*u+2}, v{SUM+4*u+3}")
    e(f"ds_write_b64 v4, v[{SUM+12}:{SUM+13}]")
    e(f"ds_write_b64 v5, v[{SUM+14}:{SUM+15}]")
    subsignal(2)
    stamp(7)
    e(f"""
    v_cmp_gt_u32 vcc, 40, v0
    s_nop 1
    s_mov_b64 s[{sEX}:{sEX+1}], vcc
    """)
    subwait(5, tmp=8)
    e(f"s_mov_b64 exec, s[{sEX}:{sEX+1}]")
    for sg in WO_P1:
        for rd in range(2): wo_dma(sg, rd, vWO)
    e("s_mov_b64 exec, -1")
    vWA = 10
    e(f"""
    v_lshrrev_b32 v2, 4, v0            ; G
    v_bfe_u32 v3, v0, 2, 2             ; rp
    v_and_b32 v4, 3, v0                ; c
    v_lshrrev_b32 v5, 1, v2
    v_lshlrev_b32 v5, 4, v5            ; 16*(G>>1)
    v_and_b32 v6, 1, v2
    v_lshlrev_b32 v6, 2, v6            ; 4*(G&1)
    v_add3_u32 v5, v5, v6, v3
    v_mul_u32_u24 v5, 160, v5
    v_lshlrev_b32 v4, 3, v4
    v_add_u32 v{vWA}, v5, v4
    v_add_u32 v{vWA+1}, 0x10000, v{vWA}
    v_add_u32 v{vWA+2}, 0x20000, v{vWA}
    s_and_b32 s{sT}, s{sHP}, 1
    s_lshl_b32 s{sT}, s{sT}, 2
    s_add_u32 s{sT}, s{sT}, s{sW4}     ; tt
    s_lshl_b32 s{sT+1}, s{sRC}, 3
    s_add_u32 s{sT+6}, s{sT}, s{sT+1}
    s_mul_i32 s{sT+4}, s{sT+6}, 20480
    s_add_u32 s{sT+4}, s{sT+4}, {WS_O}
    v_and_b32 v2, 15, v0
    v_lshrrev_b32 v3, 2, v2
    v_mul_u32_u24 v3, 5120, v3
    v_and_b32 v4, 3, v2
    v_lshlrev_b32 v4, 8, v4
    v_add3_u32 v2, v3, v4, 0
    v_add_u32 v2, 4096, v2
    v_lshlrev_b32 v7, 4, v0            ; lane*16
    """)
    OF = 96; OD = 40; AB = [176, 196, 216, 236, 60, 16]
    NB = len(AB)
    def wo_reads(sg):
        L = L_WO(sg); reg = vWA + L // 65536; b = AB[sg % NB]
        assert (L // 65536) == ((L + 1408) // 65536)
        off = L % 65536
        for nt in range(5):
            for rd in range(2):
                e(f"ds_read_b64_tr_b16 v[{b+4*nt+2*rd}:{b+4*nt+2*rd+1}], v{reg} offset:{off + rd*1280 + nt*32}")
    e("s_waitcnt vmcnt(0)")
    def wo_reads_nt(sg, nt):
        L = L_WO(sg); reg = vWA + L // 65536; b = AB[sg % NB]
        off = L % 65536
        for rd in range(2):
            e(f"ds_read_b64_tr_b16 v[{b+4*nt+2*rd}:{b+4*nt+2*rd+1}], v{reg} offset:{off + rd*1280 + nt*32}")
    subbar(6, tmp=8)
    for sg in range(NB): wo_reads(sg)
    e(f"""
    s_mov_b32 s{sSPIN}, {SPIN_G}
L_s2_hint:
    s_sub_u32 s{sSPIN}, s{sSPIN}, 1
    s_cbranch_scc1 L_end
    buffer_load_dword v3, v2, s[{S_WS}:{S_WS+3}], s{sT+4} offen sc1
    s_waitcnt vmcnt(0)
    v_cmp_eq_u32 vcc, -1, v3
    s_cbranch_vccnz L_s2_hint
    """)
    stamp(8)
    e(f"s_mov_b32 s{sT}, s{sT+4}")
    for sg in range(20):
        d = OF + 4*sg
        e(f"buffer_load_dwordx4 v[{d}:{d+3}], v7, s[{S_WS}:{S_WS+3}], s{sT} offen offset:{(sg%4)*1024} sc1")
        if sg % 4 == 3: e(f"s_add_u32 s{sT}, s{sT}, 4096")
    retries = []
    for sg in range(20):
        e(f"s_waitcnt vmcnt({19-sg}) lgkmcnt({10 if (sg >= 1 and sg + NB - 1 < 20) else 0})")
        o = OF + 4*sg
        a.label(f"L_chk_{sg}")
        e(f"v_max_u32 v2, v{o}, v{o+2}")
        e(f"v_cmp_eq_u32 vcc, -1, v2")
        e(f"s_cbranch_vccnz L_rt_{sg}")
        retries.append(sg)
        for nt in range(5):
            D = OD + 4*nt
            c = "0" if sg == 0 else f"v[{D}:{D+3}]"
            b = AB[sg % NB] + 4*nt
            e(f"v_mfma_f32_16x16x32_bf16 v[{D}:{D+3}], v[{b}:{b+3}], v[{o}:{o+3}], {c}")
            if sg + NB < 20: wo_reads_nt(sg + NB, nt)
    srd(S_B, 12, 2048*1280)
    e(f"""
    v_and_b32 v2, 15, v0
    v_lshrrev_b32 v3, 4, v0
    s_lshl_b32 s{sT}, s{sT+6}, 4
    v_add_u32 v2, s{sT}, v2
    v_mul_u32_u24 v2, 1280, v2
    v_lshlrev_b32 v4, 3, v3
    v_add_u32 v2, v2, v4
    s_lshr_b32 s{sT}, s{sHP}, 1
    s_mul_i32 s{sT}, s{sT}, 160
    """)
    for nt in range(5):
        D = OD + 4*nt; P = 64 + 2*nt
        e(f"v_cvt_pk_bf16_f32 v{P}, v{D}, v{D+1}")
        e(f"v_cvt_pk_bf16_f32 v{P+1}, v{D+2}, v{D+3}")
    for nt in range(5):
        P = 64 + 2*nt
        e(f"buffer_store_dwordx2 v[{P}:{P+1}], v2, s[{S_B}:{S_B+3}], s{sT} offen offset:{32*nt} {OUTFL}")
    e("s_branch L_fin")
    for sg in retries:
        o = OF + 4*sg
        a.label(f"L_rt_{sg}")
        e(f"""
        s_sub_u32 s{sSPIN}, s{sSPIN}, 1
        s_cbranch_scc1 L_end
        s_add_u32 s{sT}, s{sT+4}, {sg*1024}
        buffer_load_dwordx4 v[{o}:{o+3}], v7, s[{S_WS}:{S_WS+3}], s{sT} offen sc1
        s_waitcnt vmcnt(0)
        s_branch L_chk_{sg}
        """)

    a.label("L_lq")
    vVX, vVW, vWQ = 10, 11, 12
    vBA = 14
    XF = 64
    e(f"""
    v_lshrrev_b32 v2, 3, v0
    s_lshl_b32 s{sT}, s{sW4}, 3
    v_add_u32 v2, s{sT}, v2
    v_mul_u32_u24 v2, 1280, v2
    v_lshrrev_b32 v3, 4, v0                 ; r = l>>4
    s_and_b32 s{sT}, s{sW4}, 1
    s_lshl_b32 s{sT}, s{sT}, 2
    v_add_u32 v4, s{sT}, v3
    v_and_b32 v5, 7, v0
    v_xor_b32 v5, v5, v4
    v_lshlrev_b32 v5, 4, v5
    v_add_u32 v{vVX}, v2, v5
    v_and_b32 v4, 15, v0
    v_lshlrev_b32 v5, 2, v3
    v_sub_u32 v4, v4, v5
    v_and_b32 v4, 15, v4                    ; pos
    v_lshrrev_b32 v5, 3, v4                 ; seg
    v_bfe_u32 v6, v4, 2, 1                  ; part
    v_and_b32 v7, 3, v4                     ; i4
    v_mul_lo_u32 v8, v6, s{sBB}
    v_add_u32 v8, v8, v7                    ; j
    v_mov_b32 v9, 5
    v_mov_b32 v13, s{sBB}
    v_cmp_eq_u32 vcc, 0, v6
    s_lshl_b32 s{sT}, s{sW4}, 2
    v_add_u32 v2, s{sT}, v3
    v_cndmask_b32 v9, v9, v13, vcc
    v_cmp_lt_u32 vcc, v8, v9
    v_mul_u32_u24 v2, 3840, v2
    v_add_u32 v5, 1, v5
    v_mul_u32_u24 v5, 1280, v5
    v_lshlrev_b32 v8, 4, v8
    v_add3_u32 v{vVW}, v2, v5, v8
    v_mov_b32 v7, 0x40000000
    v_cndmask_b32 v{vVW}, v7, v{vVW}, vcc
    s_mul_i32 s{sSOFX}, s{sRC}, {128*1280}
    s_mul_i32 s{sSOFW}, s{sHP}, 80
    s_lshl_b32 s{sM0}, s{sW4}, 10
    """)
    stamp(4)
    e("s_waitcnt lgkmcnt(0)")
    stamp(8)
    srd(S_X, 4, 2048*1280)
    srd(S_W, 6, 640*3840)
    rotmode = [x for x in exp.split(',') if x.startswith('rot')]
    if rotmode:
        rm = rotmode[0]
        if rm == 'rot1': e(f"s_and_b32 s65, s{sHP}, 1")
        elif rm == 'rot5': e(f"s_and_b32 s65, s{sHP}, 1"); e("s_mul_i32 s65, s65, 5")
        elif rm == 'rotrc': e(f"s_and_b32 s65, s{sRC}, 1")
        elif rm == 'rothp': e(f"s_and_b32 s65, s{sHP}, 7")
        elif rm == 'rotmix': e(f"s_xor_b32 s65, s{sHP}, s{sRC}"); e("s_and_b32 s65, s65, 1")
    def issue_stage(s):
        m0b = (s % R) * SLOT
        if rotmode:
            e(f"s_add_u32 s66, s65, {s}")
            e(f"s_sub_u32 s67, s66, 10")
            e(f"s_cmp_ge_u32 s66, 10")
            e(f"s_cselect_b32 s66, s67, s66")
            e(f"s_mul_i32 s67, s66, {64*3840}")
            e(f"s_lshl_b32 s66, s66, 7")
            e(f"s_add_u32 s66, s66, s{sSOFX}")
            e(f"s_add_u32 s67, s67, s{sSOFW}")
            for m in range(4):
                e(f"s_add_u32 m0, s{sM0}, {m0b + m*4096}")
                e(f"s_add_u32 s{sT}, s66, {m*32*1280}")
                e(f"buffer_load_dwordx4 v{vVX}, s[{S_X}:{S_X+3}], s{sT} offen lds")
                e(f"s_add_u32 m0, s{sM0}, {m0b + 16384 + m*4096}")
                e(f"s_add_u32 s{sT}, s67, {m*16*3840}")
                e(f"buffer_load_dwordx4 v{vVW}, s[{S_W}:{S_W+3}], s{sT} offen lds")
            return
        for m in range(4):
            e(f"s_add_u32 m0, s{sM0}, {m0b + m*4096}")
            e(f"s_add_u32 s{sT}, s{sSOFX}, {m*32*1280 + s*128}")
            e(f"buffer_load_dwordx4 v{vVX}, s[{S_X}:{S_X+3}], s{sT} offen lds")
            e(f"s_add_u32 m0, s{sM0}, {m0b + 16384 + m*4096}")
            e(f"s_add_u32 s{sT}, s{sSOFW}, {m*16*3840 + s*64*3840}")
            e(f"buffer_load_dwordx4 v{vVW}, s[{S_W}:{S_W+3}], s{sT} offen lds")
    issue_stage(0)
    srd(S_A, 8, 32*800)
    e(f"""
    v_lshlrev_b32 v2, 4, v0
    s_and_b32 s{sT}, s{sW4}, 1
    s_lshl_b32 s{sT}, s{sT}, 10
    s_add_u32 m0, s{sT}, {L_PHI}
    s_mul_i32 s{sT+1}, s{sHP}, 1600
    s_add_u32 s{sT}, s{sT}, s{sT+1}
    buffer_load_dwordx4 v2, s[{S_A}:{S_A+3}], s{sT} offen lds
    """)
    issue_stage(1)
    srd(S_WS, 16, 0x10000000)
    sPART = 64
    e(f"""
    s_lshl_b32 s{sPART}, s{sHP}, 4
    s_add_u32 s{sPART}, s{sPART}, s{sRC}
    s_lshl_b32 s{sPART}, s{sPART}, 12
    s_add_u32 s{sPART}, s{sPART}, {WS_PART}
    v_mov_b32 v40, -1
    v_mov_b32 v41, -1
    v_mov_b32 v42, -1
    v_mov_b32 v43, -1
    s_lshl_b32 s{sT}, s{sW4}, 6
    v_add_u32 v2, s{sT}, v0            ; tau
    v_lshlrev_b32 v8, 4, v2
    v_mov_b32 v3, 0x40000000
    v_cmp_gt_u32 vcc, 240, v2
    v_lshrrev_b32 v9, 4, v0            ; g = l>>4
    v_and_b32 v44, 15, v0
    v_cndmask_b32 v8, v3, v8, vcc
    v_lshlrev_b32 v44, 4, v44          ; t'*16
    s_lshl_b32 s{sT}, s{sRC}, 3
    s_lshl_b32 s{sT+1}, s{sW4}, 1
    s_add_u32 s{sT}, s{sT}, s{sT+1}
    s_mul_i32 s{sT}, s{sT}, 20480
    s_lshr_b32 s{sT+1}, s{sHP}, 2
    s_mul_i32 s{sT+1}, s{sT+1}, 5120
    s_add_u32 s{sT}, s{sT}, s{sT+1}
    s_and_b32 s{sT+1}, s{sHP}, 3
    s_lshl_b32 s{sT+1}, s{sT+1}, 8
    s_add_u32 s{sT}, s{sT}, s{sT+1}
    s_add_u32 s{sT+3}, s{sT}, {WS_O}
    v_lshlrev_b32 v45, 10, v9
    v_add_u32 v45, v45, v44            ; i=0
    v_mov_b32 v46, 4096
    v_add_u32 v47, -1, v9
    v_lshlrev_b32 v47, 10, v47
    v_add_u32 v47, 20480, v47
    v_cmp_eq_u32 vcc, 0, v9
    s_nop 1
    v_cndmask_b32 v46, v47, v46, vcc
    v_add_u32 v46, v46, v44            ; i=1
    v_add_u32 v47, 3, v9
    v_lshlrev_b32 v47, 10, v47
    v_add_u32 v47, 20480, v47
    v_add_u32 v47, v47, v44
    v_cmp_gt_u32 vcc, 2, v9
    s_nop 1
    v_cndmask_b32 v47, v3, v47, vcc    ; i=2
    buffer_store_dwordx4 v[40:43], v8, s[{S_WS}:{S_WS+3}], s{sPART} offen sc1
    buffer_store_dwordx4 v[40:43], v45, s[{S_WS}:{S_WS+3}], s{sT+3} offen sc1
    buffer_store_dwordx4 v[40:43], v46, s[{S_WS}:{S_WS+3}], s{sT+3} offen sc1
    buffer_store_dwordx4 v[40:43], v47, s[{S_WS}:{S_WS+3}], s{sT+3} offen sc1
    """)
    xfrag_addr(vBA, 2)
    VQ = [12, 13, 22, 23, 62]
    for j in range(5):
        e(f"""
        v_add_u32 v2, {64*j}, v0               ; n = 64j + l  (0..319)
        v_mul_u32_u24 v3, 205, v2
        v_lshrrev_b32 v3, 10, v3               ; n/5
        v_mul_u32_u24 v4, 5, v3
        v_sub_u32 v4, v2, v4                   ; n%5
        v_lshlrev_b32 v4, 4, v4
        v_mul_u32_u24 v3, 3840, v3
        v_add_u32 v{VQ[j]}, v3, v4
        """)
    def issue_wq_all():
        for gi in range(3):
            lab = a.newlabel("WQ")
            if gi == 2:
                e(f"s_cmp_ge_u32 s{sW4}, 2")
                e(f"s_cbranch_scc1 {lab}")
            e(f"s_mul_i32 s{sT+1}, s{sW4}, 5120")
            e(f"s_mul_i32 s{sT+2}, s{sW4}, {64*3840}")
            e(f"s_add_u32 s{sT+2}, s{sT+2}, s{sSOFW}")
            e(f"s_add_u32 s{sT+2}, s{sT+2}, {gi*4*64*3840}")
            for j in range(5):
                e(f"s_add_u32 m0, s{sT+1}, {L_WQ + gi*4*5120 + j*1024}")
                e("s_nop 0")
                e(f"buffer_load_dwordx4 v{VQ[j]}, s[{S_W}:{S_W+3}], s{sT+2} offen lds")
            a.label(lab)
    base = Base([vBA, vBA+1, vBA+2, vBA+3])
    stamp(1)
    for s in range(NST):
        if s <= 1: e("s_waitcnt vmcnt(12) lgkmcnt(0)")
        elif s <= 8: e("s_waitcnt vmcnt(8) lgkmcnt(0)")
        else: e("s_waitcnt vmcnt(0) lgkmcnt(0)")
        e("s_barrier")
        sstamp(s+1)
        if s == 0: stamp(2)
        sb = base.set(s)
        for kk in range(4):
            d = XF + 16*s + 4*kk
            e(f"ds_read_b128 v[{d}:{d+3}], v{vBA+kk} offset:{sb}")
        if s + 2 < NST: issue_stage(s+2)
        if s == NST - 1:
            issue_wq_all()
    vOA = 56
    def HOIST_LQ():
        lane_decomp32(2, 3, 4, 5, 6)
        e(f"""
        v_mul_u32_u24 v7, 800, v6
        v_mul_u32_u24 v8, 40, v3
        v_add_u32 v7, v7, v8
        v_lshlrev_b32 v8, 3, v5
        v_add_u32 v7, v7, v8
        v_add_u32 v7, {L_PHI}, v7
        v_lshrrev_b32 v8, 1, v2
        v_mov_b32 v21, {L_ZERO}
        v_cmp_eq_u32 vcc, v8, v6
        s_nop 1
        v_cndmask_b32 v20, v21, v7, vcc
        v_cmp_eq_u32 s[46:47], 0, v5
        s_nop 1
        s_and_b64 vcc, vcc, s[46:47]
        v_add_u32 v7, 32, v7
        s_nop 0
        v_cndmask_b32 v21, v21, v7, vcc
        """)

        lane_decomp32(2, 3, 4, 5, 6)
        e(f"""
        v_mul_u32_u24 v7, 1920, v6
        v_mul_u32_u24 v8, 48, v3
        v_lshlrev_b32 v9, 3, v5
        v_add3_u32 v7, v7, v8, v9
        v_add_u32 v7, {L_KVF}, v7
        v_lshrrev_b32 v8, 1, v2
        v_mov_b32 v9, {L_ZERO}
        v_cmp_eq_u32 vcc, v8, v6
        s_nop 1
        v_cndmask_b32 v{vOA}, v9, v7, vcc
        v_cmp_gt_u32 s[46:47], 2, v5
        s_nop 1
        s_and_b64 vcc, vcc, s[46:47]
        v_add_u32 v7, 32, v7
        s_nop 0
        v_cndmask_b32 v{vOA+1}, v9, v7, vcc
        v_and_b32 v2, 15, v0
        v_lshlrev_b32 v2, 4, v2
        v_bfe_u32 v3, v0, 4, 1
        v_mul_u32_u24 v3, 20480, v3
        v_add_u32 v2, v2, v3
        v_lshrrev_b32 v4, 5, v0            ; h
        v_lshlrev_b32 v5, 11, v4           ; c5 = 2h -> 2h*1024
        v_add_u32 v58, v5, v2
        v_lshlrev_b32 v6, 3, v4
        v_add_u32 v59, v6, v2
        s_lshl_b32 s44, s{sRC}, 3
        s_lshl_b32 s{sT+1}, s{sW4}, 1
        s_add_u32 s44, s44, s{sT+1}
        s_mul_i32 s44, s44, 20480
        s_lshr_b32 s{sT+1}, s{sHP}, 2
        s_mul_i32 s{sT+1}, s{sT+1}, 5120
        s_add_u32 s44, s44, s{sT+1}
        s_and_b32 s{sT+1}, s{sHP}, 3
        s_lshl_b32 s{sT+1}, s{sT+1}, 8
        s_add_u32 s44, s44, s{sT+1}
        s_add_u32 s44, s44, {WS_O}
        s_add_u32 s45, s44, 4096
        """)

    QA = 224; vQA = 18; vWO = 56
    lane_decomp32(2, 3, 4, 5, 6)
    e(f"""
    v_lshrrev_b32 v7, 1, v2
    v_lshlrev_b32 v7, 3, v7
    v_add_u32 v7, v7, v3
    v_mul_u32_u24 v7, 80, v7
    v_mul_u32_u24 v6, 40, v6
    v_add_u32 v7, v7, v6
    v_add_u32 v7, {L_WQ}, v7
    v_lshlrev_b32 v5, 3, v5
    v_add_u32 v{vQA}, v7, v5
    v_add_u32 v{vQA+1}, 32, v7
    """)
    e("s_waitcnt lgkmcnt(0)")
    subsignal(1, tmp=60)
    HOIST_LQ()
    e("s_waitcnt vmcnt(0)")
    subbar(7, tmp=60)
    if 'prio' in exp: e("s_setprio 1")
    stamp(3)
    if 'p1only' in exp:
        e("s_waitcnt vmcnt(0)")
        e("s_branch L_fin")
    QF3 = [24, 32, 40, 48]
    def q_reads3(k):
        b = QF3[k % 4]
        for T in range(2):
            for rd in range(2):
                e(f"ds_read_b64_tr_b16 v[{b+4*T+2*rd}:{b+4*T+2*rd+1}], v{vQA+T} offset:{(16*k+4*rd)*80}")
    wolist = [(sg, rd) for sg in WO_P1 for rd in range(2)]
    nwo = 0
    q_reads3(0); q_reads3(1); q_reads3(2)
    for k in range(40):
        if k + 3 < 40:
            q_reads3(k+3)
            e("s_waitcnt lgkmcnt(12)")
        else: e(f"s_waitcnt lgkmcnt({4*(39-k)})")
        for T in range(2):
            c = "0" if k == 0 else f"v[{QA+16*T}:{QA+16*T+15}]"
            b = QF3[k % 4]
            e(f"v_mfma_f32_32x32x16_bf16 v[{QA+16*T}:{QA+16*T+15}], v[{b+4*T}:{b+4*T+3}], v[{XF+4*k}:{XF+4*k+3}], {c}")
    if 'prio' in exp: e("s_setprio 0")
    stamp(5)
    WF = 64; QB = 88; PQ0 = 100; PQ1 = 116; EP = 132; EN = 152; PH = 172; TM = 192
    for u in range(2):
        for step in range(3):
            for rd in range(2):
                d = WF + u*12 + step*4 + 2*rd
                if step == 2 and rd == 1:
                    e(f"v_mov_b32 v{d}, 0"); e(f"v_mov_b32 v{d+1}, 0")
                else:
                    e(f"ds_read_b64_tr_b16 v[{d}:{d+1}], v{20+u} offset:{(8*step+4*rd)*40}")
    e("s_nop 7")
    if dump == "qacc":
        e("s_nop 7"); dump_regs([QA+i for i in range(20)], 0)
    for j in range(5):
        src = QA + 4*j if j < 4 else QA + 16
        e(f"v_cvt_pk_bf16_f32 v{QB+2*j}, v{src}, v{src+1}")
        e(f"v_cvt_pk_bf16_f32 v{QB+2*j+1}, v{src+2}, v{src+3}")
    e(f"v_mov_b32 v{QB+10}, 0"); e(f"v_mov_b32 v{QB+11}, 0")
    e("s_waitcnt lgkmcnt(0)")
    feature_map(QB, WF, PQ0, PQ1)
    e("s_nop 7")
    e("s_nop 3")
    softmax_pair(PQ0, PQ1, EP, EN, PH, TM)
    if dump == "phiq": dump_regs([PH+i for i in range(20)], 0)
    stamp(6)
    subwait(2)
    stamp(7)
    KA = 64; N0 = 104; N1 = 120
    for st in range(5):
        for U in range(2):
            for rd in range(2):
                d = KA + (U*5+st)*4 + 2*rd
                e(f"ds_read_b64_tr_b16 v[{d}:{d+1}], v{vOA+U} offset:{(8*st+4*rd)*48}")
    for st in range(5):
        e(f"s_waitcnt lgkmcnt({min(15, 4*(4-st))})")
        for U, N in ((0, N0), (1, N1)):
            c = "0" if st == 0 else f"v[{N}:{N+15}]"
            d = KA + (U*5+st)*4
            e(f"v_mfma_f32_32x32x16_bf16 v[{N}:{N+15}], v[{d}:{d+3}], v[{PH+4*st}:{PH+4*st+3}], {c}")
    e("s_nop 7")
    e("s_nop 3")
    e(f"v_add_f32 v8, 0x358637bd, v{N1+4}")
    e("v_rcp_f32 v8, v8")
    e("s_nop 0")
    OB = 136
    for i in range(8):
        e(f"v_mul_f32 v{N0+2*i}, v{N0+2*i}, v8"); e(f"v_mul_f32 v{N0+2*i+1}, v{N0+2*i+1}, v8")
        e(f"v_cvt_pk_bf16_f32 v{OB+i}, v{N0+2*i}, v{N0+2*i+1}")
    for i in range(2):
        e(f"v_mul_f32 v{N1+2*i}, v{N1+2*i}, v8"); e(f"v_mul_f32 v{N1+2*i+1}, v{N1+2*i+1}, v8")
        e(f"v_cvt_pk_bf16_f32 v{OB+8+i}, v{N1+2*i}, v{N1+2*i+1}")
    for i in (0, 2, 4, 6, 8):
        e(f"v_min_u32 v{OB+i}, -2, v{OB+i}")
    e(f"""
    buffer_store_dwordx4 v[{OB}:{OB+3}], v58, s[{S_WS}:{S_WS+3}], s44 offen sc1
    buffer_store_dwordx4 v[{OB+4}:{OB+7}], v58, s[{S_WS}:{S_WS+3}], s44 offen offset:1024 sc1
    buffer_store_dwordx2 v[{OB+8}:{OB+9}], v59, s[{S_WS}:{S_WS+3}], s45 offen sc1
    """)
    subsignal(5)
    a.label("L_fin")
    if until:
        e(f"""
        s_waitcnt vmcnt(0) lgkmcnt(0)
L_until:
        s_memrealtime s[94:95]
        s_waitcnt lgkmcnt(0)
        s_sub_u32 s96, s94, s98
        s_cmp_lt_u32 s96, {until}
        s_cbranch_scc1 L_until
        """)
    if stamps:
        stamp(10)
        e("s_waitcnt vmcnt(0)")
        e(f"""
        s_waitcnt lgkmcnt(0)
        s_lshl_b32 s{sT}, s2, 3
        s_add_u32 s{sT}, s{sT}, s{sWAVE}
        s_lshl_b32 s{sT}, s{sT}, 6
        s_add_u32 s{sT}, s{sT}, {WS_STAMP}
        v_mov_b32 v2, 0
        """)
        for i in range(NS): e(f"v_mov_b32 v{20+i}, s{sST+2*i}")
        e(f"""
        s_mov_b64 exec, 1
        buffer_store_dwordx4 v[20:23], v2, s[{S_WS}:{S_WS+3}], s{sT} offen
        buffer_store_dwordx4 v[24:27], v2, s[{S_WS}:{S_WS+3}], s{sT} offen offset:16
        buffer_store_dwordx4 v[28:31], v2, s[{S_WS}:{S_WS+3}], s{sT} offen offset:32
        """)
    if dbgwg >= 0:
        e(f"""
        s_cmp_lg_u32 s2, {dbgwg}
        s_cbranch_scc1 L_end
        s_cmp_lg_u32 s{sWAVE}, {dbgwave}
        s_cbranch_scc1 L_end
        s_mov_b64 exec, -1
        s_mov_b32 s72, s14
        s_and_b32 s73, s15, 0xffff
        s_mov_b32 s74, 256
        s_mov_b32 s75, 0x20000
        """)
        for i in range(1, NS):
            e(f"s_sub_u32 s{sT}, s{sST+2*i}, s{sST}")
            e(f"v_mov_b32 v{20+i}, s{sT}")
        e("v_mov_b32 v2, 0")
        e("s_mov_b64 exec, 1")
        for i in range(1, NS):
            e(f"buffer_store_dword v{20+i}, v2, s[72:75], 0 offen offset:{4*i}")
    if dbgwg == -2:
        e(f"""
        s_cmp_lg_u32 s{sWAVE}, {dbgwave}
        s_cbranch_scc1 L_end
        s_mov_b64 exec, -1
        s_mov_b32 s72, s14
        s_and_b32 s73, s15, 0xffff
        s_mov_b32 s74, 256
        s_mov_b32 s75, 0x20000
        """)
        for i in range(1, NS):
            e(f"s_sub_u32 s{sT}, s{sST+2*i}, s{sST}")
            e(f"v_mov_b32 v{20+i}, s{sT}")
        e("v_mov_b32 v2, 0")
        e("s_mov_b64 exec, 1")
        for i in range(1, NS):
            if i == 9: continue
            e(f"buffer_atomic_umax v{20+i}, v2, s[72:75], 0 offen offset:{4*i}")
    a.label("L_end")
    e("s_endpgm")
    a.label("L_code_end")
    hdr = HEADER + f"; @launch grid=(256,1,1) block=(512,1,1) lds={LDS_BYTES}\n"
    return hdr + f""".amdgcn_target "amdgcn-amd-amdhsa--gfx950"
.text
.globl {KN}
.p2align 8
.type {KN},@function
{KN}:
""" + a.text() + """.section .rodata,"a"
""" + kernel_desc(KN, 256, 102, 256)

if __name__ == "__main__":
    import argparse
    ap = argparse.ArgumentParser()
    ap.add_argument("--stamps", action="store_true")
    ap.add_argument("--dump", default=None)
    ap.add_argument("--stagest", action="store_true")
    ap.add_argument("--exp", default="")
    ap.add_argument("--until", type=int, default=0)
    ap.add_argument("--dbgwg", type=int, default=-1)
    ap.add_argument("--dbgwave", type=int, default=0)
    ap.add_argument("--pf", default="none")
    ap.add_argument("--nogpf", action="store_true")
    ap.add_argument("--nocode", action="store_true")
    ap.add_argument("--outfl", default="")
    ap.add_argument("--vred", action="store_true")
    args = ap.parse_args()
    OUTFL = args.outfl.replace("+", " ")
    if args.pf == "none": PF = False
    else: PF = True; PFS = PFS_TAB[args.pf]
    if args.nogpf: GPF = False
    if args.nocode: GPF_CODE = False
    print(gen(stamps=args.stamps, dump=args.dump, stagest=args.stagest, exp=args.exp, until=args.until, dbgwg=args.dbgwg, dbgwave=args.dbgwave))
```

```python
import sys
from asmlib import *
from lay2 import TKV, TQ

KN = "standalone__linear_kernel_hedgehog__prompt_kernel"
NST = 10
SLOT = 32768
R = 3
L_WQ = 98304
L_PHI = 149504
L_ZERO = 151552
L_CNT = 153600
L_KVF = 154624
L_PK = 32768
L_WO19 = 158464
LDS_BYTES = 163840
def L_WO(sg): return sg*5120 if sg <= 18 else L_WO19
WO_P1 = [0,1,2,3,4,5,13,14,15,16,17,18,19]
WO_P2 = [6,7,8,9,10,11,12]
WO_ALL1 = [0,1,2,3,4,5,13,14,15,16,17,18,19]
NCS = 4
WS_PART = 0x000000
WS_O = 0x100000
WS_RDY = 0x400000
WS_STAMP = 0x700000
WS_DBG = 0x800000
PF = False
DWAIT = False
VRED = True
OUTFL = ''
GPF = True
GPF_CODE = True
PFS_TAB = {
 'b':  {'pre': [('x',2),('kv',2)], 0: [('kv',5),('x',6)], 1: [('kv',8),('q',0),('q',1)], 3: [('wo',0),('wo',1)]},
 'e1': {'e': [('x',0),('kv',2),('code',0)], 'pre': [('x',4)], 0: [('kv',5),('x',8)], 1: [('kv',8)], 3: [('q',0)], 4: [('q',1)], 6: [('wo',0)], 7: [('wo',1)]},
 'e2': {'e': [('x',2),('kv',2),('code',0)], 0: [('kv',5),('x',6)], 1: [('kv',8)], 3: [('q',0)], 4: [('q',1)], 6: [('wo',0)], 7: [('wo',1)]},
 'e3': {'e': [('x',0),('kv',0),('code',0)], 'pre': [('x',4),('kv',3)], 0: [('kv',6),('x',8)], 1: [('kv',9)], 3: [('q',0)], 4: [('q',1)], 6: [('wo',0)], 7: [('wo',1)]},
 'e4': {'e': [('x',2),('kv',2),('code',0)], 'pre': [('x',6),('kv',5)], 0: [('kv',8)], 2: [('q',0)], 3: [('q',1)], 5: [('wo',0)], 6: [('wo',1)]},
 'e5': {'e': [('code',0)], 'pre': [('x',2),('kv',2)], 0: [('kv',5),('x',6)], 2: [('kv',8)], 4: [('q',0)], 5: [('q',1)], 7: [('wo',0)], 8: [('wo',1)]},
 'wo': {'e': [('code',0)], 4: [('q',0)], 5: [('q',1)], 7: [('wo',0)], 8: [('wo',1)]},
}
PFS = PFS_TAB['b']
LOG2E = 0x3fb8aa3b
NLOG2E = 0xbfb8aa3b
SPIN_G = 0x8000
SPIN_L = 0x80000

def gen(stamps=False, dump=None, stagest=False, exp='', until=0, dbgwg=-1, dbgwave=0):
    a = Asm(); e = a.e
    S_X, S_W, S_WS = 20, 24, 28
    S_A, S_B = 72, 76
    sWAVE, sW4, sRC, sHP, sBB = 32, 33, 34, 35, 36
    sT = 40
    sSOFX, sSOFW, sM0 = 52, 53, 54
    sNONCE = 55
    sL = 56
    sEX = 58
    sSPIN = 60
    sU, sV = 62, 63
    sST = 80
    NS = 11
    def sstamp(i):
        if stagest: e(f"s_memtime s[{sST+2*i}:{sST+2*i+1}]")
    def stamp(i):
        if stamps and not (stagest and i > 0): e(f"s_memtime s[{sST+2*i}:{sST+2*i+1}]")
    def rstamp(i):
        if stamps and not stagest: e(f"s_memrealtime s[{sST+2*i}:{sST+2*i+1}]")
    def srd(dst, ptr, nbytes):
        e(f"""
        s_mov_b32 s{dst}, s{ptr}
        s_and_b32 s{dst+1}, s{ptr+1}, 0xffff
        s_mov_b32 s{dst+2}, {nbytes}
        s_mov_b32 s{dst+3}, 0x20000
        """)
    def subsignal(idx, tmp=2):
        e(f"""
        v_mov_b32 v{tmp}, {L_CNT + 4*idx}
        v_mov_b32 v{tmp+1}, 1
        s_mov_b64 exec, 1
        ds_add_u32 v{tmp}, v{tmp+1}
        s_mov_b64 exec, -1
        """)
    def subwait(idx, target=4, tmp=2):
        lab = a.newlabel("SW")
        e(f"v_mov_b32 v{tmp}, {L_CNT + 4*idx}")
        e(f"s_mov_b32 s{sSPIN}, {SPIN_L}")
        a.label(lab)
        e(f"""
        s_sub_u32 s{sSPIN}, s{sSPIN}, 1
        s_cbranch_scc1 L_end
        ds_read_b32 v{tmp+1}, v{tmp}
        s_waitcnt lgkmcnt(0)
        v_readfirstlane_b32 s{sT}, v{tmp+1}
        s_nop 0
        s_cmp_lt_u32 s{sT}, {target}
        s_cbranch_scc1 {lab}
        """)
    def subbar(idx, target=4, tmp=2):
        subsignal(idx, tmp); subwait(idx, target, tmp)
    def dump_regs(regs, off):
        n = len(regs)
        e(f"""
        s_lshl_b32 s{sT}, s2, 3
        s_add_u32 s{sT}, s{sT}, s{sWAVE}
        s_mul_i32 s{sT}, s{sT}, {n*256}
        s_add_u32 s{sT}, s{sT}, {WS_DBG + off}
        v_lshlrev_b32 v2, 2, v0
        """)
        for i, r in enumerate(regs):
            e(f"buffer_store_dword v{r}, v2, s[{S_WS}:{S_WS+3}], s{sT} offen offset:{(i%16)*256}")
            if i % 16 == 15: e(f"s_add_u32 s{sT}, s{sT}, 4096")
        e("s_waitcnt vmcnt(0)")
    def softmax_pair(P0, P1, EP, EN, PH, tm):
        p = [P0 + i for i in range(16)] + [P1 + i for i in range(4)]
        tM, tN, tA, tB = tm, tm+1, tm+2, tm+4
        e(f"v_max3_f32 v{tM}, v{p[0]}, v{p[1]}, v{p[2]}")
        e(f"v_min3_f32 v{tN}, v{p[0]}, v{p[1]}, v{p[2]}")
        for i in range(3, 19, 2):
            e(f"v_max3_f32 v{tM}, v{tM}, v{p[i]}, v{p[i+1]}")
            e(f"v_min3_f32 v{tN}, v{tN}, v{p[i]}, v{p[i+1]}")
        e(f"v_max_f32 v{tM}, v{tM}, v{p[19]}")
        e(f"v_min_f32 v{tN}, v{tN}, v{p[19]}")
        e(f"v_mul_f32 v{tA}, {NLOG2E:#x}, v{tM}")
        e(f"v_mul_f32 v{tB}, {LOG2E:#x}, v{tN}")
        for i in range(20):
            e(f"v_fma_f32 v{EP+i}, v{p[i]}, s{sL}, v{tA}")
            e(f"v_fma_f32 v{EN+i}, -v{p[i]}, s{sL}, v{tB}")
        for i in range(20):
            e(f"v_exp_f32 v{EP+i}, v{EP+i}")
            e(f"v_exp_f32 v{EN+i}, v{EN+i}")
        e(f"v_add_f32 v{tA}, v{EP}, v{EP+1}"); e(f"v_add_f32 v{tB}, v{EN}, v{EN+1}")
        e(f"v_add_f32 v{tA+1}, v{EP+2}, v{EP+3}"); e(f"v_add_f32 v{tB+1}, v{EN+2}, v{EN+3}")
        for i in range(4, 20, 2):
            e(f"v_add_f32 v{tA}, v{tA}, v{EP+i}"); e(f"v_add_f32 v{tB}, v{tB}, v{EN+i}")
            e(f"v_add_f32 v{tA+1}, v{tA+1}, v{EP+i+1}"); e(f"v_add_f32 v{tB+1}, v{tB+1}, v{EN+i+1}")
        e(f"v_add_f32 v{tA}, v{tA}, v{tA+1}")
        e(f"v_add_f32 v{tB}, v{tB}, v{tB+1}")
        e(f"v_rcp_f32 v{tA}, v{tA}")
        e(f"v_rcp_f32 v{tB}, v{tB}")
        e("s_nop 0")
        for i in range(10):
            e(f"v_mul_f32 v{EP+2*i}, v{EP+2*i}, v{tA}"); e(f"v_mul_f32 v{EP+2*i+1}, v{EP+2*i+1}, v{tA}")
            e(f"v_mul_f32 v{EN+2*i}, v{EN+2*i}, v{tB}"); e(f"v_mul_f32 v{EN+2*i+1}, v{EN+2*i+1}, v{tB}")
            e(f"v_cvt_pk_bf16_f32 v{PH+i}, v{EP+2*i}, v{EP+2*i+1}")
            e(f"v_cvt_pk_bf16_f32 v{PH+10+i}, v{EN+2*i}, v{EN+2*i+1}")
    def lane_decomp32(vG, vrp, vc, vQ, vhh):
        e(f"""
        v_lshrrev_b32 v{vG}, 4, v0
        v_bfe_u32 v{vrp}, v0, 2, 2
        v_and_b32 v{vc}, 3, v0
        v_and_b32 v{vQ}, 1, v{vG}
        v_lshlrev_b32 v{vQ}, 1, v{vQ}
        v_lshrrev_b32 v{vhh}, 1, v{vc}
        v_add_u32 v{vQ}, v{vQ}, v{vhh}
        v_and_b32 v{vhh}, 1, v{vc}
        """)
    def wphi_frags(WF, va, t):
        vG, vrp, vc, vQ, vhh = t, t+1, t+2, t+3, t+4
        lane_decomp32(vG, vrp, vc, vQ, vhh)
        e(f"""
        v_mul_u32_u24 v{t+5}, 800, v{vhh}
        v_mul_u32_u24 v{t+6}, 40, v{vrp}
        v_add_u32 v{t+5}, v{t+5}, v{t+6}
        v_lshlrev_b32 v{t+6}, 3, v{vQ}
        v_add_u32 v{t+5}, v{t+5}, v{t+6}
        v_add_u32 v{t+5}, {L_PHI}, v{t+5}
        v_lshrrev_b32 v{t+6}, 1, v{vG}
        v_mov_b32 v{va+1}, {L_ZERO}
        v_cmp_eq_u32 vcc, v{t+6}, v{vhh}
        s_nop 1
        v_cndmask_b32 v{va}, v{va+1}, v{t+5}, vcc
        v_cmp_eq_u32 s[{sEX}:{sEX+1}], 0, v{vQ}
        s_nop 1
        s_and_b64 vcc, vcc, s[{sEX}:{sEX+1}]
        v_add_u32 v{t+5}, 32, v{t+5}
        s_nop 0
        v_cndmask_b32 v{va+1}, v{va+1}, v{t+5}, vcc
        """)
        for u in range(2):
            for step in range(3):
                for rd in range(2):
                    d = WF + u*12 + step*4 + 2*rd
                    if step == 2 and rd == 1:
                        e(f"v_mov_b32 v{d}, 0"); e(f"v_mov_b32 v{d+1}, 0")
                    else:
                        e(f"ds_read_b64_tr_b16 v[{d}:{d+1}], v{va+u} offset:{(8*step+4*rd)*40}")
    def feature_map(SRC, WF, P0, P1):
        for step in range(3):
            for u, P in ((0, P0), (1, P1)):
                c = "0" if step == 0 else f"v[{P}:{P+15}]"
                e(f"v_mfma_f32_32x32x16_bf16 v[{P}:{P+15}], v[{WF+u*12+step*4}:{WF+u*12+step*4+3}], v[{SRC+4*step}:{SRC+4*step+3}], {c}")
    def xfrag_addr(vBA, t):
        e(f"""
        v_and_b32 v{t}, 31, v0
        v_lshrrev_b32 v{t+1}, 5, v0
        v_bfe_u32 v{t+2}, v{t}, 1, 3
        v_xor_b32 v{t+2}, v{t+2}, v{t+1}
        v_lshlrev_b32 v{t+2}, 4, v{t+2}
        s_lshl_b32 s{sT}, s{sW4}, 5
        v_add_u32 v{t}, s{sT}, v{t}
        v_lshlrev_b32 v{t}, 7, v{t}
        v_add_u32 v{vBA}, v{t}, v{t+2}
        v_xor_b32 v{vBA+1}, 32, v{vBA}
        v_xor_b32 v{vBA+2}, 64, v{vBA}
        v_xor_b32 v{vBA+3}, 96, v{vBA}
        """)
    class Base:
        def __init__(self, regs): self.regs = regs; self.cur = 0
        def set(self, s):
            so = (s % R) * SLOT
            want = (so // 65536) * 65536
            if want != self.cur:
                d = (want - self.cur) & 0xffffffff
                for r in self.regs: e(f"v_add_u32 v{r}, {d}, v{r}")
                self.cur = want
            return so - self.cur
    def wo_setup(vWO, t):
        e(f"""
        v_mul_u32_u24 v{t}, 26, v0
        v_lshrrev_b32 v{t}, 8, v{t}          ; l/10 for l<64
        v_mul_u32_u24 v{t+1}, 10, v{t}
        v_sub_u32 v{t+1}, v0, v{t+1}
        v_lshlrev_b32 v{t+1}, 4, v{t+1}
        v_mul_u32_u24 v{t}, 1280, v{t}
        v_add_u32 v{vWO}, v{t}, v{t+1}
        v_cmp_gt_u32 vcc, 40, v0
        s_lshr_b32 s{sU}, s{sHP}, 1
        s_mul_i32 s{sU}, s{sU}, 160
        s_mul_i32 s{sV}, s{sW4}, {40*1280}
        s_add_u32 s{sU}, s{sU}, s{sV}        ; + G*40 rows
        s_lshr_b32 s{sV}, s{sW4}, 1
        s_lshl_b32 s{sV}, s{sV}, 4
        s_and_b32 s{sT}, s{sW4}, 1
        s_lshl_b32 s{sT}, s{sT}, 2
        s_add_u32 s{sV}, s{sV}, s{sT}
        s_mul_i32 s{sV}, s{sV}, 160          ; pi0*160
        s_mov_b64 s[{sEX}:{sEX+1}], vcc
        """)
    def wo_dma(sg, rd, vWO):
        blk, c5 = divmod(sg, 5)
        if c5 < 4: row = 160*blk + [0, 8, 20, 28][c5] + 4*rd
        else: row = 160*blk + 16 + 20*rd
        e(f"s_add_u32 m0, s{sV}, {L_WO(sg) + rd*8*160}")
        e(f"s_add_u32 s{sT}, s{sU}, {row*1280}")
        e(f"buffer_load_dwordx4 v{vWO}, s[{S_B}:{S_B+3}], s{sT} offen lds")

    e(f"""
    s_load_dwordx8 s[4:11], s[0:1], 0
    s_load_dwordx4 s[12:15], s[0:1], 32
    s_load_dwordx2 s[16:17], s[0:1], 48
    s_cmp_ge_u32 s2, 256
    s_cbranch_scc1 L_end
    """)
    if 'half' in exp:
        e("s_bitcmp1_b32 s2, 6")
        e("s_cbranch_scc1 L_end")
    if 'quarter' in exp:
        e("s_and_b32 s40, s2, 0x60")
        e("s_cmp_lg_u32 s40, 0")
        e("s_cbranch_scc1 L_end")
    stamp(0); rstamp(9)
    if until: e("s_memrealtime s[98:99]")
    e(f"""
    v_lshrrev_b32 v1, 6, v0
    v_and_b32 v0, 63, v0
    s_and_b32 s{sT}, s2, 7
    s_lshr_b32 s{sT+1}, s2, 3
    v_readfirstlane_b32 s{sWAVE}, v1
    s_lshr_b32 s{sRC}, s{sT}, 1
    s_lshl_b32 s{sRC}, s{sRC}, 2
    s_lshr_b32 s{sT+2}, s{sT+1}, 3
    s_add_u32 s{sRC}, s{sRC}, s{sT+2}
    s_and_b32 s{sHP}, s{sT}, 1
    s_lshl_b32 s{sHP}, s{sHP}, 3
    s_and_b32 s{sT+2}, s{sT+1}, 7
    s_add_u32 s{sHP}, s{sHP}, s{sT+2}
    s_and_b32 s{sW4}, s{sWAVE}, 3
    s_mul_i32 s{sBB}, s{sHP}, 5
    s_and_b32 s{sBB}, s{sBB}, 7
    s_sub_u32 s{sBB}, 8, s{sBB}
    s_min_u32 s{sBB}, s{sBB}, 4
    s_mov_b32 s{sL}, {LOG2E:#x}
    s_cmp_ge_u32 s{sWAVE}, 4
    s_cbranch_scc1 L_lq
    """)
    if GPF:
        e(f"""
        s_lshl_b32 s{sT}, s{sW4}, 6
        v_add_u32 v2, s{sT}, v0                 ; n = 64*w + lane  (0..255)
        s_mul_i32 s{sT}, s2, 80
        s_mul_i32 s{sT+1}, s2, 75
        s_mul_i32 s{sT+2}, s2, 25
        s_sub_u32 s{sT+1}, s{sT+1}, 80
        s_sub_u32 s{sT+2}, s{sT+2}, 155
        s_waitcnt lgkmcnt(0)
        v_mov_b32 v3, s{sT+2}
        v_mov_b32 v4, s10
        v_mov_b32 v5, s11
        v_mov_b32 v6, s{sT+1}
        v_mov_b32 v7, s6
        v_mov_b32 v8, s7
        v_cmp_gt_u32 vcc, 155, v2
        s_nop 1
        v_cndmask_b32 v3, v3, v6, vcc
        v_cndmask_b32 v4, v4, v7, vcc
        v_cndmask_b32 v5, v5, v8, vcc
        v_mov_b32 v6, s{sT}
        v_mov_b32 v7, s4
        v_mov_b32 v8, s5
        v_cmp_gt_u32 vcc, 80, v2
        s_nop 1
        v_cndmask_b32 v3, v3, v6, vcc
        v_cndmask_b32 v4, v4, v7, vcc
        v_cndmask_b32 v5, v5, v8, vcc
        v_add_u32 v3, v3, v2
        v_lshlrev_b32 v3, 7, v3
        v_add_co_u32 v4, vcc, v4, v3
        s_nop 1
        v_addc_co_u32 v5, vcc, 0, v5, vcc
        """)
        if GPF_CODE:
            e(f"""
            s_getpc_b64 s[{sT+4}:{sT+5}]
L_pc_ref:
            s_min_u32 s{sT+3}, s2, (L_code_end-{KN})/128
            s_lshl_b32 s{sT+3}, s{sT+3}, 7
            s_sub_u32 s{sT+4}, s{sT+4}, L_pc_ref-{KN}
            s_subb_u32 s{sT+5}, s{sT+5}, 0
            s_add_u32 s{sT+4}, s{sT+4}, s{sT+3}
            s_addc_u32 s{sT+5}, s{sT+5}, 0
            s_min_u32 s{sT+3}, s2, 199
            s_lshl_b32 s{sT+3}, s{sT+3}, 7
            s_add_u32 s{sT+6}, s8, s{sT+3}
            s_addc_u32 s{sT+7}, s9, 0
            s_cmp_lg_u32 s{sW4}, 2
            s_cbranch_scc1 L_gpf_go
            v_writelane_b32 v4, s{sT+4}, 52
            v_writelane_b32 v5, s{sT+5}, 52
            v_writelane_b32 v4, s{sT+6}, 53
            v_writelane_b32 v5, s{sT+7}, 53
L_gpf_go:
            v_cmp_gt_u32 vcc, 182, v2
            """)
        else:
            e("v_cmp_gt_u32 vcc, 180, v2")
        e(f"""
        s_nop 1
        s_and_saveexec_b64 s[{sT}:{sT+1}], vcc
        s_cbranch_execz L_gpf_done
        global_load_dword v48, v[4:5], off
L_gpf_done:
        s_mov_b64 exec, -1
        """)

    ACC = 64; FB = [112, 128]; WF = 144; KB = 168; VB = 180; PK0 = 192; PK1 = 208; EP = 224; EN = 112; PH = 64; TM = 244
    vAA = 10; vBA = 14
    vPA, vPB = 34, 35
    sPART = 64
    e(f"""
    s_lshl_b32 s{sPART}, s{sHP}, 4
    s_add_u32 s{sPART}, s{sPART}, s{sRC}
    s_lshl_b32 s{sPART}, s{sPART}, 12
    s_add_u32 s{sPART}, s{sPART}, {WS_PART}
    s_waitcnt lgkmcnt(0)
    """)
    srd(S_WS, 16, 0x10000000)
    srd(S_A, 14, 256)
    if PF:
        srd(S_X, 6, 640*3840)
        e(f"""
        v_mov_b32 v37, 0x40000000
        s_lshr_b32 s{sT+1}, s2, 3               ; j
        s_and_b32 s{sT+2}, s2, 1
        s_mul_i32 s{sT+2}, s{sT+2}, 640         ; column half (bytes)
        v_mov_b32 v3, 0x40000000
        s_cmp_eq_u32 s{sW4}, 0
        s_cbranch_scc1 L_t_x
        s_cmp_eq_u32 s{sW4}, 1
        s_cbranch_scc1 L_t_kv
        v_mul_u32_u24 v2, 52, v0
        v_lshrrev_b32 v2, 8, v2                 ; l/5
        v_mul_u32_u24 v4, 5, v2
        v_sub_u32 v4, v0, v4
        v_lshlrev_b32 v4, 7, v4                 ; li*128
        s_mul_i32 s{sT+3}, s{sT+1}, 10
        v_add_u32 v2, s{sT+3}, v2               ; row
        s_mov_b32 s{sT+4}, 3840
        s_cmp_eq_u32 s{sW4}, 2
        s_cselect_b32 s{sT+4}, s{sT+4}, 1280
        v_mul_lo_u32 v2, v2, s{sT+4}
        v_add3_u32 v37, v2, v4, s{sT+2}
        v_cmp_gt_u32 vcc, 50, v0
        s_nop 1
        v_cndmask_b32 v37, v3, v37, vcc
        s_cmp_eq_u32 s{sW4}, 2
        s_cbranch_scc1 L_t_done
        """)
        srd(S_X, 10, 640*1280)
        e(f"""
        s_branch L_t_done
L_t_kv:
        v_mul_u32_u24 v2, 13, v0
        v_lshrrev_b32 v2, 8, v2                 ; q = l/20
        v_mul_u32_u24 v4, 20, v2
        v_sub_u32 v4, v0, v4                    ; l%20
        v_mul_u32_u24 v5, 26, v4
        v_lshrrev_b32 v5, 8, v5                 ; r = (l%20)/10
        v_mul_u32_u24 v6, 10, v5
        v_sub_u32 v4, v4, v6                    ; l%10
        v_mul_u32_u24 v6, 52, v4
        v_lshrrev_b32 v6, 8, v6                 ; ty
        v_mul_u32_u24 v7, 5, v6
        v_sub_u32 v4, v4, v7                    ; li
        v_lshlrev_b32 v4, 7, v4
        v_lshlrev_b32 v2, 6, v2                 ; 64q
        v_add_u32 v2, v2, v5
        s_lshl_b32 s{sT+3}, s{sT+1}, 1
        v_add_u32 v2, s{sT+3}, v2               ; row
        v_mul_u32_u24 v2, 3840, v2
        v_add_u32 v6, 1, v6
        v_mul_u32_u24 v6, 1280, v6
        v_add3_u32 v2, v2, v4, v6
        v_add_u32 v37, s{sT+2}, v2
        v_cmp_gt_u32 vcc, 60, v0
        s_nop 1
        v_cndmask_b32 v37, v3, v37, vcc
        s_branch L_t_done
L_t_x:
        v_and_b32 v2, 15, v0
        s_lshr_b32 s{sT+2}, s2, 1
        s_and_b32 s{sT+2}, s{sT+2}, 3
        s_lshl_b32 s{sT+2}, s{sT+2}, 9
        s_lshl_b32 s{sT+3}, s{sT+1}, 4
        s_add_u32 s{sT+2}, s{sT+2}, s{sT+3}
        v_add_u32 v2, s{sT+2}, v2
        v_mul_u32_u24 v2, 1280, v2
        v_lshrrev_b32 v4, 4, v0
        v_lshlrev_b32 v4, 7, v4
        v_add_u32 v37, v2, v4
        """)
        srd(S_X, 4, 2048*1280)
        a.label("L_t_done")
    def touch(wave, soff):
        if not PF: return
        lab = a.newlabel("TT")
        e(f"""
        s_cmp_lg_u32 s{sW4}, {wave}
        s_cbranch_scc1 {lab}
        s_mov_b32 s{sT}, {soff}
        buffer_load_dword v36, v37, s[{S_X}:{S_X+3}], s{sT} offen
{lab}:
        """)
    def code_touch():
        lab = a.newlabel("CT")
        e(f"""
        s_cmp_lg_u32 s{sW4}, 3
        s_cbranch_scc1 {lab}
        s_getpc_b64 s[{sT+4}:{sT+5}]
L_pc_ref:
        s_lshr_b32 s{sT+3}, s2, 3
        s_mul_i32 s{sT+3}, s{sT+3}, 7
        v_add_u32 v2, s{sT+3}, v0
        v_min_u32 v2, (L_code_end-{KN})/128, v2
        v_lshlrev_b32 v2, 7, v2
        s_sub_u32 s{sT+4}, s{sT+4}, L_pc_ref-{KN}
        s_subb_u32 s{sT+5}, s{sT+5}, 0
        v_mov_b32 v5, s{sT+5}
        v_add_co_u32 v4, vcc, s{sT+4}, v2
        s_nop 1
        v_addc_co_u32 v5, vcc, 0, v5, vcc
        v_cmp_gt_u32 vcc, 7, v0
        s_nop 1
        s_mov_b64 exec, vcc
        global_load_dword v47, v[4:5], off
        s_mov_b64 exec, -1
{lab}:
        """)
    def run_sched(when):
        if not PF: return
        for kind, arg in PFS.get(when, []):
            if kind == 'x': touch(0, arg*128)
            elif kind == 'kv': touch(1, arg*64*3840)
            elif kind == 'q': touch(2, arg*320*3840)
            elif kind == 'wo': touch(3, arg*320*1280)
            elif kind == 'code': code_touch()
    run_sched('e')
    e(f"""
    s_or_b32 s{sT}, s{sRC}, s{sHP}
    s_or_b32 s{sT}, s{sT}, s{sW4}
    s_cmp_lg_u32 s{sT}, 0
    s_cbranch_scc1 L_kv_nn
    s_memrealtime s[{sT+4}:{sT+5}]
    s_waitcnt lgkmcnt(0)
    s_or_b32 s{sT+4}, s{sT+4}, 1
    v_mov_b32 v2, 0
    v_mov_b32 v3, s{sT+4}
    s_mov_b64 exec, 1
    buffer_store_dword v3, v2, s[{S_A}:{S_A+3}], 0 offen sc1
    s_mov_b64 exec, -1
L_kv_nn:
    """)
    e(f"""
    v_lshlrev_b32 v2, 4, v0
    s_lshl_b32 s{sT}, s{sW4}, 10
    s_add_u32 s{sT}, s{sT}, {L_ZERO}
    v_add_u32 v2, s{sT}, v2
    v_mov_b32 v24, 0
    v_mov_b32 v25, 0
    v_mov_b32 v26, 0
    v_mov_b32 v27, 0
    s_cmp_eq_u32 s{sW4}, 3
    s_cbranch_scc1 L_kv_nz
    ds_write_b128 v2, v[24:27]
L_kv_nz:
    """)
    lane_decomp32(2, 3, 4, 5, 6)
    e(f"""
    v_lshlrev_b32 v5, 3, v5          ; 8Q
    v_mul_u32_u24 v6, 5, v6          ; 5hh
    v_lshrrev_b32 v7, 1, v2
    v_lshlrev_b32 v7, 3, v7
    v_add_u32 v7, v7, v3             ; krow
    v_lshlrev_b32 v7, 8, v7
    v_add_u32 v7, 16384, v7
    v_lshlrev_b32 v8, 2, v3          ; 4rp
    s_sub_u32 s{sT+1}, 4, s{sBB}
    """)
    for T in range(3):
        immc = 0; imms = 0
        for Q in range(4):
            q = TKV[T][Q] or TKV[T][0]
            immc |= q[1] << (8*Q); imms |= (8*q[0]) << (8*Q)
        e(f"""
        s_mov_b32 s{sT}, {immc}
        v_bfe_u32 v18, s{sT}, v5, 8
        v_add_u32 v18, v18, v6
        v_lshrrev_b32 v19, 1, v18
        v_mov_b32 v9, s{sT+1}
        v_cmp_le_u32 vcc, s{sBB}, v19
        v_mov_b32 v20, 0
        s_nop 0
        v_cndmask_b32 v9, v20, v9, vcc
        v_add_u32 v19, v19, v9
        s_mov_b32 s{sT}, {imms}
        v_bfe_u32 v9, s{sT}, v5, 8
        v_add3_u32 v19, v19, v9, v8
        v_and_b32 v19, 15, v19
        v_lshlrev_b32 v19, 4, v19
        v_and_b32 v18, 1, v18
        v_lshlrev_b32 v18, 3, v18
        v_add3_u32 v{vAA+T}, v7, v19, v18
        """)
    xfrag_addr(vBA, 2)
    def kv_reads(kk, buf, sb):
        b = FB[buf]
        e(f"ds_read_b128 v[{b+12}:{b+15}], v{vBA+kk} offset:{sb}")
        for T in range(3):
            for rd in range(2):
                e(f"ds_read_b64_tr_b16 v[{b+4*T+2*rd}:{b+4*T+2*rd+1}], v{vAA+T} offset:{sb+(16*kk+4*rd)*256}")
    def kv_mfmas(buf, first=False):
        b = FB[buf]
        for T in range(3):
            c = "0" if first else f"v[{ACC+16*T}:{ACC+16*T+15}]"
            e(f"v_mfma_f32_32x32x16_bf16 v[{ACC+16*T}:{ACC+16*T+15}], v[{b+4*T}:{b+4*T+3}], v[{b+12}:{b+15}], {c}")
    run_sched('pre')
    e("s_waitcnt lgkmcnt(0)")
    stamp(1)
    e("s_barrier")
    stamp(2)
    vNC, vRF = 38, 42
    vRA = 18; vKA = 26; vKB = 28
    def hoist_pk():
        e(f"""
        v_and_b32 v2, 31, v0
        v_lshrrev_b32 v3, 5, v0
        v_lshlrev_b32 v3, 14, v3
        s_lshl_b32 s{sT}, s{sW4}, 5
        v_add_u32 v2, s{sT}, v2
        v_lshlrev_b32 v2, 7, v2
        v_add_u32 v2, v2, v3
        v_add_u32 v2, {L_PK}, v2
        v_and_b32 v3, 7, v0
        v_bfe_u32 v4, v0, 3, 1
        v_lshlrev_b32 v4, 2, v4
        v_xor_b32 v3, v3, v4
        v_lshlrev_b32 v3, 4, v3
        v_add_u32 v{vRA}, v2, v3
        """)
        for u in range(1, 8): e(f"v_xor_b32 v{vRA+u}, {16*u}, v{vRA}")

    def hoist_kv():
        e(f"""
        v_lshrrev_b32 v2, 4, v0            ; G
        v_bfe_u32 v3, v0, 2, 2             ; rp
        v_and_b32 v4, 3, v0                ; c
        v_lshlrev_b32 v5, 3, v2
        v_add_u32 v5, v5, v3
        v_lshlrev_b32 v5, 7, v5
        s_lshr_b32 s{sT}, s{sW4}, 1
        s_lshl_b32 s{sT}, s{sT}, 14
        s_add_u32 s{sT}, s{sT}, {L_PK}
        v_add_u32 v5, s{sT}, v5
        v_and_b32 v6, 1, v2
        v_lshlrev_b32 v6, 2, v6
        v_xor_b32 v6, v6, v3
        v_lshrrev_b32 v7, 1, v4
        v_and_b32 v8, 1, v4
        v_lshlrev_b32 v8, 3, v8
        v_add_u32 v5, v5, v8
        s_and_b32 s{sT+1}, s{sW4}, 1
        v_add_u32 v9, 5, v7
        v_mov_b32 v40, 7
        s_cmp_eq_u32 s{sT+1}, 1
        s_cselect_b64 vcc, -1, 0
        v_cndmask_b32 v9, v9, v40, vcc
        v_xor_b32 v9, v9, v6
        v_lshlrev_b32 v9, 4, v9
        v_add_u32 v{vKA}, v5, v9
        v_xor_b32 v{vKA+1}, 64, v{vKA}
        v_add_u32 v{vKA+1}, 512, v{vKA+1}
        """)
        for ct in range(3):
            if ct < 2: e(f"v_add_u32 v9, {2*ct}, v7")
            else: e(f"v_mov_b32 v9, 4")
            e(f"""
            v_xor_b32 v9, v9, v6
            v_lshlrev_b32 v9, 4, v9
            v_add_u32 v{vKB+2*ct}, v5, v9
            v_xor_b32 v{vKB+2*ct+1}, 64, v{vKB+2*ct}
            v_add_u32 v{vKB+2*ct+1}, 512, v{vKB+2*ct+1}
            """)
        e(f"""
        v_lshrrev_b32 v2, 4, v0            ; g
        v_and_b32 v3, 15, v0
        s_lshr_b32 s{sT}, s{sW4}, 1
        s_mul_i32 s{sT}, s{sT}, 6
        s_and_b32 s{sT+1}, s{sW4}, 1
        s_lshl_b32 s{sT+2}, s{sT+1}, 2
        s_add_u32 s{sT}, s{sT}, s{sT+2}
        v_add_u32 v4, s{sT}, v2
        v_mul_u32_u24 v4, 40, v4
        v_add_u32 v4, v4, v3
        v_lshlrev_b32 v4, 3, v4
        v_mov_b32 v5, 0x40000000
        s_lshl_b32 s{sT+2}, s{sT+1}, 1
        s_sub_u32 s{sT+2}, 4, s{sT+2}
        v_cmp_gt_u32 vcc, s{sT+2}, v2
        s_nop 1
        v_cndmask_b32 v{vPA}, v5, v4, vcc
        v_cmp_gt_u32 vcc, 8, v3
        s_nop 1
        v_cndmask_b32 v{vPB}, v5, v{vPA}, vcc
        """)

    base = Base([vAA, vAA+1, vAA+2, vBA, vBA+1, vBA+2, vBA+3])
    sb = base.set(0)
    kv_reads(0, 0, sb)
    for s in range(NST):
        for kk in range(3):
            kv_reads(kk+1, (kk+1) & 1, sb)
            e("s_waitcnt lgkmcnt(7)")
            kv_mfmas(kk & 1, first=(s == 0 and kk == 0))
        run_sched(s)
        if s == 0:
            e(f"v_mov_b32 v{vNC}, 0")
            e(f"buffer_load_dword v{vNC+1}, v{vNC}, s[{S_A}:{S_A+3}], 0 offen sc1")
        if s == 1: wphi_frags(WF, 18, 22)
        if s == 4: hoist_pk()
        if s == 5: hoist_kv()
        if s == 2 and 'p1only' not in exp:
            lab = a.newlabel("NF"); lab2 = a.newlabel("NC")
            e(f"""
            s_waitcnt vmcnt(0)
            v_readfirstlane_b32 s{sNONCE}, v{vNC+1}
            s_mov_b32 s{sSPIN}, {SPIN_G}
            s_cmp_lg_u32 s{sNONCE}, 0
            s_cbranch_scc1 {lab}
{lab2}:
            s_sub_u32 s{sSPIN}, s{sSPIN}, 1
            s_cbranch_scc1 L_end
            buffer_load_dword v{vNC+1}, v{vNC}, s[{S_A}:{S_A+3}], 0 offen sc1
            s_waitcnt vmcnt(0)
            v_readfirstlane_b32 s{sNONCE}, v{vNC+1}
            s_nop 0
            s_cmp_eq_u32 s{sNONCE}, 0
            s_cbranch_scc1 {lab2}
{lab}:
            """)
        if s == 3:
            lab = a.newlabel("RD")
            e(f"""
            s_cmp_lg_u32 s{sW4}, 0
            s_cbranch_scc1 {lab}
            s_add_u32 s{sT}, s{sPART}, 3840
            v_mov_b32 v2, 0
            v_mov_b32 v3, s{sNONCE}
            s_mov_b64 exec, 1
            buffer_store_dword v3, v2, s[{S_WS}:{S_WS+3}], s{sT} offen sc1
            s_mov_b64 exec, -1
{lab}:
            """)
        if s == 7:
            e(f"""
            v_and_b32 v2, 15, v0
            s_lshl_b32 s{sT}, s{sHP}, 4
            v_add_u32 v3, s{sT}, v2            ; hp*16 + r
            v_lshlrev_b32 v4, 4, v2
            v_add_u32 v4, s{sRC}, v4           ; h'*16 + rc
            v_bfe_u32 v5, v0, 4, 1
            v_cmp_eq_u32 vcc, 0, v5
            s_mov_b32 s{sT+1}, {WS_PART + 3840}
            s_nop 0
            v_cndmask_b32 v3, v4, v3, vcc
            v_lshlrev_b32 v{vRF}, 12, v3
            buffer_load_dword v{vRF+1}, v{vRF}, s[{S_WS}:{S_WS+3}], s{sT+1} offen sc1
            """)
        e("s_waitcnt lgkmcnt(0)")
        if s + 1 < NST: e("s_barrier")
        sstamp(s+1)
        if s + 1 < NST:
            sb = base.set(s+1)
            kv_reads(0, 0, sb)
        kv_mfmas(1)
    stamp(3)
    if 'p1only' in exp: e("s_branch L_fin")
    loc = {}
    for T, qs in enumerate(TKV):
        for Q, q in enumerate(qs):
            if q is not None: loc[q] = ACC + 16*T + 4*Q
    e("s_nop 9")
    if dump == "kvacc":
        e("s_nop 7"); dump_regs([loc[(sg, j)] + x for sg in range(2) for j in range(5) for x in range(4)], 0)
    for j in range(5):
        e(f"v_cvt_pk_bf16_f32 v{KB+2*j}, v{loc[(0,j)]}, v{loc[(0,j)]+1}")
        e(f"v_cvt_pk_bf16_f32 v{KB+2*j+1}, v{loc[(0,j)]+2}, v{loc[(0,j)]+3}")
    e(f"v_mov_b32 v{KB+10}, 0"); e(f"v_mov_b32 v{KB+11}, 0")
    e("s_nop 0")
    feature_map(KB, WF, PK0, PK1)
    for j in range(5):
        e(f"v_cvt_pk_bf16_f32 v{VB+2*j}, v{loc[(1,j)]}, v{loc[(1,j)]+1}")
        e(f"v_cvt_pk_bf16_f32 v{VB+2*j+1}, v{loc[(1,j)]+2}, v{loc[(1,j)]+3}")
    e(f"v_mov_b32 v{VB+10}, 0x3f80"); e(f"v_mov_b32 v{VB+11}, 0")
    for u in range(3):
        e(f"ds_write_b128 v{vRA+5+u}, v[{VB+4*u}:{VB+4*u+3}]")
    e("s_nop 7")
    e("s_nop 3")
    if dump == "pk":
        dump_regs([PK0+i for i in range(16)] + [PK1+i for i in range(4)], 0)
    softmax_pair(PK0, PK1, EP, EN, PH, TM)
    if dump == "phik": dump_regs([PH+i for i in range(20)], 0)
    for u in range(5):
        e(f"ds_write_b128 v{vRA+u}, v[{PH+4*u}:{PH+4*u+3}]")
    subbar(0)
    stamp(4)
    KD = 192; KF = 64
    for kap in range(4):
        f = KF + 16*kap
        for rd in range(2):
            e(f"ds_read_b64_tr_b16 v[{f+2*rd}:{f+2*rd+1}], v{vKA+rd} offset:{4096*kap}")
        for ct in range(3):
            for rd in range(2):
                e(f"ds_read_b64_tr_b16 v[{f+4+4*ct+2*rd}:{f+4+4*ct+2*rd+1}], v{vKB+2*ct+rd} offset:{4096*kap}")
    for kap in range(4):
        f = KF + 16*kap
        e(f"s_waitcnt lgkmcnt({min(15, 8*(3-kap))})")
        for ct in range(3):
            c = "0" if kap == 0 else f"v[{KD+4*ct}:{KD+4*ct+3}]"
            e(f"v_mfma_f32_16x16x32_bf16 v[{KD+4*ct}:{KD+4*ct+3}], v[{f}:{f+3}], v[{f+4+4*ct}:{f+4+4*ct+3}], {c}")
    subsignal(1)
    vWO = 40
    srd(S_B, 10, 640*1280)
    wo_setup(vWO, 2)
    for ct in range(3):
        e(f"v_cvt_pk_bf16_f32 v{KD+16+2*ct}, v{KD+4*ct}, v{KD+4*ct+1}")
        e(f"v_cvt_pk_bf16_f32 v{KD+16+2*ct+1}, v{KD+4*ct+2}, v{KD+4*ct+3}")
    for ct in range(3):
        e(f"v_min_u32 v{KD+16+2*ct}, -2, v{KD+16+2*ct}")
    for ct in range(3):
        e(f"buffer_store_dwordx2 v[{KD+16+2*ct}:{KD+16+2*ct+1}], v{vPA if ct < 2 else vPB}, s[{S_WS}:{S_WS+3}], s{sPART} offen offset:{128*ct} sc1")
    stamp(5)
    lab = a.newlabel("RC"); lab2 = a.newlabel("RP")
    e(f"""
    s_waitcnt vmcnt(3)
    s_mov_b32 s{sSPIN}, {SPIN_G}
    s_mov_b32 s{sT+1}, {WS_PART + 3840}
    v_cmp_ne_u32 vcc, s{sNONCE}, v{vRF+1}
    s_cbranch_vccz {lab}
{lab2}:
    s_sub_u32 s{sSPIN}, s{sSPIN}, 1
    s_cbranch_scc1 L_end
    buffer_load_dword v{vRF+1}, v{vRF}, s[{S_WS}:{S_WS+3}], s{sT+1} offen sc1
    s_waitcnt vmcnt(0)
    v_cmp_ne_u32 vcc, s{sNONCE}, v{vRF+1}
    s_cbranch_vccnz {lab2}
{lab}:
    """)
    subwait(1, target=8)
    e(f"s_mov_b64 exec, s[{sEX}:{sEX+1}]")
    for sg in WO_P2:
        for rd in range(2): wo_dma(sg, rd, vWO)
    e("s_mov_b64 exec, -1")
    PL = 64; SUM = 128; IDA = 144; sMASK = 69; sMK = 70
    WO_PC = WO_ALL1[:NCS]; WO_PD = WO_ALL1[NCS:]
    e(f"""
    s_mov_b64 s[{sMK}:{sMK+1}], s[{sEX}:{sEX+1}]
    s_lshl_b32 s{sT+4}, s{sHP}, 16
    s_add_u32 s{sT+4}, s{sT+4}, {WS_PART}
    s_lshl_b32 s{sT}, s{sW4}, 6
    v_add_u32 v6, s{sT}, v0            ; tau
    v_lshlrev_b32 v7, 4, v6
    v_mov_b32 v4, 0x40000000
    v_cmp_gt_u32 vcc, 240, v6
    s_mov_b32 s{sT}, s{sT+4}
    s_mov_b32 s{sMASK}, 0xffff
    v_cndmask_b32 v7, v4, v7, vcc
    """)
    stamp(6)
    for r in range(16):
        e(f"buffer_load_dwordx4 v[{PL+4*r}:{PL+4*r+3}], v7, s[{S_WS}:{S_WS+3}], s{sT} offen sc1")
        e(f"s_add_u32 s{sT}, s{sT}, 4096")
    if VRED:
        for i in range(8): e(f"v_mov_b32 v{SUM+i}, 0")
        e(f"""
        v_mul_u32_u24 v4, 205, v6
        v_lshrrev_b32 v4, 12, v4           ; tau/20
        v_mul_u32_u24 v5, 20, v4
        v_sub_u32 v5, v6, v5               ; fp
        v_mul_u32_u24 v5, 96, v5
        v_mul_u32_u24 v8, 43, v4
        v_lshrrev_b32 v8, 8, v8            ; hd
        v_mul_u32_u24 v9, 6, v8
        v_sub_u32 v9, v4, v9               ; dq
        v_mul_u32_u24 v8, 1920, v8
        v_lshlrev_b32 v9, 3, v9
        v_add3_u32 v5, v5, v8, v9
        v_add_u32 v4, {L_KVF}, v5
        v_mov_b32 v9, {L_CNT + 512}
        v_cmp_gt_u32 vcc, 240, v6
        s_nop 1
        v_cndmask_b32 v4, v9, v4, vcc
        v_add_u32 v5, 48, v4
        """)
    else:
        e(f"""
        v_and_b32 v2, 15, v0
        v_lshrrev_b32 v3, 4, v0            ; G
        v_lshrrev_b32 v4, 3, v2            ; i>>3
        v_and_b32 v5, 7, v2                ; j*
        v_lshrrev_b32 v8, 1, v5            ; reg
        v_and_b32 v5, 1, v5
        v_lshlrev_b32 v5, 4, v5
        v_mov_b32 v9, 0x3f80
        v_lshlrev_b32 v9, v5, v9           ; 1.0 in the right half
        v_mov_b32 v13, 0
        """)
        for u in range(2):
            e(f"v_add_u32 v5, {2*u}, v4")
            e(f"v_cmp_eq_u32 s[{sT}:{sT+1}], v5, v3")
            for rr in range(4):
                e(f"v_cmp_eq_u32 vcc, {rr}, v8")
                e(f"s_nop 0")
                e(f"s_and_b64 vcc, vcc, s[{sT}:{sT+1}]")
                e(f"v_cndmask_b32 v{IDA+4*u+rr}, v13, v9, vcc")
        for i in range(8): e(f"v_mov_b32 v{SUM+i}, 0")
        e(f"""
        v_and_b32 v2, 15, v0
        v_lshrrev_b32 v3, 5, v0            ; g>>1
        v_lshlrev_b32 v3, 4, v3
        s_lshl_b32 s{sT}, s{sW4}, 6
        v_add3_u32 v2, v2, v3, s{sT}
        v_bfe_u32 v3, v0, 4, 1             ; p
        v_mul_u32_u24 v3, 48, v3
        """)
        for u in range(2):
            t = 4 + u
            e(f"""
            v_add_u32 v8, {32*u}, v2           ; tau
            v_mul_u32_u24 v9, 205, v8
            v_lshrrev_b32 v9, 12, v9           ; tau/20
            v_mul_u32_u24 v{t}, 20, v9
            v_sub_u32 v{t}, v8, v{t}           ; fp
            v_mul_u32_u24 v{t}, 96, v{t}
            v_mul_u32_u24 v13, 43, v9
            v_lshrrev_b32 v13, 8, v13          ; hd
            v_mul_u32_u24 v41, 6, v13
            v_sub_u32 v41, v9, v41             ; dq
            v_mul_u32_u24 v13, 1920, v13
            v_lshlrev_b32 v41, 3, v41
            v_add3_u32 v{t}, v{t}, v13, v41
            v_add3_u32 v{t}, v{t}, v3, 0
            v_add_u32 v{t}, {L_KVF}, v{t}
            v_mov_b32 v41, {L_CNT + 512}
            v_cmp_gt_u32 vcc, 240, v8
            s_nop 1
            v_cndmask_b32 v{t}, v41, v{t}, vcc
            """)

    def acc(r, lab):
        e(f"""
        v_max_u32 v13, v{PL+4*r}, v{PL+4*r+2}
        v_cmp_eq_u32 vcc, -1, v13
        s_cbranch_vccnz {lab}
        s_bitset0_b32 s{sMASK}, {r}
        """)
        if VRED:
            for i in range(4):
                src = PL + 4*r + i
                e(f"v_lshlrev_b32 v{SUM+8}, 16, v{src}")
                e(f"v_and_b32 v{SUM+9}, 0xffff0000, v{src}")
                e(f"v_add_f32 v{SUM+2*i}, v{SUM+2*i}, v{SUM+8}")
                e(f"v_add_f32 v{SUM+2*i+1}, v{SUM+2*i+1}, v{SUM+9}")
        else:
            for u in range(2):
                e(f"v_mfma_f32_16x16x32_bf16 v[{SUM+4*u}:{SUM+4*u+3}], v[{IDA+4*u}:{IDA+4*u+3}], v[{PL+4*r}:{PL+4*r+3}], v[{SUM+4*u}:{SUM+4*u+3}]")
        a.label(lab)
    nC = 2*len(WO_PC)
    if nC:
        e(f"s_mov_b64 exec, s[{sMK}:{sMK+1}]")
        for sg in WO_PC:
            for rd in range(2): wo_dma(sg, rd, vWO)
        e("s_mov_b64 exec, -1")
    for r in range(16):
        e(f"s_waitcnt vmcnt({15-r+nC})")
        if r == 0: e(f"v_max_u32 v{SUM+10}, v{PL}, v{PL+2}")
        else: e(f"v_max3_u32 v{SUM+10}, v{SUM+10}, v{PL+4*r}, v{PL+4*r+2}")
        for i in range(4):
            src = PL + 4*r + i
            e(f"v_lshlrev_b32 v{SUM+8}, 16, v{src}")
            e(f"v_and_b32 v{SUM+9}, 0xffff0000, v{src}")
            e(f"v_add_f32 v{SUM+2*i}, v{SUM+2*i}, v{SUM+8}")
            e(f"v_add_f32 v{SUM+2*i+1}, v{SUM+2*i+1}, v{SUM+9}")
    e(f"""
    v_cmp_eq_u32 vcc, -1, v{SUM+10}
    s_cbranch_vccz L_s1_done
    """)
    for i in range(8): e(f"v_mov_b32 v{SUM+i}, 0")
    for r in range(16):
        acc(r, f"L_s1a_{r}")
    e(f"""
    s_mov_b32 s{sSPIN}, {SPIN_G}
L_s1_loop:
    s_cmp_eq_u32 s{sMASK}, 0
    s_cbranch_scc1 L_s1_done
    s_sub_u32 s{sSPIN}, s{sSPIN}, 1
    s_cbranch_scc1 L_end
    """)
    for r in range(16):
        e(f"""
        s_bitcmp0_b32 s{sMASK}, {r}
        s_cbranch_scc1 L_s1l_{r}
        s_add_u32 s{sT}, s{sT+4}, {4096*r}
        buffer_load_dwordx4 v[{PL+4*r}:{PL+4*r+3}], v7, s[{S_WS}:{S_WS+3}], s{sT} offen sc1
L_s1l_{r}:
        """)
    e("s_waitcnt vmcnt(0)")
    for r in range(16):
        e(f"s_bitcmp0_b32 s{sMASK}, {r}")
        e(f"s_cbranch_scc1 L_s1b_{r}")
        acc(r, f"L_s1b_{r}")
    e("s_branch L_s1_loop")
    a.label("L_s1_done")
    e("s_nop 7")
    for u in range(2):
        e(f"v_cvt_pk_bf16_f32 v{SUM+12+2*u}, v{SUM+4*u}, v{SUM+4*u+1}")
        e(f"v_cvt_pk_bf16_f32 v{SUM+13+2*u}, v{SUM+4*u+2}, v{SUM+4*u+3}")
    e(f"ds_write_b64 v4, v[{SUM+12}:{SUM+13}]")
    e(f"ds_write_b64 v5, v[{SUM+14}:{SUM+15}]")
    subsignal(2)
    stamp(7)
    if DWAIT: subwait(5, tmp=8)
    e(f"s_mov_b64 exec, s[{sMK}:{sMK+1}]")
    for sg in WO_PD:
        for rd in range(2): wo_dma(sg, rd, vWO)
    e("s_mov_b64 exec, -1")
    vWA = 10
    e(f"""
    v_lshrrev_b32 v2, 4, v0            ; G
    v_bfe_u32 v3, v0, 2, 2             ; rp
    v_and_b32 v4, 3, v0                ; c
    v_lshrrev_b32 v5, 1, v2
    v_lshlrev_b32 v5, 4, v5            ; 16*(G>>1)
    v_and_b32 v6, 1, v2
    v_lshlrev_b32 v6, 2, v6            ; 4*(G&1)
    v_add3_u32 v5, v5, v6, v3
    v_mul_u32_u24 v5, 160, v5
    v_lshlrev_b32 v4, 3, v4
    v_add_u32 v{vWA}, v5, v4
    v_add_u32 v{vWA+1}, 0x10000, v{vWA}
    v_add_u32 v{vWA+2}, 0x20000, v{vWA}
    s_and_b32 s{sT}, s{sHP}, 1
    s_lshl_b32 s{sT}, s{sT}, 2
    s_add_u32 s{sT}, s{sT}, s{sW4}     ; tt
    s_lshl_b32 s{sT+1}, s{sRC}, 3
    s_add_u32 s{sT+6}, s{sT}, s{sT+1}
    s_mul_i32 s{sT+4}, s{sT+6}, 20480
    s_add_u32 s{sT+4}, s{sT+4}, {WS_O}
    v_and_b32 v2, 15, v0
    v_lshrrev_b32 v3, 2, v2
    v_mul_u32_u24 v3, 5120, v3
    v_and_b32 v4, 3, v2
    v_lshlrev_b32 v4, 8, v4
    v_add3_u32 v2, v3, v4, 0
    v_add_u32 v2, 4096, v2
    v_lshlrev_b32 v7, 4, v0            ; lane*16
    """)
    OF = 96; OD = 40; AB = [176, 196, 216, 236, 60, 16]
    NB = len(AB)
    def wo_reads(sg):
        L = L_WO(sg); reg = vWA + L // 65536; b = AB[sg % NB]
        assert (L // 65536) == ((L + 1408) // 65536)
        off = L % 65536
        for nt in range(5):
            for rd in range(2):
                e(f"ds_read_b64_tr_b16 v[{b+4*nt+2*rd}:{b+4*nt+2*rd+1}], v{reg} offset:{off + rd*1280 + nt*32}")
    e("s_waitcnt vmcnt(0)")
    def wo_reads_nt(sg, nt):
        L = L_WO(sg); reg = vWA + L // 65536; b = AB[sg % NB]
        off = L % 65536
        for rd in range(2):
            e(f"ds_read_b64_tr_b16 v[{b+4*nt+2*rd}:{b+4*nt+2*rd+1}], v{reg} offset:{off + rd*1280 + nt*32}")
    subbar(6, tmp=8)
    for sg in range(NB): wo_reads(sg)
    e(f"""
    s_mov_b32 s{sSPIN}, {SPIN_G}
L_s2_hint:
    s_sub_u32 s{sSPIN}, s{sSPIN}, 1
    s_cbranch_scc1 L_end
    buffer_load_dword v3, v2, s[{S_WS}:{S_WS+3}], s{sT+4} offen sc1
    s_waitcnt vmcnt(0)
    v_cmp_eq_u32 vcc, -1, v3
    s_cbranch_vccnz L_s2_hint
    """)
    stamp(8)
    e(f"s_mov_b32 s{sT}, s{sT+4}")
    for sg in range(20):
        d = OF + 4*sg
        e(f"buffer_load_dwordx4 v[{d}:{d+3}], v7, s[{S_WS}:{S_WS+3}], s{sT} offen offset:{(sg%4)*1024} sc1")
        if sg % 4 == 3: e(f"s_add_u32 s{sT}, s{sT}, 4096")
    retries = []
    for sg in range(20):
        e(f"s_waitcnt vmcnt({19-sg}) lgkmcnt({10 if (sg >= 1 and sg + NB - 1 < 20) else 0})")
        o = OF + 4*sg
        a.label(f"L_chk_{sg}")
        e(f"v_max_u32 v2, v{o}, v{o+2}")
        e(f"v_cmp_eq_u32 vcc, -1, v2")
        e(f"s_cbranch_vccnz L_rt_{sg}")
        retries.append(sg)
        for nt in range(5):
            D = OD + 4*nt
            c = "0" if sg == 0 else f"v[{D}:{D+3}]"
            b = AB[sg % NB] + 4*nt
            e(f"v_mfma_f32_16x16x32_bf16 v[{D}:{D+3}], v[{b}:{b+3}], v[{o}:{o+3}], {c}")
            if sg + NB < 20: wo_reads_nt(sg + NB, nt)
    srd(S_B, 12, 2048*1280)
    e(f"""
    v_and_b32 v2, 15, v0
    v_lshrrev_b32 v3, 4, v0
    s_lshl_b32 s{sT}, s{sT+6}, 4
    v_add_u32 v2, s{sT}, v2
    v_mul_u32_u24 v2, 1280, v2
    v_lshlrev_b32 v4, 3, v3
    v_add_u32 v2, v2, v4
    s_lshr_b32 s{sT}, s{sHP}, 1
    s_mul_i32 s{sT}, s{sT}, 160
    """)
    for nt in range(5):
        D = OD + 4*nt; P = 64 + 2*nt
        e(f"v_cvt_pk_bf16_f32 v{P}, v{D}, v{D+1}")
        e(f"v_cvt_pk_bf16_f32 v{P+1}, v{D+2}, v{D+3}")
    for nt in range(5):
        P = 64 + 2*nt
        e(f"buffer_store_dwordx2 v[{P}:{P+1}], v2, s[{S_B}:{S_B+3}], s{sT} offen offset:{32*nt} {OUTFL}")
    e("s_branch L_fin")
    for sg in retries:
        o = OF + 4*sg
        a.label(f"L_rt_{sg}")
        e(f"""
        s_sub_u32 s{sSPIN}, s{sSPIN}, 1
        s_cbranch_scc1 L_end
        s_add_u32 s{sT}, s{sT+4}, {sg*1024}
        buffer_load_dwordx4 v[{o}:{o+3}], v7, s[{S_WS}:{S_WS+3}], s{sT} offen sc1
        s_waitcnt vmcnt(0)
        s_branch L_chk_{sg}
        """)

    a.label("L_lq")
    vVX, vVW, vWQ = 10, 11, 12
    vBA = 14
    XF = 64
    e(f"""
    v_lshrrev_b32 v2, 3, v0
    s_lshl_b32 s{sT}, s{sW4}, 3
    v_add_u32 v2, s{sT}, v2
    v_mul_u32_u24 v2, 1280, v2
    v_lshrrev_b32 v3, 4, v0                 ; r = l>>4
    s_and_b32 s{sT}, s{sW4}, 1
    s_lshl_b32 s{sT}, s{sT}, 2
    v_add_u32 v4, s{sT}, v3
    v_and_b32 v5, 7, v0
    v_xor_b32 v5, v5, v4
    v_lshlrev_b32 v5, 4, v5
    v_add_u32 v{vVX}, v2, v5
    v_and_b32 v4, 15, v0
    v_lshlrev_b32 v5, 2, v3
    v_sub_u32 v4, v4, v5
    v_and_b32 v4, 15, v4                    ; pos
    v_lshrrev_b32 v5, 3, v4                 ; seg
    v_bfe_u32 v6, v4, 2, 1                  ; part
    v_and_b32 v7, 3, v4                     ; i4
    v_mul_lo_u32 v8, v6, s{sBB}
    v_add_u32 v8, v8, v7                    ; j
    v_mov_b32 v9, 5
    v_mov_b32 v13, s{sBB}
    v_cmp_eq_u32 vcc, 0, v6
    s_lshl_b32 s{sT}, s{sW4}, 2
    v_add_u32 v2, s{sT}, v3
    v_cndmask_b32 v9, v9, v13, vcc
    v_cmp_lt_u32 vcc, v8, v9
    v_mul_u32_u24 v2, 3840, v2
    v_add_u32 v5, 1, v5
    v_mul_u32_u24 v5, 1280, v5
    v_lshlrev_b32 v8, 4, v8
    v_add3_u32 v{vVW}, v2, v5, v8
    v_mov_b32 v7, 0x40000000
    v_cndmask_b32 v{vVW}, v7, v{vVW}, vcc
    s_mul_i32 s{sSOFX}, s{sRC}, {128*1280}
    s_mul_i32 s{sSOFW}, s{sHP}, 80
    s_lshl_b32 s{sM0}, s{sW4}, 10
    """)
    stamp(4)
    e("s_waitcnt lgkmcnt(0)")
    stamp(8)
    srd(S_X, 4, 2048*1280)
    srd(S_W, 6, 640*3840)
    rotmode = [x for x in exp.split(',') if x.startswith('rot')]
    if rotmode:
        rm = rotmode[0]
        if rm == 'rot1': e(f"s_and_b32 s65, s{sHP}, 1")
        elif rm == 'rot5': e(f"s_and_b32 s65, s{sHP}, 1"); e("s_mul_i32 s65, s65, 5")
        elif rm == 'rotrc': e(f"s_and_b32 s65, s{sRC}, 1")
        elif rm == 'rothp': e(f"s_and_b32 s65, s{sHP}, 7")
        elif rm == 'rotmix': e(f"s_xor_b32 s65, s{sHP}, s{sRC}"); e("s_and_b32 s65, s65, 1")
    def issue_stage(s):
        m0b = (s % R) * SLOT
        if rotmode:
            e(f"s_add_u32 s66, s65, {s}")
            e(f"s_sub_u32 s67, s66, 10")
            e(f"s_cmp_ge_u32 s66, 10")
            e(f"s_cselect_b32 s66, s67, s66")
            e(f"s_mul_i32 s67, s66, {64*3840}")
            e(f"s_lshl_b32 s66, s66, 7")
            e(f"s_add_u32 s66, s66, s{sSOFX}")
            e(f"s_add_u32 s67, s67, s{sSOFW}")
            for m in range(4):
                e(f"s_add_u32 m0, s{sM0}, {m0b + m*4096}")
                e(f"s_add_u32 s{sT}, s66, {m*32*1280}")
                e(f"buffer_load_dwordx4 v{vVX}, s[{S_X}:{S_X+3}], s{sT} offen lds")
                e(f"s_add_u32 m0, s{sM0}, {m0b + 16384 + m*4096}")
                e(f"s_add_u32 s{sT}, s67, {m*16*3840}")
                e(f"buffer_load_dwordx4 v{vVW}, s[{S_W}:{S_W+3}], s{sT} offen lds")
            return
        for m in range(4):
            e(f"s_add_u32 m0, s{sM0}, {m0b + m*4096}")
            e(f"s_add_u32 s{sT}, s{sSOFX}, {m*32*1280 + s*128}")
            e(f"buffer_load_dwordx4 v{vVX}, s[{S_X}:{S_X+3}], s{sT} offen lds")
            e(f"s_add_u32 m0, s{sM0}, {m0b + 16384 + m*4096}")
            e(f"s_add_u32 s{sT}, s{sSOFW}, {m*16*3840 + s*64*3840}")
            e(f"buffer_load_dwordx4 v{vVW}, s[{S_W}:{S_W+3}], s{sT} offen lds")
    issue_stage(0)
    srd(S_A, 8, 32*800)
    e(f"""
    v_lshlrev_b32 v2, 4, v0
    s_and_b32 s{sT}, s{sW4}, 1
    s_lshl_b32 s{sT}, s{sT}, 10
    s_add_u32 m0, s{sT}, {L_PHI}
    s_mul_i32 s{sT+1}, s{sHP}, 1600
    s_add_u32 s{sT}, s{sT}, s{sT+1}
    buffer_load_dwordx4 v2, s[{S_A}:{S_A+3}], s{sT} offen lds
    """)
    issue_stage(1)
    srd(S_WS, 16, 0x10000000)
    sPART = 64
    e(f"""
    s_lshl_b32 s{sPART}, s{sHP}, 4
    s_add_u32 s{sPART}, s{sPART}, s{sRC}
    s_lshl_b32 s{sPART}, s{sPART}, 12
    s_add_u32 s{sPART}, s{sPART}, {WS_PART}
    v_mov_b32 v40, -1
    v_mov_b32 v41, -1
    v_mov_b32 v42, -1
    v_mov_b32 v43, -1
    s_lshl_b32 s{sT}, s{sW4}, 6
    v_add_u32 v2, s{sT}, v0            ; tau
    v_lshlrev_b32 v8, 4, v2
    v_mov_b32 v3, 0x40000000
    v_cmp_gt_u32 vcc, 240, v2
    v_lshrrev_b32 v9, 4, v0            ; g = l>>4
    v_and_b32 v44, 15, v0
    v_cndmask_b32 v8, v3, v8, vcc
    v_lshlrev_b32 v44, 4, v44          ; t'*16
    s_lshl_b32 s{sT}, s{sRC}, 3
    s_lshl_b32 s{sT+1}, s{sW4}, 1
    s_add_u32 s{sT}, s{sT}, s{sT+1}
    s_mul_i32 s{sT}, s{sT}, 20480
    s_lshr_b32 s{sT+1}, s{sHP}, 2
    s_mul_i32 s{sT+1}, s{sT+1}, 5120
    s_add_u32 s{sT}, s{sT}, s{sT+1}
    s_and_b32 s{sT+1}, s{sHP}, 3
    s_lshl_b32 s{sT+1}, s{sT+1}, 8
    s_add_u32 s{sT}, s{sT}, s{sT+1}
    s_add_u32 s{sT+3}, s{sT}, {WS_O}
    v_lshlrev_b32 v45, 10, v9
    v_add_u32 v45, v45, v44            ; i=0
    v_mov_b32 v46, 4096
    v_add_u32 v47, -1, v9
    v_lshlrev_b32 v47, 10, v47
    v_add_u32 v47, 20480, v47
    v_cmp_eq_u32 vcc, 0, v9
    s_nop 1
    v_cndmask_b32 v46, v47, v46, vcc
    v_add_u32 v46, v46, v44            ; i=1
    v_add_u32 v47, 3, v9
    v_lshlrev_b32 v47, 10, v47
    v_add_u32 v47, 20480, v47
    v_add_u32 v47, v47, v44
    v_cmp_gt_u32 vcc, 2, v9
    s_nop 1
    v_cndmask_b32 v47, v3, v47, vcc    ; i=2
    buffer_store_dwordx4 v[40:43], v8, s[{S_WS}:{S_WS+3}], s{sPART} offen sc1
    buffer_store_dwordx4 v[40:43], v45, s[{S_WS}:{S_WS+3}], s{sT+3} offen sc1
    buffer_store_dwordx4 v[40:43], v46, s[{S_WS}:{S_WS+3}], s{sT+3} offen sc1
    buffer_store_dwordx4 v[40:43], v47, s[{S_WS}:{S_WS+3}], s{sT+3} offen sc1
    """)
    xfrag_addr(vBA, 2)
    VQ = [12, 13, 22, 23, 62]
    for j in range(5):
        e(f"""
        v_add_u32 v2, {64*j}, v0               ; n = 64j + l  (0..319)
        v_mul_u32_u24 v3, 205, v2
        v_lshrrev_b32 v3, 10, v3               ; n/5
        v_mul_u32_u24 v4, 5, v3
        v_sub_u32 v4, v2, v4                   ; n%5
        v_lshlrev_b32 v4, 4, v4
        v_mul_u32_u24 v3, 3840, v3
        v_add_u32 v{VQ[j]}, v3, v4
        """)
    def issue_wq_all():
        for gi in range(3):
            lab = a.newlabel("WQ")
            if gi == 2:
                e(f"s_cmp_ge_u32 s{sW4}, 2")
                e(f"s_cbranch_scc1 {lab}")
            e(f"s_mul_i32 s{sT+1}, s{sW4}, 5120")
            e(f"s_mul_i32 s{sT+2}, s{sW4}, {64*3840}")
            e(f"s_add_u32 s{sT+2}, s{sT+2}, s{sSOFW}")
            e(f"s_add_u32 s{sT+2}, s{sT+2}, {gi*4*64*3840}")
            for j in range(5):
                e(f"s_add_u32 m0, s{sT+1}, {L_WQ + gi*4*5120 + j*1024}")
                e("s_nop 0")
                e(f"buffer_load_dwordx4 v{VQ[j]}, s[{S_W}:{S_W+3}], s{sT+2} offen lds")
            a.label(lab)
    base = Base([vBA, vBA+1, vBA+2, vBA+3])
    stamp(1)
    for s in range(NST):
        if s <= 1: e("s_waitcnt vmcnt(12) lgkmcnt(0)")
        elif s <= 8: e("s_waitcnt vmcnt(8) lgkmcnt(0)")
        else: e("s_waitcnt vmcnt(0) lgkmcnt(0)")
        e("s_barrier")
        sstamp(s+1)
        if s == 0: stamp(2)
        sb = base.set(s)
        for kk in range(4):
            d = XF + 16*s + 4*kk
            e(f"ds_read_b128 v[{d}:{d+3}], v{vBA+kk} offset:{sb}")
        if s + 2 < NST: issue_stage(s+2)
        if s == NST - 1:
            issue_wq_all()
    vOA = 56
    def HOIST_LQ():
        lane_decomp32(2, 3, 4, 5, 6)
        e(f"""
        v_mul_u32_u24 v7, 800, v6
        v_mul_u32_u24 v8, 40, v3
        v_add_u32 v7, v7, v8
        v_lshlrev_b32 v8, 3, v5
        v_add_u32 v7, v7, v8
        v_add_u32 v7, {L_PHI}, v7
        v_lshrrev_b32 v8, 1, v2
        v_mov_b32 v21, {L_ZERO}
        v_cmp_eq_u32 vcc, v8, v6
        s_nop 1
        v_cndmask_b32 v20, v21, v7, vcc
        v_cmp_eq_u32 s[46:47], 0, v5
        s_nop 1
        s_and_b64 vcc, vcc, s[46:47]
        v_add_u32 v7, 32, v7
        s_nop 0
        v_cndmask_b32 v21, v21, v7, vcc
        """)

        lane_decomp32(2, 3, 4, 5, 6)
        e(f"""
        v_mul_u32_u24 v7, 1920, v6
        v_mul_u32_u24 v8, 48, v3
        v_lshlrev_b32 v9, 3, v5
        v_add3_u32 v7, v7, v8, v9
        v_add_u32 v7, {L_KVF}, v7
        v_lshrrev_b32 v8, 1, v2
        v_mov_b32 v9, {L_ZERO}
        v_cmp_eq_u32 vcc, v8, v6
        s_nop 1
        v_cndmask_b32 v{vOA}, v9, v7, vcc
        v_cmp_gt_u32 s[46:47], 2, v5
        s_nop 1
        s_and_b64 vcc, vcc, s[46:47]
        v_add_u32 v7, 32, v7
        s_nop 0
        v_cndmask_b32 v{vOA+1}, v9, v7, vcc
        v_and_b32 v2, 15, v0
        v_lshlrev_b32 v2, 4, v2
        v_bfe_u32 v3, v0, 4, 1
        v_mul_u32_u24 v3, 20480, v3
        v_add_u32 v2, v2, v3
        v_lshrrev_b32 v4, 5, v0            ; h
        v_lshlrev_b32 v5, 11, v4           ; c5 = 2h -> 2h*1024
        v_add_u32 v58, v5, v2
        v_lshlrev_b32 v6, 3, v4
        v_add_u32 v59, v6, v2
        s_lshl_b32 s44, s{sRC}, 3
        s_lshl_b32 s{sT+1}, s{sW4}, 1
        s_add_u32 s44, s44, s{sT+1}
        s_mul_i32 s44, s44, 20480
        s_lshr_b32 s{sT+1}, s{sHP}, 2
        s_mul_i32 s{sT+1}, s{sT+1}, 5120
        s_add_u32 s44, s44, s{sT+1}
        s_and_b32 s{sT+1}, s{sHP}, 3
        s_lshl_b32 s{sT+1}, s{sT+1}, 8
        s_add_u32 s44, s44, s{sT+1}
        s_add_u32 s44, s44, {WS_O}
        s_add_u32 s45, s44, 4096
        """)

    QA = 224; vQA = 18; vWO = 56
    lane_decomp32(2, 3, 4, 5, 6)
    e(f"""
    v_lshrrev_b32 v7, 1, v2
    v_lshlrev_b32 v7, 3, v7
    v_add_u32 v7, v7, v3
    v_mul_u32_u24 v7, 80, v7
    v_mul_u32_u24 v6, 40, v6
    v_add_u32 v7, v7, v6
    v_add_u32 v7, {L_WQ}, v7
    v_lshlrev_b32 v5, 3, v5
    v_add_u32 v{vQA}, v7, v5
    v_add_u32 v{vQA+1}, 32, v7
    """)
    e("s_waitcnt lgkmcnt(0)")
    subsignal(1, tmp=60)
    HOIST_LQ()
    e("s_waitcnt vmcnt(0)")
    subbar(7, tmp=60)
    if 'prio' in exp: e("s_setprio 1")
    stamp(3)
    if 'p1only' in exp:
        e("s_waitcnt vmcnt(0)")
        e("s_branch L_fin")
    QF3 = [24, 32, 40, 48]
    def q_reads3(k):
        b = QF3[k % 4]
        for T in range(2):
            for rd in range(2):
                e(f"ds_read_b64_tr_b16 v[{b+4*T+2*rd}:{b+4*T+2*rd+1}], v{vQA+T} offset:{(16*k+4*rd)*80}")
    wolist = [(sg, rd) for sg in WO_P1 for rd in range(2)]
    nwo = 0
    q_reads3(0); q_reads3(1); q_reads3(2)
    for k in range(40):
        if k + 3 < 40:
            q_reads3(k+3)
            e("s_waitcnt lgkmcnt(12)")
        else: e(f"s_waitcnt lgkmcnt({4*(39-k)})")
        for T in range(2):
            c = "0" if k == 0 else f"v[{QA+16*T}:{QA+16*T+15}]"
            b = QF3[k % 4]
            e(f"v_mfma_f32_32x32x16_bf16 v[{QA+16*T}:{QA+16*T+15}], v[{b+4*T}:{b+4*T+3}], v[{XF+4*k}:{XF+4*k+3}], {c}")
    if 'prio' in exp: e("s_setprio 0")
    stamp(5)
    WF = 64; QB = 88; PQ0 = 100; PQ1 = 116; EP = 132; EN = 152; PH = 172; TM = 192
    for u in range(2):
        for step in range(3):
            for rd in range(2):
                d = WF + u*12 + step*4 + 2*rd
                if step == 2 and rd == 1:
                    e(f"v_mov_b32 v{d}, 0"); e(f"v_mov_b32 v{d+1}, 0")
                else:
                    e(f"ds_read_b64_tr_b16 v[{d}:{d+1}], v{20+u} offset:{(8*step+4*rd)*40}")
    e("s_nop 7")
    if dump == "qacc":
        e("s_nop 7"); dump_regs([QA+i for i in range(20)], 0)
    for j in range(5):
        src = QA + 4*j if j < 4 else QA + 16
        e(f"v_cvt_pk_bf16_f32 v{QB+2*j}, v{src}, v{src+1}")
        e(f"v_cvt_pk_bf16_f32 v{QB+2*j+1}, v{src+2}, v{src+3}")
    e(f"v_mov_b32 v{QB+10}, 0"); e(f"v_mov_b32 v{QB+11}, 0")
    e("s_waitcnt lgkmcnt(0)")
    feature_map(QB, WF, PQ0, PQ1)
    e("s_nop 7")
    e("s_nop 3")
    softmax_pair(PQ0, PQ1, EP, EN, PH, TM)
    if dump == "phiq": dump_regs([PH+i for i in range(20)], 0)
    stamp(6)
    subwait(2)
    stamp(7)
    KA = 64; N0 = 104; N1 = 120
    for st in range(5):
        for U in range(2):
            for rd in range(2):
                d = KA + (U*5+st)*4 + 2*rd
                e(f"ds_read_b64_tr_b16 v[{d}:{d+1}], v{vOA+U} offset:{(8*st+4*rd)*48}")
    for st in range(5):
        e(f"s_waitcnt lgkmcnt({min(15, 4*(4-st))})")
        for U, N in ((0, N0), (1, N1)):
            c = "0" if st == 0 else f"v[{N}:{N+15}]"
            d = KA + (U*5+st)*4
            e(f"v_mfma_f32_32x32x16_bf16 v[{N}:{N+15}], v[{d}:{d+3}], v[{PH+4*st}:{PH+4*st+3}], {c}")
    e("s_nop 7")
    e("s_nop 3")
    e(f"v_add_f32 v8, 0x358637bd, v{N1+4}")
    e("v_rcp_f32 v8, v8")
    e("s_nop 0")
    OB = 136
    for i in range(8):
        e(f"v_mul_f32 v{N0+2*i}, v{N0+2*i}, v8"); e(f"v_mul_f32 v{N0+2*i+1}, v{N0+2*i+1}, v8")
        e(f"v_cvt_pk_bf16_f32 v{OB+i}, v{N0+2*i}, v{N0+2*i+1}")
    for i in range(2):
        e(f"v_mul_f32 v{N1+2*i}, v{N1+2*i}, v8"); e(f"v_mul_f32 v{N1+2*i+1}, v{N1+2*i+1}, v8")
        e(f"v_cvt_pk_bf16_f32 v{OB+8+i}, v{N1+2*i}, v{N1+2*i+1}")
    for i in (0, 2, 4, 6, 8):
        e(f"v_min_u32 v{OB+i}, -2, v{OB+i}")
    e(f"""
    buffer_store_dwordx4 v[{OB}:{OB+3}], v58, s[{S_WS}:{S_WS+3}], s44 offen sc1
    buffer_store_dwordx4 v[{OB+4}:{OB+7}], v58, s[{S_WS}:{S_WS+3}], s44 offen offset:1024 sc1
    buffer_store_dwordx2 v[{OB+8}:{OB+9}], v59, s[{S_WS}:{S_WS+3}], s45 offen sc1
    """)
    subsignal(5)
    a.label("L_fin")
    if until:
        e(f"""
        s_waitcnt vmcnt(0) lgkmcnt(0)
L_until:
        s_memrealtime s[94:95]
        s_waitcnt lgkmcnt(0)
        s_sub_u32 s96, s94, s98
        s_cmp_lt_u32 s96, {until}
        s_cbranch_scc1 L_until
        """)
    if stamps:
        stamp(10)
        e("s_waitcnt vmcnt(0)")
        e(f"""
        s_waitcnt lgkmcnt(0)
        s_lshl_b32 s{sT}, s2, 3
        s_add_u32 s{sT}, s{sT}, s{sWAVE}
        s_lshl_b32 s{sT}, s{sT}, 6
        s_add_u32 s{sT}, s{sT}, {WS_STAMP}
        v_mov_b32 v2, 0
        """)
        for i in range(NS): e(f"v_mov_b32 v{20+i}, s{sST+2*i}")
        e(f"""
        s_mov_b64 exec, 1
        buffer_store_dwordx4 v[20:23], v2, s[{S_WS}:{S_WS+3}], s{sT} offen
        buffer_store_dwordx4 v[24:27], v2, s[{S_WS}:{S_WS+3}], s{sT} offen offset:16
        buffer_store_dwordx4 v[28:31], v2, s[{S_WS}:{S_WS+3}], s{sT} offen offset:32
        """)
    if dbgwg >= 0:
        e(f"""
        s_cmp_lg_u32 s2, {dbgwg}
        s_cbranch_scc1 L_end
        s_cmp_lg_u32 s{sWAVE}, {dbgwave}
        s_cbranch_scc1 L_end
        s_mov_b64 exec, -1
        s_mov_b32 s72, s14
        s_and_b32 s73, s15, 0xffff
        s_mov_b32 s74, 256
        s_mov_b32 s75, 0x20000
        """)
        for i in range(1, NS):
            e(f"s_sub_u32 s{sT}, s{sST+2*i}, s{sST}")
            e(f"v_mov_b32 v{20+i}, s{sT}")
        e("v_mov_b32 v2, 0")
        e("s_mov_b64 exec, 1")
        for i in range(1, NS):
            e(f"buffer_store_dword v{20+i}, v2, s[72:75], 0 offen offset:{4*i}")
    if dbgwg == -2:
        e(f"""
        s_cmp_lg_u32 s{sWAVE}, {dbgwave}
        s_cbranch_scc1 L_end
        s_mov_b64 exec, -1
        s_mov_b32 s72, s14
        s_and_b32 s73, s15, 0xffff
        s_mov_b32 s74, 256
        s_mov_b32 s75, 0x20000
        """)
        for i in range(1, NS):
            e(f"s_sub_u32 s{sT}, s{sST+2*i}, s{sST}")
            e(f"v_mov_b32 v{20+i}, s{sT}")
        e("v_mov_b32 v2, 0")
        e("s_mov_b64 exec, 1")
        for i in range(1, NS):
            if i == 9: continue
            e(f"buffer_atomic_umax v{20+i}, v2, s[72:75], 0 offen offset:{4*i}")
    a.label("L_end")
    e("s_endpgm")
    a.label("L_code_end")
    hdr = HEADER + f"; @launch grid=(256,1,1) block=(512,1,1) lds={LDS_BYTES}\n"
    return hdr + f""".amdgcn_target "amdgcn-amd-amdhsa--gfx950"
.text
.globl {KN}
.p2align 8
.type {KN},@function
{KN}:
""" + a.text() + """.section .rodata,"a"
""" + kernel_desc(KN, 256, 102, 256)

if __name__ == "__main__":
    import argparse
    ap = argparse.ArgumentParser()
    ap.add_argument("--stamps", action="store_true")
    ap.add_argument("--dump", default=None)
    ap.add_argument("--stagest", action="store_true")
    ap.add_argument("--exp", default="")
    ap.add_argument("--until", type=int, default=0)
    ap.add_argument("--dbgwg", type=int, default=-1)
    ap.add_argument("--dbgwave", type=int, default=0)
    ap.add_argument("--pf", default="none")
    ap.add_argument("--nogpf", action="store_true")
    ap.add_argument("--nocode", action="store_true")
    ap.add_argument("--outfl", default="")
    ap.add_argument("--vred", action="store_true")
    ap.add_argument("--dwait", action="store_true")
    ap.add_argument("--ncs", type=int, default=4)
    args = ap.parse_args()
    DWAIT = args.dwait; NCS = args.ncs
    OUTFL = args.outfl.replace("+", " ")
    if args.pf == "none": PF = False
    else: PF = True; PFS = PFS_TAB[args.pf]
    if args.nogpf: GPF = False
    if args.nocode: GPF_CODE = False
    print(gen(stamps=args.stamps, dump=args.dump, stagest=args.stagest, exp=args.exp, until=args.until, dbgwg=args.dbgwg, dbgwave=args.dbgwave))
```

```python
import sys
from asmlib import *
from lay2 import TKV, TQ

KN = "standalone__linear_kernel_hedgehog__prompt_kernel"
NST = 10
SLOT = 32768
R = 3
L_WQ = 98304
L_PHI = 149504
L_ZERO = 151552
L_CNT = 153600
L_KVF = 154624
L_PK = 32768
L_WO19 = 158464
LDS_BYTES = 163840
def L_WO(sg): return sg*5120 if sg <= 18 else L_WO19
WO_P1 = [0,1,2,3,4,5,13,14,15,16,17,18,19]
WO_P2 = [6,7,8,9,10,11,12]
WO_ALL1 = [0,1,2,3,4,5,13,14,15,16,17,18,19]
NCS = 4
WS_PART = 0x000000
WS_O = 0x100000
WS_RDY = 0x400000
WS_STAMP = 0x700000
WS_DBG = 0x800000
PF = False
PKRED = False
DWAIT = False
VRED = True
OUTFL = ''
GPF = True
GPF_CODE = True
PFS_TAB = {
 'b':  {'pre': [('x',2),('kv',2)], 0: [('kv',5),('x',6)], 1: [('kv',8),('q',0),('q',1)], 3: [('wo',0),('wo',1)]},
 'e1': {'e': [('x',0),('kv',2),('code',0)], 'pre': [('x',4)], 0: [('kv',5),('x',8)], 1: [('kv',8)], 3: [('q',0)], 4: [('q',1)], 6: [('wo',0)], 7: [('wo',1)]},
 'e2': {'e': [('x',2),('kv',2),('code',0)], 0: [('kv',5),('x',6)], 1: [('kv',8)], 3: [('q',0)], 4: [('q',1)], 6: [('wo',0)], 7: [('wo',1)]},
 'e3': {'e': [('x',0),('kv',0),('code',0)], 'pre': [('x',4),('kv',3)], 0: [('kv',6),('x',8)], 1: [('kv',9)], 3: [('q',0)], 4: [('q',1)], 6: [('wo',0)], 7: [('wo',1)]},
 'e4': {'e': [('x',2),('kv',2),('code',0)], 'pre': [('x',6),('kv',5)], 0: [('kv',8)], 2: [('q',0)], 3: [('q',1)], 5: [('wo',0)], 6: [('wo',1)]},
 'e5': {'e': [('code',0)], 'pre': [('x',2),('kv',2)], 0: [('kv',5),('x',6)], 2: [('kv',8)], 4: [('q',0)], 5: [('q',1)], 7: [('wo',0)], 8: [('wo',1)]},
 'wo': {'e': [('code',0)], 4: [('q',0)], 5: [('q',1)], 7: [('wo',0)], 8: [('wo',1)]},
}
PFS = PFS_TAB['b']
LOG2E = 0x3fb8aa3b
NLOG2E = 0xbfb8aa3b
SPIN_G = 0x8000
SPIN_L = 0x80000

def gen(stamps=False, dump=None, stagest=False, exp='', until=0, dbgwg=-1, dbgwave=0):
    a = Asm(); e = a.e
    S_X, S_W, S_WS = 20, 24, 28
    S_A, S_B = 72, 76
    sWAVE, sW4, sRC, sHP, sBB = 32, 33, 34, 35, 36
    sT = 40
    sSOFX, sSOFW, sM0 = 52, 53, 54
    sNONCE = 55
    sL = 56
    sEX = 58
    sSPIN = 60
    sU, sV = 62, 63
    sUS = 65
    sBLK, sG = 66, 67
    sFC = 68
    sST = 80
    NS = 11
    def sstamp(i):
        if stagest: e(f"s_memtime s[{sST+2*i}:{sST+2*i+1}]")
    def stamp(i):
        if stamps and not (stagest and i > 0): e(f"s_memtime s[{sST+2*i}:{sST+2*i+1}]")
    def rstamp(i):
        if stamps and not stagest: e(f"s_memrealtime s[{sST+2*i}:{sST+2*i+1}]")
    def srd(dst, ptr, nbytes):
        e(f"""
        s_mov_b32 s{dst}, s{ptr}
        s_and_b32 s{dst+1}, s{ptr+1}, 0xffff
        s_mov_b32 s{dst+2}, {nbytes}
        s_mov_b32 s{dst+3}, 0x20000
        """)
    def subsignal(idx, tmp=2):
        e(f"""
        v_mov_b32 v{tmp}, {L_CNT + 4*idx}
        v_mov_b32 v{tmp+1}, 1
        s_mov_b64 exec, 1
        ds_add_u32 v{tmp}, v{tmp+1}
        s_mov_b64 exec, -1
        """)
    def subwait(idx, target=4, tmp=2):
        lab = a.newlabel("SW")
        e(f"v_mov_b32 v{tmp}, {L_CNT + 4*idx}")
        e(f"s_mov_b32 s{sSPIN}, {SPIN_L}")
        a.label(lab)
        e(f"""
        s_sub_u32 s{sSPIN}, s{sSPIN}, 1
        s_cbranch_scc1 L_end
        ds_read_b32 v{tmp+1}, v{tmp}
        s_waitcnt lgkmcnt(0)
        v_readfirstlane_b32 s{sT}, v{tmp+1}
        s_nop 0
        s_cmp_lt_u32 s{sT}, {target}
        s_cbranch_scc1 {lab}
        """)
    def subbar(idx, target=4, tmp=2):
        subsignal(idx, tmp); subwait(idx, target, tmp)
    def dump_regs(regs, off):
        n = len(regs)
        e(f"""
        s_lshl_b32 s{sT}, s2, 3
        s_add_u32 s{sT}, s{sT}, s{sWAVE}
        s_mul_i32 s{sT}, s{sT}, {n*256}
        s_add_u32 s{sT}, s{sT}, {WS_DBG + off}
        v_lshlrev_b32 v2, 2, v0
        """)
        for i, r in enumerate(regs):
            e(f"buffer_store_dword v{r}, v2, s[{S_WS}:{S_WS+3}], s{sT} offen offset:{(i%16)*256}")
            if i % 16 == 15: e(f"s_add_u32 s{sT}, s{sT}, 4096")
        e("s_waitcnt vmcnt(0)")
    def softmax_pair(P0, P1, EP, EN, PH, tm):
        p = [P0 + i for i in range(16)] + [P1 + i for i in range(4)]
        tM, tN, tA, tB = tm, tm+1, tm+2, tm+4
        e(f"v_max3_f32 v{tM}, v{p[0]}, v{p[1]}, v{p[2]}")
        e(f"v_min3_f32 v{tN}, v{p[0]}, v{p[1]}, v{p[2]}")
        for i in range(3, 19, 2):
            e(f"v_max3_f32 v{tM}, v{tM}, v{p[i]}, v{p[i+1]}")
            e(f"v_min3_f32 v{tN}, v{tN}, v{p[i]}, v{p[i+1]}")
        e(f"v_max_f32 v{tM}, v{tM}, v{p[19]}")
        e(f"v_min_f32 v{tN}, v{tN}, v{p[19]}")
        e(f"v_mul_f32 v{tA}, {NLOG2E:#x}, v{tM}")
        e(f"v_mul_f32 v{tB}, {LOG2E:#x}, v{tN}")
        for i in range(10):
            e(f"v_pk_fma_f32 v[{EP+2*i}:{EP+2*i+1}], v[{p[2*i]}:{p[2*i]+1}], s[{sL}:{sL+1}], v[{tA}:{tA+1}] op_sel_hi:[1,1,0]")
            e(f"v_pk_fma_f32 v[{EN+2*i}:{EN+2*i+1}], v[{p[2*i]}:{p[2*i]+1}], s[{sL}:{sL+1}], v[{tB}:{tB+1}] op_sel_hi:[1,1,0] neg_lo:[1,0,0] neg_hi:[1,0,0]")
        for i in range(20):
            e(f"v_exp_f32 v{EP+i}, v{EP+i}")
            e(f"v_exp_f32 v{EN+i}, v{EN+i}")
        e(f"v_pk_add_f32 v[{tA}:{tA+1}], v[{EP}:{EP+1}], v[{EP+2}:{EP+3}]")
        e(f"v_pk_add_f32 v[{tB}:{tB+1}], v[{EN}:{EN+1}], v[{EN+2}:{EN+3}]")
        for i in range(2, 10):
            e(f"v_pk_add_f32 v[{tA}:{tA+1}], v[{tA}:{tA+1}], v[{EP+2*i}:{EP+2*i+1}]")
            e(f"v_pk_add_f32 v[{tB}:{tB+1}], v[{tB}:{tB+1}], v[{EN+2*i}:{EN+2*i+1}]")
        e(f"v_add_f32 v{tA}, v{tA}, v{tA+1}")
        e(f"v_add_f32 v{tB}, v{tB}, v{tB+1}")
        e(f"v_rcp_f32 v{tA}, v{tA}")
        e(f"v_rcp_f32 v{tB}, v{tB}")
        e("s_nop 0")
        for i in range(10):
            e(f"v_pk_mul_f32 v[{EP+2*i}:{EP+2*i+1}], v[{EP+2*i}:{EP+2*i+1}], v[{tA}:{tA+1}] op_sel_hi:[1,0]")
            e(f"v_pk_mul_f32 v[{EN+2*i}:{EN+2*i+1}], v[{EN+2*i}:{EN+2*i+1}], v[{tB}:{tB+1}] op_sel_hi:[1,0]")
        for i in range(10):
            e(f"v_cvt_pk_bf16_f32 v{PH+i}, v{EP+2*i}, v{EP+2*i+1}")
            e(f"v_cvt_pk_bf16_f32 v{PH+10+i}, v{EN+2*i}, v{EN+2*i+1}")
    def lane_decomp32(vG, vrp, vc, vQ, vhh):
        e(f"""
        v_lshrrev_b32 v{vG}, 4, v0
        v_bfe_u32 v{vrp}, v0, 2, 2
        v_and_b32 v{vc}, 3, v0
        v_and_b32 v{vQ}, 1, v{vG}
        v_lshlrev_b32 v{vQ}, 1, v{vQ}
        v_lshrrev_b32 v{vhh}, 1, v{vc}
        v_add_u32 v{vQ}, v{vQ}, v{vhh}
        v_and_b32 v{vhh}, 1, v{vc}
        """)
    def wphi_frags(WF, va, t):
        vG, vrp, vc, vQ, vhh = t, t+1, t+2, t+3, t+4
        lane_decomp32(vG, vrp, vc, vQ, vhh)
        e(f"""
        v_mul_u32_u24 v{t+5}, 800, v{vhh}
        v_mul_u32_u24 v{t+6}, 40, v{vrp}
        v_add_u32 v{t+5}, v{t+5}, v{t+6}
        v_lshlrev_b32 v{t+6}, 3, v{vQ}
        v_add_u32 v{t+5}, v{t+5}, v{t+6}
        v_add_u32 v{t+5}, {L_PHI}, v{t+5}
        v_lshrrev_b32 v{t+6}, 1, v{vG}
        v_mov_b32 v{va+1}, {L_ZERO}
        v_cmp_eq_u32 vcc, v{t+6}, v{vhh}
        s_nop 1
        v_cndmask_b32 v{va}, v{va+1}, v{t+5}, vcc
        v_cmp_eq_u32 s[{sEX}:{sEX+1}], 0, v{vQ}
        s_nop 1
        s_and_b64 vcc, vcc, s[{sEX}:{sEX+1}]
        v_add_u32 v{t+5}, 32, v{t+5}
        s_nop 0
        v_cndmask_b32 v{va+1}, v{va+1}, v{t+5}, vcc
        """)
        for u in range(2):
            for step in range(3):
                for rd in range(2):
                    d = WF + u*12 + step*4 + 2*rd
                    if step == 2 and rd == 1:
                        e(f"v_mov_b32 v{d}, 0"); e(f"v_mov_b32 v{d+1}, 0")
                    else:
                        e(f"ds_read_b64_tr_b16 v[{d}:{d+1}], v{va+u} offset:{(8*step+4*rd)*40}")
    def feature_map(SRC, WF, P0, P1):
        for step in range(3):
            for u, P in ((0, P0), (1, P1)):
                c = "0" if step == 0 else f"v[{P}:{P+15}]"
                e(f"v_mfma_f32_32x32x16_bf16 v[{P}:{P+15}], v[{WF+u*12+step*4}:{WF+u*12+step*4+3}], v[{SRC+4*step}:{SRC+4*step+3}], {c}")
    def xfrag_addr(vBA, t):
        e(f"""
        v_and_b32 v{t}, 31, v0
        v_lshrrev_b32 v{t+1}, 5, v0
        v_bfe_u32 v{t+2}, v{t}, 1, 3
        v_xor_b32 v{t+2}, v{t+2}, v{t+1}
        v_lshlrev_b32 v{t+2}, 4, v{t+2}
        s_lshl_b32 s{sT}, s{sW4}, 5
        v_add_u32 v{t}, s{sT}, v{t}
        v_lshlrev_b32 v{t}, 7, v{t}
        v_add_u32 v{vBA}, v{t}, v{t+2}
        v_xor_b32 v{vBA+1}, 32, v{vBA}
        v_xor_b32 v{vBA+2}, 64, v{vBA}
        v_xor_b32 v{vBA+3}, 96, v{vBA}
        """)
    class Base:
        def __init__(self, regs): self.regs = regs; self.cur = 0
        def set(self, s):
            so = (s % R) * SLOT
            want = (so // 65536) * 65536
            if want != self.cur:
                d = (want - self.cur) & 0xffffffff
                for r in self.regs: e(f"v_add_u32 v{r}, {d}, v{r}")
                self.cur = want
            return so - self.cur
    def wo_setup(vWO, t):
        e(f"""
        v_mul_u32_u24 v{t}, 26, v0
        v_lshrrev_b32 v{t}, 8, v{t}          ; l/10 for l<64
        v_mul_u32_u24 v{t+1}, 10, v{t}
        v_sub_u32 v{t+1}, v0, v{t+1}
        v_lshlrev_b32 v{t+1}, 4, v{t+1}
        v_mul_u32_u24 v{t}, 1280, v{t}
        v_add_u32 v{vWO}, v{t}, v{t+1}
        v_cmp_gt_u32 vcc, 40, v0
        s_lshr_b32 s{sU}, s{sHP}, 1
        s_mul_i32 s{sU}, s{sU}, 160
        s_lshl_b32 s{sT}, s{sW4}, 1          ; 2G
        s_lshr_b32 s{sV}, s{sW4}, 1          ; G>=2
        s_add_u32 s{sUS}, s{sT}, 1
        s_sub_u32 s{sUS}, s{sUS}, s{sV}      ; slow h8 = 2G + (G<2)
        s_add_u32 s{sT}, s{sT}, s{sV}        ; fast h8 = 2G + (G>=2)
        s_mul_i32 s{sUS}, s{sUS}, {40*1280}
        s_add_u32 s{sUS}, s{sUS}, s{sU}
        s_mul_i32 s{sT}, s{sT}, {40*1280}
        s_add_u32 s{sU}, s{sU}, s{sT}
        s_lshr_b32 s{sV}, s{sW4}, 1
        s_lshl_b32 s{sV}, s{sV}, 4
        s_and_b32 s{sT}, s{sW4}, 1
        s_lshl_b32 s{sT}, s{sT}, 2
        s_add_u32 s{sV}, s{sV}, s{sT}
        s_mul_i32 s{sV}, s{sV}, 160          ; pi0*160
        s_mov_b64 s[{sEX}:{sEX+1}], vcc
        """)
    def wo_dma(sg, rd, vWO):
        blk, c5 = divmod(sg, 5)
        if c5 < 4: row = 320*(blk & 1) + [0, 8, 20, 28][c5] + 4*rd
        else: row = 320*(blk & 1) + 16 + 20*rd
        e(f"s_add_u32 m0, s{sV}, {L_WO(sg) + rd*8*160}")
        e(f"s_add_u32 s{sT}, s{sUS if blk >= 2 else sU}, {row*1280}")
        e(f"buffer_load_dwordx4 v{vWO}, s[{S_B}:{S_B+3}], s{sT} offen lds")

    e(f"""
    s_load_dwordx8 s[4:11], s[0:1], 0
    s_load_dwordx4 s[12:15], s[0:1], 32
    s_load_dwordx2 s[16:17], s[0:1], 48
    s_cmp_ge_u32 s2, 256
    s_cbranch_scc1 L_end
    """)
    if 'half' in exp:
        e("s_bitcmp1_b32 s2, 6")
        e("s_cbranch_scc1 L_end")
    if 'quarter' in exp:
        e("s_and_b32 s40, s2, 0x60")
        e("s_cmp_lg_u32 s40, 0")
        e("s_cbranch_scc1 L_end")
    stamp(0); rstamp(9)
    if until: e("s_memrealtime s[98:99]")
    e(f"""
    v_lshrrev_b32 v1, 6, v0
    v_and_b32 v0, 63, v0
    s_and_b32 s{sT}, s2, 7
    s_lshr_b32 s{sT+1}, s2, 3
    v_readfirstlane_b32 s{sWAVE}, v1
    s_lshr_b32 s{sRC}, s{sT}, 1
    s_lshl_b32 s{sRC}, s{sRC}, 2
    s_lshr_b32 s{sT+2}, s{sT+1}, 3
    s_add_u32 s{sRC}, s{sRC}, s{sT+2}
    s_and_b32 s{sHP}, s{sT}, 1
    s_lshl_b32 s{sHP}, s{sHP}, 3
    s_and_b32 s{sT+2}, s{sT+1}, 7
    s_add_u32 s{sHP}, s{sHP}, s{sT+2}
    s_and_b32 s{sW4}, s{sWAVE}, 3
    s_mul_i32 s{sBB}, s{sHP}, 5
    s_and_b32 s{sBB}, s{sBB}, 7
    s_sub_u32 s{sBB}, 8, s{sBB}
    s_min_u32 s{sBB}, s{sBB}, 4
    s_mov_b32 s{sL}, {LOG2E:#x}
    s_mov_b32 s{sL+1}, {LOG2E:#x}
    s_and_b32 s{sT}, s{sHP}, 7
    s_lshr_b32 s{sG}, s{sT}, 1                 ; G = (hp&7)>>1
    s_lshr_b32 s{sBLK}, 0x5a, s{sT}
    s_and_b32 s{sBLK}, s{sBLK}, 1
    s_lshl_b32 s{sBLK}, s{sBLK}, 1
    s_lshr_b32 s{sT}, s{sHP}, 3
    s_add_u32 s{sBLK}, s{sBLK}, s{sT}
    s_cmp_ge_u32 s{sWAVE}, 4
    s_cbranch_scc1 L_lq
    """)
    if GPF:
        e(f"""
        s_lshl_b32 s{sT}, s{sW4}, 6
        v_add_u32 v2, s{sT}, v0                 ; n = 64*w + lane  (0..255)
        s_mul_i32 s{sT}, s2, 80
        s_mul_i32 s{sT+1}, s2, 75
        s_mul_i32 s{sT+2}, s2, 25
        s_sub_u32 s{sT+1}, s{sT+1}, 80
        s_sub_u32 s{sT+2}, s{sT+2}, 155
        s_waitcnt lgkmcnt(0)
        v_mov_b32 v3, s{sT+2}
        v_mov_b32 v4, s10
        v_mov_b32 v5, s11
        v_mov_b32 v6, s{sT+1}
        v_mov_b32 v7, s6
        v_mov_b32 v8, s7
        v_cmp_gt_u32 vcc, 155, v2
        s_nop 1
        v_cndmask_b32 v3, v3, v6, vcc
        v_cndmask_b32 v4, v4, v7, vcc
        v_cndmask_b32 v5, v5, v8, vcc
        v_mov_b32 v6, s{sT}
        v_mov_b32 v7, s4
        v_mov_b32 v8, s5
        v_cmp_gt_u32 vcc, 80, v2
        s_nop 1
        v_cndmask_b32 v3, v3, v6, vcc
        v_cndmask_b32 v4, v4, v7, vcc
        v_cndmask_b32 v5, v5, v8, vcc
        v_add_u32 v3, v3, v2
        v_lshlrev_b32 v3, 7, v3
        v_add_co_u32 v4, vcc, v4, v3
        s_nop 1
        v_addc_co_u32 v5, vcc, 0, v5, vcc
        """)
        if GPF_CODE:
            e(f"""
            s_getpc_b64 s[{sT+4}:{sT+5}]
L_pc_ref:
            s_min_u32 s{sT+3}, s2, (L_code_end-{KN})/128
            s_lshl_b32 s{sT+3}, s{sT+3}, 7
            s_sub_u32 s{sT+4}, s{sT+4}, L_pc_ref-{KN}
            s_subb_u32 s{sT+5}, s{sT+5}, 0
            s_add_u32 s{sT+4}, s{sT+4}, s{sT+3}
            s_addc_u32 s{sT+5}, s{sT+5}, 0
            s_min_u32 s{sT+3}, s2, 199
            s_lshl_b32 s{sT+3}, s{sT+3}, 7
            s_add_u32 s{sT+6}, s8, s{sT+3}
            s_addc_u32 s{sT+7}, s9, 0
            s_cmp_lg_u32 s{sW4}, 2
            s_cbranch_scc1 L_gpf_go
            v_writelane_b32 v4, s{sT+4}, 52
            v_writelane_b32 v5, s{sT+5}, 52
            v_writelane_b32 v4, s{sT+6}, 53
            v_writelane_b32 v5, s{sT+7}, 53
L_gpf_go:
            v_cmp_gt_u32 vcc, 182, v2
            """)
        else:
            e("v_cmp_gt_u32 vcc, 180, v2")
        e(f"""
        s_nop 1
        s_and_saveexec_b64 s[{sT}:{sT+1}], vcc
        s_cbranch_execz L_gpf_done
        global_load_dword v48, v[4:5], off
L_gpf_done:
        s_mov_b64 exec, -1
        """)

    ACC = 64; FB = [112, 128]; WF = 144; KB = 168; VB = 180; PK0 = 192; PK1 = 208; EP = 224; EN = 112; PH = 64; TM = 244
    vAA = 10; vBA = 14
    vPA, vPB = 34, 35
    sPART = 64
    e(f"""
    s_lshl_b32 s{sPART}, s{sHP}, 4
    s_add_u32 s{sPART}, s{sPART}, s{sRC}
    s_lshl_b32 s{sPART}, s{sPART}, 12
    s_add_u32 s{sPART}, s{sPART}, {WS_PART}
    s_waitcnt lgkmcnt(0)
    """)
    srd(S_WS, 16, 0x10000000)
    srd(S_A, 14, 256)
    if PF:
        srd(S_X, 6, 640*3840)
        e(f"""
        v_mov_b32 v37, 0x40000000
        s_lshr_b32 s{sT+1}, s2, 3               ; j
        s_and_b32 s{sT+2}, s2, 1
        s_mul_i32 s{sT+2}, s{sT+2}, 640         ; column half (bytes)
        v_mov_b32 v3, 0x40000000
        s_cmp_eq_u32 s{sW4}, 0
        s_cbranch_scc1 L_t_x
        s_cmp_eq_u32 s{sW4}, 1
        s_cbranch_scc1 L_t_kv
        v_mul_u32_u24 v2, 52, v0
        v_lshrrev_b32 v2, 8, v2                 ; l/5
        v_mul_u32_u24 v4, 5, v2
        v_sub_u32 v4, v0, v4
        v_lshlrev_b32 v4, 7, v4                 ; li*128
        s_mul_i32 s{sT+3}, s{sT+1}, 10
        v_add_u32 v2, s{sT+3}, v2               ; row
        s_mov_b32 s{sT+4}, 3840
        s_cmp_eq_u32 s{sW4}, 2
        s_cselect_b32 s{sT+4}, s{sT+4}, 1280
        v_mul_lo_u32 v2, v2, s{sT+4}
        v_add3_u32 v37, v2, v4, s{sT+2}
        v_cmp_gt_u32 vcc, 50, v0
        s_nop 1
        v_cndmask_b32 v37, v3, v37, vcc
        s_cmp_eq_u32 s{sW4}, 2
        s_cbranch_scc1 L_t_done
        """)
        srd(S_X, 10, 640*1280)
        e(f"""
        s_branch L_t_done
L_t_kv:
        v_mul_u32_u24 v2, 13, v0
        v_lshrrev_b32 v2, 8, v2                 ; q = l/20
        v_mul_u32_u24 v4, 20, v2
        v_sub_u32 v4, v0, v4                    ; l%20
        v_mul_u32_u24 v5, 26, v4
        v_lshrrev_b32 v5, 8, v5                 ; r = (l%20)/10
        v_mul_u32_u24 v6, 10, v5
        v_sub_u32 v4, v4, v6                    ; l%10
        v_mul_u32_u24 v6, 52, v4
        v_lshrrev_b32 v6, 8, v6                 ; ty
        v_mul_u32_u24 v7, 5, v6
        v_sub_u32 v4, v4, v7                    ; li
        v_lshlrev_b32 v4, 7, v4
        v_lshlrev_b32 v2, 6, v2                 ; 64q
        v_add_u32 v2, v2, v5
        s_lshl_b32 s{sT+3}, s{sT+1}, 1
        v_add_u32 v2, s{sT+3}, v2               ; row
        v_mul_u32_u24 v2, 3840, v2
        v_add_u32 v6, 1, v6
        v_mul_u32_u24 v6, 1280, v6
        v_add3_u32 v2, v2, v4, v6
        v_add_u32 v37, s{sT+2}, v2
        v_cmp_gt_u32 vcc, 60, v0
        s_nop 1
        v_cndmask_b32 v37, v3, v37, vcc
        s_branch L_t_done
L_t_x:
        v_and_b32 v2, 15, v0
        s_lshr_b32 s{sT+2}, s2, 1
        s_and_b32 s{sT+2}, s{sT+2}, 3
        s_lshl_b32 s{sT+2}, s{sT+2}, 9
        s_lshl_b32 s{sT+3}, s{sT+1}, 4
        s_add_u32 s{sT+2}, s{sT+2}, s{sT+3}
        v_add_u32 v2, s{sT+2}, v2
        v_mul_u32_u24 v2, 1280, v2
        v_lshrrev_b32 v4, 4, v0
        v_lshlrev_b32 v4, 7, v4
        v_add_u32 v37, v2, v4
        """)
        srd(S_X, 4, 2048*1280)
        a.label("L_t_done")
    def touch(wave, soff):
        if not PF: return
        lab = a.newlabel("TT")
        e(f"""
        s_cmp_lg_u32 s{sW4}, {wave}
        s_cbranch_scc1 {lab}
        s_mov_b32 s{sT}, {soff}
        buffer_load_dword v36, v37, s[{S_X}:{S_X+3}], s{sT} offen
{lab}:
        """)
    def code_touch():
        lab = a.newlabel("CT")
        e(f"""
        s_cmp_lg_u32 s{sW4}, 3
        s_cbranch_scc1 {lab}
        s_getpc_b64 s[{sT+4}:{sT+5}]
L_pc_ref:
        s_lshr_b32 s{sT+3}, s2, 3
        s_mul_i32 s{sT+3}, s{sT+3}, 7
        v_add_u32 v2, s{sT+3}, v0
        v_min_u32 v2, (L_code_end-{KN})/128, v2
        v_lshlrev_b32 v2, 7, v2
        s_sub_u32 s{sT+4}, s{sT+4}, L_pc_ref-{KN}
        s_subb_u32 s{sT+5}, s{sT+5}, 0
        v_mov_b32 v5, s{sT+5}
        v_add_co_u32 v4, vcc, s{sT+4}, v2
        s_nop 1
        v_addc_co_u32 v5, vcc, 0, v5, vcc
        v_cmp_gt_u32 vcc, 7, v0
        s_nop 1
        s_mov_b64 exec, vcc
        global_load_dword v47, v[4:5], off
        s_mov_b64 exec, -1
{lab}:
        """)
    def run_sched(when):
        if not PF: return
        for kind, arg in PFS.get(when, []):
            if kind == 'x': touch(0, arg*128)
            elif kind == 'kv': touch(1, arg*64*3840)
            elif kind == 'q': touch(2, arg*320*3840)
            elif kind == 'wo': touch(3, arg*320*1280)
            elif kind == 'code': code_touch()
    run_sched('e')
    e(f"""
    s_or_b32 s{sT}, s{sRC}, s{sHP}
    s_or_b32 s{sT}, s{sT}, s{sW4}
    s_cmp_lg_u32 s{sT}, 0
    s_cbranch_scc1 L_kv_nn
    s_memrealtime s[{sT+4}:{sT+5}]
    s_waitcnt lgkmcnt(0)
    s_or_b32 s{sT+4}, s{sT+4}, 1
    v_mov_b32 v2, 0
    v_mov_b32 v3, s{sT+4}
    s_mov_b64 exec, 1
    buffer_store_dword v3, v2, s[{S_A}:{S_A+3}], 0 offen sc1
    s_mov_b64 exec, -1
L_kv_nn:
    """)
    e(f"""
    v_lshlrev_b32 v2, 4, v0
    s_lshl_b32 s{sT}, s{sW4}, 10
    s_add_u32 s{sT}, s{sT}, {L_ZERO}
    v_add_u32 v2, s{sT}, v2
    v_mov_b32 v24, 0
    v_mov_b32 v25, 0
    v_mov_b32 v26, 0
    v_mov_b32 v27, 0
    s_cmp_eq_u32 s{sW4}, 3
    s_cbranch_scc1 L_kv_nz
    ds_write_b128 v2, v[24:27]
L_kv_nz:
    """)
    lane_decomp32(2, 3, 4, 5, 6)
    e(f"""
    v_lshlrev_b32 v5, 3, v5          ; 8Q
    v_mul_u32_u24 v6, 5, v6          ; 5hh
    v_lshrrev_b32 v7, 1, v2
    v_lshlrev_b32 v7, 3, v7
    v_add_u32 v7, v7, v3             ; krow
    v_lshlrev_b32 v7, 8, v7
    v_add_u32 v7, 16384, v7
    v_lshlrev_b32 v8, 2, v3          ; 4rp
    s_sub_u32 s{sT+1}, 4, s{sBB}
    """)
    for T in range(3):
        immc = 0; imms = 0
        for Q in range(4):
            q = TKV[T][Q] or TKV[T][0]
            immc |= q[1] << (8*Q); imms |= (8*q[0]) << (8*Q)
        e(f"""
        s_mov_b32 s{sT}, {immc}
        v_bfe_u32 v18, s{sT}, v5, 8
        v_add_u32 v18, v18, v6
        v_lshrrev_b32 v19, 1, v18
        v_mov_b32 v9, s{sT+1}
        v_cmp_le_u32 vcc, s{sBB}, v19
        v_mov_b32 v20, 0
        s_nop 0
        v_cndmask_b32 v9, v20, v9, vcc
        v_add_u32 v19, v19, v9
        s_mov_b32 s{sT}, {imms}
        v_bfe_u32 v9, s{sT}, v5, 8
        v_add3_u32 v19, v19, v9, v8
        v_and_b32 v19, 15, v19
        v_lshlrev_b32 v19, 4, v19
        v_and_b32 v18, 1, v18
        v_lshlrev_b32 v18, 3, v18
        v_add3_u32 v{vAA+T}, v7, v19, v18
        """)
    xfrag_addr(vBA, 2)
    def kv_reads(kk, buf, sb):
        b = FB[buf]
        e(f"ds_read_b128 v[{b+12}:{b+15}], v{vBA+kk} offset:{sb}")
        for T in range(3):
            for rd in range(2):
                e(f"ds_read_b64_tr_b16 v[{b+4*T+2*rd}:{b+4*T+2*rd+1}], v{vAA+T} offset:{sb+(16*kk+4*rd)*256}")
    def kv_mfmas(buf, first=False):
        b = FB[buf]
        for T in range(3):
            c = "0" if first else f"v[{ACC+16*T}:{ACC+16*T+15}]"
            e(f"v_mfma_f32_32x32x16_bf16 v[{ACC+16*T}:{ACC+16*T+15}], v[{b+4*T}:{b+4*T+3}], v[{b+12}:{b+15}], {c}")
    run_sched('pre')
    e("s_waitcnt lgkmcnt(0)")
    stamp(1)
    e("s_barrier")
    stamp(2)
    vNC, vRF = 38, 42
    vRA = 18; vKA = 26; vKB = 28
    def hoist_pk():
        e(f"""
        v_and_b32 v2, 31, v0
        v_lshrrev_b32 v3, 5, v0
        v_lshlrev_b32 v3, 14, v3
        s_lshl_b32 s{sT}, s{sW4}, 5
        v_add_u32 v2, s{sT}, v2
        v_lshlrev_b32 v2, 7, v2
        v_add_u32 v2, v2, v3
        v_add_u32 v2, {L_PK}, v2
        v_and_b32 v3, 7, v0
        v_bfe_u32 v4, v0, 3, 1
        v_lshlrev_b32 v4, 2, v4
        v_xor_b32 v3, v3, v4
        v_lshlrev_b32 v3, 4, v3
        v_add_u32 v{vRA}, v2, v3
        """)
        for u in range(1, 8): e(f"v_xor_b32 v{vRA+u}, {16*u}, v{vRA}")

    def hoist_kv():
        e(f"""
        v_lshrrev_b32 v2, 4, v0            ; G
        v_bfe_u32 v3, v0, 2, 2             ; rp
        v_and_b32 v4, 3, v0                ; c
        v_lshlrev_b32 v5, 3, v2
        v_add_u32 v5, v5, v3
        v_lshlrev_b32 v5, 7, v5
        s_lshr_b32 s{sT}, s{sW4}, 1
        s_lshl_b32 s{sT}, s{sT}, 14
        s_add_u32 s{sT}, s{sT}, {L_PK}
        v_add_u32 v5, s{sT}, v5
        v_and_b32 v6, 1, v2
        v_lshlrev_b32 v6, 2, v6
        v_xor_b32 v6, v6, v3
        v_lshrrev_b32 v7, 1, v4
        v_and_b32 v8, 1, v4
        v_lshlrev_b32 v8, 3, v8
        v_add_u32 v5, v5, v8
        s_and_b32 s{sT+1}, s{sW4}, 1
        v_add_u32 v9, 5, v7
        v_mov_b32 v40, 7
        s_cmp_eq_u32 s{sT+1}, 1
        s_cselect_b64 vcc, -1, 0
        v_cndmask_b32 v9, v9, v40, vcc
        v_xor_b32 v9, v9, v6
        v_lshlrev_b32 v9, 4, v9
        v_add_u32 v{vKA}, v5, v9
        v_xor_b32 v{vKA+1}, 64, v{vKA}
        v_add_u32 v{vKA+1}, 512, v{vKA+1}
        """)
        for ct in range(3):
            if ct < 2: e(f"v_add_u32 v9, {2*ct}, v7")
            else: e(f"v_mov_b32 v9, 4")
            e(f"""
            v_xor_b32 v9, v9, v6
            v_lshlrev_b32 v9, 4, v9
            v_add_u32 v{vKB+2*ct}, v5, v9
            v_xor_b32 v{vKB+2*ct+1}, 64, v{vKB+2*ct}
            v_add_u32 v{vKB+2*ct+1}, 512, v{vKB+2*ct+1}
            """)
        e(f"""
        v_lshrrev_b32 v2, 4, v0            ; g
        v_and_b32 v3, 15, v0
        s_lshr_b32 s{sT}, s{sW4}, 1
        s_mul_i32 s{sT}, s{sT}, 6
        s_and_b32 s{sT+1}, s{sW4}, 1
        s_lshl_b32 s{sT+2}, s{sT+1}, 2
        s_add_u32 s{sT}, s{sT}, s{sT+2}
        v_add_u32 v4, s{sT}, v2
        v_mul_u32_u24 v4, 40, v4
        v_add_u32 v4, v4, v3
        v_lshlrev_b32 v4, 3, v4
        v_mov_b32 v5, 0x40000000
        s_lshl_b32 s{sT+2}, s{sT+1}, 1
        s_sub_u32 s{sT+2}, 4, s{sT+2}
        v_cmp_gt_u32 vcc, s{sT+2}, v2
        s_nop 1
        v_cndmask_b32 v{vPA}, v5, v4, vcc
        v_cmp_gt_u32 vcc, 8, v3
        s_nop 1
        v_cndmask_b32 v{vPB}, v5, v{vPA}, vcc
        """)

    base = Base([vAA, vAA+1, vAA+2, vBA, vBA+1, vBA+2, vBA+3])
    sb = base.set(0)
    kv_reads(0, 0, sb)
    for s in range(NST):
        for kk in range(3):
            kv_reads(kk+1, (kk+1) & 1, sb)
            e("s_waitcnt lgkmcnt(7)")
            kv_mfmas(kk & 1, first=(s == 0 and kk == 0))
        run_sched(s)
        if s == 0:
            e(f"v_mov_b32 v{vNC}, 0")
            e(f"buffer_load_dword v{vNC+1}, v{vNC}, s[{S_A}:{S_A+3}], 0 offen sc1")
        if s == 1: wphi_frags(WF, 18, 22)
        if s == 4: hoist_pk()
        if s == 5: hoist_kv()
        if s == 2 and 'p1only' not in exp:
            lab = a.newlabel("NF"); lab2 = a.newlabel("NC")
            e(f"""
            s_waitcnt vmcnt(0)
            v_readfirstlane_b32 s{sNONCE}, v{vNC+1}
            s_mov_b32 s{sSPIN}, {SPIN_G}
            s_cmp_lg_u32 s{sNONCE}, 0
            s_cbranch_scc1 {lab}
{lab2}:
            s_sub_u32 s{sSPIN}, s{sSPIN}, 1
            s_cbranch_scc1 L_end
            buffer_load_dword v{vNC+1}, v{vNC}, s[{S_A}:{S_A+3}], 0 offen sc1
            s_waitcnt vmcnt(0)
            v_readfirstlane_b32 s{sNONCE}, v{vNC+1}
            s_nop 0
            s_cmp_eq_u32 s{sNONCE}, 0
            s_cbranch_scc1 {lab2}
{lab}:
            """)
        if s == 3:
            lab = a.newlabel("RD")
            e(f"""
            s_cmp_lg_u32 s{sW4}, 0
            s_cbranch_scc1 {lab}
            s_add_u32 s{sT}, s{sPART}, 3840
            v_mov_b32 v2, 0
            v_mov_b32 v3, s{sNONCE}
            s_mov_b64 exec, 1
            buffer_store_dword v3, v2, s[{S_WS}:{S_WS+3}], s{sT} offen sc1
            s_mov_b64 exec, -1
{lab}:
            """)
        if s == 7:
            e(f"""
            v_and_b32 v2, 15, v0
            s_lshl_b32 s{sT}, s{sHP}, 4
            v_add_u32 v3, s{sT}, v2            ; hp*16 + r
            v_lshlrev_b32 v4, 4, v2
            v_add_u32 v4, s{sRC}, v4           ; h'*16 + rc
            v_bfe_u32 v5, v0, 4, 1
            v_cmp_eq_u32 vcc, 0, v5
            s_mov_b32 s{sT+1}, {WS_PART + 3840}
            s_nop 0
            v_cndmask_b32 v3, v4, v3, vcc
            v_lshlrev_b32 v{vRF}, 12, v3
            buffer_load_dword v{vRF+1}, v{vRF}, s[{S_WS}:{S_WS+3}], s{sT+1} offen sc1
            """)
        e("s_waitcnt lgkmcnt(0)")
        if s + 1 < NST: e("s_barrier")
        sstamp(s+1)
        if s + 1 < NST:
            sb = base.set(s+1)
            kv_reads(0, 0, sb)
        kv_mfmas(1)
    stamp(3)
    if 'p1only' in exp: e("s_branch L_fin")
    loc = {}
    for T, qs in enumerate(TKV):
        for Q, q in enumerate(qs):
            if q is not None: loc[q] = ACC + 16*T + 4*Q
    e("s_nop 9")
    if dump == "kvacc":
        e("s_nop 7"); dump_regs([loc[(sg, j)] + x for sg in range(2) for j in range(5) for x in range(4)], 0)
    for j in range(5):
        e(f"v_cvt_pk_bf16_f32 v{KB+2*j}, v{loc[(0,j)]}, v{loc[(0,j)]+1}")
        e(f"v_cvt_pk_bf16_f32 v{KB+2*j+1}, v{loc[(0,j)]+2}, v{loc[(0,j)]+3}")
    e(f"v_mov_b32 v{KB+10}, 0"); e(f"v_mov_b32 v{KB+11}, 0")
    e("s_nop 0")
    feature_map(KB, WF, PK0, PK1)
    for j in range(5):
        e(f"v_cvt_pk_bf16_f32 v{VB+2*j}, v{loc[(1,j)]}, v{loc[(1,j)]+1}")
        e(f"v_cvt_pk_bf16_f32 v{VB+2*j+1}, v{loc[(1,j)]+2}, v{loc[(1,j)]+3}")
    e(f"v_mov_b32 v{VB+10}, 0x3f80"); e(f"v_mov_b32 v{VB+11}, 0")
    for u in range(3):
        e(f"ds_write_b128 v{vRA+5+u}, v[{VB+4*u}:{VB+4*u+3}]")
    e("s_nop 7")
    e("s_nop 3")
    if dump == "pk":
        dump_regs([PK0+i for i in range(16)] + [PK1+i for i in range(4)], 0)
    softmax_pair(PK0, PK1, EP, EN, PH, TM)
    if dump == "phik": dump_regs([PH+i for i in range(20)], 0)
    for u in range(5):
        e(f"ds_write_b128 v{vRA+u}, v[{PH+4*u}:{PH+4*u+3}]")
    subbar(0)
    stamp(4)
    KD = 192; KF = 64
    for kap in range(4):
        f = KF + 16*kap
        for rd in range(2):
            e(f"ds_read_b64_tr_b16 v[{f+2*rd}:{f+2*rd+1}], v{vKA+rd} offset:{4096*kap}")
        for ct in range(3):
            for rd in range(2):
                e(f"ds_read_b64_tr_b16 v[{f+4+4*ct+2*rd}:{f+4+4*ct+2*rd+1}], v{vKB+2*ct+rd} offset:{4096*kap}")
    for kap in range(4):
        f = KF + 16*kap
        e(f"s_waitcnt lgkmcnt({min(15, 8*(3-kap))})")
        for ct in range(3):
            c = "0" if kap == 0 else f"v[{KD+4*ct}:{KD+4*ct+3}]"
            e(f"v_mfma_f32_16x16x32_bf16 v[{KD+4*ct}:{KD+4*ct+3}], v[{f}:{f+3}], v[{f+4+4*ct}:{f+4+4*ct+3}], {c}")
    subsignal(1)
    vWO = 40
    srd(S_B, 10, 640*1280)
    wo_setup(vWO, 2)
    for ct in range(3):
        e(f"v_cvt_pk_bf16_f32 v{KD+16+2*ct}, v{KD+4*ct}, v{KD+4*ct+1}")
        e(f"v_cvt_pk_bf16_f32 v{KD+16+2*ct+1}, v{KD+4*ct+2}, v{KD+4*ct+3}")
    for ct in range(3):
        e(f"v_min_u32 v{KD+16+2*ct}, -2, v{KD+16+2*ct}")
    for ct in range(3):
        e(f"buffer_store_dwordx2 v[{KD+16+2*ct}:{KD+16+2*ct+1}], v{vPA if ct < 2 else vPB}, s[{S_WS}:{S_WS+3}], s{sPART} offen offset:{128*ct} sc1")
    stamp(5)
    lab = a.newlabel("RC"); lab2 = a.newlabel("RP")
    e(f"""
    s_waitcnt vmcnt(3)
    s_mov_b32 s{sSPIN}, {SPIN_G}
    s_mov_b32 s{sT+1}, {WS_PART + 3840}
    v_cmp_ne_u32 vcc, s{sNONCE}, v{vRF+1}
    s_cbranch_vccz {lab}
{lab2}:
    s_sub_u32 s{sSPIN}, s{sSPIN}, 1
    s_cbranch_scc1 L_end
    buffer_load_dword v{vRF+1}, v{vRF}, s[{S_WS}:{S_WS+3}], s{sT+1} offen sc1
    s_waitcnt vmcnt(0)
    v_cmp_ne_u32 vcc, s{sNONCE}, v{vRF+1}
    s_cbranch_vccnz {lab2}
{lab}:
    """)
    subwait(1, target=8)
    e(f"s_mov_b64 exec, s[{sEX}:{sEX+1}]")
    for sg in WO_P2:
        for rd in range(2): wo_dma(sg, rd, vWO)
    e("s_mov_b64 exec, -1")
    PL = 64; SUM = 128; IDA = 144; sMASK = 69; sMK = 70
    WO_PC = WO_ALL1[:NCS]; WO_PD = WO_ALL1[NCS:]
    e(f"""
    s_mov_b64 s[{sMK}:{sMK+1}], s[{sEX}:{sEX+1}]
    s_lshl_b32 s{sT+4}, s{sHP}, 16
    s_add_u32 s{sT+4}, s{sT+4}, {WS_PART}
    s_lshl_b32 s{sT}, s{sW4}, 6
    v_add_u32 v6, s{sT}, v0            ; tau
    v_lshlrev_b32 v7, 4, v6
    v_mov_b32 v4, 0x40000000
    v_cmp_gt_u32 vcc, 240, v6
    s_mov_b32 s{sT}, s{sT+4}
    s_mov_b32 s{sMASK}, 0xffff
    v_cndmask_b32 v7, v4, v7, vcc
    """)
    stamp(6)
    for r in range(16):
        e(f"buffer_load_dwordx4 v[{PL+4*r}:{PL+4*r+3}], v7, s[{S_WS}:{S_WS+3}], s{sT} offen sc1")
        e(f"s_add_u32 s{sT}, s{sT}, 4096")
    if VRED:
        for i in range(8): e(f"v_mov_b32 v{SUM+i}, 0")
        e(f"""
        v_mul_u32_u24 v4, 205, v6
        v_lshrrev_b32 v4, 12, v4           ; tau/20
        v_mul_u32_u24 v5, 20, v4
        v_sub_u32 v5, v6, v5               ; fp
        v_mul_u32_u24 v5, 96, v5
        v_mul_u32_u24 v8, 43, v4
        v_lshrrev_b32 v8, 8, v8            ; hd
        v_mul_u32_u24 v9, 6, v8
        v_sub_u32 v9, v4, v9               ; dq
        v_mul_u32_u24 v8, 1920, v8
        v_lshlrev_b32 v9, 3, v9
        v_add3_u32 v5, v5, v8, v9
        v_add_u32 v4, {L_KVF}, v5
        v_mov_b32 v9, {L_CNT + 512}
        v_cmp_gt_u32 vcc, 240, v6
        s_nop 1
        v_cndmask_b32 v4, v9, v4, vcc
        v_add_u32 v5, 48, v4
        """)
    else:
        e(f"""
        v_and_b32 v2, 15, v0
        v_lshrrev_b32 v3, 4, v0            ; G
        v_lshrrev_b32 v4, 3, v2            ; i>>3
        v_and_b32 v5, 7, v2                ; j*
        v_lshrrev_b32 v8, 1, v5            ; reg
        v_and_b32 v5, 1, v5
        v_lshlrev_b32 v5, 4, v5
        v_mov_b32 v9, 0x3f80
        v_lshlrev_b32 v9, v5, v9           ; 1.0 in the right half
        v_mov_b32 v13, 0
        """)
        for u in range(2):
            e(f"v_add_u32 v5, {2*u}, v4")
            e(f"v_cmp_eq_u32 s[{sT}:{sT+1}], v5, v3")
            for rr in range(4):
                e(f"v_cmp_eq_u32 vcc, {rr}, v8")
                e(f"s_nop 0")
                e(f"s_and_b64 vcc, vcc, s[{sT}:{sT+1}]")
                e(f"v_cndmask_b32 v{IDA+4*u+rr}, v13, v9, vcc")
        for i in range(8): e(f"v_mov_b32 v{SUM+i}, 0")
        e(f"""
        v_and_b32 v2, 15, v0
        v_lshrrev_b32 v3, 5, v0            ; g>>1
        v_lshlrev_b32 v3, 4, v3
        s_lshl_b32 s{sT}, s{sW4}, 6
        v_add3_u32 v2, v2, v3, s{sT}
        v_bfe_u32 v3, v0, 4, 1             ; p
        v_mul_u32_u24 v3, 48, v3
        """)
        for u in range(2):
            t = 4 + u
            e(f"""
            v_add_u32 v8, {32*u}, v2           ; tau
            v_mul_u32_u24 v9, 205, v8
            v_lshrrev_b32 v9, 12, v9           ; tau/20
            v_mul_u32_u24 v{t}, 20, v9
            v_sub_u32 v{t}, v8, v{t}           ; fp
            v_mul_u32_u24 v{t}, 96, v{t}
            v_mul_u32_u24 v13, 43, v9
            v_lshrrev_b32 v13, 8, v13          ; hd
            v_mul_u32_u24 v41, 6, v13
            v_sub_u32 v41, v9, v41             ; dq
            v_mul_u32_u24 v13, 1920, v13
            v_lshlrev_b32 v41, 3, v41
            v_add3_u32 v{t}, v{t}, v13, v41
            v_add3_u32 v{t}, v{t}, v3, 0
            v_add_u32 v{t}, {L_KVF}, v{t}
            v_mov_b32 v41, {L_CNT + 512}
            v_cmp_gt_u32 vcc, 240, v8
            s_nop 1
            v_cndmask_b32 v{t}, v41, v{t}, vcc
            """)

    def acc(r, lab):
        e(f"""
        v_max_u32 v13, v{PL+4*r}, v{PL+4*r+2}
        v_cmp_eq_u32 vcc, -1, v13
        s_cbranch_vccnz {lab}
        s_bitset0_b32 s{sMASK}, {r}
        """)
        if VRED:
            for i in range(4):
                src = PL + 4*r + i
                e(f"v_lshlrev_b32 v{SUM+8}, 16, v{src}")
                e(f"v_and_b32 v{SUM+9}, 0xffff0000, v{src}")
                e(f"v_add_f32 v{SUM+2*i}, v{SUM+2*i}, v{SUM+8}")
                e(f"v_add_f32 v{SUM+2*i+1}, v{SUM+2*i+1}, v{SUM+9}")
        else:
            for u in range(2):
                e(f"v_mfma_f32_16x16x32_bf16 v[{SUM+4*u}:{SUM+4*u+3}], v[{IDA+4*u}:{IDA+4*u+3}], v[{PL+4*r}:{PL+4*r+3}], v[{SUM+4*u}:{SUM+4*u+3}]")
        a.label(lab)
    nC = 2*len(WO_PC)
    if nC:
        e(f"s_mov_b64 exec, s[{sMK}:{sMK+1}]")
        for sg in WO_PC:
            for rd in range(2): wo_dma(sg, rd, vWO)
        e("s_mov_b64 exec, -1")
    for r in range(16):
        e(f"s_waitcnt vmcnt({15-r+nC})")
        if r == 0: e(f"v_max_u32 v{SUM+10}, v{PL}, v{PL+2}")
        else: e(f"v_max3_u32 v{SUM+10}, v{SUM+10}, v{PL+4*r}, v{PL+4*r+2}")
        for i in range(4):
            src = PL + 4*r + i
            e(f"v_lshlrev_b32 v{SUM+8}, 16, v{src}")
            e(f"v_and_b32 v{SUM+9}, 0xffff0000, v{src}")
            if PKRED: e(f"v_pk_add_f32 v[{SUM+2*i}:{SUM+2*i+1}], v[{SUM+2*i}:{SUM+2*i+1}], v[{SUM+8}:{SUM+9}]")
            else:
                e(f"v_add_f32 v{SUM+2*i}, v{SUM+2*i}, v{SUM+8}")
                e(f"v_add_f32 v{SUM+2*i+1}, v{SUM+2*i+1}, v{SUM+9}")
    e(f"""
    v_cmp_eq_u32 vcc, -1, v{SUM+10}
    s_cbranch_vccz L_s1_done
    """)
    for i in range(8): e(f"v_mov_b32 v{SUM+i}, 0")
    for r in range(16):
        acc(r, f"L_s1a_{r}")
    e(f"""
    s_mov_b32 s{sSPIN}, {SPIN_G}
L_s1_loop:
    s_cmp_eq_u32 s{sMASK}, 0
    s_cbranch_scc1 L_s1_done
    s_sub_u32 s{sSPIN}, s{sSPIN}, 1
    s_cbranch_scc1 L_end
    """)
    for r in range(16):
        e(f"""
        s_bitcmp0_b32 s{sMASK}, {r}
        s_cbranch_scc1 L_s1l_{r}
        s_add_u32 s{sT}, s{sT+4}, {4096*r}
        buffer_load_dwordx4 v[{PL+4*r}:{PL+4*r+3}], v7, s[{S_WS}:{S_WS+3}], s{sT} offen sc1
L_s1l_{r}:
        """)
    e("s_waitcnt vmcnt(0)")
    for r in range(16):
        e(f"s_bitcmp0_b32 s{sMASK}, {r}")
        e(f"s_cbranch_scc1 L_s1b_{r}")
        acc(r, f"L_s1b_{r}")
    e("s_branch L_s1_loop")
    a.label("L_s1_done")
    e("s_nop 7")
    for u in range(2):
        e(f"v_cvt_pk_bf16_f32 v{SUM+12+2*u}, v{SUM+4*u}, v{SUM+4*u+1}")
        e(f"v_cvt_pk_bf16_f32 v{SUM+13+2*u}, v{SUM+4*u+2}, v{SUM+4*u+3}")
    e(f"ds_write_b64 v4, v[{SUM+12}:{SUM+13}]")
    e(f"ds_write_b64 v5, v[{SUM+14}:{SUM+15}]")
    subsignal(2)
    stamp(7)
    if DWAIT: subwait(5, tmp=8)
    e(f"s_mov_b64 exec, s[{sMK}:{sMK+1}]")
    for sg in WO_PD:
        for rd in range(2): wo_dma(sg, rd, vWO)
    e("s_mov_b64 exec, -1")
    vWA = 10
    e(f"""
    v_lshrrev_b32 v2, 4, v0            ; G
    v_bfe_u32 v3, v0, 2, 2             ; rp
    v_and_b32 v4, 3, v0                ; c
    v_lshrrev_b32 v5, 1, v2
    v_lshlrev_b32 v5, 4, v5            ; 16*(G>>1)
    v_and_b32 v6, 1, v2
    v_lshlrev_b32 v6, 2, v6            ; 4*(G&1)
    v_add3_u32 v5, v5, v6, v3
    v_mul_u32_u24 v5, 160, v5
    v_lshlrev_b32 v4, 3, v4
    v_add_u32 v{vWA}, v5, v4
    v_add_u32 v{vWA+1}, 0x10000, v{vWA}
    v_add_u32 v{vWA+2}, 0x20000, v{vWA}
    s_and_b32 s{sT}, s{sHP}, 1
    s_lshl_b32 s{sT}, s{sT}, 2
    s_add_u32 s{sT}, s{sT}, s{sW4}     ; tt
    s_lshl_b32 s{sT+1}, s{sRC}, 3
    s_add_u32 s{sT+6}, s{sT}, s{sT+1}
    s_mul_i32 s{sT+4}, s{sT+6}, 20480
    s_add_u32 s{sT+4}, s{sT+4}, {WS_O}
    v_and_b32 v2, 15, v0
    v_lshrrev_b32 v3, 2, v2
    v_mul_u32_u24 v3, 5120, v3
    v_and_b32 v4, 3, v2
    v_lshlrev_b32 v4, 8, v4
    v_add3_u32 v2, v3, v4, 0
    v_add_u32 v2, 4096, v2
    v_lshlrev_b32 v7, 4, v0            ; lane*16
    """)
    OF = 96; OD = 40; AB = [176, 196, 216, 236, 60, 16]
    NB = len(AB)
    def wo_reads(sg):
        L = L_WO(sg); reg = vWA + L // 65536; b = AB[sg % NB]
        assert (L // 65536) == ((L + 1408) // 65536)
        off = L % 65536
        for nt in range(5):
            for rd in range(2):
                e(f"ds_read_b64_tr_b16 v[{b+4*nt+2*rd}:{b+4*nt+2*rd+1}], v{reg} offset:{off + rd*1280 + nt*32}")
    e("s_waitcnt vmcnt(0)")
    def wo_reads_nt(sg, nt):
        L = L_WO(sg); reg = vWA + L // 65536; b = AB[sg % NB]
        off = L % 65536
        for rd in range(2):
            e(f"ds_read_b64_tr_b16 v[{b+4*nt+2*rd}:{b+4*nt+2*rd+1}], v{reg} offset:{off + rd*1280 + nt*32}")
    subbar(6, tmp=8)
    def oload(sg):
        d = OF + 4*sg
        e(f"buffer_load_dwordx4 v[{d}:{d+3}], v7, s[{S_WS}:{S_WS+3}], s{sT} offen offset:{(sg%4)*1024} sc1")
        if sg % 4 == 3: e(f"s_add_u32 s{sT}, s{sT}, 4096")
    def poll(): e(f"buffer_load_dword v3, v2, s[{S_WS}:{S_WS+3}], s{sT+4} offen sc1")
    def sloads():
        e(f"s_add_u32 s{sT}, s{sT+4}, {8*1024}")
        for sg in range(10, 20): oload(sg)
    poll()
    for sg in range(NB): wo_reads(sg)
    e(f"""
    s_mov_b32 s{sSPIN}, {SPIN_G}
    s_mov_b32 s{sFC}, 0
    s_mov_b32 s{sT+2}, 0x00ff00ff
    s_mov_b32 s{sT+3}, 0x00ff00ff
L_s2f_chk:
    s_waitcnt vmcnt(0)
    v_cmp_eq_u32 vcc, -1, v3
    s_and_b64 vcc, vcc, s[{sT+2}:{sT+3}]
    s_cbranch_vccz L_s2f_go
    s_sub_u32 s{sSPIN}, s{sSPIN}, 1
    s_cbranch_scc1 L_end
    """)
    poll()
    e(f"""
    s_branch L_s2f_chk
L_s2f_go:
    s_mov_b32 s{sT}, s{sT+4}
    """)
    for sg in range(10): oload(sg)
    e(f"""
    s_mov_b32 s{sT+2}, 0xff00ff00
    s_mov_b32 s{sT+3}, 0xff00ff00
    v_cmp_eq_u32 vcc, -1, v3
    s_and_b64 vcc, vcc, s[{sT+2}:{sT+3}]
    s_cbranch_vccz L_s2_sl
    """)
    poll()
    e(f"""
    s_waitcnt vmcnt(0)
    v_cmp_eq_u32 vcc, -1, v3
    s_and_b64 vcc, vcc, s[{sT+2}:{sT+3}]
    s_cbranch_vccz L_s2_sl
    """)
    poll()
    e(f"""
    s_branch L_s2_p
L_s2_sl:
    s_mov_b32 s{sFC}, 2
    """)
    sloads()
    a.label("L_s2_p")
    stamp(8)
    retries = []
    e(f"s_mov_b32 s{sSPIN}, {SPIN_G}")
    for sg in range(20):
        if sg == 10:
            e(f"""
            s_cmp_eq_u32 s{sFC}, 2
            s_cbranch_scc1 L_s2_have
L_s2_chk:
            s_waitcnt vmcnt(0)
            v_cmp_eq_u32 vcc, -1, v3
            s_and_b64 vcc, vcc, s[{sT+2}:{sT+3}]
            s_cbranch_vccz L_s2_go
            s_sub_u32 s{sSPIN}, s{sSPIN}, 1
            s_cbranch_scc1 L_end
            """)
            poll()
            e("s_branch L_s2_chk")
            a.label("L_s2_go")
            sloads()
            a.label("L_s2_have")
        e(f"s_waitcnt vmcnt({19-sg}) lgkmcnt({10 if (sg >= 1 and sg + NB - 1 < 20) else 0})")
        o = OF + 4*sg
        a.label(f"L_chk_{sg}")
        e(f"v_max_u32 v13, v{o}, v{o+2}")
        e(f"v_cmp_eq_u32 vcc, -1, v13")
        e(f"s_cbranch_vccnz L_rt_{sg}")
        retries.append(sg)
        for nt in range(5):
            D = OD + 4*nt
            c = "0" if sg == 0 else f"v[{D}:{D+3}]"
            b = AB[sg % NB] + 4*nt
            e(f"v_mfma_f32_16x16x32_bf16 v[{D}:{D+3}], v[{b}:{b+3}], v[{o}:{o+3}], {c}")
            if sg + NB < 20: wo_reads_nt(sg + NB, nt)
    srd(S_B, 12, 2048*1280)
    e(f"""
    v_and_b32 v2, 15, v0
    v_lshrrev_b32 v3, 4, v0
    s_lshl_b32 s{sT}, s{sT+6}, 4
    v_add_u32 v2, s{sT}, v2
    v_mul_u32_u24 v2, 1280, v2
    v_lshlrev_b32 v4, 3, v3
    v_add_u32 v2, v2, v4
    s_lshr_b32 s{sT}, s{sHP}, 1
    s_mul_i32 s{sT}, s{sT}, 160
    """)
    for nt in range(5):
        D = OD + 4*nt; P = 64 + 2*nt
        e(f"v_cvt_pk_bf16_f32 v{P}, v{D}, v{D+1}")
        e(f"v_cvt_pk_bf16_f32 v{P+1}, v{D+2}, v{D+3}")
    for nt in range(5):
        P = 64 + 2*nt
        e(f"buffer_store_dwordx2 v[{P}:{P+1}], v2, s[{S_B}:{S_B+3}], s{sT} offen offset:{32*nt} {OUTFL}")
    e("s_branch L_fin")
    for sg in retries:
        o = OF + 4*sg
        a.label(f"L_rt_{sg}")
        e(f"""
        s_sub_u32 s{sSPIN}, s{sSPIN}, 1
        s_cbranch_scc1 L_end
        s_add_u32 s{sT}, s{sT+4}, {sg*1024}
        buffer_load_dwordx4 v[{o}:{o+3}], v7, s[{S_WS}:{S_WS+3}], s{sT} offen sc1
        s_waitcnt vmcnt(0)
        s_branch L_chk_{sg}
        """)

    a.label("L_lq")
    vVX, vVW, vWQ = 10, 11, 12
    vBA = 14
    XF = 64
    e(f"""
    v_lshrrev_b32 v2, 3, v0
    s_lshl_b32 s{sT}, s{sW4}, 3
    v_add_u32 v2, s{sT}, v2
    v_mul_u32_u24 v2, 1280, v2
    v_lshrrev_b32 v3, 4, v0                 ; r = l>>4
    s_and_b32 s{sT}, s{sW4}, 1
    s_lshl_b32 s{sT}, s{sT}, 2
    v_add_u32 v4, s{sT}, v3
    v_and_b32 v5, 7, v0
    v_xor_b32 v5, v5, v4
    v_lshlrev_b32 v5, 4, v5
    v_add_u32 v{vVX}, v2, v5
    v_and_b32 v4, 15, v0
    v_lshlrev_b32 v5, 2, v3
    v_sub_u32 v4, v4, v5
    v_and_b32 v4, 15, v4                    ; pos
    v_lshrrev_b32 v5, 3, v4                 ; seg
    v_bfe_u32 v6, v4, 2, 1                  ; part
    v_and_b32 v7, 3, v4                     ; i4
    v_mul_lo_u32 v8, v6, s{sBB}
    v_add_u32 v8, v8, v7                    ; j
    v_mov_b32 v9, 5
    v_mov_b32 v13, s{sBB}
    v_cmp_eq_u32 vcc, 0, v6
    s_lshl_b32 s{sT}, s{sW4}, 2
    v_add_u32 v2, s{sT}, v3
    v_cndmask_b32 v9, v9, v13, vcc
    v_cmp_lt_u32 vcc, v8, v9
    v_mul_u32_u24 v2, 3840, v2
    v_add_u32 v5, 1, v5
    v_mul_u32_u24 v5, 1280, v5
    v_lshlrev_b32 v8, 4, v8
    v_add3_u32 v{vVW}, v2, v5, v8
    v_mov_b32 v7, 0x40000000
    v_cndmask_b32 v{vVW}, v7, v{vVW}, vcc
    s_mul_i32 s{sSOFX}, s{sRC}, {128*1280}
    s_mul_i32 s{sSOFW}, s{sHP}, 80
    s_lshl_b32 s{sM0}, s{sW4}, 10
    """)
    stamp(4)
    e("s_waitcnt lgkmcnt(0)")
    stamp(8)
    srd(S_X, 4, 2048*1280)
    srd(S_W, 6, 640*3840)
    rotmode = [x for x in exp.split(',') if x.startswith('rot')]
    if rotmode:
        rm = rotmode[0]
        if rm == 'rot1': e(f"s_and_b32 s65, s{sHP}, 1")
        elif rm == 'rot5': e(f"s_and_b32 s65, s{sHP}, 1"); e("s_mul_i32 s65, s65, 5")
        elif rm == 'rotrc': e(f"s_and_b32 s65, s{sRC}, 1")
        elif rm == 'rothp': e(f"s_and_b32 s65, s{sHP}, 7")
        elif rm == 'rotmix': e(f"s_xor_b32 s65, s{sHP}, s{sRC}"); e("s_and_b32 s65, s65, 1")
    def issue_stage(s):
        m0b = (s % R) * SLOT
        if rotmode:
            e(f"s_add_u32 s66, s65, {s}")
            e(f"s_sub_u32 s67, s66, 10")
            e(f"s_cmp_ge_u32 s66, 10")
            e(f"s_cselect_b32 s66, s67, s66")
            e(f"s_mul_i32 s67, s66, {64*3840}")
            e(f"s_lshl_b32 s66, s66, 7")
            e(f"s_add_u32 s66, s66, s{sSOFX}")
            e(f"s_add_u32 s67, s67, s{sSOFW}")
            for m in range(4):
                e(f"s_add_u32 m0, s{sM0}, {m0b + m*4096}")
                e(f"s_add_u32 s{sT}, s66, {m*32*1280}")
                e(f"buffer_load_dwordx4 v{vVX}, s[{S_X}:{S_X+3}], s{sT} offen lds")
                e(f"s_add_u32 m0, s{sM0}, {m0b + 16384 + m*4096}")
                e(f"s_add_u32 s{sT}, s67, {m*16*3840}")
                e(f"buffer_load_dwordx4 v{vVW}, s[{S_W}:{S_W+3}], s{sT} offen lds")
            return
        for m in range(4):
            e(f"s_add_u32 m0, s{sM0}, {m0b + m*4096}")
            e(f"s_add_u32 s{sT}, s{sSOFX}, {m*32*1280 + s*128}")
            e(f"buffer_load_dwordx4 v{vVX}, s[{S_X}:{S_X+3}], s{sT} offen lds")
            e(f"s_add_u32 m0, s{sM0}, {m0b + 16384 + m*4096}")
            e(f"s_add_u32 s{sT}, s{sSOFW}, {m*16*3840 + s*64*3840}")
            e(f"buffer_load_dwordx4 v{vVW}, s[{S_W}:{S_W+3}], s{sT} offen lds")
    issue_stage(0)
    srd(S_A, 8, 32*800)
    e(f"""
    v_lshlrev_b32 v2, 4, v0
    s_and_b32 s{sT}, s{sW4}, 1
    s_lshl_b32 s{sT}, s{sT}, 10
    s_add_u32 m0, s{sT}, {L_PHI}
    s_mul_i32 s{sT+1}, s{sHP}, 1600
    s_add_u32 s{sT}, s{sT}, s{sT+1}
    buffer_load_dwordx4 v2, s[{S_A}:{S_A+3}], s{sT} offen lds
    """)
    issue_stage(1)
    srd(S_WS, 16, 0x10000000)
    sPART = 64
    e(f"""
    s_lshl_b32 s{sPART}, s{sHP}, 4
    s_add_u32 s{sPART}, s{sPART}, s{sRC}
    s_lshl_b32 s{sPART}, s{sPART}, 12
    s_add_u32 s{sPART}, s{sPART}, {WS_PART}
    v_mov_b32 v40, -1
    v_mov_b32 v41, -1
    v_mov_b32 v42, -1
    v_mov_b32 v43, -1
    s_lshl_b32 s{sT}, s{sW4}, 6
    v_add_u32 v2, s{sT}, v0            ; tau
    v_lshlrev_b32 v8, 4, v2
    v_mov_b32 v3, 0x40000000
    v_cmp_gt_u32 vcc, 240, v2
    v_lshrrev_b32 v9, 4, v0            ; g = l>>4
    v_and_b32 v44, 15, v0
    v_cndmask_b32 v8, v3, v8, vcc
    v_lshlrev_b32 v44, 4, v44          ; t'*16
    s_lshl_b32 s{sT}, s{sRC}, 3
    s_lshl_b32 s{sT+1}, s{sW4}, 1
    s_add_u32 s{sT}, s{sT}, s{sT+1}
    s_mul_i32 s{sT}, s{sT}, 20480
    s_mul_i32 s{sT+1}, s{sBLK}, 5120
    s_add_u32 s{sT}, s{sT}, s{sT+1}
    s_lshl_b32 s{sT+1}, s{sG}, 8
    s_add_u32 s{sT}, s{sT}, s{sT+1}
    s_add_u32 s{sT+3}, s{sT}, {WS_O}
    v_lshlrev_b32 v45, 10, v9
    v_add_u32 v45, v45, v44            ; i=0
    v_mov_b32 v46, 4096
    v_add_u32 v47, -1, v9
    v_lshlrev_b32 v47, 10, v47
    v_add_u32 v47, 20480, v47
    v_cmp_eq_u32 vcc, 0, v9
    s_nop 1
    v_cndmask_b32 v46, v47, v46, vcc
    v_add_u32 v46, v46, v44            ; i=1
    v_add_u32 v47, 3, v9
    v_lshlrev_b32 v47, 10, v47
    v_add_u32 v47, 20480, v47
    v_add_u32 v47, v47, v44
    v_cmp_gt_u32 vcc, 2, v9
    s_nop 1
    v_cndmask_b32 v47, v3, v47, vcc    ; i=2
    buffer_store_dwordx4 v[40:43], v8, s[{S_WS}:{S_WS+3}], s{sPART} offen sc1
    buffer_store_dwordx4 v[40:43], v45, s[{S_WS}:{S_WS+3}], s{sT+3} offen sc1
    buffer_store_dwordx4 v[40:43], v46, s[{S_WS}:{S_WS+3}], s{sT+3} offen sc1
    buffer_store_dwordx4 v[40:43], v47, s[{S_WS}:{S_WS+3}], s{sT+3} offen sc1
    """)
    xfrag_addr(vBA, 2)
    VQ = [12, 13, 22, 23, 62]
    for j in range(5):
        e(f"""
        v_add_u32 v2, {64*j}, v0               ; n = 64j + l  (0..319)
        v_mul_u32_u24 v3, 205, v2
        v_lshrrev_b32 v3, 10, v3               ; n/5
        v_mul_u32_u24 v4, 5, v3
        v_sub_u32 v4, v2, v4                   ; n%5
        v_lshlrev_b32 v4, 4, v4
        v_mul_u32_u24 v3, 3840, v3
        v_add_u32 v{VQ[j]}, v3, v4
        """)
    def issue_wq_all():
        for gi in range(3):
            lab = a.newlabel("WQ")
            if gi == 2:
                e(f"s_cmp_ge_u32 s{sW4}, 2")
                e(f"s_cbranch_scc1 {lab}")
            e(f"s_mul_i32 s{sT+1}, s{sW4}, 5120")
            e(f"s_mul_i32 s{sT+2}, s{sW4}, {64*3840}")
            e(f"s_add_u32 s{sT+2}, s{sT+2}, s{sSOFW}")
            e(f"s_add_u32 s{sT+2}, s{sT+2}, {gi*4*64*3840}")
            for j in range(5):
                e(f"s_add_u32 m0, s{sT+1}, {L_WQ + gi*4*5120 + j*1024}")
                e("s_nop 0")
                e(f"buffer_load_dwordx4 v{VQ[j]}, s[{S_W}:{S_W+3}], s{sT+2} offen lds")
            a.label(lab)
    base = Base([vBA, vBA+1, vBA+2, vBA+3])
    stamp(1)
    for s in range(NST):
        if s <= 1: e("s_waitcnt vmcnt(12) lgkmcnt(0)")
        elif s <= 8: e("s_waitcnt vmcnt(8) lgkmcnt(0)")
        else: e("s_waitcnt vmcnt(0) lgkmcnt(0)")
        e("s_barrier")
        sstamp(s+1)
        if s == 0: stamp(2)
        sb = base.set(s)
        for kk in range(4):
            d = XF + 16*s + 4*kk
            e(f"ds_read_b128 v[{d}:{d+3}], v{vBA+kk} offset:{sb}")
        if s + 2 < NST: issue_stage(s+2)
        if s == NST - 1:
            issue_wq_all()
    vOA = 56
    def HOIST_LQ():
        lane_decomp32(2, 3, 4, 5, 6)
        e(f"""
        v_mul_u32_u24 v7, 800, v6
        v_mul_u32_u24 v8, 40, v3
        v_add_u32 v7, v7, v8
        v_lshlrev_b32 v8, 3, v5
        v_add_u32 v7, v7, v8
        v_add_u32 v7, {L_PHI}, v7
        v_lshrrev_b32 v8, 1, v2
        v_mov_b32 v21, {L_ZERO}
        v_cmp_eq_u32 vcc, v8, v6
        s_nop 1
        v_cndmask_b32 v20, v21, v7, vcc
        v_cmp_eq_u32 s[46:47], 0, v5
        s_nop 1
        s_and_b64 vcc, vcc, s[46:47]
        v_add_u32 v7, 32, v7
        s_nop 0
        v_cndmask_b32 v21, v21, v7, vcc
        """)

        lane_decomp32(2, 3, 4, 5, 6)
        e(f"""
        v_mul_u32_u24 v7, 1920, v6
        v_mul_u32_u24 v8, 48, v3
        v_lshlrev_b32 v9, 3, v5
        v_add3_u32 v7, v7, v8, v9
        v_add_u32 v7, {L_KVF}, v7
        v_lshrrev_b32 v8, 1, v2
        v_mov_b32 v9, {L_ZERO}
        v_cmp_eq_u32 vcc, v8, v6
        s_nop 1
        v_cndmask_b32 v{vOA}, v9, v7, vcc
        v_cmp_gt_u32 s[46:47], 2, v5
        s_nop 1
        s_and_b64 vcc, vcc, s[46:47]
        v_add_u32 v7, 32, v7
        s_nop 0
        v_cndmask_b32 v{vOA+1}, v9, v7, vcc
        v_and_b32 v2, 15, v0
        v_lshlrev_b32 v2, 4, v2
        v_bfe_u32 v3, v0, 4, 1
        v_mul_u32_u24 v3, 20480, v3
        v_add_u32 v2, v2, v3
        v_lshrrev_b32 v4, 5, v0            ; h
        v_lshlrev_b32 v5, 11, v4           ; c5 = 2h -> 2h*1024
        v_add_u32 v58, v5, v2
        v_lshlrev_b32 v6, 3, v4
        v_add_u32 v59, v6, v2
        s_lshl_b32 s44, s{sRC}, 3
        s_lshl_b32 s{sT+1}, s{sW4}, 1
        s_add_u32 s44, s44, s{sT+1}
        s_mul_i32 s44, s44, 20480
        s_mul_i32 s{sT+1}, s{sBLK}, 5120
        s_add_u32 s44, s44, s{sT+1}
        s_lshl_b32 s{sT+1}, s{sG}, 8
        s_add_u32 s44, s44, s{sT+1}
        s_add_u32 s44, s44, {WS_O}
        s_add_u32 s45, s44, 4096
        """)

    QA = 224; vQA = 18; vWO = 56
    lane_decomp32(2, 3, 4, 5, 6)
    e(f"""
    v_lshrrev_b32 v7, 1, v2
    v_lshlrev_b32 v7, 3, v7
    v_add_u32 v7, v7, v3
    v_mul_u32_u24 v7, 80, v7
    v_mul_u32_u24 v6, 40, v6
    v_add_u32 v7, v7, v6
    v_add_u32 v7, {L_WQ}, v7
    v_lshlrev_b32 v5, 3, v5
    v_add_u32 v{vQA}, v7, v5
    v_add_u32 v{vQA+1}, 32, v7
    """)
    e("s_waitcnt lgkmcnt(0)")
    subsignal(1, tmp=60)
    HOIST_LQ()
    e("s_waitcnt vmcnt(0)")
    subbar(7, tmp=60)
    subwait(0, tmp=60)
    if 'prio' in exp: e("s_setprio 1")
    stamp(3)
    if 'p1only' in exp:
        e("s_waitcnt vmcnt(0)")
        e("s_branch L_fin")
    QF3 = [24, 32, 40, 48]
    def q_reads3(k):
        b = QF3[k % 4]
        for T in range(2):
            for rd in range(2):
                e(f"ds_read_b64_tr_b16 v[{b+4*T+2*rd}:{b+4*T+2*rd+1}], v{vQA+T} offset:{(16*k+4*rd)*80}")
    wolist = [(sg, rd) for sg in WO_P1 for rd in range(2)]
    nwo = 0
    q_reads3(0); q_reads3(1); q_reads3(2)
    for k in range(40):
        if k + 3 < 40:
            q_reads3(k+3)
            e("s_waitcnt lgkmcnt(12)")
        else: e(f"s_waitcnt lgkmcnt({4*(39-k)})")
        for T in range(2):
            c = "0" if k == 0 else f"v[{QA+16*T}:{QA+16*T+15}]"
            b = QF3[k % 4]
            e(f"v_mfma_f32_32x32x16_bf16 v[{QA+16*T}:{QA+16*T+15}], v[{b+4*T}:{b+4*T+3}], v[{XF+4*k}:{XF+4*k+3}], {c}")
    if 'prio' in exp: e("s_setprio 0")
    stamp(5)
    WF = 64; QB = 88; PQ0 = 100; PQ1 = 116; EP = 132; EN = 152; PH = 172; TM = 192
    for u in range(2):
        for step in range(3):
            for rd in range(2):
                d = WF + u*12 + step*4 + 2*rd
                if step == 2 and rd == 1:
                    e(f"v_mov_b32 v{d}, 0"); e(f"v_mov_b32 v{d+1}, 0")
                else:
                    e(f"ds_read_b64_tr_b16 v[{d}:{d+1}], v{20+u} offset:{(8*step+4*rd)*40}")
    e("s_nop 7")
    if dump == "qacc":
        e("s_nop 7"); dump_regs([QA+i for i in range(20)], 0)
    for j in range(5):
        src = QA + 4*j if j < 4 else QA + 16
        e(f"v_cvt_pk_bf16_f32 v{QB+2*j}, v{src}, v{src+1}")
        e(f"v_cvt_pk_bf16_f32 v{QB+2*j+1}, v{src+2}, v{src+3}")
    e(f"v_mov_b32 v{QB+10}, 0"); e(f"v_mov_b32 v{QB+11}, 0")
    e("s_waitcnt lgkmcnt(0)")
    feature_map(QB, WF, PQ0, PQ1)
    e("s_nop 7")
    e("s_nop 3")
    softmax_pair(PQ0, PQ1, EP, EN, PH, TM)
    if dump == "phiq": dump_regs([PH+i for i in range(20)], 0)
    stamp(6)
    subwait(2)
    stamp(7)
    KA = 64; N0 = 104; N1 = 120
    for st in range(5):
        for U in range(2):
            for rd in range(2):
                d = KA + (U*5+st)*4 + 2*rd
                e(f"ds_read_b64_tr_b16 v[{d}:{d+1}], v{vOA+U} offset:{(8*st+4*rd)*48}")
    for st in range(5):
        e(f"s_waitcnt lgkmcnt({min(15, 4*(4-st))})")
        for U, N in ((0, N0), (1, N1)):
            c = "0" if st == 0 else f"v[{N}:{N+15}]"
            d = KA + (U*5+st)*4
            e(f"v_mfma_f32_32x32x16_bf16 v[{N}:{N+15}], v[{d}:{d+3}], v[{PH+4*st}:{PH+4*st+3}], {c}")
    e("s_nop 7")
    e("s_nop 3")
    e(f"v_add_f32 v8, 0x358637bd, v{N1+4}")
    e("v_rcp_f32 v8, v8")
    e("s_nop 0")
    OB = 136
    for i in range(8):
        e(f"v_mul_f32 v{N0+2*i}, v{N0+2*i}, v8"); e(f"v_mul_f32 v{N0+2*i+1}, v{N0+2*i+1}, v8")
        e(f"v_cvt_pk_bf16_f32 v{OB+i}, v{N0+2*i}, v{N0+2*i+1}")
    for i in range(2):
        e(f"v_mul_f32 v{N1+2*i}, v{N1+2*i}, v8"); e(f"v_mul_f32 v{N1+2*i+1}, v{N1+2*i+1}, v8")
        e(f"v_cvt_pk_bf16_f32 v{OB+8+i}, v{N1+2*i}, v{N1+2*i+1}")
    for i in (0, 2, 4, 6, 8):
        e(f"v_min_u32 v{OB+i}, -2, v{OB+i}")
    e(f"""
    buffer_store_dwordx4 v[{OB}:{OB+3}], v58, s[{S_WS}:{S_WS+3}], s44 offen sc1
    buffer_store_dwordx4 v[{OB+4}:{OB+7}], v58, s[{S_WS}:{S_WS+3}], s44 offen offset:1024 sc1
    buffer_store_dwordx2 v[{OB+8}:{OB+9}], v59, s[{S_WS}:{S_WS+3}], s45 offen sc1
    """)
    subsignal(5)
    a.label("L_fin")
    if until:
        e(f"""
        s_waitcnt vmcnt(0) lgkmcnt(0)
L_until:
        s_memrealtime s[94:95]
        s_waitcnt lgkmcnt(0)
        s_sub_u32 s96, s94, s98
        s_cmp_lt_u32 s96, {until}
        s_cbranch_scc1 L_until
        """)
    if stamps:
        stamp(10)
        e("s_waitcnt vmcnt(0)")
        e(f"""
        s_waitcnt lgkmcnt(0)
        s_lshl_b32 s{sT}, s2, 3
        s_add_u32 s{sT}, s{sT}, s{sWAVE}
        s_lshl_b32 s{sT}, s{sT}, 6
        s_add_u32 s{sT}, s{sT}, {WS_STAMP}
        v_mov_b32 v2, 0
        """)
        for i in range(NS): e(f"v_mov_b32 v{20+i}, s{sST+2*i}")
        e(f"""
        s_mov_b64 exec, 1
        buffer_store_dwordx4 v[20:23], v2, s[{S_WS}:{S_WS+3}], s{sT} offen
        buffer_store_dwordx4 v[24:27], v2, s[{S_WS}:{S_WS+3}], s{sT} offen offset:16
        buffer_store_dwordx4 v[28:31], v2, s[{S_WS}:{S_WS+3}], s{sT} offen offset:32
        """)
    if dbgwg >= 0:
        e(f"""
        s_cmp_lg_u32 s2, {dbgwg}
        s_cbranch_scc1 L_end
        s_cmp_lg_u32 s{sWAVE}, {dbgwave}
        s_cbranch_scc1 L_end
        s_mov_b64 exec, -1
        s_mov_b32 s72, s14
        s_and_b32 s73, s15, 0xffff
        s_mov_b32 s74, 256
        s_mov_b32 s75, 0x20000
        """)
        for i in range(1, NS):
            e(f"s_sub_u32 s{sT}, s{sST+2*i}, s{sST}")
            e(f"v_mov_b32 v{20+i}, s{sT}")
        e("v_mov_b32 v2, 0")
        e("s_mov_b64 exec, 1")
        for i in range(1, NS):
            e(f"buffer_store_dword v{20+i}, v2, s[72:75], 0 offen offset:{4*i}")
    if dbgwg == -2:
        e(f"""
        s_cmp_lg_u32 s{sWAVE}, {dbgwave}
        s_cbranch_scc1 L_end
        s_mov_b64 exec, -1
        s_mov_b32 s72, s14
        s_and_b32 s73, s15, 0xffff
        s_mov_b32 s74, 256
        s_mov_b32 s75, 0x20000
        """)
        for i in range(1, NS):
            e(f"s_sub_u32 s{sT}, s{sST+2*i}, s{sST}")
            e(f"v_mov_b32 v{20+i}, s{sT}")
        e("v_mov_b32 v2, 0")
        e("s_mov_b64 exec, 1")
        for i in range(1, NS):
            if i == 9: continue
            e(f"buffer_atomic_umax v{20+i}, v2, s[72:75], 0 offen offset:{4*i}")
    a.label("L_end")
    e("s_endpgm")
    a.label("L_code_end")
    hdr = HEADER + f"; @launch grid=(256,1,1) block=(512,1,1) lds={LDS_BYTES}\n"
    return hdr + f""".amdgcn_target "amdgcn-amd-amdhsa--gfx950"
.text
.globl {KN}
.p2align 8
.type {KN},@function
{KN}:
""" + a.text() + """.section .rodata,"a"
""" + kernel_desc(KN, 256, 102, 256)

if __name__ == "__main__":
    import argparse
    ap = argparse.ArgumentParser()
    ap.add_argument("--stamps", action="store_true")
    ap.add_argument("--dump", default=None)
    ap.add_argument("--stagest", action="store_true")
    ap.add_argument("--exp", default="")
    ap.add_argument("--until", type=int, default=0)
    ap.add_argument("--dbgwg", type=int, default=-1)
    ap.add_argument("--dbgwave", type=int, default=0)
    ap.add_argument("--pf", default="none")
    ap.add_argument("--nogpf", action="store_true")
    ap.add_argument("--nocode", action="store_true")
    ap.add_argument("--outfl", default="")
    ap.add_argument("--vred", action="store_true")
    ap.add_argument("--dwait", action="store_true")
    ap.add_argument("--ncs", type=int, default=4)
    args = ap.parse_args()
    DWAIT = args.dwait; NCS = args.ncs
    OUTFL = args.outfl.replace("+", " ")
    if args.pf == "none": PF = False
    else: PF = True; PFS = PFS_TAB[args.pf]
    if args.nogpf: GPF = False
    if args.nocode: GPF_CODE = False
    print(gen(stamps=args.stamps, dump=args.dump, stagest=args.stagest, exp=args.exp, until=args.until, dbgwg=args.dbgwg, dbgwave=args.dbgwave))
```

```python
import sys
from asmlib import *
from lay2 import TKV, TQ

KN = "standalone__linear_kernel_hedgehog__prompt_kernel"
NST = 10
SLOT = 32768
R = 3
L_WQ = 98304
L_PHI = 149504
L_ZERO = 151552
L_CNT = 153600
L_KVF = 154624
L_PK = 32768
L_WO19 = 158464
LDS_BYTES = 163840
def L_WO(sg): return sg*5120 if sg <= 18 else L_WO19
WO_P1 = [0,1,2,3,4,5,13,14,15,16,17,18,19]
WO_P2 = [6,7,8,9,10,11,12]
WO_ALL1 = [0,1,2,3,4,5,13,14,15,16,17,18,19]
NCS = 4
WS_PART = 0x000000
WS_O = 0x100000
WS_RDY = 0x400000
WS_STAMP = 0x700000
WS_DBG = 0x800000
PF = False
PKRED = False
DWAIT = False
VRED = True
OUTFL = ''
GPF = True
GPF_CODE = True
PFS_TAB = {
 'b':  {'pre': [('x',2),('kv',2)], 0: [('kv',5),('x',6)], 1: [('kv',8),('q',0),('q',1)], 3: [('wo',0),('wo',1)]},
 'e1': {'e': [('x',0),('kv',2),('code',0)], 'pre': [('x',4)], 0: [('kv',5),('x',8)], 1: [('kv',8)], 3: [('q',0)], 4: [('q',1)], 6: [('wo',0)], 7: [('wo',1)]},
 'e2': {'e': [('x',2),('kv',2),('code',0)], 0: [('kv',5),('x',6)], 1: [('kv',8)], 3: [('q',0)], 4: [('q',1)], 6: [('wo',0)], 7: [('wo',1)]},
 'e3': {'e': [('x',0),('kv',0),('code',0)], 'pre': [('x',4),('kv',3)], 0: [('kv',6),('x',8)], 1: [('kv',9)], 3: [('q',0)], 4: [('q',1)], 6: [('wo',0)], 7: [('wo',1)]},
 'e4': {'e': [('x',2),('kv',2),('code',0)], 'pre': [('x',6),('kv',5)], 0: [('kv',8)], 2: [('q',0)], 3: [('q',1)], 5: [('wo',0)], 6: [('wo',1)]},
 'e5': {'e': [('code',0)], 'pre': [('x',2),('kv',2)], 0: [('kv',5),('x',6)], 2: [('kv',8)], 4: [('q',0)], 5: [('q',1)], 7: [('wo',0)], 8: [('wo',1)]},
 'wo': {'e': [('code',0)], 4: [('q',0)], 5: [('q',1)], 7: [('wo',0)], 8: [('wo',1)]},
}
PFS = PFS_TAB['b']
LOG2E = 0x3fb8aa3b
NLOG2E = 0xbfb8aa3b
SPIN_G = 0x8000
SPIN_L = 0x80000

def gen(stamps=False, dump=None, stagest=False, exp='', until=0, dbgwg=-1, dbgwave=0):
    a = Asm(); e = a.e
    S_X, S_W, S_WS = 20, 24, 28
    S_A, S_B = 72, 76
    sWAVE, sW4, sRC, sHP, sBB = 32, 33, 34, 35, 36
    sT = 40
    sSOFX, sSOFW, sM0 = 52, 53, 54
    sNONCE = 55
    sL = 56
    sEX = 58
    sSPIN = 60
    sU, sV = 62, 63
    sUS = 65
    sBLK, sG = 66, 67
    sFC = 68
    sST = 80
    NS = 11
    def sstamp(i):
        if stagest: e(f"s_memtime s[{sST+2*i}:{sST+2*i+1}]")
    def stamp(i):
        if stamps and not (stagest and i > 0): e(f"s_memtime s[{sST+2*i}:{sST+2*i+1}]")
    def rstamp(i):
        if stamps and not stagest: e(f"s_memrealtime s[{sST+2*i}:{sST+2*i+1}]")
    def srd(dst, ptr, nbytes):
        e(f"""
        s_mov_b32 s{dst}, s{ptr}
        s_and_b32 s{dst+1}, s{ptr+1}, 0xffff
        s_mov_b32 s{dst+2}, {nbytes}
        s_mov_b32 s{dst+3}, 0x20000
        """)
    def subsignal(idx, tmp=2):
        e(f"""
        v_mov_b32 v{tmp}, {L_CNT + 4*idx}
        v_mov_b32 v{tmp+1}, 1
        s_mov_b64 exec, 1
        ds_add_u32 v{tmp}, v{tmp+1}
        s_mov_b64 exec, -1
        """)
    def subwait(idx, target=4, tmp=2):
        lab = a.newlabel("SW")
        e(f"v_mov_b32 v{tmp}, {L_CNT + 4*idx}")
        e(f"s_mov_b32 s{sSPIN}, {SPIN_L}")
        a.label(lab)
        e(f"""
        s_sub_u32 s{sSPIN}, s{sSPIN}, 1
        s_cbranch_scc1 L_end
        ds_read_b32 v{tmp+1}, v{tmp}
        s_waitcnt lgkmcnt(0)
        v_readfirstlane_b32 s{sT}, v{tmp+1}
        s_nop 0
        s_cmp_lt_u32 s{sT}, {target}
        s_cbranch_scc1 {lab}
        """)
    def subbar(idx, target=4, tmp=2):
        subsignal(idx, tmp); subwait(idx, target, tmp)
    def dump_regs(regs, off):
        n = len(regs)
        e(f"""
        s_lshl_b32 s{sT}, s2, 3
        s_add_u32 s{sT}, s{sT}, s{sWAVE}
        s_mul_i32 s{sT}, s{sT}, {n*256}
        s_add_u32 s{sT}, s{sT}, {WS_DBG + off}
        v_lshlrev_b32 v2, 2, v0
        """)
        for i, r in enumerate(regs):
            e(f"buffer_store_dword v{r}, v2, s[{S_WS}:{S_WS+3}], s{sT} offen offset:{(i%16)*256}")
            if i % 16 == 15: e(f"s_add_u32 s{sT}, s{sT}, 4096")
        e("s_waitcnt vmcnt(0)")
    def softmax_pair(P0, P1, EP, EN, PH, tm):
        p = [P0 + i for i in range(16)] + [P1 + i for i in range(4)]
        tM, tN, tA, tB = tm, tm+1, tm+2, tm+4
        e(f"v_max3_f32 v{tM}, v{p[0]}, v{p[1]}, v{p[2]}")
        e(f"v_min3_f32 v{tN}, v{p[0]}, v{p[1]}, v{p[2]}")
        for i in range(3, 19, 2):
            e(f"v_max3_f32 v{tM}, v{tM}, v{p[i]}, v{p[i+1]}")
            e(f"v_min3_f32 v{tN}, v{tN}, v{p[i]}, v{p[i+1]}")
        e(f"v_max_f32 v{tM}, v{tM}, v{p[19]}")
        e(f"v_min_f32 v{tN}, v{tN}, v{p[19]}")
        e(f"v_mul_f32 v{tA}, {NLOG2E:#x}, v{tM}")
        e(f"v_mul_f32 v{tB}, {LOG2E:#x}, v{tN}")
        for i in range(10):
            e(f"v_pk_fma_f32 v[{EP+2*i}:{EP+2*i+1}], v[{p[2*i]}:{p[2*i]+1}], s[{sL}:{sL+1}], v[{tA}:{tA+1}] op_sel_hi:[1,1,0]")
            e(f"v_pk_fma_f32 v[{EN+2*i}:{EN+2*i+1}], v[{p[2*i]}:{p[2*i]+1}], s[{sL}:{sL+1}], v[{tB}:{tB+1}] op_sel_hi:[1,1,0] neg_lo:[1,0,0] neg_hi:[1,0,0]")
        for i in range(20):
            e(f"v_exp_f32 v{EP+i}, v{EP+i}")
            e(f"v_exp_f32 v{EN+i}, v{EN+i}")
        e(f"v_pk_add_f32 v[{tA}:{tA+1}], v[{EP}:{EP+1}], v[{EP+2}:{EP+3}]")
        e(f"v_pk_add_f32 v[{tB}:{tB+1}], v[{EN}:{EN+1}], v[{EN+2}:{EN+3}]")
        for i in range(2, 10):
            e(f"v_pk_add_f32 v[{tA}:{tA+1}], v[{tA}:{tA+1}], v[{EP+2*i}:{EP+2*i+1}]")
            e(f"v_pk_add_f32 v[{tB}:{tB+1}], v[{tB}:{tB+1}], v[{EN+2*i}:{EN+2*i+1}]")
        e(f"v_add_f32 v{tA}, v{tA}, v{tA+1}")
        e(f"v_add_f32 v{tB}, v{tB}, v{tB+1}")
        e(f"v_rcp_f32 v{tA}, v{tA}")
        e(f"v_rcp_f32 v{tB}, v{tB}")
        e("s_nop 0")
        for i in range(10):
            e(f"v_pk_mul_f32 v[{EP+2*i}:{EP+2*i+1}], v[{EP+2*i}:{EP+2*i+1}], v[{tA}:{tA+1}] op_sel_hi:[1,0]")
            e(f"v_pk_mul_f32 v[{EN+2*i}:{EN+2*i+1}], v[{EN+2*i}:{EN+2*i+1}], v[{tB}:{tB+1}] op_sel_hi:[1,0]")
        for i in range(10):
            e(f"v_cvt_pk_bf16_f32 v{PH+i}, v{EP+2*i}, v{EP+2*i+1}")
            e(f"v_cvt_pk_bf16_f32 v{PH+10+i}, v{EN+2*i}, v{EN+2*i+1}")
    def lane_decomp32(vG, vrp, vc, vQ, vhh):
        e(f"""
        v_lshrrev_b32 v{vG}, 4, v0
        v_bfe_u32 v{vrp}, v0, 2, 2
        v_and_b32 v{vc}, 3, v0
        v_and_b32 v{vQ}, 1, v{vG}
        v_lshlrev_b32 v{vQ}, 1, v{vQ}
        v_lshrrev_b32 v{vhh}, 1, v{vc}
        v_add_u32 v{vQ}, v{vQ}, v{vhh}
        v_and_b32 v{vhh}, 1, v{vc}
        """)
    def wphi_frags(WF, va, t):
        vG, vrp, vc, vQ, vhh = t, t+1, t+2, t+3, t+4
        lane_decomp32(vG, vrp, vc, vQ, vhh)
        e(f"""
        v_mul_u32_u24 v{t+5}, 800, v{vhh}
        v_mul_u32_u24 v{t+6}, 40, v{vrp}
        v_add_u32 v{t+5}, v{t+5}, v{t+6}
        v_lshlrev_b32 v{t+6}, 3, v{vQ}
        v_add_u32 v{t+5}, v{t+5}, v{t+6}
        v_add_u32 v{t+5}, {L_PHI}, v{t+5}
        v_lshrrev_b32 v{t+6}, 1, v{vG}
        v_mov_b32 v{va+1}, {L_ZERO}
        v_cmp_eq_u32 vcc, v{t+6}, v{vhh}
        s_nop 1
        v_cndmask_b32 v{va}, v{va+1}, v{t+5}, vcc
        v_cmp_eq_u32 s[{sEX}:{sEX+1}], 0, v{vQ}
        s_nop 1
        s_and_b64 vcc, vcc, s[{sEX}:{sEX+1}]
        v_add_u32 v{t+5}, 32, v{t+5}
        s_nop 0
        v_cndmask_b32 v{va+1}, v{va+1}, v{t+5}, vcc
        """)
        for u in range(2):
            for step in range(3):
                for rd in range(2):
                    d = WF + u*12 + step*4 + 2*rd
                    if step == 2 and rd == 1:
                        e(f"v_mov_b32 v{d}, 0"); e(f"v_mov_b32 v{d+1}, 0")
                    else:
                        e(f"ds_read_b64_tr_b16 v[{d}:{d+1}], v{va+u} offset:{(8*step+4*rd)*40}")
    def feature_map(SRC, WF, P0, P1):
        for step in range(3):
            for u, P in ((0, P0), (1, P1)):
                c = "0" if step == 0 else f"v[{P}:{P+15}]"
                e(f"v_mfma_f32_32x32x16_bf16 v[{P}:{P+15}], v[{WF+u*12+step*4}:{WF+u*12+step*4+3}], v[{SRC+4*step}:{SRC+4*step+3}], {c}")
    def xfrag_addr(vBA, t):
        e(f"""
        v_and_b32 v{t}, 31, v0
        v_lshrrev_b32 v{t+1}, 5, v0
        v_bfe_u32 v{t+2}, v{t}, 1, 3
        v_xor_b32 v{t+2}, v{t+2}, v{t+1}
        v_lshlrev_b32 v{t+2}, 4, v{t+2}
        s_lshl_b32 s{sT}, s{sW4}, 5
        v_add_u32 v{t}, s{sT}, v{t}
        v_lshlrev_b32 v{t}, 7, v{t}
        v_add_u32 v{vBA}, v{t}, v{t+2}
        v_xor_b32 v{vBA+1}, 32, v{vBA}
        v_xor_b32 v{vBA+2}, 64, v{vBA}
        v_xor_b32 v{vBA+3}, 96, v{vBA}
        """)
    class Base:
        def __init__(self, regs): self.regs = regs; self.cur = 0
        def set(self, s):
            so = (s % R) * SLOT
            want = (so // 65536) * 65536
            if want != self.cur:
                d = (want - self.cur) & 0xffffffff
                for r in self.regs: e(f"v_add_u32 v{r}, {d}, v{r}")
                self.cur = want
            return so - self.cur
    def wo_setup(vWO, t):
        e(f"""
        v_mul_u32_u24 v{t}, 26, v0
        v_lshrrev_b32 v{t}, 8, v{t}          ; l/10 for l<64
        v_mul_u32_u24 v{t+1}, 10, v{t}
        v_sub_u32 v{t+1}, v0, v{t+1}
        v_lshlrev_b32 v{t+1}, 4, v{t+1}
        v_mul_u32_u24 v{t}, 1280, v{t}
        v_add_u32 v{vWO}, v{t}, v{t+1}
        v_cmp_gt_u32 vcc, 40, v0
        s_lshr_b32 s{sU}, s{sHP}, 1
        s_mul_i32 s{sU}, s{sU}, 160
        s_lshl_b32 s{sT}, s{sW4}, 1          ; 2G
        s_lshr_b32 s{sV}, s{sW4}, 1          ; G>=2
        s_add_u32 s{sUS}, s{sT}, 1
        s_sub_u32 s{sUS}, s{sUS}, s{sV}      ; slow h8 = 2G + (G<2)
        s_add_u32 s{sT}, s{sT}, s{sV}        ; fast h8 = 2G + (G>=2)
        s_mul_i32 s{sUS}, s{sUS}, {40*1280}
        s_add_u32 s{sUS}, s{sUS}, s{sU}
        s_mul_i32 s{sT}, s{sT}, {40*1280}
        s_add_u32 s{sU}, s{sU}, s{sT}
        s_lshr_b32 s{sV}, s{sW4}, 1
        s_lshl_b32 s{sV}, s{sV}, 4
        s_and_b32 s{sT}, s{sW4}, 1
        s_lshl_b32 s{sT}, s{sT}, 2
        s_add_u32 s{sV}, s{sV}, s{sT}
        s_mul_i32 s{sV}, s{sV}, 160          ; pi0*160
        s_mov_b64 s[{sEX}:{sEX+1}], vcc
        """)
    def wo_dma(sg, rd, vWO):
        blk, c5 = divmod(sg, 5)
        if c5 < 4: row = 320*(blk & 1) + [0, 8, 20, 28][c5] + 4*rd
        else: row = 320*(blk & 1) + 16 + 20*rd
        e(f"s_add_u32 m0, s{sV}, {L_WO(sg) + rd*8*160}")
        e(f"s_add_u32 s{sT}, s{sUS if blk >= 2 else sU}, {row*1280}")
        e(f"buffer_load_dwordx4 v{vWO}, s[{S_B}:{S_B+3}], s{sT} offen lds")

    e(f"""
    s_load_dwordx8 s[4:11], s[0:1], 0
    s_load_dwordx4 s[12:15], s[0:1], 32
    s_load_dwordx2 s[16:17], s[0:1], 48
    s_cmp_ge_u32 s2, 256
    s_cbranch_scc1 L_end
    """)
    if 'half' in exp:
        e("s_bitcmp1_b32 s2, 6")
        e("s_cbranch_scc1 L_end")
    if 'quarter' in exp:
        e("s_and_b32 s40, s2, 0x60")
        e("s_cmp_lg_u32 s40, 0")
        e("s_cbranch_scc1 L_end")
    stamp(0); rstamp(9)
    if until: e("s_memrealtime s[98:99]")
    e(f"""
    v_lshrrev_b32 v1, 6, v0
    v_and_b32 v0, 63, v0
    s_and_b32 s{sT}, s2, 7
    s_lshr_b32 s{sT+1}, s2, 3
    v_readfirstlane_b32 s{sWAVE}, v1
    s_lshr_b32 s{sRC}, s{sT}, 1
    s_lshl_b32 s{sRC}, s{sRC}, 2
    s_lshr_b32 s{sT+2}, s{sT+1}, 3
    s_add_u32 s{sRC}, s{sRC}, s{sT+2}
    s_and_b32 s{sHP}, s{sT}, 1
    s_lshl_b32 s{sHP}, s{sHP}, 3
    s_and_b32 s{sT+2}, s{sT+1}, 7
    s_add_u32 s{sHP}, s{sHP}, s{sT+2}
    s_and_b32 s{sW4}, s{sWAVE}, 3
    s_mul_i32 s{sBB}, s{sHP}, 5
    s_and_b32 s{sBB}, s{sBB}, 7
    s_sub_u32 s{sBB}, 8, s{sBB}
    s_min_u32 s{sBB}, s{sBB}, 4
    s_mov_b32 s{sL}, {LOG2E:#x}
    s_mov_b32 s{sL+1}, {LOG2E:#x}
    s_and_b32 s{sT}, s{sHP}, 7
    s_lshr_b32 s{sG}, s{sT}, 1                 ; G = (hp&7)>>1
    s_lshr_b32 s{sBLK}, 0x5a, s{sT}
    s_and_b32 s{sBLK}, s{sBLK}, 1
    s_lshl_b32 s{sBLK}, s{sBLK}, 1
    s_lshr_b32 s{sT}, s{sHP}, 3
    s_add_u32 s{sBLK}, s{sBLK}, s{sT}
    s_cmp_ge_u32 s{sWAVE}, 4
    s_cbranch_scc1 L_lq
    """)
    if GPF:
        e(f"""
        s_lshl_b32 s{sT}, s{sW4}, 6
        v_add_u32 v2, s{sT}, v0                 ; n = 64*w + lane  (0..255)
        s_mul_i32 s{sT}, s2, 80
        s_mul_i32 s{sT+1}, s2, 75
        s_mul_i32 s{sT+2}, s2, 25
        s_sub_u32 s{sT+1}, s{sT+1}, 80
        s_sub_u32 s{sT+2}, s{sT+2}, 155
        s_waitcnt lgkmcnt(0)
        v_mov_b32 v3, s{sT+2}
        v_mov_b32 v4, s10
        v_mov_b32 v5, s11
        v_mov_b32 v6, s{sT+1}
        v_mov_b32 v7, s6
        v_mov_b32 v8, s7
        v_cmp_gt_u32 vcc, 155, v2
        s_nop 1
        v_cndmask_b32 v3, v3, v6, vcc
        v_cndmask_b32 v4, v4, v7, vcc
        v_cndmask_b32 v5, v5, v8, vcc
        v_mov_b32 v6, s{sT}
        v_mov_b32 v7, s4
        v_mov_b32 v8, s5
        v_cmp_gt_u32 vcc, 80, v2
        s_nop 1
        v_cndmask_b32 v3, v3, v6, vcc
        v_cndmask_b32 v4, v4, v7, vcc
        v_cndmask_b32 v5, v5, v8, vcc
        v_add_u32 v3, v3, v2
        v_lshlrev_b32 v3, 7, v3
        v_add_co_u32 v4, vcc, v4, v3
        s_nop 1
        v_addc_co_u32 v5, vcc, 0, v5, vcc
        """)
        if GPF_CODE:
            e(f"""
            s_getpc_b64 s[{sT+4}:{sT+5}]
L_pc_ref:
            s_min_u32 s{sT+3}, s2, (L_code_end-{KN})/128
            s_lshl_b32 s{sT+3}, s{sT+3}, 7
            s_sub_u32 s{sT+4}, s{sT+4}, L_pc_ref-{KN}
            s_subb_u32 s{sT+5}, s{sT+5}, 0
            s_add_u32 s{sT+4}, s{sT+4}, s{sT+3}
            s_addc_u32 s{sT+5}, s{sT+5}, 0
            s_min_u32 s{sT+3}, s2, 199
            s_lshl_b32 s{sT+3}, s{sT+3}, 7
            s_add_u32 s{sT+6}, s8, s{sT+3}
            s_addc_u32 s{sT+7}, s9, 0
            s_cmp_lg_u32 s{sW4}, 2
            s_cbranch_scc1 L_gpf_go
            v_writelane_b32 v4, s{sT+4}, 52
            v_writelane_b32 v5, s{sT+5}, 52
            v_writelane_b32 v4, s{sT+6}, 53
            v_writelane_b32 v5, s{sT+7}, 53
L_gpf_go:
            v_cmp_gt_u32 vcc, 182, v2
            """)
        else:
            e("v_cmp_gt_u32 vcc, 180, v2")
        e(f"""
        s_nop 1
        s_and_saveexec_b64 s[{sT}:{sT+1}], vcc
        s_cbranch_execz L_gpf_done
        global_load_dword v48, v[4:5], off
L_gpf_done:
        s_mov_b64 exec, -1
        """)

    ACC = 64; FB = [112, 128]; WF = 144; KB = 168; VB = 180; PK0 = 192; PK1 = 208; EP = 224; EN = 112; PH = 64; TM = 244
    vAA = 10; vBA = 14
    vPA, vPB = 34, 35
    sPART = 64
    e(f"""
    s_lshl_b32 s{sPART}, s{sHP}, 4
    s_add_u32 s{sPART}, s{sPART}, s{sRC}
    s_lshl_b32 s{sPART}, s{sPART}, 12
    s_add_u32 s{sPART}, s{sPART}, {WS_PART}
    s_waitcnt lgkmcnt(0)
    """)
    srd(S_WS, 16, 0x10000000)
    srd(S_A, 14, 256)
    if PF:
        srd(S_X, 6, 640*3840)
        e(f"""
        v_mov_b32 v37, 0x40000000
        s_lshr_b32 s{sT+1}, s2, 3               ; j
        s_and_b32 s{sT+2}, s2, 1
        s_mul_i32 s{sT+2}, s{sT+2}, 640         ; column half (bytes)
        v_mov_b32 v3, 0x40000000
        s_cmp_eq_u32 s{sW4}, 0
        s_cbranch_scc1 L_t_x
        s_cmp_eq_u32 s{sW4}, 1
        s_cbranch_scc1 L_t_kv
        v_mul_u32_u24 v2, 52, v0
        v_lshrrev_b32 v2, 8, v2                 ; l/5
        v_mul_u32_u24 v4, 5, v2
        v_sub_u32 v4, v0, v4
        v_lshlrev_b32 v4, 7, v4                 ; li*128
        s_mul_i32 s{sT+3}, s{sT+1}, 10
        v_add_u32 v2, s{sT+3}, v2               ; row
        s_mov_b32 s{sT+4}, 3840
        s_cmp_eq_u32 s{sW4}, 2
        s_cselect_b32 s{sT+4}, s{sT+4}, 1280
        v_mul_lo_u32 v2, v2, s{sT+4}
        v_add3_u32 v37, v2, v4, s{sT+2}
        v_cmp_gt_u32 vcc, 50, v0
        s_nop 1
        v_cndmask_b32 v37, v3, v37, vcc
        s_cmp_eq_u32 s{sW4}, 2
        s_cbranch_scc1 L_t_done
        """)
        srd(S_X, 10, 640*1280)
        e(f"""
        s_branch L_t_done
L_t_kv:
        v_mul_u32_u24 v2, 13, v0
        v_lshrrev_b32 v2, 8, v2                 ; q = l/20
        v_mul_u32_u24 v4, 20, v2
        v_sub_u32 v4, v0, v4                    ; l%20
        v_mul_u32_u24 v5, 26, v4
        v_lshrrev_b32 v5, 8, v5                 ; r = (l%20)/10
        v_mul_u32_u24 v6, 10, v5
        v_sub_u32 v4, v4, v6                    ; l%10
        v_mul_u32_u24 v6, 52, v4
        v_lshrrev_b32 v6, 8, v6                 ; ty
        v_mul_u32_u24 v7, 5, v6
        v_sub_u32 v4, v4, v7                    ; li
        v_lshlrev_b32 v4, 7, v4
        v_lshlrev_b32 v2, 6, v2                 ; 64q
        v_add_u32 v2, v2, v5
        s_lshl_b32 s{sT+3}, s{sT+1}, 1
        v_add_u32 v2, s{sT+3}, v2               ; row
        v_mul_u32_u24 v2, 3840, v2
        v_add_u32 v6, 1, v6
        v_mul_u32_u24 v6, 1280, v6
        v_add3_u32 v2, v2, v4, v6
        v_add_u32 v37, s{sT+2}, v2
        v_cmp_gt_u32 vcc, 60, v0
        s_nop 1
        v_cndmask_b32 v37, v3, v37, vcc
        s_branch L_t_done
L_t_x:
        v_and_b32 v2, 15, v0
        s_lshr_b32 s{sT+2}, s2, 1
        s_and_b32 s{sT+2}, s{sT+2}, 3
        s_lshl_b32 s{sT+2}, s{sT+2}, 9
        s_lshl_b32 s{sT+3}, s{sT+1}, 4
        s_add_u32 s{sT+2}, s{sT+2}, s{sT+3}
        v_add_u32 v2, s{sT+2}, v2
        v_mul_u32_u24 v2, 1280, v2
        v_lshrrev_b32 v4, 4, v0
        v_lshlrev_b32 v4, 7, v4
        v_add_u32 v37, v2, v4
        """)
        srd(S_X, 4, 2048*1280)
        a.label("L_t_done")
    def touch(wave, soff):
        if not PF: return
        lab = a.newlabel("TT")
        e(f"""
        s_cmp_lg_u32 s{sW4}, {wave}
        s_cbranch_scc1 {lab}
        s_mov_b32 s{sT}, {soff}
        buffer_load_dword v36, v37, s[{S_X}:{S_X+3}], s{sT} offen
{lab}:
        """)
    def code_touch():
        lab = a.newlabel("CT")
        e(f"""
        s_cmp_lg_u32 s{sW4}, 3
        s_cbranch_scc1 {lab}
        s_getpc_b64 s[{sT+4}:{sT+5}]
L_pc_ref:
        s_lshr_b32 s{sT+3}, s2, 3
        s_mul_i32 s{sT+3}, s{sT+3}, 7
        v_add_u32 v2, s{sT+3}, v0
        v_min_u32 v2, (L_code_end-{KN})/128, v2
        v_lshlrev_b32 v2, 7, v2
        s_sub_u32 s{sT+4}, s{sT+4}, L_pc_ref-{KN}
        s_subb_u32 s{sT+5}, s{sT+5}, 0
        v_mov_b32 v5, s{sT+5}
        v_add_co_u32 v4, vcc, s{sT+4}, v2
        s_nop 1
        v_addc_co_u32 v5, vcc, 0, v5, vcc
        v_cmp_gt_u32 vcc, 7, v0
        s_nop 1
        s_mov_b64 exec, vcc
        global_load_dword v47, v[4:5], off
        s_mov_b64 exec, -1
{lab}:
        """)
    def run_sched(when):
        if not PF: return
        for kind, arg in PFS.get(when, []):
            if kind == 'x': touch(0, arg*128)
            elif kind == 'kv': touch(1, arg*64*3840)
            elif kind == 'q': touch(2, arg*320*3840)
            elif kind == 'wo': touch(3, arg*320*1280)
            elif kind == 'code': code_touch()
    run_sched('e')
    e(f"""
    s_or_b32 s{sT}, s{sRC}, s{sHP}
    s_or_b32 s{sT}, s{sT}, s{sW4}
    s_cmp_lg_u32 s{sT}, 0
    s_cbranch_scc1 L_kv_nn
    s_memrealtime s[{sT+4}:{sT+5}]
    s_waitcnt lgkmcnt(0)
    s_or_b32 s{sT+4}, s{sT+4}, 1
    v_mov_b32 v2, 0
    v_mov_b32 v3, s{sT+4}
    s_mov_b64 exec, 1
    buffer_store_dword v3, v2, s[{S_A}:{S_A+3}], 0 offen sc1
    s_mov_b64 exec, -1
L_kv_nn:
    """)
    e(f"""
    v_lshlrev_b32 v2, 4, v0
    s_lshl_b32 s{sT}, s{sW4}, 10
    s_add_u32 s{sT}, s{sT}, {L_ZERO}
    v_add_u32 v2, s{sT}, v2
    v_mov_b32 v24, 0
    v_mov_b32 v25, 0
    v_mov_b32 v26, 0
    v_mov_b32 v27, 0
    s_cmp_eq_u32 s{sW4}, 3
    s_cbranch_scc1 L_kv_nz
    ds_write_b128 v2, v[24:27]
L_kv_nz:
    """)
    lane_decomp32(2, 3, 4, 5, 6)
    e(f"""
    v_lshlrev_b32 v5, 3, v5          ; 8Q
    v_mul_u32_u24 v6, 5, v6          ; 5hh
    v_lshrrev_b32 v7, 1, v2
    v_lshlrev_b32 v7, 3, v7
    v_add_u32 v7, v7, v3             ; krow
    v_lshlrev_b32 v7, 8, v7
    v_add_u32 v7, 16384, v7
    v_lshlrev_b32 v8, 2, v3          ; 4rp
    s_sub_u32 s{sT+1}, 4, s{sBB}
    """)
    for T in range(3):
        immc = 0; imms = 0
        for Q in range(4):
            q = TKV[T][Q] or TKV[T][0]
            immc |= q[1] << (8*Q); imms |= (8*q[0]) << (8*Q)
        e(f"""
        s_mov_b32 s{sT}, {immc}
        v_bfe_u32 v18, s{sT}, v5, 8
        v_add_u32 v18, v18, v6
        v_lshrrev_b32 v19, 1, v18
        v_mov_b32 v9, s{sT+1}
        v_cmp_le_u32 vcc, s{sBB}, v19
        v_mov_b32 v20, 0
        s_nop 0
        v_cndmask_b32 v9, v20, v9, vcc
        v_add_u32 v19, v19, v9
        s_mov_b32 s{sT}, {imms}
        v_bfe_u32 v9, s{sT}, v5, 8
        v_add3_u32 v19, v19, v9, v8
        v_and_b32 v19, 15, v19
        v_lshlrev_b32 v19, 4, v19
        v_and_b32 v18, 1, v18
        v_lshlrev_b32 v18, 3, v18
        v_add3_u32 v{vAA+T}, v7, v19, v18
        """)
    xfrag_addr(vBA, 2)
    def kv_reads(kk, buf, sb):
        b = FB[buf]
        e(f"ds_read_b128 v[{b+12}:{b+15}], v{vBA+kk} offset:{sb}")
        for T in range(3):
            for rd in range(2):
                e(f"ds_read_b64_tr_b16 v[{b+4*T+2*rd}:{b+4*T+2*rd+1}], v{vAA+T} offset:{sb+(16*kk+4*rd)*256}")
    def kv_mfmas(buf, first=False):
        b = FB[buf]
        for T in range(3):
            c = "0" if first else f"v[{ACC+16*T}:{ACC+16*T+15}]"
            e(f"v_mfma_f32_32x32x16_bf16 v[{ACC+16*T}:{ACC+16*T+15}], v[{b+4*T}:{b+4*T+3}], v[{b+12}:{b+15}], {c}")
    run_sched('pre')
    e("s_waitcnt lgkmcnt(0)")
    stamp(1)
    e("s_barrier")
    stamp(2)
    vNC, vRF = 38, 42
    vRA = 18; vKA = 26; vKB = 28
    def hoist_pk():
        e(f"""
        v_and_b32 v2, 31, v0
        v_lshrrev_b32 v3, 5, v0
        v_lshlrev_b32 v3, 14, v3
        s_lshl_b32 s{sT}, s{sW4}, 5
        v_add_u32 v2, s{sT}, v2
        v_lshlrev_b32 v2, 7, v2
        v_add_u32 v2, v2, v3
        v_add_u32 v2, {L_PK}, v2
        v_and_b32 v3, 7, v0
        v_bfe_u32 v4, v0, 3, 1
        v_lshlrev_b32 v4, 2, v4
        v_xor_b32 v3, v3, v4
        v_lshlrev_b32 v3, 4, v3
        v_add_u32 v{vRA}, v2, v3
        """)
        for u in range(1, 8): e(f"v_xor_b32 v{vRA+u}, {16*u}, v{vRA}")

    def hoist_kv():
        e(f"""
        v_lshrrev_b32 v2, 4, v0            ; G
        v_bfe_u32 v3, v0, 2, 2             ; rp
        v_and_b32 v4, 3, v0                ; c
        v_lshlrev_b32 v5, 3, v2
        v_add_u32 v5, v5, v3
        v_lshlrev_b32 v5, 7, v5
        s_lshr_b32 s{sT}, s{sW4}, 1
        s_lshl_b32 s{sT}, s{sT}, 14
        s_add_u32 s{sT}, s{sT}, {L_PK}
        v_add_u32 v5, s{sT}, v5
        v_and_b32 v6, 1, v2
        v_lshlrev_b32 v6, 2, v6
        v_xor_b32 v6, v6, v3
        v_lshrrev_b32 v7, 1, v4
        v_and_b32 v8, 1, v4
        v_lshlrev_b32 v8, 3, v8
        v_add_u32 v5, v5, v8
        s_and_b32 s{sT+1}, s{sW4}, 1
        v_add_u32 v9, 5, v7
        v_mov_b32 v40, 7
        s_cmp_eq_u32 s{sT+1}, 1
        s_cselect_b64 vcc, -1, 0
        v_cndmask_b32 v9, v9, v40, vcc
        v_xor_b32 v9, v9, v6
        v_lshlrev_b32 v9, 4, v9
        v_add_u32 v{vKA}, v5, v9
        v_xor_b32 v{vKA+1}, 64, v{vKA}
        v_add_u32 v{vKA+1}, 512, v{vKA+1}
        """)
        for ct in range(3):
            if ct < 2: e(f"v_add_u32 v9, {2*ct}, v7")
            else: e(f"v_mov_b32 v9, 4")
            e(f"""
            v_xor_b32 v9, v9, v6
            v_lshlrev_b32 v9, 4, v9
            v_add_u32 v{vKB+2*ct}, v5, v9
            v_xor_b32 v{vKB+2*ct+1}, 64, v{vKB+2*ct}
            v_add_u32 v{vKB+2*ct+1}, 512, v{vKB+2*ct+1}
            """)
        e(f"""
        v_lshrrev_b32 v2, 4, v0            ; g
        v_and_b32 v3, 15, v0
        s_lshr_b32 s{sT}, s{sW4}, 1
        s_mul_i32 s{sT}, s{sT}, 6
        s_and_b32 s{sT+1}, s{sW4}, 1
        s_lshl_b32 s{sT+2}, s{sT+1}, 2
        s_add_u32 s{sT}, s{sT}, s{sT+2}
        v_add_u32 v4, s{sT}, v2
        v_mul_u32_u24 v4, 40, v4
        v_add_u32 v4, v4, v3
        v_lshlrev_b32 v4, 3, v4
        v_mov_b32 v5, 0x40000000
        s_lshl_b32 s{sT+2}, s{sT+1}, 1
        s_sub_u32 s{sT+2}, 4, s{sT+2}
        v_cmp_gt_u32 vcc, s{sT+2}, v2
        s_nop 1
        v_cndmask_b32 v{vPA}, v5, v4, vcc
        v_cmp_gt_u32 vcc, 8, v3
        s_nop 1
        v_cndmask_b32 v{vPB}, v5, v{vPA}, vcc
        """)

    base = Base([vAA, vAA+1, vAA+2, vBA, vBA+1, vBA+2, vBA+3])
    sb = base.set(0)
    kv_reads(0, 0, sb)
    for s in range(NST):
        for kk in range(3):
            if s == NST - 1 and kk == 1: e("s_barrier")
            kv_reads(kk+1, (kk+1) & 1, sb)
            e("s_waitcnt lgkmcnt(7)")
            kv_mfmas(kk & 1, first=(s == 0 and kk == 0))
        run_sched(s)
        if s == 0:
            e(f"v_mov_b32 v{vNC}, 0")
            e(f"buffer_load_dword v{vNC+1}, v{vNC}, s[{S_A}:{S_A+3}], 0 offen sc1")
        if s == 1: wphi_frags(WF, 18, 22)
        if s == 4: hoist_pk()
        if s == 5: hoist_kv()
        if s == 2 and 'p1only' not in exp:
            lab = a.newlabel("NF"); lab2 = a.newlabel("NC")
            e(f"""
            s_waitcnt vmcnt(0)
            v_readfirstlane_b32 s{sNONCE}, v{vNC+1}
            s_mov_b32 s{sSPIN}, {SPIN_G}
            s_cmp_lg_u32 s{sNONCE}, 0
            s_cbranch_scc1 {lab}
{lab2}:
            s_sub_u32 s{sSPIN}, s{sSPIN}, 1
            s_cbranch_scc1 L_end
            buffer_load_dword v{vNC+1}, v{vNC}, s[{S_A}:{S_A+3}], 0 offen sc1
            s_waitcnt vmcnt(0)
            v_readfirstlane_b32 s{sNONCE}, v{vNC+1}
            s_nop 0
            s_cmp_eq_u32 s{sNONCE}, 0
            s_cbranch_scc1 {lab2}
{lab}:
            """)
        if s == 3:
            lab = a.newlabel("RD")
            e(f"""
            s_cmp_lg_u32 s{sW4}, 0
            s_cbranch_scc1 {lab}
            s_add_u32 s{sT}, s{sPART}, 3840
            v_mov_b32 v2, 0
            v_mov_b32 v3, s{sNONCE}
            s_mov_b64 exec, 1
            buffer_store_dword v3, v2, s[{S_WS}:{S_WS+3}], s{sT} offen sc1
            s_mov_b64 exec, -1
{lab}:
            """)
        if s == 7:
            e(f"""
            v_and_b32 v2, 15, v0
            s_lshl_b32 s{sT}, s{sHP}, 4
            v_add_u32 v3, s{sT}, v2            ; hp*16 + r
            v_lshlrev_b32 v4, 4, v2
            v_add_u32 v4, s{sRC}, v4           ; h'*16 + rc
            v_bfe_u32 v5, v0, 4, 1
            v_cmp_eq_u32 vcc, 0, v5
            s_mov_b32 s{sT+1}, {WS_PART + 3840}
            s_nop 0
            v_cndmask_b32 v3, v4, v3, vcc
            v_lshlrev_b32 v{vRF}, 12, v3
            buffer_load_dword v{vRF+1}, v{vRF}, s[{S_WS}:{S_WS+3}], s{sT+1} offen sc1
            """)
        e("s_waitcnt lgkmcnt(0)")
        if s + 1 < NST: e("s_barrier")
        sstamp(s+1)
        if s + 1 < NST:
            sb = base.set(s+1)
            kv_reads(0, 0, sb)
        kv_mfmas(1)
    stamp(3)
    if 'p1only' in exp: e("s_branch L_fin")
    loc = {}
    for T, qs in enumerate(TKV):
        for Q, q in enumerate(qs):
            if q is not None: loc[q] = ACC + 16*T + 4*Q
    e("s_nop 9")
    if dump == "kvacc":
        e("s_nop 7"); dump_regs([loc[(sg, j)] + x for sg in range(2) for j in range(5) for x in range(4)], 0)
    for j in range(5):
        e(f"v_cvt_pk_bf16_f32 v{KB+2*j}, v{loc[(0,j)]}, v{loc[(0,j)]+1}")
        e(f"v_cvt_pk_bf16_f32 v{KB+2*j+1}, v{loc[(0,j)]+2}, v{loc[(0,j)]+3}")
    e(f"v_mov_b32 v{KB+10}, 0"); e(f"v_mov_b32 v{KB+11}, 0")
    e("s_nop 0")
    feature_map(KB, WF, PK0, PK1)
    for j in range(5):
        e(f"v_cvt_pk_bf16_f32 v{VB+2*j}, v{loc[(1,j)]}, v{loc[(1,j)]+1}")
        e(f"v_cvt_pk_bf16_f32 v{VB+2*j+1}, v{loc[(1,j)]+2}, v{loc[(1,j)]+3}")
    e(f"v_mov_b32 v{VB+10}, 0x3f80"); e(f"v_mov_b32 v{VB+11}, 0")
    for u in range(3):
        e(f"ds_write_b128 v{vRA+5+u}, v[{VB+4*u}:{VB+4*u+3}]")
    e("s_nop 7")
    e("s_nop 3")
    if dump == "pk":
        dump_regs([PK0+i for i in range(16)] + [PK1+i for i in range(4)], 0)
    softmax_pair(PK0, PK1, EP, EN, PH, TM)
    if dump == "phik": dump_regs([PH+i for i in range(20)], 0)
    for u in range(5):
        e(f"ds_write_b128 v{vRA+u}, v[{PH+4*u}:{PH+4*u+3}]")
    subbar(0)
    stamp(4)
    KD = 192; KF = 64
    for kap in range(4):
        f = KF + 16*kap
        for rd in range(2):
            e(f"ds_read_b64_tr_b16 v[{f+2*rd}:{f+2*rd+1}], v{vKA+rd} offset:{4096*kap}")
        for ct in range(3):
            for rd in range(2):
                e(f"ds_read_b64_tr_b16 v[{f+4+4*ct+2*rd}:{f+4+4*ct+2*rd+1}], v{vKB+2*ct+rd} offset:{4096*kap}")
    for kap in range(4):
        f = KF + 16*kap
        e(f"s_waitcnt lgkmcnt({min(15, 8*(3-kap))})")
        for ct in range(3):
            c = "0" if kap == 0 else f"v[{KD+4*ct}:{KD+4*ct+3}]"
            e(f"v_mfma_f32_16x16x32_bf16 v[{KD+4*ct}:{KD+4*ct+3}], v[{f}:{f+3}], v[{f+4+4*ct}:{f+4+4*ct+3}], {c}")
    subsignal(1)
    vWO = 40
    e("s_nop 3")
    for ct in range(3):
        e(f"v_cvt_pk_bf16_f32 v{KD+16+2*ct}, v{KD+4*ct}, v{KD+4*ct+1}")
        e(f"v_cvt_pk_bf16_f32 v{KD+16+2*ct+1}, v{KD+4*ct+2}, v{KD+4*ct+3}")
    for ct in range(3):
        e(f"v_min_u32 v{KD+16+2*ct}, -2, v{KD+16+2*ct}")
    for ct in range(3):
        e(f"buffer_store_dwordx2 v[{KD+16+2*ct}:{KD+16+2*ct+1}], v{vPA if ct < 2 else vPB}, s[{S_WS}:{S_WS+3}], s{sPART} offen offset:{128*ct} sc1")
    stamp(5)
    srd(S_B, 10, 640*1280)
    wo_setup(vWO, 2)
    lab = a.newlabel("RC"); lab2 = a.newlabel("RP")
    e(f"""
    s_waitcnt vmcnt(3)
    s_mov_b32 s{sSPIN}, {SPIN_G}
    s_mov_b32 s{sT+1}, {WS_PART + 3840}
    v_cmp_ne_u32 vcc, s{sNONCE}, v{vRF+1}
    s_cbranch_vccz {lab}
{lab2}:
    s_sub_u32 s{sSPIN}, s{sSPIN}, 1
    s_cbranch_scc1 L_end
    buffer_load_dword v{vRF+1}, v{vRF}, s[{S_WS}:{S_WS+3}], s{sT+1} offen sc1
    s_waitcnt vmcnt(0)
    v_cmp_ne_u32 vcc, s{sNONCE}, v{vRF+1}
    s_cbranch_vccnz {lab2}
{lab}:
    """)
    subwait(1, target=8)
    e(f"s_mov_b64 exec, s[{sEX}:{sEX+1}]")
    for sg in WO_P2:
        for rd in range(2): wo_dma(sg, rd, vWO)
    e("s_mov_b64 exec, -1")
    PL = 64; SUM = 128; IDA = 144; sMASK = 69; sMK = 70
    WO_PC = WO_ALL1[:NCS]; WO_PD = WO_ALL1[NCS:]
    e(f"""
    s_mov_b64 s[{sMK}:{sMK+1}], s[{sEX}:{sEX+1}]
    s_lshl_b32 s{sT+4}, s{sHP}, 16
    s_add_u32 s{sT+4}, s{sT+4}, {WS_PART}
    s_lshl_b32 s{sT}, s{sW4}, 6
    v_add_u32 v6, s{sT}, v0            ; tau
    v_lshlrev_b32 v7, 4, v6
    v_mov_b32 v4, 0x40000000
    v_cmp_gt_u32 vcc, 240, v6
    s_mov_b32 s{sT}, s{sT+4}
    s_mov_b32 s{sMASK}, 0xffff
    v_cndmask_b32 v7, v4, v7, vcc
    """)
    stamp(6)
    for r in range(16):
        e(f"buffer_load_dwordx4 v[{PL+4*r}:{PL+4*r+3}], v7, s[{S_WS}:{S_WS+3}], s{sT} offen sc1")
        e(f"s_add_u32 s{sT}, s{sT}, 4096")
    if VRED:
        for i in range(8): e(f"v_mov_b32 v{SUM+i}, 0")
        e(f"""
        v_mul_u32_u24 v4, 205, v6
        v_lshrrev_b32 v4, 12, v4           ; tau/20
        v_mul_u32_u24 v5, 20, v4
        v_sub_u32 v5, v6, v5               ; fp
        v_mul_u32_u24 v5, 96, v5
        v_mul_u32_u24 v8, 43, v4
        v_lshrrev_b32 v8, 8, v8            ; hd
        v_mul_u32_u24 v9, 6, v8
        v_sub_u32 v9, v4, v9               ; dq
        v_mul_u32_u24 v8, 1920, v8
        v_lshlrev_b32 v9, 3, v9
        v_add3_u32 v5, v5, v8, v9
        v_add_u32 v4, {L_KVF}, v5
        v_mov_b32 v9, {L_CNT + 512}
        v_cmp_gt_u32 vcc, 240, v6
        s_nop 1
        v_cndmask_b32 v4, v9, v4, vcc
        v_add_u32 v5, 48, v4
        """)
    else:
        e(f"""
        v_and_b32 v2, 15, v0
        v_lshrrev_b32 v3, 4, v0            ; G
        v_lshrrev_b32 v4, 3, v2            ; i>>3
        v_and_b32 v5, 7, v2                ; j*
        v_lshrrev_b32 v8, 1, v5            ; reg
        v_and_b32 v5, 1, v5
        v_lshlrev_b32 v5, 4, v5
        v_mov_b32 v9, 0x3f80
        v_lshlrev_b32 v9, v5, v9           ; 1.0 in the right half
        v_mov_b32 v13, 0
        """)
        for u in range(2):
            e(f"v_add_u32 v5, {2*u}, v4")
            e(f"v_cmp_eq_u32 s[{sT}:{sT+1}], v5, v3")
            for rr in range(4):
                e(f"v_cmp_eq_u32 vcc, {rr}, v8")
                e(f"s_nop 0")
                e(f"s_and_b64 vcc, vcc, s[{sT}:{sT+1}]")
                e(f"v_cndmask_b32 v{IDA+4*u+rr}, v13, v9, vcc")
        for i in range(8): e(f"v_mov_b32 v{SUM+i}, 0")
        e(f"""
        v_and_b32 v2, 15, v0
        v_lshrrev_b32 v3, 5, v0            ; g>>1
        v_lshlrev_b32 v3, 4, v3
        s_lshl_b32 s{sT}, s{sW4}, 6
        v_add3_u32 v2, v2, v3, s{sT}
        v_bfe_u32 v3, v0, 4, 1             ; p
        v_mul_u32_u24 v3, 48, v3
        """)
        for u in range(2):
            t = 4 + u
            e(f"""
            v_add_u32 v8, {32*u}, v2           ; tau
            v_mul_u32_u24 v9, 205, v8
            v_lshrrev_b32 v9, 12, v9           ; tau/20
            v_mul_u32_u24 v{t}, 20, v9
            v_sub_u32 v{t}, v8, v{t}           ; fp
            v_mul_u32_u24 v{t}, 96, v{t}
            v_mul_u32_u24 v13, 43, v9
            v_lshrrev_b32 v13, 8, v13          ; hd
            v_mul_u32_u24 v41, 6, v13
            v_sub_u32 v41, v9, v41             ; dq
            v_mul_u32_u24 v13, 1920, v13
            v_lshlrev_b32 v41, 3, v41
            v_add3_u32 v{t}, v{t}, v13, v41
            v_add3_u32 v{t}, v{t}, v3, 0
            v_add_u32 v{t}, {L_KVF}, v{t}
            v_mov_b32 v41, {L_CNT + 512}
            v_cmp_gt_u32 vcc, 240, v8
            s_nop 1
            v_cndmask_b32 v{t}, v41, v{t}, vcc
            """)

    def acc(r, lab):
        e(f"""
        v_max_u32 v13, v{PL+4*r}, v{PL+4*r+2}
        v_cmp_eq_u32 vcc, -1, v13
        s_cbranch_vccnz {lab}
        s_bitset0_b32 s{sMASK}, {r}
        """)
        if VRED:
            for i in range(4):
                src = PL + 4*r + i
                e(f"v_lshlrev_b32 v{SUM+8}, 16, v{src}")
                e(f"v_and_b32 v{SUM+9}, 0xffff0000, v{src}")
                e(f"v_add_f32 v{SUM+2*i}, v{SUM+2*i}, v{SUM+8}")
                e(f"v_add_f32 v{SUM+2*i+1}, v{SUM+2*i+1}, v{SUM+9}")
        else:
            for u in range(2):
                e(f"v_mfma_f32_16x16x32_bf16 v[{SUM+4*u}:{SUM+4*u+3}], v[{IDA+4*u}:{IDA+4*u+3}], v[{PL+4*r}:{PL+4*r+3}], v[{SUM+4*u}:{SUM+4*u+3}]")
        a.label(lab)
    nC = 2*len(WO_PC)
    if nC:
        e(f"s_mov_b64 exec, s[{sMK}:{sMK+1}]")
        for sg in WO_PC:
            for rd in range(2): wo_dma(sg, rd, vWO)
        e("s_mov_b64 exec, -1")
    for r in range(16):
        e(f"s_waitcnt vmcnt({15-r+nC})")
        if r == 0: e(f"v_max_u32 v{SUM+10}, v{PL}, v{PL+2}")
        else: e(f"v_max3_u32 v{SUM+10}, v{SUM+10}, v{PL+4*r}, v{PL+4*r+2}")
        for i in range(4):
            src = PL + 4*r + i
            e(f"v_lshlrev_b32 v{SUM+8}, 16, v{src}")
            e(f"v_and_b32 v{SUM+9}, 0xffff0000, v{src}")
            if PKRED: e(f"v_pk_add_f32 v[{SUM+2*i}:{SUM+2*i+1}], v[{SUM+2*i}:{SUM+2*i+1}], v[{SUM+8}:{SUM+9}]")
            else:
                e(f"v_add_f32 v{SUM+2*i}, v{SUM+2*i}, v{SUM+8}")
                e(f"v_add_f32 v{SUM+2*i+1}, v{SUM+2*i+1}, v{SUM+9}")
    e(f"""
    v_cmp_eq_u32 vcc, -1, v{SUM+10}
    s_cbranch_vccz L_s1_done
    """)
    for i in range(8): e(f"v_mov_b32 v{SUM+i}, 0")
    for r in range(16):
        acc(r, f"L_s1a_{r}")
    e(f"""
    s_mov_b32 s{sSPIN}, {SPIN_G}
L_s1_loop:
    s_cmp_eq_u32 s{sMASK}, 0
    s_cbranch_scc1 L_s1_done
    s_sub_u32 s{sSPIN}, s{sSPIN}, 1
    s_cbranch_scc1 L_end
    """)
    for r in range(16):
        e(f"""
        s_bitcmp0_b32 s{sMASK}, {r}
        s_cbranch_scc1 L_s1l_{r}
        s_add_u32 s{sT}, s{sT+4}, {4096*r}
        buffer_load_dwordx4 v[{PL+4*r}:{PL+4*r+3}], v7, s[{S_WS}:{S_WS+3}], s{sT} offen sc1
L_s1l_{r}:
        """)
    e("s_waitcnt vmcnt(0)")
    for r in range(16):
        e(f"s_bitcmp0_b32 s{sMASK}, {r}")
        e(f"s_cbranch_scc1 L_s1b_{r}")
        acc(r, f"L_s1b_{r}")
    e("s_branch L_s1_loop")
    a.label("L_s1_done")
    e("s_nop 7")
    for u in range(2):
        e(f"v_cvt_pk_bf16_f32 v{SUM+12+2*u}, v{SUM+4*u}, v{SUM+4*u+1}")
        e(f"v_cvt_pk_bf16_f32 v{SUM+13+2*u}, v{SUM+4*u+2}, v{SUM+4*u+3}")
    e(f"ds_write_b64 v4, v[{SUM+12}:{SUM+13}]")
    e(f"ds_write_b64 v5, v[{SUM+14}:{SUM+15}]")
    subsignal(2)
    stamp(7)
    if DWAIT: subwait(5, tmp=8)
    e(f"s_mov_b64 exec, s[{sMK}:{sMK+1}]")
    for sg in WO_PD:
        for rd in range(2): wo_dma(sg, rd, vWO)
    e("s_mov_b64 exec, -1")
    vWA = 10
    e(f"""
    v_lshrrev_b32 v2, 4, v0            ; G
    v_bfe_u32 v3, v0, 2, 2             ; rp
    v_and_b32 v4, 3, v0                ; c
    v_lshrrev_b32 v5, 1, v2
    v_lshlrev_b32 v5, 4, v5            ; 16*(G>>1)
    v_and_b32 v6, 1, v2
    v_lshlrev_b32 v6, 2, v6            ; 4*(G&1)
    v_add3_u32 v5, v5, v6, v3
    v_mul_u32_u24 v5, 160, v5
    v_lshlrev_b32 v4, 3, v4
    v_add_u32 v{vWA}, v5, v4
    v_add_u32 v{vWA+1}, 0x10000, v{vWA}
    v_add_u32 v{vWA+2}, 0x20000, v{vWA}
    s_and_b32 s{sT}, s{sHP}, 1
    s_lshl_b32 s{sT}, s{sT}, 2
    s_add_u32 s{sT}, s{sT}, s{sW4}     ; tt
    s_lshl_b32 s{sT+1}, s{sRC}, 3
    s_add_u32 s{sT+6}, s{sT}, s{sT+1}
    s_mul_i32 s{sT+4}, s{sT+6}, 20480
    s_add_u32 s{sT+4}, s{sT+4}, {WS_O}
    v_and_b32 v2, 15, v0
    v_lshrrev_b32 v3, 2, v2
    v_mul_u32_u24 v3, 5120, v3
    v_and_b32 v4, 3, v2
    v_lshlrev_b32 v4, 8, v4
    v_add3_u32 v2, v3, v4, 0
    v_add_u32 v2, 4096, v2
    v_lshlrev_b32 v7, 4, v0            ; lane*16
    """)
    OF = 96; OD = 40; AB = [176, 196, 216, 236, 60, 16]
    NB = len(AB)
    def wo_reads(sg):
        L = L_WO(sg); reg = vWA + L // 65536; b = AB[sg % NB]
        assert (L // 65536) == ((L + 1408) // 65536)
        off = L % 65536
        for nt in range(5):
            for rd in range(2):
                e(f"ds_read_b64_tr_b16 v[{b+4*nt+2*rd}:{b+4*nt+2*rd+1}], v{reg} offset:{off + rd*1280 + nt*32}")
    e("s_waitcnt vmcnt(0)")
    def wo_reads_nt(sg, nt):
        L = L_WO(sg); reg = vWA + L // 65536; b = AB[sg % NB]
        off = L % 65536
        for rd in range(2):
            e(f"ds_read_b64_tr_b16 v[{b+4*nt+2*rd}:{b+4*nt+2*rd+1}], v{reg} offset:{off + rd*1280 + nt*32}")
    subbar(6, tmp=8)
    def oload(sg):
        d = OF + 4*sg
        e(f"buffer_load_dwordx4 v[{d}:{d+3}], v7, s[{S_WS}:{S_WS+3}], s{sT} offen offset:{(sg%4)*1024} sc1")
        if sg % 4 == 3: e(f"s_add_u32 s{sT}, s{sT}, 4096")
    def poll(): e(f"buffer_load_dword v3, v2, s[{S_WS}:{S_WS+3}], s{sT+4} offen sc1")
    def sloads():
        e(f"s_add_u32 s{sT}, s{sT+4}, {8*1024}")
        for sg in range(10, 20): oload(sg)
    poll()
    for sg in range(NB): wo_reads(sg)
    e(f"""
    s_mov_b32 s{sSPIN}, {SPIN_G}
    s_mov_b32 s{sFC}, 0
    s_mov_b32 s{sT+2}, 0x00ff00ff
    s_mov_b32 s{sT+3}, 0x00ff00ff
L_s2f_chk:
    s_waitcnt vmcnt(0)
    v_cmp_eq_u32 vcc, -1, v3
    s_and_b64 vcc, vcc, s[{sT+2}:{sT+3}]
    s_cbranch_vccz L_s2f_go
    s_sub_u32 s{sSPIN}, s{sSPIN}, 1
    s_cbranch_scc1 L_end
    """)
    poll()
    e(f"""
    s_branch L_s2f_chk
L_s2f_go:
    s_mov_b32 s{sT}, s{sT+4}
    """)
    for sg in range(10): oload(sg)
    e(f"""
    s_mov_b32 s{sT+2}, 0xff00ff00
    s_mov_b32 s{sT+3}, 0xff00ff00
    v_cmp_eq_u32 vcc, -1, v3
    s_and_b64 vcc, vcc, s[{sT+2}:{sT+3}]
    s_cbranch_vccz L_s2_sl
    """)
    poll()
    e(f"""
    s_waitcnt vmcnt(0)
    v_cmp_eq_u32 vcc, -1, v3
    s_and_b64 vcc, vcc, s[{sT+2}:{sT+3}]
    s_cbranch_vccz L_s2_sl
    """)
    poll()
    e(f"""
    s_branch L_s2_p
L_s2_sl:
    s_mov_b32 s{sFC}, 2
    """)
    sloads()
    a.label("L_s2_p")
    stamp(8)
    retries = []
    e(f"s_mov_b32 s{sSPIN}, {SPIN_G}")
    for sg in range(20):
        if sg == 10:
            e(f"""
            s_cmp_eq_u32 s{sFC}, 2
            s_cbranch_scc1 L_s2_have
L_s2_chk:
            s_waitcnt vmcnt(0)
            v_cmp_eq_u32 vcc, -1, v3
            s_and_b64 vcc, vcc, s[{sT+2}:{sT+3}]
            s_cbranch_vccz L_s2_go
            s_sub_u32 s{sSPIN}, s{sSPIN}, 1
            s_cbranch_scc1 L_end
            """)
            poll()
            e("s_branch L_s2_chk")
            a.label("L_s2_go")
            sloads()
            a.label("L_s2_have")
        e(f"s_waitcnt vmcnt({19-sg}) lgkmcnt({10 if (sg >= 1 and sg + NB - 1 < 20) else 0})")
        o = OF + 4*sg
        a.label(f"L_chk_{sg}")
        e(f"v_max_u32 v13, v{o}, v{o+2}")
        e(f"v_cmp_eq_u32 vcc, -1, v13")
        e(f"s_cbranch_vccnz L_rt_{sg}")
        retries.append(sg)
        for nt in range(5):
            D = OD + 4*nt
            c = "0" if sg == 0 else f"v[{D}:{D+3}]"
            b = AB[sg % NB] + 4*nt
            e(f"v_mfma_f32_16x16x32_bf16 v[{D}:{D+3}], v[{b}:{b+3}], v[{o}:{o+3}], {c}")
            if sg + NB < 20: wo_reads_nt(sg + NB, nt)
    srd(S_B, 12, 2048*1280)
    e(f"""
    v_and_b32 v2, 15, v0
    v_lshrrev_b32 v3, 4, v0
    s_lshl_b32 s{sT}, s{sT+6}, 4
    v_add_u32 v2, s{sT}, v2
    v_mul_u32_u24 v2, 1280, v2
    v_lshlrev_b32 v4, 3, v3
    v_add_u32 v2, v2, v4
    s_lshr_b32 s{sT}, s{sHP}, 1
    s_mul_i32 s{sT}, s{sT}, 160
    """)
    for nt in range(5):
        D = OD + 4*nt; P = 64 + 2*nt
        e(f"v_cvt_pk_bf16_f32 v{P}, v{D}, v{D+1}")
        e(f"v_cvt_pk_bf16_f32 v{P+1}, v{D+2}, v{D+3}")
    for nt in range(5):
        P = 64 + 2*nt
        e(f"buffer_store_dwordx2 v[{P}:{P+1}], v2, s[{S_B}:{S_B+3}], s{sT} offen offset:{32*nt} {OUTFL}")
    e("s_branch L_fin")
    for sg in retries:
        o = OF + 4*sg
        a.label(f"L_rt_{sg}")
        e(f"""
        s_sub_u32 s{sSPIN}, s{sSPIN}, 1
        s_cbranch_scc1 L_end
        s_add_u32 s{sT}, s{sT+4}, {sg*1024}
        buffer_load_dwordx4 v[{o}:{o+3}], v7, s[{S_WS}:{S_WS+3}], s{sT} offen sc1
        s_waitcnt vmcnt(0)
        s_branch L_chk_{sg}
        """)

    a.label("L_lq")
    vVX, vVW, vWQ = 10, 11, 12
    vBA = 14
    XF = 64
    e(f"""
    v_lshrrev_b32 v2, 3, v0
    s_lshl_b32 s{sT}, s{sW4}, 3
    v_add_u32 v2, s{sT}, v2
    v_mul_u32_u24 v2, 1280, v2
    v_lshrrev_b32 v3, 4, v0                 ; r = l>>4
    s_and_b32 s{sT}, s{sW4}, 1
    s_lshl_b32 s{sT}, s{sT}, 2
    v_add_u32 v4, s{sT}, v3
    v_and_b32 v5, 7, v0
    v_xor_b32 v5, v5, v4
    v_lshlrev_b32 v5, 4, v5
    v_add_u32 v{vVX}, v2, v5
    v_and_b32 v4, 15, v0
    v_lshlrev_b32 v5, 2, v3
    v_sub_u32 v4, v4, v5
    v_and_b32 v4, 15, v4                    ; pos
    v_lshrrev_b32 v5, 3, v4                 ; seg
    v_bfe_u32 v6, v4, 2, 1                  ; part
    v_and_b32 v7, 3, v4                     ; i4
    v_mul_lo_u32 v8, v6, s{sBB}
    v_add_u32 v8, v8, v7                    ; j
    v_mov_b32 v9, 5
    v_mov_b32 v13, s{sBB}
    v_cmp_eq_u32 vcc, 0, v6
    s_lshl_b32 s{sT}, s{sW4}, 2
    v_add_u32 v2, s{sT}, v3
    v_cndmask_b32 v9, v9, v13, vcc
    v_cmp_lt_u32 vcc, v8, v9
    v_mul_u32_u24 v2, 3840, v2
    v_add_u32 v5, 1, v5
    v_mul_u32_u24 v5, 1280, v5
    v_lshlrev_b32 v8, 4, v8
    v_add3_u32 v{vVW}, v2, v5, v8
    v_mov_b32 v7, 0x40000000
    v_cndmask_b32 v{vVW}, v7, v{vVW}, vcc
    s_mul_i32 s{sSOFX}, s{sRC}, {128*1280}
    s_mul_i32 s{sSOFW}, s{sHP}, 80
    s_lshl_b32 s{sM0}, s{sW4}, 10
    """)
    stamp(4)
    e("s_waitcnt lgkmcnt(0)")
    stamp(8)
    srd(S_X, 4, 2048*1280)
    srd(S_W, 6, 640*3840)
    rotmode = [x for x in exp.split(',') if x.startswith('rot')]
    if rotmode:
        rm = rotmode[0]
        if rm == 'rot1': e(f"s_and_b32 s65, s{sHP}, 1")
        elif rm == 'rot5': e(f"s_and_b32 s65, s{sHP}, 1"); e("s_mul_i32 s65, s65, 5")
        elif rm == 'rotrc': e(f"s_and_b32 s65, s{sRC}, 1")
        elif rm == 'rothp': e(f"s_and_b32 s65, s{sHP}, 7")
        elif rm == 'rotmix': e(f"s_xor_b32 s65, s{sHP}, s{sRC}"); e("s_and_b32 s65, s65, 1")
    def issue_stage_last(s):
        m0b = (s % R) * SLOT
        for m in range(4):
            e(f"s_add_u32 m0, s{sM0}, {m0b + m*4096}")
            e(f"s_add_u32 s{sT}, s{sSOFX}, {m*32*1280 + s*128}")
            e(f"buffer_load_dwordx4 v{vVX}, s[{S_X}:{S_X+3}], s{sT} offen lds")
        for m in range(4):
            e(f"s_add_u32 m0, s{sM0}, {m0b + 16384 + m*4096}")
            e(f"s_add_u32 s{sT}, s{sSOFW}, {m*16*3840 + s*64*3840}")
            e(f"buffer_load_dwordx4 v{vVW}, s[{S_W}:{S_W+3}], s{sT} offen lds")
    def issue_stage(s):
        if s == NST - 1: return issue_stage_last(s)
        m0b = (s % R) * SLOT
        if rotmode:
            e(f"s_add_u32 s66, s65, {s}")
            e(f"s_sub_u32 s67, s66, 10")
            e(f"s_cmp_ge_u32 s66, 10")
            e(f"s_cselect_b32 s66, s67, s66")
            e(f"s_mul_i32 s67, s66, {64*3840}")
            e(f"s_lshl_b32 s66, s66, 7")
            e(f"s_add_u32 s66, s66, s{sSOFX}")
            e(f"s_add_u32 s67, s67, s{sSOFW}")
            for m in range(4):
                e(f"s_add_u32 m0, s{sM0}, {m0b + m*4096}")
                e(f"s_add_u32 s{sT}, s66, {m*32*1280}")
                e(f"buffer_load_dwordx4 v{vVX}, s[{S_X}:{S_X+3}], s{sT} offen lds")
                e(f"s_add_u32 m0, s{sM0}, {m0b + 16384 + m*4096}")
                e(f"s_add_u32 s{sT}, s67, {m*16*3840}")
                e(f"buffer_load_dwordx4 v{vVW}, s[{S_W}:{S_W+3}], s{sT} offen lds")
            return
        for m in range(4):
            e(f"s_add_u32 m0, s{sM0}, {m0b + m*4096}")
            e(f"s_add_u32 s{sT}, s{sSOFX}, {m*32*1280 + s*128}")
            e(f"buffer_load_dwordx4 v{vVX}, s[{S_X}:{S_X+3}], s{sT} offen lds")
            e(f"s_add_u32 m0, s{sM0}, {m0b + 16384 + m*4096}")
            e(f"s_add_u32 s{sT}, s{sSOFW}, {m*16*3840 + s*64*3840}")
            e(f"buffer_load_dwordx4 v{vVW}, s[{S_W}:{S_W+3}], s{sT} offen lds")
    issue_stage(0)
    srd(S_A, 8, 32*800)
    e(f"""
    v_lshlrev_b32 v2, 4, v0
    s_and_b32 s{sT}, s{sW4}, 1
    s_lshl_b32 s{sT}, s{sT}, 10
    s_add_u32 m0, s{sT}, {L_PHI}
    s_mul_i32 s{sT+1}, s{sHP}, 1600
    s_add_u32 s{sT}, s{sT}, s{sT+1}
    buffer_load_dwordx4 v2, s[{S_A}:{S_A+3}], s{sT} offen lds
    """)
    issue_stage(1)
    srd(S_WS, 16, 0x10000000)
    sPART = 64
    e(f"""
    s_lshl_b32 s{sPART}, s{sHP}, 4
    s_add_u32 s{sPART}, s{sPART}, s{sRC}
    s_lshl_b32 s{sPART}, s{sPART}, 12
    s_add_u32 s{sPART}, s{sPART}, {WS_PART}
    v_mov_b32 v40, -1
    v_mov_b32 v41, -1
    v_mov_b32 v42, -1
    v_mov_b32 v43, -1
    s_lshl_b32 s{sT}, s{sW4}, 6
    v_add_u32 v2, s{sT}, v0            ; tau
    v_lshlrev_b32 v8, 4, v2
    v_mov_b32 v3, 0x40000000
    v_cmp_gt_u32 vcc, 240, v2
    v_lshrrev_b32 v9, 4, v0            ; g = l>>4
    v_and_b32 v44, 15, v0
    v_cndmask_b32 v8, v3, v8, vcc
    v_lshlrev_b32 v44, 4, v44          ; t'*16
    s_lshl_b32 s{sT}, s{sRC}, 3
    s_lshl_b32 s{sT+1}, s{sW4}, 1
    s_add_u32 s{sT}, s{sT}, s{sT+1}
    s_mul_i32 s{sT}, s{sT}, 20480
    s_mul_i32 s{sT+1}, s{sBLK}, 5120
    s_add_u32 s{sT}, s{sT}, s{sT+1}
    s_lshl_b32 s{sT+1}, s{sG}, 8
    s_add_u32 s{sT}, s{sT}, s{sT+1}
    s_add_u32 s{sT+3}, s{sT}, {WS_O}
    v_lshlrev_b32 v45, 10, v9
    v_add_u32 v45, v45, v44            ; i=0
    v_mov_b32 v46, 4096
    v_add_u32 v47, -1, v9
    v_lshlrev_b32 v47, 10, v47
    v_add_u32 v47, 20480, v47
    v_cmp_eq_u32 vcc, 0, v9
    s_nop 1
    v_cndmask_b32 v46, v47, v46, vcc
    v_add_u32 v46, v46, v44            ; i=1
    v_add_u32 v47, 3, v9
    v_lshlrev_b32 v47, 10, v47
    v_add_u32 v47, 20480, v47
    v_add_u32 v47, v47, v44
    v_cmp_gt_u32 vcc, 2, v9
    s_nop 1
    v_cndmask_b32 v47, v3, v47, vcc    ; i=2
    buffer_store_dwordx4 v[40:43], v8, s[{S_WS}:{S_WS+3}], s{sPART} offen sc1
    buffer_store_dwordx4 v[40:43], v45, s[{S_WS}:{S_WS+3}], s{sT+3} offen sc1
    buffer_store_dwordx4 v[40:43], v46, s[{S_WS}:{S_WS+3}], s{sT+3} offen sc1
    buffer_store_dwordx4 v[40:43], v47, s[{S_WS}:{S_WS+3}], s{sT+3} offen sc1
    """)
    xfrag_addr(vBA, 2)
    VQ = [12, 13, 22, 23, 62]
    for j in range(5):
        e(f"""
        v_add_u32 v2, {64*j}, v0               ; n = 64j + l  (0..319)
        v_mul_u32_u24 v3, 205, v2
        v_lshrrev_b32 v3, 10, v3               ; n/5
        v_mul_u32_u24 v4, 5, v3
        v_sub_u32 v4, v2, v4                   ; n%5
        v_lshlrev_b32 v4, 4, v4
        v_mul_u32_u24 v3, 3840, v3
        v_add_u32 v{VQ[j]}, v3, v4
        """)
    def issue_wq_all():
        for gi in range(3):
            lab = a.newlabel("WQ")
            if gi == 2:
                e(f"s_cmp_ge_u32 s{sW4}, 2")
                e(f"s_cbranch_scc1 {lab}")
            e(f"s_mul_i32 s{sT+1}, s{sW4}, 5120")
            e(f"s_mul_i32 s{sT+2}, s{sW4}, {64*3840}")
            e(f"s_add_u32 s{sT+2}, s{sT+2}, s{sSOFW}")
            e(f"s_add_u32 s{sT+2}, s{sT+2}, {gi*4*64*3840}")
            for j in range(5):
                e(f"s_add_u32 m0, s{sT+1}, {L_WQ + gi*4*5120 + j*1024}")
                e("s_nop 0")
                e(f"buffer_load_dwordx4 v{VQ[j]}, s[{S_W}:{S_W+3}], s{sT+2} offen lds")
            a.label(lab)
    base = Base([vBA, vBA+1, vBA+2, vBA+3])
    stamp(1)
    for s in range(NST):
        if s <= 1: e("s_waitcnt vmcnt(12) lgkmcnt(0)")
        elif s <= 8: e("s_waitcnt vmcnt(8) lgkmcnt(0)")
        else: e("s_waitcnt vmcnt(2) lgkmcnt(0)")
        e("s_barrier")
        sstamp(s+1)
        if s == 0: stamp(2)
        sb = base.set(s)
        for kk in range(4):
            d = XF + 16*s + 4*kk
            e(f"ds_read_b128 v[{d}:{d+3}], v{vBA+kk} offset:{sb}")
        if s + 2 < NST: issue_stage(s+2)
        if s == NST - 1:
            e("s_waitcnt vmcnt(0)")
            e("s_barrier")
            issue_wq_all()
    vOA = 56
    def HOIST_LQ():
        lane_decomp32(2, 3, 4, 5, 6)
        e(f"""
        v_mul_u32_u24 v7, 800, v6
        v_mul_u32_u24 v8, 40, v3
        v_add_u32 v7, v7, v8
        v_lshlrev_b32 v8, 3, v5
        v_add_u32 v7, v7, v8
        v_add_u32 v7, {L_PHI}, v7
        v_lshrrev_b32 v8, 1, v2
        v_mov_b32 v21, {L_ZERO}
        v_cmp_eq_u32 vcc, v8, v6
        s_nop 1
        v_cndmask_b32 v20, v21, v7, vcc
        v_cmp_eq_u32 s[46:47], 0, v5
        s_nop 1
        s_and_b64 vcc, vcc, s[46:47]
        v_add_u32 v7, 32, v7
        s_nop 0
        v_cndmask_b32 v21, v21, v7, vcc
        """)

        lane_decomp32(2, 3, 4, 5, 6)
        e(f"""
        v_mul_u32_u24 v7, 1920, v6
        v_mul_u32_u24 v8, 48, v3
        v_lshlrev_b32 v9, 3, v5
        v_add3_u32 v7, v7, v8, v9
        v_add_u32 v7, {L_KVF}, v7
        v_lshrrev_b32 v8, 1, v2
        v_mov_b32 v9, {L_ZERO}
        v_cmp_eq_u32 vcc, v8, v6
        s_nop 1
        v_cndmask_b32 v{vOA}, v9, v7, vcc
        v_cmp_gt_u32 s[46:47], 2, v5
        s_nop 1
        s_and_b64 vcc, vcc, s[46:47]
        v_add_u32 v7, 32, v7
        s_nop 0
        v_cndmask_b32 v{vOA+1}, v9, v7, vcc
        v_and_b32 v2, 15, v0
        v_lshlrev_b32 v2, 4, v2
        v_bfe_u32 v3, v0, 4, 1
        v_mul_u32_u24 v3, 20480, v3
        v_add_u32 v2, v2, v3
        v_lshrrev_b32 v4, 5, v0            ; h
        v_lshlrev_b32 v5, 11, v4           ; c5 = 2h -> 2h*1024
        v_add_u32 v58, v5, v2
        v_lshlrev_b32 v6, 3, v4
        v_add_u32 v59, v6, v2
        s_lshl_b32 s44, s{sRC}, 3
        s_lshl_b32 s{sT+1}, s{sW4}, 1
        s_add_u32 s44, s44, s{sT+1}
        s_mul_i32 s44, s44, 20480
        s_mul_i32 s{sT+1}, s{sBLK}, 5120
        s_add_u32 s44, s44, s{sT+1}
        s_lshl_b32 s{sT+1}, s{sG}, 8
        s_add_u32 s44, s44, s{sT+1}
        s_add_u32 s44, s44, {WS_O}
        s_add_u32 s45, s44, 4096
        """)

    QA = 224; vQA = 18; vWO = 56
    lane_decomp32(2, 3, 4, 5, 6)
    e(f"""
    v_lshrrev_b32 v7, 1, v2
    v_lshlrev_b32 v7, 3, v7
    v_add_u32 v7, v7, v3
    v_mul_u32_u24 v7, 80, v7
    v_mul_u32_u24 v6, 40, v6
    v_add_u32 v7, v7, v6
    v_add_u32 v7, {L_WQ}, v7
    v_lshlrev_b32 v5, 3, v5
    v_add_u32 v{vQA}, v7, v5
    v_add_u32 v{vQA+1}, 32, v7
    """)
    e("s_waitcnt lgkmcnt(0)")
    subsignal(1, tmp=60)
    HOIST_LQ()
    e("s_waitcnt vmcnt(0)")
    subbar(7, tmp=60)
    subwait(0, tmp=60)
    if 'prio' in exp: e("s_setprio 1")
    stamp(3)
    if 'p1only' in exp:
        e("s_waitcnt vmcnt(0)")
        e("s_branch L_fin")
    QF3 = [24, 32, 40, 48]
    def q_reads3(k):
        b = QF3[k % 4]
        for T in range(2):
            for rd in range(2):
                e(f"ds_read_b64_tr_b16 v[{b+4*T+2*rd}:{b+4*T+2*rd+1}], v{vQA+T} offset:{(16*k+4*rd)*80}")
    wolist = [(sg, rd) for sg in WO_P1 for rd in range(2)]
    nwo = 0
    q_reads3(0); q_reads3(1); q_reads3(2)
    for k in range(40):
        if k + 3 < 40:
            q_reads3(k+3)
            e("s_waitcnt lgkmcnt(12)")
        else: e(f"s_waitcnt lgkmcnt({4*(39-k)})")
        for T in range(2):
            c = "0" if k == 0 else f"v[{QA+16*T}:{QA+16*T+15}]"
            b = QF3[k % 4]
            e(f"v_mfma_f32_32x32x16_bf16 v[{QA+16*T}:{QA+16*T+15}], v[{b+4*T}:{b+4*T+3}], v[{XF+4*k}:{XF+4*k+3}], {c}")
    if 'prio' in exp: e("s_setprio 0")
    stamp(5)
    WF = 64; QB = 88; PQ0 = 100; PQ1 = 116; EP = 132; EN = 152; PH = 172; TM = 192
    for u in range(2):
        for step in range(3):
            for rd in range(2):
                d = WF + u*12 + step*4 + 2*rd
                if step == 2 and rd == 1:
                    e(f"v_mov_b32 v{d}, 0"); e(f"v_mov_b32 v{d+1}, 0")
                else:
                    e(f"ds_read_b64_tr_b16 v[{d}:{d+1}], v{20+u} offset:{(8*step+4*rd)*40}")
    e("s_nop 7")
    if dump == "qacc":
        e("s_nop 7"); dump_regs([QA+i for i in range(20)], 0)
    for j in range(5):
        src = QA + 4*j if j < 4 else QA + 16
        e(f"v_cvt_pk_bf16_f32 v{QB+2*j}, v{src}, v{src+1}")
        e(f"v_cvt_pk_bf16_f32 v{QB+2*j+1}, v{src+2}, v{src+3}")
    e(f"v_mov_b32 v{QB+10}, 0"); e(f"v_mov_b32 v{QB+11}, 0")
    e("s_waitcnt lgkmcnt(0)")
    feature_map(QB, WF, PQ0, PQ1)
    e("s_nop 7")
    e("s_nop 3")
    softmax_pair(PQ0, PQ1, EP, EN, PH, TM)
    if dump == "phiq": dump_regs([PH+i for i in range(20)], 0)
    stamp(6)
    subwait(2)
    stamp(7)
    KA = 64; N0 = 104; N1 = 120
    for st in range(5):
        for U in range(2):
            for rd in range(2):
                d = KA + (U*5+st)*4 + 2*rd
                e(f"ds_read_b64_tr_b16 v[{d}:{d+1}], v{vOA+U} offset:{(8*st+4*rd)*48}")
    for st in range(5):
        e(f"s_waitcnt lgkmcnt({min(15, 4*(4-st))})")
        for U, N in ((0, N0), (1, N1)):
            c = "0" if st == 0 else f"v[{N}:{N+15}]"
            d = KA + (U*5+st)*4
            e(f"v_mfma_f32_32x32x16_bf16 v[{N}:{N+15}], v[{d}:{d+3}], v[{PH+4*st}:{PH+4*st+3}], {c}")
    e("s_nop 7")
    e("s_nop 3")
    e(f"v_add_f32 v8, 0x358637bd, v{N1+4}")
    e("v_rcp_f32 v8, v8")
    e("s_nop 0")
    OB = 136
    for i in range(8):
        e(f"v_pk_mul_f32 v[{N0+2*i}:{N0+2*i+1}], v[{N0+2*i}:{N0+2*i+1}], v[8:9] op_sel_hi:[1,0]")
    for i in range(2):
        e(f"v_pk_mul_f32 v[{N1+2*i}:{N1+2*i+1}], v[{N1+2*i}:{N1+2*i+1}], v[8:9] op_sel_hi:[1,0]")
    for i in range(8):
        e(f"v_cvt_pk_bf16_f32 v{OB+i}, v{N0+2*i}, v{N0+2*i+1}")
    for i in range(2):
        e(f"v_cvt_pk_bf16_f32 v{OB+8+i}, v{N1+2*i}, v{N1+2*i+1}")
    for i in (0, 2, 4, 6, 8):
        e(f"v_min_u32 v{OB+i}, -2, v{OB+i}")
    e(f"""
    buffer_store_dwordx4 v[{OB}:{OB+3}], v58, s[{S_WS}:{S_WS+3}], s44 offen sc1
    buffer_store_dwordx4 v[{OB+4}:{OB+7}], v58, s[{S_WS}:{S_WS+3}], s44 offen offset:1024 sc1
    buffer_store_dwordx2 v[{OB+8}:{OB+9}], v59, s[{S_WS}:{S_WS+3}], s45 offen sc1
    """)
    subsignal(5)
    a.label("L_fin")
    if until:
        e(f"""
        s_waitcnt vmcnt(0) lgkmcnt(0)
L_until:
        s_memrealtime s[94:95]
        s_waitcnt lgkmcnt(0)
        s_sub_u32 s96, s94, s98
        s_cmp_lt_u32 s96, {until}
        s_cbranch_scc1 L_until
        """)
    if stamps:
        stamp(10)
        e("s_waitcnt vmcnt(0)")
        e(f"""
        s_waitcnt lgkmcnt(0)
        s_lshl_b32 s{sT}, s2, 3
        s_add_u32 s{sT}, s{sT}, s{sWAVE}
        s_lshl_b32 s{sT}, s{sT}, 6
        s_add_u32 s{sT}, s{sT}, {WS_STAMP}
        v_mov_b32 v2, 0
        """)
        for i in range(NS): e(f"v_mov_b32 v{20+i}, s{sST+2*i}")
        e(f"""
        s_mov_b64 exec, 1
        buffer_store_dwordx4 v[20:23], v2, s[{S_WS}:{S_WS+3}], s{sT} offen
        buffer_store_dwordx4 v[24:27], v2, s[{S_WS}:{S_WS+3}], s{sT} offen offset:16
        buffer_store_dwordx4 v[28:31], v2, s[{S_WS}:{S_WS+3}], s{sT} offen offset:32
        """)
    if dbgwg >= 0:
        e(f"""
        s_cmp_lg_u32 s2, {dbgwg}
        s_cbranch_scc1 L_end
        s_cmp_lg_u32 s{sWAVE}, {dbgwave}
        s_cbranch_scc1 L_end
        s_mov_b64 exec, -1
        s_mov_b32 s72, s14
        s_and_b32 s73, s15, 0xffff
        s_mov_b32 s74, 256
        s_mov_b32 s75, 0x20000
        """)
        for i in range(1, NS):
            e(f"s_sub_u32 s{sT}, s{sST+2*i}, s{sST}")
            e(f"v_mov_b32 v{20+i}, s{sT}")
        e("v_mov_b32 v2, 0")
        e("s_mov_b64 exec, 1")
        for i in range(1, NS):
            e(f"buffer_store_dword v{20+i}, v2, s[72:75], 0 offen offset:{4*i}")
    if dbgwg == -2:
        e(f"""
        s_cmp_lg_u32 s{sWAVE}, {dbgwave}
        s_cbranch_scc1 L_end
        s_mov_b64 exec, -1
        s_mov_b32 s72, s14
        s_and_b32 s73, s15, 0xffff
        s_mov_b32 s74, 256
        s_mov_b32 s75, 0x20000
        """)
        for i in range(1, NS):
            e(f"s_sub_u32 s{sT}, s{sST+2*i}, s{sST}")
            e(f"v_mov_b32 v{20+i}, s{sT}")
        e("v_mov_b32 v2, 0")
        e("s_mov_b64 exec, 1")
        for i in range(1, NS):
            if i == 9: continue
            e(f"buffer_atomic_umax v{20+i}, v2, s[72:75], 0 offen offset:{4*i}")
    a.label("L_end")
    e("s_endpgm")
    a.label("L_code_end")
    hdr = HEADER + f"; @launch grid=(256,1,1) block=(512,1,1) lds={LDS_BYTES}\n"
    return hdr + f""".amdgcn_target "amdgcn-amd-amdhsa--gfx950"
.text
.globl {KN}
.p2align 8
.type {KN},@function
{KN}:
""" + a.text() + """.section .rodata,"a"
""" + kernel_desc(KN, 256, 102, 256)

if __name__ == "__main__":
    import argparse
    ap = argparse.ArgumentParser()
    ap.add_argument("--stamps", action="store_true")
    ap.add_argument("--dump", default=None)
    ap.add_argument("--stagest", action="store_true")
    ap.add_argument("--exp", default="")
    ap.add_argument("--until", type=int, default=0)
    ap.add_argument("--dbgwg", type=int, default=-1)
    ap.add_argument("--dbgwave", type=int, default=0)
    ap.add_argument("--pf", default="none")
    ap.add_argument("--nogpf", action="store_true")
    ap.add_argument("--nocode", action="store_true")
    ap.add_argument("--outfl", default="")
    ap.add_argument("--vred", action="store_true")
    ap.add_argument("--dwait", action="store_true")
    ap.add_argument("--ncs", type=int, default=4)
    args = ap.parse_args()
    DWAIT = args.dwait; NCS = args.ncs
    OUTFL = args.outfl.replace("+", " ")
    if args.pf == "none": PF = False
    else: PF = True; PFS = PFS_TAB[args.pf]
    if args.nogpf: GPF = False
    if args.nocode: GPF_CODE = False
    print(gen(stamps=args.stamps, dump=args.dump, stagest=args.stagest, exp=args.exp, until=args.until, dbgwg=args.dbgwg, dbgwave=args.dbgwave))
```

```python
import sys
from asmlib import *
from lay2 import TKV, TQ

KN = "standalone__linear_kernel_hedgehog__prompt_kernel"
NST = 10
SLOT = 32768
R = 3
L_WQ = 98304
L_PHI = 149504
L_ZERO = 151552
L_CNT = 153600
L_KVF = 154624
L_PK = 32768
L_WO19 = 158464
LDS_BYTES = 163840
def L_WO(sg): return sg*5120 if sg <= 18 else L_WO19
WO_P1 = [0,1,2,3,4,5,13,14,15,16,17,18,19]
WO_P2 = [6,7,8,9,10,11,12]
WO_ALL1 = [0,1,2,3,4,5,13,14,15,16,17,18,19]
NCS = 4
WS_PART = 0x000000
WS_O = 0x100000
WS_RDY = 0x400000
WS_STAMP = 0x700000
WS_DBG = 0x800000
PF = False
SPF = 1
PKRED = False
DWAIT = False
VRED = True
OUTFL = ''
GPF = True
GPF_CODE = True
PFS_TAB = {
 'b':  {'pre': [('x',2),('kv',2)], 0: [('kv',5),('x',6)], 1: [('kv',8),('q',0),('q',1)], 3: [('wo',0),('wo',1)]},
 'e1': {'e': [('x',0),('kv',2),('code',0)], 'pre': [('x',4)], 0: [('kv',5),('x',8)], 1: [('kv',8)], 3: [('q',0)], 4: [('q',1)], 6: [('wo',0)], 7: [('wo',1)]},
 'e2': {'e': [('x',2),('kv',2),('code',0)], 0: [('kv',5),('x',6)], 1: [('kv',8)], 3: [('q',0)], 4: [('q',1)], 6: [('wo',0)], 7: [('wo',1)]},
 'e3': {'e': [('x',0),('kv',0),('code',0)], 'pre': [('x',4),('kv',3)], 0: [('kv',6),('x',8)], 1: [('kv',9)], 3: [('q',0)], 4: [('q',1)], 6: [('wo',0)], 7: [('wo',1)]},
 'e4': {'e': [('x',2),('kv',2),('code',0)], 'pre': [('x',6),('kv',5)], 0: [('kv',8)], 2: [('q',0)], 3: [('q',1)], 5: [('wo',0)], 6: [('wo',1)]},
 'e5': {'e': [('code',0)], 'pre': [('x',2),('kv',2)], 0: [('kv',5),('x',6)], 2: [('kv',8)], 4: [('q',0)], 5: [('q',1)], 7: [('wo',0)], 8: [('wo',1)]},
 'wo': {'e': [('code',0)], 4: [('q',0)], 5: [('q',1)], 7: [('wo',0)], 8: [('wo',1)]},
}
PFS = PFS_TAB['b']
LOG2E = 0x3fb8aa3b
NLOG2E = 0xbfb8aa3b
SPIN_G = 0x8000
SPIN_L = 0x80000

def gen(stamps=False, dump=None, stagest=False, exp='', until=0, dbgwg=-1, dbgwave=0):
    a = Asm(); e = a.e
    S_X, S_W, S_WS = 20, 24, 28
    S_A, S_B = 72, 76
    sWAVE, sW4, sRC, sHP, sBB = 32, 33, 34, 35, 36
    sT = 40
    sSOFX, sSOFW, sM0 = 52, 53, 54
    sNONCE = 55
    sL = 56
    sEX = 58
    sSPIN = 60
    sU, sV = 62, 63
    sUS = 65
    sBLK, sG = 66, 67
    sFC = 68
    sST = 80
    NS = 11
    def sstamp(i):
        if stagest: e(f"s_memtime s[{sST+2*i}:{sST+2*i+1}]")
    def stamp(i):
        if stamps and not (stagest and i > 0): e(f"s_memtime s[{sST+2*i}:{sST+2*i+1}]")
    def rstamp(i):
        if stamps and not stagest: e(f"s_memrealtime s[{sST+2*i}:{sST+2*i+1}]")
    def srd(dst, ptr, nbytes):
        e(f"""
        s_mov_b32 s{dst}, s{ptr}
        s_and_b32 s{dst+1}, s{ptr+1}, 0xffff
        s_mov_b32 s{dst+2}, {nbytes}
        s_mov_b32 s{dst+3}, 0x20000
        """)
    def subsignal(idx, tmp=2):
        e(f"""
        v_mov_b32 v{tmp}, {L_CNT + 4*idx}
        v_mov_b32 v{tmp+1}, 1
        s_mov_b64 exec, 1
        ds_add_u32 v{tmp}, v{tmp+1}
        s_mov_b64 exec, -1
        """)
    def subwait(idx, target=4, tmp=2):
        lab = a.newlabel("SW")
        e(f"v_mov_b32 v{tmp}, {L_CNT + 4*idx}")
        e(f"s_mov_b32 s{sSPIN}, {SPIN_L}")
        a.label(lab)
        e(f"""
        s_sub_u32 s{sSPIN}, s{sSPIN}, 1
        s_cbranch_scc1 L_end
        ds_read_b32 v{tmp+1}, v{tmp}
        s_waitcnt lgkmcnt(0)
        v_readfirstlane_b32 s{sT}, v{tmp+1}
        s_nop 0
        s_cmp_lt_u32 s{sT}, {target}
        s_cbranch_scc1 {lab}
        """)
    def subbar(idx, target=4, tmp=2):
        subsignal(idx, tmp); subwait(idx, target, tmp)
    def dump_regs(regs, off):
        n = len(regs)
        e(f"""
        s_lshl_b32 s{sT}, s2, 3
        s_add_u32 s{sT}, s{sT}, s{sWAVE}
        s_mul_i32 s{sT}, s{sT}, {n*256}
        s_add_u32 s{sT}, s{sT}, {WS_DBG + off}
        v_lshlrev_b32 v2, 2, v0
        """)
        for i, r in enumerate(regs):
            e(f"buffer_store_dword v{r}, v2, s[{S_WS}:{S_WS+3}], s{sT} offen offset:{(i%16)*256}")
            if i % 16 == 15: e(f"s_add_u32 s{sT}, s{sT}, 4096")
        e("s_waitcnt vmcnt(0)")
    def softmax_pair(P0, P1, EP, EN, PH, tm):
        p = [P0 + i for i in range(16)] + [P1 + i for i in range(4)]
        tM, tN, tA, tB = tm, tm+1, tm+2, tm+4
        e(f"v_max3_f32 v{tM}, v{p[0]}, v{p[1]}, v{p[2]}")
        e(f"v_min3_f32 v{tN}, v{p[0]}, v{p[1]}, v{p[2]}")
        for i in range(3, 19, 2):
            e(f"v_max3_f32 v{tM}, v{tM}, v{p[i]}, v{p[i+1]}")
            e(f"v_min3_f32 v{tN}, v{tN}, v{p[i]}, v{p[i+1]}")
        e(f"v_max_f32 v{tM}, v{tM}, v{p[19]}")
        e(f"v_min_f32 v{tN}, v{tN}, v{p[19]}")
        e(f"v_mul_f32 v{tA}, {NLOG2E:#x}, v{tM}")
        e(f"v_mul_f32 v{tB}, {LOG2E:#x}, v{tN}")
        for i in range(10):
            e(f"v_pk_fma_f32 v[{EP+2*i}:{EP+2*i+1}], v[{p[2*i]}:{p[2*i]+1}], s[{sL}:{sL+1}], v[{tA}:{tA+1}] op_sel_hi:[1,1,0]")
            e(f"v_pk_fma_f32 v[{EN+2*i}:{EN+2*i+1}], v[{p[2*i]}:{p[2*i]+1}], s[{sL}:{sL+1}], v[{tB}:{tB+1}] op_sel_hi:[1,1,0] neg_lo:[1,0,0] neg_hi:[1,0,0]")
        for i in range(20):
            e(f"v_exp_f32 v{EP+i}, v{EP+i}")
            e(f"v_exp_f32 v{EN+i}, v{EN+i}")
        e(f"v_pk_add_f32 v[{tA}:{tA+1}], v[{EP}:{EP+1}], v[{EP+2}:{EP+3}]")
        e(f"v_pk_add_f32 v[{tB}:{tB+1}], v[{EN}:{EN+1}], v[{EN+2}:{EN+3}]")
        for i in range(2, 10):
            e(f"v_pk_add_f32 v[{tA}:{tA+1}], v[{tA}:{tA+1}], v[{EP+2*i}:{EP+2*i+1}]")
            e(f"v_pk_add_f32 v[{tB}:{tB+1}], v[{tB}:{tB+1}], v[{EN+2*i}:{EN+2*i+1}]")
        e(f"v_add_f32 v{tA}, v{tA}, v{tA+1}")
        e(f"v_add_f32 v{tB}, v{tB}, v{tB+1}")
        e(f"v_rcp_f32 v{tA}, v{tA}")
        e(f"v_rcp_f32 v{tB}, v{tB}")
        e("s_nop 0")
        for i in range(10):
            e(f"v_pk_mul_f32 v[{EP+2*i}:{EP+2*i+1}], v[{EP+2*i}:{EP+2*i+1}], v[{tA}:{tA+1}] op_sel_hi:[1,0]")
            e(f"v_pk_mul_f32 v[{EN+2*i}:{EN+2*i+1}], v[{EN+2*i}:{EN+2*i+1}], v[{tB}:{tB+1}] op_sel_hi:[1,0]")
        for i in range(10):
            e(f"v_cvt_pk_bf16_f32 v{PH+i}, v{EP+2*i}, v{EP+2*i+1}")
            e(f"v_cvt_pk_bf16_f32 v{PH+10+i}, v{EN+2*i}, v{EN+2*i+1}")
    def lane_decomp32(vG, vrp, vc, vQ, vhh):
        e(f"""
        v_lshrrev_b32 v{vG}, 4, v0
        v_bfe_u32 v{vrp}, v0, 2, 2
        v_and_b32 v{vc}, 3, v0
        v_and_b32 v{vQ}, 1, v{vG}
        v_lshlrev_b32 v{vQ}, 1, v{vQ}
        v_lshrrev_b32 v{vhh}, 1, v{vc}
        v_add_u32 v{vQ}, v{vQ}, v{vhh}
        v_and_b32 v{vhh}, 1, v{vc}
        """)
    def wphi_frags(WF, va, t):
        vG, vrp, vc, vQ, vhh = t, t+1, t+2, t+3, t+4
        lane_decomp32(vG, vrp, vc, vQ, vhh)
        e(f"""
        v_mul_u32_u24 v{t+5}, 800, v{vhh}
        v_mul_u32_u24 v{t+6}, 40, v{vrp}
        v_add_u32 v{t+5}, v{t+5}, v{t+6}
        v_lshlrev_b32 v{t+6}, 3, v{vQ}
        v_add_u32 v{t+5}, v{t+5}, v{t+6}
        v_add_u32 v{t+5}, {L_PHI}, v{t+5}
        v_lshrrev_b32 v{t+6}, 1, v{vG}
        v_mov_b32 v{va+1}, {L_ZERO}
        v_cmp_eq_u32 vcc, v{t+6}, v{vhh}
        s_nop 1
        v_cndmask_b32 v{va}, v{va+1}, v{t+5}, vcc
        v_cmp_eq_u32 s[{sEX}:{sEX+1}], 0, v{vQ}
        s_nop 1
        s_and_b64 vcc, vcc, s[{sEX}:{sEX+1}]
        v_add_u32 v{t+5}, 32, v{t+5}
        s_nop 0
        v_cndmask_b32 v{va+1}, v{va+1}, v{t+5}, vcc
        """)
        for u in range(2):
            for step in range(3):
                for rd in range(2):
                    d = WF + u*12 + step*4 + 2*rd
                    if step == 2 and rd == 1:
                        e(f"v_mov_b32 v{d}, 0"); e(f"v_mov_b32 v{d+1}, 0")
                    else:
                        e(f"ds_read_b64_tr_b16 v[{d}:{d+1}], v{va+u} offset:{(8*step+4*rd)*40}")
    def feature_map(SRC, WF, P0, P1):
        for step in range(3):
            for u, P in ((0, P0), (1, P1)):
                c = "0" if step == 0 else f"v[{P}:{P+15}]"
                e(f"v_mfma_f32_32x32x16_bf16 v[{P}:{P+15}], v[{WF+u*12+step*4}:{WF+u*12+step*4+3}], v[{SRC+4*step}:{SRC+4*step+3}], {c}")
    def xfrag_addr(vBA, t):
        e(f"""
        v_and_b32 v{t}, 31, v0
        v_lshrrev_b32 v{t+1}, 5, v0
        v_bfe_u32 v{t+2}, v{t}, 1, 3
        v_xor_b32 v{t+2}, v{t+2}, v{t+1}
        v_lshlrev_b32 v{t+2}, 4, v{t+2}
        s_lshl_b32 s{sT}, s{sW4}, 5
        v_add_u32 v{t}, s{sT}, v{t}
        v_lshlrev_b32 v{t}, 7, v{t}
        v_add_u32 v{vBA}, v{t}, v{t+2}
        v_xor_b32 v{vBA+1}, 32, v{vBA}
        v_xor_b32 v{vBA+2}, 64, v{vBA}
        v_xor_b32 v{vBA+3}, 96, v{vBA}
        """)
    class Base:
        def __init__(self, regs): self.regs = regs; self.cur = 0
        def set(self, s):
            so = (s % R) * SLOT
            want = (so // 65536) * 65536
            if want != self.cur:
                d = (want - self.cur) & 0xffffffff
                for r in self.regs: e(f"v_add_u32 v{r}, {d}, v{r}")
                self.cur = want
            return so - self.cur
    def wo_setup(vWO, t):
        e(f"""
        v_mul_u32_u24 v{t}, 26, v0
        v_lshrrev_b32 v{t}, 8, v{t}          ; l/10 for l<64
        v_mul_u32_u24 v{t+1}, 10, v{t}
        v_sub_u32 v{t+1}, v0, v{t+1}
        v_lshlrev_b32 v{t+1}, 4, v{t+1}
        v_mul_u32_u24 v{t}, 1280, v{t}
        v_add_u32 v{vWO}, v{t}, v{t+1}
        v_cmp_gt_u32 vcc, 40, v0
        s_lshr_b32 s{sU}, s{sHP}, 1
        s_mul_i32 s{sU}, s{sU}, 160
        s_lshl_b32 s{sT}, s{sW4}, 1          ; 2G
        s_lshr_b32 s{sV}, s{sW4}, 1          ; G>=2
        s_add_u32 s{sUS}, s{sT}, 1
        s_sub_u32 s{sUS}, s{sUS}, s{sV}      ; slow h8 = 2G + (G<2)
        s_add_u32 s{sT}, s{sT}, s{sV}        ; fast h8 = 2G + (G>=2)
        s_mul_i32 s{sUS}, s{sUS}, {40*1280}
        s_add_u32 s{sUS}, s{sUS}, s{sU}
        s_mul_i32 s{sT}, s{sT}, {40*1280}
        s_add_u32 s{sU}, s{sU}, s{sT}
        s_lshr_b32 s{sV}, s{sW4}, 1
        s_lshl_b32 s{sV}, s{sV}, 4
        s_and_b32 s{sT}, s{sW4}, 1
        s_lshl_b32 s{sT}, s{sT}, 2
        s_add_u32 s{sV}, s{sV}, s{sT}
        s_mul_i32 s{sV}, s{sV}, 160          ; pi0*160
        s_mov_b64 s[{sEX}:{sEX+1}], vcc
        """)
    def wo_dma(sg, rd, vWO):
        blk, c5 = divmod(sg, 5)
        if c5 < 4: row = 320*(blk & 1) + [0, 8, 20, 28][c5] + 4*rd
        else: row = 320*(blk & 1) + 16 + 20*rd
        e(f"s_add_u32 m0, s{sV}, {L_WO(sg) + rd*8*160}")
        e(f"s_add_u32 s{sT}, s{sUS if blk >= 2 else sU}, {row*1280}")
        e(f"buffer_load_dwordx4 v{vWO}, s[{S_B}:{S_B+3}], s{sT} offen lds")

    e(f"""
    s_load_dwordx8 s[4:11], s[0:1], 0
    s_load_dwordx4 s[12:15], s[0:1], 32
    s_load_dwordx2 s[16:17], s[0:1], 48
    s_cmp_ge_u32 s2, 256
    s_cbranch_scc1 L_end
    """)
    if 'half' in exp:
        e("s_bitcmp1_b32 s2, 6")
        e("s_cbranch_scc1 L_end")
    if 'quarter' in exp:
        e("s_and_b32 s40, s2, 0x60")
        e("s_cmp_lg_u32 s40, 0")
        e("s_cbranch_scc1 L_end")
    stamp(0); rstamp(9)
    if until: e("s_memrealtime s[98:99]")
    e(f"""
    v_lshrrev_b32 v1, 6, v0
    v_and_b32 v0, 63, v0
    s_and_b32 s{sT}, s2, 7
    s_lshr_b32 s{sT+1}, s2, 3
    v_readfirstlane_b32 s{sWAVE}, v1
    s_lshr_b32 s{sRC}, s{sT}, 1
    s_lshl_b32 s{sRC}, s{sRC}, 2
    s_lshr_b32 s{sT+2}, s{sT+1}, 3
    s_add_u32 s{sRC}, s{sRC}, s{sT+2}
    s_and_b32 s{sHP}, s{sT}, 1
    s_lshl_b32 s{sHP}, s{sHP}, 3
    s_and_b32 s{sT+2}, s{sT+1}, 7
    s_add_u32 s{sHP}, s{sHP}, s{sT+2}
    s_and_b32 s{sW4}, s{sWAVE}, 3
    s_mul_i32 s{sBB}, s{sHP}, 5
    s_and_b32 s{sBB}, s{sBB}, 7
    s_sub_u32 s{sBB}, 8, s{sBB}
    s_min_u32 s{sBB}, s{sBB}, 4
    s_mov_b32 s{sL}, {LOG2E:#x}
    s_mov_b32 s{sL+1}, {LOG2E:#x}
    s_and_b32 s{sT}, s{sHP}, 7
    s_lshr_b32 s{sG}, s{sT}, 1                 ; G = (hp&7)>>1
    s_lshr_b32 s{sBLK}, 0x5a, s{sT}
    s_and_b32 s{sBLK}, s{sBLK}, 1
    s_lshl_b32 s{sBLK}, s{sBLK}, 1
    s_lshr_b32 s{sT}, s{sHP}, 3
    s_add_u32 s{sBLK}, s{sBLK}, s{sT}
    s_cmp_ge_u32 s{sWAVE}, 4
    s_cbranch_scc1 L_lq
    """)
    if GPF:
        e(f"""
        s_lshl_b32 s{sT}, s{sW4}, 6
        v_add_u32 v2, s{sT}, v0                 ; n = 64*w + lane  (0..255)
        s_mul_i32 s{sT}, s2, 80
        s_mul_i32 s{sT+1}, s2, 75
        s_mul_i32 s{sT+2}, s2, 25
        s_sub_u32 s{sT+1}, s{sT+1}, 80
        s_sub_u32 s{sT+2}, s{sT+2}, 155
        s_waitcnt lgkmcnt(0)
        v_mov_b32 v3, s{sT+2}
        v_mov_b32 v4, s10
        v_mov_b32 v5, s11
        v_mov_b32 v6, s{sT+1}
        v_mov_b32 v7, s6
        v_mov_b32 v8, s7
        v_cmp_gt_u32 vcc, 155, v2
        s_nop 1
        v_cndmask_b32 v3, v3, v6, vcc
        v_cndmask_b32 v4, v4, v7, vcc
        v_cndmask_b32 v5, v5, v8, vcc
        v_mov_b32 v6, s{sT}
        v_mov_b32 v7, s4
        v_mov_b32 v8, s5
        v_cmp_gt_u32 vcc, 80, v2
        s_nop 1
        v_cndmask_b32 v3, v3, v6, vcc
        v_cndmask_b32 v4, v4, v7, vcc
        v_cndmask_b32 v5, v5, v8, vcc
        v_add_u32 v3, v3, v2
        v_lshlrev_b32 v3, 7, v3
        v_add_co_u32 v4, vcc, v4, v3
        s_nop 1
        v_addc_co_u32 v5, vcc, 0, v5, vcc
        """)
        if GPF_CODE:
            e(f"""
            s_getpc_b64 s[{sT+4}:{sT+5}]
L_pc_ref:
            s_min_u32 s{sT+3}, s2, (L_code_end-{KN})/128
            s_lshl_b32 s{sT+3}, s{sT+3}, 7
            s_sub_u32 s{sT+4}, s{sT+4}, L_pc_ref-{KN}
            s_subb_u32 s{sT+5}, s{sT+5}, 0
            s_add_u32 s{sT+4}, s{sT+4}, s{sT+3}
            s_addc_u32 s{sT+5}, s{sT+5}, 0
            s_min_u32 s{sT+3}, s2, 199
            s_lshl_b32 s{sT+3}, s{sT+3}, 7
            s_add_u32 s{sT+6}, s8, s{sT+3}
            s_addc_u32 s{sT+7}, s9, 0
            s_cmp_lg_u32 s{sW4}, 2
            s_cbranch_scc1 L_gpf_go
            v_writelane_b32 v4, s{sT+4}, 52
            v_writelane_b32 v5, s{sT+5}, 52
            v_writelane_b32 v4, s{sT+6}, 53
            v_writelane_b32 v5, s{sT+7}, 53
L_gpf_go:
            v_cmp_gt_u32 vcc, 182, v2
            """)
        else:
            e("v_cmp_gt_u32 vcc, 180, v2")
        e(f"""
        s_nop 1
        s_and_saveexec_b64 s[{sT}:{sT+1}], vcc
        s_cbranch_execz L_gpf_done
        global_load_dword v48, v[4:5], off
L_gpf_done:
        s_mov_b64 exec, -1
        """)

    ACC = 64; FB = [112, 128]; WF = 144; KB = 168; VB = 180; PK0 = 192; PK1 = 208; EP = 224; EN = 112; PH = 64; TM = 244
    vAA = 10; vBA = 14
    vPA, vPB = 34, 35
    sPART = 64
    e(f"""
    s_lshl_b32 s{sPART}, s{sHP}, 4
    s_add_u32 s{sPART}, s{sPART}, s{sRC}
    s_lshl_b32 s{sPART}, s{sPART}, 12
    s_add_u32 s{sPART}, s{sPART}, {WS_PART}
    s_waitcnt lgkmcnt(0)
    """)
    srd(S_WS, 16, 0x10000000)
    srd(S_A, 14, 256)
    if PF:
        srd(S_X, 6, 640*3840)
        e(f"""
        v_mov_b32 v37, 0x40000000
        s_lshr_b32 s{sT+1}, s2, 3               ; j
        s_and_b32 s{sT+2}, s2, 1
        s_mul_i32 s{sT+2}, s{sT+2}, 640         ; column half (bytes)
        v_mov_b32 v3, 0x40000000
        s_cmp_eq_u32 s{sW4}, 0
        s_cbranch_scc1 L_t_x
        s_cmp_eq_u32 s{sW4}, 1
        s_cbranch_scc1 L_t_kv
        v_mul_u32_u24 v2, 52, v0
        v_lshrrev_b32 v2, 8, v2                 ; l/5
        v_mul_u32_u24 v4, 5, v2
        v_sub_u32 v4, v0, v4
        v_lshlrev_b32 v4, 7, v4                 ; li*128
        s_mul_i32 s{sT+3}, s{sT+1}, 10
        v_add_u32 v2, s{sT+3}, v2               ; row
        s_mov_b32 s{sT+4}, 3840
        s_cmp_eq_u32 s{sW4}, 2
        s_cselect_b32 s{sT+4}, s{sT+4}, 1280
        v_mul_lo_u32 v2, v2, s{sT+4}
        v_add3_u32 v37, v2, v4, s{sT+2}
        v_cmp_gt_u32 vcc, 50, v0
        s_nop 1
        v_cndmask_b32 v37, v3, v37, vcc
        s_cmp_eq_u32 s{sW4}, 2
        s_cbranch_scc1 L_t_done
        """)
        srd(S_X, 10, 640*1280)
        e(f"""
        s_branch L_t_done
L_t_kv:
        v_mul_u32_u24 v2, 13, v0
        v_lshrrev_b32 v2, 8, v2                 ; q = l/20
        v_mul_u32_u24 v4, 20, v2
        v_sub_u32 v4, v0, v4                    ; l%20
        v_mul_u32_u24 v5, 26, v4
        v_lshrrev_b32 v5, 8, v5                 ; r = (l%20)/10
        v_mul_u32_u24 v6, 10, v5
        v_sub_u32 v4, v4, v6                    ; l%10
        v_mul_u32_u24 v6, 52, v4
        v_lshrrev_b32 v6, 8, v6                 ; ty
        v_mul_u32_u24 v7, 5, v6
        v_sub_u32 v4, v4, v7                    ; li
        v_lshlrev_b32 v4, 7, v4
        v_lshlrev_b32 v2, 6, v2                 ; 64q
        v_add_u32 v2, v2, v5
        s_lshl_b32 s{sT+3}, s{sT+1}, 1
        v_add_u32 v2, s{sT+3}, v2               ; row
        v_mul_u32_u24 v2, 3840, v2
        v_add_u32 v6, 1, v6
        v_mul_u32_u24 v6, 1280, v6
        v_add3_u32 v2, v2, v4, v6
        v_add_u32 v37, s{sT+2}, v2
        v_cmp_gt_u32 vcc, 60, v0
        s_nop 1
        v_cndmask_b32 v37, v3, v37, vcc
        s_branch L_t_done
L_t_x:
        v_and_b32 v2, 15, v0
        s_lshr_b32 s{sT+2}, s2, 1
        s_and_b32 s{sT+2}, s{sT+2}, 3
        s_lshl_b32 s{sT+2}, s{sT+2}, 9
        s_lshl_b32 s{sT+3}, s{sT+1}, 4
        s_add_u32 s{sT+2}, s{sT+2}, s{sT+3}
        v_add_u32 v2, s{sT+2}, v2
        v_mul_u32_u24 v2, 1280, v2
        v_lshrrev_b32 v4, 4, v0
        v_lshlrev_b32 v4, 7, v4
        v_add_u32 v37, v2, v4
        """)
        srd(S_X, 4, 2048*1280)
        a.label("L_t_done")
    def touch(wave, soff):
        if not PF: return
        lab = a.newlabel("TT")
        e(f"""
        s_cmp_lg_u32 s{sW4}, {wave}
        s_cbranch_scc1 {lab}
        s_mov_b32 s{sT}, {soff}
        buffer_load_dword v36, v37, s[{S_X}:{S_X+3}], s{sT} offen
{lab}:
        """)
    def code_touch():
        lab = a.newlabel("CT")
        e(f"""
        s_cmp_lg_u32 s{sW4}, 3
        s_cbranch_scc1 {lab}
        s_getpc_b64 s[{sT+4}:{sT+5}]
L_pc_ref:
        s_lshr_b32 s{sT+3}, s2, 3
        s_mul_i32 s{sT+3}, s{sT+3}, 7
        v_add_u32 v2, s{sT+3}, v0
        v_min_u32 v2, (L_code_end-{KN})/128, v2
        v_lshlrev_b32 v2, 7, v2
        s_sub_u32 s{sT+4}, s{sT+4}, L_pc_ref-{KN}
        s_subb_u32 s{sT+5}, s{sT+5}, 0
        v_mov_b32 v5, s{sT+5}
        v_add_co_u32 v4, vcc, s{sT+4}, v2
        s_nop 1
        v_addc_co_u32 v5, vcc, 0, v5, vcc
        v_cmp_gt_u32 vcc, 7, v0
        s_nop 1
        s_mov_b64 exec, vcc
        global_load_dword v47, v[4:5], off
        s_mov_b64 exec, -1
{lab}:
        """)
    def run_sched(when):
        if not PF: return
        for kind, arg in PFS.get(when, []):
            if kind == 'x': touch(0, arg*128)
            elif kind == 'kv': touch(1, arg*64*3840)
            elif kind == 'q': touch(2, arg*320*3840)
            elif kind == 'wo': touch(3, arg*320*1280)
            elif kind == 'code': code_touch()
    run_sched('e')
    e(f"""
    s_or_b32 s{sT}, s{sRC}, s{sHP}
    s_or_b32 s{sT}, s{sT}, s{sW4}
    s_cmp_lg_u32 s{sT}, 0
    s_cbranch_scc1 L_kv_nn
    s_memrealtime s[{sT+4}:{sT+5}]
    s_waitcnt lgkmcnt(0)
    s_or_b32 s{sT+4}, s{sT+4}, 1
    v_mov_b32 v2, 0
    v_mov_b32 v3, s{sT+4}
    s_mov_b64 exec, 1
    buffer_store_dword v3, v2, s[{S_A}:{S_A+3}], 0 offen sc1
    s_mov_b64 exec, -1
L_kv_nn:
    """)
    e(f"""
    v_lshlrev_b32 v2, 4, v0
    s_lshl_b32 s{sT}, s{sW4}, 10
    s_add_u32 s{sT}, s{sT}, {L_ZERO}
    v_add_u32 v2, s{sT}, v2
    v_mov_b32 v24, 0
    v_mov_b32 v25, 0
    v_mov_b32 v26, 0
    v_mov_b32 v27, 0
    s_cmp_eq_u32 s{sW4}, 3
    s_cbranch_scc1 L_kv_nz
    ds_write_b128 v2, v[24:27]
L_kv_nz:
    """)
    lane_decomp32(2, 3, 4, 5, 6)
    e(f"""
    v_lshlrev_b32 v5, 3, v5          ; 8Q
    v_mul_u32_u24 v6, 5, v6          ; 5hh
    v_lshrrev_b32 v7, 1, v2
    v_lshlrev_b32 v7, 3, v7
    v_add_u32 v7, v7, v3             ; krow
    v_lshlrev_b32 v7, 8, v7
    v_add_u32 v7, 16384, v7
    v_lshlrev_b32 v8, 2, v3          ; 4rp
    s_sub_u32 s{sT+1}, 4, s{sBB}
    """)
    for T in range(3):
        immc = 0; imms = 0
        for Q in range(4):
            q = TKV[T][Q] or TKV[T][0]
            immc |= q[1] << (8*Q); imms |= (8*q[0]) << (8*Q)
        e(f"""
        s_mov_b32 s{sT}, {immc}
        v_bfe_u32 v18, s{sT}, v5, 8
        v_add_u32 v18, v18, v6
        v_lshrrev_b32 v19, 1, v18
        v_mov_b32 v9, s{sT+1}
        v_cmp_le_u32 vcc, s{sBB}, v19
        v_mov_b32 v20, 0
        s_nop 0
        v_cndmask_b32 v9, v20, v9, vcc
        v_add_u32 v19, v19, v9
        s_mov_b32 s{sT}, {imms}
        v_bfe_u32 v9, s{sT}, v5, 8
        v_add3_u32 v19, v19, v9, v8
        v_and_b32 v19, 15, v19
        v_lshlrev_b32 v19, 4, v19
        v_and_b32 v18, 1, v18
        v_lshlrev_b32 v18, 3, v18
        v_add3_u32 v{vAA+T}, v7, v19, v18
        """)
    xfrag_addr(vBA, 2)
    def kv_reads(kk, buf, sb):
        b = FB[buf]
        e(f"ds_read_b128 v[{b+12}:{b+15}], v{vBA+kk} offset:{sb}")
        for T in range(3):
            for rd in range(2):
                e(f"ds_read_b64_tr_b16 v[{b+4*T+2*rd}:{b+4*T+2*rd+1}], v{vAA+T} offset:{sb+(16*kk+4*rd)*256}")
    def kv_mfmas(buf, first=False):
        b = FB[buf]
        for T in range(3):
            c = "0" if first else f"v[{ACC+16*T}:{ACC+16*T+15}]"
            e(f"v_mfma_f32_32x32x16_bf16 v[{ACC+16*T}:{ACC+16*T+15}], v[{b+4*T}:{b+4*T+3}], v[{b+12}:{b+15}], {c}")
    run_sched('pre')
    e("s_waitcnt lgkmcnt(0)")
    stamp(1)
    e("s_barrier")
    stamp(2)
    vNC, vRF = 38, 42
    vRA = 18; vKA = 26; vKB = 28
    def hoist_pk():
        e(f"""
        v_and_b32 v2, 31, v0
        v_lshrrev_b32 v3, 5, v0
        v_lshlrev_b32 v3, 14, v3
        s_lshl_b32 s{sT}, s{sW4}, 5
        v_add_u32 v2, s{sT}, v2
        v_lshlrev_b32 v2, 7, v2
        v_add_u32 v2, v2, v3
        v_add_u32 v2, {L_PK}, v2
        v_and_b32 v3, 7, v0
        v_bfe_u32 v4, v0, 3, 1
        v_lshlrev_b32 v4, 2, v4
        v_xor_b32 v3, v3, v4
        v_lshlrev_b32 v3, 4, v3
        v_add_u32 v{vRA}, v2, v3
        """)
        for u in range(1, 8): e(f"v_xor_b32 v{vRA+u}, {16*u}, v{vRA}")

    def hoist_kv():
        e(f"""
        v_lshrrev_b32 v2, 4, v0            ; G
        v_bfe_u32 v3, v0, 2, 2             ; rp
        v_and_b32 v4, 3, v0                ; c
        v_lshlrev_b32 v5, 3, v2
        v_add_u32 v5, v5, v3
        v_lshlrev_b32 v5, 7, v5
        s_lshr_b32 s{sT}, s{sW4}, 1
        s_lshl_b32 s{sT}, s{sT}, 14
        s_add_u32 s{sT}, s{sT}, {L_PK}
        v_add_u32 v5, s{sT}, v5
        v_and_b32 v6, 1, v2
        v_lshlrev_b32 v6, 2, v6
        v_xor_b32 v6, v6, v3
        v_lshrrev_b32 v7, 1, v4
        v_and_b32 v8, 1, v4
        v_lshlrev_b32 v8, 3, v8
        v_add_u32 v5, v5, v8
        s_and_b32 s{sT+1}, s{sW4}, 1
        v_add_u32 v9, 5, v7
        v_mov_b32 v40, 7
        s_cmp_eq_u32 s{sT+1}, 1
        s_cselect_b64 vcc, -1, 0
        v_cndmask_b32 v9, v9, v40, vcc
        v_xor_b32 v9, v9, v6
        v_lshlrev_b32 v9, 4, v9
        v_add_u32 v{vKA}, v5, v9
        v_xor_b32 v{vKA+1}, 64, v{vKA}
        v_add_u32 v{vKA+1}, 512, v{vKA+1}
        """)
        for ct in range(3):
            if ct < 2: e(f"v_add_u32 v9, {2*ct}, v7")
            else: e(f"v_mov_b32 v9, 4")
            e(f"""
            v_xor_b32 v9, v9, v6
            v_lshlrev_b32 v9, 4, v9
            v_add_u32 v{vKB+2*ct}, v5, v9
            v_xor_b32 v{vKB+2*ct+1}, 64, v{vKB+2*ct}
            v_add_u32 v{vKB+2*ct+1}, 512, v{vKB+2*ct+1}
            """)
        e(f"""
        v_lshrrev_b32 v2, 4, v0            ; g
        v_and_b32 v3, 15, v0
        s_lshr_b32 s{sT}, s{sW4}, 1
        s_mul_i32 s{sT}, s{sT}, 6
        s_and_b32 s{sT+1}, s{sW4}, 1
        s_lshl_b32 s{sT+2}, s{sT+1}, 2
        s_add_u32 s{sT}, s{sT}, s{sT+2}
        v_add_u32 v4, s{sT}, v2
        v_mul_u32_u24 v4, 40, v4
        v_add_u32 v4, v4, v3
        v_lshlrev_b32 v4, 3, v4
        v_mov_b32 v5, 0x40000000
        s_lshl_b32 s{sT+2}, s{sT+1}, 1
        s_sub_u32 s{sT+2}, 4, s{sT+2}
        v_cmp_gt_u32 vcc, s{sT+2}, v2
        s_nop 1
        v_cndmask_b32 v{vPA}, v5, v4, vcc
        v_cmp_gt_u32 vcc, 8, v3
        s_nop 1
        v_cndmask_b32 v{vPB}, v5, v{vPA}, vcc
        """)

    base = Base([vAA, vAA+1, vAA+2, vBA, vBA+1, vBA+2, vBA+3])
    sb = base.set(0)
    kv_reads(0, 0, sb)
    for s in range(NST):
        for kk in range(3):
            if s == NST - 1 and kk == 1: e("s_barrier")
            kv_reads(kk+1, (kk+1) & 1, sb)
            e("s_waitcnt lgkmcnt(7)")
            kv_mfmas(kk & 1, first=(s == 0 and kk == 0))
        run_sched(s)
        if s == 0:
            e(f"v_mov_b32 v{vNC}, 0")
            e(f"buffer_load_dword v{vNC+1}, v{vNC}, s[{S_A}:{S_A+3}], 0 offen sc1")
        if s == 1: wphi_frags(WF, 18, 22)
        if s == 4: hoist_pk()
        if s == 5: hoist_kv()
        if s == 2 and 'p1only' not in exp:
            lab = a.newlabel("NF"); lab2 = a.newlabel("NC")
            e(f"""
            s_waitcnt vmcnt(0)
            v_readfirstlane_b32 s{sNONCE}, v{vNC+1}
            s_mov_b32 s{sSPIN}, {SPIN_G}
            s_cmp_lg_u32 s{sNONCE}, 0
            s_cbranch_scc1 {lab}
{lab2}:
            s_sub_u32 s{sSPIN}, s{sSPIN}, 1
            s_cbranch_scc1 L_end
            buffer_load_dword v{vNC+1}, v{vNC}, s[{S_A}:{S_A+3}], 0 offen sc1
            s_waitcnt vmcnt(0)
            v_readfirstlane_b32 s{sNONCE}, v{vNC+1}
            s_nop 0
            s_cmp_eq_u32 s{sNONCE}, 0
            s_cbranch_scc1 {lab2}
{lab}:
            """)
        if s == SPF + 3:
            lab = a.newlabel("RD")
            e(f"""
            s_cmp_lg_u32 s{sW4}, 0
            s_cbranch_scc1 {lab}
            s_add_u32 s{sT}, s{sPART}, 3840
            v_mov_b32 v2, 0
            v_mov_b32 v3, s{sNONCE}
            s_mov_b64 exec, 1
            buffer_store_dword v3, v2, s[{S_WS}:{S_WS+3}], s{sT} offen sc1
            s_mov_b64 exec, -1
{lab}:
            """)
        if s == 8:
            e(f"""
            v_and_b32 v2, 15, v0
            s_lshl_b32 s{sT}, s{sHP}, 4
            v_add_u32 v3, s{sT}, v2            ; hp*16 + r
            v_lshlrev_b32 v4, 4, v2
            v_add_u32 v4, s{sRC}, v4           ; h'*16 + rc
            v_bfe_u32 v5, v0, 4, 1
            v_cmp_eq_u32 vcc, 0, v5
            s_mov_b32 s{sT+1}, {WS_PART + 3840}
            s_nop 0
            v_cndmask_b32 v3, v4, v3, vcc
            v_lshlrev_b32 v{vRF}, 12, v3
            buffer_load_dword v{vRF+1}, v{vRF}, s[{S_WS}:{S_WS+3}], s{sT+1} offen sc1
            """)
        e("s_waitcnt lgkmcnt(0)")
        if s + 1 < NST: e("s_barrier")
        sstamp(s+1)
        if s + 1 < NST:
            sb = base.set(s+1)
            kv_reads(0, 0, sb)
        kv_mfmas(1)
    stamp(3)
    if 'p1only' in exp: e("s_branch L_fin")
    loc = {}
    for T, qs in enumerate(TKV):
        for Q, q in enumerate(qs):
            if q is not None: loc[q] = ACC + 16*T + 4*Q
    e("s_nop 9")
    if dump == "kvacc":
        e("s_nop 7"); dump_regs([loc[(sg, j)] + x for sg in range(2) for j in range(5) for x in range(4)], 0)
    for j in range(5):
        e(f"v_cvt_pk_bf16_f32 v{KB+2*j}, v{loc[(0,j)]}, v{loc[(0,j)]+1}")
        e(f"v_cvt_pk_bf16_f32 v{KB+2*j+1}, v{loc[(0,j)]+2}, v{loc[(0,j)]+3}")
    e(f"v_mov_b32 v{KB+10}, 0"); e(f"v_mov_b32 v{KB+11}, 0")
    e("s_nop 0")
    feature_map(KB, WF, PK0, PK1)
    for j in range(5):
        e(f"v_cvt_pk_bf16_f32 v{VB+2*j}, v{loc[(1,j)]}, v{loc[(1,j)]+1}")
        e(f"v_cvt_pk_bf16_f32 v{VB+2*j+1}, v{loc[(1,j)]+2}, v{loc[(1,j)]+3}")
    e(f"v_mov_b32 v{VB+10}, 0x3f80"); e(f"v_mov_b32 v{VB+11}, 0")
    for u in range(3):
        e(f"ds_write_b128 v{vRA+5+u}, v[{VB+4*u}:{VB+4*u+3}]")
    e("s_nop 7")
    e("s_nop 3")
    if dump == "pk":
        dump_regs([PK0+i for i in range(16)] + [PK1+i for i in range(4)], 0)
    softmax_pair(PK0, PK1, EP, EN, PH, TM)
    if dump == "phik": dump_regs([PH+i for i in range(20)], 0)
    for u in range(5):
        e(f"ds_write_b128 v{vRA+u}, v[{PH+4*u}:{PH+4*u+3}]")
    subbar(0)
    stamp(4)
    KD = 192; KF = 64
    for kap in range(4):
        f = KF + 16*kap
        for rd in range(2):
            e(f"ds_read_b64_tr_b16 v[{f+2*rd}:{f+2*rd+1}], v{vKA+rd} offset:{4096*kap}")
        for ct in range(3):
            for rd in range(2):
                e(f"ds_read_b64_tr_b16 v[{f+4+4*ct+2*rd}:{f+4+4*ct+2*rd+1}], v{vKB+2*ct+rd} offset:{4096*kap}")
    for kap in range(4):
        f = KF + 16*kap
        e(f"s_waitcnt lgkmcnt({min(15, 8*(3-kap))})")
        for ct in range(3):
            c = "0" if kap == 0 else f"v[{KD+4*ct}:{KD+4*ct+3}]"
            e(f"v_mfma_f32_16x16x32_bf16 v[{KD+4*ct}:{KD+4*ct+3}], v[{f}:{f+3}], v[{f+4+4*ct}:{f+4+4*ct+3}], {c}")
    subsignal(1)
    vWO = 40
    e("s_nop 3")
    for ct in range(3):
        e(f"v_cvt_pk_bf16_f32 v{KD+16+2*ct}, v{KD+4*ct}, v{KD+4*ct+1}")
        e(f"v_cvt_pk_bf16_f32 v{KD+16+2*ct+1}, v{KD+4*ct+2}, v{KD+4*ct+3}")
    for ct in range(3):
        e(f"v_min_u32 v{KD+16+2*ct}, -2, v{KD+16+2*ct}")
    for ct in range(3):
        e(f"buffer_store_dwordx2 v[{KD+16+2*ct}:{KD+16+2*ct+1}], v{vPA if ct < 2 else vPB}, s[{S_WS}:{S_WS+3}], s{sPART} offen offset:{128*ct} sc1")
    stamp(5)
    srd(S_B, 10, 640*1280)
    wo_setup(vWO, 2)
    lab = a.newlabel("RC"); lab2 = a.newlabel("RP")
    e(f"""
    s_waitcnt vmcnt(3)
    s_mov_b32 s{sSPIN}, {SPIN_G}
    s_mov_b32 s{sT+1}, {WS_PART + 3840}
    v_cmp_ne_u32 vcc, s{sNONCE}, v{vRF+1}
    s_cbranch_vccz {lab}
{lab2}:
    s_sub_u32 s{sSPIN}, s{sSPIN}, 1
    s_cbranch_scc1 L_end
    buffer_load_dword v{vRF+1}, v{vRF}, s[{S_WS}:{S_WS+3}], s{sT+1} offen sc1
    s_waitcnt vmcnt(0)
    v_cmp_ne_u32 vcc, s{sNONCE}, v{vRF+1}
    s_cbranch_vccnz {lab2}
{lab}:
    """)
    subwait(1, target=8)
    e(f"s_mov_b64 exec, s[{sEX}:{sEX+1}]")
    for sg in WO_P2:
        for rd in range(2): wo_dma(sg, rd, vWO)
    e("s_mov_b64 exec, -1")
    PL = 64; SUM = 128; IDA = 144; sMASK = 69; sMK = 70
    WO_PC = WO_ALL1[:NCS]; WO_PD = WO_ALL1[NCS:]
    e(f"""
    s_mov_b64 s[{sMK}:{sMK+1}], s[{sEX}:{sEX+1}]
    s_lshl_b32 s{sT+4}, s{sHP}, 16
    s_add_u32 s{sT+4}, s{sT+4}, {WS_PART}
    s_lshl_b32 s{sT}, s{sW4}, 6
    v_add_u32 v6, s{sT}, v0            ; tau
    v_lshlrev_b32 v7, 4, v6
    v_mov_b32 v4, 0x40000000
    v_cmp_gt_u32 vcc, 240, v6
    s_mov_b32 s{sT}, s{sT+4}
    s_mov_b32 s{sMASK}, 0xffff
    v_cndmask_b32 v7, v4, v7, vcc
    """)
    stamp(6)
    for r in range(16):
        e(f"buffer_load_dwordx4 v[{PL+4*r}:{PL+4*r+3}], v7, s[{S_WS}:{S_WS+3}], s{sT} offen sc1")
        e(f"s_add_u32 s{sT}, s{sT}, 4096")
    if VRED:
        for i in range(8): e(f"v_mov_b32 v{SUM+i}, 0")
        e(f"""
        v_mul_u32_u24 v4, 205, v6
        v_lshrrev_b32 v4, 12, v4           ; tau/20
        v_mul_u32_u24 v5, 20, v4
        v_sub_u32 v5, v6, v5               ; fp
        v_mul_u32_u24 v5, 96, v5
        v_mul_u32_u24 v8, 43, v4
        v_lshrrev_b32 v8, 8, v8            ; hd
        v_mul_u32_u24 v9, 6, v8
        v_sub_u32 v9, v4, v9               ; dq
        v_mul_u32_u24 v8, 1920, v8
        v_lshlrev_b32 v9, 3, v9
        v_add3_u32 v5, v5, v8, v9
        v_add_u32 v4, {L_KVF}, v5
        v_mov_b32 v9, {L_CNT + 512}
        v_cmp_gt_u32 vcc, 240, v6
        s_nop 1
        v_cndmask_b32 v4, v9, v4, vcc
        v_add_u32 v5, 48, v4
        """)
    else:
        e(f"""
        v_and_b32 v2, 15, v0
        v_lshrrev_b32 v3, 4, v0            ; G
        v_lshrrev_b32 v4, 3, v2            ; i>>3
        v_and_b32 v5, 7, v2                ; j*
        v_lshrrev_b32 v8, 1, v5            ; reg
        v_and_b32 v5, 1, v5
        v_lshlrev_b32 v5, 4, v5
        v_mov_b32 v9, 0x3f80
        v_lshlrev_b32 v9, v5, v9           ; 1.0 in the right half
        v_mov_b32 v13, 0
        """)
        for u in range(2):
            e(f"v_add_u32 v5, {2*u}, v4")
            e(f"v_cmp_eq_u32 s[{sT}:{sT+1}], v5, v3")
            for rr in range(4):
                e(f"v_cmp_eq_u32 vcc, {rr}, v8")
                e(f"s_nop 0")
                e(f"s_and_b64 vcc, vcc, s[{sT}:{sT+1}]")
                e(f"v_cndmask_b32 v{IDA+4*u+rr}, v13, v9, vcc")
        for i in range(8): e(f"v_mov_b32 v{SUM+i}, 0")
        e(f"""
        v_and_b32 v2, 15, v0
        v_lshrrev_b32 v3, 5, v0            ; g>>1
        v_lshlrev_b32 v3, 4, v3
        s_lshl_b32 s{sT}, s{sW4}, 6
        v_add3_u32 v2, v2, v3, s{sT}
        v_bfe_u32 v3, v0, 4, 1             ; p
        v_mul_u32_u24 v3, 48, v3
        """)
        for u in range(2):
            t = 4 + u
            e(f"""
            v_add_u32 v8, {32*u}, v2           ; tau
            v_mul_u32_u24 v9, 205, v8
            v_lshrrev_b32 v9, 12, v9           ; tau/20
            v_mul_u32_u24 v{t}, 20, v9
            v_sub_u32 v{t}, v8, v{t}           ; fp
            v_mul_u32_u24 v{t}, 96, v{t}
            v_mul_u32_u24 v13, 43, v9
            v_lshrrev_b32 v13, 8, v13          ; hd
            v_mul_u32_u24 v41, 6, v13
            v_sub_u32 v41, v9, v41             ; dq
            v_mul_u32_u24 v13, 1920, v13
            v_lshlrev_b32 v41, 3, v41
            v_add3_u32 v{t}, v{t}, v13, v41
            v_add3_u32 v{t}, v{t}, v3, 0
            v_add_u32 v{t}, {L_KVF}, v{t}
            v_mov_b32 v41, {L_CNT + 512}
            v_cmp_gt_u32 vcc, 240, v8
            s_nop 1
            v_cndmask_b32 v{t}, v41, v{t}, vcc
            """)

    def acc(r, lab):
        e(f"""
        v_max_u32 v13, v{PL+4*r}, v{PL+4*r+2}
        v_cmp_eq_u32 vcc, -1, v13
        s_cbranch_vccnz {lab}
        s_bitset0_b32 s{sMASK}, {r}
        """)
        if VRED:
            for i in range(4):
                src = PL + 4*r + i
                e(f"v_lshlrev_b32 v{SUM+8}, 16, v{src}")
                e(f"v_and_b32 v{SUM+9}, 0xffff0000, v{src}")
                e(f"v_add_f32 v{SUM+2*i}, v{SUM+2*i}, v{SUM+8}")
                e(f"v_add_f32 v{SUM+2*i+1}, v{SUM+2*i+1}, v{SUM+9}")
        else:
            for u in range(2):
                e(f"v_mfma_f32_16x16x32_bf16 v[{SUM+4*u}:{SUM+4*u+3}], v[{IDA+4*u}:{IDA+4*u+3}], v[{PL+4*r}:{PL+4*r+3}], v[{SUM+4*u}:{SUM+4*u+3}]")
        a.label(lab)
    nC = 2*len(WO_PC)
    if nC:
        e(f"s_mov_b64 exec, s[{sMK}:{sMK+1}]")
        for sg in WO_PC:
            for rd in range(2): wo_dma(sg, rd, vWO)
        e("s_mov_b64 exec, -1")
    for r in range(16):
        e(f"s_waitcnt vmcnt({15-r+nC})")
        if r == 0: e(f"v_max_u32 v{SUM+10}, v{PL}, v{PL+2}")
        else: e(f"v_max3_u32 v{SUM+10}, v{SUM+10}, v{PL+4*r}, v{PL+4*r+2}")
        for i in range(4):
            src = PL + 4*r + i
            e(f"v_lshlrev_b32 v{SUM+8}, 16, v{src}")
            e(f"v_and_b32 v{SUM+9}, 0xffff0000, v{src}")
            if PKRED: e(f"v_pk_add_f32 v[{SUM+2*i}:{SUM+2*i+1}], v[{SUM+2*i}:{SUM+2*i+1}], v[{SUM+8}:{SUM+9}]")
            else:
                e(f"v_add_f32 v{SUM+2*i}, v{SUM+2*i}, v{SUM+8}")
                e(f"v_add_f32 v{SUM+2*i+1}, v{SUM+2*i+1}, v{SUM+9}")
    e(f"""
    v_cmp_eq_u32 vcc, -1, v{SUM+10}
    s_cbranch_vccz L_s1_done
    """)
    for i in range(8): e(f"v_mov_b32 v{SUM+i}, 0")
    for r in range(16):
        acc(r, f"L_s1a_{r}")
    e(f"""
    s_mov_b32 s{sSPIN}, {SPIN_G}
L_s1_loop:
    s_cmp_eq_u32 s{sMASK}, 0
    s_cbranch_scc1 L_s1_done
    s_sub_u32 s{sSPIN}, s{sSPIN}, 1
    s_cbranch_scc1 L_end
    """)
    for r in range(16):
        e(f"""
        s_bitcmp0_b32 s{sMASK}, {r}
        s_cbranch_scc1 L_s1l_{r}
        s_add_u32 s{sT}, s{sT+4}, {4096*r}
        buffer_load_dwordx4 v[{PL+4*r}:{PL+4*r+3}], v7, s[{S_WS}:{S_WS+3}], s{sT} offen sc1
L_s1l_{r}:
        """)
    e("s_waitcnt vmcnt(0)")
    for r in range(16):
        e(f"s_bitcmp0_b32 s{sMASK}, {r}")
        e(f"s_cbranch_scc1 L_s1b_{r}")
        acc(r, f"L_s1b_{r}")
    e("s_branch L_s1_loop")
    a.label("L_s1_done")
    e("s_nop 7")
    for u in range(2):
        e(f"v_cvt_pk_bf16_f32 v{SUM+12+2*u}, v{SUM+4*u}, v{SUM+4*u+1}")
        e(f"v_cvt_pk_bf16_f32 v{SUM+13+2*u}, v{SUM+4*u+2}, v{SUM+4*u+3}")
    e(f"ds_write_b64 v4, v[{SUM+12}:{SUM+13}]")
    e(f"ds_write_b64 v5, v[{SUM+14}:{SUM+15}]")
    subsignal(2)
    stamp(7)
    if DWAIT: subwait(5, tmp=8)
    e(f"s_mov_b64 exec, s[{sMK}:{sMK+1}]")
    for sg in WO_PD:
        for rd in range(2): wo_dma(sg, rd, vWO)
    e("s_mov_b64 exec, -1")
    vWA = 10
    e(f"""
    v_lshrrev_b32 v2, 4, v0            ; G
    v_bfe_u32 v3, v0, 2, 2             ; rp
    v_and_b32 v4, 3, v0                ; c
    v_lshrrev_b32 v5, 1, v2
    v_lshlrev_b32 v5, 4, v5            ; 16*(G>>1)
    v_and_b32 v6, 1, v2
    v_lshlrev_b32 v6, 2, v6            ; 4*(G&1)
    v_add3_u32 v5, v5, v6, v3
    v_mul_u32_u24 v5, 160, v5
    v_lshlrev_b32 v4, 3, v4
    v_add_u32 v{vWA}, v5, v4
    v_add_u32 v{vWA+1}, 0x10000, v{vWA}
    v_add_u32 v{vWA+2}, 0x20000, v{vWA}
    s_and_b32 s{sT}, s{sHP}, 1
    s_lshl_b32 s{sT}, s{sT}, 2
    s_add_u32 s{sT}, s{sT}, s{sW4}     ; tt
    s_lshl_b32 s{sT+1}, s{sRC}, 3
    s_add_u32 s{sT+6}, s{sT}, s{sT+1}
    s_mul_i32 s{sT+4}, s{sT+6}, 20480
    s_add_u32 s{sT+4}, s{sT+4}, {WS_O}
    v_and_b32 v2, 15, v0
    v_lshrrev_b32 v3, 2, v2
    v_mul_u32_u24 v3, 5120, v3
    v_and_b32 v4, 3, v2
    v_lshlrev_b32 v4, 8, v4
    v_add3_u32 v2, v3, v4, 0
    v_add_u32 v2, 4096, v2
    v_lshlrev_b32 v7, 4, v0            ; lane*16
    """)
    OF = 96; OD = 40; AB = [176, 196, 216, 236, 60, 16]
    NB = len(AB)
    def wo_reads(sg):
        L = L_WO(sg); reg = vWA + L // 65536; b = AB[sg % NB]
        assert (L // 65536) == ((L + 1408) // 65536)
        off = L % 65536
        for nt in range(5):
            for rd in range(2):
                e(f"ds_read_b64_tr_b16 v[{b+4*nt+2*rd}:{b+4*nt+2*rd+1}], v{reg} offset:{off + rd*1280 + nt*32}")
    e("s_waitcnt vmcnt(0)")
    def wo_reads_nt(sg, nt):
        L = L_WO(sg); reg = vWA + L // 65536; b = AB[sg % NB]
        off = L % 65536
        for rd in range(2):
            e(f"ds_read_b64_tr_b16 v[{b+4*nt+2*rd}:{b+4*nt+2*rd+1}], v{reg} offset:{off + rd*1280 + nt*32}")
    subbar(6, tmp=8)
    def oload(sg):
        d = OF + 4*sg
        e(f"buffer_load_dwordx4 v[{d}:{d+3}], v7, s[{S_WS}:{S_WS+3}], s{sT} offen offset:{(sg%4)*1024} sc1")
        if sg % 4 == 3: e(f"s_add_u32 s{sT}, s{sT}, 4096")
    def poll(): e(f"buffer_load_dword v3, v2, s[{S_WS}:{S_WS+3}], s{sT+4} offen sc1")
    def sloads():
        e(f"s_add_u32 s{sT}, s{sT+4}, {8*1024}")
        for sg in range(10, 20): oload(sg)
    poll()
    for sg in range(NB): wo_reads(sg)
    e(f"""
    s_mov_b32 s{sSPIN}, {SPIN_G}
    s_mov_b32 s{sFC}, 0
    s_mov_b32 s{sT+2}, 0x00ff00ff
    s_mov_b32 s{sT+3}, 0x00ff00ff
L_s2f_chk:
    s_waitcnt vmcnt(0)
    v_cmp_eq_u32 vcc, -1, v3
    s_and_b64 vcc, vcc, s[{sT+2}:{sT+3}]
    s_cbranch_vccz L_s2f_go
    s_sub_u32 s{sSPIN}, s{sSPIN}, 1
    s_cbranch_scc1 L_end
    """)
    poll()
    e(f"""
    s_branch L_s2f_chk
L_s2f_go:
    s_mov_b32 s{sT}, s{sT+4}
    """)
    for sg in range(10): oload(sg)
    e(f"""
    s_mov_b32 s{sT+2}, 0xff00ff00
    s_mov_b32 s{sT+3}, 0xff00ff00
    v_cmp_eq_u32 vcc, -1, v3
    s_and_b64 vcc, vcc, s[{sT+2}:{sT+3}]
    s_cbranch_vccz L_s2_sl
    """)
    poll()
    e(f"""
    s_waitcnt vmcnt(0)
    v_cmp_eq_u32 vcc, -1, v3
    s_and_b64 vcc, vcc, s[{sT+2}:{sT+3}]
    s_cbranch_vccz L_s2_sl
    """)
    poll()
    e(f"""
    s_branch L_s2_p
L_s2_sl:
    s_mov_b32 s{sFC}, 2
    """)
    sloads()
    a.label("L_s2_p")
    stamp(8)
    retries = []
    e(f"s_mov_b32 s{sSPIN}, {SPIN_G}")
    for sg in range(20):
        if sg == 10:
            e(f"""
            s_cmp_eq_u32 s{sFC}, 2
            s_cbranch_scc1 L_s2_have
L_s2_chk:
            s_waitcnt vmcnt(0)
            v_cmp_eq_u32 vcc, -1, v3
            s_and_b64 vcc, vcc, s[{sT+2}:{sT+3}]
            s_cbranch_vccz L_s2_go
            s_sub_u32 s{sSPIN}, s{sSPIN}, 1
            s_cbranch_scc1 L_end
            """)
            poll()
            e("s_branch L_s2_chk")
            a.label("L_s2_go")
            sloads()
            a.label("L_s2_have")
        e(f"s_waitcnt vmcnt({19-sg}) lgkmcnt({10 if (sg >= 1 and sg + NB - 1 < 20) else 0})")
        o = OF + 4*sg
        a.label(f"L_chk_{sg}")
        e(f"v_max_u32 v13, v{o}, v{o+2}")
        e(f"v_cmp_eq_u32 vcc, -1, v13")
        e(f"s_cbranch_vccnz L_rt_{sg}")
        retries.append(sg)
        for nt in range(5):
            D = OD + 4*nt
            c = "0" if sg == 0 else f"v[{D}:{D+3}]"
            b = AB[sg % NB] + 4*nt
            e(f"v_mfma_f32_16x16x32_bf16 v[{D}:{D+3}], v[{b}:{b+3}], v[{o}:{o+3}], {c}")
            if sg + NB < 20: wo_reads_nt(sg + NB, nt)
    srd(S_B, 12, 2048*1280)
    e(f"""
    v_and_b32 v2, 15, v0
    v_lshrrev_b32 v3, 4, v0
    s_lshl_b32 s{sT}, s{sT+6}, 4
    v_add_u32 v2, s{sT}, v2
    v_mul_u32_u24 v2, 1280, v2
    v_lshlrev_b32 v4, 3, v3
    v_add_u32 v2, v2, v4
    s_lshr_b32 s{sT}, s{sHP}, 1
    s_mul_i32 s{sT}, s{sT}, 160
    """)
    for nt in range(5):
        D = OD + 4*nt; P = 64 + 2*nt
        e(f"v_cvt_pk_bf16_f32 v{P}, v{D}, v{D+1}")
        e(f"v_cvt_pk_bf16_f32 v{P+1}, v{D+2}, v{D+3}")
    for nt in range(5):
        P = 64 + 2*nt
        e(f"buffer_store_dwordx2 v[{P}:{P+1}], v2, s[{S_B}:{S_B+3}], s{sT} offen offset:{32*nt} {OUTFL}")
    e("s_branch L_fin")
    for sg in retries:
        o = OF + 4*sg
        a.label(f"L_rt_{sg}")
        e(f"""
        s_sub_u32 s{sSPIN}, s{sSPIN}, 1
        s_cbranch_scc1 L_end
        s_add_u32 s{sT}, s{sT+4}, {sg*1024}
        buffer_load_dwordx4 v[{o}:{o+3}], v7, s[{S_WS}:{S_WS+3}], s{sT} offen sc1
        s_waitcnt vmcnt(0)
        s_branch L_chk_{sg}
        """)

    a.label("L_lq")
    vVX, vVW, vWQ = 10, 11, 12
    vBA = 14
    XF = 64
    e(f"""
    v_lshrrev_b32 v2, 3, v0
    s_lshl_b32 s{sT}, s{sW4}, 3
    v_add_u32 v2, s{sT}, v2
    v_mul_u32_u24 v2, 1280, v2
    v_lshrrev_b32 v3, 4, v0                 ; r = l>>4
    s_and_b32 s{sT}, s{sW4}, 1
    s_lshl_b32 s{sT}, s{sT}, 2
    v_add_u32 v4, s{sT}, v3
    v_and_b32 v5, 7, v0
    v_xor_b32 v5, v5, v4
    v_lshlrev_b32 v5, 4, v5
    v_add_u32 v{vVX}, v2, v5
    v_and_b32 v4, 15, v0
    v_lshlrev_b32 v5, 2, v3
    v_sub_u32 v4, v4, v5
    v_and_b32 v4, 15, v4                    ; pos
    v_lshrrev_b32 v5, 3, v4                 ; seg
    v_bfe_u32 v6, v4, 2, 1                  ; part
    v_and_b32 v7, 3, v4                     ; i4
    v_mul_lo_u32 v8, v6, s{sBB}
    v_add_u32 v8, v8, v7                    ; j
    v_mov_b32 v9, 5
    v_mov_b32 v13, s{sBB}
    v_cmp_eq_u32 vcc, 0, v6
    s_lshl_b32 s{sT}, s{sW4}, 2
    v_add_u32 v2, s{sT}, v3
    v_cndmask_b32 v9, v9, v13, vcc
    v_cmp_lt_u32 vcc, v8, v9
    v_mul_u32_u24 v2, 3840, v2
    v_add_u32 v5, 1, v5
    v_mul_u32_u24 v5, 1280, v5
    v_lshlrev_b32 v8, 4, v8
    v_add3_u32 v{vVW}, v2, v5, v8
    v_mov_b32 v7, 0x40000000
    v_cndmask_b32 v{vVW}, v7, v{vVW}, vcc
    s_mul_i32 s{sSOFX}, s{sRC}, {128*1280}
    s_mul_i32 s{sSOFW}, s{sHP}, 80
    s_lshl_b32 s{sM0}, s{sW4}, 10
    """)
    stamp(4)
    e("s_waitcnt lgkmcnt(0)")
    stamp(8)
    srd(S_X, 4, 2048*1280)
    srd(S_W, 6, 640*3840)
    rotmode = [x for x in exp.split(',') if x.startswith('rot')]
    if rotmode:
        rm = rotmode[0]
        if rm == 'rot1': e(f"s_and_b32 s65, s{sHP}, 1")
        elif rm == 'rot5': e(f"s_and_b32 s65, s{sHP}, 1"); e("s_mul_i32 s65, s65, 5")
        elif rm == 'rotrc': e(f"s_and_b32 s65, s{sRC}, 1")
        elif rm == 'rothp': e(f"s_and_b32 s65, s{sHP}, 7")
        elif rm == 'rotmix': e(f"s_xor_b32 s65, s{sHP}, s{sRC}"); e("s_and_b32 s65, s65, 1")
    def issue_stage_last(s):
        m0b = (s % R) * SLOT
        for m in range(4):
            e(f"s_add_u32 m0, s{sM0}, {m0b + m*4096}")
            e(f"s_add_u32 s{sT}, s{sSOFX}, {m*32*1280 + s*128}")
            e(f"buffer_load_dwordx4 v{vVX}, s[{S_X}:{S_X+3}], s{sT} offen lds")
        for m in range(4):
            e(f"s_add_u32 m0, s{sM0}, {m0b + 16384 + m*4096}")
            e(f"s_add_u32 s{sT}, s{sSOFW}, {m*16*3840 + s*64*3840}")
            e(f"buffer_load_dwordx4 v{vVW}, s[{S_W}:{S_W+3}], s{sT} offen lds")
    def issue_stage(s):
        if s == NST - 1: return issue_stage_last(s)
        m0b = (s % R) * SLOT
        if rotmode:
            e(f"s_add_u32 s66, s65, {s}")
            e(f"s_sub_u32 s67, s66, 10")
            e(f"s_cmp_ge_u32 s66, 10")
            e(f"s_cselect_b32 s66, s67, s66")
            e(f"s_mul_i32 s67, s66, {64*3840}")
            e(f"s_lshl_b32 s66, s66, 7")
            e(f"s_add_u32 s66, s66, s{sSOFX}")
            e(f"s_add_u32 s67, s67, s{sSOFW}")
            for m in range(4):
                e(f"s_add_u32 m0, s{sM0}, {m0b + m*4096}")
                e(f"s_add_u32 s{sT}, s66, {m*32*1280}")
                e(f"buffer_load_dwordx4 v{vVX}, s[{S_X}:{S_X+3}], s{sT} offen lds")
                e(f"s_add_u32 m0, s{sM0}, {m0b + 16384 + m*4096}")
                e(f"s_add_u32 s{sT}, s67, {m*16*3840}")
                e(f"buffer_load_dwordx4 v{vVW}, s[{S_W}:{S_W+3}], s{sT} offen lds")
            return
        for m in range(4):
            e(f"s_add_u32 m0, s{sM0}, {m0b + m*4096}")
            e(f"s_add_u32 s{sT}, s{sSOFX}, {m*32*1280 + s*128}")
            e(f"buffer_load_dwordx4 v{vVX}, s[{S_X}:{S_X+3}], s{sT} offen lds")
            e(f"s_add_u32 m0, s{sM0}, {m0b + 16384 + m*4096}")
            e(f"s_add_u32 s{sT}, s{sSOFW}, {m*16*3840 + s*64*3840}")
            e(f"buffer_load_dwordx4 v{vVW}, s[{S_W}:{S_W+3}], s{sT} offen lds")
    issue_stage(0)
    srd(S_A, 8, 32*800)
    e(f"""
    v_lshlrev_b32 v2, 4, v0
    s_and_b32 s{sT}, s{sW4}, 1
    s_lshl_b32 s{sT}, s{sT}, 10
    s_add_u32 m0, s{sT}, {L_PHI}
    s_mul_i32 s{sT+1}, s{sHP}, 1600
    s_add_u32 s{sT}, s{sT}, s{sT+1}
    buffer_load_dwordx4 v2, s[{S_A}:{S_A+3}], s{sT} offen lds
    """)
    issue_stage(1)
    srd(S_WS, 16, 0x10000000)
    sPART = 64
    e(f"""
    s_lshl_b32 s{sPART}, s{sHP}, 4
    s_add_u32 s{sPART}, s{sPART}, s{sRC}
    s_lshl_b32 s{sPART}, s{sPART}, 12
    s_add_u32 s{sPART}, s{sPART}, {WS_PART}
    v_mov_b32 v40, -1
    v_mov_b32 v41, -1
    v_mov_b32 v42, -1
    v_mov_b32 v43, -1
    s_lshl_b32 s{sT}, s{sW4}, 6
    v_add_u32 v2, s{sT}, v0            ; tau
    v_lshlrev_b32 v8, 4, v2
    v_mov_b32 v3, 0x40000000
    v_cmp_gt_u32 vcc, 240, v2
    v_lshrrev_b32 v9, 4, v0            ; g = l>>4
    v_and_b32 v44, 15, v0
    v_cndmask_b32 v8, v3, v8, vcc
    v_lshlrev_b32 v44, 4, v44          ; t'*16
    s_lshl_b32 s{sT}, s{sRC}, 3
    s_lshl_b32 s{sT+1}, s{sW4}, 1
    s_add_u32 s{sT}, s{sT}, s{sT+1}
    s_mul_i32 s{sT}, s{sT}, 20480
    s_mul_i32 s{sT+1}, s{sBLK}, 5120
    s_add_u32 s{sT}, s{sT}, s{sT+1}
    s_lshl_b32 s{sT+1}, s{sG}, 8
    s_add_u32 s{sT}, s{sT}, s{sT+1}
    s_add_u32 s{sT+3}, s{sT}, {WS_O}
    v_lshlrev_b32 v45, 10, v9
    v_add_u32 v45, v45, v44            ; i=0
    v_mov_b32 v46, 4096
    v_add_u32 v47, -1, v9
    v_lshlrev_b32 v47, 10, v47
    v_add_u32 v47, 20480, v47
    v_cmp_eq_u32 vcc, 0, v9
    s_nop 1
    v_cndmask_b32 v46, v47, v46, vcc
    v_add_u32 v46, v46, v44            ; i=1
    v_add_u32 v47, 3, v9
    v_lshlrev_b32 v47, 10, v47
    v_add_u32 v47, 20480, v47
    v_add_u32 v47, v47, v44
    v_cmp_gt_u32 vcc, 2, v9
    s_nop 1
    v_cndmask_b32 v47, v3, v47, vcc    ; i=2
    v_mov_b32 v48, v8
    s_mov_b32 s69, s{sT+3}
    """)
    def prefill():
        e(f"""
        buffer_store_dwordx4 v[40:43], v48, s[{S_WS}:{S_WS+3}], s{sPART} offen sc1
        buffer_store_dwordx4 v[40:43], v45, s[{S_WS}:{S_WS+3}], s69 offen sc1
        buffer_store_dwordx4 v[40:43], v46, s[{S_WS}:{S_WS+3}], s69 offen sc1
        buffer_store_dwordx4 v[40:43], v47, s[{S_WS}:{S_WS+3}], s69 offen sc1
        """)
    xfrag_addr(vBA, 2)
    VQ = [12, 13, 22, 23, 62]
    for j in range(5):
        e(f"""
        v_add_u32 v2, {64*j}, v0               ; n = 64j + l  (0..319)
        v_mul_u32_u24 v3, 205, v2
        v_lshrrev_b32 v3, 10, v3               ; n/5
        v_mul_u32_u24 v4, 5, v3
        v_sub_u32 v4, v2, v4                   ; n%5
        v_lshlrev_b32 v4, 4, v4
        v_mul_u32_u24 v3, 3840, v3
        v_add_u32 v{VQ[j]}, v3, v4
        """)
    def issue_wq_all():
        for gi in range(3):
            lab = a.newlabel("WQ")
            if gi == 2:
                e(f"s_cmp_ge_u32 s{sW4}, 2")
                e(f"s_cbranch_scc1 {lab}")
            e(f"s_mul_i32 s{sT+1}, s{sW4}, 5120")
            e(f"s_mul_i32 s{sT+2}, s{sW4}, {64*3840}")
            e(f"s_add_u32 s{sT+2}, s{sT+2}, s{sSOFW}")
            e(f"s_add_u32 s{sT+2}, s{sT+2}, {gi*4*64*3840}")
            for j in range(5):
                e(f"s_add_u32 m0, s{sT+1}, {L_WQ + gi*4*5120 + j*1024}")
                e("s_nop 0")
                e(f"buffer_load_dwordx4 v{VQ[j]}, s[{S_W}:{S_W+3}], s{sT+2} offen lds")
            a.label(lab)
    base = Base([vBA, vBA+1, vBA+2, vBA+3])
    stamp(1)
    for s in range(NST):
        if s in (SPF+1, SPF+2): e("s_waitcnt vmcnt(12) lgkmcnt(0)")
        elif s <= 8: e("s_waitcnt vmcnt(8) lgkmcnt(0)")
        else: e("s_waitcnt vmcnt(2) lgkmcnt(0)")
        e("s_barrier")
        sstamp(s+1)
        if s == 0: stamp(2)
        sb = base.set(s)
        for kk in range(4):
            d = XF + 16*s + 4*kk
            e(f"ds_read_b128 v[{d}:{d+3}], v{vBA+kk} offset:{sb}")
        if s + 2 < NST: issue_stage(s+2)
        if s == SPF: prefill()
        if s == NST - 1:
            e("s_waitcnt vmcnt(0)")
            e("s_barrier")
            issue_wq_all()
    vOA = 56
    def HOIST_LQ():
        lane_decomp32(2, 3, 4, 5, 6)
        e(f"""
        v_mul_u32_u24 v7, 800, v6
        v_mul_u32_u24 v8, 40, v3
        v_add_u32 v7, v7, v8
        v_lshlrev_b32 v8, 3, v5
        v_add_u32 v7, v7, v8
        v_add_u32 v7, {L_PHI}, v7
        v_lshrrev_b32 v8, 1, v2
        v_mov_b32 v21, {L_ZERO}
        v_cmp_eq_u32 vcc, v8, v6
        s_nop 1
        v_cndmask_b32 v20, v21, v7, vcc
        v_cmp_eq_u32 s[46:47], 0, v5
        s_nop 1
        s_and_b64 vcc, vcc, s[46:47]
        v_add_u32 v7, 32, v7
        s_nop 0
        v_cndmask_b32 v21, v21, v7, vcc
        """)

        lane_decomp32(2, 3, 4, 5, 6)
        e(f"""
        v_mul_u32_u24 v7, 1920, v6
        v_mul_u32_u24 v8, 48, v3
        v_lshlrev_b32 v9, 3, v5
        v_add3_u32 v7, v7, v8, v9
        v_add_u32 v7, {L_KVF}, v7
        v_lshrrev_b32 v8, 1, v2
        v_mov_b32 v9, {L_ZERO}
        v_cmp_eq_u32 vcc, v8, v6
        s_nop 1
        v_cndmask_b32 v{vOA}, v9, v7, vcc
        v_cmp_gt_u32 s[46:47], 2, v5
        s_nop 1
        s_and_b64 vcc, vcc, s[46:47]
        v_add_u32 v7, 32, v7
        s_nop 0
        v_cndmask_b32 v{vOA+1}, v9, v7, vcc
        v_and_b32 v2, 15, v0
        v_lshlrev_b32 v2, 4, v2
        v_bfe_u32 v3, v0, 4, 1
        v_mul_u32_u24 v3, 20480, v3
        v_add_u32 v2, v2, v3
        v_lshrrev_b32 v4, 5, v0            ; h
        v_lshlrev_b32 v5, 11, v4           ; c5 = 2h -> 2h*1024
        v_add_u32 v58, v5, v2
        v_lshlrev_b32 v6, 3, v4
        v_add_u32 v59, v6, v2
        s_lshl_b32 s44, s{sRC}, 3
        s_lshl_b32 s{sT+1}, s{sW4}, 1
        s_add_u32 s44, s44, s{sT+1}
        s_mul_i32 s44, s44, 20480
        s_mul_i32 s{sT+1}, s{sBLK}, 5120
        s_add_u32 s44, s44, s{sT+1}
        s_lshl_b32 s{sT+1}, s{sG}, 8
        s_add_u32 s44, s44, s{sT+1}
        s_add_u32 s44, s44, {WS_O}
        s_add_u32 s45, s44, 4096
        """)

    QA = 224; vQA = 18; vWO = 56
    lane_decomp32(2, 3, 4, 5, 6)
    e(f"""
    v_lshrrev_b32 v7, 1, v2
    v_lshlrev_b32 v7, 3, v7
    v_add_u32 v7, v7, v3
    v_mul_u32_u24 v7, 80, v7
    v_mul_u32_u24 v6, 40, v6
    v_add_u32 v7, v7, v6
    v_add_u32 v7, {L_WQ}, v7
    v_lshlrev_b32 v5, 3, v5
    v_add_u32 v{vQA}, v7, v5
    v_add_u32 v{vQA+1}, 32, v7
    """)
    e("s_waitcnt lgkmcnt(0)")
    subsignal(1, tmp=60)
    HOIST_LQ()
    e("s_waitcnt vmcnt(0)")
    subbar(7, tmp=60)
    subwait(0, tmp=60)
    if 'prio' in exp: e("s_setprio 1")
    stamp(3)
    if 'p1only' in exp:
        e("s_waitcnt vmcnt(0)")
        e("s_branch L_fin")
    QF3 = [24, 32, 40, 48]
    def q_reads3(k):
        b = QF3[k % 4]
        for T in range(2):
            for rd in range(2):
                e(f"ds_read_b64_tr_b16 v[{b+4*T+2*rd}:{b+4*T+2*rd+1}], v{vQA+T} offset:{(16*k+4*rd)*80}")
    wolist = [(sg, rd) for sg in WO_P1 for rd in range(2)]
    nwo = 0
    q_reads3(0); q_reads3(1); q_reads3(2)
    for k in range(40):
        if k + 3 < 40:
            q_reads3(k+3)
            e("s_waitcnt lgkmcnt(12)")
        else: e(f"s_waitcnt lgkmcnt({4*(39-k)})")
        for T in range(2):
            c = "0" if k == 0 else f"v[{QA+16*T}:{QA+16*T+15}]"
            b = QF3[k % 4]
            e(f"v_mfma_f32_32x32x16_bf16 v[{QA+16*T}:{QA+16*T+15}], v[{b+4*T}:{b+4*T+3}], v[{XF+4*k}:{XF+4*k+3}], {c}")
    if 'prio' in exp: e("s_setprio 0")
    stamp(5)
    WF = 64; QB = 88; PQ0 = 100; PQ1 = 116; EP = 132; EN = 152; PH = 172; TM = 192
    for u in range(2):
        for step in range(3):
            for rd in range(2):
                d = WF + u*12 + step*4 + 2*rd
                if step == 2 and rd == 1:
                    e(f"v_mov_b32 v{d}, 0"); e(f"v_mov_b32 v{d+1}, 0")
                else:
                    e(f"ds_read_b64_tr_b16 v[{d}:{d+1}], v{20+u} offset:{(8*step+4*rd)*40}")
    e("s_nop 7")
    if dump == "qacc":
        e("s_nop 7"); dump_regs([QA+i for i in range(20)], 0)
    for j in range(5):
        src = QA + 4*j if j < 4 else QA + 16
        e(f"v_cvt_pk_bf16_f32 v{QB+2*j}, v{src}, v{src+1}")
        e(f"v_cvt_pk_bf16_f32 v{QB+2*j+1}, v{src+2}, v{src+3}")
    e(f"v_mov_b32 v{QB+10}, 0"); e(f"v_mov_b32 v{QB+11}, 0")
    e("s_waitcnt lgkmcnt(0)")
    feature_map(QB, WF, PQ0, PQ1)
    e("s_nop 7")
    e("s_nop 3")
    softmax_pair(PQ0, PQ1, EP, EN, PH, TM)
    if dump == "phiq": dump_regs([PH+i for i in range(20)], 0)
    stamp(6)
    subwait(2)
    stamp(7)
    KA = 64; N0 = 104; N1 = 120
    for st in range(5):
        for U in range(2):
            for rd in range(2):
                d = KA + (U*5+st)*4 + 2*rd
                e(f"ds_read_b64_tr_b16 v[{d}:{d+1}], v{vOA+U} offset:{(8*st+4*rd)*48}")
    for st in range(5):
        e(f"s_waitcnt lgkmcnt({min(15, 4*(4-st))})")
        for U, N in ((0, N0), (1, N1)):
            c = "0" if st == 0 else f"v[{N}:{N+15}]"
            d = KA + (U*5+st)*4
            e(f"v_mfma_f32_32x32x16_bf16 v[{N}:{N+15}], v[{d}:{d+3}], v[{PH+4*st}:{PH+4*st+3}], {c}")
    e("s_nop 7")
    e("s_nop 3")
    e(f"v_add_f32 v8, 0x358637bd, v{N1+4}")
    e("v_rcp_f32 v8, v8")
    e("s_nop 0")
    OB = 136
    for i in range(8):
        e(f"v_pk_mul_f32 v[{N0+2*i}:{N0+2*i+1}], v[{N0+2*i}:{N0+2*i+1}], v[8:9] op_sel_hi:[1,0]")
    for i in range(2):
        e(f"v_pk_mul_f32 v[{N1+2*i}:{N1+2*i+1}], v[{N1+2*i}:{N1+2*i+1}], v[8:9] op_sel_hi:[1,0]")
    for i in range(8):
        e(f"v_cvt_pk_bf16_f32 v{OB+i}, v{N0+2*i}, v{N0+2*i+1}")
    for i in range(2):
        e(f"v_cvt_pk_bf16_f32 v{OB+8+i}, v{N1+2*i}, v{N1+2*i+1}")
    for i in (0, 2, 4, 6, 8):
        e(f"v_min_u32 v{OB+i}, -2, v{OB+i}")
    e(f"""
    buffer_store_dwordx4 v[{OB}:{OB+3}], v58, s[{S_WS}:{S_WS+3}], s44 offen sc1
    buffer_store_dwordx4 v[{OB+4}:{OB+7}], v58, s[{S_WS}:{S_WS+3}], s44 offen offset:1024 sc1
    buffer_store_dwordx2 v[{OB+8}:{OB+9}], v59, s[{S_WS}:{S_WS+3}], s45 offen sc1
    """)
    subsignal(5)
    a.label("L_fin")
    if until:
        e(f"""
        s_waitcnt vmcnt(0) lgkmcnt(0)
L_until:
        s_memrealtime s[94:95]
        s_waitcnt lgkmcnt(0)
        s_sub_u32 s96, s94, s98
        s_cmp_lt_u32 s96, {until}
        s_cbranch_scc1 L_until
        """)
    if stamps:
        stamp(10)
        e("s_waitcnt vmcnt(0)")
        e(f"""
        s_waitcnt lgkmcnt(0)
        s_lshl_b32 s{sT}, s2, 3
        s_add_u32 s{sT}, s{sT}, s{sWAVE}
        s_lshl_b32 s{sT}, s{sT}, 6
        s_add_u32 s{sT}, s{sT}, {WS_STAMP}
        v_mov_b32 v2, 0
        """)
        for i in range(NS): e(f"v_mov_b32 v{20+i}, s{sST+2*i}")
        e(f"""
        s_mov_b64 exec, 1
        buffer_store_dwordx4 v[20:23], v2, s[{S_WS}:{S_WS+3}], s{sT} offen
        buffer_store_dwordx4 v[24:27], v2, s[{S_WS}:{S_WS+3}], s{sT} offen offset:16
        buffer_store_dwordx4 v[28:31], v2, s[{S_WS}:{S_WS+3}], s{sT} offen offset:32
        """)
    if dbgwg >= 0:
        e(f"""
        s_cmp_lg_u32 s2, {dbgwg}
        s_cbranch_scc1 L_end
        s_cmp_lg_u32 s{sWAVE}, {dbgwave}
        s_cbranch_scc1 L_end
        s_mov_b64 exec, -1
        s_mov_b32 s72, s14
        s_and_b32 s73, s15, 0xffff
        s_mov_b32 s74, 256
        s_mov_b32 s75, 0x20000
        """)
        for i in range(1, NS):
            e(f"s_sub_u32 s{sT}, s{sST+2*i}, s{sST}")
            e(f"v_mov_b32 v{20+i}, s{sT}")
        e("v_mov_b32 v2, 0")
        e("s_mov_b64 exec, 1")
        for i in range(1, NS):
            e(f"buffer_store_dword v{20+i}, v2, s[72:75], 0 offen offset:{4*i}")
    if dbgwg == -2:
        e(f"""
        s_cmp_lg_u32 s{sWAVE}, {dbgwave}
        s_cbranch_scc1 L_end
        s_mov_b64 exec, -1
        s_mov_b32 s72, s14
        s_and_b32 s73, s15, 0xffff
        s_mov_b32 s74, 256
        s_mov_b32 s75, 0x20000
        """)
        for i in range(1, NS):
            e(f"s_sub_u32 s{sT}, s{sST+2*i}, s{sST}")
            e(f"v_mov_b32 v{20+i}, s{sT}")
        e("v_mov_b32 v2, 0")
        e("s_mov_b64 exec, 1")
        for i in range(1, NS):
            if i == 9: continue
            e(f"buffer_atomic_umax v{20+i}, v2, s[72:75], 0 offen offset:{4*i}")
    a.label("L_end")
    e("s_endpgm")
    a.label("L_code_end")
    hdr = HEADER + f"; @launch grid=(256,1,1) block=(512,1,1) lds={LDS_BYTES}\n"
    return hdr + f""".amdgcn_target "amdgcn-amd-amdhsa--gfx950"
.text
.globl {KN}
.p2align 8
.type {KN},@function
{KN}:
""" + a.text() + """.section .rodata,"a"
""" + kernel_desc(KN, 256, 102, 256)

if __name__ == "__main__":
    import argparse
    ap = argparse.ArgumentParser()
    ap.add_argument("--stamps", action="store_true")
    ap.add_argument("--dump", default=None)
    ap.add_argument("--stagest", action="store_true")
    ap.add_argument("--exp", default="")
    ap.add_argument("--until", type=int, default=0)
    ap.add_argument("--dbgwg", type=int, default=-1)
    ap.add_argument("--dbgwave", type=int, default=0)
    ap.add_argument("--pf", default="none")
    ap.add_argument("--nogpf", action="store_true")
    ap.add_argument("--nocode", action="store_true")
    ap.add_argument("--outfl", default="")
    ap.add_argument("--vred", action="store_true")
    ap.add_argument("--dwait", action="store_true")
    ap.add_argument("--ncs", type=int, default=4)
    ap.add_argument("--spf", type=int, default=1)
    args = ap.parse_args()
    SPF = args.spf
    DWAIT = args.dwait; NCS = args.ncs
    OUTFL = args.outfl.replace("+", " ")
    if args.pf == "none": PF = False
    else: PF = True; PFS = PFS_TAB[args.pf]
    if args.nogpf: GPF = False
    if args.nocode: GPF_CODE = False
    print(gen(stamps=args.stamps, dump=args.dump, stagest=args.stagest, exp=args.exp, until=args.until, dbgwg=args.dbgwg, dbgwave=args.dbgwave))
```

```python
import sys
from asmlib import *
from lay2 import TKV, TQ

KN = "standalone__linear_kernel_hedgehog__prompt_kernel"
NST = 10
SLOT = 32768
R = 3
L_WQ = 98304
L_PHI = 149504
L_ZERO = 151552
L_CNT = 153600
L_KVF = 154624
L_PK = 32768
L_WO19 = 158464
LDS_BYTES = 163840
def L_WO(sg): return sg*5120 if sg <= 18 else L_WO19
WO_P1 = [0,1,2,3,4,5,13,14,15,16,17,18,19]
WO_P2 = [6,7,8,9,10,11,12]
WO_ALL1 = [0,1,2,3,4,5,13,14,15,16,17,18,19]
NCS = 4
WS_PART = 0x000000
WS_O = 0x100000
WS_RDY = 0x400000
WS_STAMP = 0x700000
WS_DBG = 0x800000
PF = False
PKRED = False
DWAIT = False
VRED = True
OUTFL = ''
GPF = True
GPF_CODE = True
PFS_TAB = {
 'b':  {'pre': [('x',2),('kv',2)], 0: [('kv',5),('x',6)], 1: [('kv',8),('q',0),('q',1)], 3: [('wo',0),('wo',1)]},
 'e1': {'e': [('x',0),('kv',2),('code',0)], 'pre': [('x',4)], 0: [('kv',5),('x',8)], 1: [('kv',8)], 3: [('q',0)], 4: [('q',1)], 6: [('wo',0)], 7: [('wo',1)]},
 'e2': {'e': [('x',2),('kv',2),('code',0)], 0: [('kv',5),('x',6)], 1: [('kv',8)], 3: [('q',0)], 4: [('q',1)], 6: [('wo',0)], 7: [('wo',1)]},
 'e3': {'e': [('x',0),('kv',0),('code',0)], 'pre': [('x',4),('kv',3)], 0: [('kv',6),('x',8)], 1: [('kv',9)], 3: [('q',0)], 4: [('q',1)], 6: [('wo',0)], 7: [('wo',1)]},
 'e4': {'e': [('x',2),('kv',2),('code',0)], 'pre': [('x',6),('kv',5)], 0: [('kv',8)], 2: [('q',0)], 3: [('q',1)], 5: [('wo',0)], 6: [('wo',1)]},
 'e5': {'e': [('code',0)], 'pre': [('x',2),('kv',2)], 0: [('kv',5),('x',6)], 2: [('kv',8)], 4: [('q',0)], 5: [('q',1)], 7: [('wo',0)], 8: [('wo',1)]},
 'wo': {'e': [('code',0)], 4: [('q',0)], 5: [('q',1)], 7: [('wo',0)], 8: [('wo',1)]},
}
PFS = PFS_TAB['b']
LOG2E = 0x3fb8aa3b
NLOG2E = 0xbfb8aa3b
SPIN_G = 0x8000
SPIN_L = 0x80000

def gen(stamps=False, dump=None, stagest=False, exp='', until=0, dbgwg=-1, dbgwave=0):
    a = Asm(); e = a.e
    S_X, S_W, S_WS = 20, 24, 28
    S_A, S_B = 72, 76
    sWAVE, sW4, sRC, sHP, sBB = 32, 33, 34, 35, 36
    sT = 40
    sSOFX, sSOFW, sM0 = 52, 53, 54
    sNONCE = 55
    sL = 56
    sEX = 58
    sSPIN = 60
    sU, sV = 62, 63
    sUS = 65
    sBLK, sG = 66, 67
    sFC = 68
    sST = 80
    NS = 11
    def sstamp(i):
        if stagest: e(f"s_memtime s[{sST+2*i}:{sST+2*i+1}]")
    def stamp(i):
        if stamps and not (stagest and i > 0): e(f"s_memtime s[{sST+2*i}:{sST+2*i+1}]")
    def rstamp(i):
        if stamps and not stagest: e(f"s_memrealtime s[{sST+2*i}:{sST+2*i+1}]")
    def srd(dst, ptr, nbytes):
        e(f"""
        s_mov_b32 s{dst}, s{ptr}
        s_and_b32 s{dst+1}, s{ptr+1}, 0xffff
        s_mov_b32 s{dst+2}, {nbytes}
        s_mov_b32 s{dst+3}, 0x20000
        """)
    def subsignal(idx, tmp=2):
        e(f"""
        v_mov_b32 v{tmp}, {L_CNT + 4*idx}
        v_mov_b32 v{tmp+1}, 1
        s_mov_b64 exec, 1
        ds_add_u32 v{tmp}, v{tmp+1}
        s_mov_b64 exec, -1
        """)
    def subwait(idx, target=4, tmp=2):
        lab = a.newlabel("SW")
        e(f"v_mov_b32 v{tmp}, {L_CNT + 4*idx}")
        e(f"s_mov_b32 s{sSPIN}, {SPIN_L}")
        a.label(lab)
        e(f"""
        s_sub_u32 s{sSPIN}, s{sSPIN}, 1
        s_cbranch_scc1 L_end
        ds_read_b32 v{tmp+1}, v{tmp}
        s_waitcnt lgkmcnt(0)
        v_readfirstlane_b32 s{sT}, v{tmp+1}
        s_nop 0
        s_cmp_lt_u32 s{sT}, {target}
        s_cbranch_scc1 {lab}
        """)
    def subbar(idx, target=4, tmp=2):
        subsignal(idx, tmp); subwait(idx, target, tmp)
    def dump_regs(regs, off):
        n = len(regs)
        e(f"""
        s_lshl_b32 s{sT}, s2, 3
        s_add_u32 s{sT}, s{sT}, s{sWAVE}
        s_mul_i32 s{sT}, s{sT}, {n*256}
        s_add_u32 s{sT}, s{sT}, {WS_DBG + off}
        v_lshlrev_b32 v2, 2, v0
        """)
        for i, r in enumerate(regs):
            e(f"buffer_store_dword v{r}, v2, s[{S_WS}:{S_WS+3}], s{sT} offen offset:{(i%16)*256}")
            if i % 16 == 15: e(f"s_add_u32 s{sT}, s{sT}, 4096")
        e("s_waitcnt vmcnt(0)")
    def softmax_pair(P0, P1, EP, EN, PH, tm):
        p = [P0 + i for i in range(16)] + [P1 + i for i in range(4)]
        tM, tN, tA, tB = tm, tm+1, tm+2, tm+4
        e(f"v_max3_f32 v{tM}, v{p[0]}, v{p[1]}, v{p[2]}")
        e(f"v_min3_f32 v{tN}, v{p[0]}, v{p[1]}, v{p[2]}")
        for i in range(3, 19, 2):
            e(f"v_max3_f32 v{tM}, v{tM}, v{p[i]}, v{p[i+1]}")
            e(f"v_min3_f32 v{tN}, v{tN}, v{p[i]}, v{p[i+1]}")
        e(f"v_max_f32 v{tM}, v{tM}, v{p[19]}")
        e(f"v_min_f32 v{tN}, v{tN}, v{p[19]}")
        e(f"v_mul_f32 v{tA}, {NLOG2E:#x}, v{tM}")
        e(f"v_mul_f32 v{tB}, {LOG2E:#x}, v{tN}")
        for i in range(10):
            e(f"v_pk_fma_f32 v[{EP+2*i}:{EP+2*i+1}], v[{p[2*i]}:{p[2*i]+1}], s[{sL}:{sL+1}], v[{tA}:{tA+1}] op_sel_hi:[1,1,0]")
            e(f"v_pk_fma_f32 v[{EN+2*i}:{EN+2*i+1}], v[{p[2*i]}:{p[2*i]+1}], s[{sL}:{sL+1}], v[{tB}:{tB+1}] op_sel_hi:[1,1,0] neg_lo:[1,0,0] neg_hi:[1,0,0]")
        for i in range(20):
            e(f"v_exp_f32 v{EP+i}, v{EP+i}")
            e(f"v_exp_f32 v{EN+i}, v{EN+i}")
        e(f"v_pk_add_f32 v[{tA}:{tA+1}], v[{EP}:{EP+1}], v[{EP+2}:{EP+3}]")
        e(f"v_pk_add_f32 v[{tB}:{tB+1}], v[{EN}:{EN+1}], v[{EN+2}:{EN+3}]")
        for i in range(2, 10):
            e(f"v_pk_add_f32 v[{tA}:{tA+1}], v[{tA}:{tA+1}], v[{EP+2*i}:{EP+2*i+1}]")
            e(f"v_pk_add_f32 v[{tB}:{tB+1}], v[{tB}:{tB+1}], v[{EN+2*i}:{EN+2*i+1}]")
        e(f"v_add_f32 v{tA}, v{tA}, v{tA+1}")
        e(f"v_add_f32 v{tB}, v{tB}, v{tB+1}")
        e(f"v_rcp_f32 v{tA}, v{tA}")
        e(f"v_rcp_f32 v{tB}, v{tB}")
        e("s_nop 0")
        for i in range(10):
            e(f"v_pk_mul_f32 v[{EP+2*i}:{EP+2*i+1}], v[{EP+2*i}:{EP+2*i+1}], v[{tA}:{tA+1}] op_sel_hi:[1,0]")
            e(f"v_pk_mul_f32 v[{EN+2*i}:{EN+2*i+1}], v[{EN+2*i}:{EN+2*i+1}], v[{tB}:{tB+1}] op_sel_hi:[1,0]")
        for i in range(10):
            e(f"v_cvt_pk_bf16_f32 v{PH+i}, v{EP+2*i}, v{EP+2*i+1}")
            e(f"v_cvt_pk_bf16_f32 v{PH+10+i}, v{EN+2*i}, v{EN+2*i+1}")
    def lane_decomp32(vG, vrp, vc, vQ, vhh):
        e(f"""
        v_lshrrev_b32 v{vG}, 4, v0
        v_bfe_u32 v{vrp}, v0, 2, 2
        v_and_b32 v{vc}, 3, v0
        v_and_b32 v{vQ}, 1, v{vG}
        v_lshlrev_b32 v{vQ}, 1, v{vQ}
        v_lshrrev_b32 v{vhh}, 1, v{vc}
        v_add_u32 v{vQ}, v{vQ}, v{vhh}
        v_and_b32 v{vhh}, 1, v{vc}
        """)
    def wphi_frags(WF, va, t):
        vG, vrp, vc, vQ, vhh = t, t+1, t+2, t+3, t+4
        lane_decomp32(vG, vrp, vc, vQ, vhh)
        e(f"""
        v_mul_u32_u24 v{t+5}, 800, v{vhh}
        v_mul_u32_u24 v{t+6}, 40, v{vrp}
        v_add_u32 v{t+5}, v{t+5}, v{t+6}
        v_lshlrev_b32 v{t+6}, 3, v{vQ}
        v_add_u32 v{t+5}, v{t+5}, v{t+6}
        v_add_u32 v{t+5}, {L_PHI}, v{t+5}
        v_lshrrev_b32 v{t+6}, 1, v{vG}
        v_mov_b32 v{va+1}, {L_ZERO}
        v_cmp_eq_u32 vcc, v{t+6}, v{vhh}
        s_nop 1
        v_cndmask_b32 v{va}, v{va+1}, v{t+5}, vcc
        v_cmp_eq_u32 s[{sEX}:{sEX+1}], 0, v{vQ}
        s_nop 1
        s_and_b64 vcc, vcc, s[{sEX}:{sEX+1}]
        v_add_u32 v{t+5}, 32, v{t+5}
        s_nop 0
        v_cndmask_b32 v{va+1}, v{va+1}, v{t+5}, vcc
        """)
        for u in range(2):
            for step in range(3):
                for rd in range(2):
                    d = WF + u*12 + step*4 + 2*rd
                    if step == 2 and rd == 1:
                        e(f"v_mov_b32 v{d}, 0"); e(f"v_mov_b32 v{d+1}, 0")
                    else:
                        e(f"ds_read_b64_tr_b16 v[{d}:{d+1}], v{va+u} offset:{(8*step+4*rd)*40}")
    def feature_map(SRC, WF, P0, P1):
        for step in range(3):
            for u, P in ((0, P0), (1, P1)):
                c = "0" if step == 0 else f"v[{P}:{P+15}]"
                e(f"v_mfma_f32_32x32x16_bf16 v[{P}:{P+15}], v[{WF+u*12+step*4}:{WF+u*12+step*4+3}], v[{SRC+4*step}:{SRC+4*step+3}], {c}")
    def xfrag_addr(vBA, t):
        e(f"""
        v_and_b32 v{t}, 31, v0
        v_lshrrev_b32 v{t+1}, 5, v0
        v_bfe_u32 v{t+2}, v{t}, 1, 3
        v_xor_b32 v{t+2}, v{t+2}, v{t+1}
        v_lshlrev_b32 v{t+2}, 4, v{t+2}
        s_lshl_b32 s{sT}, s{sW4}, 5
        v_add_u32 v{t}, s{sT}, v{t}
        v_lshlrev_b32 v{t}, 7, v{t}
        v_add_u32 v{vBA}, v{t}, v{t+2}
        v_xor_b32 v{vBA+1}, 32, v{vBA}
        v_xor_b32 v{vBA+2}, 64, v{vBA}
        v_xor_b32 v{vBA+3}, 96, v{vBA}
        """)
    class Base:
        def __init__(self, regs): self.regs = regs; self.cur = 0
        def set(self, s):
            so = (s % R) * SLOT
            want = (so // 65536) * 65536
            if want != self.cur:
                d = (want - self.cur) & 0xffffffff
                for r in self.regs: e(f"v_add_u32 v{r}, {d}, v{r}")
                self.cur = want
            return so - self.cur
    def wo_setup(vWO, t):
        e(f"""
        v_mul_u32_u24 v{t}, 26, v0
        v_lshrrev_b32 v{t}, 8, v{t}          ; l/10 for l<64
        v_mul_u32_u24 v{t+1}, 10, v{t}
        v_sub_u32 v{t+1}, v0, v{t+1}
        v_lshlrev_b32 v{t+1}, 4, v{t+1}
        v_mul_u32_u24 v{t}, 1280, v{t}
        v_add_u32 v{vWO}, v{t}, v{t+1}
        v_cmp_gt_u32 vcc, 40, v0
        s_lshr_b32 s{sU}, s{sHP}, 1
        s_mul_i32 s{sU}, s{sU}, 160
        s_lshl_b32 s{sT}, s{sW4}, 1          ; 2G
        s_lshr_b32 s{sV}, s{sW4}, 1          ; G>=2
        s_add_u32 s{sUS}, s{sT}, 1
        s_sub_u32 s{sUS}, s{sUS}, s{sV}      ; slow h8 = 2G + (G<2)
        s_add_u32 s{sT}, s{sT}, s{sV}        ; fast h8 = 2G + (G>=2)
        s_mul_i32 s{sUS}, s{sUS}, {40*1280}
        s_add_u32 s{sUS}, s{sUS}, s{sU}
        s_mul_i32 s{sT}, s{sT}, {40*1280}
        s_add_u32 s{sU}, s{sU}, s{sT}
        s_lshr_b32 s{sV}, s{sW4}, 1
        s_lshl_b32 s{sV}, s{sV}, 4
        s_and_b32 s{sT}, s{sW4}, 1
        s_lshl_b32 s{sT}, s{sT}, 2
        s_add_u32 s{sV}, s{sV}, s{sT}
        s_mul_i32 s{sV}, s{sV}, 160          ; pi0*160
        s_mov_b64 s[{sEX}:{sEX+1}], vcc
        """)
    def wo_dma(sg, rd, vWO):
        blk, c5 = divmod(sg, 5)
        if c5 < 4: row = 320*(blk & 1) + [0, 8, 20, 28][c5] + 4*rd
        else: row = 320*(blk & 1) + 16 + 20*rd
        e(f"s_add_u32 m0, s{sV}, {L_WO(sg) + rd*8*160}")
        e(f"s_add_u32 s{sT}, s{sUS if blk >= 2 else sU}, {row*1280}")
        e(f"buffer_load_dwordx4 v{vWO}, s[{S_B}:{S_B+3}], s{sT} offen lds")

    e(f"""
    s_load_dwordx8 s[4:11], s[0:1], 0
    s_load_dwordx4 s[12:15], s[0:1], 32
    s_load_dwordx2 s[16:17], s[0:1], 48
    s_cmp_ge_u32 s2, 256
    s_cbranch_scc1 L_end
    """)
    if 'half' in exp:
        e("s_bitcmp1_b32 s2, 6")
        e("s_cbranch_scc1 L_end")
    if 'quarter' in exp:
        e("s_and_b32 s40, s2, 0x60")
        e("s_cmp_lg_u32 s40, 0")
        e("s_cbranch_scc1 L_end")
    stamp(0); rstamp(9)
    if until: e("s_memrealtime s[98:99]")
    e(f"""
    v_lshrrev_b32 v1, 6, v0
    v_and_b32 v0, 63, v0
    s_and_b32 s{sT}, s2, 7
    s_lshr_b32 s{sT+1}, s2, 3
    v_readfirstlane_b32 s{sWAVE}, v1
    s_lshr_b32 s{sRC}, s{sT}, 1
    s_lshl_b32 s{sRC}, s{sRC}, 2
    s_lshr_b32 s{sT+2}, s{sT+1}, 3
    s_add_u32 s{sRC}, s{sRC}, s{sT+2}
    s_and_b32 s{sHP}, s{sT}, 1
    s_lshl_b32 s{sHP}, s{sHP}, 3
    s_and_b32 s{sT+2}, s{sT+1}, 7
    s_add_u32 s{sHP}, s{sHP}, s{sT+2}
    s_and_b32 s{sW4}, s{sWAVE}, 3
    s_mul_i32 s{sBB}, s{sHP}, 5
    s_and_b32 s{sBB}, s{sBB}, 7
    s_sub_u32 s{sBB}, 8, s{sBB}
    s_min_u32 s{sBB}, s{sBB}, 4
    s_mov_b32 s{sL}, {LOG2E:#x}
    s_mov_b32 s{sL+1}, {LOG2E:#x}
    s_and_b32 s{sT}, s{sHP}, 7
    s_lshr_b32 s{sG}, s{sT}, 1                 ; G = (hp&7)>>1
    s_lshr_b32 s{sBLK}, 0x5a, s{sT}
    s_and_b32 s{sBLK}, s{sBLK}, 1
    s_lshl_b32 s{sBLK}, s{sBLK}, 1
    s_lshr_b32 s{sT}, s{sHP}, 3
    s_add_u32 s{sBLK}, s{sBLK}, s{sT}
    s_cmp_ge_u32 s{sWAVE}, 4
    s_cbranch_scc1 L_lq
    """)
    if GPF:
        e(f"""
        s_lshl_b32 s{sT}, s{sW4}, 6
        v_add_u32 v2, s{sT}, v0                 ; n = 64*w + lane  (0..255)
        s_mul_i32 s{sT}, s2, 80
        s_mul_i32 s{sT+1}, s2, 75
        s_mul_i32 s{sT+2}, s2, 25
        s_sub_u32 s{sT+1}, s{sT+1}, 80
        s_sub_u32 s{sT+2}, s{sT+2}, 155
        s_waitcnt lgkmcnt(0)
        v_mov_b32 v3, s{sT+2}
        v_mov_b32 v4, s10
        v_mov_b32 v5, s11
        v_mov_b32 v6, s{sT+1}
        v_mov_b32 v7, s6
        v_mov_b32 v8, s7
        v_cmp_gt_u32 vcc, 155, v2
        s_nop 1
        v_cndmask_b32 v3, v3, v6, vcc
        v_cndmask_b32 v4, v4, v7, vcc
        v_cndmask_b32 v5, v5, v8, vcc
        v_mov_b32 v6, s{sT}
        v_mov_b32 v7, s4
        v_mov_b32 v8, s5
        v_cmp_gt_u32 vcc, 80, v2
        s_nop 1
        v_cndmask_b32 v3, v3, v6, vcc
        v_cndmask_b32 v4, v4, v7, vcc
        v_cndmask_b32 v5, v5, v8, vcc
        v_add_u32 v3, v3, v2
        v_lshlrev_b32 v3, 7, v3
        v_add_co_u32 v4, vcc, v4, v3
        s_nop 1
        v_addc_co_u32 v5, vcc, 0, v5, vcc
        """)
        if GPF_CODE:
            e(f"""
            s_getpc_b64 s[{sT+4}:{sT+5}]
L_pc_ref:
            s_min_u32 s{sT+3}, s2, (L_code_end-{KN})/128
            s_lshl_b32 s{sT+3}, s{sT+3}, 7
            s_sub_u32 s{sT+4}, s{sT+4}, L_pc_ref-{KN}
            s_subb_u32 s{sT+5}, s{sT+5}, 0
            s_add_u32 s{sT+4}, s{sT+4}, s{sT+3}
            s_addc_u32 s{sT+5}, s{sT+5}, 0
            s_min_u32 s{sT+3}, s2, 199
            s_lshl_b32 s{sT+3}, s{sT+3}, 7
            s_add_u32 s{sT+6}, s8, s{sT+3}
            s_addc_u32 s{sT+7}, s9, 0
            s_cmp_lg_u32 s{sW4}, 2
            s_cbranch_scc1 L_gpf_go
            v_writelane_b32 v4, s{sT+4}, 52
            v_writelane_b32 v5, s{sT+5}, 52
            v_writelane_b32 v4, s{sT+6}, 53
            v_writelane_b32 v5, s{sT+7}, 53
L_gpf_go:
            v_cmp_gt_u32 vcc, 182, v2
            """)
        else:
            e("v_cmp_gt_u32 vcc, 180, v2")
        e(f"""
        s_nop 1
        s_and_saveexec_b64 s[{sT}:{sT+1}], vcc
        s_cbranch_execz L_gpf_done
        global_load_dword v48, v[4:5], off
L_gpf_done:
        s_mov_b64 exec, -1
        """)

    ACC = 64; FB = [112, 128]; WF = 144; KB = 168; VB = 180; PK0 = 192; PK1 = 208; EP = 224; EN = 112; PH = 64; TM = 244
    vAA = 10; vBA = 14
    vPA, vPB = 34, 35
    sPART = 64
    e(f"""
    s_lshl_b32 s{sPART}, s{sHP}, 4
    s_add_u32 s{sPART}, s{sPART}, s{sRC}
    s_lshl_b32 s{sPART}, s{sPART}, 12
    s_add_u32 s{sPART}, s{sPART}, {WS_PART}
    s_waitcnt lgkmcnt(0)
    """)
    srd(S_WS, 16, 0x10000000)
    srd(S_A, 14, 256)
    if PF:
        srd(S_X, 6, 640*3840)
        e(f"""
        v_mov_b32 v37, 0x40000000
        s_lshr_b32 s{sT+1}, s2, 3               ; j
        s_and_b32 s{sT+2}, s2, 1
        s_mul_i32 s{sT+2}, s{sT+2}, 640         ; column half (bytes)
        v_mov_b32 v3, 0x40000000
        s_cmp_eq_u32 s{sW4}, 0
        s_cbranch_scc1 L_t_x
        s_cmp_eq_u32 s{sW4}, 1
        s_cbranch_scc1 L_t_kv
        v_mul_u32_u24 v2, 52, v0
        v_lshrrev_b32 v2, 8, v2                 ; l/5
        v_mul_u32_u24 v4, 5, v2
        v_sub_u32 v4, v0, v4
        v_lshlrev_b32 v4, 7, v4                 ; li*128
        s_mul_i32 s{sT+3}, s{sT+1}, 10
        v_add_u32 v2, s{sT+3}, v2               ; row
        s_mov_b32 s{sT+4}, 3840
        s_cmp_eq_u32 s{sW4}, 2
        s_cselect_b32 s{sT+4}, s{sT+4}, 1280
        v_mul_lo_u32 v2, v2, s{sT+4}
        v_add3_u32 v37, v2, v4, s{sT+2}
        v_cmp_gt_u32 vcc, 50, v0
        s_nop 1
        v_cndmask_b32 v37, v3, v37, vcc
        s_cmp_eq_u32 s{sW4}, 2
        s_cbranch_scc1 L_t_done
        """)
        srd(S_X, 10, 640*1280)
        e(f"""
        s_branch L_t_done
L_t_kv:
        v_mul_u32_u24 v2, 13, v0
        v_lshrrev_b32 v2, 8, v2                 ; q = l/20
        v_mul_u32_u24 v4, 20, v2
        v_sub_u32 v4, v0, v4                    ; l%20
        v_mul_u32_u24 v5, 26, v4
        v_lshrrev_b32 v5, 8, v5                 ; r = (l%20)/10
        v_mul_u32_u24 v6, 10, v5
        v_sub_u32 v4, v4, v6                    ; l%10
        v_mul_u32_u24 v6, 52, v4
        v_lshrrev_b32 v6, 8, v6                 ; ty
        v_mul_u32_u24 v7, 5, v6
        v_sub_u32 v4, v4, v7                    ; li
        v_lshlrev_b32 v4, 7, v4
        v_lshlrev_b32 v2, 6, v2                 ; 64q
        v_add_u32 v2, v2, v5
        s_lshl_b32 s{sT+3}, s{sT+1}, 1
        v_add_u32 v2, s{sT+3}, v2               ; row
        v_mul_u32_u24 v2, 3840, v2
        v_add_u32 v6, 1, v6
        v_mul_u32_u24 v6, 1280, v6
        v_add3_u32 v2, v2, v4, v6
        v_add_u32 v37, s{sT+2}, v2
        v_cmp_gt_u32 vcc, 60, v0
        s_nop 1
        v_cndmask_b32 v37, v3, v37, vcc
        s_branch L_t_done
L_t_x:
        v_and_b32 v2, 15, v0
        s_lshr_b32 s{sT+2}, s2, 1
        s_and_b32 s{sT+2}, s{sT+2}, 3
        s_lshl_b32 s{sT+2}, s{sT+2}, 9
        s_lshl_b32 s{sT+3}, s{sT+1}, 4
        s_add_u32 s{sT+2}, s{sT+2}, s{sT+3}
        v_add_u32 v2, s{sT+2}, v2
        v_mul_u32_u24 v2, 1280, v2
        v_lshrrev_b32 v4, 4, v0
        v_lshlrev_b32 v4, 7, v4
        v_add_u32 v37, v2, v4
        """)
        srd(S_X, 4, 2048*1280)
        a.label("L_t_done")
    def touch(wave, soff):
        if not PF: return
        lab = a.newlabel("TT")
        e(f"""
        s_cmp_lg_u32 s{sW4}, {wave}
        s_cbranch_scc1 {lab}
        s_mov_b32 s{sT}, {soff}
        buffer_load_dword v36, v37, s[{S_X}:{S_X+3}], s{sT} offen
{lab}:
        """)
    def code_touch():
        lab = a.newlabel("CT")
        e(f"""
        s_cmp_lg_u32 s{sW4}, 3
        s_cbranch_scc1 {lab}
        s_getpc_b64 s[{sT+4}:{sT+5}]
L_pc_ref:
        s_lshr_b32 s{sT+3}, s2, 3
        s_mul_i32 s{sT+3}, s{sT+3}, 7
        v_add_u32 v2, s{sT+3}, v0
        v_min_u32 v2, (L_code_end-{KN})/128, v2
        v_lshlrev_b32 v2, 7, v2
        s_sub_u32 s{sT+4}, s{sT+4}, L_pc_ref-{KN}
        s_subb_u32 s{sT+5}, s{sT+5}, 0
        v_mov_b32 v5, s{sT+5}
        v_add_co_u32 v4, vcc, s{sT+4}, v2
        s_nop 1
        v_addc_co_u32 v5, vcc, 0, v5, vcc
        v_cmp_gt_u32 vcc, 7, v0
        s_nop 1
        s_mov_b64 exec, vcc
        global_load_dword v47, v[4:5], off
        s_mov_b64 exec, -1
{lab}:
        """)
    def run_sched(when):
        if not PF: return
        for kind, arg in PFS.get(when, []):
            if kind == 'x': touch(0, arg*128)
            elif kind == 'kv': touch(1, arg*64*3840)
            elif kind == 'q': touch(2, arg*320*3840)
            elif kind == 'wo': touch(3, arg*320*1280)
            elif kind == 'code': code_touch()
    run_sched('e')
    e(f"""
    s_or_b32 s{sT}, s{sRC}, s{sHP}
    s_or_b32 s{sT}, s{sT}, s{sW4}
    s_cmp_lg_u32 s{sT}, 0
    s_cbranch_scc1 L_kv_nn
    s_memrealtime s[{sT+4}:{sT+5}]
    s_waitcnt lgkmcnt(0)
    s_or_b32 s{sT+4}, s{sT+4}, 1
    v_mov_b32 v2, 0
    v_mov_b32 v3, s{sT+4}
    s_mov_b64 exec, 1
    buffer_store_dword v3, v2, s[{S_A}:{S_A+3}], 0 offen sc1
    s_mov_b64 exec, -1
L_kv_nn:
    """)
    e(f"""
    v_lshlrev_b32 v2, 4, v0
    s_lshl_b32 s{sT}, s{sW4}, 10
    s_add_u32 s{sT}, s{sT}, {L_ZERO}
    v_add_u32 v2, s{sT}, v2
    v_mov_b32 v24, 0
    v_mov_b32 v25, 0
    v_mov_b32 v26, 0
    v_mov_b32 v27, 0
    s_cmp_eq_u32 s{sW4}, 3
    s_cbranch_scc1 L_kv_nz
    ds_write_b128 v2, v[24:27]
L_kv_nz:
    """)
    lane_decomp32(2, 3, 4, 5, 6)
    e(f"""
    v_lshlrev_b32 v5, 3, v5          ; 8Q
    v_mul_u32_u24 v6, 5, v6          ; 5hh
    v_lshrrev_b32 v7, 1, v2
    v_lshlrev_b32 v7, 3, v7
    v_add_u32 v7, v7, v3             ; krow
    v_lshlrev_b32 v7, 8, v7
    v_add_u32 v7, 16384, v7
    v_lshlrev_b32 v8, 2, v3          ; 4rp
    s_sub_u32 s{sT+1}, 4, s{sBB}
    """)
    for T in range(3):
        immc = 0; imms = 0
        for Q in range(4):
            q = TKV[T][Q] or TKV[T][0]
            immc |= q[1] << (8*Q); imms |= (8*q[0]) << (8*Q)
        e(f"""
        s_mov_b32 s{sT}, {immc}
        v_bfe_u32 v18, s{sT}, v5, 8
        v_add_u32 v18, v18, v6
        v_lshrrev_b32 v19, 1, v18
        v_mov_b32 v9, s{sT+1}
        v_cmp_le_u32 vcc, s{sBB}, v19
        v_mov_b32 v20, 0
        s_nop 0
        v_cndmask_b32 v9, v20, v9, vcc
        v_add_u32 v19, v19, v9
        s_mov_b32 s{sT}, {imms}
        v_bfe_u32 v9, s{sT}, v5, 8
        v_add3_u32 v19, v19, v9, v8
        v_and_b32 v19, 15, v19
        v_lshlrev_b32 v19, 4, v19
        v_and_b32 v18, 1, v18
        v_lshlrev_b32 v18, 3, v18
        v_add3_u32 v{vAA+T}, v7, v19, v18
        """)
    xfrag_addr(vBA, 2)
    def kv_reads(kk, buf, sb):
        b = FB[buf]
        e(f"ds_read_b128 v[{b+12}:{b+15}], v{vBA+kk} offset:{sb}")
        for T in range(3):
            for rd in range(2):
                e(f"ds_read_b64_tr_b16 v[{b+4*T+2*rd}:{b+4*T+2*rd+1}], v{vAA+T} offset:{sb+(16*kk+4*rd)*256}")
    def kv_mfmas(buf, first=False):
        b = FB[buf]
        for T in range(3):
            c = "0" if first else f"v[{ACC+16*T}:{ACC+16*T+15}]"
            e(f"v_mfma_f32_32x32x16_bf16 v[{ACC+16*T}:{ACC+16*T+15}], v[{b+4*T}:{b+4*T+3}], v[{b+12}:{b+15}], {c}")
    run_sched('pre')
    e("s_waitcnt lgkmcnt(0)")
    stamp(1)
    e("s_barrier")
    stamp(2)
    vNC, vRF = 38, 42
    vRA = 18; vKA = 26; vKB = 28
    def hoist_pk():
        e(f"""
        v_and_b32 v2, 31, v0
        v_lshrrev_b32 v3, 5, v0
        v_lshlrev_b32 v3, 14, v3
        s_lshl_b32 s{sT}, s{sW4}, 5
        v_add_u32 v2, s{sT}, v2
        v_lshlrev_b32 v2, 7, v2
        v_add_u32 v2, v2, v3
        v_add_u32 v2, {L_PK}, v2
        v_and_b32 v3, 7, v0
        v_bfe_u32 v4, v0, 3, 1
        v_lshlrev_b32 v4, 2, v4
        v_xor_b32 v3, v3, v4
        v_lshlrev_b32 v3, 4, v3
        v_add_u32 v{vRA}, v2, v3
        """)
        for u in range(1, 8): e(f"v_xor_b32 v{vRA+u}, {16*u}, v{vRA}")

    def hoist_kv():
        e(f"""
        v_lshrrev_b32 v2, 4, v0            ; G
        v_bfe_u32 v3, v0, 2, 2             ; rp
        v_and_b32 v4, 3, v0                ; c
        v_lshlrev_b32 v5, 3, v2
        v_add_u32 v5, v5, v3
        v_lshlrev_b32 v5, 7, v5
        s_lshr_b32 s{sT}, s{sW4}, 1
        s_lshl_b32 s{sT}, s{sT}, 14
        s_add_u32 s{sT}, s{sT}, {L_PK}
        v_add_u32 v5, s{sT}, v5
        v_and_b32 v6, 1, v2
        v_lshlrev_b32 v6, 2, v6
        v_xor_b32 v6, v6, v3
        v_lshrrev_b32 v7, 1, v4
        v_and_b32 v8, 1, v4
        v_lshlrev_b32 v8, 3, v8
        v_add_u32 v5, v5, v8
        s_and_b32 s{sT+1}, s{sW4}, 1
        v_add_u32 v9, 5, v7
        v_mov_b32 v40, 7
        s_cmp_eq_u32 s{sT+1}, 1
        s_cselect_b64 vcc, -1, 0
        v_cndmask_b32 v9, v9, v40, vcc
        v_xor_b32 v9, v9, v6
        v_lshlrev_b32 v9, 4, v9
        v_add_u32 v{vKA}, v5, v9
        v_xor_b32 v{vKA+1}, 64, v{vKA}
        v_add_u32 v{vKA+1}, 512, v{vKA+1}
        """)
        for ct in range(3):
            if ct < 2: e(f"v_add_u32 v9, {2*ct}, v7")
            else: e(f"v_mov_b32 v9, 4")
            e(f"""
            v_xor_b32 v9, v9, v6
            v_lshlrev_b32 v9, 4, v9
            v_add_u32 v{vKB+2*ct}, v5, v9
            v_xor_b32 v{vKB+2*ct+1}, 64, v{vKB+2*ct}
            v_add_u32 v{vKB+2*ct+1}, 512, v{vKB+2*ct+1}
            """)
        e(f"""
        v_lshrrev_b32 v2, 4, v0            ; g
        v_and_b32 v3, 15, v0
        s_lshr_b32 s{sT}, s{sW4}, 1
        s_mul_i32 s{sT}, s{sT}, 6
        s_and_b32 s{sT+1}, s{sW4}, 1
        s_lshl_b32 s{sT+2}, s{sT+1}, 2
        s_add_u32 s{sT}, s{sT}, s{sT+2}
        v_add_u32 v4, s{sT}, v2
        v_mul_u32_u24 v4, 40, v4
        v_add_u32 v4, v4, v3
        v_lshlrev_b32 v4, 3, v4
        v_mov_b32 v5, 0x40000000
        s_lshl_b32 s{sT+2}, s{sT+1}, 1
        s_sub_u32 s{sT+2}, 4, s{sT+2}
        v_cmp_gt_u32 vcc, s{sT+2}, v2
        s_nop 1
        v_cndmask_b32 v{vPA}, v5, v4, vcc
        v_cmp_gt_u32 vcc, 8, v3
        s_nop 1
        v_cndmask_b32 v{vPB}, v5, v{vPA}, vcc
        """)

    base = Base([vAA, vAA+1, vAA+2, vBA, vBA+1, vBA+2, vBA+3])
    sb = base.set(0)
    kv_reads(0, 0, sb)
    for s in range(NST):
        for kk in range(3):
            if s == NST - 1 and kk == 1: e("s_barrier")
            kv_reads(kk+1, (kk+1) & 1, sb)
            e("s_waitcnt lgkmcnt(7)")
            kv_mfmas(kk & 1, first=(s == 0 and kk == 0))
        run_sched(s)
        if s == 0:
            e(f"v_mov_b32 v{vNC}, 0")
            e(f"buffer_load_dword v{vNC+1}, v{vNC}, s[{S_A}:{S_A+3}], 0 offen sc1")
        if s == 1: wphi_frags(WF, 18, 22)
        if s == 4: hoist_pk()
        if s == 5: hoist_kv()
        if s == 2 and 'p1only' not in exp:
            lab = a.newlabel("NF"); lab2 = a.newlabel("NC")
            e(f"""
            s_waitcnt vmcnt(0)
            v_readfirstlane_b32 s{sNONCE}, v{vNC+1}
            s_mov_b32 s{sSPIN}, {SPIN_G}
            s_cmp_lg_u32 s{sNONCE}, 0
            s_cbranch_scc1 {lab}
{lab2}:
            s_sub_u32 s{sSPIN}, s{sSPIN}, 1
            s_cbranch_scc1 L_end
            buffer_load_dword v{vNC+1}, v{vNC}, s[{S_A}:{S_A+3}], 0 offen sc1
            s_waitcnt vmcnt(0)
            v_readfirstlane_b32 s{sNONCE}, v{vNC+1}
            s_nop 0
            s_cmp_eq_u32 s{sNONCE}, 0
            s_cbranch_scc1 {lab2}
{lab}:
            """)
        if s == 3:
            lab = a.newlabel("RD")
            e(f"""
            s_cmp_lg_u32 s{sW4}, 0
            s_cbranch_scc1 {lab}
            s_add_u32 s{sT}, s{sPART}, 3840
            v_mov_b32 v2, 0
            v_mov_b32 v3, s{sNONCE}
            s_mov_b64 exec, 1
            buffer_store_dword v3, v2, s[{S_WS}:{S_WS+3}], s{sT} offen sc1
            s_mov_b64 exec, -1
{lab}:
            """)
        if s == 7:
            e(f"""
            v_and_b32 v2, 15, v0
            s_lshl_b32 s{sT}, s{sHP}, 4
            v_add_u32 v3, s{sT}, v2            ; hp*16 + r
            v_lshlrev_b32 v4, 4, v2
            v_add_u32 v4, s{sRC}, v4           ; h'*16 + rc
            v_bfe_u32 v5, v0, 4, 1
            v_cmp_eq_u32 vcc, 0, v5
            s_mov_b32 s{sT+1}, {WS_PART + 3840}
            s_nop 0
            v_cndmask_b32 v3, v4, v3, vcc
            v_lshlrev_b32 v{vRF}, 12, v3
            buffer_load_dword v{vRF+1}, v{vRF}, s[{S_WS}:{S_WS+3}], s{sT+1} offen sc1
            """)
        e("s_waitcnt lgkmcnt(0)")
        if s + 1 < NST: e("s_barrier")
        sstamp(s+1)
        if s + 1 < NST:
            sb = base.set(s+1)
            kv_reads(0, 0, sb)
        kv_mfmas(1)
    stamp(3)
    if 'p1only' in exp: e("s_branch L_fin")
    loc = {}
    for T, qs in enumerate(TKV):
        for Q, q in enumerate(qs):
            if q is not None: loc[q] = ACC + 16*T + 4*Q
    e("s_nop 9")
    if dump == "kvacc":
        e("s_nop 7"); dump_regs([loc[(sg, j)] + x for sg in range(2) for j in range(5) for x in range(4)], 0)
    for j in range(5):
        e(f"v_cvt_pk_bf16_f32 v{KB+2*j}, v{loc[(0,j)]}, v{loc[(0,j)]+1}")
        e(f"v_cvt_pk_bf16_f32 v{KB+2*j+1}, v{loc[(0,j)]+2}, v{loc[(0,j)]+3}")
    e(f"v_mov_b32 v{KB+10}, 0"); e(f"v_mov_b32 v{KB+11}, 0")
    e("s_nop 0")
    feature_map(KB, WF, PK0, PK1)
    for j in range(5):
        e(f"v_cvt_pk_bf16_f32 v{VB+2*j}, v{loc[(1,j)]}, v{loc[(1,j)]+1}")
        e(f"v_cvt_pk_bf16_f32 v{VB+2*j+1}, v{loc[(1,j)]+2}, v{loc[(1,j)]+3}")
    e(f"v_mov_b32 v{VB+10}, 0x3f80"); e(f"v_mov_b32 v{VB+11}, 0")
    for u in range(3):
        e(f"ds_write_b128 v{vRA+5+u}, v[{VB+4*u}:{VB+4*u+3}]")
    e("s_nop 7")
    e("s_nop 3")
    if dump == "pk":
        dump_regs([PK0+i for i in range(16)] + [PK1+i for i in range(4)], 0)
    softmax_pair(PK0, PK1, EP, EN, PH, TM)
    if dump == "phik": dump_regs([PH+i for i in range(20)], 0)
    for u in range(5):
        e(f"ds_write_b128 v{vRA+u}, v[{PH+4*u}:{PH+4*u+3}]")
    subbar(0)
    stamp(4)
    KD = 192; KF = 64
    for kap in range(4):
        f = KF + 16*kap
        for rd in range(2):
            e(f"ds_read_b64_tr_b16 v[{f+2*rd}:{f+2*rd+1}], v{vKA+rd} offset:{4096*kap}")
        for ct in range(3):
            for rd in range(2):
                e(f"ds_read_b64_tr_b16 v[{f+4+4*ct+2*rd}:{f+4+4*ct+2*rd+1}], v{vKB+2*ct+rd} offset:{4096*kap}")
    for kap in range(4):
        f = KF + 16*kap
        e(f"s_waitcnt lgkmcnt({min(15, 8*(3-kap))})")
        for ct in range(3):
            c = "0" if kap == 0 else f"v[{KD+4*ct}:{KD+4*ct+3}]"
            e(f"v_mfma_f32_16x16x32_bf16 v[{KD+4*ct}:{KD+4*ct+3}], v[{f}:{f+3}], v[{f+4+4*ct}:{f+4+4*ct+3}], {c}")
    subsignal(1)
    vWO = 40
    e("s_nop 3")
    for ct in range(3):
        e(f"v_cvt_pk_bf16_f32 v{KD+16+2*ct}, v{KD+4*ct}, v{KD+4*ct+1}")
        e(f"v_cvt_pk_bf16_f32 v{KD+16+2*ct+1}, v{KD+4*ct+2}, v{KD+4*ct+3}")
    for ct in range(3):
        e(f"v_min_u32 v{KD+16+2*ct}, -2, v{KD+16+2*ct}")
    for ct in range(3):
        e(f"buffer_store_dwordx2 v[{KD+16+2*ct}:{KD+16+2*ct+1}], v{vPA if ct < 2 else vPB}, s[{S_WS}:{S_WS+3}], s{sPART} offen offset:{128*ct} sc1")
    stamp(5)
    srd(S_B, 10, 640*1280)
    wo_setup(vWO, 2)
    lab = a.newlabel("RC"); lab2 = a.newlabel("RP")
    e(f"""
    s_waitcnt vmcnt(3)
    s_mov_b32 s{sSPIN}, {SPIN_G}
    s_mov_b32 s{sT+1}, {WS_PART + 3840}
    v_cmp_ne_u32 vcc, s{sNONCE}, v{vRF+1}
    s_cbranch_vccz {lab}
{lab2}:
    s_sub_u32 s{sSPIN}, s{sSPIN}, 1
    s_cbranch_scc1 L_end
    buffer_load_dword v{vRF+1}, v{vRF}, s[{S_WS}:{S_WS+3}], s{sT+1} offen sc1
    s_waitcnt vmcnt(0)
    v_cmp_ne_u32 vcc, s{sNONCE}, v{vRF+1}
    s_cbranch_vccnz {lab2}
{lab}:
    """)
    subwait(1, target=8)
    e(f"s_mov_b64 exec, s[{sEX}:{sEX+1}]")
    for sg in WO_P2:
        for rd in range(2): wo_dma(sg, rd, vWO)
    e("s_mov_b64 exec, -1")
    PL = 64; SUM = 128; IDA = 144; sMASK = 69; sMK = 70
    WO_PC = WO_ALL1[:NCS]; WO_PD = WO_ALL1[NCS:]
    e(f"""
    s_mov_b64 s[{sMK}:{sMK+1}], s[{sEX}:{sEX+1}]
    s_lshl_b32 s{sT+4}, s{sHP}, 16
    s_add_u32 s{sT+4}, s{sT+4}, {WS_PART}
    s_lshl_b32 s{sT}, s{sW4}, 6
    v_add_u32 v6, s{sT}, v0            ; tau
    v_lshlrev_b32 v7, 4, v6
    v_mov_b32 v4, 0x40000000
    v_cmp_gt_u32 vcc, 240, v6
    s_mov_b32 s{sT}, s{sT+4}
    s_mov_b32 s{sMASK}, 0xffff
    v_cndmask_b32 v7, v4, v7, vcc
    """)
    stamp(6)
    for r in range(16):
        e(f"buffer_load_dwordx4 v[{PL+4*r}:{PL+4*r+3}], v7, s[{S_WS}:{S_WS+3}], s{sT} offen sc1")
        e(f"s_add_u32 s{sT}, s{sT}, 4096")
    if VRED:
        for i in range(8): e(f"v_mov_b32 v{SUM+i}, 0")
        e(f"""
        v_mul_u32_u24 v4, 205, v6
        v_lshrrev_b32 v4, 12, v4           ; tau/20
        v_mul_u32_u24 v5, 20, v4
        v_sub_u32 v5, v6, v5               ; fp
        v_mul_u32_u24 v5, 96, v5
        v_mul_u32_u24 v8, 43, v4
        v_lshrrev_b32 v8, 8, v8            ; hd
        v_mul_u32_u24 v9, 6, v8
        v_sub_u32 v9, v4, v9               ; dq
        v_mul_u32_u24 v8, 1920, v8
        v_lshlrev_b32 v9, 3, v9
        v_add3_u32 v5, v5, v8, v9
        v_add_u32 v4, {L_KVF}, v5
        v_mov_b32 v9, {L_CNT + 512}
        v_cmp_gt_u32 vcc, 240, v6
        s_nop 1
        v_cndmask_b32 v4, v9, v4, vcc
        v_add_u32 v5, 48, v4
        """)
    else:
        e(f"""
        v_and_b32 v2, 15, v0
        v_lshrrev_b32 v3, 4, v0            ; G
        v_lshrrev_b32 v4, 3, v2            ; i>>3
        v_and_b32 v5, 7, v2                ; j*
        v_lshrrev_b32 v8, 1, v5            ; reg
        v_and_b32 v5, 1, v5
        v_lshlrev_b32 v5, 4, v5
        v_mov_b32 v9, 0x3f80
        v_lshlrev_b32 v9, v5, v9           ; 1.0 in the right half
        v_mov_b32 v13, 0
        """)
        for u in range(2):
            e(f"v_add_u32 v5, {2*u}, v4")
            e(f"v_cmp_eq_u32 s[{sT}:{sT+1}], v5, v3")
            for rr in range(4):
                e(f"v_cmp_eq_u32 vcc, {rr}, v8")
                e(f"s_nop 0")
                e(f"s_and_b64 vcc, vcc, s[{sT}:{sT+1}]")
                e(f"v_cndmask_b32 v{IDA+4*u+rr}, v13, v9, vcc")
        for i in range(8): e(f"v_mov_b32 v{SUM+i}, 0")
        e(f"""
        v_and_b32 v2, 15, v0
        v_lshrrev_b32 v3, 5, v0            ; g>>1
        v_lshlrev_b32 v3, 4, v3
        s_lshl_b32 s{sT}, s{sW4}, 6
        v_add3_u32 v2, v2, v3, s{sT}
        v_bfe_u32 v3, v0, 4, 1             ; p
        v_mul_u32_u24 v3, 48, v3
        """)
        for u in range(2):
            t = 4 + u
            e(f"""
            v_add_u32 v8, {32*u}, v2           ; tau
            v_mul_u32_u24 v9, 205, v8
            v_lshrrev_b32 v9, 12, v9           ; tau/20
            v_mul_u32_u24 v{t}, 20, v9
            v_sub_u32 v{t}, v8, v{t}           ; fp
            v_mul_u32_u24 v{t}, 96, v{t}
            v_mul_u32_u24 v13, 43, v9
            v_lshrrev_b32 v13, 8, v13          ; hd
            v_mul_u32_u24 v41, 6, v13
            v_sub_u32 v41, v9, v41             ; dq
            v_mul_u32_u24 v13, 1920, v13
            v_lshlrev_b32 v41, 3, v41
            v_add3_u32 v{t}, v{t}, v13, v41
            v_add3_u32 v{t}, v{t}, v3, 0
            v_add_u32 v{t}, {L_KVF}, v{t}
            v_mov_b32 v41, {L_CNT + 512}
            v_cmp_gt_u32 vcc, 240, v8
            s_nop 1
            v_cndmask_b32 v{t}, v41, v{t}, vcc
            """)

    def acc(r, lab):
        e(f"""
        v_max_u32 v13, v{PL+4*r}, v{PL+4*r+2}
        v_cmp_eq_u32 vcc, -1, v13
        s_cbranch_vccnz {lab}
        s_bitset0_b32 s{sMASK}, {r}
        """)
        if VRED:
            for i in range(4):
                src = PL + 4*r + i
                e(f"v_dot2c_f32_bf16 v{SUM+2*i}, v{src}, v{SUM+16}")
                e(f"v_dot2c_f32_bf16 v{SUM+2*i+1}, v{src}, v{SUM+17}")
        else:
            for u in range(2):
                e(f"v_mfma_f32_16x16x32_bf16 v[{SUM+4*u}:{SUM+4*u+3}], v[{IDA+4*u}:{IDA+4*u+3}], v[{PL+4*r}:{PL+4*r+3}], v[{SUM+4*u}:{SUM+4*u+3}]")
        a.label(lab)
    nC = 2*len(WO_PC)
    if nC:
        e(f"s_mov_b64 exec, s[{sMK}:{sMK+1}]")
        for sg in WO_PC:
            for rd in range(2): wo_dma(sg, rd, vWO)
        e("s_mov_b64 exec, -1")
    e(f"v_mov_b32 v{SUM+16}, 0x00003f80")
    e(f"v_mov_b32 v{SUM+17}, 0x3f800000")
    for r in range(16):
        e(f"s_waitcnt vmcnt({15-r+nC})")
        if r == 0: e(f"v_max_u32 v{SUM+10}, v{PL}, v{PL+2}")
        else: e(f"v_max3_u32 v{SUM+10}, v{SUM+10}, v{PL+4*r}, v{PL+4*r+2}")
        for i in range(4):
            src = PL + 4*r + i
            e(f"v_dot2c_f32_bf16 v{SUM+2*i}, v{src}, v{SUM+16}")
            e(f"v_dot2c_f32_bf16 v{SUM+2*i+1}, v{src}, v{SUM+17}")
    e(f"""
    v_cmp_eq_u32 vcc, -1, v{SUM+10}
    s_cbranch_vccz L_s1_done
    """)
    for i in range(8): e(f"v_mov_b32 v{SUM+i}, 0")
    for r in range(16):
        acc(r, f"L_s1a_{r}")
    e(f"""
    s_mov_b32 s{sSPIN}, {SPIN_G}
L_s1_loop:
    s_cmp_eq_u32 s{sMASK}, 0
    s_cbranch_scc1 L_s1_done
    s_sub_u32 s{sSPIN}, s{sSPIN}, 1
    s_cbranch_scc1 L_end
    """)
    for r in range(16):
        e(f"""
        s_bitcmp0_b32 s{sMASK}, {r}
        s_cbranch_scc1 L_s1l_{r}
        s_add_u32 s{sT}, s{sT+4}, {4096*r}
        buffer_load_dwordx4 v[{PL+4*r}:{PL+4*r+3}], v7, s[{S_WS}:{S_WS+3}], s{sT} offen sc1
L_s1l_{r}:
        """)
    e("s_waitcnt vmcnt(0)")
    for r in range(16):
        e(f"s_bitcmp0_b32 s{sMASK}, {r}")
        e(f"s_cbranch_scc1 L_s1b_{r}")
        acc(r, f"L_s1b_{r}")
    e("s_branch L_s1_loop")
    a.label("L_s1_done")
    e("s_nop 7")
    for u in range(2):
        e(f"v_cvt_pk_bf16_f32 v{SUM+12+2*u}, v{SUM+4*u}, v{SUM+4*u+1}")
        e(f"v_cvt_pk_bf16_f32 v{SUM+13+2*u}, v{SUM+4*u+2}, v{SUM+4*u+3}")
    e(f"ds_write_b64 v4, v[{SUM+12}:{SUM+13}]")
    e(f"ds_write_b64 v5, v[{SUM+14}:{SUM+15}]")
    subsignal(2)
    stamp(7)
    if DWAIT: subwait(5, tmp=8)
    e(f"s_mov_b64 exec, s[{sMK}:{sMK+1}]")
    for sg in WO_PD:
        for rd in range(2): wo_dma(sg, rd, vWO)
    e("s_mov_b64 exec, -1")
    vWA = 10
    e(f"""
    v_lshrrev_b32 v2, 4, v0            ; G
    v_bfe_u32 v3, v0, 2, 2             ; rp
    v_and_b32 v4, 3, v0                ; c
    v_lshrrev_b32 v5, 1, v2
    v_lshlrev_b32 v5, 4, v5            ; 16*(G>>1)
    v_and_b32 v6, 1, v2
    v_lshlrev_b32 v6, 2, v6            ; 4*(G&1)
    v_add3_u32 v5, v5, v6, v3
    v_mul_u32_u24 v5, 160, v5
    v_lshlrev_b32 v4, 3, v4
    v_add_u32 v{vWA}, v5, v4
    v_add_u32 v{vWA+1}, 0x10000, v{vWA}
    v_add_u32 v{vWA+2}, 0x20000, v{vWA}
    s_and_b32 s{sT}, s{sHP}, 1
    s_lshl_b32 s{sT}, s{sT}, 2
    s_add_u32 s{sT}, s{sT}, s{sW4}     ; tt
    s_lshl_b32 s{sT+1}, s{sRC}, 3
    s_add_u32 s{sT+6}, s{sT}, s{sT+1}
    s_mul_i32 s{sT+4}, s{sT+6}, 20480
    s_add_u32 s{sT+4}, s{sT+4}, {WS_O}
    v_and_b32 v2, 15, v0
    v_lshrrev_b32 v3, 2, v2
    v_mul_u32_u24 v3, 5120, v3
    v_and_b32 v4, 3, v2
    v_lshlrev_b32 v4, 8, v4
    v_add3_u32 v2, v3, v4, 0
    v_add_u32 v2, 4096, v2
    v_lshlrev_b32 v7, 4, v0            ; lane*16
    """)
    OF = 96; OD = 40; AB = [176, 196, 216, 236, 60, 16]
    NB = len(AB)
    def wo_reads(sg):
        L = L_WO(sg); reg = vWA + L // 65536; b = AB[sg % NB]
        assert (L // 65536) == ((L + 1408) // 65536)
        off = L % 65536
        for nt in range(5):
            for rd in range(2):
                e(f"ds_read_b64_tr_b16 v[{b+4*nt+2*rd}:{b+4*nt+2*rd+1}], v{reg} offset:{off + rd*1280 + nt*32}")
    e("s_waitcnt vmcnt(0)")
    def wo_reads_nt(sg, nt):
        L = L_WO(sg); reg = vWA + L // 65536; b = AB[sg % NB]
        off = L % 65536
        for rd in range(2):
            e(f"ds_read_b64_tr_b16 v[{b+4*nt+2*rd}:{b+4*nt+2*rd+1}], v{reg} offset:{off + rd*1280 + nt*32}")
    subbar(6, tmp=8)
    def oload(sg):
        d = OF + 4*sg
        e(f"buffer_load_dwordx4 v[{d}:{d+3}], v7, s[{S_WS}:{S_WS+3}], s{sT} offen offset:{(sg%4)*1024} sc1")
        if sg % 4 == 3: e(f"s_add_u32 s{sT}, s{sT}, 4096")
    def poll(): e(f"buffer_load_dword v3, v2, s[{S_WS}:{S_WS+3}], s{sT+4} offen sc1")
    def sloads():
        e(f"s_add_u32 s{sT}, s{sT+4}, {8*1024}")
        for sg in range(10, 20): oload(sg)
    poll()
    for sg in range(NB): wo_reads(sg)
    e(f"""
    s_mov_b32 s{sSPIN}, {SPIN_G}
    s_mov_b32 s{sFC}, 0
    s_mov_b32 s{sT+2}, 0x00ff00ff
    s_mov_b32 s{sT+3}, 0x00ff00ff
L_s2f_chk:
    s_waitcnt vmcnt(0)
    v_cmp_eq_u32 vcc, -1, v3
    s_and_b64 vcc, vcc, s[{sT+2}:{sT+3}]
    s_cbranch_vccz L_s2f_go
    s_sub_u32 s{sSPIN}, s{sSPIN}, 1
    s_cbranch_scc1 L_end
    """)
    poll()
    e(f"""
    s_branch L_s2f_chk
L_s2f_go:
    s_mov_b32 s{sT}, s{sT+4}
    """)
    for sg in range(10): oload(sg)
    e(f"""
    s_mov_b32 s{sT+2}, 0xff00ff00
    s_mov_b32 s{sT+3}, 0xff00ff00
    v_cmp_eq_u32 vcc, -1, v3
    s_and_b64 vcc, vcc, s[{sT+2}:{sT+3}]
    s_cbranch_vccz L_s2_sl
    """)
    poll()
    e(f"""
    s_waitcnt vmcnt(0)
    v_cmp_eq_u32 vcc, -1, v3
    s_and_b64 vcc, vcc, s[{sT+2}:{sT+3}]
    s_cbranch_vccz L_s2_sl
    """)
    poll()
    e(f"""
    s_branch L_s2_p
L_s2_sl:
    s_mov_b32 s{sFC}, 2
    """)
    sloads()
    a.label("L_s2_p")
    stamp(8)
    retries = []
    e(f"s_mov_b32 s{sSPIN}, {SPIN_G}")
    for sg in range(20):
        if sg == 10:
            e(f"""
            s_cmp_eq_u32 s{sFC}, 2
            s_cbranch_scc1 L_s2_have
L_s2_chk:
            s_waitcnt vmcnt(0)
            v_cmp_eq_u32 vcc, -1, v3
            s_and_b64 vcc, vcc, s[{sT+2}:{sT+3}]
            s_cbranch_vccz L_s2_go
            s_sub_u32 s{sSPIN}, s{sSPIN}, 1
            s_cbranch_scc1 L_end
            """)
            poll()
            e("s_branch L_s2_chk")
            a.label("L_s2_go")
            sloads()
            a.label("L_s2_have")
        e(f"s_waitcnt vmcnt({19-sg}) lgkmcnt({10 if (sg >= 1 and sg + NB - 1 < 20) else 0})")
        o = OF + 4*sg
        a.label(f"L_chk_{sg}")
        e(f"v_max_u32 v13, v{o}, v{o+2}")
        e(f"v_cmp_eq_u32 vcc, -1, v13")
        e(f"s_cbranch_vccnz L_rt_{sg}")
        retries.append(sg)
        for nt in range(5):
            D = OD + 4*nt
            c = "0" if sg == 0 else f"v[{D}:{D+3}]"
            b = AB[sg % NB] + 4*nt
            e(f"v_mfma_f32_16x16x32_bf16 v[{D}:{D+3}], v[{b}:{b+3}], v[{o}:{o+3}], {c}")
            if sg + NB < 20: wo_reads_nt(sg + NB, nt)
    srd(S_B, 12, 2048*1280)
    e(f"""
    v_and_b32 v2, 15, v0
    v_lshrrev_b32 v3, 4, v0
    s_lshl_b32 s{sT}, s{sT+6}, 4
    v_add_u32 v2, s{sT}, v2
    v_mul_u32_u24 v2, 1280, v2
    v_lshlrev_b32 v4, 3, v3
    v_add_u32 v2, v2, v4
    s_lshr_b32 s{sT}, s{sHP}, 1
    s_mul_i32 s{sT}, s{sT}, 160
    """)
    for nt in range(5):
        D = OD + 4*nt; P = 64 + 2*nt
        e(f"v_cvt_pk_bf16_f32 v{P}, v{D}, v{D+1}")
        e(f"v_cvt_pk_bf16_f32 v{P+1}, v{D+2}, v{D+3}")
    for nt in range(5):
        P = 64 + 2*nt
        e(f"buffer_store_dwordx2 v[{P}:{P+1}], v2, s[{S_B}:{S_B+3}], s{sT} offen offset:{32*nt} {OUTFL}")
    e("s_branch L_fin")
    for sg in retries:
        o = OF + 4*sg
        a.label(f"L_rt_{sg}")
        e(f"""
        s_sub_u32 s{sSPIN}, s{sSPIN}, 1
        s_cbranch_scc1 L_end
        s_add_u32 s{sT}, s{sT+4}, {sg*1024}
        buffer_load_dwordx4 v[{o}:{o+3}], v7, s[{S_WS}:{S_WS+3}], s{sT} offen sc1
        s_waitcnt vmcnt(0)
        s_branch L_chk_{sg}
        """)

    a.label("L_lq")
    vVX, vVW, vWQ = 10, 11, 12
    vBA = 14
    XF = 64
    e(f"""
    v_lshrrev_b32 v2, 3, v0
    s_lshl_b32 s{sT}, s{sW4}, 3
    v_add_u32 v2, s{sT}, v2
    v_mul_u32_u24 v2, 1280, v2
    v_lshrrev_b32 v3, 4, v0                 ; r = l>>4
    s_and_b32 s{sT}, s{sW4}, 1
    s_lshl_b32 s{sT}, s{sT}, 2
    v_add_u32 v4, s{sT}, v3
    v_and_b32 v5, 7, v0
    v_xor_b32 v5, v5, v4
    v_lshlrev_b32 v5, 4, v5
    v_add_u32 v{vVX}, v2, v5
    v_and_b32 v4, 15, v0
    v_lshlrev_b32 v5, 2, v3
    v_sub_u32 v4, v4, v5
    v_and_b32 v4, 15, v4                    ; pos
    v_lshrrev_b32 v5, 3, v4                 ; seg
    v_bfe_u32 v6, v4, 2, 1                  ; part
    v_and_b32 v7, 3, v4                     ; i4
    v_mul_lo_u32 v8, v6, s{sBB}
    v_add_u32 v8, v8, v7                    ; j
    v_mov_b32 v9, 5
    v_mov_b32 v13, s{sBB}
    v_cmp_eq_u32 vcc, 0, v6
    s_lshl_b32 s{sT}, s{sW4}, 2
    v_add_u32 v2, s{sT}, v3
    v_cndmask_b32 v9, v9, v13, vcc
    v_cmp_lt_u32 vcc, v8, v9
    v_mul_u32_u24 v2, 3840, v2
    v_add_u32 v5, 1, v5
    v_mul_u32_u24 v5, 1280, v5
    v_lshlrev_b32 v8, 4, v8
    v_add3_u32 v{vVW}, v2, v5, v8
    v_mov_b32 v7, 0x40000000
    v_cndmask_b32 v{vVW}, v7, v{vVW}, vcc
    s_mul_i32 s{sSOFX}, s{sRC}, {128*1280}
    s_mul_i32 s{sSOFW}, s{sHP}, 80
    s_lshl_b32 s{sM0}, s{sW4}, 10
    """)
    stamp(4)
    e("s_waitcnt lgkmcnt(0)")
    stamp(8)
    srd(S_X, 4, 2048*1280)
    srd(S_W, 6, 640*3840)
    rotmode = [x for x in exp.split(',') if x.startswith('rot')]
    if rotmode:
        rm = rotmode[0]
        if rm == 'rot1': e(f"s_and_b32 s65, s{sHP}, 1")
        elif rm == 'rot5': e(f"s_and_b32 s65, s{sHP}, 1"); e("s_mul_i32 s65, s65, 5")
        elif rm == 'rotrc': e(f"s_and_b32 s65, s{sRC}, 1")
        elif rm == 'rothp': e(f"s_and_b32 s65, s{sHP}, 7")
        elif rm == 'rotmix': e(f"s_xor_b32 s65, s{sHP}, s{sRC}"); e("s_and_b32 s65, s65, 1")
    def issue_stage_last(s):
        m0b = (s % R) * SLOT
        for m in range(4):
            e(f"s_add_u32 m0, s{sM0}, {m0b + m*4096}")
            e(f"s_add_u32 s{sT}, s{sSOFX}, {m*32*1280 + s*128}")
            e(f"buffer_load_dwordx4 v{vVX}, s[{S_X}:{S_X+3}], s{sT} offen lds")
        for m in range(4):
            e(f"s_add_u32 m0, s{sM0}, {m0b + 16384 + m*4096}")
            e(f"s_add_u32 s{sT}, s{sSOFW}, {m*16*3840 + s*64*3840}")
            e(f"buffer_load_dwordx4 v{vVW}, s[{S_W}:{S_W+3}], s{sT} offen lds")
    def issue_stage(s):
        if s == NST - 1: return issue_stage_last(s)
        m0b = (s % R) * SLOT
        if rotmode:
            e(f"s_add_u32 s66, s65, {s}")
            e(f"s_sub_u32 s67, s66, 10")
            e(f"s_cmp_ge_u32 s66, 10")
            e(f"s_cselect_b32 s66, s67, s66")
            e(f"s_mul_i32 s67, s66, {64*3840}")
            e(f"s_lshl_b32 s66, s66, 7")
            e(f"s_add_u32 s66, s66, s{sSOFX}")
            e(f"s_add_u32 s67, s67, s{sSOFW}")
            for m in range(4):
                e(f"s_add_u32 m0, s{sM0}, {m0b + m*4096}")
                e(f"s_add_u32 s{sT}, s66, {m*32*1280}")
                e(f"buffer_load_dwordx4 v{vVX}, s[{S_X}:{S_X+3}], s{sT} offen lds")
                e(f"s_add_u32 m0, s{sM0}, {m0b + 16384 + m*4096}")
                e(f"s_add_u32 s{sT}, s67, {m*16*3840}")
                e(f"buffer_load_dwordx4 v{vVW}, s[{S_W}:{S_W+3}], s{sT} offen lds")
            return
        for m in range(4):
            e(f"s_add_u32 m0, s{sM0}, {m0b + m*4096}")
            e(f"s_add_u32 s{sT}, s{sSOFX}, {m*32*1280 + s*128}")
            e(f"buffer_load_dwordx4 v{vVX}, s[{S_X}:{S_X+3}], s{sT} offen lds")
            e(f"s_add_u32 m0, s{sM0}, {m0b + 16384 + m*4096}")
            e(f"s_add_u32 s{sT}, s{sSOFW}, {m*16*3840 + s*64*3840}")
            e(f"buffer_load_dwordx4 v{vVW}, s[{S_W}:{S_W+3}], s{sT} offen lds")
    issue_stage(0)
    srd(S_A, 8, 32*800)
    e(f"""
    v_lshlrev_b32 v2, 4, v0
    s_and_b32 s{sT}, s{sW4}, 1
    s_lshl_b32 s{sT}, s{sT}, 10
    s_add_u32 m0, s{sT}, {L_PHI}
    s_mul_i32 s{sT+1}, s{sHP}, 1600
    s_add_u32 s{sT}, s{sT}, s{sT+1}
    buffer_load_dwordx4 v2, s[{S_A}:{S_A+3}], s{sT} offen lds
    """)
    issue_stage(1)
    srd(S_WS, 16, 0x10000000)
    sPART = 64
    e(f"""
    s_lshl_b32 s{sPART}, s{sHP}, 4
    s_add_u32 s{sPART}, s{sPART}, s{sRC}
    s_lshl_b32 s{sPART}, s{sPART}, 12
    s_add_u32 s{sPART}, s{sPART}, {WS_PART}
    v_mov_b32 v40, -1
    v_mov_b32 v41, -1
    v_mov_b32 v42, -1
    v_mov_b32 v43, -1
    s_lshl_b32 s{sT}, s{sW4}, 6
    v_add_u32 v2, s{sT}, v0            ; tau
    v_lshlrev_b32 v8, 4, v2
    v_mov_b32 v3, 0x40000000
    v_cmp_gt_u32 vcc, 240, v2
    v_lshrrev_b32 v9, 4, v0            ; g = l>>4
    v_and_b32 v44, 15, v0
    v_cndmask_b32 v8, v3, v8, vcc
    v_lshlrev_b32 v44, 4, v44          ; t'*16
    s_lshl_b32 s{sT}, s{sRC}, 3
    s_lshl_b32 s{sT+1}, s{sW4}, 1
    s_add_u32 s{sT}, s{sT}, s{sT+1}
    s_mul_i32 s{sT}, s{sT}, 20480
    s_mul_i32 s{sT+1}, s{sBLK}, 5120
    s_add_u32 s{sT}, s{sT}, s{sT+1}
    s_lshl_b32 s{sT+1}, s{sG}, 8
    s_add_u32 s{sT}, s{sT}, s{sT+1}
    s_add_u32 s{sT+3}, s{sT}, {WS_O}
    v_lshlrev_b32 v45, 10, v9
    v_add_u32 v45, v45, v44            ; i=0
    v_mov_b32 v46, 4096
    v_add_u32 v47, -1, v9
    v_lshlrev_b32 v47, 10, v47
    v_add_u32 v47, 20480, v47
    v_cmp_eq_u32 vcc, 0, v9
    s_nop 1
    v_cndmask_b32 v46, v47, v46, vcc
    v_add_u32 v46, v46, v44            ; i=1
    v_add_u32 v47, 3, v9
    v_lshlrev_b32 v47, 10, v47
    v_add_u32 v47, 20480, v47
    v_add_u32 v47, v47, v44
    v_cmp_gt_u32 vcc, 2, v9
    s_nop 1
    v_cndmask_b32 v47, v3, v47, vcc    ; i=2
    buffer_store_dwordx4 v[40:43], v8, s[{S_WS}:{S_WS+3}], s{sPART} offen sc1
    buffer_store_dwordx4 v[40:43], v45, s[{S_WS}:{S_WS+3}], s{sT+3} offen sc1
    buffer_store_dwordx4 v[40:43], v46, s[{S_WS}:{S_WS+3}], s{sT+3} offen sc1
    buffer_store_dwordx4 v[40:43], v47, s[{S_WS}:{S_WS+3}], s{sT+3} offen sc1
    """)
    xfrag_addr(vBA, 2)
    VQ = [12, 13, 22, 23, 62]
    for j in range(5):
        e(f"""
        v_add_u32 v2, {64*j}, v0               ; n = 64j + l  (0..319)
        v_mul_u32_u24 v3, 205, v2
        v_lshrrev_b32 v3, 10, v3               ; n/5
        v_mul_u32_u24 v4, 5, v3
        v_sub_u32 v4, v2, v4                   ; n%5
        v_lshlrev_b32 v4, 4, v4
        v_mul_u32_u24 v3, 3840, v3
        v_add_u32 v{VQ[j]}, v3, v4
        """)
    def issue_wq_all(gis=(0, 1, 2)):
        for gi in gis:
            lab = a.newlabel("WQ")
            if gi == 2:
                e(f"s_cmp_ge_u32 s{sW4}, 2")
                e(f"s_cbranch_scc1 {lab}")
            e(f"s_mul_i32 s{sT+1}, s{sW4}, 5120")
            e(f"s_mul_i32 s{sT+2}, s{sW4}, {64*3840}")
            e(f"s_add_u32 s{sT+2}, s{sT+2}, s{sSOFW}")
            e(f"s_add_u32 s{sT+2}, s{sT+2}, {gi*4*64*3840}")
            for j in range(5):
                e(f"s_add_u32 m0, s{sT+1}, {L_WQ + gi*4*5120 + j*1024}")
                e("s_nop 0")
                e(f"buffer_load_dwordx4 v{VQ[j]}, s[{S_W}:{S_W+3}], s{sT+2} offen lds")
            a.label(lab)
    base = Base([vBA, vBA+1, vBA+2, vBA+3])
    stamp(1)
    for s in range(NST):
        if s <= 1: e("s_waitcnt vmcnt(12) lgkmcnt(0)")
        elif s <= 8: e("s_waitcnt vmcnt(8) lgkmcnt(0)")
        else: e("s_waitcnt vmcnt(7) lgkmcnt(0)")
        e("s_barrier")
        sstamp(s+1)
        if s == 0: stamp(2)
        sb = base.set(s)
        for kk in range(4):
            d = XF + 16*s + 4*kk
            e(f"ds_read_b128 v[{d}:{d+3}], v{vBA+kk} offset:{sb}")
        if s + 2 < NST: issue_stage(s+2)
        if s == NST - 2: issue_wq_all((0,))
        if s == NST - 1:
            e("s_waitcnt vmcnt(5)")
            e("s_barrier")
            issue_wq_all((1, 2))
    vOA = 56
    def HOIST_LQ():
        lane_decomp32(2, 3, 4, 5, 6)
        e(f"""
        v_mul_u32_u24 v7, 800, v6
        v_mul_u32_u24 v8, 40, v3
        v_add_u32 v7, v7, v8
        v_lshlrev_b32 v8, 3, v5
        v_add_u32 v7, v7, v8
        v_add_u32 v7, {L_PHI}, v7
        v_lshrrev_b32 v8, 1, v2
        v_mov_b32 v21, {L_ZERO}
        v_cmp_eq_u32 vcc, v8, v6
        s_nop 1
        v_cndmask_b32 v20, v21, v7, vcc
        v_cmp_eq_u32 s[46:47], 0, v5
        s_nop 1
        s_and_b64 vcc, vcc, s[46:47]
        v_add_u32 v7, 32, v7
        s_nop 0
        v_cndmask_b32 v21, v21, v7, vcc
        """)

        lane_decomp32(2, 3, 4, 5, 6)
        e(f"""
        v_mul_u32_u24 v7, 1920, v6
        v_mul_u32_u24 v8, 48, v3
        v_lshlrev_b32 v9, 3, v5
        v_add3_u32 v7, v7, v8, v9
        v_add_u32 v7, {L_KVF}, v7
        v_lshrrev_b32 v8, 1, v2
        v_mov_b32 v9, {L_ZERO}
        v_cmp_eq_u32 vcc, v8, v6
        s_nop 1
        v_cndmask_b32 v{vOA}, v9, v7, vcc
        v_cmp_gt_u32 s[46:47], 2, v5
        s_nop 1
        s_and_b64 vcc, vcc, s[46:47]
        v_add_u32 v7, 32, v7
        s_nop 0
        v_cndmask_b32 v{vOA+1}, v9, v7, vcc
        v_and_b32 v2, 15, v0
        v_lshlrev_b32 v2, 4, v2
        v_bfe_u32 v3, v0, 4, 1
        v_mul_u32_u24 v3, 20480, v3
        v_add_u32 v2, v2, v3
        v_lshrrev_b32 v4, 5, v0            ; h
        v_lshlrev_b32 v5, 11, v4           ; c5 = 2h -> 2h*1024
        v_add_u32 v58, v5, v2
        v_lshlrev_b32 v6, 3, v4
        v_add_u32 v59, v6, v2
        s_lshl_b32 s44, s{sRC}, 3
        s_lshl_b32 s{sT+1}, s{sW4}, 1
        s_add_u32 s44, s44, s{sT+1}
        s_mul_i32 s44, s44, 20480
        s_mul_i32 s{sT+1}, s{sBLK}, 5120
        s_add_u32 s44, s44, s{sT+1}
        s_lshl_b32 s{sT+1}, s{sG}, 8
        s_add_u32 s44, s44, s{sT+1}
        s_add_u32 s44, s44, {WS_O}
        s_add_u32 s45, s44, 4096
        """)

    QA = 224; vQA = 18; vWO = 56
    lane_decomp32(2, 3, 4, 5, 6)
    e(f"""
    v_lshrrev_b32 v7, 1, v2
    v_lshlrev_b32 v7, 3, v7
    v_add_u32 v7, v7, v3
    v_mul_u32_u24 v7, 80, v7
    v_mul_u32_u24 v6, 40, v6
    v_add_u32 v7, v7, v6
    v_add_u32 v7, {L_WQ}, v7
    v_lshlrev_b32 v5, 3, v5
    v_add_u32 v{vQA}, v7, v5
    v_add_u32 v{vQA+1}, 32, v7
    """)
    e("s_waitcnt lgkmcnt(0)")
    subsignal(1, tmp=60)
    HOIST_LQ()
    e("s_waitcnt vmcnt(0)")
    subbar(7, tmp=60)
    subwait(0, tmp=60)
    if 'prio' in exp: e("s_setprio 1")
    stamp(3)
    if 'p1only' in exp:
        e("s_waitcnt vmcnt(0)")
        e("s_branch L_fin")
    QF3 = [24, 32, 40, 48]
    def q_reads3(k):
        b = QF3[k % 4]
        for T in range(2):
            for rd in range(2):
                e(f"ds_read_b64_tr_b16 v[{b+4*T+2*rd}:{b+4*T+2*rd+1}], v{vQA+T} offset:{(16*k+4*rd)*80}")
    wolist = [(sg, rd) for sg in WO_P1 for rd in range(2)]
    nwo = 0
    q_reads3(0); q_reads3(1); q_reads3(2)
    for k in range(40):
        e(f"s_waitcnt lgkmcnt({8 if k + 3 < 40 else 4*min(2, 39-k)})")
        for T in range(2):
            c = "0" if k == 0 else f"v[{QA+16*T}:{QA+16*T+15}]"
            b = QF3[k % 4]
            e(f"v_mfma_f32_32x32x16_bf16 v[{QA+16*T}:{QA+16*T+15}], v[{b+4*T}:{b+4*T+3}], v[{XF+4*k}:{XF+4*k+3}], {c}")
            if k + 3 < 40:
                bb = QF3[(k+3) % 4]
                for rd in range(2):
                    e(f"ds_read_b64_tr_b16 v[{bb+4*T+2*rd}:{bb+4*T+2*rd+1}], v{vQA+T} offset:{(16*(k+3)+4*rd)*80}")
    if 'prio' in exp: e("s_setprio 0")
    stamp(5)
    WF = 64; QB = 88; PQ0 = 100; PQ1 = 116; EP = 132; EN = 152; PH = 172; TM = 192
    for u in range(2):
        for step in range(3):
            for rd in range(2):
                d = WF + u*12 + step*4 + 2*rd
                if step == 2 and rd == 1:
                    e(f"v_mov_b32 v{d}, 0"); e(f"v_mov_b32 v{d+1}, 0")
                else:
                    e(f"ds_read_b64_tr_b16 v[{d}:{d+1}], v{20+u} offset:{(8*step+4*rd)*40}")
    e("s_nop 7")
    if dump == "qacc":
        e("s_nop 7"); dump_regs([QA+i for i in range(20)], 0)
    for j in range(5):
        src = QA + 4*j if j < 4 else QA + 16
        e(f"v_cvt_pk_bf16_f32 v{QB+2*j}, v{src}, v{src+1}")
        e(f"v_cvt_pk_bf16_f32 v{QB+2*j+1}, v{src+2}, v{src+3}")
    e(f"v_mov_b32 v{QB+10}, 0"); e(f"v_mov_b32 v{QB+11}, 0")
    e("s_waitcnt lgkmcnt(0)")
    feature_map(QB, WF, PQ0, PQ1)
    e("s_nop 7")
    e("s_nop 3")
    softmax_pair(PQ0, PQ1, EP, EN, PH, TM)
    if dump == "phiq": dump_regs([PH+i for i in range(20)], 0)
    stamp(6)
    subwait(2)
    stamp(7)
    KA = 64; N0 = 104; N1 = 120
    for st in range(5):
        for U in range(2):
            for rd in range(2):
                d = KA + (U*5+st)*4 + 2*rd
                e(f"ds_read_b64_tr_b16 v[{d}:{d+1}], v{vOA+U} offset:{(8*st+4*rd)*48}")
    for st in range(5):
        e(f"s_waitcnt lgkmcnt({min(15, 4*(4-st))})")
        for U, N in ((0, N0), (1, N1)):
            c = "0" if st == 0 else f"v[{N}:{N+15}]"
            d = KA + (U*5+st)*4
            e(f"v_mfma_f32_32x32x16_bf16 v[{N}:{N+15}], v[{d}:{d+3}], v[{PH+4*st}:{PH+4*st+3}], {c}")
    e("s_nop 7")
    e("s_nop 3")
    e(f"v_add_f32 v8, 0x358637bd, v{N1+4}")
    e("v_rcp_f32 v8, v8")
    e("s_nop 0")
    OB = 136
    for i in range(8):
        e(f"v_pk_mul_f32 v[{N0+2*i}:{N0+2*i+1}], v[{N0+2*i}:{N0+2*i+1}], v[8:9] op_sel_hi:[1,0]")
    for i in range(2):
        e(f"v_pk_mul_f32 v[{N1+2*i}:{N1+2*i+1}], v[{N1+2*i}:{N1+2*i+1}], v[8:9] op_sel_hi:[1,0]")
    for i in range(8):
        e(f"v_cvt_pk_bf16_f32 v{OB+i}, v{N0+2*i}, v{N0+2*i+1}")
    for i in range(2):
        e(f"v_cvt_pk_bf16_f32 v{OB+8+i}, v{N1+2*i}, v{N1+2*i+1}")
    for i in (0, 2, 4, 6, 8):
        e(f"v_min_u32 v{OB+i}, -2, v{OB+i}")
    e(f"""
    buffer_store_dwordx4 v[{OB}:{OB+3}], v58, s[{S_WS}:{S_WS+3}], s44 offen sc1
    buffer_store_dwordx4 v[{OB+4}:{OB+7}], v58, s[{S_WS}:{S_WS+3}], s44 offen offset:1024 sc1
    buffer_store_dwordx2 v[{OB+8}:{OB+9}], v59, s[{S_WS}:{S_WS+3}], s45 offen sc1
    """)
    subsignal(5)
    a.label("L_fin")
    if until:
        e(f"""
        s_waitcnt vmcnt(0) lgkmcnt(0)
L_until:
        s_memrealtime s[94:95]
        s_waitcnt lgkmcnt(0)
        s_sub_u32 s96, s94, s98
        s_cmp_lt_u32 s96, {until}
        s_cbranch_scc1 L_until
        """)
    if stamps:
        stamp(10)
        e("s_waitcnt vmcnt(0)")
        e(f"""
        s_waitcnt lgkmcnt(0)
        s_lshl_b32 s{sT}, s2, 3
        s_add_u32 s{sT}, s{sT}, s{sWAVE}
        s_lshl_b32 s{sT}, s{sT}, 6
        s_add_u32 s{sT}, s{sT}, {WS_STAMP}
        v_mov_b32 v2, 0
        """)
        for i in range(NS): e(f"v_mov_b32 v{20+i}, s{sST+2*i}")
        e(f"""
        s_mov_b64 exec, 1
        buffer_store_dwordx4 v[20:23], v2, s[{S_WS}:{S_WS+3}], s{sT} offen
        buffer_store_dwordx4 v[24:27], v2, s[{S_WS}:{S_WS+3}], s{sT} offen offset:16
        buffer_store_dwordx4 v[28:31], v2, s[{S_WS}:{S_WS+3}], s{sT} offen offset:32
        """)
    if dbgwg >= 0:
        e(f"""
        s_cmp_lg_u32 s2, {dbgwg}
        s_cbranch_scc1 L_end
        s_cmp_lg_u32 s{sWAVE}, {dbgwave}
        s_cbranch_scc1 L_end
        s_mov_b64 exec, -1
        s_mov_b32 s72, s14
        s_and_b32 s73, s15, 0xffff
        s_mov_b32 s74, 256
        s_mov_b32 s75, 0x20000
        """)
        for i in range(1, NS):
            e(f"s_sub_u32 s{sT}, s{sST+2*i}, s{sST}")
            e(f"v_mov_b32 v{20+i}, s{sT}")
        e("v_mov_b32 v2, 0")
        e("s_mov_b64 exec, 1")
        for i in range(1, NS):
            e(f"buffer_store_dword v{20+i}, v2, s[72:75], 0 offen offset:{4*i}")
    if dbgwg == -2:
        e(f"""
        s_cmp_lg_u32 s{sWAVE}, {dbgwave}
        s_cbranch_scc1 L_end
        s_mov_b64 exec, -1
        s_mov_b32 s72, s14
        s_and_b32 s73, s15, 0xffff
        s_mov_b32 s74, 256
        s_mov_b32 s75, 0x20000
        """)
        for i in range(1, NS):
            e(f"s_sub_u32 s{sT}, s{sST+2*i}, s{sST}")
            e(f"v_mov_b32 v{20+i}, s{sT}")
        e("v_mov_b32 v2, 0")
        e("s_mov_b64 exec, 1")
        for i in range(1, NS):
            if i == 9: continue
            e(f"buffer_atomic_umax v{20+i}, v2, s[72:75], 0 offen offset:{4*i}")
    a.label("L_end")
    e("s_endpgm")
    a.label("L_code_end")
    hdr = HEADER + f"; @launch grid=(256,1,1) block=(512,1,1) lds={LDS_BYTES}\n"
    return hdr + f""".amdgcn_target "amdgcn-amd-amdhsa--gfx950"
.text
.globl {KN}
.p2align 8
.type {KN},@function
{KN}:
""" + a.text() + """.section .rodata,"a"
""" + kernel_desc(KN, 256, 102, 256)

if __name__ == "__main__":
    import argparse
    ap = argparse.ArgumentParser()
    ap.add_argument("--stamps", action="store_true")
    ap.add_argument("--dump", default=None)
    ap.add_argument("--stagest", action="store_true")
    ap.add_argument("--exp", default="")
    ap.add_argument("--until", type=int, default=0)
    ap.add_argument("--dbgwg", type=int, default=-1)
    ap.add_argument("--dbgwave", type=int, default=0)
    ap.add_argument("--pf", default="none")
    ap.add_argument("--nogpf", action="store_true")
    ap.add_argument("--nocode", action="store_true")
    ap.add_argument("--outfl", default="")
    ap.add_argument("--vred", action="store_true")
    ap.add_argument("--dwait", action="store_true")
    ap.add_argument("--ncs", type=int, default=4)
    args = ap.parse_args()
    DWAIT = args.dwait; NCS = args.ncs
    OUTFL = args.outfl.replace("+", " ")
    if args.pf == "none": PF = False
    else: PF = True; PFS = PFS_TAB[args.pf]
    if args.nogpf: GPF = False
    if args.nocode: GPF_CODE = False
    print(gen(stamps=args.stamps, dump=args.dump, stagest=args.stagest, exp=args.exp, until=args.until, dbgwg=args.dbgwg, dbgwave=args.dbgwave))
```
